```python
import torch

def _softmax(x, axis=-1):
    return torch.softmax(x, dim=axis)
def _gelu(x):
    return torch.nn.functional.gelu(x, approximate="tanh")
def _silu(x):
    return torch.nn.functional.silu(x)
def _sigmoid(x):
    return torch.sigmoid(x)
def _layernorm(x, axis=-1, eps=1e-5):
    m = x.mean(dim=axis, keepdim=True)
    v = x.var(dim=axis, keepdim=True, unbiased=False)
    return (x - m) / torch.sqrt(v + eps)
def _scatter_add(tgt, idx, src, axis=0):
    return tgt.clone().index_add_(axis, idx, src)
def _segment_sum(src, seg, n):
    out = torch.zeros((n,) + src.shape[1:], dtype=src.dtype)
    return out.index_add_(0, seg, src)
def _pad(x, pw):
    flat = tuple(v for pair in reversed(pw) for v in pair)
    return torch.nn.functional.pad(x, flat)

kernel_name = 'recurrent_scan__grouped_kv_mqa__mixer_s_mlp__prompt'

def setup_inputs():

    _w = (lambda a: (lambda t: t.to(torch.bfloat16) if t.is_floating_point() else t)(torch.as_tensor(a)))
    def _A_setup():
        B, S, D, H = 1, 2048, 448, 16
        Dh = D // H
        return {
            "x": _w((lambda *s: torch.randn(*s, dtype=torch.bfloat16) * 0.05)(B, S, D)),
            "wq": _w((lambda *s: torch.randn(*s, dtype=torch.bfloat16) * 0.05)(D, H * Dh)),
            "wk": _w((lambda *s: torch.randn(*s, dtype=torch.bfloat16) * 0.05)(D, Dh)),
            "wv": _w((lambda *s: torch.randn(*s, dtype=torch.bfloat16) * 0.05)(D, Dh)),
            "wo": _w((lambda *s: torch.randn(*s, dtype=torch.bfloat16) * 0.05)(H * Dh, D)),
        }
    _A_in = _A_setup()

    def _B_setup():
        B, S, D, F = 1, 2048, 448, 1792
        return {
            "x":  _w((lambda *s: torch.randn(*s, dtype=torch.bfloat16) * 0.05)(B, S, D)),
            "w1": _w((lambda *s: torch.randn(*s, dtype=torch.bfloat16) * 3.2)(D, D) * (D ** -0.5)),
            "w2": _w((lambda *s: torch.randn(*s, dtype=torch.bfloat16) * 3.2)(D, D) * (D ** -0.5)),
            "w3": _w((lambda *s: torch.randn(*s, dtype=torch.bfloat16) * 3.2)(D, F) * (D ** -0.5)),
            "w4": _w((lambda *s: torch.randn(*s, dtype=torch.bfloat16) * 3.2)(F, D) * (F ** -0.5)),
        }
    _B_in = _B_setup()

    return {
        "A_x": _A_in["x"],
        "A_wq": _A_in["wq"],
        "A_wk": _A_in["wk"],
        "A_wv": _A_in["wv"],
        "A_wo": _A_in["wo"],
        "B_x": _B_in["x"],
        "B_w1": _B_in["w1"],
        "B_w2": _B_in["w2"],
        "B_w3": _B_in["w3"],
        "B_w4": _B_in["w4"],
    }

def reference(A_x, A_wq, A_wk, A_wv, A_wo, B_x, B_w1, B_w2, B_w3, B_w4):
    def _A_ref(x, wq, wk, wv, wo):
        B, S, D = x.shape
        H = 16
        Dh = D // H
        q = (lambda x, *d: x.permute(*d))((x @ wq).reshape(B, S, H, Dh), 0, 2, 1, 3)
        k = x @ wk
        v = x @ wv
        scores = torch.einsum("bhqd,bkd->bhqk", q, k) * (Dh ** -0.5)
        p = _softmax(scores, axis=-1)
        o = torch.einsum("bhqk,bkd->bhqd", p, v)
        return (lambda x, *d: x.permute(*d))(o, 0, 2, 1, 3).reshape(B, S, H * Dh) @ wo

    def _B_ref(x, w1, w2, w3, w4):
        B, S, D = x.shape
        h = _gelu(_layernorm(x, axis=-1) @ w1)
        c = D // 4
        g0 = _pad(h[:, :, 0*c:1*c], ((0, 0), (1, 0), (0, 0)))[:, :S, :]
        g1 = _pad(h[:, :, 1*c:2*c], ((0, 0), (0, 1), (0, 0)))[:, 1:, :]
        g2 = _pad(h[:, :, 2*c:3*c], ((0, 0), (2, 0), (0, 0)))[:, :S, :]
        g3 = _pad(h[:, :, 3*c:   ], ((0, 0), (0, 2), (0, 0)))[:, 2:, :]
        hs = torch.concatenate([g0, g1, g2, g3], axis=-1) @ w2
        x1 = x + hs
        h2 = _gelu(_layernorm(x1, axis=-1) @ w3) @ w4
        return x1 + h2

    x = A_x
    xn = _layernorm(x, axis=-1)
    s = _A_ref(xn, A_wq, A_wk, A_wv, A_wo)
    g = _silu(_B_ref(xn, B_w1, B_w2, B_w3, B_w4))
    return x + s * g
```

```python
import struct


def f32(x):
    return "0x%08x" % struct.unpack("<I", struct.pack("<f", x))[0]


def v(i, n=1):
    return f"v{i}" if n == 1 else f"v[{i}:{i+n-1}]"


def a(i, n=1):
    return f"a{i}" if n == 1 else f"a[{i}:{i+n-1}]"


def s(i, n=1):
    return f"s{i}" if n == 1 else f"s[{i}:{i+n-1}]"


class Asm:
    def __init__(self):
        self.lines = []
        self.vm = []
        self.lg = []
        self.nlabel = 0

    def __call__(self, text):
        for ln in text.strip("\n").split("\n"):
            if ln.strip():
                self.lines.append("    " + ln.strip())

    def label(self, name):
        self.lines.append(name + ":")

    def newlabel(self, stem):
        self.nlabel += 1
        return f"L_{stem}_{self.nlabel}"

    def comment(self, text):
        self.lines.append("; " + text)

    def vmem(self, text, tag):
        self(text)
        self.vm.append(tag)
        assert len(self.vm) <= 63, "vmcnt overflow"

    def ds(self, text, tag):
        self(text)
        self.lg.append(tag)

    @staticmethod
    def _left(q, tags):
        tags = {tags} if isinstance(tags, (str, tuple)) else set(tags)
        last = -1
        for i, t in enumerate(q):
            if t in tags:
                last = i
        return last

    def wait_vm(self, tags):
        last = self._left(self.vm, tags)
        if last < 0:
            return
        n = len(self.vm) - 1 - last
        self(f"s_waitcnt vmcnt({n})")
        self.vm = self.vm[last + 1:]

    def wait_lg(self, tags):
        last = self._left(self.lg, tags)
        if last < 0:
            return
        n = len(self.lg) - 1 - last
        if n > 15:
            n = 15
            last = len(self.lg) - 1 - n
        self(f"s_waitcnt lgkmcnt({n})")
        self.lg = self.lg[last + 1:]

    def drain_vm(self):
        self("s_waitcnt vmcnt(0)")
        self.vm = []

    def drain_lg(self):
        self("s_waitcnt lgkmcnt(0)")
        self.lg = []

    def text(self):
        return "\n".join(self.lines) + "\n"


def weave(A, slots, fillers):
    n, m = len(slots), len(fillers)
    done = 0
    for i, sl in enumerate(slots):
        sl()
        upto = (m * (i + 1)) // n
        while done < upto:
            fillers[done]()
            done += 1
```

```python
import math
import sys
from asmlib import Asm, a, f32, s, v, weave

NAME = "recurrent_scan__grouped_kv_mqa__mixer_s_mlp__prompt"
PROFILE = "--prof" in sys.argv
FORCE_SLOW = "--slow" in sys.argv

KV, KMAX, FK, FH, FX, FG, FO = 0x0, 0x40000, 0x41000, 0x42000, 0x44000, 0x46000, 0x48000
TS = 0x50000
HB, ST, X1, HH, OB = 0x100000, 0x2C0000, 0x300000, 0x500000, 0xC00000
WS_SIZE = 0xE00000
OOB = 0x7FFF0000
LX, LA, LQ, LS = 0, 57344, 114688, 159744
LDS_SIZE = 163840
C_WQ, C_Q, C_QD, C_MAX, C_MRG, C_R1, C_XA, C_XB, C_P4, C_R2, C_R3 = [LS + 4 * i for i in range(11)]
L_STAT, L_QN, L_MX = LS + 256, LS + 1024, LS + 2048
L_QG, L_VT = LA + 16384, LA + 16384 + 8192
assert L_QG % 8192 == 0
LOG2E = 1.4426950408889634
QSCALE = 28 ** -0.5 * LOG2E
GC1 = -2 * LOG2E * math.sqrt(2 / math.pi)
GC2 = GC1 * 0.044715
EPS = 1e-5
BOUND2 = 3500.0
ONES = 0x3F803F80
GSPIN, LSPIN = 20000, 400000
SX, SA, SQ, SW, S4, SO, SOUT, SD, S2 = 4, 8, 12, 16, 20, 24, 28, 32, 36
P_X, P_WQ, P_WK, P_WV, P_WO, P_W1, P_W2, P_W3, P_W4, P_OUT, P_DBG, P_WS = 40, 42, 44, 46, 48, 52, 54, 56, 58, 60, 62, 64
sN = 66
sW8, sW, sTB, sCB, sTT, sP, sGT = 68, 69, 70, 71, 72, 73, 74
sHI = 76
sINV = 78
sT0, sT1, sT2, sT3, sT4, sT5 = 80, 81, 82, 83, 84, 85
sPA, sPB, sB1, sB4, sSP = 86, 87, 88, 89, 90
sK, sV = 91, 92
sTS = 40
vLANE, vL16, vTRN, vTRD, vT0, vT1, vT2, vT3 = 0, 1, 2, 3, 4, 5, 6, 7
MF = "v_mfma_f32_32x32x16_bf16"

A = Asm()
stamps = {"n": 0}


def stamp():
    if PROFILE:
        i = stamps["n"]
        stamps["n"] += 1
        A(f"s_waitcnt lgkmcnt(0)\ns_memrealtime {s(94,2)}\ns_waitcnt lgkmcnt(0)\ns_mov_b32 {s(sTS+i)}, s94")
        A.lg = []


def dump_stamps():
    if PROFILE:
        n = stamps["n"]
        A(f"s_lshl_b32 {s(sT0)}, s2, 3\ns_add_u32 {s(sT0)}, {s(sT0)}, {s(sW8)}\ns_lshl_b32 {s(sT0)}, {s(sT0)}, 7\n"
          f"s_add_u32 {s(sT0)}, {s(sT0)}, {TS}\nv_mov_b32 {v(vT1)}, 0")
        for i in range(n):
            A(f"v_mov_b32 {v(vT0)}, {s(sTS+i)}\nbuffer_store_dword {v(vT0)}, {v(vT1)}, {s(SW,4)}, {s(sT0)} offen offset:{4*i}")
        A.drain_vm()
    stamps["n"] = 0


def srd(r, ptr, size):
    A(f"s_mov_b32 {s(r)}, {s(ptr)}\ns_mov_b32 {s(r+1)}, {s(ptr+1)}\ns_mov_b32 {s(r+2)}, {size}\ns_mov_b32 {s(r+3)}, 0x20000")


def mfma(d, x, y, c=None):
    A(f"{MF} {d}, {x}, {y}, {d if c is None else c}")


def dma(m0_base, m0_off, voff, desc, soff, tag, imm=0, sc=""):
    if m0_base is None:
        A(f"s_mov_b32 m0, {m0_off - imm}")
    else:
        A(f"s_add_u32 m0, {s(m0_base)}, {m0_off - imm}")
    pre, so = soff
    if pre:
        A(pre)
    else:
        A("s_nop 0")
    A.vmem(f"buffer_load_dwordx4 {v(voff)}, {s(desc,4)}, {so} offen" + (f" offset:{imm}" if imm else "") + f"{sc} lds", tag)


def tr(dst, addr, off, second, tag):
    k, i = dst
    r = v if k == "v" else a
    A.ds(f"ds_read_b64_tr_b16 {r(i,2)}, {v(addr)} offset:{off}", tag)
    A.ds(f"ds_read_b64_tr_b16 {r(i+2,2)}, {v(addr)} offset:{off+second}", tag)


def arrive(cnt):
    A(f"s_mov_b64 exec, 1\nv_mov_b32 {v(vT0)}, {cnt}\nv_mov_b32 {v(vT1)}, 1")
    A.ds(f"ds_add_u32 {v(vT0)}, {v(vT1)}", "cnt")
    A("s_mov_b64 exec, -1")


def await_cnt(cnt, target=4):
    lp, ok = A.newlabel("ls"), A.newlabel("lk")
    A(f"v_mov_b32 {v(vT0)}, {cnt}\ns_mov_b32 {s(sSP)}, 0")
    A.label(lp)
    A(f"""ds_read_b32 {v(vT1)}, {v(vT0)}
          s_add_u32 {s(sSP)}, {s(sSP)}, 1
          s_waitcnt lgkmcnt(0)
          v_readfirstlane_b32 {s(sT0)}, {v(vT1)}
          s_cmp_ge_u32 {s(sT0)}, {target}
          s_cbranch_scc1 {ok}
          s_cmp_lt_u32 {s(sSP)}, {LSPIN}
          s_cbranch_scc1 {lp}""")
    A.label(ok)
    A.lg = []


def poll(voff, soff, tmp, both=False):
    lp, ok = A.newlabel("gs"), A.newlabel("gk")
    A(f"s_mov_b32 {s(sSP)}, 0\ns_mov_b32 {s(sT1)}, {soff}")
    A.label(lp)
    n = 4 if both else 2
    A(f"""buffer_load_dwordx{n} {v(tmp,n)}, {v(voff)}, {s(SW,4)}, {s(sT1)} offen sc1
          s_add_u32 {s(sSP)}, {s(sSP)}, 1
          s_waitcnt vmcnt(0)
          v_cmp_eq_u64 vcc, {s(sN,2)}, {v(tmp,2)}""")
    if both:
        A(f"v_cmp_eq_u64 {s(sT2,2)}, {s(sN,2)}, {v(tmp+2,2)}\ns_and_b64 vcc, vcc, {s(sT2,2)}")
    A(f"""s_or_b64 vcc, vcc, {s(sINV,2)}
          s_cmp_eq_u64 vcc, -1
          s_cbranch_scc1 {ok}
          s_cmp_lt_u32 {s(sSP)}, {GSPIN}
          s_cbranch_scc1 {lp}""")
    A.label(ok)
    A.vm = []


def nonce_issue(tmp):
    A(f"v_mov_b32 {v(vT3)}, 0")
    A.vmem(f"buffer_load_dwordx2 {v(tmp,2)}, {v(vT3)}, {s(SD,4)}, 0 offen sc1", "nonce")


def nonce_take(tmp):
    lp, ok = A.newlabel("ns"), A.newlabel("nk")
    A.wait_vm("nonce")
    A(f"s_mov_b32 {s(sSP)}, 0\nv_mov_b32 {v(vT3)}, 0")
    A.label(lp)
    A(f"""v_readfirstlane_b32 {s(sN)}, {v(tmp)}
          v_readfirstlane_b32 {s(sN+1)}, {v(tmp+1)}
          s_add_u32 {s(sSP)}, {s(sSP)}, 1
          s_cmp_lg_u64 {s(sN,2)}, 0
          s_cbranch_scc1 {ok}
          s_cmp_ge_u32 {s(sSP)}, {GSPIN}
          s_cbranch_scc1 {ok}
          buffer_load_dwordx2 {v(tmp,2)}, {v(vT3)}, {s(SD,4)}, 0 offen sc1
          s_waitcnt vmcnt(0)
          s_branch {lp}""")
    A.label(ok)


def flag(soff_expr):
    A(soff_expr)
    A(f"s_mov_b64 exec, 1\nv_mov_b32 {v(vT0)}, {s(sN)}\nv_mov_b32 {v(vT1)}, {s(sN+1)}\nv_mov_b32 {v(vT3)}, 0")
    A.vmem(f"buffer_store_dwordx2 {v(vT0,2)}, {v(vT3)}, {s(SW,4)}, {s(sT0)} offen sc1", "flag")
    A("s_mov_b64 exec, -1")


def halves(x, t):
    A(f"v_mov_b32 {v(t)}, {v(x)}\ns_nop 1\nv_permlane32_swap_b32 {v(x)}, {v(t)}")


def wave_max(x, full):
    for sh in (1, 2, 4, 8):
        A(f"s_nop 1\nv_max_f32_dpp {v(x)}, {v(x)}, {v(x)} row_shr:{sh} row_mask:0xf bank_mask:0xf bound_ctrl:0")
    A(f"s_nop 1\nv_max_f32_dpp {v(x)}, {v(x)}, {v(x)} row_bcast:15 row_mask:0xa bank_mask:0xf")
    if full:
        A(f"s_nop 1\nv_max_f32_dpp {v(x)}, {v(x)}, {v(x)} row_bcast:31 row_mask:0xc bank_mask:0xf")
    A("s_nop 1")


def gelu_ops(y, t, dst, c1, c2, ri):
    o = []
    for e in (0, 1):
        o.append(f"v_mul_f32 {v(t+e)}, {v(y+e)}, {v(y+e)}")
    for e in (0, 1):
        o.append(f"v_fma_f32 {v(t+e)}, {v(t+e)}, {v(c2)}, {v(c1)}")
    for e in (0, 1):
        o.append(f"v_mul_f32 {v(t+e)}, {v(t+e)}, {v(y+e)}")
    for e in (0, 1):
        o.append(f"v_exp_f32 {v(t+e)}, {v(t+e)}")
    for e in (0, 1):
        o.append(f"v_fma_f32 {v(t+e)}, {v(t+e)}, {v(ri)}, {v(ri)}")
    for e in (0, 1):
        o.append(f"v_rcp_f32 {v(t+e)}, {v(t+e)}")
    for e in (0, 1):
        o.append(f"v_mul_f32 {v(t+e)}, {v(t+e)}, {v(y+e)}")
    o.append(f"v_cvt_pk_bf16_f32 {v(dst)}, {v(t)}, {v(t+1)}")
    return o


def ring_addr(slot):
    return (sPA, slot * 1024) if slot < 14 else (sPB, (slot - 14) * 1024)


def reduce_out(srcs, cnt, vbase, offs):
    for i in range(12):
        k, r = srcs[i // 4]
        reg = (v if k == "v" else a)(r + 4 * (i % 4), 4)
        b, o = offs[i]
        A.ds(f"ds_write_b128 {v(vbase[b])}, {reg} offset:{o}", "red")
    arrive(cnt)


def reduce_in(acc, tmp, cnt, mkaddr, offs):
    await_cnt(cnt)
    for sl in (1, 2, 3):
        regs = mkaddr(sl)
        for q in range(4):
            b, o = offs[(sl - 1) * 4 + q]
            A.ds(f"ds_read_b128 {v(tmp + 16*(sl-1) + 4*q, 4)}, {v(regs[b])} offset:{o}", ("rd", sl))
    for sl in (1, 2, 3):
        A.wait_lg(("rd", sl))
        for i in range(16):
            A(f"v_add_f32 {v(acc+i)}, {v(acc+i)}, {v(tmp + 16*(sl-1) + i)}")


def prologue():
    A(f"""s_cmp_ge_u32 s2, 256
          s_cbranch_scc1 L_end
          s_load_dwordx16 {s(40,16)}, s[0:1], 0
          s_load_dwordx8 {s(56,8)}, s[0:1], 64
          s_load_dwordx2 {s(64,2)}, s[0:1], 96
          s_memrealtime {s(sN,2)}
          s_getpc_b64 {s(sT2,2)}
          v_lshrrev_b32 {v(vT0)}, 6, v0
          s_lshr_b32 {s(sT0)}, s2, 3
          v_readfirstlane_b32 {s(sW8)}, {v(vT0)}
          s_and_b32 {s(sT1)}, {s(sT0)}, 3
          s_lshl_b32 {s(sT4)}, {s(sT1)}, 13
          v_lshl_add_u32 {v(vT1)}, v0, 4, {s(sT4)}
          s_and_b32 {s(sT2)}, {s(sT2)}, 0xffffff00
          v_min_u32 {v(vT1)}, L_code_end-{NAME}_kernel-16, {v(vT1)}""")
    A.vmem(f"global_load_dwordx4 {v(124,4)}, {v(vT1)}, {s(sT2,2)}", "pf")
    A(f"""v_and_b32 {v(vLANE)}, 63, v0
          s_and_b32 {s(sTB)}, s2, 7
          s_lshl_b32 {s(sTB)}, {s(sTB)}, 2
          s_add_u32 {s(sTB)}, {s(sTB)}, {s(sT1)}
          s_lshr_b32 {s(sCB)}, {s(sT0)}, 2
          v_lshlrev_b32 {v(vL16)}, 4, {v(vLANE)}""")
    A(f"""v_lshrrev_b32 {v(vT0)}, 3, {v(vLANE)}
          s_lshl_b32 {s(sT0)}, {s(sTB)}, 3
          s_add_u32 {s(sT0)}, {s(sT0)}, {s(sW8)}
          s_lshl_b32 {s(sT0)}, {s(sT0)}, 3
          v_add_u32 {v(vT1)}, {s(sT0)}, {v(vT0)}
          v_mul_u32_u24 {v(vT2)}, 896, {v(vT1)}
          v_lshrrev_b32 {v(vT1)}, 1, {v(vT1)}
          v_xor_b32 {v(vT1)}, {v(vT1)}, {v(vLANE)}
          v_and_b32 {v(vT1)}, 7, {v(vT1)}
          v_lshl_add_u32 {v(8)}, {v(vT1)}, 4, {v(vT2)}
          s_lshl_b32 {s(sT4)}, {s(sW8)}, 10
          s_waitcnt lgkmcnt(0)""")
    srd(SX, P_X, 1835008)
    for kb in range(7):
        dma(sT4, LX + kb * 8192, 8, SX, (None, "0"), "X", imm=kb * 128)
    A(f"""s_and_b32 {s(sT0)}, {s(sW8)}, 1
          s_lshr_b32 {s(sT1)}, {s(sW8)}, 1
          s_cmp_eq_u32 {s(sT0)}, 0
          s_cselect_b64 {s(SA,2)}, {s(P_WK,2)}, {s(P_WV,2)}
          s_sub_u32 {s(sT2)}, {s(sCB)}, 1
          s_lshl_b32 {s(sT2)}, {s(sT2)}, 7
          s_lshl_b32 {s(sT3)}, {s(sT0)}, 6
          s_add_u32 {s(sT2)}, {s(sT2)}, {s(sT3)}
          s_cmp_eq_u32 {s(sCB)}, 0
          s_cselect_b64 {s(SA,2)}, {s(SA,2)}, {s(P_W1,2)}
          s_mov_b32 {s(SA+2)}, 25088
          s_cselect_b32 {s(SA+2)}, {s(SA+2)}, 401408
          s_mov_b32 {s(SA+3)}, 0x20000
          s_cselect_b32 {s(sT2)}, 0, {s(sT2)}
          s_cselect_b32 {s(sT3)}, 56, 896
          s_lshl_b32 {s(sT5)}, {s(sT1)}, 4
          v_lshrrev_b32 {v(9)}, 2, {v(vLANE)}
          v_add_u32 {v(vT0)}, {s(sT5)}, {v(9)}
          v_mul_u32_u24 {v(vT0)}, {s(sT3)}, {v(vT0)}
          v_and_b32 {v(10)}, 3, {v(vLANE)}
          v_lshlrev_b32 {v(10)}, 4, {v(10)}
          v_add3_u32 {v(11)}, {v(vT0)}, {v(10)}, {s(sT2)}
          s_lshl_b32 {s(sT3)}, {s(sT3)}, 6
          s_mov_b32 {s(sT2)}, 0""")
    for n in range(7):
        pre = f"s_add_u32 {s(sT2)}, {s(sT2)}, {s(sT3)}" if n else None
        dma(sT4, LA + n * 8192, 11, SA, (pre, s(sT2)), ("WA", n // 2))
    srd(SW, P_WS, WS_SIZE)
    srd(SD, P_DBG, 256)
    A(f"""s_and_b32 {s(sW)}, {s(sW8)}, 3
          s_and_b32 {s(sTT)}, {s(sW8)}, 1
          s_lshr_b32 {s(sP)}, {s(sW)}, 1
          s_lshl_b32 {s(sGT)}, {s(sTB)}, 1
          s_add_u32 {s(sGT)}, {s(sGT)}, {s(sTT)}
          s_mov_b32 {s(sHI)}, 0
          s_mov_b32 {s(sHI+1)}, -1""")
    A(f"""v_bfe_u32 {v(vT0)}, {v(vLANE)}, 2, 2
          v_lshlrev_b32 {v(vT0)}, 6, {v(vT0)}
          v_bfe_u32 {v(vT1)}, {v(vLANE)}, 4, 1
          v_lshl_add_u32 {v(vT0)}, {v(vT1)}, 5, {v(vT0)}
          v_and_b32 {v(vT1)}, 3, {v(vLANE)}
          v_lshl_add_u32 {v(vT0)}, {v(vT1)}, 3, {v(vT0)}
          v_lshrrev_b32 {v(vT1)}, 5, {v(vLANE)}
          v_lshl_add_u32 {v(vTRN)}, {v(vT1)}, 9, {v(vT0)}
          v_lshl_add_u32 {v(vTRD)}, {v(vT1)}, 8, {v(vT0)}""")
    A(f"""v_and_b32 {v(vT0)}, 31, {v(vLANE)}
          s_lshl_b32 {s(sT0)}, {s(sTT)}, 5
          v_add_u32 {v(vT0)}, {s(sT0)}, {v(vT0)}
          v_lshlrev_b32 {v(8)}, 7, {v(vT0)}
          v_bfe_u32 {v(vT2)}, {v(vT0)}, 1, 3
          v_xor_b32 {v(vT2)}, {v(vT2)}, {v(vT1)}
          v_lshl_add_u32 {v(12)}, {v(vT2)}, 4, {v(8)}
          v_xor_b32 {v(13)}, 32, {v(12)}
          v_xor_b32 {v(14)}, 64, {v(12)}
          v_xor_b32 {v(15)}, 96, {v(12)}
          s_cmp_ge_u32 {s(sW8)}, 4
          s_cbranch_scc1 L_att""")


def barrier():
    A("s_barrier")


def mlp():
    vXD, vX1P = 8, 16
    vM, vR = 24, 25
    A("s_setprio 2")
    stamp()
    skip = A.newlabel("nz")
    A(f"""s_cmp_lg_u32 {s(sW8)}, 0
          s_cbranch_scc1 {skip}
          v_lshlrev_b32 {v(vT0)}, 2, {v(vLANE)}
          v_add_u32 {v(vT0)}, {LS}, {v(vT0)}
          v_mov_b32 {v(vT1)}, 0
          ds_write_b32 {v(vT0)}, {v(vT1)}
          s_waitcnt lgkmcnt(0)
          s_cmp_lg_u32 s2, 0
          s_cbranch_scc1 {skip}
          s_or_b32 {s(sN)}, {s(sN)}, 1
          v_mov_b32 {v(vT2)}, {s(sN)}
          v_mov_b32 {v(vT3)}, {s(sN+1)}
          s_mov_b64 exec, 1
          buffer_store_dwordx2 {v(vT2,2)}, {v(vT1)}, {s(SD,4)}, 0 offen sc1
          s_mov_b64 exec, -1""")
    A.label(skip)
    srd(S2, P_W2, 401408)
    srd(SQ, P_W3, 1605632)
    srd(S4, P_W4, 1605632)
    srd(SO, P_WO, 401408)
    srd(SOUT, P_OUT, 1835008)
    acc, cs, ring, ones = 32, 48, 64, 96
    vWA, vXA = 26, 28
    A(f"""s_lshl_b32 {s(sT0)}, {s(sP)}, 6
          v_lshrrev_b32 {v(vT1)}, 5, {v(vLANE)}
          v_lshlrev_b32 {v(vT2)}, 4, {v(vT1)}
          v_xor_b32 {v(vXA)}, {v(12)}, {v(vT2)}
          v_xor_b32 {v(vXA)}, {s(sT0)}, {v(vXA)}
          v_lshl_add_u32 {v(vXA)}, {v(vT1)}, 3, {v(vXA)}
          s_max_u32 {s(sT1)}, {s(sCB)}, 1
          s_sub_u32 {s(sT1)}, {s(sT1)}, 1
          s_lshl_b32 {s(sT1)}, {s(sT1)}, 13
          v_add_u32 {v(vXA)}, {s(sT1)}, {v(vXA)}
          v_xor_b32 {v(vXA+1)}, 16, {v(vXA)}
          v_xor_b32 {v(vXA+2)}, 32, {v(vXA)}
          v_xor_b32 {v(vXA+3)}, 48, {v(vXA)}
          s_lshl_b32 {s(sT0)}, {s(sP)}, 10
          s_add_u32 {s(sT0)}, {s(sT0)}, {LA}
          v_add_u32 {v(vWA)}, {s(sT0)}, {v(vTRN)}""")
    for i in range(4):
        A(f"v_mov_b32 {v(ones+i)}, {ONES}")
    A(f"""s_mul_i32 {s(sPA)}, {s(sW)}, 14336
          s_mul_i32 {s(sPB)}, {s(sW)}, 11264
          s_add_u32 {s(sPB)}, {s(sPB)}, {LQ}
          s_mul_i32 {s(sB1)}, {s(sW)}, {112*896}
          s_mul_i32 {s(sB4)}, {s(sW)}, {448*896}""")
    vW = 100
    A(f"""v_mul_u32_u24 {v(vT0)}, 896, {v(9)}
          s_sub_u32 {s(sT0)}, {s(sCB)}, 1
          s_lshl_b32 {s(sT0)}, {s(sT0)}, 7
          s_lshl_b32 {s(sT1)}, {s(sP)}, 6
          s_add_u32 {s(sT0)}, {s(sT0)}, {s(sT1)}
          v_add3_u32 {v(vW)}, {v(vT0)}, {v(10)}, {s(sT0)}
          s_lshl_b32 {s(sT1)}, {s(sP)}, 7
          s_sub_u32 {s(sT1)}, 64, {s(sT1)}
          v_add_u32 {v(vW+1)}, {s(sT1)}, {v(vW)}
          v_mul_u32_u24 {v(vT0)}, 3584, {v(9)}
          s_sub_u32 {s(sT0)}, {s(sCB)}, 1
          s_lshl_b32 {s(sT0)}, {s(sT0)}, 9
          s_lshl_b32 {s(sT1)}, {s(sW)}, 7
          s_add_u32 {s(sT0)}, {s(sT0)}, {s(sT1)}
          v_add3_u32 {v(vW+2)}, {v(vT0)}, {v(10)}, {s(sT0)}""")

    def xread(ks):
        A.ds(f"ds_read_b128 {a(4*ks,4)}, {v(12 + (ks & 3))} offset:{(ks >> 2) * 8192}", ("x", ks))

    A.wait_vm("X")
    barrier()
    stamp()
    for g in range(4):
        A.ds(f"ds_read_b64 {v(104+2*g,2)}, {v(vXA+g)}", "xd")
    for ks in range(16):
        xread(ks)
    for st in range(4):
        A.wait_vm(("WA", st))
        if st == 3:
            A.drain_lg()
        barrier()
        if st == 2:
            nonce_issue(30)
        if st == 3:
            A.ds(f"ds_read_b64 {v(vM,2)}, {v(103)}", "stat")
            nxt = A.newlabel("now2")
            A(f"s_cmp_eq_u32 {s(sCB)}, 0\ns_cbranch_scc1 {nxt}")
            keep = list(A.vm)
            for i in range(14):
                dma(sPA, i * 1024, vW + (i & 1), S2, (f"s_add_u32 {s(sT0)}, {s(sB1)}, {(i >> 1) * 16 * 896}", s(sT0)), "W2")
            A.label(nxt)
            vm_kv = keep
        n = 8 if st < 3 else 4
        for i in range(n):
            tr(("v", ring + 4 * i), vWA, (st * 8 + i) * 2048, 256, ("w", i))
        if st == 0:
            for ks in range(16, 24):
                xread(ks)
            A(f"""v_and_b32 {v(103)}, 31, {v(vLANE)}
                  s_lshl_b32 {s(sT0)}, {s(sTT)}, 8
                  s_add_u32 {s(sT0)}, {s(sT0)}, {L_STAT}
                  v_lshl_add_u32 {v(103)}, {v(103)}, 3, {s(sT0)}""")
        if st == 1:
            for ks in range(24, 28):
                xread(ks)
        for i in range(n):
            ks = st * 8 + i
            A.wait_lg([("w", i), ("x", ks)])
            mfma(v(acc, 16), v(ring + 4 * i, 4), a(4 * ks, 4), 0 if ks == 0 else None)
            mfma(v(cs, 16), v(ring + 4 * i, 4), v(ones, 4), 0 if ks == 0 else None)
    A.drain_lg()
    for g in range(4):
        A(f"v_mov_b32 {v(vXD+2*g)}, {v(104+2*g)}\nv_mov_b32 {v(vXD+2*g+1)}, {v(105+2*g)}")
    vR2, vC1, vC2, vRI = 27, 28, 29, 26
    A(f"""v_add_f32 {v(vT0)}, {f32(EPS)}, {v(vR)}
          v_rsq_f32 {v(vT1)}, {v(vT0)}
          s_nop 0
          v_mul_f32 {v(vT2)}, {v(vT1)}, {v(vT1)}
          v_mov_b32 {v(vT3)}, {f32(EPS)}
          v_fma_f32 {v(vT2)}, {v(vT2)}, {v(vR)}, {v(vT3)}
          v_rsq_f32 {v(vT2)}, {v(vT2)}
          v_mov_b32 {v(vR)}, {v(vT1)}
          v_mul_f32 {v(vR2)}, {v(vT1)}, {v(vT2)}
          v_rcp_f32 {v(vRI)}, {v(vR2)}
          v_mul_f32 {v(vC1)}, {f32(GC1)}, {v(vR2)}
          v_mul_f32 {v(vC2)}, {v(vR2)}, {v(vR2)}
          v_mul_f32 {v(vC2)}, {v(vC2)}, {v(vR2)}
          v_mul_f32 {v(vC2)}, {f32(GC2)}, {v(vC2)}
          s_nop 3""")
    for i in range(16):
        A(f"v_fma_f32 {v(acc+i)}, -{v(cs+i)}, {v(vM)}, {v(acc+i)}")
    stamp()
    A(f"s_cmp_eq_u32 {s(sCB)}, 0\ns_cbranch_scc1 L_kv")
    pk = 64
    for i in range(8):
        for op in gelu_ops(acc + 2 * i, 72, pk + i, vC1, vC2, vRI):
            A(op)
    vHS = 74
    A(f"""v_and_b32 {v(vT0)}, 31, {v(vLANE)}
          s_lshl_b32 {s(sT0)}, {s(sGT)}, 5
          v_add_u32 {v(vT0)}, {s(sT0)}, {v(vT0)}
          v_lshrrev_b32 {v(vT1)}, 5, {v(vLANE)}
          v_lshlrev_b32 {v(vT1)}, 15, {v(vT1)}
          v_lshl_add_u32 {v(vHS)}, {v(vT0)}, 4, {v(vT1)}
          s_lshl_b32 {s(sT4)}, {s(sCB)}, 1
          s_add_u32 {s(sT4)}, {s(sT4)}, {s(sP)}
          s_sub_u32 {s(sT4)}, {s(sT4)}, 2
          s_lshl_b32 {s(sT0)}, {s(sT4)}, 17
          s_add_u32 {s(sT0)}, {s(sT0)}, {HB}
          s_add_u32 {s(sT1)}, {s(sT0)}, 0x10000""")
    A.vmem(f"buffer_store_dwordx4 {v(pk,4)}, {v(vHS)}, {s(SW,4)}, {s(sT0)} offen sc1", "hst")
    A.vmem(f"buffer_store_dwordx4 {v(pk+4,4)}, {v(vHS)}, {s(SW,4)}, {s(sT1)} offen sc1", "hst")
    nonce_take(30)
    vRA, vRB = 26, 27
    A(f"v_add_u32 {v(vRA)}, {s(sPA)}, {v(vTRD)}\nv_add_u32 {v(vRB)}, {s(sPB)}, {v(vTRD)}")
    A.wait_vm("W2")
    for i in range(14):
        tr(("a", 4 * i), vRA, i * 1024, 512, "w2")
    vH = 28
    A(f"""s_lshr_b32 {s(sT0)}, {s(sW)}, 1
          s_add_u32 {s(sT0)}, {s(sT0)}, 1
          s_sub_u32 {s(sT1)}, 0, {s(sT0)}
          s_cmp_eq_u32 {s(sTT)}, 0
          s_cselect_b32 {s(sT0)}, {s(sT1)}, {s(sT0)}
          s_lshl_b32 {s(sT1)}, {s(sGT)}, 5
          s_add_u32 {s(sT1)}, {s(sT1)}, {s(sT0)}
          s_xor_b32 {s(sT2)}, {s(sGT)}, 1
          s_lshl_b32 {s(sT2)}, {s(sT2)}, 5
          s_add_u32 {s(sT2)}, {s(sT2)}, {s(sT0)}
          v_and_b32 {v(vT0)}, 31, {v(vLANE)}
          v_lshrrev_b32 {v(vT1)}, 5, {v(vLANE)}
          v_lshlrev_b32 {v(vT1)}, 15, {v(vT1)}
          v_mov_b32 {v(vT3)}, {OOB}""")
    for sl, sr in ((0, sT1), (1, sT2)):
        A(f"""v_add_u32 {v(vT2)}, {s(sr)}, {v(vT0)}
              v_cmp_gt_u32 vcc, 2048, {v(vT2)}
              v_lshl_add_u32 {v(vT2)}, {v(vT2)}, 4, {v(vT1)}
              s_nop 0
              v_cndmask_b32 {v(vH+sl)}, {v(vT3)}, {v(vT2)}, vcc""")
    vF = 30
    A(f"""v_lshrrev_b32 {v(vT0)}, 4, {v(vLANE)}
          s_lshl_b32 {s(sT0)}, {s(sTB)}, 1
          s_sub_u32 {s(sT0)}, {s(sT0)}, 1
          v_add_u32 {v(vT0)}, {s(sT0)}, {v(vT0)}
          v_and_b32 {v(vT1)}, 15, {v(vLANE)}
          v_cmp_le_u32 vcc, 64, {v(vT0)}
          v_cmp_le_u32 {s(sINV,2)}, 14, {v(vT1)}
          v_lshlrev_b32 {v(vT0)}, 7, {v(vT0)}
          v_lshl_add_u32 {v(vT0)}, {v(vT1)}, 3, {v(vT0)}
          s_or_b64 {s(sINV,2)}, {s(sINV,2)}, vcc
          s_mov_b64 vcc, {s(sINV,2)}
          v_cndmask_b32 {v(vF)}, {v(vT0)}, {v(vT3)}, vcc""")
    A.wait_vm("hst")
    flag(f"s_lshl_b32 {s(sT0)}, {s(sGT)}, 7\ns_lshl_b32 {s(sT1)}, {s(sT4)}, 3\ns_add_u32 {s(sT0)}, {s(sT0)}, {s(sT1)}\ns_add_u32 {s(sT0)}, {s(sT0)}, {FH}")
    A.drain_lg()
    stamp()

    def sdma(idx):
        base, off = ring_addr(idx % 25)
        if idx < 56:
            ks, nt = idx % 28, idx // 28
            dma(base, off, vW + 2, SQ, (f"s_mov_b32 {s(sT0)}, {ks * 16 * 3584 + nt * 64}", s(sT0)), ("S", idx))
        elif idx < 112:
            j, b = (idx - 56) >> 1, (idx - 56) & 1
            dma(base, off, vW + b, S4, (f"s_add_u32 {s(sT0)}, {s(sB4)}, {j * 16 * 896}", s(sT0)), ("S", idx))
        else:
            kk, b = (idx - 112) >> 1, (idx - 112) & 1
            dma(base, off, vW + b, SO, (f"s_add_u32 {s(sT0)}, {s(sB1)}, {((kk >> 1) * 28 + (kk & 1) * 16) * 896}", s(sT0)), ("S", idx))

    def sread(idx, dst):
        base, off = ring_addr(idx % 25)
        A.wait_vm(("S", idx))
        tr(dst, vRA if base == sPA else vRB, off, 512, ("s", idx))

    poll(vF, FH, 32)
    stamp()
    hf = 32
    A(f"s_mul_i32 {s(sT5)}, {s(sW)}, {7 << 16}\ns_add_u32 {s(sT5)}, {s(sT5)}, {HB}")
    for j in range(7):
        if j:
            A(f"s_add_u32 {s(sT5)}, {s(sT5)}, 0x10000")
        for sl in range(2):
            A.vmem(f"buffer_load_dwordx4 {v(hf + 8*j + 4*sl, 4)}, {v(vH+sl)}, {s(SW,4)}, {s(sT5)} offen sc1", ("h", j))
    for i in range(14):
        sdma(i)
    await_cnt(C_QD)
    for i in range(14, 25):
        sdma(i)
    acc0 = 104
    accs = [v(acc0, 16), a(64, 16), a(80, 16), a(96, 16)]
    for j in range(7):
        A.wait_vm(("h", j))
        for sl in range(4):
            mfma(accs[sl], a(8 * j + 4 * (sl >> 1), 4), v(hf + 8 * j + 4 * (sl & 1), 4), 0 if j == 0 else None)
    vRW = 28
    A(f"""s_add_u32 {s(sT0)}, {s(sPA)}, {LA}
          v_add_u32 {v(vRW)}, {s(sT0)}, {v(vL16)}
          s_nop 7
          s_nop 1""")
    offs1 = [(0, i * 1024) for i in range(12)]
    reduce_out([("a", 64), ("a", 80), ("a", 96)], C_R1, [vRW], offs1)

    def mk1(sl):
        A(f"""s_xor_b32 {s(sT0)}, {s(sW)}, {sl}
              s_mul_i32 {s(sT0)}, {s(sT0)}, 14336
              s_add_u32 {s(sT0)}, {s(sT0)}, {LA}
              v_add_u32 {v(28+sl)}, {s(sT0)}, {v(vL16)}""")
        return [28 + sl]
    reduce_in(acc0, 32, C_R1, mk1, offs1)
    A(f"v_mul_f32 {v(vM)}, {v(vM)}, {v(vR)}")
    for i in range(8):
        A(f"""v_lshlrev_b32 {v(32)}, 16, {v(vXD+i)}
              v_and_b32 {v(33)}, 0xffff0000, {v(vXD+i)}
              v_fma_f32 {v(32)}, {v(32)}, {v(vR)}, -{v(vM)}
              v_fma_f32 {v(33)}, {v(33)}, {v(vR)}, -{v(vM)}
              v_add_f32 {v(acc0+2*i)}, {v(acc0+2*i)}, {v(32)}
              v_add_f32 {v(acc0+2*i+1)}, {v(acc0+2*i+1)}, {v(33)}
              v_cvt_pk_bf16_f32 {v(vX1P+i)}, {v(acc0+2*i)}, {v(acc0+2*i+1)}""")
    A(f"""s_mul_i32 {s(sT0)}, {s(sGT)}, 14
          s_add_u32 {s(sT0)}, {s(sT0)}, {s(sT4)}
          s_lshl_b32 {s(sT1)}, {s(sT0)}, 11
          s_add_u32 {s(sT1)}, {s(sT1)}, {X1}
          s_lshl_b32 {s(sT0)}, {s(sT0)}, 8
          s_add_u32 {s(sT2)}, {s(sT0)}, {ST}""")
    A.vmem(f"buffer_store_dwordx4 {v(vX1P,4)}, {v(vL16)}, {s(SW,4)}, {s(sT1)} offen sc1", "xst")
    A.vmem(f"buffer_store_dwordx4 {v(vX1P+4,4)}, {v(vL16)}, {s(SW,4)}, {s(sT1)} offen offset:1024 sc1", "xst")
    A(f"v_add_f32 {v(32)}, {v(acc0)}, {v(acc0+1)}\nv_mul_f32 {v(33)}, {v(acc0)}, {v(acc0)}\nv_fma_f32 {v(33)}, {v(acc0+1)}, {v(acc0+1)}, {v(33)}")
    for i in range(2, 16):
        A(f"v_add_f32 {v(32)}, {v(32)}, {v(acc0+i)}\nv_fma_f32 {v(33)}, {v(acc0+i)}, {v(acc0+i)}, {v(33)}")
    halves(32, 34)
    halves(33, 35)
    A(f"""v_add_f32 {v(32)}, {v(32)}, {v(34)}
          v_add_f32 {v(33)}, {v(33)}, {v(35)}
          v_lshlrev_b32 {v(34)}, 3, {v(vLANE)}
          s_not_b64 exec, {s(sHI,2)}""")
    A.vmem(f"buffer_store_dwordx2 {v(32,2)}, {v(34)}, {s(SW,4)}, {s(sT2)} offen sc1", "xst")
    A("s_mov_b64 exec, -1")
    stamp()

    csa = [64, 80]
    tmpw = 40

    def w3dst(idx):
        return ("a", 4 * idx) if idx < 32 else ("v", tmpw + 4 * (idx & 3))

    def colsum(idx):
        k, r = w3dst(idx)
        A.wait_lg(("s", idx))
        mfma(v(csa[idx // 28], 16), v(ones, 4), (a if k == "a" else v)(r, 4), 0 if idx % 28 == 0 else None)
        if idx + 25 <= 56 and idx < 32:
            sdma(idx + 25)

    for idx in range(56 + 2):
        if idx < 56:
            sread(idx, w3dst(idx))
        if idx >= 2:
            colsum(idx - 2)
        if idx == 22:
            A.wait_vm("xst")
            flag(f"s_lshl_b32 {s(sT0)}, {s(sTB)}, 3\ns_add_u32 {s(sT0)}, {s(sT0)}, {s(sCB)}\ns_lshl_b32 {s(sT0)}, {s(sT0)}, 2\n"
                 f"s_add_u32 {s(sT0)}, {s(sT0)}, {s(sW)}\ns_lshl_b32 {s(sT0)}, {s(sT0)}, 3\ns_add_u32 {s(sT5)}, {s(sT0)}, 0\ns_add_u32 {s(sT0)}, {s(sT0)}, {FX}")
    vAE, vBE, vK = 24, 32, 40
    vF2 = 46
    A(f"""v_lshlrev_b32 {v(vF2)}, 3, {v(vLANE)}
          s_lshl_b32 {s(sT0)}, {s(sTB)}, 8
          v_add_u32 {v(vF2)}, {s(sT0)}, {v(vF2)}
          s_mov_b32 {s(sINV)}, 15
          s_mov_b32 {s(sINV+1)}, -1
          v_mov_b32 {v(47)}, {v(vRA)}
          v_mov_b32 {v(48)}, {v(vRB)}
          s_nop 5""")
    vRA2, vRB2 = 47, 48
    for nt in range(2):
        c = csa[nt]
        A(f"""v_cvt_pk_bf16_f32 {v(vT0)}, {v(c)}, {v(c)}
              v_and_b32 {v(vT1)}, 0xffff0000, {v(vT0)}
              v_sub_f32 {v(vT1)}, {v(c)}, {v(vT1)}
              v_cvt_pk_bf16_f32 {v(vAE+4*nt)}, {v(c)}, {v(vT1)}
              v_and_b32 {v(vAE+4*nt+1)}, 0xffff, {v(vT0)}
              v_mov_b32 {v(vAE+4*nt+2)}, 0
              v_mov_b32 {v(vAE+4*nt+3)}, 0""")

    def sread2(idx, dst):
        base, off = ring_addr(idx % 25)
        A.wait_vm(("S", idx))
        tr(dst, vRA2 if base == sPA else vRB2, off, 512, ("s", idx))

    stamp()
    poll(vF2, FX, 50)
    stamp()
    A(f"""s_mul_i32 {s(sT1)}, {s(sTB)}, {56 * 1024}
          s_mul_i32 {s(sT2)}, {s(sW)}, {7 * 1024}
          s_add_u32 {s(sT1)}, {s(sT1)}, {s(sT2)}
          s_add_u32 {s(sT1)}, {s(sT1)}, {X1}
          s_add_u32 {s(sT3)}, {s(sT2)}, {LA}""")
    for tt in range(2):
        for i in range(7):
            o = tt * 28672 + i * 1024
            dma(sT3, o, vL16, SW, (f"s_add_u32 {s(sT0)}, {s(sT1)}, {o}", s(sT0)), ("x1", tt), sc=" sc1")
    stt = [80, 112]
    A(f"""v_and_b32 {v(vT0)}, 31, {v(vLANE)}
          v_lshrrev_b32 {v(vT1)}, 5, {v(vLANE)}
          v_mul_u32_u24 {v(vT1)}, {7 * 256}, {v(vT1)}
          v_lshl_add_u32 {v(49)}, {v(vT0)}, 3, {v(vT1)}
          s_mul_i32 {s(sT1)}, {s(sTB)}, {28 * 256}
          s_add_u32 {s(sT1)}, {s(sT1)}, {ST}
          s_add_u32 {s(sT2)}, {s(sT1)}, {14 * 256}
          v_add_u32 {v(50)}, {LA}, {v(vL16)}""")
    for tt in range(2):
        for i in range(7):
            A.vmem(f"buffer_load_dwordx2 {v(stt[tt]+2*i,2)}, {v(49)}, {s(SW,4)}, {s(sT1 + tt)} offen offset:{i*256} sc1", ("st", tt))
    A.wait_vm(("x1", 0))
    arrive(C_XA)

    def stat_ops(tt):
        r = stt[tt]
        o = [lambda: A.wait_vm(("st", tt))]
        for i in range(1, 7):
            o.append(lambda i=i: A(f"v_add_f32 {v(r)}, {v(r)}, {v(r+2*i)}\nv_add_f32 {v(r+1)}, {v(r+1)}, {v(r+2*i+1)}"))
        o.append(lambda: halves(r, r + 2))
        o.append(lambda: halves(r + 1, r + 3))
        k = vK + 3 * tt
        b = vBE + 4 * tt
        o.append(lambda: A(f"""v_add_f32 {v(r)}, {v(r)}, {v(r+2)}
              v_add_f32 {v(r+1)}, {v(r+1)}, {v(r+3)}
              v_mul_f32 {v(r)}, {f32(-1/448)}, {v(r)}
              v_mul_f32 {v(r+2)}, {v(r)}, {v(r)}"""))
        o.append(lambda: A(f"""v_mul_f32 {v(r+1)}, {f32(1/448)}, {v(r+1)}
              v_sub_f32 {v(r+1)}, {v(r+1)}, {v(r+2)}
              v_max_f32 {v(r+1)}, 0, {v(r+1)}
              v_add_f32 {v(r+1)}, {f32(EPS)}, {v(r+1)}"""))
        o.append(lambda: A(f"""v_rsq_f32 {v(r+2)}, {v(r+1)}
              v_cvt_pk_bf16_f32 {v(r+4)}, {v(r)}, {v(r)}
              v_and_b32 {v(r+5)}, 0xffff0000, {v(r+4)}
              v_sub_f32 {v(r+5)}, {v(r)}, {v(r+5)}"""))
        o.append(lambda: A(f"""v_mul_f32 {v(k+2)}, {v(r+1)}, {v(r+2)}
              v_mul_f32 {v(k)}, {f32(GC1)}, {v(r+2)}
              v_mul_f32 {v(k+1)}, {v(r+2)}, {v(r+2)}
              v_mul_f32 {v(k+1)}, {v(k+1)}, {v(r+2)}"""))
        o.append(lambda: A(f"""v_mul_f32 {v(k+1)}, {f32(GC2)}, {v(k+1)}
              v_cvt_pk_bf16_f32 {v(r+5)}, {v(r+5)}, 0
              v_cndmask_b32 {v(b)}, {v(r+4)}, 0, {s(sHI,2)}
              v_cndmask_b32 {v(b+1)}, {v(r+5)}, 0, {s(sHI,2)}"""))
        o.append(lambda: A(f"v_mov_b32 {v(b+2)}, 0\nv_mov_b32 {v(b+3)}, 0"))
        return o

    accp, bring, gt, gpk = [64, 80], 52, 96, 104
    A(f"""s_mul_i32 {s(sK)}, {s(sTB)}, {2 * 112}
          s_lshl_b32 {s(sT0)}, {s(sCB)}, 2
          s_add_u32 {s(sT0)}, {s(sT0)}, {s(sW)}
          s_sub_u32 {s(sT0)}, {s(sT0)}, 4
          s_lshl_b32 {s(sT0)}, {s(sT0)}, 2
          s_add_u32 {s(sK)}, {s(sK)}, {s(sT0)}
          s_lshl_b32 {s(sK)}, {s(sK)}, 10
          s_add_u32 {s(sK)}, {s(sK)}, {HH}""")

    def gelu_fill(t):
        tt, nt = t & 1, t >> 1
        y, k = accp[t & 1], vK + 3 * tt
        o = []
        for i in range(8):
            for op in gelu_ops(y + 2 * i, gt + 2 * (i & 1), gpk + i, k, k + 1, k + 2):
                o.append(lambda op=op: A(op))
            if i in (3, 7):
                c = i >> 2

                def st(c=c):
                    A(f"s_add_u32 {s(sT0)}, {s(sK)}, {(tt * 112 + nt * 2) * 1024}")
                    A.vmem(f"buffer_store_dwordx4 {v(gpk+4*c,4)}, {v(vL16)}, {s(SW,4)}, {s(sT0)} offen offset:{c*1024} sc1", "Hst")
                o.append(st)
        return o

    def a3(nt, ks):
        if nt == 0:
            return a(4 * ks, 4)
        return a(112 + 4 * ks, 4) if ks < 4 else a(4 * (ks - 4), 4)

    seq = [(t, ks) for t in range(4) for ks in range(28)]

    def bread(n):
        t, ks = seq[n]
        A.ds(f"ds_read_b128 {v(bring + 4 * (n % 3), 4)}, {v(50)} offset:{((t & 1) * 28 + ks) * 1024}", ("b", n))

    await_cnt(C_XA)
    bread(0)
    bread(1)
    for t in range(4):
        tt, nt = t & 1, t >> 1
        slots = []
        for ks in range(28):
            def step(ks=ks):
                n = t * 28 + ks
                if t == 2 and 2 <= ks < 26:
                    sread2(28 + ks + 2, ("a", 4 * (ks - 2)))
                if n + 2 < len(seq) and not (t == 0 and ks >= 26):
                    bread(n + 2)
                need = [("b", n)]
                if t == 2 and ks >= 4:
                    need.append(("s", 28 + ks))
                A.wait_lg(need)
                mfma(v(accp[t & 1], 16), a3(nt, ks), v(bring + 4 * (n % 3), 4), 0 if ks == 0 else None)
                if t == 2 and ks >= 4:
                    sdma(28 + ks + 25)
            slots.append(step)
        if t == 0:
            fill = stat_ops(0) + stat_ops(1)
            weave(A, slots[:4], [])
            weave(A, slots[4:], fill)
            A.wait_vm(("x1", 1))
            arrive(C_XB)
            A("s_nop 0")
            mfma(v(accp[0], 16), v(vAE, 4), v(vBE, 4))
            await_cnt(C_XB)
            bread(28)
            bread(29)
        else:
            weave(A, slots[:4], [])
            weave(A, slots[4:], gelu_fill(t - 1))
            mfma(v(accp[t & 1], 16), v(vAE + 4 * nt, 4), v(vBE + 4 * tt, 4))
    arrive(C_P4)
    A("s_nop 7")
    stamp()
    for op in gelu_fill(3):
        op()

    def w4a(idx):
        return 4 * ((idx - 56) % 32)

    for idx in range(56, 88 + 2):
        if idx < 88:
            sread2(idx, ("a", w4a(idx)))
        if idx - 2 >= 56 and idx - 2 + 25 <= 111:
            A.wait_lg(("s", idx - 2))
            sdma(idx - 2 + 25)
        if idx == 70:
            A.wait_vm("Hst")
            flag(f"s_add_u32 {s(sT0)}, {s(sT5)}, {FG}")
    A.drain_lg()
    vHH = 49
    A(f"""s_mul_i32 {s(sT0)}, {s(sGT)}, 4
          s_add_u32 {s(sT0)}, {s(sT0)}, {s(sW)}
          s_mul_i32 {s(sT0)}, {s(sT0)}, {28 * 1024}
          v_add_u32 {v(vHH)}, {s(sT0)}, {v(vL16)}
          s_xor_b32 {s(sT0)}, {s(sGT)}, 1
          s_mul_i32 {s(sT0)}, {s(sT0)}, 4
          s_add_u32 {s(sT0)}, {s(sT0)}, {s(sW)}
          s_mul_i32 {s(sT0)}, {s(sT0)}, {28 * 1024}
          v_add_u32 {v(vHH+1)}, {s(sT0)}, {v(vL16)}
          v_mov_b32 {v(vTRN)}, {v(vF2)}""")
    stamp()
    poll(vF2, FG, 52)
    stamp()
    hslots = [24, 28, 32, 36, 40, 52, 56, 60]
    acc6 = [64, 80, 96, 112]
    NH = len(hslots)

    def hload(n):
        j, sl = n >> 1, n & 1
        if (j & 3) == 0 and sl == 0:
            A(f"s_mov_b32 {s(sV)}, {HH + (j >> 2) * 4096}")
        A.vmem(f"buffer_load_dwordx4 {v(hslots[n % NH], 4)}, {v(vHH+sl)}, {s(SW,4)}, {s(sV)} offen offset:{(j & 3) * 1024} sc1", ("H", n))

    vW6 = 44
    A(f"v_mov_b32 {v(vW6)}, {v(vW)}\nv_mov_b32 {v(vW6+1)}, {v(vW+1)}")

    def sdma6(idx):
        base, off = ring_addr(idx % 25)
        kk, b = (idx - 112) >> 1, (idx - 112) & 1
        dma(base, off, vW6 + b, SO, (f"s_add_u32 {s(sT0)}, {s(sB1)}, {((kk >> 1) * 28 + (kk & 1) * 16) * 896}", s(sT0)), ("S", idx))

    for n in range(NH):
        hload(n)
    for j in range(28):
        A.wait_vm(("H", 2 * j + 1))
        if j >= 16:
            A.wait_lg([("s", 56 + 2 * j), ("s", 57 + 2 * j)])
        for sl in range(4):
            mfma(v(acc6[sl], 16), a(w4a(56 + 2 * j + (sl >> 1)), 4), v(hslots[(2 * j + (sl & 1)) % NH], 4), 0 if j == 0 else None)
        for n in (2 * j + NH, 2 * j + NH + 1):
            if n < 56:
                hload(n)
        if 1 <= j <= 12:
            for idx in (88 + 2 * (j - 1), 89 + 2 * (j - 1)):
                tr(("a", w4a(idx)), vRA2 if ring_addr(idx % 25)[0] == sPA else vRB2, ring_addr(idx % 25)[1], 512, ("s", idx))
        if 3 <= j <= 10:
            A.wait_lg([("s", 89 + 2 * (j - 3))])
            if j == 3:
                sdma6(112)
            for idx in (113 + 2 * (j - 3), 114 + 2 * (j - 3)):
                if idx < 128:
                    sdma6(idx)
    for idx in range(112, 128):
        tr(("a", 4 * (idx - 112)), vRA2 if ring_addr(idx % 25)[0] == sPA else vRB2, ring_addr(idx % 25)[1], 512, "wo")
    vRW2 = [24, 25]
    A(f"v_add_u32 {v(24)}, {s(sPA)}, {v(vL16)}\nv_add_u32 {v(25)}, {s(sPB)}, {v(vL16)}")
    A.drain_lg()
    A("s_nop 4")
    stamp()

    def slotoffs(first):
        return [(0, i * 1024) if i < 14 else (1, (i - 14) * 1024) for i in range(first, first + 12)]

    def mk2(sl):
        A(f"""s_xor_b32 {s(sT0)}, {s(sW)}, {sl}
              s_mul_i32 {s(sT1)}, {s(sT0)}, 14336
              s_mul_i32 {s(sT0)}, {s(sT0)}, 11264
              s_add_u32 {s(sT0)}, {s(sT0)}, {LQ}
              v_add_u32 {v(24+2*sl)}, {s(sT1)}, {v(vL16)}
              v_add_u32 {v(25+2*sl)}, {s(sT0)}, {v(vL16)}""")
        return [24 + 2 * sl, 25 + 2 * sl]

    reduce_out([("v", 80), ("v", 96), ("v", 112)], C_R2, vRW2, slotoffs(0))
    reduce_in(64, 80, C_R2, mk2, slotoffs(0))
    vG = 32
    for i in range(8):
        y = 64 + 2 * i
        A(f"""v_lshlrev_b32 {v(80)}, 16, {v(vX1P+i)}
              v_and_b32 {v(81)}, 0xffff0000, {v(vX1P+i)}
              v_add_f32 {v(y)}, {v(y)}, {v(80)}
              v_add_f32 {v(y+1)}, {v(y+1)}, {v(81)}
              v_mul_f32 {v(80)}, {f32(-LOG2E)}, {v(y)}
              v_mul_f32 {v(81)}, {f32(-LOG2E)}, {v(y+1)}
              v_exp_f32 {v(80)}, {v(80)}
              v_exp_f32 {v(81)}, {v(81)}
              v_add_f32 {v(80)}, 1.0, {v(80)}
              v_add_f32 {v(81)}, 1.0, {v(81)}
              v_rcp_f32 {v(80)}, {v(80)}
              v_rcp_f32 {v(81)}, {v(81)}
              v_mul_f32 {v(vG+2*i)}, {v(y)}, {v(80)}
              v_mul_f32 {v(vG+2*i+1)}, {v(y+1)}, {v(81)}""")
    vO = 48
    A(f"""s_lshl_b32 {s(sT0)}, {s(sW)}, 3
          s_lshl_b32 {s(sT1)}, 0xff, {s(sT0)}
          s_not_b32 {s(sINV)}, {s(sT1)}
          s_lshl_b32 {s(sT0)}, {s(sGT)}, 2
          s_add_u32 {s(sT0)}, {s(sT0)}, {s(sW)}
          s_lshl_b32 {s(sT0)}, {s(sT0)}, 13
          v_add_u32 {v(vO)}, {s(sT0)}, {v(vL16)}
          v_xor_b32 {v(vO+1)}, 0x8000, {v(vO)}""")
    stamp()
    poll(vTRN, FO, 52)
    stamp()
    A(f"s_mov_b32 {s(sT1)}, {OB}\ns_mov_b32 {s(sT2)}, {OB + 4096}")
    for kk in range(8):
        for sl in range(2):
            A.vmem(f"buffer_load_dwordx4 {a(64 + 8*kk + 4*sl, 4)}, {v(vO+sl)}, {s(SW,4)}, {s(sT1 + (kk >> 2))} offen offset:{(kk & 3) * 1024} sc1", ("o", kk))
    vOUT = 50
    A(f"""v_and_b32 {v(vT0)}, 31, {v(vLANE)}
          s_lshl_b32 {s(sT0)}, {s(sGT)}, 5
          v_add_u32 {v(vT0)}, {s(sT0)}, {v(vT0)}
          v_mul_u32_u24 {v(vT0)}, 896, {v(vT0)}
          v_lshrrev_b32 {v(vT1)}, 5, {v(vLANE)}
          v_lshl_add_u32 {v(vT0)}, {v(vT1)}, 4, {v(vT0)}
          s_lshl_b32 {s(sT0)}, {s(sT4)}, 6
          v_add_u32 {v(vOUT)}, {s(sT0)}, {v(vT0)}""")
    for kk in range(8):
        A.wait_vm(("o", kk))
        for sl in range(4):
            mfma(v(acc6[sl], 16), a(8 * kk + 4 * (sl >> 1), 4), a(64 + 8 * kk + 4 * (sl & 1), 4), 0 if kk == 0 else None)
    A("s_nop 7\ns_nop 3")
    reduce_out([("v", 80), ("v", 96), ("v", 112)], C_R3, vRW2, slotoffs(12))
    reduce_in(64, 80, C_R3, mk2, slotoffs(12))
    for i in range(8):
        y = 64 + 2 * i
        A(f"""v_lshlrev_b32 {v(80)}, 16, {v(vXD+i)}
              v_and_b32 {v(81)}, 0xffff0000, {v(vXD+i)}
              v_fma_f32 {v(80)}, {v(y)}, {v(vG+2*i)}, {v(80)}
              v_fma_f32 {v(81)}, {v(y+1)}, {v(vG+2*i+1)}, {v(81)}
              v_cvt_pk_bf16_f32 {v(84+i)}, {v(80)}, {v(81)}""")
    A("s_nop 1")
    for p in range(2):
        A(f"v_permlane32_swap_b32 {v(84+4*p)}, {v(86+4*p)}\nv_permlane32_swap_b32 {v(85+4*p)}, {v(87+4*p)}")
    for p in range(2):
        A.vmem(f"buffer_store_dwordx4 {v(84+4*p,4)}, {v(vOUT)}, {s(SOUT,4)}, 0 offen offset:{32*p}", "out")
    stamp()
    dump_stamps()
    A("s_endpgm")

    A.label("L_kv")
    A.vm = list(vm_kv)
    A.lg = []
    for i in range(16):
        A(f"v_mul_f32 {v(acc+i)}, {v(acc+i)}, {v(vR)}")
    A(f"s_mov_b64 exec, {s(sHI,2)}")
    for i in range(12, 16):
        A(f"v_mov_b32 {v(acc+i)}, 0")
    A("s_mov_b64 exec, -1")
    for i in range(8):
        A(f"v_cvt_pk_bf16_f32 {v(pk+i)}, {v(acc+2*i)}, {v(acc+2*i+1)}")
    A(f"""s_lshl_b32 {s(sT4)}, {s(sGT)}, 12
          s_cmp_eq_u32 {s(sP)}, 1
          s_cbranch_scc1 L_v
          s_mov_b64 exec, {s(sHI,2)}
          v_mov_b32 {v(pk+6)}, {ONES}
          v_mov_b32 {v(pk+7)}, 0x3f80
          s_mov_b64 exec, -1""")
    keep = list(A.vm)
    A.vmem(f"buffer_store_dwordx4 {v(pk,4)}, {v(vL16)}, {s(SW,4)}, {s(sT4)} offen sc1", "kv")
    A.vmem(f"buffer_store_dwordx4 {v(pk+4,4)}, {v(vL16)}, {s(SW,4)}, {s(sT4)} offen offset:1024 sc1", "kv")
    A(f"v_mul_f32 {v(72)}, {v(acc)}, {v(acc)}")
    for i in range(1, 16):
        A(f"v_fma_f32 {v(72)}, {v(acc+i)}, {v(acc+i)}, {v(72)}")
    halves(72, 73)
    A(f"v_add_f32 {v(72)}, {v(72)}, {v(73)}")
    wave_max(72, False)
    A(f"""v_readlane_b32 {s(sT0)}, {v(72)}, 31
          s_lshl_b32 {s(sT1)}, {s(sGT)}, 2
          s_add_u32 {s(sT1)}, {s(sT1)}, {KMAX}
          v_mov_b32 {v(73)}, 0
          v_mov_b32 {v(72)}, {s(sT0)}
          s_mov_b64 exec, 1
          buffer_store_dword {v(72)}, {v(73)}, {s(SW,4)}, {s(sT1)} offen sc1
          s_mov_b64 exec, -1
          s_branch L_kvdone""")
    A.label("L_v")
    A.vm = keep
    A(f"""s_mov_b64 exec, {s(sHI,2)}
          v_mov_b32 {v(pk+6)}, 0x3f80
          s_mov_b64 exec, -1
          s_lshl_b32 {s(sT0)}, {s(sTT)}, 11
          s_add_u32 {s(sT0)}, {s(sT0)}, {L_VT}
          v_and_b32 {v(72)}, 31, {v(vLANE)}
          v_lshrrev_b32 {v(73)}, 5, {v(vLANE)}
          v_lshlrev_b32 {v(73)}, 3, {v(73)}
          v_lshl_add_u32 {v(72)}, {v(72)}, 6, {v(73)}
          v_add_u32 {v(72)}, {s(sT0)}, {v(72)}
          v_add_u32 {v(73)}, {s(sT0)}, {v(vTRD)}""")
    for g in range(4):
        A.ds(f"ds_write_b64 {v(72)}, {v(pk+2*g,2)} offset:{16*g}", "vt")
    for c in range(2):
        tr(("v", 76 + 4 * c), 73, c * 1024, 512, "vr")
    A.drain_lg()
    A(f"buffer_store_dwordx4 {v(76,4)}, {v(vL16)}, {s(SW,4)}, {s(sT4)} offen offset:2048 sc1")
    A(f"buffer_store_dwordx4 {v(80,4)}, {v(vL16)}, {s(SW,4)}, {s(sT4)} offen offset:3072 sc1")
    A.label("L_kvdone")
    A.drain_vm()
    nonce_take(30)
    flag(f"s_lshl_b32 {s(sT0)}, {s(sGT)}, 1\ns_add_u32 {s(sT0)}, {s(sT0)}, {s(sP)}\ns_lshl_b32 {s(sT0)}, {s(sT0)}, 3\ns_add_u32 {s(sT0)}, {s(sT0)}, {FK}")
    arrive(C_P4)
    stamps["n"] = 3
    stamp()
    dump_stamps()
    A("s_endpgm")


def att(vm_entry):
    A.label("L_att")
    A.vm = list(vm_entry)
    A.lg = []
    stamp()
    srd(SQ, P_WQ, 401408)
    vQ = 11
    A(f"""s_mul_i32 {s(sT0)}, {s(sCB)}, 112
          s_mul_i32 {s(sT1)}, {s(sP)}, 56
          s_add_u32 {s(sT0)}, {s(sT0)}, {s(sT1)}
          s_mul_i32 {s(sT1)}, {s(sTT)}, {14 * 16 * 896}
          s_add_u32 {s(sT0)}, {s(sT0)}, {s(sT1)}
          v_mul_u32_u24 {v(vT0)}, 896, {v(9)}
          v_add3_u32 {v(vQ)}, {v(vT0)}, {v(10)}, {s(sT0)}
          s_mul_i32 {s(sPB)}, {s(sW)}, 11264
          s_mul_i32 {s(sPA)}, {s(sW)}, 3072""")
    for n in range(11):
        dma(sPB, LQ + n * 1024, vQ, SQ, (f"s_mov_b32 {s(sT0)}, {n * 16 * 896}", s(sT0)), "WQ")
    xf = 16
    vS1, vS2 = 8, 9
    acc, cs, ring, ones = 0, 16, 32, 64
    A(f"v_mov_b32 {v(vS1)}, 0\nv_mov_b32 {v(vS2)}, 0\ns_mov_b32 {s(sT5)}, {ONES}\nv_mov_b32 {v(vT0)}, {ONES}")
    for i in range(4):
        A(f"v_accvgpr_write_b32 {a(ones+i)}, {v(vT0)}")
    A.wait_vm("X")
    barrier()
    stamp()
    for ks in range(28):
        A.ds(f"ds_read_b128 {v(xf+4*ks,4)}, {v(12 + (ks & 3))} offset:{(ks >> 2) * 8192}", ("x", ks))

    def dots(lo, hi):
        for ks in range(lo, hi):
            A.wait_lg(("x", ks))
            for i in range(4):
                r = xf + 4 * ks + i
                A(f"v_dot2c_f32_bf16 {v(vS1)}, {s(sT5)}, {v(r)}\nv_dot2c_f32_bf16 {v(vS2)}, {v(r)}, {v(r)}")

    vM, vR = 8, 9
    for st in range(4):
        dots(*[(0, 12), (12, 20), (20, 28), (28, 28)][st])
        if st == 2:
            A("s_nop 2")
            halves(vS1, vT2)
            halves(vS2, vT3)
            A(f"""v_add_f32 {v(vS1)}, {v(vS1)}, {v(vT2)}
                  v_add_f32 {v(vS2)}, {v(vS2)}, {v(vT3)}
                  v_mul_f32 {v(vM)}, {f32(1/448)}, {v(vS1)}
                  v_mul_f32 {v(vT2)}, {v(vM)}, {v(vM)}
                  v_mul_f32 {v(vS2)}, {f32(1/448)}, {v(vS2)}
                  v_sub_f32 {v(vS2)}, {v(vS2)}, {v(vT2)}
                  v_max_f32 {v(vS2)}, 0, {v(vS2)}
                  v_and_b32 {v(vT2)}, 31, {v(vLANE)}
                  s_lshl_b32 {s(sT0)}, {s(sTT)}, 8
                  s_add_u32 {s(sT0)}, {s(sT0)}, {L_STAT}
                  v_lshl_add_u32 {v(vT2)}, {v(vT2)}, 3, {s(sT0)}""")
            A.ds(f"ds_write_b64 {v(vT2)}, {v(vM,2)}", "stat")
            A.drain_lg()
        A.wait_vm(("WA", st))
        barrier()
        if st == 1:
            for n in range(11, 14):
                dma(sPA, LA + (n - 11) * 1024, vQ, SQ, (f"s_mov_b32 {s(sT0)}, {n * 16 * 896}", s(sT0)), "WQ")
            nonce_issue(12)
    A(f"""v_add_f32 {v(vR)}, {f32(EPS)}, {v(vR)}
          v_rsq_f32 {v(vR)}, {v(vR)}
          s_mul_i32 {s(sT0)}, {s(sP)}, {22 * 1024}
          s_add_u32 {s(sT0)}, {s(sT0)}, {LQ}
          v_add_u32 {v(10)}, {s(sT0)}, {v(vTRN)}
          s_mul_i32 {s(sT0)}, {s(sP)}, {6 * 1024}
          s_add_u32 {s(sT0)}, {s(sT0)}, {LA}
          v_add_u32 {v(11)}, {s(sT0)}, {v(vTRN)}
          v_mul_f32 {v(vR)}, {f32(QSCALE)}, {v(vR)}""")
    A.wait_vm(["WQ", "nonce"])
    arrive(C_WQ)
    nonce_take(12)
    await_cnt(C_WQ)
    stamp()

    def wq(ks):
        o, n = ks // 14, ks % 14
        if n < 11:
            tr(("a", ring + 4 * (ks % 8)), 10, (o * 11 + n) * 1024, 256, ("w", ks))
        else:
            tr(("a", ring + 4 * (ks % 8)), 11, (o * 3 + n - 11) * 1024, 256, ("w", ks))
    for ks in range(6):
        wq(ks)
    for ks in range(28):
        if ks + 6 < 28:
            wq(ks + 6)
        A.wait_lg(("w", ks))
        mfma(a(acc, 16), a(ring + 4 * (ks % 8), 4), v(xf + 4 * ks, 4), 0 if ks == 0 else None)
        mfma(a(cs, 16), a(ring + 4 * (ks % 8), 4), a(ones, 4), 0 if ks == 0 else None)
    vG, vF = 12, 13
    A(f"""s_lshl_b32 {s(sT0)}, {s(sW)}, 11
          s_add_u32 {s(sT0)}, {s(sT0)}, {L_QG}
          v_add_u32 {v(vG)}, {s(sT0)}, {v(vL16)}
          s_lshl_b32 {s(sT0)}, {s(sW)}, 8
          s_add_u32 {s(sT0)}, {s(sT0)}, {L_QN}
          v_lshlrev_b32 {v(14)}, 2, {v(vLANE)}
          v_add_u32 {v(15)}, {s(sT0)}, {v(14)}
          s_mov_b64 {s(sINV,2)}, 0
          s_nop 3""")
    q = 16
    for i in range(16):
        A(f"v_accvgpr_read_b32 {v(q+i)}, {a(acc+i)}\nv_accvgpr_read_b32 {v(q+16+i)}, {a(cs+i)}")
    for i in range(16):
        A(f"v_fma_f32 {v(q+i)}, -{v(q+16+i)}, {v(vM)}, {v(q+i)}\nv_mul_f32 {v(q+i)}, {v(q+i)}, {v(vR)}")
    A(f"s_mov_b64 exec, {s(sHI,2)}")
    for i in range(12, 16):
        A(f"v_mov_b32 {v(q+i)}, 0")
    A("s_mov_b64 exec, -1")
    for i in range(8):
        A(f"v_cvt_pk_bf16_f32 {v(48+i)}, {v(q+2*i)}, {v(q+2*i+1)}")
    A.ds(f"ds_write_b128 {v(vG)}, {v(48,4)}", "qg")
    A.ds(f"ds_write_b128 {v(vG)}, {v(52,4)} offset:1024", "qg")
    A(f"v_mul_f32 {v(56)}, {v(q)}, {v(q)}")
    for i in range(1, 16):
        A(f"v_fma_f32 {v(56)}, {v(q+i)}, {v(q+i)}, {v(56)}")
    halves(56, 57)
    A(f"v_add_f32 {v(56)}, {v(56)}, {v(57)}")
    A.ds(f"ds_write_b32 {v(15)}, {v(56)}", "qg")
    arrive(C_Q)
    aO, aQ, aK, aV = 0, 48, 80, 96
    O0, S, P = 16, [32, 48], 64
    for i in range(16):
        A(f"v_mov_b32 {v(O0+i)}, 0")
    for i in range(48):
        A(f"v_accvgpr_write_b32 {a(aO+i)}, 0")
    for i in range(4):
        A(f"v_mov_b32 {v(P+4+i)}, 0")
    await_cnt(C_Q)
    for sl in range(4):
        A(f"v_xor_b32 {v(72+sl)}, {sl << 11}, {v(vG)}")
    for sl in range(4):
        for c in range(2):
            A.ds(f"ds_read_b128 {a(aQ + 8*sl + 4*c, 4)}, {v(72+sl)} offset:{c*1024}", "q")
    A(f"v_add_u32 {v(14)}, {L_QN}, {v(14)}")
    for sl in range(4):
        A.ds(f"ds_read_b32 {v(76+sl)}, {v(14)} offset:{sl*256}", "q")
    A.drain_lg()
    arrive(C_QD)
    A(f"""v_max3_f32 {v(76)}, {v(76)}, {v(77)}, {v(78)}
          v_max_f32 {v(76)}, {v(76)}, {v(79)}
          s_lshl_b32 {s(sT0)}, {s(sCB)}, 1
          s_and_b32 {s(sT1)}, {s(sTB)}, 1
          s_add_u32 {s(sT0)}, {s(sT0)}, {s(sT1)}
          s_lshl_b32 {s(sK)}, {s(sT0)}, 12
          s_lshl_b32 {s(sT0)}, {s(sW)}, 16
          v_add_u32 {v(vF)}, {s(sT0)}, {v(vL16)}""")
    stamp()
    poll(vL16, FK, 80, both=True)
    stamp()

    def kload(slot):
        for c in range(2):
            A.vmem(f"buffer_load_dwordx4 {a(aK + 8*slot + 4*c, 4)}, {v(vF)}, {s(SW,4)}, {s(sK)} offen offset:{c*1024} sc1", "K")

    def vload(slot):
        for c in range(2):
            A.vmem(f"buffer_load_dwordx4 {a(aV + 8*slot + 4*c, 4)}, {v(vF)}, {s(SW,4)}, {s(sV)} offen offset:{2048 + c*1024} sc1", "V")

    def adv(r):
        A(f"s_add_u32 {s(r)}, {s(r)}, 4096\ns_and_b32 {s(r)}, {s(r)}, 0xffff")

    A(f"v_lshlrev_b32 {v(77)}, 2, {v(vLANE)}\ns_mov_b32 {s(sT0)}, {KMAX}\ns_mov_b32 {s(sV)}, {s(sK)}")
    A.vmem(f"buffer_load_dword {v(78)}, {v(77)}, {s(SW,4)}, {s(sT0)} offen sc1", "km")
    kload(0)
    vload(0)
    adv(sK)
    kload(1)
    adv(sK)
    adv(sV)
    A.wait_vm("km")
    wave_max(78, True)
    A(f"""v_readlane_b32 {s(sT0)}, {v(78)}, 63
          s_nop 1
          v_mul_f32 {v(76)}, {s(sT0)}, {v(76)}
          v_cmp_nge_f32 vcc, {f32(-1.0 if FORCE_SLOW else BOUND2)}, {v(76)}
          s_cmp_lg_u64 vcc, 0
          s_cbranch_scc1 L_slow""")
    A.label("L_fast")
    for i in range(4):
        A(f"v_accvgpr_write_b32 {a(aV+12+i)}, 0")
    A("s_waitcnt vmcnt(4)")

    def Oreg(sl):
        return v(O0, 16) if sl == 0 else a(aO + 16 * (sl - 1), 16)

    mfma(v(S[0], 16), a(aK, 4), a(aQ, 4), 0)
    mfma(v(S[0], 16), a(aK + 4, 4), a(aQ + 4, 4))
    A(f"s_mov_b32 {s(sT4)}, 8\ns_nop 7\ns_nop 1")
    A.label("L_aloop")

    def period(sg, qt):
        cur, nxt = S[qt & 1], S[(qt + 1) & 1]
        ks = sg if qt < 3 else sg ^ 1
        vs = sg if qt > 0 else sg ^ 1
        nq, pq = (qt + 1) & 3, (qt - 1) & 3
        e = lambda i: A(f"v_exp_f32 {v(cur+i)}, {v(cur+i)}")
        c = lambda i: A(f"v_cvt_pk_bf16_f32 {v(P+i)}, {v(cur+2*i)}, {v(cur+2*i+1)}")
        if qt == 3:
            A("s_waitcnt vmcnt(2)")
        mfma(v(nxt, 16), a(aK + 8 * ks, 4), a(aQ + 8 * nq, 4), 0)
        if qt == 3:
            kload(sg)
            adv(sK)
        if qt == 1:
            vload(sg ^ 1)
            adv(sV)
        e(0); e(1); e(2); e(3)
        mfma(Oreg(pq), a(aV + 8 * vs + 4, 4), v(P + 4, 4))
        c(0); c(1); e(4); e(5); e(6); e(7)
        mfma(v(nxt, 16), a(aK + 8 * ks + 4, 4), a(aQ + 8 * nq + 4, 4))
        c(2); c(3); e(8); e(9); e(10); e(11)
        if qt == 0:
            A("s_waitcnt vmcnt(2)")
        mfma(Oreg(qt), a(aV + 8 * sg, 4), v(P, 4))
        c(4); c(5); e(12); e(13); e(14); e(15); c(6); c(7)

    for sg in range(2):
        for qt in range(4):
            period(sg, qt)
            A.vm = []
    A(f"s_sub_u32 {s(sT4)}, {s(sT4)}, 1\ns_cmp_lg_u32 {s(sT4)}, 0\ns_cbranch_scc1 L_aloop")
    mfma(Oreg(3), a(aV + 12, 4), v(P + 4, 4))
    stamp()
    await_cnt(C_P4)
    A(f"""s_mul_i32 {s(sT0)}, {s(sW)}, 12288
          s_add_u32 {s(sT0)}, {s(sT0)}, {LA}
          v_add_u32 {v(8)}, {s(sT0)}, {v(vL16)}
          s_nop 7""")
    offs = [(0, i * 1024) for i in range(12)]
    reduce_out([("a", aO), ("a", aO + 16), ("a", aO + 32)], C_MRG, [8], offs)

    def mk(sl):
        A(f"""s_xor_b32 {s(sT0)}, {s(sW)}, {sl}
              s_mul_i32 {s(sT0)}, {s(sT0)}, 12288
              s_add_u32 {s(sT0)}, {s(sT0)}, {LA}
              v_add_u32 {v(8+sl)}, {s(sT0)}, {v(vL16)}""")
        return [8 + sl]
    reduce_in(O0, 32, C_MRG, mk, offs)
    A(f"v_mov_b32 {v(32)}, {v(O0+12)}")
    halves(32, 33)
    A(f"""v_rcp_f32 {v(33)}, {v(33)}
          s_lshl_b32 {s(sT0)}, {s(sGT)}, 4
          s_lshl_b32 {s(sT1)}, {s(sCB)}, 1
          s_add_u32 {s(sT0)}, {s(sT0)}, {s(sT1)}
          s_add_u32 {s(sT0)}, {s(sT0)}, {s(sP)}
          s_lshl_b32 {s(sT0)}, {s(sT0)}, 11
          s_add_u32 {s(sT4)}, {s(sT0)}, {OB}""")
    for i in range(16):
        A(f"v_mul_f32 {v(O0+i)}, {v(O0+i)}, {v(33)}")
    for i in range(8):
        A(f"v_cvt_pk_bf16_f32 {v(40+i)}, {v(O0+2*i)}, {v(O0+2*i+1)}")
    A(f"s_mov_b64 exec, {s(sHI,2)}\nv_mov_b32 {v(46)}, 0\nv_mov_b32 {v(47)}, 0\ns_mov_b64 exec, -1")
    A(f"buffer_store_dwordx4 {v(40,4)}, {v(vL16)}, {s(SW,4)}, {s(sT4)} offen sc1")
    A(f"buffer_store_dwordx4 {v(44,4)}, {v(vL16)}, {s(SW,4)}, {s(sT4)} offen offset:1024 sc1")
    A.drain_vm()
    flag(f"s_lshl_b32 {s(sT0)}, {s(sTB)}, 3\ns_add_u32 {s(sT0)}, {s(sT0)}, {s(sCB)}\ns_lshl_b32 {s(sT0)}, {s(sT0)}, 2\n"
         f"s_add_u32 {s(sT0)}, {s(sT0)}, {s(sW)}\ns_lshl_b32 {s(sT0)}, {s(sT0)}, 3\ns_add_u32 {s(sT0)}, {s(sT0)}, {FO}")
    stamp()
    dump_stamps()
    A("s_endpgm")

    A.label("L_slow")
    mx = 72
    for sl in range(4):
        A(f"v_mov_b32 {v(mx+sl)}, 0xff800000")
    A(f"s_mov_b32 {s(sT4)}, 0")
    A.label("L_sloop")
    A(f"""buffer_load_dwordx4 {v(80,4)}, {v(vF)}, {s(SW,4)}, {s(sT4)} offen sc1
          buffer_load_dwordx4 {v(84,4)}, {v(vF)}, {s(SW,4)}, {s(sT4)} offen offset:1024 sc1
          s_add_u32 {s(sT4)}, {s(sT4)}, 4096
          s_waitcnt vmcnt(0)""")
    for sl in range(4):
        mfma(v(S[0], 16), v(80, 4), a(aQ + 8 * sl, 4), 0)
        mfma(v(S[0], 16), v(84, 4), a(aQ + 8 * sl + 4, 4))
        A("s_nop 11")
        for i in range(8):
            A(f"v_max3_f32 {v(mx+sl)}, {v(mx+sl)}, {v(S[0]+2*i)}, {v(S[0]+2*i+1)}")
    A(f"s_cmp_lt_u32 {s(sT4)}, 0x10000\ns_cbranch_scc1 L_sloop")
    A(f"v_and_b32 {v(80)}, 31, {v(vLANE)}\nv_lshlrev_b32 {v(80)}, 2, {v(80)}\nv_add_u32 {v(80)}, {L_MX}, {v(80)}")
    for sl in range(4):
        halves(mx + sl, 81)
        A(f"""v_max_f32 {v(mx+sl)}, {v(mx+sl)}, {v(81)}
              s_xor_b32 {s(sT0)}, {s(sW)}, {sl}
              s_lshl_b32 {s(sT0)}, {s(sT0)}, 9
              v_add_u32 {v(84+sl)}, {s(sT0)}, {v(80)}
              s_lshl_b32 {s(sT0)}, {s(sW)}, 7
              v_add_u32 {v(82)}, {s(sT0)}, {v(84+sl)}
              ds_write_b32 {v(82)}, {v(mx+sl)}""")
    arrive(C_MAX)
    await_cnt(C_MAX)
    for sl in range(4):
        for w in range(4):
            A(f"ds_read_b32 {v(88+w)}, {v(84+sl)} offset:{w*128}")
        A(f"""s_waitcnt lgkmcnt(0)
              v_max3_f32 {v(88)}, {v(88)}, {v(89)}, {v(90)}
              v_max_f32 {v(88)}, {v(88)}, {v(91)}
              v_sub_f32 {v(88)}, 0, {v(88)}
              v_cvt_pk_bf16_f32 {v(89)}, {v(88)}, {v(88)}
              v_and_b32 {v(89)}, 0xffff0000, {v(89)}
              v_sub_f32 {v(90)}, {v(88)}, {v(89)}
              v_cvt_pk_bf16_f32 {v(91)}, {v(88)}, {v(90)}
              v_and_b32 {v(89)}, 0xffff0000, {v(91)}
              v_sub_f32 {v(90)}, {v(90)}, {v(89)}
              v_cvt_pk_bf16_f32 {v(90)}, {v(90)}, 0
              s_mov_b64 exec, {s(sHI,2)}
              v_accvgpr_write_b32 {a(aQ + 8*sl + 6)}, {v(91)}
              v_accvgpr_write_b32 {a(aQ + 8*sl + 7)}, {v(90)}
              s_mov_b64 exec, -1""")
    A("s_branch L_fast")


def header():
    ref = open(f"cdna_kernels/{NAME}.s.ref").read().split("\n")
    out = [l for l in ref if l.startswith(";") and "@launch" not in l and "Override" not in l and "grid=ceil" not in l]
    out.append(f"; @launch grid=(256,1,1) block=(512,1,1) lds={LDS_SIZE}")
    out += ['.amdgcn_target "amdgcn-amd-amdhsa--gfx950"', ".text", f".globl {NAME}_kernel", ".p2align 8",
            f".type {NAME}_kernel,@function", f"{NAME}_kernel:"]
    return "\n".join(out) + "\n"


def footer():
    return f"""L_end:
    s_endpgm
L_code_end:
.section .rodata,"a"
.p2align 6
.amdhsa_kernel {NAME}_kernel
  .amdhsa_next_free_vgpr 256
  .amdhsa_next_free_sgpr 102
  .amdhsa_accum_offset 128
  .amdhsa_group_segment_fixed_size 0
  .amdhsa_kernarg_size 104
  .amdhsa_user_sgpr_count 2
  .amdhsa_user_sgpr_kernarg_segment_ptr 1
  .amdhsa_system_sgpr_workgroup_id_x 1
.end_amdhsa_kernel
"""


if __name__ == "__main__":
    prologue()
    entry = list(A.vm)
    mlp()
    att(entry)
    out = [x for x in sys.argv[1:] if not x.startswith("--")]
    open(out[0] if out else "k.s", "w").write(header() + A.text() + footer())
```

```python
import math
import sys
from asmlib import Asm, a, f32, s, v, weave

NAME = "recurrent_scan__grouped_kv_mqa__mixer_s_mlp__prompt"
PROFILE = "--prof" in sys.argv or "--cyc" in sys.argv
CLOCK = "s_memtime" if "--cyc" in sys.argv else "s_memrealtime"
FORCE_SLOW = "--slow" in sys.argv
OPT = {x[2:].split("=")[0]: (x.split("=") + [""])[1] for x in sys.argv if x.startswith("--")}


class Stop(Exception):
    pass


def cut(name):
    if OPT.get("mlpstop") == name:
        arrive(C_P4)
        A.drain_vm()
        dump_stamps()
        A("s_endpgm")


KV, CS, FK, FC, FH, FX, FG, FO = 0x0, 0x40000, 0x48000, 0x49000, 0x50000, 0x58000, 0x60000, 0x68000
TS = 0x80000
HB, ST, X1, HH, OB = 0x100000, 0x2C0000, 0x300000, 0x500000, 0xC00000
WS_SIZE = 0xE00000
OOB = 0x7FFF0000
LX, LA, LQ, LS = 0, 57344, 114688, 159744
LDS_SIZE = 163840
(C_PA, C_WQ, C_Q, C_QD, C_MAX, C_MRG, C_R1, C_XA, C_XB, C_P4, C_R2, C_R3, N_H, N_X, N_G, N_O, N_K, N_C,
 G_H, G_X, G_G, G_O, G_K, L_KM, L_KP) = [LS + 4 * i for i in range(25)]
L_QN, L_STAT = LS + 1024, LS + 2048
L_MX = LS + 256
L_QG, L_VT = LA + 16384, LA + 12288
assert L_QG % 8192 == 0
LOG2E = 1.4426950408889634
QSCALE = 28 ** -0.5 * LOG2E
GC1 = -2 * LOG2E * math.sqrt(2 / math.pi)
GC2 = GC1 * 0.044715
EPS = 1e-5
BOUND2 = 3500.0
ONES = 0x3F803F80
GSPIN, LSPIN = 20000, 400000
SX, SA, SQ, SW, S4, SO, SOUT, SD, S2 = 4, 8, 12, 16, 20, 24, 28, 32, 36
P_X, P_WQ, P_WK, P_WV, P_WO, P_W1, P_W2, P_W3, P_W4, P_OUT, P_DBG, P_WS = 40, 42, 44, 46, 48, 52, 54, 56, 58, 60, 62, 64
sN = 66
sW8, sW, sTB, sCB, sTT, sP, sGT = 68, 69, 70, 71, 72, 73, 74
sHI = 76
sINV = 78
sT0, sT1, sT2, sT3, sT4, sT5 = 80, 81, 82, 83, 84, 85
sPA, sPB, sB1, sB4, sSP = 86, 87, 88, 89, 90
sK, sV, sR, sRG = 91, 92, 93, 96
sTS = 40
vLANE, vL16, vTRN, vTRD, vT0, vT1, vT2, vT3 = 0, 1, 2, 3, 4, 5, 6, 7
MF = "v_mfma_f32_32x32x16_bf16"

A = Asm()
stamps = {"n": 0}


def stamp():
    if PROFILE:
        i = stamps["n"]
        stamps["n"] += 1
        A(f"s_waitcnt lgkmcnt(0)\n{CLOCK} {s(94,2)}\ns_waitcnt lgkmcnt(0)\ns_mov_b32 {s(sTS+i)}, s94")
        A.lg = []


def dump_stamps():
    if PROFILE:
        n = stamps["n"]
        A(f"s_lshl_b32 {s(sT0)}, s2, 3\ns_add_u32 {s(sT0)}, {s(sT0)}, {s(sW8)}\ns_lshl_b32 {s(sT0)}, {s(sT0)}, 7\n"
          f"s_add_u32 {s(sT0)}, {s(sT0)}, {TS}\nv_mov_b32 {v(vT1)}, 0")
        for i in range(n):
            A(f"v_mov_b32 {v(vT0)}, {s(sTS+i)}\nbuffer_store_dword {v(vT0)}, {v(vT1)}, {s(SW,4)}, {s(sT0)} offen offset:{4*i}")
        A.drain_vm()
    stamps["n"] = 0


def srd(r, ptr, size):
    A(f"s_mov_b32 {s(r)}, {s(ptr)}\ns_mov_b32 {s(r+1)}, {s(ptr+1)}\ns_mov_b32 {s(r+2)}, {size}\ns_mov_b32 {s(r+3)}, 0x20000")


def mfma(d, x, y, c=None):
    A(f"{MF} {d}, {x}, {y}, {d if c is None else c}")


def dma(m0_base, m0_off, voff, desc, soff, tag, imm=0, sc=""):
    if m0_base is None:
        A(f"s_mov_b32 m0, {m0_off - imm}")
    else:
        A(f"s_add_u32 m0, {s(m0_base)}, {m0_off - imm}")
    pre, so = soff
    if pre:
        A(pre)
    else:
        A("s_nop 0")
    A.vmem(f"buffer_load_dwordx4 {v(voff)}, {s(desc,4)}, {so} offen" + (f" offset:{imm}" if imm else "") + f"{sc} lds", tag)


def tr(dst, addr, off, second, tag):
    k, i = dst
    r = v if k == "v" else a
    A.ds(f"ds_read_b64_tr_b16 {r(i,2)}, {v(addr)} offset:{off}", tag)
    A.ds(f"ds_read_b64_tr_b16 {r(i+2,2)}, {v(addr)} offset:{off+second}", tag)


def arrive(cnt):
    A(f"s_mov_b64 exec, 1\nv_mov_b32 {v(vT0)}, {cnt}\nv_mov_b32 {v(vT1)}, 1")
    A.ds(f"ds_add_u32 {v(vT0)}, {v(vT1)}", "cnt")
    A("s_mov_b64 exec, -1")


def await_cnt(cnt, target=4):
    lp, ok = A.newlabel("ls"), A.newlabel("lk")
    A(f"v_mov_b32 {v(vT0)}, {cnt}\ns_mov_b32 {s(sSP)}, 0")
    A.label(lp)
    A(f"""ds_read_b32 {v(vT1)}, {v(vT0)}
          s_add_u32 {s(sSP)}, {s(sSP)}, 1
          s_waitcnt lgkmcnt(0)
          v_readfirstlane_b32 {s(sT0)}, {v(vT1)}
          s_cmp_ge_u32 {s(sT0)}, {target}
          s_cbranch_scc1 {ok}
          s_cmp_lt_u32 {s(sSP)}, {LSPIN}
          s_cbranch_scc1 {lp}""")
    A.label(ok)
    A.lg = []


def gate(go, setup, tmp, payload=None):
    lp, ok, rest = A.newlabel("gs"), A.newlabel("gk"), A.newlabel("gw")
    A(f"s_cmp_lg_u32 {s(sW)}, 0\ns_cbranch_scc1 {rest}")
    setup()
    A(f"s_mov_b32 {s(sSP)}, 0")
    A.label(lp)
    n = 4 if payload else 2
    A(f"""buffer_load_dwordx{n} {v(tmp,n)}, {v(vT2)}, {s(SW,4)}, 0 offen sc1
          s_add_u32 {s(sSP)}, {s(sSP)}, 1
          s_waitcnt vmcnt(0)
          v_cmp_eq_u64 vcc, {s(sN,2)}, {v(tmp,2)}
          s_or_b64 vcc, vcc, {s(sINV,2)}
          s_cmp_eq_u64 vcc, -1
          s_cbranch_scc1 {ok}
          s_cmp_lt_u32 {s(sSP)}, {GSPIN}
          s_cbranch_scc1 {lp}""")
    A.label(ok)
    if payload:
        payload()
    keep = list(A.lg)
    arrive(go)
    A.lg = keep
    A.label(rest)
    await_cnt(go, 1)


def lanes_to(addr_reg):
    A(f"s_mov_b64 vcc, {s(sINV,2)}\nv_mov_b32 {v(vT3)}, {OOB}\nv_cndmask_b32 {v(vT2)}, {v(addr_reg)}, {v(vT3)}, vcc")


def signal(cnt, soff_expr, tags=None, payload=None):
    skip = A.newlabel("sg")
    if tags is None:
        A.drain_vm()
    else:
        A.wait_vm(tags)
    A(f"""s_mov_b64 exec, 1
          v_mov_b32 {v(vT0)}, {cnt}
          v_mov_b32 {v(vT1)}, 1
          ds_add_rtn_u32 {v(vT1)}, {v(vT0)}, {v(vT1)}""")
    if payload:
        A(f"ds_read_b32 {v(vT2)}, {v(vT0)} offset:{payload - cnt}")
    A(soff_expr)
    A(f"""s_waitcnt lgkmcnt(0)
          v_readfirstlane_b32 {s(sT1)}, {v(vT1)}
          s_cmp_lg_u32 {s(sT1)}, 3
          s_cbranch_scc1 {skip}
          v_mov_b32 {v(vT0)}, {s(sN)}
          v_mov_b32 {v(vT1)}, {s(sN+1)}
          v_mov_b32 {v(vT3)}, 0
          buffer_store_dwordx4 {v(vT0,4)}, {v(vT3)}, {s(SW,4)}, {s(sT0)} offen sc1""")
    A.label(skip)
    A("s_mov_b64 exec, -1\ns_nop 0")
    A.lg = []


def nonce_issue(tmp):
    A(f"v_mov_b32 {v(vT3)}, 0")
    A.vmem(f"buffer_load_dwordx2 {v(tmp,2)}, {v(vT3)}, {s(SD,4)}, 0 offen sc1", "nonce")


def nonce_take(tmp):
    lp, ok = A.newlabel("ns"), A.newlabel("nk")
    A.wait_vm("nonce")
    A(f"s_mov_b32 {s(sSP)}, 0\nv_mov_b32 {v(vT3)}, 0")
    A.label(lp)
    A(f"""v_readfirstlane_b32 {s(sN)}, {v(tmp)}
          v_readfirstlane_b32 {s(sN+1)}, {v(tmp+1)}
          s_add_u32 {s(sSP)}, {s(sSP)}, 1
          s_cmp_lg_u64 {s(sN,2)}, 0
          s_cbranch_scc1 {ok}
          s_cmp_ge_u32 {s(sSP)}, {GSPIN}
          s_cbranch_scc1 {ok}
          buffer_load_dwordx2 {v(tmp,2)}, {v(vT3)}, {s(SD,4)}, 0 offen sc1
          s_waitcnt vmcnt(0)
          s_branch {lp}""")
    A.label(ok)


def halves(x, t):
    A(f"v_mov_b32 {v(t)}, {v(x)}\ns_nop 1\nv_permlane32_swap_b32 {v(x)}, {v(t)}")


def wave_max(x, full):
    for sh in (1, 2, 4, 8):
        A(f"s_nop 1\nv_max_f32_dpp {v(x)}, {v(x)}, {v(x)} row_shr:{sh} row_mask:0xf bank_mask:0xf bound_ctrl:0")
    A(f"s_nop 1\nv_max_f32_dpp {v(x)}, {v(x)}, {v(x)} row_bcast:15 row_mask:0xa bank_mask:0xf")
    if full:
        A(f"s_nop 1\nv_max_f32_dpp {v(x)}, {v(x)}, {v(x)} row_bcast:31 row_mask:0xc bank_mask:0xf")
    A("s_nop 1")


def gelu_ops(y, t, dst, c1, c2, ri):
    o = []
    for e in (0, 1):
        o.append(f"v_mul_f32 {v(t+e)}, {v(y+e)}, {v(y+e)}")
    for e in (0, 1):
        o.append(f"v_fma_f32 {v(t+e)}, {v(t+e)}, {v(c2)}, {v(c1)}")
    for e in (0, 1):
        o.append(f"v_mul_f32 {v(t+e)}, {v(t+e)}, {v(y+e)}")
    for e in (0, 1):
        o.append(f"v_exp_f32 {v(t+e)}, {v(t+e)}")
    for e in (0, 1):
        o.append(f"v_fma_f32 {v(t+e)}, {v(t+e)}, {v(ri)}, {v(ri)}")
    for e in (0, 1):
        o.append(f"v_rcp_f32 {v(t+e)}, {v(t+e)}")
    for e in (0, 1):
        o.append(f"v_mul_f32 {v(t+e)}, {v(t+e)}, {v(y+e)}")
    o.append(f"v_cvt_pk_bf16_f32 {v(dst)}, {v(t)}, {v(t+1)}")
    return o


def ring_addr(slot):
    return (sPA, slot * 1024) if slot < 14 else (sPB, (slot - 14) * 1024)


def reduce_out(srcs, cnt, vbase, offs):
    for i in range(12):
        k, r = srcs[i // 4]
        reg = (v if k == "v" else a)(r + 4 * (i % 4), 4)
        b, o = offs[i]
        A.ds(f"ds_write_b128 {v(vbase[b])}, {reg} offset:{o}", "red")
    arrive(cnt)


def reduce_in(acc, tmp, cnt, mkaddr, offs):
    await_cnt(cnt)
    for sl in (1, 2, 3):
        regs = mkaddr(sl)
        for q in range(4):
            b, o = offs[(sl - 1) * 4 + q]
            A.ds(f"ds_read_b128 {v(tmp + 16*(sl-1) + 4*q, 4)}, {v(regs[b])} offset:{o}", ("rd", sl))
    for sl in (1, 2, 3):
        A.wait_lg(("rd", sl))
        for i in range(16):
            A(f"v_add_f32 {v(acc+i)}, {v(acc+i)}, {v(tmp + 16*(sl-1) + i)}")


vC2, vC3, vXF, vWQ = 100, 101, 104, 109


def xread(ks):
    A.ds(f"ds_read_b128 {a(4*ks,4)}, {v(vXF + (ks & 3))} offset:{(ks >> 2) * 8192}", ("x", ks))


def prologue():
    A(f"""s_cmp_ge_u32 s2, 256
          s_cbranch_scc1 L_end
          s_load_dwordx16 {s(40,16)}, s[0:1], 0
          s_load_dwordx8 {s(56,8)}, s[0:1], 64
          s_load_dwordx2 {s(64,2)}, s[0:1], 96
          s_memrealtime {s(sN,2)}
          s_getpc_b64 {s(sT2,2)}
          v_lshrrev_b32 {v(vT0)}, 6, v0
          s_lshr_b32 {s(sT0)}, s2, 3
          v_readfirstlane_b32 {s(sW8)}, {v(vT0)}
          s_and_b32 {s(sT1)}, {s(sT0)}, 3
          s_lshl_b32 {s(sT4)}, {s(sT1)}, 13
          v_lshl_add_u32 {v(vT1)}, v0, 4, {s(sT4)}
          s_and_b32 {s(sT2)}, {s(sT2)}, 0xffffff00
          v_min_u32 {v(vT1)}, L_code_end-{NAME}_kernel-16, {v(vT1)}""")
    A.vmem(f"global_load_dwordx4 {v(124,4)}, {v(vT1)}, {s(sT2,2)}", "pf")
    A(f"""v_and_b32 {v(vLANE)}, 63, v0
          s_and_b32 {s(sTB)}, s2, 7
          s_lshl_b32 {s(sTB)}, {s(sTB)}, 2
          s_add_u32 {s(sTB)}, {s(sTB)}, {s(sT1)}
          s_lshr_b32 {s(sCB)}, {s(sT0)}, 2
          v_lshlrev_b32 {v(vL16)}, 4, {v(vLANE)}""")
    A(f"""v_lshrrev_b32 {v(vT0)}, 3, {v(vLANE)}
          s_lshl_b32 {s(sT0)}, {s(sTB)}, 3
          s_add_u32 {s(sT0)}, {s(sT0)}, {s(sW8)}
          s_lshl_b32 {s(sT0)}, {s(sT0)}, 3
          v_add_u32 {v(vT1)}, {s(sT0)}, {v(vT0)}
          v_mul_u32_u24 {v(vT2)}, 896, {v(vT1)}
          v_lshrrev_b32 {v(vT1)}, 1, {v(vT1)}
          v_xor_b32 {v(vT1)}, {v(vT1)}, {v(vLANE)}
          v_and_b32 {v(vT1)}, 7, {v(vT1)}
          v_lshl_add_u32 {v(102)}, {v(vT1)}, 4, {v(vT2)}
          s_lshl_b32 {s(sT4)}, {s(sW8)}, 10
          v_lshrrev_b32 {v(vC2)}, 2, {v(vLANE)}
          v_and_b32 {v(vC3)}, 3, {v(vLANE)}
          v_lshlrev_b32 {v(vC3)}, 4, {v(vC3)}
          s_and_b32 {s(sTT)}, {s(sW8)}, 1
          s_lshr_b32 {s(sT1)}, {s(sW8)}, 1
          s_waitcnt lgkmcnt(0)""")
    srd(SX, P_X, 1835008)
    for kb in range(7):
        dma(sT4, LX + kb * 8192, 102, SX, (None, "0"), "X", imm=kb * 128)
    A(f"""s_cmp_eq_u32 {s(sTT)}, 0
          s_cselect_b64 {s(SA,2)}, {s(P_WK,2)}, {s(P_WV,2)}
          s_sub_u32 {s(sT2)}, {s(sCB)}, 1
          s_lshl_b32 {s(sT2)}, {s(sT2)}, 7
          s_lshl_b32 {s(sT3)}, {s(sTT)}, 6
          s_add_u32 {s(sT2)}, {s(sT2)}, {s(sT3)}
          s_cmp_eq_u32 {s(sCB)}, 0
          s_cselect_b64 {s(SA,2)}, {s(SA,2)}, {s(P_W1,2)}
          s_mov_b32 {s(SA+2)}, 25088
          s_cselect_b32 {s(SA+2)}, {s(SA+2)}, 401408
          s_mov_b32 {s(SA+3)}, 0x20000
          s_cselect_b32 {s(sT2)}, 0, {s(sT2)}
          s_cselect_b32 {s(sT3)}, 56, 896
          s_lshl_b32 {s(sT5)}, {s(sT1)}, 4
          v_add_u32 {v(vT0)}, {s(sT5)}, {v(vC2)}
          v_mul_u32_u24 {v(vT0)}, {s(sT3)}, {v(vT0)}
          v_add3_u32 {v(103)}, {v(vT0)}, {v(vC3)}, {s(sT2)}
          s_lshl_b32 {s(sT3)}, {s(sT3)}, 6
          s_mov_b32 {s(sT2)}, 0""")
    for n in range(7):
        pre = f"s_add_u32 {s(sT2)}, {s(sT2)}, {s(sT3)}" if n else None
        dma(sT4, LA + n * 8192, 103, SA, (pre, s(sT2)), ("WA", n // 2))
    vm_mlp = list(A.vm)
    A(f"""s_and_b32 {s(sW)}, {s(sW8)}, 3
          s_lshr_b32 {s(sP)}, {s(sW)}, 1
          s_mul_i32 {s(sPB)}, {s(sW)}, 11264
          s_add_u32 {s(sPB)}, {s(sPB)}, {LQ}
          s_cmp_lt_u32 {s(sW8)}, 4
          s_cbranch_scc1 L_nowq""")
    srd(SQ, P_WQ, 401408)
    A(f"""s_mul_i32 {s(sT0)}, {s(sCB)}, 112
          s_mul_i32 {s(sT1)}, {s(sP)}, 56
          s_add_u32 {s(sT0)}, {s(sT0)}, {s(sT1)}
          s_mul_i32 {s(sT1)}, {s(sTT)}, {14 * 16 * 896}
          s_add_u32 {s(sT0)}, {s(sT0)}, {s(sT1)}
          v_mul_u32_u24 {v(vT0)}, 896, {v(vC2)}
          v_add3_u32 {v(vWQ)}, {v(vT0)}, {v(vC3)}, {s(sT0)}""")
    for n in range(11):
        dma(sPB, n * 1024, vWQ, SQ, (f"s_mov_b32 {s(sT0)}, {n * 16 * 896}", s(sT0)), "WQ")
    vm_att = list(A.vm)
    A.label("L_nowq")
    A(f"""s_lshl_b32 {s(sT0)}, s2, 3
          s_add_u32 {s(sT0)}, {s(sT0)}, {s(sW8)}
          s_mov_b64 {s(S2,2)}, {s(P_W2,2)}
          s_mov_b32 {s(S2+2)}, 401408
          s_mov_b32 {s(S2+3)}, 0x20000
          s_mov_b32 {s(sT1)}, 0
          s_mov_b32 {s(sT2)}, 1605632
          s_cmp_ge_u32 {s(sT0)}, 196
          s_cselect_b64 {s(S2,2)}, {s(P_W3,2)}, {s(S2,2)}
          s_cselect_b32 {s(S2+2)}, {s(sT2)}, {s(S2+2)}
          s_cselect_b32 {s(sT1)}, 196, {s(sT1)}
          s_cmp_ge_u32 {s(sT0)}, 980
          s_cselect_b64 {s(S2,2)}, {s(P_W4,2)}, {s(S2,2)}
          s_cselect_b32 {s(sT1)}, 980, {s(sT1)}
          s_cmp_ge_u32 {s(sT0)}, 1764
          s_cselect_b64 {s(S2,2)}, {s(P_WO,2)}, {s(S2,2)}
          s_cselect_b32 {s(S2+2)}, 401408, {s(S2+2)}
          s_cselect_b32 {s(sT1)}, 1764, {s(sT1)}
          s_sub_u32 {s(sT0)}, {s(sT0)}, {s(sT1)}
          s_lshl_b32 {s(sT0)}, {s(sT0)}, 11
          v_lshlrev_b32 {v(vT0)}, 7, {v(vLANE)}
          s_mov_b64 exec, 0xffff
          buffer_load_dword {v(127)}, {v(vT0)}, {s(S2,4)}, {s(sT0)} offen
          s_mov_b64 exec, -1""")
    vm_mlp.append("t")
    vm_att.append("t")
    stamp()
    srd(SW, P_WS, WS_SIZE)
    srd(SD, P_DBG, 256)
    A(f"""s_cmp_lg_u32 {s(sW8)}, 0
          s_cbranch_scc1 L_nz
          v_lshlrev_b32 {v(vT0)}, 2, {v(vLANE)}
          v_add_u32 {v(vT0)}, {LS}, {v(vT0)}
          v_mov_b32 {v(vT1)}, 0
          ds_write_b32 {v(vT0)}, {v(vT1)}
          s_waitcnt lgkmcnt(0)
          s_cmp_lg_u32 s2, 0
          s_cbranch_scc1 L_nz
          s_or_b32 {s(sN)}, {s(sN)}, 1
          v_mov_b32 {v(vT2)}, {s(sN)}
          v_mov_b32 {v(vT3)}, {s(sN+1)}
          s_mov_b64 exec, 1
          buffer_store_dwordx2 {v(vT2,2)}, {v(vT1)}, {s(SD,4)}, 0 offen sc1
          s_mov_b64 exec, -1""")
    A.label("L_nz")
    A(f"""s_lshl_b32 {s(sGT)}, {s(sTB)}, 1
          s_add_u32 {s(sGT)}, {s(sGT)}, {s(sTT)}
          s_mov_b32 {s(sHI)}, 0
          s_mov_b32 {s(sHI+1)}, -1""")
    A(f"""v_bfe_u32 {v(vT0)}, {v(vLANE)}, 2, 2
          v_lshlrev_b32 {v(vT0)}, 6, {v(vT0)}
          v_bfe_u32 {v(vT1)}, {v(vLANE)}, 4, 1
          v_lshl_add_u32 {v(vT0)}, {v(vT1)}, 5, {v(vT0)}
          v_and_b32 {v(vT1)}, 3, {v(vLANE)}
          v_lshl_add_u32 {v(vT0)}, {v(vT1)}, 3, {v(vT0)}
          v_lshrrev_b32 {v(vT1)}, 5, {v(vLANE)}
          v_lshl_add_u32 {v(vTRN)}, {v(vT1)}, 9, {v(vT0)}
          v_lshl_add_u32 {v(vTRD)}, {v(vT1)}, 8, {v(vT0)}""")
    A(f"""v_and_b32 {v(vT3)}, 31, {v(vLANE)}
          s_lshl_b32 {s(sT0)}, {s(sTT)}, 5
          v_add_u32 {v(vT0)}, {s(sT0)}, {v(vT3)}
          v_bfe_u32 {v(vT2)}, {v(vT0)}, 1, 3
          v_lshlrev_b32 {v(vT0)}, 7, {v(vT0)}
          v_xor_b32 {v(vT2)}, {v(vT2)}, {v(vT1)}
          v_lshl_add_u32 {v(vXF)}, {v(vT2)}, 4, {v(vT0)}
          v_xor_b32 {v(vXF+1)}, 32, {v(vXF)}
          v_xor_b32 {v(vXF+2)}, 64, {v(vXF)}
          v_xor_b32 {v(vXF+3)}, 96, {v(vXF)}
          s_lshr_b32 {s(sT1)}, {s(sW8)}, 1
          s_lshl_b32 {s(sT0)}, {s(sT1)}, 5
          v_xor_b32 {v(108)}, {s(sT0)}, {v(vXF)}
          s_lshl_b32 {s(sT0)}, {s(sTT)}, 10
          s_add_u32 {s(sT0)}, {s(sT0)}, {L_STAT}
          v_lshl_add_u32 {v(110)}, {v(vT3)}, 3, {s(sT0)}
          s_lshl_b32 {s(sT0)}, {s(sT1)}, 8
          v_add_u32 {v(111)}, {s(sT0)}, {v(110)}
          v_mov_b32 {v(30)}, 0
          v_mov_b32 {v(31)}, 0
          s_mov_b32 {s(sT5)}, {ONES}""")
    for i in range(4):
        A(f"v_mov_b32 {v(96+i)}, {ONES}")
    A(f"""s_cmp_lt_u32 {s(sW8)}, 4
          s_cbranch_scc1 L_wx
          s_waitcnt vmcnt({len(vm_att) - 8})
          s_branch L_b0""")
    A.label("L_wx")
    A(f"s_waitcnt vmcnt({len(vm_mlp) - 8})")
    A.label("L_b0")
    barrier()
    stamp()
    A(f"s_cmp_ge_u32 {s(sW8)}, 4\ns_cbranch_scc1 L_att")
    return vm_mlp[8:], vm_att[8:]


def stat_part(between):
    for j in range(7):
        A.ds(f"ds_read_b128 {v(64+4*j,4)}, {v(108)} offset:{j*8192}", ("sx", j))
    between()
    for j in range(7):
        A.wait_lg(("sx", j))
        for i in range(4):
            r = 64 + 4 * j + i
            A(f"v_dot2c_f32_bf16 {v(30)}, {s(sT5)}, {v(r)}\nv_dot2c_f32_bf16 {v(31)}, {v(r)}, {v(r)}")
    A("s_nop 2")
    halves(30, vT2)
    halves(31, vT3)
    A(f"v_add_f32 {v(30)}, {v(30)}, {v(vT2)}\nv_add_f32 {v(31)}, {v(31)}, {v(vT3)}")
    A.ds(f"ds_write_b64 {v(111)}, {v(30,2)}", "statw")


def barrier():
    A("s_barrier")


def stat_read():
    for q in range(4):
        A.ds(f"ds_read_b64 {v(112+2*q,2)}, {v(110)} offset:{q*256}", "stat")


def stat_fin(vM, vVar):
    A.wait_lg("stat")
    A(f"""v_add_f32 {v(112)}, {v(112)}, {v(114)}
          v_add_f32 {v(113)}, {v(113)}, {v(115)}
          v_add_f32 {v(116)}, {v(116)}, {v(118)}
          v_add_f32 {v(117)}, {v(117)}, {v(119)}
          v_add_f32 {v(112)}, {v(112)}, {v(116)}
          v_add_f32 {v(113)}, {v(113)}, {v(117)}
          v_mul_f32 {v(vM)}, {f32(1/448)}, {v(112)}
          v_mul_f32 {v(112)}, {v(vM)}, {v(vM)}
          v_mul_f32 {v(113)}, {f32(1/448)}, {v(113)}
          v_sub_f32 {v(113)}, {v(113)}, {v(112)}
          v_max_f32 {v(vVar)}, 0, {v(113)}""")


def own_slot(base):
    return (f"s_lshl_b32 {s(sT0)}, {s(sTB)}, 3\ns_add_u32 {s(sT0)}, {s(sT0)}, {s(sCB)}\n"
            f"s_lshl_b32 {s(sT0)}, {s(sT0)}, 7\ns_add_u32 {s(sT0)}, {s(sT0)}, {base}")


def mlp(vm_entry):
    A.vm = list(vm_entry)
    vRA, vRB = vTRN, vTRD
    vXD, vX1P, vW, vW3, vM, vR, vWA = 8, 16, 24, 26, 27, 28, 29
    acc, cs, ring, ones = 32, 48, 64, 96
    A("s_setprio " + OPT.get("prio", "2"))
    stat_part(lambda: [xread(ks) for ks in range(8)])
    for ks in range(8, 28):
        xread(ks)
    srd(S2, P_W2, 401408)
    srd(SQ, P_W3, 1605632)
    srd(S4, P_W4, 1605632)
    srd(SO, P_WO, 401408)
    srd(SOUT, P_OUT, 1835008)
    vXA = 120
    A(f"""s_lshl_b32 {s(sT0)}, {s(sP)}, 6
          v_lshrrev_b32 {v(vT1)}, 5, {v(vLANE)}
          v_lshlrev_b32 {v(vT2)}, 4, {v(vT1)}
          v_xor_b32 {v(vXA)}, {v(vXF)}, {v(vT2)}
          v_xor_b32 {v(vXA)}, {s(sT0)}, {v(vXA)}
          v_lshl_add_u32 {v(vXA)}, {v(vT1)}, 3, {v(vXA)}
          s_max_u32 {s(sT1)}, {s(sCB)}, 1
          s_sub_u32 {s(sT1)}, {s(sT1)}, 1
          s_lshl_b32 {s(sT2)}, {s(sT1)}, 13
          v_add_u32 {v(vXA)}, {s(sT2)}, {v(vXA)}
          v_xor_b32 {v(vXA+1)}, 16, {v(vXA)}
          v_xor_b32 {v(vXA+2)}, 32, {v(vXA)}
          v_xor_b32 {v(vXA+3)}, 48, {v(vXA)}
          s_lshl_b32 {s(sT0)}, {s(sP)}, 10
          s_add_u32 {s(sT0)}, {s(sT0)}, {LA}
          v_add_u32 {v(vWA)}, {s(sT0)}, {v(vTRN)}""")
    for g in range(4):
        A.ds(f"ds_read_b64 {v(vXD+2*g,2)}, {v(vXA+g)}", "xd")
    A(f"""s_mul_i32 {s(sPA)}, {s(sW)}, 14336
          s_mul_i32 {s(sB1)}, {s(sW)}, {112*896}
          s_mul_i32 {s(sB4)}, {s(sW)}, {448*896}
          s_lshl_b32 {s(sT4)}, {s(sT1)}, 1
          s_add_u32 {s(sT4)}, {s(sT4)}, {s(sP)}
          v_mul_u32_u24 {v(vT0)}, 896, {v(vC2)}
          s_lshl_b32 {s(sT0)}, {s(sT4)}, 6
          v_add3_u32 {v(vW)}, {v(vT0)}, {v(vC3)}, {s(sT0)}
          s_lshl_b32 {s(sT0)}, {s(sP)}, 7
          s_sub_u32 {s(sT0)}, 64, {s(sT0)}
          v_add_u32 {v(vW+1)}, {s(sT0)}, {v(vW)}
          v_mul_u32_u24 {v(vT0)}, 3584, {v(vC2)}
          s_lshl_b32 {s(sT0)}, {s(sT1)}, 9
          s_lshl_b32 {s(sT1)}, {s(sW)}, 7
          s_add_u32 {s(sT0)}, {s(sT0)}, {s(sT1)}
          v_add3_u32 {v(vW3)}, {v(vT0)}, {v(vC3)}, {s(sT0)}""")
    A(f"s_add_u32 {s(sR)}, {s(sTB)}, {s(sCB)}\ns_and_b32 {s(sR)}, {s(sR)}, 3")
    vC1g, vC2g, vRI, vR2 = 120, 121, 122, 123

    def wa(ks):
        tr(("v", ring + 4 * (ks % 8)), vWA, ks * 2048, 256, ("w", ks))

    def p1step(ks):
        A.wait_lg([("w", ks), ("x", ks)])
        mfma(v(acc, 16), v(ring + 4 * (ks % 8), 4), a(4 * ks, 4), 0 if ks == 0 else None)
        mfma(v(cs, 16), v(ring + 4 * (ks % 8), 4), v(ones, 4), 0 if ks == 0 else None)

    A.wait_vm(("WA", 0))
    A.wait_lg("statw")
    barrier()
    for ks in range(8):
        wa(ks)
    stat_read()
    nonce_issue(30)
    for ks in range(8):
        p1step(ks)
    A.wait_vm(("WA", 3))
    A.drain_lg()
    barrier()
    for ks in range(8, 14):
        wa(ks)
    stat_fin(vM, vR)
    A(f"""v_add_f32 {v(vT0)}, {f32(EPS)}, {v(vR)}
          v_rsq_f32 {v(vT1)}, {v(vT0)}
          v_mov_b32 {v(vT3)}, {f32(EPS)}
          v_mul_f32 {v(vT2)}, {v(vT1)}, {v(vT1)}
          v_fma_f32 {v(vT2)}, {v(vT2)}, {v(vR)}, {v(vT3)}
          v_rsq_f32 {v(vT2)}, {v(vT2)}
          v_mov_b32 {v(vR)}, {v(vT1)}
          v_mul_f32 {v(vR2)}, {v(vT1)}, {v(vT2)}""")
    for ks in range(8, 28):
        if ks + 6 < 28:
            wa(ks + 6)
        p1step(ks)
        if ks == 9:
            A(f"""v_rcp_f32 {v(vRI)}, {v(vR2)}
                  v_mul_f32 {v(vC1g)}, {f32(GC1)}, {v(vR2)}
                  v_mul_f32 {v(vC2g)}, {v(vR2)}, {v(vR2)}
                  v_mul_f32 {v(vC2g)}, {v(vC2g)}, {v(vR2)}
                  v_mul_f32 {v(vC2g)}, {f32(GC2)}, {v(vC2g)}""")
    arrive(C_PA)
    vm_kv = list(A.vm)
    A(f"s_cmp_eq_u32 {s(sCB)}, 0\ns_cbranch_scc1 L_kv")
    A("s_nop 4")
    for i in range(16):
        A(f"v_fma_f32 {v(acc+i)}, -{v(cs+i)}, {v(vM)}, {v(acc+i)}")
    stamp()
    pk = 64
    for i in range(8):
        for op in gelu_ops(acc + 2 * i, 72, pk + i, vC1g, vC2g, vRI):
            A(op)
    vHS = 74
    A(f"""v_and_b32 {v(vT0)}, 31, {v(vLANE)}
          s_lshl_b32 {s(sT0)}, {s(sGT)}, 5
          v_add_u32 {v(vT0)}, {s(sT0)}, {v(vT0)}
          v_lshrrev_b32 {v(vT1)}, 5, {v(vLANE)}
          v_lshlrev_b32 {v(vT1)}, 15, {v(vT1)}
          v_lshl_add_u32 {v(vHS)}, {v(vT0)}, 4, {v(vT1)}
          s_lshl_b32 {s(sT0)}, {s(sT4)}, 17
          s_add_u32 {s(sT0)}, {s(sT0)}, {HB}
          s_add_u32 {s(sT1)}, {s(sT0)}, 0x10000""")
    A.vmem(f"buffer_store_dwordx4 {v(pk,4)}, {v(vHS)}, {s(SW,4)}, {s(sT0)} offen sc1", "hst")
    A.vmem(f"buffer_store_dwordx4 {v(pk+4,4)}, {v(vHS)}, {s(SW,4)}, {s(sT1)} offen sc1", "hst")
    for i in range(14):
        dma(sPA, i * 1024, vW + (i & 1), S2, (f"s_add_u32 {s(sT0)}, {s(sB1)}, {(i >> 1) * 16 * 896}", s(sT0)), "W2")
    nonce_take(30)
    signal(N_H, own_slot(FH), "hst")
    stamp()
    A(f"v_add_u32 {v(vRA)}, {s(sPA)}, {v(vTRD)}\nv_add_u32 {v(vRB)}, {s(sPB)}, {v(vTRD)}")
    A.wait_vm("W2")
    for i in range(14):
        tr(("a", 4 * i), vRA, i * 1024, 512, "w2")
    vH = 29
    A(f"""s_add_u32 {s(sT0)}, {s(sP)}, 1
          s_sub_u32 {s(sT1)}, 0, {s(sT0)}
          s_cmp_eq_u32 {s(sTT)}, 0
          s_cselect_b32 {s(sT0)}, {s(sT1)}, {s(sT0)}
          s_lshl_b32 {s(sT1)}, {s(sGT)}, 5
          s_add_u32 {s(sT1)}, {s(sT1)}, {s(sT0)}
          s_xor_b32 {s(sT2)}, {s(sGT)}, 1
          s_lshl_b32 {s(sT2)}, {s(sT2)}, 5
          s_add_u32 {s(sT2)}, {s(sT2)}, {s(sT0)}
          v_and_b32 {v(vT0)}, 31, {v(vLANE)}
          v_lshrrev_b32 {v(vT1)}, 5, {v(vLANE)}
          v_lshlrev_b32 {v(vT1)}, 15, {v(vT1)}
          v_mov_b32 {v(vT3)}, {OOB}""")
    for sl, sr in ((0, sT1), (1, sT2)):
        A(f"""v_add_u32 {v(vT2)}, {s(sr)}, {v(vT0)}
              v_cmp_gt_u32 vcc, 2048, {v(vT2)}
              v_lshl_add_u32 {v(vT2)}, {v(vT2)}, 4, {v(vT1)}
              s_nop 0
              v_cndmask_b32 {v(vH+sl)}, {v(vT3)}, {v(vT2)}, vcc""")

    def sdma(idx):
        base, off = ring_addr(idx % 25)
        b = idx & 1
        if idx < 112:
            pos = (idx % 56) >> 1
            rs = 16 * (3584 if idx < 56 else 896)
            if pos % 7 == 0 and b == 0:
                A(f"""s_add_u32 {s(sRG)}, {s(sR)}, {pos // 7}
                      s_and_b32 {s(sRG)}, {s(sRG)}, 3
                      s_mul_i32 {s(sRG)}, {s(sRG)}, {7 * rs}""")
                if idx >= 56:
                    A(f"s_add_u32 {s(sRG)}, {s(sRG)}, {s(sB4)}")
            if idx < 56:
                dma(base, off, vW3, SQ, (f"s_add_u32 {s(sT0)}, {s(sRG)}, {(pos % 7) * rs + b * 64}", s(sT0)), ("S", idx))
            else:
                dma(base, off, vW + b, S4, (f"s_add_u32 {s(sT0)}, {s(sRG)}, {(pos % 7) * rs}", s(sT0)), ("S", idx))
        else:
            kk = (idx - 112) >> 1
            dma(base, off, vW + b, SO, (f"s_add_u32 {s(sT0)}, {s(sB1)}, {((kk >> 1) * 28 + (kk & 1) * 16) * 896}", s(sT0)), ("S", idx))

    def sreg(idx):
        return 4 * (idx % 32) if idx < 56 else 4 * ((idx - 56) % 32) if idx < 112 else 4 * (idx - 112)

    def sread(idx):
        base, off = ring_addr(idx % 25)
        A.wait_vm(("S", idx))
        tr(("a", sreg(idx)), vRA if base == sPA else vRB, off, 512, ("s", idx))

    def refill(idx):
        A.wait_lg(("s", idx - 25))
        sdma(idx)

    early = int(OPT.get("early", 0))
    A.drain_lg()
    for i in range(early):
        sdma(i)
    cut("h")

    def setup_h():
        A(f"""v_lshrrev_b32 {v(vT0)}, 3, {v(vLANE)}
              s_sub_u32 {s(sT0)}, {s(sTB)}, 1
              v_add_u32 {v(vT0)}, {s(sT0)}, {v(vT0)}
              v_cmp_le_u32 vcc, 32, {v(vT0)}
              s_lshl_b32 {s(sT0)}, {s(sT0)}, 10
              s_add_u32 {s(sT0)}, {s(sT0)}, {FH}
              v_lshlrev_b32 {v(vT1)}, 7, {v(vLANE)}
              v_add_u32 {v(vT1)}, {s(sT0)}, {v(vT1)}
              s_mov_b32 {s(sINV)}, 0xff010101
              s_mov_b32 {s(sINV+1)}, -1
              s_or_b64 {s(sINV,2)}, {s(sINV,2)}, vcc""")
        lanes_to(vT1)

    gate(G_H, setup_h, 32)
    stamp()
    hf = 32
    A(f"s_mul_i32 {s(sT5)}, {s(sW)}, {7 << 16}\ns_add_u32 {s(sT5)}, {s(sT5)}, {HB}")
    for j in range(7):
        if j:
            A(f"s_add_u32 {s(sT5)}, {s(sT5)}, 0x10000")
        for sl in range(2):
            A.vmem(f"buffer_load_dwordx4 {v(hf + 8*j + 4*sl, 4)}, {v(vH+sl)}, {s(SW,4)}, {s(sT5)} offen sc1", ("h", j))
    await_cnt(C_QD)
    acc0 = 104
    accs = [v(acc0, 16), a(64, 16), a(80, 16), a(96, 16)]

    def p2step(j):
        A.wait_vm(("h", j))
        for sl in range(4):
            mfma(accs[sl], a(8 * j + 4 * (sl >> 1), 4), v(hf + 8 * j + 4 * (sl & 1), 4), 0 if j == 0 else None)
    weave(A, [lambda j=j: p2step(j) for j in range(7)], [lambda i=i: sdma(i) for i in range(early, 25)])
    vRW = 120
    A(f"""s_add_u32 {s(sT0)}, {s(sPA)}, {LA}
          v_add_u32 {v(vRW)}, {s(sT0)}, {v(vL16)}
          s_nop 7
          s_nop 1""")
    offs1 = [(0, i * 1024) for i in range(12)]
    reduce_out([("a", 64), ("a", 80), ("a", 96)], C_R1, [vRW], offs1)

    def mk1(sl):
        A(f"""s_xor_b32 {s(sT0)}, {s(sW)}, {sl}
              s_mul_i32 {s(sT0)}, {s(sT0)}, 14336
              s_add_u32 {s(sT0)}, {s(sT0)}, {LA}
              v_add_u32 {v(vRW+sl)}, {s(sT0)}, {v(vL16)}""")
        return [vRW + sl]
    reduce_in(acc0, 32, C_R1, mk1, offs1)
    A(f"v_mul_f32 {v(vM)}, {v(vM)}, {v(vR)}")
    for i in range(8):
        A(f"""v_lshlrev_b32 {v(32)}, 16, {v(vXD+i)}
              v_and_b32 {v(33)}, 0xffff0000, {v(vXD+i)}
              v_fma_f32 {v(32)}, {v(32)}, {v(vR)}, -{v(vM)}
              v_fma_f32 {v(33)}, {v(33)}, {v(vR)}, -{v(vM)}
              v_add_f32 {v(acc0+2*i)}, {v(acc0+2*i)}, {v(32)}
              v_add_f32 {v(acc0+2*i+1)}, {v(acc0+2*i+1)}, {v(33)}
              v_cvt_pk_bf16_f32 {v(vX1P+i)}, {v(acc0+2*i)}, {v(acc0+2*i+1)}""")
    A(f"""s_mul_i32 {s(sT0)}, {s(sGT)}, 14
          s_add_u32 {s(sT0)}, {s(sT0)}, {s(sT4)}
          s_lshl_b32 {s(sT1)}, {s(sT0)}, 11
          s_add_u32 {s(sT1)}, {s(sT1)}, {X1}
          s_lshl_b32 {s(sT0)}, {s(sT0)}, 8
          s_add_u32 {s(sT2)}, {s(sT0)}, {ST}""")
    A.vmem(f"buffer_store_dwordx4 {v(vX1P,4)}, {v(vL16)}, {s(SW,4)}, {s(sT1)} offen sc1", "xst")
    A.vmem(f"buffer_store_dwordx4 {v(vX1P+4,4)}, {v(vL16)}, {s(SW,4)}, {s(sT1)} offen offset:1024 sc1", "xst")
    A(f"v_add_f32 {v(32)}, {v(acc0)}, {v(acc0+1)}\nv_mul_f32 {v(33)}, {v(acc0)}, {v(acc0)}\nv_fma_f32 {v(33)}, {v(acc0+1)}, {v(acc0+1)}, {v(33)}")
    for i in range(2, 16):
        A(f"v_add_f32 {v(32)}, {v(32)}, {v(acc0+i)}\nv_fma_f32 {v(33)}, {v(acc0+i)}, {v(acc0+i)}, {v(33)}")
    halves(32, 34)
    halves(33, 35)
    A(f"""v_add_f32 {v(32)}, {v(32)}, {v(34)}
          v_add_f32 {v(33)}, {v(33)}, {v(35)}
          v_lshlrev_b32 {v(34)}, 3, {v(vLANE)}
          s_not_b64 exec, {s(sHI,2)}""")
    A.vmem(f"buffer_store_dwordx2 {v(32,2)}, {v(34)}, {s(SW,4)}, {s(sT2)} offen sc1", "xst")
    A("s_mov_b64 exec, -1")
    stamp()
    cut("p2")
    for idx in range(32 + 2):
        if idx < 32:
            sread(idx)
        if idx >= 2:
            refill(idx - 2 + 25)
        if idx == int(OPT.get("xsig", 14)):
            signal(N_X, own_slot(FX), "xst")
    stamp()
    cut("w3")

    def setup_x():
        A(f"""s_lshl_b32 {s(sT0)}, {s(sTB)}, 10
              s_add_u32 {s(sT0)}, {s(sT0)}, {FX}
              s_lshl_b32 {s(sT1)}, {s(sCB)}, 9
              s_add_u32 {s(sT1)}, {s(sT1)}, {FC - 512 - 1024}
              v_lshlrev_b32 {v(vT0)}, 7, {v(vLANE)}
              v_add_u32 {v(vT1)}, {s(sT0)}, {v(vT0)}
              v_add_u32 {v(vT0)}, {s(sT1)}, {v(vT0)}
              s_mov_b64 vcc, 0xff
              v_cndmask_b32 {v(vT1)}, {v(vT0)}, {v(vT1)}, vcc
              s_mov_b32 {s(sINV)}, 0xfffff001
              s_mov_b32 {s(sINV+1)}, -1""")
        lanes_to(vT1)
    gate(G_X, setup_x, 32)
    stamp()
    A(f"""s_mul_i32 {s(sT1)}, {s(sTB)}, {56 * 1024}
          s_add_u32 {s(sT1)}, {s(sT1)}, {X1}
          s_lshl_b32 {s(sT3)}, {s(sW)}, 10
          s_mul_i32 {s(sT2)}, {s(sR)}, 7168
          s_add_u32 {s(sT2)}, {s(sT2)}, {s(sT3)}
          s_add_u32 {s(sT3)}, {s(sT3)}, {LA}""")
    for i in range(7):
        if i:
            A(f"""s_add_u32 {s(sT2)}, {s(sT2)}, 4096
                  s_sub_u32 {s(sT5)}, {s(sT2)}, 28672
                  s_cmp_ge_u32 {s(sT2)}, 28672
                  s_cselect_b32 {s(sT2)}, {s(sT5)}, {s(sT2)}""")
        A(f"s_add_u32 {s(sT5)}, {s(sT1)}, {s(sT2)}")
        for tt in range(2):
            dma(sT3, tt * 28672 + i * 4096, vL16, SW, (f"s_add_u32 {s(sT0)}, {s(sT5)}, {tt * 28672}", s(sT0)), ("x1", i // 4), sc=" sc1")
    vB, stt, cst, bring = 27, 28, 36, 40
    A(f"""v_and_b32 {v(vT0)}, 31, {v(vLANE)}
          v_lshrrev_b32 {v(vT1)}, 5, {v(vLANE)}
          v_mul_u32_u24 {v(vT1)}, {14 * 256}, {v(vT1)}
          v_lshl_add_u32 {v(vT2)}, {v(vT0)}, 3, {v(vT1)}
          s_mul_i32 {s(sT1)}, {s(sTB)}, {28 * 256}
          s_lshl_b32 {s(sT2)}, {s(sW)}, 8
          s_add_u32 {s(sT1)}, {s(sT1)}, {s(sT2)}
          s_add_u32 {s(sT1)}, {s(sT1)}, {ST}
          s_cmp_lt_u32 {s(sW)}, 2
          s_cselect_b32 {s(sT2)}, {s(sT1)}, {OOB}
          v_add_u32 {v(vB)}, {LA}, {v(vL16)}""")
    for i in range(4):
        A.vmem(f"buffer_load_dwordx2 {v(stt+2*i,2)}, {v(vT2)}, {s(SW,4)}, {s(sT1 if i < 3 else sT2)} offen offset:{i*1024} sc1", "st")
    A(f"""s_lshl_b32 {s(sT1)}, {s(sCB)}, 2
          s_add_u32 {s(sT1)}, {s(sT1)}, {s(sW)}
          s_lshl_b32 {s(sT1)}, {s(sT1)}, 10
          s_add_u32 {s(sT1)}, {s(sT1)}, {CS - 4096}
          v_lshlrev_b32 {v(vT3)}, 2, {v(vLANE)}""")
    for i in range(4):
        A.vmem(f"buffer_load_dword {v(cst+i)}, {v(vT3)}, {s(SW,4)}, {s(sT1)} offen offset:{i*256} sc1", "cs")
    A(f"""s_mul_i32 {s(sK)}, {s(sTB)}, {2 * 112}
          s_lshl_b32 {s(sT0)}, {s(sCB)}, 2
          s_add_u32 {s(sT0)}, {s(sT0)}, {s(sW)}
          s_sub_u32 {s(sT0)}, {s(sT0)}, 4
          s_lshl_b32 {s(sT0)}, {s(sT0)}, 2
          s_add_u32 {s(sK)}, {s(sK)}, {s(sT0)}
          s_lshl_b32 {s(sK)}, {s(sK)}, 10
          s_add_u32 {s(sK)}, {s(sK)}, {HH}""")
    A.wait_vm(("x1", 0))
    arrive(C_XA)
    await_cnt(C_XA)
    acc4 = [64, 80, 96, 112]

    def bread(ks):
        for tt in range(2):
            A.ds(f"ds_read_b128 {v(bring + 8 * (ks % 3) + 4 * tt, 4)}, {v(vB)} offset:{(tt * 28 + ks) * 1024}", ("b", ks))

    bread(0)
    bread(1)
    for ks in range(28):
        if ks == 6:
            A.wait_vm(["cs", "st", ("x1", 1)])
            A(f"""v_add_f32 {v(stt)}, {v(stt)}, {v(stt+2)}
                  v_add_f32 {v(stt+1)}, {v(stt+1)}, {v(stt+3)}
                  v_add_f32 {v(stt+4)}, {v(stt+4)}, {v(stt+6)}
                  v_add_f32 {v(stt+5)}, {v(stt+5)}, {v(stt+7)}
                  s_lshl_b32 {s(sT0)}, {s(sW)}, 9
                  s_add_u32 {s(sT0)}, {s(sT0)}, {L_STAT}
                  v_add_f32 {v(stt)}, {v(stt)}, {v(stt+4)}
                  v_add_f32 {v(stt+1)}, {v(stt+1)}, {v(stt+5)}
                  v_lshl_add_u32 {v(vT2)}, {v(vLANE)}, 3, {s(sT0)}""")
            A.ds(f"ds_write_b64 {v(vT2)}, {v(stt,2)}", "sw")
            arrive(C_XB)
        if ks == 13:
            await_cnt(C_XB)
            A(f"v_lshlrev_b32 {v(vT2)}, 3, {v(vLANE)}\nv_add_u32 {v(vT2)}, {L_STAT}, {v(vT2)}")
            for q in range(4):
                A.ds(f"ds_read_b64 {v(stt+2*q,2)}, {v(vT2)} offset:{q*512}", "sr")
        if ks + 2 < 28:
            bread(ks + 2)
        A.wait_lg([("b", ks), ("s", 2 * ks), ("s", 2 * ks + 1)])
        for t in range(4):
            mfma(v(acc4[t], 16), a(sreg(2 * ks + (t >> 1)), 4), v(bring + 8 * (ks % 3) + 4 * (t & 1), 4), 0 if ks == 0 else None)
            if t == 1 and 1 <= ks <= 12:
                sread(32 + 2 * (ks - 1))
            if t == 2 and 1 <= ks <= 12:
                sread(33 + 2 * (ks - 1))
            if t == 3 and 3 <= ks <= 26:
                refill(57 + ks - 3)
        if ks == 16:
            A.wait_lg("sr")
            A(f"""v_add_f32 {v(stt)}, {v(stt)}, {v(stt+2)}
                  v_add_f32 {v(stt+1)}, {v(stt+1)}, {v(stt+3)}
                  v_add_f32 {v(stt+4)}, {v(stt+4)}, {v(stt+6)}
                  v_add_f32 {v(stt+5)}, {v(stt+5)}, {v(stt+7)}
                  v_add_f32 {v(stt)}, {v(stt)}, {v(stt+4)}
                  v_add_f32 {v(stt+1)}, {v(stt+1)}, {v(stt+5)}
                  v_add_f32 {v(cst)}, {v(cst)}, {v(cst+1)}
                  v_add_f32 {v(cst+2)}, {v(cst+2)}, {v(cst+3)}""")
        if ks == 17:
            A(f"""v_mul_f32 {v(stt)}, {f32(-1/448)}, {v(stt)}
                  v_mul_f32 {v(stt+1)}, {f32(1/448)}, {v(stt+1)}
                  v_mul_f32 {v(stt+2)}, {v(stt)}, {v(stt)}
                  v_sub_f32 {v(stt+1)}, {v(stt+1)}, {v(stt+2)}
                  v_max_f32 {v(stt+1)}, 0, {v(stt+1)}
                  v_add_f32 {v(stt+1)}, {f32(EPS)}, {v(stt+1)}
                  v_add_f32 {v(cst)}, {v(cst)}, {v(cst+2)}""")
        if ks == 18:
            halves(stt, stt + 2)
            halves(stt + 1, stt + 3)
            halves(cst, cst + 1)
    arrive(C_P4)
    vAE, vBE, vK, gt, gpk = 40, 48, 28, 56, 40
    for nt in range(2):
        c = cst + nt
        A(f"""v_cvt_pk_bf16_f32 {v(vT0)}, {v(c)}, {v(c)}
              v_and_b32 {v(vT1)}, 0xffff0000, {v(vT0)}
              v_sub_f32 {v(vT1)}, {v(c)}, {v(vT1)}
              v_cvt_pk_bf16_f32 {v(vAE+4*nt)}, {v(c)}, {v(vT1)}
              v_and_b32 {v(vAE+4*nt+1)}, 0xffff, {v(vT0)}
              v_mov_b32 {v(vAE+4*nt+2)}, 0
              v_mov_b32 {v(vAE+4*nt+3)}, 0""")
    for tt in range(2):
        m, b = stt + 2 * tt, vBE + 4 * tt
        A(f"""v_cvt_pk_bf16_f32 {v(vT0)}, {v(m)}, {v(m)}
              v_and_b32 {v(vT1)}, 0xffff0000, {v(vT0)}
              v_sub_f32 {v(vT1)}, {v(m)}, {v(vT1)}
              v_cvt_pk_bf16_f32 {v(vT1)}, {v(vT1)}, 0
              v_cndmask_b32 {v(b)}, {v(vT0)}, 0, {s(sHI,2)}
              v_cndmask_b32 {v(b+1)}, {v(vT1)}, 0, {s(sHI,2)}
              v_mov_b32 {v(b+2)}, 0
              v_mov_b32 {v(b+3)}, 0""")
    A("s_nop 0")
    for t in range(4):
        mfma(v(acc4[t], 16), v(vAE + 4 * (t >> 1), 4), v(vBE + 4 * (t & 1), 4))
    kk = [60, 32]
    for tt in range(2):
        e, k = stt + 2 * tt + 1, kk[tt]
        A(f"""v_rsq_f32 {v(vT0)}, {v(e)}
              s_nop 0
              v_mul_f32 {v(k+2)}, {v(e)}, {v(vT0)}
              v_mul_f32 {v(k)}, {f32(GC1)}, {v(vT0)}
              v_mul_f32 {v(k+1)}, {v(vT0)}, {v(vT0)}
              v_mul_f32 {v(k+1)}, {v(k+1)}, {v(vT0)}
              v_mul_f32 {v(k+1)}, {f32(GC2)}, {v(k+1)}""")
    stamp()
    ops = []
    for t in range(4):
        tt, nt = t & 1, t >> 1
        for i in range(8):
            def pair(i=i, t=t, tt=tt):
                for op in gelu_ops(acc4[t] + 2 * i, gt, gpk + 8 * (t & 1) + i, kk[tt], kk[tt] + 1, kk[tt] + 2):
                    A(op)
            ops.append(pair)
            if i in (3, 7):
                def st(c=i >> 2, t=t, tt=tt, nt=nt):
                    A(f"s_add_u32 {s(sT0)}, {s(sK)}, {(tt * 112 + nt * 2) * 1024}")
                    A.vmem(f"buffer_store_dwordx4 {v(gpk+8*(t&1)+4*c,4)}, {v(vL16)}, {s(SW,4)}, {s(sT0)} offen offset:{c*1024} sc1", "Hst")
                ops.append(st)
    fill = []
    ngel = int(OPT.get("ngel", 76))
    for idx in range(56, ngel + 2):
        def f(idx=idx):
            if idx < ngel:
                sread(idx)
            if idx >= 58:
                refill(idx - 2 + 25)
        fill.append(f)
    weave(A, ops, fill)
    for idx in range(ngel, 88 + 2):
        if idx < 88:
            sread(idx)
        if idx >= ngel + 2:
            refill(idx - 2 + 25)
        if idx == ngel + 4:
            signal(N_G, own_slot(FG), "Hst")
    vHH = 26
    A(f"""s_mul_i32 {s(sT0)}, {s(sGT)}, 4
          s_add_u32 {s(sT0)}, {s(sT0)}, {s(sW)}
          s_mul_i32 {s(sT0)}, {s(sT0)}, {28 * 1024}
          v_add_u32 {v(vHH)}, {s(sT0)}, {v(vL16)}
          s_xor_b32 {s(sT0)}, {s(sGT)}, 1
          s_mul_i32 {s(sT0)}, {s(sT0)}, 4
          s_add_u32 {s(sT0)}, {s(sT0)}, {s(sW)}
          s_mul_i32 {s(sT0)}, {s(sT0)}, {28 * 1024}
          v_add_u32 {v(vHH+1)}, {s(sT0)}, {v(vL16)}""")
    stamp()
    cut("w4")

    def setup_tb(base, inv):
        def f():
            A(f"""s_lshl_b32 {s(sT0)}, {s(sTB)}, 10
                  s_add_u32 {s(sT0)}, {s(sT0)}, {base}
                  v_lshlrev_b32 {v(vT1)}, 7, {v(vLANE)}
                  v_add_u32 {v(vT1)}, {s(sT0)}, {v(vT1)}
                  s_mov_b32 {s(sINV)}, {inv}
                  s_mov_b32 {s(sINV+1)}, -1""")
            lanes_to(vT1)
        return f
    gate(G_G, setup_tb(FG, 0xffffff01), 28)
    stamp()
    hslots = [28, 32, 36, 40, 44, 48, 52, 56, 60]
    NH = 8
    acc6 = [64, 80, 96, 112]

    def hload(n):
        j, sl = n >> 1, n & 1
        if j % 7 == 0 and sl == 0:
            A(f"""s_add_u32 {s(sV)}, {s(sR)}, {j // 7}
                  s_and_b32 {s(sV)}, {s(sV)}, 3
                  s_mul_i32 {s(sV)}, {s(sV)}, 7168
                  s_add_u32 {s(sV)}, {s(sV)}, {HH}""")
        if j % 7 == 4 and sl == 0:
            A(f"s_add_u32 {s(sV)}, {s(sV)}, 4096")
        A.vmem(f"buffer_load_dwordx4 {v(hslots[n % NH], 4)}, {v(vHH+sl)}, {s(SW,4)}, {s(sV)} offen offset:{(j % 7 % 4) * 1024} sc1", ("H", n))

    vO, vOUT = 60, 62
    A(f"""s_lshl_b32 {s(sT0)}, {s(sGT)}, 2
          s_add_u32 {s(sT0)}, {s(sT0)}, {s(sW)}
          s_lshl_b32 {s(sT0)}, {s(sT0)}, 13
          v_add_u32 {v(vO)}, {s(sT0)}, {v(vL16)}
          v_xor_b32 {v(vO+1)}, 0x8000, {v(vO)}
          v_and_b32 {v(vT0)}, 31, {v(vLANE)}
          s_lshl_b32 {s(sT0)}, {s(sGT)}, 5
          v_add_u32 {v(vT0)}, {s(sT0)}, {v(vT0)}
          v_mul_u32_u24 {v(vT0)}, 896, {v(vT0)}
          v_lshrrev_b32 {v(vT1)}, 5, {v(vLANE)}
          v_lshl_add_u32 {v(vT0)}, {v(vT1)}, 4, {v(vT0)}
          s_lshl_b32 {s(sT0)}, {s(sT4)}, 6
          v_add_u32 {v(vOUT)}, {s(sT0)}, {v(vT0)}""")

    def oreg(kq, sl):
        return 96 + 8 * kq + 4 * sl if kq < 4 else 64 + 8 * (kq - 4) + 4 * sl

    def oload(kq):
        if kq % 4 == 0:
            A(f"s_mov_b32 {s(sT2)}, {OB + 1024 * kq}")
        for sl in range(2):
            A.vmem(f"buffer_load_dwordx4 {a(oreg(kq, sl), 4)}, {v(vO+sl)}, {s(SW,4)}, {s(sT2)} offen offset:{(kq & 3) * 1024} sc1", ("o", kq))

    for n in range(NH):
        hload(n)
    for j in range(28):
        A.wait_vm(("H", 2 * j + 1))
        A.wait_lg([("s", 56 + 2 * j), ("s", 57 + 2 * j)])
        for sl in range(4):
            mfma(v(acc6[sl], 16), a(sreg(56 + 2 * j + (sl >> 1)), 4), v(hslots[(2 * j + (sl & 1)) % NH], 4), 0 if j == 0 else None)
        for n in (2 * j + NH, 2 * j + NH + 1):
            if n < 56:
                hload(n)
        if 1 <= j <= 12:
            sread(88 + 2 * (j - 1))
            sread(89 + 2 * (j - 1))
        if 3 <= j <= 17:
            refill(113 + j - 3)
        if j == 24:
            gate(G_O, setup_tb(FO, 0xffffff00), 28)
            for kq in range(4):
                oload(kq)
    for kq in range(4, 8):
        oload(kq)
    for idx in range(112, 128):
        sread(idx)
    vRW2 = [24, 25]
    A(f"v_add_u32 {v(24)}, {s(sPA)}, {v(vL16)}\nv_add_u32 {v(25)}, {s(sPB)}, {v(vL16)}")
    A.drain_lg()
    stamp()

    def slotoffs(first):
        return [(0, i * 1024) if i < 14 else (1, (i - 14) * 1024) for i in range(first, first + 12)]

    def mk2(sl):
        A(f"""s_xor_b32 {s(sT0)}, {s(sW)}, {sl}
              s_mul_i32 {s(sT1)}, {s(sT0)}, 14336
              s_mul_i32 {s(sT0)}, {s(sT0)}, 11264
              s_add_u32 {s(sT0)}, {s(sT0)}, {LQ}
              v_add_u32 {v(24+2*sl)}, {s(sT1)}, {v(vL16)}
              v_add_u32 {v(25+2*sl)}, {s(sT0)}, {v(vL16)}""")
        return [24 + 2 * sl, 25 + 2 * sl]

    reduce_out([("v", 80), ("v", 96), ("v", 112)], C_R2, vRW2, slotoffs(0))
    vG = 32
    for i in range(8):
        A(f"""v_lshlrev_b32 {v(48)}, 16, {v(vX1P+i)}
              v_and_b32 {v(49)}, 0xffff0000, {v(vX1P+i)}
              v_add_f32 {v(vG+2*i)}, {v(64+2*i)}, {v(48)}
              v_add_f32 {v(vG+2*i+1)}, {v(65+2*i)}, {v(49)}""")
    A.drain_lg()
    for kq in range(8):
        A.wait_vm(("o", kq))
        for sl in range(4):
            mfma(v(acc6[sl], 16), a(8 * kq + 4 * (sl >> 1), 4), a(oreg(kq, sl & 1), 4), 0 if kq == 0 else None)
    stamp()
    A("s_nop 7\ns_nop 3")
    reduce_out([("v", 80), ("v", 96), ("v", 112)], C_R3, vRW2, slotoffs(12))
    reduce_in(vG, 80, C_R2, mk2, slotoffs(0))
    for i in range(8):
        y = vG + 2 * i
        A(f"""v_mul_f32 {v(80)}, {f32(-LOG2E)}, {v(y)}
              v_mul_f32 {v(81)}, {f32(-LOG2E)}, {v(y+1)}
              v_exp_f32 {v(80)}, {v(80)}
              v_exp_f32 {v(81)}, {v(81)}
              v_add_f32 {v(80)}, 1.0, {v(80)}
              v_add_f32 {v(81)}, 1.0, {v(81)}
              v_rcp_f32 {v(80)}, {v(80)}
              v_rcp_f32 {v(81)}, {v(81)}
              v_mul_f32 {v(y)}, {v(y)}, {v(80)}
              v_mul_f32 {v(y+1)}, {v(y+1)}, {v(81)}""")
    stamp()
    reduce_in(64, 80, C_R3, lambda sl: [24 + 2 * sl, 25 + 2 * sl], slotoffs(12))
    for i in range(8):
        y = 64 + 2 * i
        A(f"""v_lshlrev_b32 {v(80)}, 16, {v(vXD+i)}
              v_and_b32 {v(81)}, 0xffff0000, {v(vXD+i)}
              v_fma_f32 {v(80)}, {v(y)}, {v(vG+2*i)}, {v(80)}
              v_fma_f32 {v(81)}, {v(y+1)}, {v(vG+2*i+1)}, {v(81)}
              v_cvt_pk_bf16_f32 {v(84+i)}, {v(80)}, {v(81)}""")
    A("s_nop 1")
    for p in range(2):
        A(f"v_permlane32_swap_b32 {v(84+4*p)}, {v(86+4*p)}\nv_permlane32_swap_b32 {v(85+4*p)}, {v(87+4*p)}")
    for p in range(2):
        A.vmem(f"buffer_store_dwordx4 {v(84+4*p,4)}, {v(vOUT)}, {s(SOUT,4)}, 0 offen offset:{32*p}", "out")
    stamp()
    dump_stamps()
    A("s_endpgm")

    A.label("L_kv")
    A.vm = list(vm_kv)
    A.lg = []
    A(f"""v_mul_u32_u24 {v(vT0)}, 3584, {v(vC2)}
          s_min_u32 {s(sT2)}, {s(sTB)}, 27
          s_lshl_b32 {s(sT0)}, {s(sT2)}, 7
          s_mul_i32 {s(sT1)}, {s(sW)}, {112 * 3584}
          s_add_u32 {s(sT0)}, {s(sT0)}, {s(sT1)}
          v_add3_u32 {v(vW3)}, {v(vT0)}, {v(vC3)}, {s(sT0)}""")
    for i in range(16):
        A(f"v_fma_f32 {v(acc+i)}, -{v(cs+i)}, {v(vM)}, {v(acc+i)}\nv_mul_f32 {v(acc+i)}, {v(acc+i)}, {v(vR)}")
    A(f"s_mov_b64 exec, {s(sHI,2)}")
    for i in range(12, 16):
        A(f"v_mov_b32 {v(acc+i)}, 0")
    A("s_mov_b64 exec, -1")
    for i in range(8):
        A(f"v_cvt_pk_bf16_f32 {v(pk+i)}, {v(acc+2*i)}, {v(acc+2*i+1)}")
    A(f"""s_lshl_b32 {s(sT4)}, {s(sGT)}, 12
          s_cmp_eq_u32 {s(sP)}, 1
          s_cbranch_scc1 L_v
          s_mov_b64 exec, {s(sHI,2)}
          v_mov_b32 {v(pk+6)}, {ONES}
          v_mov_b32 {v(pk+7)}, 0x3f80
          s_mov_b64 exec, -1
          buffer_store_dwordx4 {v(pk,4)}, {v(vL16)}, {s(SW,4)}, {s(sT4)} offen sc1
          buffer_store_dwordx4 {v(pk+4,4)}, {v(vL16)}, {s(SW,4)}, {s(sT4)} offen offset:1024 sc1
          v_mul_f32 {v(72)}, {v(acc)}, {v(acc)}""")
    for i in range(1, 16):
        A(f"v_fma_f32 {v(72)}, {v(acc+i)}, {v(acc+i)}, {v(72)}")
    halves(72, 73)
    A(f"""v_add_f32 {v(72)}, {v(72)}, {v(73)}
          v_mov_b32 {v(73)}, {L_KM}
          ds_max_u32 {v(73)}, {v(72)}
          s_branch L_kvdone""")
    A.label("L_v")
    A(f"""s_mov_b64 exec, {s(sHI,2)}
          v_mov_b32 {v(pk+6)}, 0x3f80
          s_mov_b64 exec, -1
          s_lshl_b32 {s(sT0)}, {s(sTT)}, 11
          s_add_u32 {s(sT0)}, {s(sT0)}, {L_VT}
          v_and_b32 {v(72)}, 31, {v(vLANE)}
          v_lshrrev_b32 {v(73)}, 5, {v(vLANE)}
          v_lshlrev_b32 {v(73)}, 3, {v(73)}
          v_lshl_add_u32 {v(72)}, {v(72)}, 6, {v(73)}
          v_add_u32 {v(72)}, {s(sT0)}, {v(72)}
          v_add_u32 {v(73)}, {s(sT0)}, {v(vTRD)}""")
    for g in range(4):
        A.ds(f"ds_write_b64 {v(72)}, {v(pk+2*g,2)} offset:{16*g}", "vt")
    for c in range(2):
        tr(("v", 76 + 4 * c), 73, c * 1024, 512, "vr")
    A.drain_lg()
    A(f"buffer_store_dwordx4 {v(76,4)}, {v(vL16)}, {s(SW,4)}, {s(sT4)} offen offset:2048 sc1")
    A(f"buffer_store_dwordx4 {v(80,4)}, {v(vL16)}, {s(SW,4)}, {s(sT4)} offen offset:3072 sc1")
    A.label("L_kvdone")
    A.vm += ["kv", "kv"]
    nonce_take(30)
    signal(N_K, f"s_lshl_b32 {s(sT0)}, {s(sTB)}, 7\ns_add_u32 {s(sT0)}, {s(sT0)}, {FK}", "kv", payload=L_KM)
    arrive(C_P4)
    stamps["n"] = 2
    stamp()
    for i in range(14):
        dma(sPA, i * 1024, vW3, SQ, (f"s_mov_b32 {s(sT0)}, {(i >> 1) * 16 * 3584 + (i & 1) * 64}", s(sT0)), "W3")
    A(f"v_add_u32 {v(vRA)}, {s(sPA)}, {v(vTRD)}")
    A.wait_vm("W3")
    for i in range(14):
        tr(("a", 4 * i), vRA, i * 1024, 512, ("c", i))
    for i in range(14):
        A.wait_lg(("c", i))
        mfma(v(32 + 16 * (i & 1), 16), v(ones, 4), a(4 * i, 4), 0 if i < 2 else None)
    A(f"""s_min_u32 {s(sT2)}, {s(sTB)}, 27
          s_lshl_b32 {s(sT1)}, {s(sT2)}, 2
          s_add_u32 {s(sT1)}, {s(sT1)}, {s(sW)}
          s_lshl_b32 {s(sT1)}, {s(sT1)}, 8
          s_add_u32 {s(sT1)}, {s(sT1)}, {CS}
          v_lshlrev_b32 {v(73)}, 2, {v(vLANE)}
          s_cmp_gt_u32 {s(sTB)}, 27
          s_cbranch_scc1 L_kvend
          s_nop 5
          v_cndmask_b32 {v(72)}, {v(32)}, {v(48)}, {s(sHI,2)}
          buffer_store_dword {v(72)}, {v(73)}, {s(SW,4)}, {s(sT1)} offen sc1""")
    signal(N_C, f"s_lshl_b32 {s(sT0)}, {s(sTB)}, 7\ns_add_u32 {s(sT0)}, {s(sT0)}, {FC}")
    A.label("L_kvend")
    stamp()
    dump_stamps()
    A("s_endpgm")


def att(vm_entry):
    A.label("L_att")
    A.vm = list(vm_entry)
    A.lg = []
    stamps["n"] = 2
    acc, cs, ring, ones = 32, 48, 64, 96
    vM, vR = 8, 9
    stat_part(lambda: None)
    A(f"s_mul_i32 {s(sPA)}, {s(sW)}, 3072")
    A.wait_vm(("WA", 0))
    A.drain_lg()
    barrier()
    stat_read()
    for ks in range(28):
        xread(ks)
    nonce_issue(12)
    stat_fin(vM, vR)
    A(f"""v_add_f32 {v(vR)}, {f32(EPS)}, {v(vR)}
          v_rsq_f32 {v(vR)}, {v(vR)}
          s_mul_i32 {s(sT0)}, {s(sP)}, {22 * 1024}
          s_add_u32 {s(sT0)}, {s(sT0)}, {LQ}
          v_add_u32 {v(10)}, {s(sT0)}, {v(vTRN)}
          s_mul_i32 {s(sT0)}, {s(sP)}, {6 * 1024}
          s_add_u32 {s(sT0)}, {s(sT0)}, {LA}
          v_add_u32 {v(11)}, {s(sT0)}, {v(vTRN)}
          v_mul_f32 {v(vR)}, {f32(QSCALE)}, {v(vR)}""")
    A.wait_vm(("WA", 3))
    A.drain_lg()
    barrier()
    for n in range(11, 14):
        dma(sPA, LA + (n - 11) * 1024, vWQ, SQ, (f"s_mov_b32 {s(sT0)}, {n * 16 * 896}", s(sT0)), "WQ")
    A.wait_vm(["WQ", "nonce"])
    arrive(C_WQ)
    nonce_take(12)
    await_cnt(C_WQ)
    stamp()

    def wq(ks):
        o, n = ks // 14, ks % 14
        if n < 11:
            tr(("v", ring + 4 * (ks % 8)), 10, (o * 11 + n) * 1024, 256, ("w", ks))
        else:
            tr(("v", ring + 4 * (ks % 8)), 11, (o * 3 + n - 11) * 1024, 256, ("w", ks))
    for ks in range(6):
        wq(ks)
    for ks in range(28):
        if ks + 6 < 28:
            wq(ks + 6)
        A.wait_lg(("w", ks))
        mfma(v(acc, 16), v(ring + 4 * (ks % 8), 4), a(4 * ks, 4), 0 if ks == 0 else None)
        mfma(v(cs, 16), v(ring + 4 * (ks % 8), 4), v(ones, 4), 0 if ks == 0 else None)
    vG, vF = 12, 13
    aO, aQ, aK, vV = 0, 48, 80, 72
    O0, S, P = 16, [32, 48], 64
    A(f"""s_lshl_b32 {s(sT0)}, {s(sW)}, 11
          s_add_u32 {s(sT0)}, {s(sT0)}, {L_QG}
          v_add_u32 {v(vG)}, {s(sT0)}, {v(vL16)}
          s_lshl_b32 {s(sT0)}, {s(sW)}, 8
          s_add_u32 {s(sT0)}, {s(sT0)}, {L_QN}
          v_lshlrev_b32 {v(14)}, 2, {v(vLANE)}
          v_add_u32 {v(15)}, {s(sT0)}, {v(14)}""")
    for i in range(16):
        A(f"v_mov_b32 {v(O0+i)}, 0")
    q = acc
    for i in range(16):
        A(f"v_fma_f32 {v(q+i)}, -{v(cs+i)}, {v(vM)}, {v(q+i)}\nv_mul_f32 {v(q+i)}, {v(q+i)}, {v(vR)}")
    A(f"s_mov_b64 exec, {s(sHI,2)}")
    for i in range(12, 16):
        A(f"v_mov_b32 {v(q+i)}, 0")
    A("s_mov_b64 exec, -1")
    for i in range(8):
        A(f"v_cvt_pk_bf16_f32 {v(48+i)}, {v(q+2*i)}, {v(q+2*i+1)}")
    await_cnt(C_PA)
    A.ds(f"ds_write_b128 {v(vG)}, {v(48,4)}", "qg")
    A.ds(f"ds_write_b128 {v(vG)}, {v(52,4)} offset:1024", "qg")
    A(f"v_mul_f32 {v(56)}, {v(q)}, {v(q)}")
    for i in range(1, 16):
        A(f"v_fma_f32 {v(56)}, {v(q+i)}, {v(q+i)}, {v(56)}")
    halves(56, 57)
    A(f"v_add_f32 {v(56)}, {v(56)}, {v(57)}")
    A.ds(f"ds_write_b32 {v(15)}, {v(56)}", "qg")
    arrive(C_Q)
    for i in range(48):
        A(f"v_accvgpr_write_b32 {a(aO+i)}, 0")
    for i in range(4):
        A(f"v_mov_b32 {v(P+4+i)}, 0\nv_mov_b32 {v(vV+28+i)}, 0")
    await_cnt(C_Q)
    for sl in range(4):
        A(f"v_xor_b32 {v(104+sl)}, {sl << 11}, {v(vG)}")
    for sl in range(4):
        for c in range(2):
            A.ds(f"ds_read_b128 {a(aQ + 8*sl + 4*c, 4)}, {v(104+sl)} offset:{c*1024}", "q")
    A(f"v_add_u32 {v(14)}, {L_QN}, {v(14)}")
    for sl in range(4):
        A.ds(f"ds_read_b32 {v(108+sl)}, {v(14)} offset:{sl*256}", "q")
    A.drain_lg()
    arrive(C_QD)
    A(f"""v_max3_f32 {v(108)}, {v(108)}, {v(109)}, {v(110)}
          v_max_f32 {v(108)}, {v(108)}, {v(111)}
          s_lshl_b32 {s(sT0)}, {s(sCB)}, 1
          s_and_b32 {s(sT1)}, {s(sTB)}, 1
          s_add_u32 {s(sT0)}, {s(sT0)}, {s(sT1)}
          s_lshl_b32 {s(sK)}, {s(sT0)}, 12
          s_mov_b32 {s(sV)}, {s(sK)}
          s_lshl_b32 {s(sT0)}, {s(sW)}, 16
          v_add_u32 {v(vF)}, {s(sT0)}, {v(vL16)}""")
    stamp()

    def setup_k():
        A(f"""v_lshlrev_b32 {v(vT1)}, 7, {v(vLANE)}
              v_add_u32 {v(vT1)}, {FK}, {v(vT1)}
              s_mov_b64 {s(sINV,2)}, {s(sHI,2)}""")
        lanes_to(vT1)

    def pay_k():
        A(f"v_mov_b32 {v(113)}, {L_KP}\nds_max_u32 {v(113)}, {v(114)}")
    gate(G_K, setup_k, 112, payload=pay_k)
    stamp()

    def kload(slot):
        for c in range(2):
            A.vmem(f"buffer_load_dwordx4 {a(aK + 8*slot + 4*c, 4)}, {v(vF)}, {s(SW,4)}, {s(sK)} offen offset:{c*1024} sc1", "K")

    def vload(slot):
        for c in range(2):
            A.vmem(f"buffer_load_dwordx4 {v(vV + 8*slot + 4*c, 4)}, {v(vF)}, {s(SW,4)}, {s(sV)} offen offset:{2048 + c*1024} sc1", "V")

    def adv(r):
        A(f"s_add_u32 {s(r)}, {s(r)}, 4096\ns_and_b32 {s(r)}, {s(r)}, 0xffff")

    A(f"s_setprio 3\nv_mov_b32 {v(113)}, {L_KP}\nds_read_b32 {v(112)}, {v(113)}")
    for slot in range(3):
        kload(slot)
        adv(sK)
        vload(slot)
        adv(sV)
        if slot == 0:
            A("s_setprio 0")
    kload(3)
    adv(sK)
    A(f"""s_waitcnt lgkmcnt(0)
          v_mul_f32 {v(108)}, {v(112)}, {v(108)}
          v_cmp_nge_f32 vcc, {f32(-1.0 if FORCE_SLOW else BOUND2)}, {v(108)}
          s_cmp_lg_u64 vcc, 0
          s_cbranch_scc1 L_slow""")
    A.label("L_fast")
    A("s_waitcnt vmcnt(12)")

    def Oreg(sl):
        return v(O0, 16) if sl == 0 else a(aO + 16 * (sl - 1), 16)

    mfma(v(S[0], 16), a(aK, 4), a(aQ, 4), 0)
    mfma(v(S[0], 16), a(aK + 4, 4), a(aQ + 4, 4))
    A(f"s_mov_b32 {s(sT4)}, 4\ns_nop 7\ns_nop 1")
    A.label("L_aloop")

    def period(sg, qt):
        cur, nxt = S[qt & 1], S[(qt + 1) & 1]
        ks = sg if qt < 3 else (sg + 1) & 3
        vs = sg if qt > 0 else (sg - 1) & 3
        nq, pq = (qt + 1) & 3, (qt - 1) & 3
        e = lambda i: A(f"v_exp_f32 {v(cur+i)}, {v(cur+i)}")
        c = lambda i: A(f"v_cvt_pk_bf16_f32 {v(P+i)}, {v(cur+2*i)}, {v(cur+2*i+1)}")
        if qt == 3:
            A("s_waitcnt vmcnt(10)")
        mfma(v(nxt, 16), a(aK + 8 * ks, 4), a(aQ + 8 * nq, 4), 0)
        if qt == 3:
            A("s_setprio 3")
            kload(sg)
            A("s_setprio 0")
            adv(sK)
        if qt == 1:
            A("s_setprio 3")
            vload((sg - 1) & 3)
            A("s_setprio 0")
            adv(sV)
        e(0); e(1); e(2); e(3)
        mfma(Oreg(pq), v(vV + 8 * vs + 4, 4), v(P + 4, 4))
        c(0); c(1); e(4); e(5); e(6); e(7)
        mfma(v(nxt, 16), a(aK + 8 * ks + 4, 4), a(aQ + 8 * nq + 4, 4))
        c(2); c(3); e(8); e(9); e(10); e(11)
        if qt == 0:
            A("s_waitcnt vmcnt(10)")
        mfma(Oreg(qt), v(vV + 8 * sg, 4), v(P, 4))
        c(4); c(5); e(12); e(13); e(14); e(15); c(6); c(7)

    for sg in range(4):
        for qt in range(4):
            period(sg, qt)
            A.vm = []
    A(f"s_sub_u32 {s(sT4)}, {s(sT4)}, 1\ns_cmp_lg_u32 {s(sT4)}, 0\ns_cbranch_scc1 L_aloop")
    mfma(Oreg(3), v(vV + 28, 4), v(P + 4, 4))
    stamp()
    await_cnt(C_P4)
    A(f"""s_mul_i32 {s(sT0)}, {s(sW)}, 12288
          s_add_u32 {s(sT0)}, {s(sT0)}, {LA}
          v_add_u32 {v(8)}, {s(sT0)}, {v(vL16)}
          s_nop 7""")
    offs = [(0, i * 1024) for i in range(12)]
    reduce_out([("a", aO), ("a", aO + 16), ("a", aO + 32)], C_MRG, [8], offs)

    def mk(sl):
        A(f"""s_xor_b32 {s(sT0)}, {s(sW)}, {sl}
              s_mul_i32 {s(sT0)}, {s(sT0)}, 12288
              s_add_u32 {s(sT0)}, {s(sT0)}, {LA}
              v_add_u32 {v(8+sl)}, {s(sT0)}, {v(vL16)}""")
        return [8 + sl]
    A.drain_vm()
    reduce_in(O0, 32, C_MRG, mk, offs)
    A(f"v_mov_b32 {v(32)}, {v(O0+12)}")
    halves(32, 33)
    A(f"""v_rcp_f32 {v(33)}, {v(33)}
          s_lshl_b32 {s(sT0)}, {s(sGT)}, 4
          s_lshl_b32 {s(sT1)}, {s(sCB)}, 1
          s_add_u32 {s(sT0)}, {s(sT0)}, {s(sT1)}
          s_add_u32 {s(sT0)}, {s(sT0)}, {s(sP)}
          s_lshl_b32 {s(sT0)}, {s(sT0)}, 11
          s_add_u32 {s(sT4)}, {s(sT0)}, {OB}""")
    for i in range(16):
        A(f"v_mul_f32 {v(O0+i)}, {v(O0+i)}, {v(33)}")
    for i in range(8):
        A(f"v_cvt_pk_bf16_f32 {v(40+i)}, {v(O0+2*i)}, {v(O0+2*i+1)}")
    A(f"s_mov_b64 exec, {s(sHI,2)}\nv_mov_b32 {v(46)}, 0\nv_mov_b32 {v(47)}, 0\ns_mov_b64 exec, -1")
    A(f"buffer_store_dwordx4 {v(40,4)}, {v(vL16)}, {s(SW,4)}, {s(sT4)} offen sc1")
    A(f"buffer_store_dwordx4 {v(44,4)}, {v(vL16)}, {s(SW,4)}, {s(sT4)} offen offset:1024 sc1")
    signal(N_O, own_slot(FO))
    stamp()
    dump_stamps()
    A("s_endpgm")

    A.label("L_slow")
    mx, kf = 104, 112
    for sl in range(4):
        A(f"v_mov_b32 {v(mx+sl)}, 0xff800000")
    A(f"s_mov_b32 {s(sT4)}, 0")
    A.label("L_sloop")
    A(f"""buffer_load_dwordx4 {v(kf,4)}, {v(vF)}, {s(SW,4)}, {s(sT4)} offen sc1
          buffer_load_dwordx4 {v(kf+4,4)}, {v(vF)}, {s(SW,4)}, {s(sT4)} offen offset:1024 sc1
          s_add_u32 {s(sT4)}, {s(sT4)}, 4096
          s_waitcnt vmcnt(0)""")
    for sl in range(4):
        mfma(v(S[0], 16), v(kf, 4), a(aQ + 8 * sl, 4), 0)
        mfma(v(S[0], 16), v(kf + 4, 4), a(aQ + 8 * sl + 4, 4))
        A("s_nop 11")
        for i in range(8):
            A(f"v_max3_f32 {v(mx+sl)}, {v(mx+sl)}, {v(S[0]+2*i)}, {v(S[0]+2*i+1)}")
    A(f"s_cmp_lt_u32 {s(sT4)}, 0x10000\ns_cbranch_scc1 L_sloop")
    A(f"v_and_b32 {v(kf)}, 31, {v(vLANE)}\nv_lshlrev_b32 {v(kf)}, 2, {v(kf)}\nv_add_u32 {v(kf)}, {L_MX}, {v(kf)}")
    for sl in range(4):
        halves(mx + sl, kf + 1)
        A(f"""v_max_f32 {v(mx+sl)}, {v(mx+sl)}, {v(kf+1)}
              s_xor_b32 {s(sT0)}, {s(sW)}, {sl}
              s_lshl_b32 {s(sT0)}, {s(sT0)}, 7
              v_add_u32 {v(kf+4+sl)}, {s(sT0)}, {v(kf)}""")
    A(f"ds_write_b32 {v(kf+4)}, {v(mx)}")
    arrive(C_MAX)
    await_cnt(C_MAX)
    for sl in range(1, 4):
        A(f"ds_max_f32 {v(kf+4+sl)}, {v(mx+sl)}")
    arrive(C_MAX)
    await_cnt(C_MAX, 8)
    t = 120
    for sl in range(4):
        A(f"""ds_read_b32 {v(t)}, {v(kf+4+sl)}
              s_waitcnt lgkmcnt(0)
              v_sub_f32 {v(t)}, 0, {v(t)}
              v_cvt_pk_bf16_f32 {v(t+1)}, {v(t)}, {v(t)}
              v_and_b32 {v(t+1)}, 0xffff0000, {v(t+1)}
              v_sub_f32 {v(t+2)}, {v(t)}, {v(t+1)}
              v_cvt_pk_bf16_f32 {v(t+3)}, {v(t)}, {v(t+2)}
              v_and_b32 {v(t+1)}, 0xffff0000, {v(t+3)}
              v_sub_f32 {v(t+2)}, {v(t+2)}, {v(t+1)}
              v_cvt_pk_bf16_f32 {v(t+2)}, {v(t+2)}, 0
              s_mov_b64 exec, {s(sHI,2)}
              v_accvgpr_write_b32 {a(aQ + 8*sl + 6)}, {v(t+3)}
              v_accvgpr_write_b32 {a(aQ + 8*sl + 7)}, {v(t+2)}
              s_mov_b64 exec, -1""")
    A("s_nop 1\ns_branch L_fast")


def header():
    ref = open(f"cdna_kernels/{NAME}.s.ref").read().split("\n")
    out = [l for l in ref if l.startswith(";") and "@launch" not in l and "Override" not in l and "grid=ceil" not in l]
    out.append(f"; @launch grid=(256,1,1) block=(512,1,1) lds={LDS_SIZE}")
    out += ['.amdgcn_target "amdgcn-amd-amdhsa--gfx950"', ".text", f".globl {NAME}_kernel", ".p2align 8",
            f".type {NAME}_kernel,@function", f"{NAME}_kernel:"]
    return "\n".join(out) + "\n"


def footer():
    return f"""L_end:
    s_endpgm
L_code_end:
.section .rodata,"a"
.p2align 6
.amdhsa_kernel {NAME}_kernel
  .amdhsa_next_free_vgpr 256
  .amdhsa_next_free_sgpr 102
  .amdhsa_accum_offset 128
  .amdhsa_group_segment_fixed_size 0
  .amdhsa_kernarg_size 104
  .amdhsa_user_sgpr_count 2
  .amdhsa_user_sgpr_kernarg_segment_ptr 1
  .amdhsa_system_sgpr_workgroup_id_x 1
.end_amdhsa_kernel
"""


if __name__ == "__main__":
    vm_mlp, vm_att = prologue()
    mlp(vm_mlp)
    att(vm_att)
    out = [x for x in sys.argv[1:] if not x.startswith("--")]
    open(out[0] if out else "k.s", "w").write(header() + A.text() + footer())
```

```python
import math
import sys
from asmlib import Asm, a, f32, s, v, weave

NAME = "recurrent_scan__grouped_kv_mqa__mixer_s_mlp__prompt"
PROFILE = "--prof" in sys.argv or "--cyc" in sys.argv
CLOCK = "s_memtime" if "--cyc" in sys.argv else "s_memrealtime"
FORCE_SLOW = "--slow" in sys.argv
OPT = {x[2:].split("=")[0]: (x.split("=") + [""])[1] for x in sys.argv if x.startswith("--")}


class Stop(Exception):
    pass


def cut(name):
    if OPT.get("mlpstop") == name:
        arrive(C_P4)
        A.drain_vm()
        dump_stamps()
        A("s_endpgm")


KV, CS, FK, FC, FH, FX, FG, FO, FG2 = 0x0, 0x40000, 0x48000, 0x49000, 0x50000, 0x58000, 0x60000, 0x68000, 0x70000
TS = 0x80000
HB, ST, X1, HH, OB = 0x100000, 0x2C0000, 0x300000, 0x500000, 0xC00000
WS_SIZE = 0xE00000
OOB = 0x7FFF0000
LX, LA, LQ, LS = 0, 57344, 114688, 159744
LDS_SIZE = 163840
(C_PA, C_WQ, C_Q, C_QD, C_MAX, C_MRG, C_R1, C_XA, C_XB, C_P4, C_R2, C_R3, N_H, N_X, N_G, N_G2, N_O, N_K, N_C,
 G_H, G_X, G_G, G_G2, G_O, G_K, L_KM, L_KP) = [LS + 4 * i for i in range(27)]
L_QN, L_STAT = LS + 1024, LS + 2048
L_MX = LS + 256
L_QG, L_VT = LA + 16384, LA + 24576
NRING = 12
assert L_QG % 8192 == 0
LOG2E = 1.4426950408889634
QSCALE = 28 ** -0.5 * LOG2E
GC1 = -2 * LOG2E * math.sqrt(2 / math.pi)
GC2 = GC1 * 0.044715
EPS = 1e-5
BOUND2 = 3500.0
ONES = 0x3F803F80
GSPIN, LSPIN = 20000, 400000
SX, SA, SQ, SW, S4, SO, SOUT, SD, S2 = 4, 8, 12, 16, 20, 24, 28, 32, 36
P_X, P_WQ, P_WK, P_WV, P_WO, P_W1, P_W2, P_W3, P_W4, P_OUT, P_DBG, P_WS = 40, 42, 44, 46, 48, 52, 54, 56, 58, 60, 62, 64
sN = 66
sW8, sW, sTB, sCB, sTT, sP, sGT = 68, 69, 70, 71, 72, 73, 74
sHI = 76
sINV = 78
sT0, sT1, sT2, sT3, sT4, sT5 = 80, 81, 82, 83, 84, 85
sPA, sPB, sB1, sB4, sSP = 86, 87, 88, 89, 90
sK, sV, sR, sRG, sRH = 91, 92, 93, 96, 97
sTS = 40
vLANE, vL16, vTRN, vTRD, vT0, vT1, vT2, vT3 = 0, 1, 2, 3, 4, 5, 6, 7
MF = "v_mfma_f32_32x32x16_bf16"

A = Asm()
stamps = {"n": 0}


def stamp():
    if PROFILE:
        i = stamps["n"]
        stamps["n"] += 1
        A(f"s_waitcnt lgkmcnt(0)\n{CLOCK} {s(94,2)}\ns_waitcnt lgkmcnt(0)\ns_mov_b32 {s(sTS+i)}, s94")
        A.lg = []


def early_stamp(i):
    if "startup" in OPT:
        A(f"s_memtime {s(94,2)}\ns_waitcnt lgkmcnt(0)\ns_mov_b32 {s([98, 99, 100, 101, 3, 75, 97][i])}, s94")


def early_dump():
    if "startup" in OPT:
        for i, r in enumerate([98, 99, 100, 101, 3, 75, 97]):
            A(f"s_mov_b32 {s(sTS+i)}, {s(r)}")
        stamps["n"] = 7
        stamp()
        dump_stamps()
        A("s_endpgm")


def dump_stamps():
    if PROFILE:
        n = stamps["n"]
        A(f"s_lshl_b32 {s(sT0)}, s2, 3\ns_add_u32 {s(sT0)}, {s(sT0)}, {s(sW8)}\ns_lshl_b32 {s(sT0)}, {s(sT0)}, 7\n"
          f"s_add_u32 {s(sT0)}, {s(sT0)}, {TS}\nv_mov_b32 {v(vT1)}, 0")
        for i in range(n):
            A(f"v_mov_b32 {v(vT0)}, {s(sTS+i)}\nbuffer_store_dword {v(vT0)}, {v(vT1)}, {s(SW,4)}, {s(sT0)} offen offset:{4*i}")
        A.drain_vm()
    stamps["n"] = 0


def srd(r, ptr, size):
    A(f"s_mov_b32 {s(r)}, {s(ptr)}\ns_mov_b32 {s(r+1)}, {s(ptr+1)}\ns_mov_b32 {s(r+2)}, {size}\ns_mov_b32 {s(r+3)}, 0x20000")


def mfma(d, x, y, c=None):
    A(f"{MF} {d}, {x}, {y}, {d if c is None else c}")


def dma(m0_base, m0_off, voff, desc, soff, tag, imm=0, sc=""):
    if m0_base is None:
        A(f"s_mov_b32 m0, {m0_off - imm}")
    else:
        A(f"s_add_u32 m0, {s(m0_base)}, {m0_off - imm}")
    pre, so = soff
    if pre:
        A(pre)
    else:
        A("s_nop 0")
    A.vmem(f"buffer_load_dwordx4 {v(voff)}, {s(desc,4)}, {so} offen" + (f" offset:{imm}" if imm else "") + f"{sc} lds", tag)


def tr(dst, addr, off, second, tag):
    k, i = dst
    r = v if k == "v" else a
    A.ds(f"ds_read_b64_tr_b16 {r(i,2)}, {v(addr)} offset:{off}", tag)
    A.ds(f"ds_read_b64_tr_b16 {r(i+2,2)}, {v(addr)} offset:{off+second}", tag)


def arrive(cnt):
    A(f"s_mov_b64 exec, 1\nv_mov_b32 {v(vT0)}, {cnt}\nv_mov_b32 {v(vT1)}, 1")
    A.ds(f"ds_add_u32 {v(vT0)}, {v(vT1)}", "cnt")
    A("s_mov_b64 exec, -1")


def await_cnt(cnt, target=4):
    lp, ok = A.newlabel("ls"), A.newlabel("lk")
    A(f"v_mov_b32 {v(vT0)}, {cnt}\ns_mov_b32 {s(sSP)}, 0")
    A.label(lp)
    A(f"""ds_read_b32 {v(vT1)}, {v(vT0)}
          s_add_u32 {s(sSP)}, {s(sSP)}, 1
          s_waitcnt lgkmcnt(0)
          v_readfirstlane_b32 {s(sT0)}, {v(vT1)}
          s_cmp_ge_u32 {s(sT0)}, {target}
          s_cbranch_scc1 {ok}
          {"s_sleep " + OPT["lsleep"] if "lsleep" in OPT else ""}
          s_cmp_lt_u32 {s(sSP)}, {LSPIN}
          s_cbranch_scc1 {lp}""")
    A.label(ok)
    A.lg = []


def gate(go, setup, tmp, payload=None):
    lp, ok, rest = A.newlabel("gs"), A.newlabel("gk"), A.newlabel("gw")
    A(f"s_cmp_lg_u32 {s(sW)}, 0\ns_cbranch_scc1 {rest}")
    setup()
    A(f"s_mov_b32 {s(sSP)}, 0")
    A.label(lp)
    n = 4 if payload else 2
    A(f"""buffer_load_dwordx{n} {v(tmp,n)}, {v(vT2)}, {s(SW,4)}, 0 offen sc1
          s_add_u32 {s(sSP)}, {s(sSP)}, 1
          s_waitcnt vmcnt(0)
          v_cmp_eq_u64 vcc, {s(sN,2)}, {v(tmp,2)}
          s_or_b64 vcc, vcc, {s(sINV,2)}
          s_cmp_eq_u64 vcc, -1
          s_cbranch_scc1 {ok}
          s_cmp_lt_u32 {s(sSP)}, {GSPIN}
          s_cbranch_scc1 {lp}""")
    A.label(ok)
    if payload:
        payload()
    keep = list(A.lg)
    arrive(go)
    A.lg = keep
    A.label(rest)
    await_cnt(go, 1)


def peek_issue(setup, data=vT0, addr=vT2):
    setup()
    if addr != vT2:
        A(f"v_mov_b32 {v(addr)}, {v(vT2)}")
    A.vmem(f"buffer_load_dwordx2 {v(data,2)}, {v(addr)}, {s(SW,4)}, 0 offen sc1", "peek")


def peek_check(data=vT0, addr=vT2):
    lp, ok = A.newlabel("ps"), A.newlabel("pk")
    A.wait_vm("peek")
    A(f"s_mov_b32 {s(sSP)}, {GSPIN}")
    A.label(lp)
    A(f"""v_cmp_eq_u64 vcc, {s(sN,2)}, {v(data,2)}
          s_or_b64 vcc, vcc, {s(sINV,2)}
          s_cmp_eq_u64 vcc, -1
          s_cbranch_scc1 {ok}
          s_sub_u32 {s(sSP)}, {s(sSP)}, 1
          s_cbranch_scc1 {ok}
          buffer_load_dwordx2 {v(data,2)}, {v(addr)}, {s(SW,4)}, 0 offen sc1
          s_waitcnt vmcnt(0)
          s_branch {lp}""")
    A.label(ok)


def lanes_to(addr_reg):
    A(f"s_mov_b64 vcc, {s(sINV,2)}\nv_mov_b32 {v(vT3)}, {OOB}\nv_cndmask_b32 {v(vT2)}, {v(addr_reg)}, {v(vT3)}, vcc")


def signal(cnt, soff_expr, tags=None, payload=None):
    skip = A.newlabel("sg")
    if tags is None:
        A.drain_vm()
    else:
        A.wait_vm(tags)
    A(f"""s_mov_b64 exec, 1
          v_mov_b32 {v(vT0)}, {cnt}
          v_mov_b32 {v(vT1)}, 1
          ds_add_rtn_u32 {v(vT1)}, {v(vT0)}, {v(vT1)}""")
    if payload:
        A(f"ds_read_b32 {v(vT2)}, {v(vT0)} offset:{payload - cnt}")
    A(soff_expr)
    A(f"""s_waitcnt lgkmcnt(0)
          v_readfirstlane_b32 {s(sT1)}, {v(vT1)}
          s_cmp_lg_u32 {s(sT1)}, 3
          s_cbranch_scc1 {skip}
          v_mov_b32 {v(vT0)}, {s(sN)}
          v_mov_b32 {v(vT1)}, {s(sN+1)}
          v_mov_b32 {v(vT3)}, 0
          buffer_store_dwordx4 {v(vT0,4)}, {v(vT3)}, {s(SW,4)}, {s(sT0)} offen sc1""")
    A.label(skip)
    A("s_mov_b64 exec, -1\ns_nop 0")
    A.lg = []


def nonce_issue(tmp):
    A(f"v_mov_b32 {v(vT3)}, 0")
    A.vmem(f"buffer_load_dwordx2 {v(tmp,2)}, {v(vT3)}, {s(SD,4)}, 0 offen sc1", "nonce")


def nonce_take(tmp):
    lp, ok = A.newlabel("ns"), A.newlabel("nk")
    A.wait_vm("nonce")
    A(f"s_mov_b32 {s(sSP)}, 0\nv_mov_b32 {v(vT3)}, 0")
    A.label(lp)
    A(f"""v_readfirstlane_b32 {s(sN)}, {v(tmp)}
          v_readfirstlane_b32 {s(sN+1)}, {v(tmp+1)}
          s_add_u32 {s(sSP)}, {s(sSP)}, 1
          s_cmp_lg_u64 {s(sN,2)}, 0
          s_cbranch_scc1 {ok}
          s_cmp_ge_u32 {s(sSP)}, {GSPIN}
          s_cbranch_scc1 {ok}
          buffer_load_dwordx2 {v(tmp,2)}, {v(vT3)}, {s(SD,4)}, 0 offen sc1
          s_waitcnt vmcnt(0)
          s_branch {lp}""")
    A.label(ok)


def halves(x, t):
    A(f"v_mov_b32 {v(t)}, {v(x)}\ns_nop 1\nv_permlane32_swap_b32 {v(x)}, {v(t)}")


def wave_max(x, full):
    for sh in (1, 2, 4, 8):
        A(f"s_nop 1\nv_max_f32_dpp {v(x)}, {v(x)}, {v(x)} row_shr:{sh} row_mask:0xf bank_mask:0xf bound_ctrl:0")
    A(f"s_nop 1\nv_max_f32_dpp {v(x)}, {v(x)}, {v(x)} row_bcast:15 row_mask:0xa bank_mask:0xf")
    if full:
        A(f"s_nop 1\nv_max_f32_dpp {v(x)}, {v(x)}, {v(x)} row_bcast:31 row_mask:0xc bank_mask:0xf")
    A("s_nop 1")


def gelu_ops(y, t, dst, c1, c2, ri):
    o = []
    for e in (0, 1):
        o.append(f"v_mul_f32 {v(t+e)}, {v(y+e)}, {v(y+e)}")
    for e in (0, 1):
        o.append(f"v_fma_f32 {v(t+e)}, {v(t+e)}, {v(c2)}, {v(c1)}")
    for e in (0, 1):
        o.append(f"v_mul_f32 {v(t+e)}, {v(t+e)}, {v(y+e)}")
    for e in (0, 1):
        o.append(f"v_exp_f32 {v(t+e)}, {v(t+e)}")
    for e in (0, 1):
        o.append(f"v_fma_f32 {v(t+e)}, {v(t+e)}, {v(ri)}, {v(ri)}")
    for e in (0, 1):
        o.append(f"v_rcp_f32 {v(t+e)}, {v(t+e)}")
    for e in (0, 1):
        o.append(f"v_mul_f32 {v(t+e)}, {v(t+e)}, {v(y+e)}")
    o.append(f"v_cvt_pk_bf16_f32 {v(dst)}, {v(t)}, {v(t+1)}")
    return o


def ring_addr(slot):
    return (sPA, slot * 2048) if slot < 7 else (sPB, (slot - 7) * 2048)


def reduce_out(srcs, cnt, vbase, offs, fill=()):
    def wr(i):
        k, r = srcs[i // 4]
        reg = (v if k == "v" else a)(r + 4 * (i % 4), 4)
        b, o = offs[i]
        A.ds(f"ds_write_b128 {v(vbase[b])}, {reg} offset:{o}", "red")
        if i == 11:
            arrive(cnt)
    weave(A, [lambda i=i: wr(i) for i in range(12)], list(fill))


def reduce_in(acc, tmp, cnt, mkaddr, offs, between=None):
    tmp = tmp if isinstance(tmp, list) else [tmp, tmp + 16, tmp + 32]
    await_cnt(cnt)
    for sl in (1, 2, 3):
        regs = mkaddr(sl)
        for q in range(4):
            b, o = offs[(sl - 1) * 4 + q]
            A.ds(f"ds_read_b128 {v(tmp[sl-1] + 4*q, 4)}, {v(regs[b])} offset:{o}", ("rd", sl))
    if between:
        between()
    for sl in (1, 2, 3):
        A.wait_lg(("rd", sl))
        for i in range(16):
            A(f"v_add_f32 {v(acc+i)}, {v(acc+i)}, {v(tmp[sl-1] + i)}")


vC8, vC7, vXF, vWQ = 100, 101, 104, 109
SXR = [16, 20, 88, 92, 112, 116, 120]


def image(base, off, voff, desc, sreg_expr, rs, tag, halves_=(0, 1)):
    for h in halves_:
        dma(base, off + h * 1024, voff, desc, (sreg_expr(h * 8 * rs), s(sT0)), tag)


def gaps(mfmas, pieces):
    n, m, done = len(mfmas), len(pieces), 0
    for i, f in enumerate(mfmas):
        f()
        while done < -(-m * (i + 1) // n):
            pieces[done]()
            done += 1


def prologue():
    A(f"""s_cmp_ge_u32 s2, 256
          s_cbranch_scc1 L_end
          s_load_dwordx16 {s(40,16)}, s[0:1], 0
          s_load_dwordx8 {s(56,8)}, s[0:1], 64
          s_load_dwordx2 {s(64,2)}, s[0:1], 96
          s_memrealtime {s(sN,2)}
          {CLOCK + " " + s(98,2) if PROFILE else ""}
          s_getpc_b64 {s(sT2,2)}
          v_lshrrev_b32 {v(vT0)}, 6, v0
          s_lshr_b32 {s(sT0)}, s2, 3
          v_readfirstlane_b32 {s(sW8)}, {v(vT0)}
          s_and_b32 {s(sT1)}, {s(sT0)}, 3
          s_bfe_u32 {s(sT4)}, {s(sT0)}, 0x30000
          s_min_u32 {s(sT4)}, {s(sT4)}, 4
          s_lshl_b32 {s(sT4)}, {s(sT4)}, 13
          v_lshl_add_u32 {v(vT1)}, v0, 4, {s(sT4)}
          s_and_b32 {s(sT2)}, {s(sT2)}, 0xffffff00
          v_min_u32 {v(vT1)}, L_code_end-{NAME}_kernel-16, {v(vT1)}""")
    A.vmem(f"global_load_dwordx4 {v(124,4)}, {v(vT1)}, {s(sT2,2)}", "pf")
    A(f"""v_and_b32 {v(vLANE)}, 63, v0
          s_and_b32 {s(sTB)}, s2, 7
          s_lshl_b32 {s(sTB)}, {s(sTB)}, 2
          s_add_u32 {s(sTB)}, {s(sTB)}, {s(sT1)}
          s_lshr_b32 {s(sCB)}, {s(sT0)}, 2
          v_lshlrev_b32 {v(vL16)}, 4, {v(vLANE)}
          v_lshrrev_b32 {v(vC8)}, 3, {v(vLANE)}
          v_lshrrev_b32 {v(vT0)}, 2, {v(vLANE)}
          v_and_b32 {v(vT0)}, 4, {v(vT0)}
          v_xor_b32 {v(vT0)}, {v(vT0)}, {v(vLANE)}
          v_and_b32 {v(vT0)}, 7, {v(vT0)}
          v_lshlrev_b32 {v(vC7)}, 4, {v(vT0)}
          s_lshl_b32 {s(sT4)}, {s(sW8)}, 10
          s_lshl_b32 {s(sT5)}, {s(sW8)}, 3
          v_add_u32 {v(vT1)}, {s(sT5)}, {v(vC8)}
          s_lshl_b32 {s(sT2)}, {s(sCB)}, 7
          s_sub_u32 {s(sT2)}, {s(sT2)}, 128
          v_mul_u32_u24 {v(vT2)}, 896, {v(vT1)}
          v_add3_u32 {v(103)}, {v(vT2)}, {v(vC7)}, {s(sT2)}
          s_and_b32 {s(sW)}, {s(sW8)}, 3
          s_mul_i32 {s(sT1)}, {s(sW)}, 7168
          v_add_u32 {v(vT2)}, {s(sT1)}, {v(vL16)}
          s_mul_i32 {s(sT1)}, {s(sW8)}, 7168
          s_cmp_eq_u32 {s(sCB)}, 0
          s_cselect_b64 vcc, -1, 0
          s_cselect_b32 {s(sT1)}, {s(sT1)}, {s(sT4)}
          s_mov_b32 {s(sT2)}, 1024
          s_cselect_b32 {s(sT3)}, {s(sT2)}, {64 * 896}
          s_cselect_b32 {s(sT5)}, {s(sT2)}, 8192
          v_cndmask_b32 {v(103)}, {v(103)}, {v(vT2)}, vcc
          s_add_u32 m0, {s(sT1)}, {LA}
          s_mov_b32 {s(sT0)}, 0
          s_cmp_lt_u32 {s(sW8)}, 4
          s_waitcnt lgkmcnt(0)
          s_cselect_b64 {s(SA,2)}, {s(P_WK,2)}, {s(P_WV,2)}
          s_cmp_eq_u32 {s(sCB)}, 0
          s_cselect_b64 {s(SA,2)}, {s(SA,2)}, {s(P_W1,2)}
          s_mov_b32 {s(SA+2)}, 25088
          s_cselect_b32 {s(SA+2)}, {s(SA+2)}, 401408
          s_mov_b32 {s(SA+3)}, 0x20000""")
    early_stamp(1)
    for n in range(7):
        if n:
            A(f"s_add_u32 m0, m0, {s(sT5)}\ns_add_u32 {s(sT0)}, {s(sT0)}, {s(sT3)}")
        A.vmem(f"buffer_load_dwordx4 {v(103)}, {s(SA,4)}, {s(sT0)} offen lds", "WA")
    early_stamp(2)
    A(f"""s_lshl_b32 {s(sT0)}, {s(sTB)}, 6
          v_add_u32 {v(vT1)}, {s(sT0)}, {v(vT1)}
          v_mul_u32_u24 {v(vT2)}, 896, {v(vT1)}
          v_lshrrev_b32 {v(vT1)}, 1, {v(vT1)}
          v_xor_b32 {v(vT1)}, {v(vT1)}, {v(vLANE)}
          v_and_b32 {v(vT1)}, 7, {v(vT1)}
          v_lshl_add_u32 {v(vWQ)}, {v(vT1)}, 4, {v(vT2)}
          s_and_b32 {s(sTT)}, {s(sW8)}, 1
          s_lshr_b32 {s(sP)}, {s(sW)}, 1""")
    srd(SX, P_X, 1835008)
    if PROFILE:
        A(f"s_mov_b32 {s(sTS)}, s98")
        stamps["n"] = 1
    srd(SW, P_WS, WS_SIZE)
    srd(SD, P_DBG, 256)
    A(f"""s_cmp_lg_u32 {s(sW8)}, 0
          s_cbranch_scc1 L_nz
          v_lshlrev_b32 {v(vT0)}, 2, {v(vLANE)}
          v_add_u32 {v(vT0)}, {LS}, {v(vT0)}
          v_mov_b32 {v(vT1)}, 0
          ds_write_b32 {v(vT0)}, {v(vT1)}
          s_waitcnt lgkmcnt(0)
          s_cmp_lg_u32 s2, 0
          s_cbranch_scc1 L_nz
          s_or_b32 {s(sN)}, {s(sN)}, 1
          v_mov_b32 {v(vT2)}, {s(sN)}
          v_mov_b32 {v(vT3)}, {s(sN+1)}
          s_mov_b64 exec, 1
          buffer_store_dwordx2 {v(vT2,2)}, {v(vT1)}, {s(SD,4)}, 0 offen sc1
          s_mov_b64 exec, -1""")
    A.label("L_nz")
    A(f"""s_lshl_b32 {s(sGT)}, {s(sTB)}, 1
          s_add_u32 {s(sGT)}, {s(sGT)}, {s(sTT)}
          s_mov_b32 {s(sHI)}, 0
          s_mov_b32 {s(sHI+1)}, -1""")
    A(f"""v_bfe_u32 {v(vT0)}, {v(vLANE)}, 2, 2
          v_lshlrev_b32 {v(vT0)}, 7, {v(vT0)}
          v_lshrrev_b32 {v(vT1)}, 5, {v(vLANE)}
          v_lshl_add_u32 {v(vTRN)}, {v(vT1)}, 10, {v(vT0)}
          v_lshl_add_u32 {v(vTRD)}, {v(vT1)}, 9, {v(vT0)}
          v_bfe_u32 {v(vT0)}, {v(vLANE)}, 4, 1
          v_and_b32 {v(vT2)}, 3, {v(vLANE)}
          v_lshlrev_b32 {v(vT2)}, 3, {v(vT2)}
          v_lshl_add_u32 {v(103)}, {v(vT0)}, 5, {v(vT2)}
          v_bfe_u32 {v(vT0)}, {v(vLANE)}, 3, 1
          v_lshlrev_b32 {v(102)}, 6, {v(vT0)}""")
    A(f"""v_and_b32 {v(vT3)}, 31, {v(vLANE)}
          s_lshl_b32 {s(sT0)}, {s(sTT)}, 5
          v_add_u32 {v(vT0)}, {s(sT0)}, {v(vT3)}
          v_bfe_u32 {v(vT2)}, {v(vT0)}, 1, 3
          v_lshlrev_b32 {v(vT0)}, 7, {v(vT0)}
          v_xor_b32 {v(vT2)}, {v(vT2)}, {v(vT1)}
          v_lshl_add_u32 {v(vXF)}, {v(vT2)}, 4, {v(vT0)}
          v_xor_b32 {v(vXF+1)}, 32, {v(vXF)}
          v_xor_b32 {v(vXF+2)}, 64, {v(vXF)}
          v_xor_b32 {v(vXF+3)}, 96, {v(vXF)}
          s_lshr_b32 {s(sT1)}, {s(sW8)}, 1
          s_lshl_b32 {s(sT0)}, {s(sT1)}, 5
          v_xor_b32 {v(108)}, {s(sT0)}, {v(vXF)}
          s_lshl_b32 {s(sT0)}, {s(sTT)}, 10
          s_add_u32 {s(sT0)}, {s(sT0)}, {L_STAT}
          v_lshl_add_u32 {v(110)}, {v(vT3)}, 3, {s(sT0)}
          s_lshl_b32 {s(sT0)}, {s(sT1)}, 8
          v_add_u32 {v(111)}, {s(sT0)}, {v(110)}
          v_mov_b32 {v(30)}, 0
          v_mov_b32 {v(31)}, 0
          s_mov_b32 {s(sT5)}, {ONES}""")
    for i in range(4):
        A(f"v_mov_b32 {v(96+i)}, {ONES}")
    A(f"""s_lshl_b32 {s(sT0)}, s2, 3
          s_add_u32 {s(sT0)}, {s(sT0)}, {s(sW8)}
          s_cmp_ge_u32 {s(sT0)}, {392 if OPT.get("tw", "23") == "23" else 4096}
          s_cselect_b64 {s(SA,2)}, {s(P_W3,2)}, {s(P_W2,2)}
          s_mov_b32 {s(SA+2)}, 401408
          s_cselect_b32 {s(SA+2)}, 1605632, {s(SA+2)}
          s_cselect_b32 {s(sT1)}, 392, 0
          s_sub_u32 {s(sT0)}, {s(sT0)}, {s(sT1)}
          s_lshl_b32 {s(sRG)}, {s(sT0)}, {10 if OPT.get("tw", "23") == "23" else 8}""")
    A(f"""s_lshl_b32 {s(sT0)}, {s(sP)}, 6
          v_xor_b32 {v(vT0)}, {v(103)}, {v(102)}
          v_xor_b32 {v(vT0)}, {s(sT0)}, {v(vT0)}
          v_add_u32 {v(vT0)}, {v(vT0)}, {v(vTRN)}
          v_lshrrev_b32 {v(vT1)}, 7, {v(vTRN)}
          v_mul_u32_u24 {v(vT1)}, 56, {v(vT1)}
          s_mul_i32 {s(sT0)}, {s(sP)}, 28672
          v_add3_u32 {v(vT1)}, {v(vT1)}, {v(103)}, {s(sT0)}
          s_cmp_eq_u32 {s(sCB)}, 0
          s_cselect_b64 vcc, -1, 0
          v_cndmask_b32 {v(vT0)}, {v(vT0)}, {v(vT1)}, vcc
          v_add_u32 {v(29)}, {LA}, {v(vT0)}""")
    early_stamp(3)
    for kb in range(7):
        dma(sT4, LX + kb * 8192, vWQ, SX, (None, "0"), "X", imm=kb * 128)
    touch("x")
    early_stamp(4)
    A.wait_vm("WA")
    barrier()
    early_stamp(5)
    A(f"s_cmp_ge_u32 {s(sW8)}, 4\ns_cbranch_scc1 L_att")
    return list(A.vm)


def touch(where):
    if OPT.get("tat", "p1") != where:
        return
    A(f"v_lshlrev_b32 {v(vT0)}, 7, {v(vLANE)}\ns_mov_b64 exec, {255 if OPT.get('tw', '23') == '23' else 3}")
    A.vmem(f"buffer_load_dword {a(127)}, {v(vT0)}, {s(SA,4)}, {s(sRG)} offen", "t")
    A("s_mov_b64 exec, -1")


def stat_part(between):
    for j in range(7):
        A.ds(f"ds_read_b128 {v(SXR[j],4)}, {v(108)} offset:{j*8192}", ("sx", j))
    between()
    for j in range(7):
        A.wait_lg(("sx", j))
        for i in range(4):
            r = SXR[j] + i
            A(f"v_dot2c_f32_bf16 {v(30)}, {s(sT5)}, {v(r)}\nv_dot2c_f32_bf16 {v(31)}, {v(r)}, {v(r)}")
    A("s_nop 2")
    halves(30, vT2)
    halves(31, vT3)
    A(f"v_add_f32 {v(30)}, {v(30)}, {v(vT2)}\nv_add_f32 {v(31)}, {v(31)}, {v(vT3)}")
    A.ds(f"ds_write_b64 {v(111)}, {v(30,2)}", "statw")
    A.drain_lg()


def barrier():
    A("s_barrier")


def stat_read():
    for q in range(4):
        A.ds(f"ds_read_b64 {v(112+2*q,2)}, {v(110)} offset:{q*256}", "stat")


def stat_fin(vM, vVar):
    A.wait_lg("stat")
    A(f"""v_add_f32 {v(112)}, {v(112)}, {v(114)}
          v_add_f32 {v(113)}, {v(113)}, {v(115)}
          v_add_f32 {v(116)}, {v(116)}, {v(118)}
          v_add_f32 {v(117)}, {v(117)}, {v(119)}
          v_add_f32 {v(112)}, {v(112)}, {v(116)}
          v_add_f32 {v(113)}, {v(113)}, {v(117)}
          v_mul_f32 {v(vM)}, {f32(1/448)}, {v(112)}
          v_mul_f32 {v(112)}, {v(vM)}, {v(vM)}
          v_mul_f32 {v(113)}, {f32(1/448)}, {v(113)}
          v_sub_f32 {v(113)}, {v(113)}, {v(112)}
          v_max_f32 {v(vVar)}, 0, {v(113)}""")


def own_slot(base):
    return (f"s_lshl_b32 {s(sT0)}, {s(sTB)}, 3\ns_add_u32 {s(sT0)}, {s(sT0)}, {s(sCB)}\n"
            f"s_lshl_b32 {s(sT0)}, {s(sT0)}, 7\ns_add_u32 {s(sT0)}, {s(sT0)}, {base}")


late = []


def mlp(vm_entry):
    A.vm = list(vm_entry)
    vXD, vX1P, vW, vW3, vM, vR, vWA = 8, 16, 24, 26, 27, 28, 29
    vRA, vRB = [2, 3], [25, 31]
    acc, cs, ring, ones = 32, 48, 64, 96
    A("s_setprio " + OPT.get("prio", "2"))
    vXA = 124
    setup = []
    for r, p, n in ((S2, P_W2, 401408), (SQ, P_W3, 1605632), (S4, P_W4, 1605632), (SO, P_WO, 401408), (SOUT, P_OUT, 1835008)):
        setup += [f"s_mov_b64 {s(r,2)}, {s(p,2)}", f"s_mov_b32 {s(r+2)}, {n}", f"s_mov_b32 {s(r+3)}, 0x20000"]
    setup += f"""s_max_u32 {s(sT1)}, {s(sCB)}, 1
          s_sub_u32 {s(sT1)}, {s(sT1)}, 1
          s_lshl_b32 {s(sT4)}, {s(sT1)}, 1
          s_add_u32 {s(sT4)}, {s(sT4)}, {s(sP)}
          s_mul_i32 {s(sPA)}, {s(sW)}, 14336
          s_mul_i32 {s(sPB)}, {s(sW)}, 11264
          s_add_u32 {s(sPB)}, {s(sPB)}, {LQ}
          s_mul_i32 {s(sB1)}, {s(sW)}, {112*896}
          s_mul_i32 {s(sB4)}, {s(sW)}, {448*896}
          s_add_u32 {s(sR)}, {s(sTB)}, {s(sCB)}
          s_and_b32 {s(sR)}, {s(sR)}, 3
          v_mul_u32_u24 {v(vT0)}, 896, {v(vC8)}
          s_lshl_b32 {s(sT0)}, {s(sT1)}, 7
          v_add3_u32 {v(vW)}, {v(vT0)}, {v(vC7)}, {s(sT0)}
          v_mul_u32_u24 {v(vT0)}, 3584, {v(vC8)}
          s_lshl_b32 {s(sT0)}, {s(sT1)}, 9
          s_lshl_b32 {s(sT2)}, {s(sW)}, 7
          s_add_u32 {s(sT0)}, {s(sT0)}, {s(sT2)}
          v_add3_u32 {v(vW3)}, {v(vT0)}, {v(vC7)}, {s(sT0)}
          s_lshl_b32 {s(sT0)}, {s(sP)}, 6
          v_xor_b32 {v(103)}, {v(103)}, {v(102)}
          v_xor_b32 {v(102)}, {s(sT0)}, {v(103)}
          s_lshl_b32 {s(sT3)}, {s(sT1)}, 13
          v_lshrrev_b32 {v(vT1)}, 5, {v(vLANE)}
          v_lshlrev_b32 {v(vT2)}, 4, {v(vT1)}
          v_xor_b32 {v(vXA)}, {v(vXF)}, {v(vT2)}
          v_xor_b32 {v(vXA)}, {s(sT0)}, {v(vXA)}
          v_lshl_add_u32 {v(vXA)}, {v(vT1)}, 3, {v(vXA)}
          v_add_u32 {v(vXA)}, {s(sT3)}, {v(vXA)}
          v_xor_b32 {v(vXA+1)}, 16, {v(vXA)}
          v_xor_b32 {v(vXA+2)}, 32, {v(vXA)}
          v_xor_b32 {v(vXA+3)}, 48, {v(vXA)}""".split("\n")

    def colsums(kstride, second):
        def step(ks):
            if ks < 28:
                tr(("a", 4 * ks), vWA, ks * kstride, second, ("w", ks))
            if ks >= 4:
                A.wait_lg(("w", ks - 4))
                mfma(v(cs, 16), a(4 * (ks - 4), 4), v(ones, 4), 0 if ks == 4 else None)
        weave(A, [lambda ks=ks: step(ks) for ks in range(32)], [lambda t=t: A(t) for t in setup])

    A(f"s_cmp_eq_u32 {s(sCB)}, 0\ns_cbranch_scc1 L_cskv")
    colsums(2048, 512)
    A.label("L_csdone")
    late.append(lambda: (A.label("L_cskv"), colsums(896, 224), A("s_branch L_csdone")))
    early_stamp(6)
    A.wait_vm("X")
    barrier()
    early_dump()
    stamp()
    NX = 6

    def xr(ks):
        A.ds(f"ds_read_b128 {v(ring + 4 * (ks % NX), 4)}, {v(vXF + (ks & 3))} offset:{(ks >> 2) * 8192}", ("x", ks))

    def first():
        for ks in range(NX - 1):
            xr(ks)
        for g in range(4):
            A.ds(f"ds_read_b64 {v(vXD+2*g,2)}, {v(vXA+g)}", "xd")
    stat_part(first)
    barrier()
    vC1g, vC2g, vRI, vR2 = 120, 121, 122, 123
    for ks in range(28):
        if ks + NX - 1 < 28:
            xr(ks + NX - 1)
        if ks == 0:
            stat_read()
            nonce_issue(30)
        A.wait_lg(("x", ks))
        mfma(v(acc, 16), a(4 * ks, 4), v(ring + 4 * (ks % NX), 4), 0 if ks == 0 else None)
        if ks == 1:
            touch("p1")
        if ks == 6:
            stat_fin(vM, vR)
        if ks == 10:
            A(f"""v_add_f32 {v(vT0)}, {f32(EPS)}, {v(vR)}
                  v_rsq_f32 {v(vT1)}, {v(vT0)}
                  v_mov_b32 {v(vT3)}, {f32(EPS)}
                  v_mul_f32 {v(vT2)}, {v(vT1)}, {v(vT1)}""")
        if ks == 11:
            A(f"""v_fma_f32 {v(vT2)}, {v(vT2)}, {v(vR)}, {v(vT3)}
                  v_rsq_f32 {v(vT2)}, {v(vT2)}
                  v_mov_b32 {v(vR)}, {v(vT1)}
                  v_mul_f32 {v(vR2)}, {v(vT1)}, {v(vT2)}""")
        if ks == 12:
            A(f"""v_rcp_f32 {v(vRI)}, {v(vR2)}
                  v_mul_f32 {v(vC1g)}, {f32(GC1)}, {v(vR2)}
                  v_mul_f32 {v(vC2g)}, {v(vR2)}, {v(vR2)}
                  v_mul_f32 {v(vC2g)}, {v(vC2g)}, {v(vR2)}""")
        if ks == 13:
            A(f"v_mul_f32 {v(vC2g)}, {f32(GC2)}, {v(vC2g)}")
        if 14 <= ks < 22:
            A(f"v_mul_f32 {v(cs+2*(ks-14))}, {v(cs+2*(ks-14))}, {v(vM)}\nv_mul_f32 {v(cs+2*(ks-14)+1)}, {v(cs+2*(ks-14)+1)}, {v(vM)}")
    arrive(C_PA)
    vm_kv = list(A.vm)
    A(f"s_cmp_eq_u32 {s(sCB)}, 0\ns_cbranch_scc1 L_kv\ns_nop 4")
    for i in range(16):
        A(f"v_sub_f32 {v(acc+i)}, {v(acc+i)}, {v(cs+i)}")
    stamp()
    pk = 64
    vHS = 74
    for i in range(8):
        for op in gelu_ops(acc + 2 * i, 72, pk + i, vC1g, vC2g, vRI):
            A(op)
        if i == 2:
            A(f"""v_and_b32 {v(vT0)}, 31, {v(vLANE)}
                  s_lshl_b32 {s(sT0)}, {s(sGT)}, 5
                  v_add_u32 {v(vT0)}, {s(sT0)}, {v(vT0)}
                  v_lshrrev_b32 {v(vT1)}, 5, {v(vLANE)}
                  v_lshlrev_b32 {v(vT1)}, 15, {v(vT1)}
                  v_lshl_add_u32 {v(vHS)}, {v(vT0)}, 4, {v(vT1)}
                  s_lshl_b32 {s(sT0)}, {s(sT4)}, 17
                  s_add_u32 {s(sT0)}, {s(sT0)}, {HB}
                  s_add_u32 {s(sT1)}, {s(sT0)}, 0x10000""")
        if i in (3, 7):
            A.vmem(f"buffer_store_dwordx4 {v(pk+(i&4),4)}, {v(vHS)}, {s(SW,4)}, {s(sT0 if i == 3 else sT1)} offen sc1", "hst")
    await_cnt(C_PA, 8)
    for j in range(7):
        image(sPA, j * 2048, vW, S2, lambda e, j=j: f"s_add_u32 {s(sT0)}, {s(sB1)}, {j * 16 * 896 + e}", 896, "W2")
    nonce_take(30)
    signal(N_H, own_slot(FH), "hst")
    stamp()
    A(f"""v_add_u32 {v(vT0)}, {s(sPA)}, {v(vTRD)}
          v_add_u32 {v(vT1)}, {s(sPB)}, {v(vTRD)}
          v_add_u32 {v(vRA[0])}, {v(vT0)}, {v(102)}
          v_xor_b32 {v(vRA[1])}, 64, {v(vRA[0])}
          v_add_u32 {v(vRB[0])}, {v(vT1)}, {v(102)}
          v_xor_b32 {v(vRB[1])}, 64, {v(vRB[0])}""")
    A.wait_vm("W2")
    for j in range(7):
        for b in range(2):
            tr(("a", 8 * j + 4 * b), vRA[b], j * 2048, 1024, "w2")
    vH = 29
    A(f"""s_add_u32 {s(sT0)}, {s(sP)}, 1
          s_sub_u32 {s(sT1)}, 0, {s(sT0)}
          s_cmp_eq_u32 {s(sTT)}, 0
          s_cselect_b32 {s(sT0)}, {s(sT1)}, {s(sT0)}
          s_lshl_b32 {s(sT1)}, {s(sGT)}, 5
          s_add_u32 {s(sT1)}, {s(sT1)}, {s(sT0)}
          s_xor_b32 {s(sT2)}, {s(sGT)}, 1
          s_lshl_b32 {s(sT2)}, {s(sT2)}, 5
          s_add_u32 {s(sT2)}, {s(sT2)}, {s(sT0)}
          v_and_b32 {v(vT0)}, 31, {v(vLANE)}
          v_lshrrev_b32 {v(vT1)}, 5, {v(vLANE)}
          v_lshlrev_b32 {v(vT1)}, 15, {v(vT1)}
          v_mov_b32 {v(vT3)}, {OOB}""")
    for sl, sr in ((0, sT1), (1, sT2)):
        A(f"""v_add_u32 {v(vT2)}, {s(sr)}, {v(vT0)}
              v_cmp_gt_u32 vcc, 2048, {v(vT2)}
              v_lshl_add_u32 {v(vT2)}, {v(vT2)}, 4, {v(vT1)}
              s_nop 0
              v_cndmask_b32 {v(vH+sl)}, {v(vT3)}, {v(vT2)}, vcc""")

    def rot7(reg, u, scale, base):
        if u == 0:
            A(f"s_mul_i32 {s(reg)}, {s(sR)}, {2 * scale}")
        else:
            A(f"""s_add_u32 {s(reg)}, {s(reg)}, {scale}
                  s_cmp_ge_u32 {s(reg)}, {7 * scale}
                  s_cselect_b32 {s(sT0)}, {7 * scale}, 0
                  s_sub_u32 {s(reg)}, {s(reg)}, {s(sT0)}""")

    def sdma(n, hs=(0, 1)):
        base, off = ring_addr(n % NRING)
        if n < 28:
            if n % 7 == 0 and 0 in hs:
                A(f"""s_add_u32 {s(sRG)}, {s(sR)}, {n // 7}
                      s_and_b32 {s(sRG)}, {s(sRG)}, 3
                      s_mul_i32 {s(sRG)}, {s(sRG)}, {7 * 16 * 3584}""")
            image(base, off, vW3, SQ, lambda e: f"s_add_u32 {s(sT0)}, {s(sRG)}, {(n % 7) * 16 * 3584 + e}", 3584, ("S", n), hs)
        elif n < 56:
            p = n - 28
            if p % 2 == 0 and 0 in hs:
                rot7(sRG, (p % 14) // 2, 64 * 896, None)
                A(f"s_add_u32 {s(sT3)}, {s(sRG)}, {s(sB4)}")
            image(base, off, vW, S4, lambda e: f"s_add_u32 {s(sT0)}, {s(sT3)}, {(2 * (p // 14) + p % 2) * 16 * 896 + e}", 896, ("S", n), hs)
        else:
            k = n - 56
            image(base, off, vW, SO, lambda e: f"s_add_u32 {s(sT0)}, {s(sB1)}, {((k >> 1) * 28 + (k & 1) * 16) * 896 + e}", 896, ("S", n), hs)

    def sreg(n, b):
        return 8 * (n % 16) + 4 * b

    def sread(n, bs=(0, 1)):
        base, off = ring_addr(n % NRING)
        if n == 28 and 0 in bs:
            flip()
        A.wait_vm(("S", n))
        for b in bs:
            tr(("a", sreg(n, b)), (vRA if base == sPA else vRB)[b], off, 1024, ("s", n))

    def refill(n, hs=(0, 1)):
        if n < 64:
            A.wait_lg(("s", n - NRING))
            sdma(n, hs)

    def sread_p(n):
        return [lambda: sread(n, (0,)), lambda: sread(n, (1,))]

    def refill_p(n):
        return [lambda: refill(n, (0,)), lambda: refill(n, (1,))] if n < 64 else []

    def flip():
        A(f"s_lshl_b32 {s(sT0)}, {s(sP)}, 6")
        for r in vRA + vRB:
            A(f"v_xor_b32 {v(r)}, {s(sT0)}, {v(r)}")

    flip()
    early = int(OPT.get("early", 3))
    mid = int(OPT.get("mid", 6))
    A.drain_lg()
    for n in range(early):
        sdma(n)
    cut("h")

    def setup_h():
        A(f"""v_lshrrev_b32 {v(vT0)}, 3, {v(vLANE)}
              s_sub_u32 {s(sT0)}, {s(sTB)}, 1
              v_add_u32 {v(vT0)}, {s(sT0)}, {v(vT0)}
              v_cmp_le_u32 vcc, 32, {v(vT0)}
              s_lshl_b32 {s(sT0)}, {s(sT0)}, 10
              s_add_u32 {s(sT0)}, {s(sT0)}, {FH}
              v_lshlrev_b32 {v(vT1)}, 7, {v(vLANE)}
              v_add_u32 {v(vT1)}, {s(sT0)}, {v(vT1)}
              s_mov_b32 {s(sINV)}, 0xff010101
              s_mov_b32 {s(sINV+1)}, -1
              s_or_b64 {s(sINV,2)}, {s(sINV,2)}, vcc""")
        lanes_to(vT1)

    gate(G_H, setup_h, 32)
    stamp()
    hf = 32
    A(f"s_mul_i32 {s(sT5)}, {s(sW)}, {7 << 16}\ns_add_u32 {s(sT5)}, {s(sT5)}, {HB}")
    for j in range(7):
        if j:
            A(f"s_add_u32 {s(sT5)}, {s(sT5)}, 0x10000")
        for sl in range(2):
            A.vmem(f"buffer_load_dwordx4 {v(hf + 8*j + 4*sl, 4)}, {v(vH+sl)}, {s(SW,4)}, {s(sT5)} offen sc1", ("h", j))
    await_cnt(C_QD)
    acc0, vRW = 104, 120
    accs = [v(acc0, 16), a(64, 16), a(80, 16), a(96, 16)]
    A(f"s_add_u32 {s(sT0)}, {s(sPA)}, {LA}\nv_add_u32 {v(vRW)}, {s(sT0)}, {v(vL16)}\nv_mul_f32 {v(vM)}, {v(vM)}, {v(vR)}")
    for j in range(7):
        A.wait_vm(("h", j))
        for sl in (1, 2, 3, 0):
            mfma(accs[sl], a(8 * j + 4 * (sl >> 1), 4), v(hf + 8 * j + 4 * (sl & 1), 4), 0 if j == 0 else None)
    sdma(early)
    A("s_nop 3")
    offs1 = [(0, i * 1024) for i in range(12)]
    reduce_out([("a", 64), ("a", 80), ("a", 96)], C_R1, [vRW], offs1, [lambda n=n: sdma(n) for n in range(early + 1, early + mid)])

    def mk1(sl):
        A(f"""s_xor_b32 {s(sT0)}, {s(sW)}, {sl}
              s_mul_i32 {s(sT0)}, {s(sT0)}, 14336
              s_add_u32 {s(sT0)}, {s(sT0)}, {LA}
              v_add_u32 {v(vRW+sl)}, {s(sT0)}, {v(vL16)}""")
        return [vRW + sl]
    for i in range(8):
        A(f"""v_lshlrev_b32 {v(88)}, 16, {v(vXD+i)}
              v_and_b32 {v(89)}, 0xffff0000, {v(vXD+i)}
              v_fma_f32 {v(88)}, {v(88)}, {v(vR)}, -{v(vM)}
              v_fma_f32 {v(89)}, {v(89)}, {v(vR)}, -{v(vM)}
              v_add_f32 {v(acc0+2*i)}, {v(acc0+2*i)}, {v(88)}
              v_add_f32 {v(acc0+2*i+1)}, {v(acc0+2*i+1)}, {v(89)}""")
    reduce_in(acc0, 32, C_R1, mk1, offs1)
    for i in range(8):
        A(f"v_cvt_pk_bf16_f32 {v(vX1P+i)}, {v(acc0+2*i)}, {v(acc0+2*i+1)}")
    A(f"""s_mul_i32 {s(sT0)}, {s(sGT)}, 14
          s_add_u32 {s(sT0)}, {s(sT0)}, {s(sT4)}
          s_lshl_b32 {s(sT1)}, {s(sT0)}, 11
          s_add_u32 {s(sT1)}, {s(sT1)}, {X1}
          s_lshl_b32 {s(sT0)}, {s(sT0)}, 8
          s_add_u32 {s(sT2)}, {s(sT0)}, {ST}""")
    A.vmem(f"buffer_store_dwordx4 {v(vX1P,4)}, {v(vL16)}, {s(SW,4)}, {s(sT1)} offen sc1", "xst")
    A.vmem(f"buffer_store_dwordx4 {v(vX1P+4,4)}, {v(vL16)}, {s(SW,4)}, {s(sT1)} offen offset:1024 sc1", "xst")
    A(f"""v_add_f32 {v(32)}, {v(acc0)}, {v(acc0+1)}
          v_mul_f32 {v(33)}, {v(acc0)}, {v(acc0)}
          v_fma_f32 {v(33)}, {v(acc0+1)}, {v(acc0+1)}, {v(33)}""")
    for i in range(2, 16):
        A(f"v_add_f32 {v(32)}, {v(32)}, {v(acc0+i)}\nv_fma_f32 {v(33)}, {v(acc0+i)}, {v(acc0+i)}, {v(33)}")
    halves(32, 34)
    halves(33, 35)
    A(f"""v_add_f32 {v(32)}, {v(32)}, {v(34)}
          v_add_f32 {v(33)}, {v(33)}, {v(35)}
          v_lshlrev_b32 {v(34)}, 3, {v(vLANE)}
          s_not_b64 exec, {s(sHI,2)}""")
    A.vmem(f"buffer_store_dwordx2 {v(32,2)}, {v(34)}, {s(SW,4)}, {s(sT2)} offen sc1", "xst")
    A("s_mov_b64 exec, -1")
    stamp()
    cut("p2")
    for n in range(early + mid, NRING):
        sdma(n)
    npre = int(OPT.get("npre", 9))
    xsig = int(OPT.get("xsig", 4))
    for n in range(npre + 1):
        if n < npre:
            sread(n)
        if n == xsig:
            signal(N_X, own_slot(FX), "xst")
        if n >= 1:
            refill(n - 1 + NRING)
    stamp()
    cut("w3")

    def setup_x():
        A(f"""s_lshl_b32 {s(sT0)}, {s(sTB)}, 10
              s_add_u32 {s(sT0)}, {s(sT0)}, {FX}
              s_lshl_b32 {s(sT1)}, {s(sCB)}, 9
              s_add_u32 {s(sT1)}, {s(sT1)}, {FC - 512 - 1024}
              v_lshlrev_b32 {v(vT0)}, 7, {v(vLANE)}
              v_add_u32 {v(vT1)}, {s(sT0)}, {v(vT0)}
              v_add_u32 {v(vT0)}, {s(sT1)}, {v(vT0)}
              s_mov_b64 vcc, 0xff
              v_cndmask_b32 {v(vT1)}, {v(vT0)}, {v(vT1)}, vcc
              s_mov_b32 {s(sINV)}, 0xfffff001
              s_mov_b32 {s(sINV+1)}, -1""")
        lanes_to(vT1)
    gate(G_X, setup_x, 32)
    stamp()
    A(f"""s_mul_i32 {s(sT1)}, {s(sTB)}, {56 * 1024}
          s_add_u32 {s(sT1)}, {s(sT1)}, {X1}
          s_lshl_b32 {s(sT3)}, {s(sW)}, 10
          s_mul_i32 {s(sT2)}, {s(sR)}, 7168
          s_add_u32 {s(sT2)}, {s(sT2)}, {s(sT3)}
          s_add_u32 {s(sT3)}, {s(sT3)}, {LA}""")
    for i in range(7):
        if i:
            A(f"""s_add_u32 {s(sT2)}, {s(sT2)}, 4096
                  s_sub_u32 {s(sT5)}, {s(sT2)}, 28672
                  s_cmp_ge_u32 {s(sT2)}, 28672
                  s_cselect_b32 {s(sT2)}, {s(sT5)}, {s(sT2)}""")
        A(f"s_add_u32 {s(sT5)}, {s(sT1)}, {s(sT2)}")
        for tt in range(2):
            dma(sT3, tt * 28672 + i * 4096, vL16, SW, (f"s_add_u32 {s(sT0)}, {s(sT5)}, {tt * 28672}", s(sT0)), ("x1", min(i // 2, 2)), sc=" sc1")
    vB, stt, cst, bring = 27, 32, 28, 40
    A(f"""v_and_b32 {v(vT0)}, 31, {v(vLANE)}
          v_lshrrev_b32 {v(vT1)}, 5, {v(vLANE)}
          v_mul_u32_u24 {v(vT1)}, {14 * 256}, {v(vT1)}
          v_lshl_add_u32 {v(vT2)}, {v(vT0)}, 3, {v(vT1)}
          s_mul_i32 {s(sT1)}, {s(sTB)}, {28 * 256}
          s_lshl_b32 {s(sT2)}, {s(sW)}, 8
          s_add_u32 {s(sT1)}, {s(sT1)}, {s(sT2)}
          s_add_u32 {s(sT1)}, {s(sT1)}, {ST}
          s_cmp_lt_u32 {s(sW)}, 2
          s_cselect_b32 {s(sT2)}, {s(sT1)}, {OOB}
          v_add_u32 {v(vB)}, {LA}, {v(vL16)}""")
    for i in range(4):
        A.vmem(f"buffer_load_dwordx2 {v(stt+2*i,2)}, {v(vT2)}, {s(SW,4)}, {s(sT1 if i < 3 else sT2)} offen offset:{i*1024} sc1", "st")
    A(f"""s_lshl_b32 {s(sT1)}, {s(sCB)}, 2
          s_add_u32 {s(sT1)}, {s(sT1)}, {s(sW)}
          s_lshl_b32 {s(sT1)}, {s(sT1)}, 9
          s_add_u32 {s(sT1)}, {s(sT1)}, {CS - 2048}
          v_lshlrev_b32 {v(vT3)}, 3, {v(vLANE)}""")
    A.vmem(f"buffer_load_dwordx2 {v(cst,2)}, {v(vT3)}, {s(SW,4)}, {s(sT1)} offen sc1", "cs")
    A(f"""s_mul_i32 {s(sK)}, {s(sTB)}, {2 * 112}
          s_lshl_b32 {s(sT0)}, {s(sCB)}, 2
          s_add_u32 {s(sT0)}, {s(sT0)}, {s(sW)}
          s_sub_u32 {s(sT0)}, {s(sT0)}, 4
          s_lshl_b32 {s(sT0)}, {s(sT0)}, 2
          s_add_u32 {s(sK)}, {s(sK)}, {s(sT0)}
          s_lshl_b32 {s(sK)}, {s(sK)}, 10
          s_add_u32 {s(sK)}, {s(sK)}, {HH}""")
    A.wait_vm(("x1", 0))
    arrive(C_XA)
    await_cnt(C_XA)
    acc4 = [64, 80, 96, 112]

    def bread(ks):
        for tt in range(2):
            A.ds(f"ds_read_b128 {v(bring + 8 * (ks % 3) + 4 * tt, 4)}, {v(vB)} offset:{(tt * 28 + ks) * 1024}", ("b", ks))

    lag = int(OPT.get("lag", 7))
    plan, rstep = {}, {}
    nxt = npre
    for ks in range(28):
        while nxt < 44 and len(plan.get(ks, [])) < 2:
            ready = nxt - 16 < ks and (nxt - NRING < npre or rstep[nxt - NRING] + 1 + lag <= ks)
            if not (ready or (nxt < 28 and nxt - 2 <= ks)):
                break
            plan.setdefault(ks, []).append(nxt)
            rstep[nxt] = ks
            nxt += 1
    assert nxt >= 28 and all(n - 16 < ks and (n >= 28 or n >= ks + 1) for ks in plan for n in plan[ks]), plan
    pend = []
    if "p4" in OPT:
        stamp()
    bread(0)
    bread(1)
    for ks in range(28):
        if ks == 2:
            A.wait_vm(("x1", 1))
            arrive(C_XA)
        if ks == 5:
            await_cnt(C_XA, 8)
        if ks == 8:
            A.wait_vm(["cs", "st", ("x1", 2)])
            A(f"""v_add_f32 {v(stt)}, {v(stt)}, {v(stt+2)}
                  v_add_f32 {v(stt+1)}, {v(stt+1)}, {v(stt+3)}
                  v_add_f32 {v(stt+4)}, {v(stt+4)}, {v(stt+6)}
                  v_add_f32 {v(stt+5)}, {v(stt+5)}, {v(stt+7)}
                  s_lshl_b32 {s(sT0)}, {s(sW)}, 9
                  s_add_u32 {s(sT0)}, {s(sT0)}, {L_STAT}
                  v_add_f32 {v(stt)}, {v(stt)}, {v(stt+4)}
                  v_add_f32 {v(stt+1)}, {v(stt+1)}, {v(stt+5)}
                  v_lshl_add_u32 {v(vT2)}, {v(vLANE)}, 3, {s(sT0)}""")
            A.ds(f"ds_write_b64 {v(vT2)}, {v(stt,2)}", "sw")
            arrive(C_XB)
        if ks == 13:
            await_cnt(C_XB)
            A(f"v_lshlrev_b32 {v(vT2)}, 3, {v(vLANE)}\nv_add_u32 {v(vT2)}, {L_STAT}, {v(vT2)}")
            for q in range(4):
                A.ds(f"ds_read_b64 {v(stt+2*q,2)}, {v(vT2)} offset:{q*512}", "sr")
        A.wait_lg([("b", ks), ("s", ks)])
        acts = [lambda: bread(ks + 2)] if ks + 2 < 28 else []
        rd = [f for n in plan.get(ks, []) for f in sread_p(n)]
        rf = [f for n in pend for f in refill_p(n + NRING)]
        while rd or rf:
            acts += rf[:1] + rd[:1]
            rf, rd = rf[1:], rd[1:]
        pend = plan.get(ks, [])
        gaps([lambda t=t: mfma(v(acc4[t], 16), a(sreg(ks, t >> 1), 4), v(bring + 8 * (ks % 3) + 4 * (t & 1), 4), 0 if ks == 0 else None)
              for t in range(4)], acts)
        if "p4" in OPT and ks in (3, 6, 12, 15, 21):
            stamp()
        if ks == 16:
            A.wait_lg("sr")
            A(f"""v_add_f32 {v(stt)}, {v(stt)}, {v(stt+2)}
                  v_add_f32 {v(stt+1)}, {v(stt+1)}, {v(stt+3)}
                  v_add_f32 {v(stt+4)}, {v(stt+4)}, {v(stt+6)}
                  v_add_f32 {v(stt+5)}, {v(stt+5)}, {v(stt+7)}
                  v_add_f32 {v(stt)}, {v(stt)}, {v(stt+4)}
                  v_add_f32 {v(stt+1)}, {v(stt+1)}, {v(stt+5)}
                  v_add_f32 {v(cst)}, {v(cst)}, {v(cst+1)}""")
        if ks == 17:
            A(f"""v_mul_f32 {v(stt)}, {f32(-1/448)}, {v(stt)}
                  v_mul_f32 {v(stt+1)}, {f32(1/448)}, {v(stt+1)}
                  v_mul_f32 {v(stt+2)}, {v(stt)}, {v(stt)}
                  v_sub_f32 {v(stt+1)}, {v(stt+1)}, {v(stt+2)}
                  v_max_f32 {v(stt+1)}, 0, {v(stt+1)}
                  v_add_f32 {v(stt+1)}, {f32(EPS)}, {v(stt+1)}""")
        if ks == 18:
            halves(stt, stt + 2)
            halves(stt + 1, stt + 3)
            halves(cst, cst + 1)
    arrive(C_P4)
    vAE, vBE, gt, gpk = 40, 48, 56, 40
    for nt in range(2):
        c = cst + nt
        A(f"""v_cvt_pk_bf16_f32 {v(vT0)}, {v(c)}, {v(c)}
              v_and_b32 {v(vT1)}, 0xffff0000, {v(vT0)}
              v_sub_f32 {v(vT1)}, {v(c)}, {v(vT1)}
              v_cvt_pk_bf16_f32 {v(vAE+4*nt)}, {v(c)}, {v(vT1)}
              v_and_b32 {v(vAE+4*nt+1)}, 0xffff, {v(vT0)}
              v_mov_b32 {v(vAE+4*nt+2)}, 0
              v_mov_b32 {v(vAE+4*nt+3)}, 0""")
    for tt in range(2):
        m, b = stt + 2 * tt, vBE + 4 * tt
        A(f"""v_cvt_pk_bf16_f32 {v(vT0)}, {v(m)}, {v(m)}
              v_and_b32 {v(vT1)}, 0xffff0000, {v(vT0)}
              v_sub_f32 {v(vT1)}, {v(m)}, {v(vT1)}
              v_cvt_pk_bf16_f32 {v(vT1)}, {v(vT1)}, 0
              v_cndmask_b32 {v(b)}, {v(vT0)}, 0, {s(sHI,2)}
              v_cndmask_b32 {v(b+1)}, {v(vT1)}, 0, {s(sHI,2)}
              v_mov_b32 {v(b+2)}, 0
              v_mov_b32 {v(b+3)}, 0""")
    A("s_nop 0")
    for t in range(4):
        mfma(v(acc4[t], 16), v(vAE + 4 * (t >> 1), 4), v(vBE + 4 * (t & 1), 4))
    kk = [60, 36]
    for tt in range(2):
        e, k = stt + 2 * tt + 1, kk[tt]
        A(f"""v_rsq_f32 {v(vT0)}, {v(e)}
              s_nop 0
              v_mul_f32 {v(k+2)}, {v(e)}, {v(vT0)}
              v_mul_f32 {v(k)}, {f32(GC1)}, {v(vT0)}
              v_mul_f32 {v(k+1)}, {v(vT0)}, {v(vT0)}
              v_mul_f32 {v(k+1)}, {v(k+1)}, {v(vT0)}
              v_mul_f32 {v(k+1)}, {f32(GC2)}, {v(k+1)}""")
    stamp()
    ops = []
    for t in range(4):
        tt, b = t & 1, t >> 1
        for i in range(8):
            def pair(i=i, t=t, tt=tt):
                for op in gelu_ops(acc4[t] + 2 * i, gt, gpk + 8 * (t & 1) + i, kk[tt], kk[tt] + 1, kk[tt] + 2):
                    A(op)
            ops.append(pair)
            if i in (3, 7):
                def st(c=i >> 2, t=t, tt=tt, b=b):
                    A(f"s_add_u32 {s(sT0)}, {s(sK)}, {(tt * 112 + b * 2) * 1024}")
                    A.vmem(f"buffer_store_dwordx4 {v(gpk+8*(t&1)+4*c,4)}, {v(vL16)}, {s(SW,4)}, {s(sT0)} offen offset:{c*1024} sc1", ("Hst", b))
                ops.append(st)
        if t == 2:
            ops.append(lambda: signal(N_G, own_slot(FG), ("Hst", 0)))
    fill = [f for n in pend for f in refill_p(n + NRING)]
    for n in range(nxt, 44):
        fill.append(lambda n=n: sread(n))
        if n > nxt:
            fill += refill_p(n - 1 + NRING)
    weave(A, ops, fill)
    if nxt < 44:
        refill(43 + NRING)
    vHH = 26
    A(f"""s_mul_i32 {s(sT0)}, {s(sGT)}, 4
          s_add_u32 {s(sT0)}, {s(sT0)}, {s(sW)}
          s_mul_i32 {s(sT0)}, {s(sT0)}, {28 * 1024}
          v_add_u32 {v(vHH)}, {s(sT0)}, {v(vL16)}
          s_xor_b32 {s(sT0)}, {s(sGT)}, 1
          s_mul_i32 {s(sT0)}, {s(sT0)}, 4
          s_add_u32 {s(sT0)}, {s(sT0)}, {s(sW)}
          s_mul_i32 {s(sT0)}, {s(sT0)}, {28 * 1024}
          v_add_u32 {v(vHH+1)}, {s(sT0)}, {v(vL16)}""")
    acc6 = [64, 80, 96, 112]
    for i in range(8):
        A(f"v_lshlrev_b32 {v(64+2*i)}, 16, {v(vX1P+i)}\nv_and_b32 {v(65+2*i)}, 0xffff0000, {v(vX1P+i)}")
    stamp()
    cut("w4")

    def setup_tb(base, inv):
        def f():
            A(f"""s_lshl_b32 {s(sT0)}, {s(sTB)}, 10
                  s_add_u32 {s(sT0)}, {s(sT0)}, {base}
                  v_lshlrev_b32 {v(vT1)}, 7, {v(vLANE)}
                  v_add_u32 {v(vT1)}, {s(sT0)}, {v(vT1)}
                  s_mov_b32 {s(sINV)}, {inv}
                  s_mov_b32 {s(sINV+1)}, -1""")
            lanes_to(vT1)
        return f
    peek_issue(setup_tb(FG, 0xffffff01), 34, 36)
    vO, vOUT = 28, 30
    A(f"""s_lshl_b32 {s(sT0)}, {s(sGT)}, 2
          s_add_u32 {s(sT0)}, {s(sT0)}, {s(sW)}
          s_lshl_b32 {s(sT0)}, {s(sT0)}, 13
          v_add_u32 {v(vO)}, {s(sT0)}, {v(vL16)}
          v_xor_b32 {v(vO+1)}, 0x8000, {v(vO)}
          v_and_b32 {v(32)}, 31, {v(vLANE)}
          s_lshl_b32 {s(sT0)}, {s(sGT)}, 5
          v_add_u32 {v(32)}, {s(sT0)}, {v(32)}
          v_mul_u32_u24 {v(32)}, 896, {v(32)}
          v_lshrrev_b32 {v(33)}, 5, {v(vLANE)}
          v_lshl_add_u32 {v(32)}, {v(33)}, 4, {v(32)}
          s_lshl_b32 {s(sT0)}, {s(sT4)}, 6
          v_add_u32 {v(vOUT)}, {s(sT0)}, {v(32)}""")
    signal(N_G2, own_slot(FG2), ("Hst", 1))
    peek_check(34, 36)
    stamp()
    hslots = [16, 20, 32, 36, 40, 44, 48, 52, 56, 60]
    NH = len(hslots)

    def bload(n):
        p, sl = n >> 1, n & 1
        if n < 56:
            if p % 2 == 0 and sl == 0:
                rot7(sRH, (p % 14) // 2, 4096, None)
                A(f"s_add_u32 {s(sV)}, {s(sRH)}, {HH}")
            addr, imm = vHH + sl, (2 * (p // 14) + p % 2) * 1024
        else:
            if p % 4 == 0 and sl == 0:
                A(f"s_mov_b32 {s(sV)}, {OB + 1024 * (p - 28)}")
            addr, imm = vO + sl, (p & 3) * 1024
        A.vmem(f"buffer_load_dwordx4 {v(hslots[n % NH], 4)}, {v(addr)}, {s(SW,4)}, {s(sV)} offen offset:{imm} sc1", ("H", n))

    def slotoffs(first):
        return [(0, i * 1024) if i < 14 else (1, (i - 14) * 1024) for i in range(first, first + 12)]

    vRW2 = [24, 25]
    for n in range(NH):
        bload(n)
    h2out = []
    for i in range(12):
        b, o = slotoffs(0)[i]
        h2out.append(lambda i=i, b=b, o=o: A.ds(f"ds_write_b128 {v(vRW2[b])}, {v(80 + 4 * i, 4)} offset:{o}", "red"))
    h2out.append(lambda: arrive(C_R2))
    for j in range(36):
        A.wait_vm(("H", 2 * j + 1))
        A.wait_lg(("s", 28 + j))
        if 2 * j + NH in (28, 56):
            peek_check()

        def mm(sl):
            d = v(acc6[sl], 16) if j < 28 else a(16 * sl, 16)
            mfma(d, a(sreg(28 + j, sl >> 1), 4), v(hslots[(2 * j + (sl & 1)) % NH], 4), 0 if (j == 0 and sl) or j == 28 else None)
        rd = sread_p(43 + j) if 1 <= j <= 20 else [None, None]
        rf = (refill_p(43 + j - 1 + NRING) if j >= 2 else []) or [None, None]
        ld = [(lambda n=n: bload(n)) if n < 72 else None for n in (2 * j + NH, 2 * j + NH + 1)]
        wr = [h2out.pop(0) if j >= 30 and h2out else None for _ in range(3)]
        for sl, todo in ((0, [rf[0], wr[0]]), (2, [ld[0], rd[0], wr[1]]), (1, [rf[1], wr[2]]), (3, [ld[1], rd[1]])):
            mm(sl)
            for f in todo:
                if f:
                    f()
        if 2 * j + NH == 22:
            peek_issue(setup_tb(FG2, 0xffffff01))
        if 2 * j + NH == 50:
            peek_issue(setup_tb(FO, 0xffffff00))
        if j == 27:
            stamp()
        if j == 29:
            A.drain_lg()
            A(f"v_add_u32 {v(24)}, {s(sPA)}, {v(vL16)}\nv_add_u32 {v(25)}, {s(sPB)}, {v(vL16)}")
    assert not h2out
    stamp()

    def mk2(sl):
        A(f"""s_xor_b32 {s(sT0)}, {s(sW)}, {sl}
              s_mul_i32 {s(sT1)}, {s(sT0)}, 14336
              s_mul_i32 {s(sT0)}, {s(sT0)}, 11264
              s_add_u32 {s(sT0)}, {s(sT0)}, {LQ}
              v_add_u32 {v(14+2*sl)}, {s(sT1)}, {v(vL16)}
              v_add_u32 {v(15+2*sl)}, {s(sT0)}, {v(vL16)}""")
        return [14 + 2 * sl, 15 + 2 * sl]

    vG = 64
    reduce_in(vG, 80, C_R2, mk2, slotoffs(0),
              lambda: reduce_out([("a", 16), ("a", 32), ("a", 48)], C_R3, vRW2, slotoffs(12)))
    for i in range(8):
        y = vG + 2 * i
        A(f"""v_mul_f32 {v(80)}, {f32(-LOG2E)}, {v(y)}
              v_mul_f32 {v(81)}, {f32(-LOG2E)}, {v(y+1)}
              v_exp_f32 {v(80)}, {v(80)}
              v_exp_f32 {v(81)}, {v(81)}
              v_add_f32 {v(80)}, 1.0, {v(80)}
              v_add_f32 {v(81)}, 1.0, {v(81)}
              v_rcp_f32 {v(80)}, {v(80)}
              v_rcp_f32 {v(81)}, {v(81)}
              v_mul_f32 {v(y)}, {v(y)}, {v(80)}
              v_mul_f32 {v(y+1)}, {v(y+1)}, {v(81)}
              v_accvgpr_read_b32 {v(32+2*i)}, {a(2*i)}
              v_accvgpr_read_b32 {v(33+2*i)}, {a(2*i+1)}""")
    stamp()
    reduce_in(32, 80, C_R3, lambda sl: [14 + 2 * sl, 15 + 2 * sl], slotoffs(12))
    for i in range(8):
        y = 32 + 2 * i
        A(f"""v_lshlrev_b32 {v(80)}, 16, {v(vXD+i)}
              v_and_b32 {v(81)}, 0xffff0000, {v(vXD+i)}
              v_fma_f32 {v(80)}, {v(y)}, {v(vG+2*i)}, {v(80)}
              v_fma_f32 {v(81)}, {v(y+1)}, {v(vG+2*i+1)}, {v(81)}
              v_cvt_pk_bf16_f32 {v(84+i)}, {v(80)}, {v(81)}""")
    A("s_nop 1")
    for p in range(2):
        A(f"v_permlane32_swap_b32 {v(84+4*p)}, {v(86+4*p)}\nv_permlane32_swap_b32 {v(85+4*p)}, {v(87+4*p)}")
    for p in range(2):
        A.vmem(f"buffer_store_dwordx4 {v(84+4*p,4)}, {v(vOUT)}, {s(SOUT,4)}, 0 offen offset:{32*p}", "out")
    stamp()
    dump_stamps()
    A("s_endpgm")

    for blk in late:
        A.lg = []
        blk()
    A.label("L_kv")
    A.vm = list(vm_kv)
    A.lg = []
    A(f"""v_mul_u32_u24 {v(vT0)}, 3584, {v(vC8)}
          s_min_u32 {s(sT2)}, {s(sTB)}, 27
          s_lshl_b32 {s(sT0)}, {s(sT2)}, 7
          s_mul_i32 {s(sT1)}, {s(sW)}, {112 * 3584}
          s_add_u32 {s(sT0)}, {s(sT0)}, {s(sT1)}
          v_add3_u32 {v(vW3)}, {v(vT0)}, {v(vC7)}, {s(sT0)}""")
    for i in range(16):
        A(f"v_sub_f32 {v(acc+i)}, {v(acc+i)}, {v(cs+i)}\nv_mul_f32 {v(acc+i)}, {v(acc+i)}, {v(vR)}")
    A(f"s_mov_b64 exec, {s(sHI,2)}")
    for i in range(12, 16):
        A(f"v_mov_b32 {v(acc+i)}, 0")
    A("s_mov_b64 exec, -1")
    for i in range(8):
        A(f"v_cvt_pk_bf16_f32 {v(pk+i)}, {v(acc+2*i)}, {v(acc+2*i+1)}")
    A(f"""s_lshl_b32 {s(sT4)}, {s(sGT)}, 12
          s_cmp_eq_u32 {s(sP)}, 1
          s_cbranch_scc1 L_v
          s_mov_b64 exec, {s(sHI,2)}
          v_mov_b32 {v(pk+6)}, {ONES}
          v_mov_b32 {v(pk+7)}, 0x3f80
          s_mov_b64 exec, -1
          buffer_store_dwordx4 {v(pk,4)}, {v(vL16)}, {s(SW,4)}, {s(sT4)} offen sc1
          buffer_store_dwordx4 {v(pk+4,4)}, {v(vL16)}, {s(SW,4)}, {s(sT4)} offen offset:1024 sc1
          v_mul_f32 {v(72)}, {v(acc)}, {v(acc)}""")
    for i in range(1, 16):
        A(f"v_fma_f32 {v(72)}, {v(acc+i)}, {v(acc+i)}, {v(72)}")
    halves(72, 73)
    A(f"""v_add_f32 {v(72)}, {v(72)}, {v(73)}
          v_mov_b32 {v(73)}, {L_KM}
          ds_max_u32 {v(73)}, {v(72)}
          s_branch L_kvdone""")
    A.label("L_v")
    A(f"""s_mov_b64 exec, {s(sHI,2)}
          v_mov_b32 {v(pk+6)}, 0x3f80
          s_mov_b64 exec, -1
          s_lshl_b32 {s(sT0)}, {s(sTT)}, 12
          s_add_u32 {s(sT0)}, {s(sT0)}, {L_VT}
          v_and_b32 {v(72)}, 31, {v(vLANE)}
          v_bfe_u32 {v(74)}, {v(72)}, 1, 1
          v_lshlrev_b32 {v(74)}, 6, {v(74)}
          v_lshrrev_b32 {v(73)}, 5, {v(vLANE)}
          v_lshl_add_u32 {v(73)}, {v(73)}, 3, {v(74)}
          v_lshl_add_u32 {v(72)}, {v(72)}, 7, {v(73)}
          v_add_u32 {v(72)}, {s(sT0)}, {v(72)}
          v_add3_u32 {v(73)}, {v(vTRD)}, {v(103)}, {s(sT0)}""")
    for g in range(4):
        A.ds(f"ds_write_b64 {v(72)}, {v(pk+2*g,2)} offset:{16*g}", "vt")
    for c in range(2):
        tr(("v", 76 + 4 * c), 73, c * 2048, 1024, "vr")
    A.drain_lg()
    A(f"buffer_store_dwordx4 {v(76,4)}, {v(vL16)}, {s(SW,4)}, {s(sT4)} offen offset:2048 sc1")
    A(f"buffer_store_dwordx4 {v(80,4)}, {v(vL16)}, {s(SW,4)}, {s(sT4)} offen offset:3072 sc1")
    A.label("L_kvdone")
    A.vm += ["kv", "kv"]
    nonce_take(30)
    signal(N_K, f"s_lshl_b32 {s(sT0)}, {s(sTB)}, 7\ns_add_u32 {s(sT0)}, {s(sT0)}, {FK}", "kv", payload=L_KM)
    stamps["n"] = 2
    stamp()
    await_cnt(C_PA, 8)
    for j in range(7):
        image(sPA, j * 2048, vW3, SQ, lambda e, j=j: f"s_mov_b32 {s(sT0)}, {j * 16 * 3584 + e}", 3584, "W3")
    A(f"""s_lshl_b32 {s(sT0)}, {s(sTB)}, 2
          s_add_u32 {s(sT0)}, {s(sT0)}, {s(sW)}
          s_mul_i32 {s(sT1)}, {s(sT0)}, 12544
          s_mul_i32 {s(sT2)}, {s(sT0)}, 3136
          v_lshlrev_b32 {v(74)}, 7, {v(vLANE)}""")
    if "notouch" not in OPT:
        A.vmem(f"buffer_load_dword {v(84)}, {v(74)}, {s(S4,4)}, {s(sT1)} offen", "t")
        A(f"s_add_u32 {s(sT1)}, {s(sT1)}, 8192\ns_bfm_b64 exec, 34, 0")
        A.vmem(f"buffer_load_dword {v(85)}, {v(74)}, {s(S4,4)}, {s(sT1)} offen", "t")
        A("s_bfm_b64 exec, 25, 0")
        A.vmem(f"buffer_load_dword {v(86)}, {v(74)}, {s(SO,4)}, {s(sT2)} offen", "t")
        A("s_mov_b64 exec, -1")
    A(f"v_add3_u32 {v(72)}, {v(vTRD)}, {v(103)}, {s(sPA)}\nv_xor_b32 {v(73)}, 64, {v(72)}")
    A.wait_vm("W3")
    for i in range(14):
        tr(("a", 4 * i), 72 + (i & 1), (i >> 1) * 2048, 1024, ("c", i))
    for i in range(14):
        A.wait_lg(("c", i))
        mfma(v(32 + 16 * (i & 1), 16), v(ones, 4), a(4 * i, 4), 0 if i < 2 else None)
    A(f"""s_lshl_b32 {s(sT0)}, {s(sW)}, 8
          s_add_u32 {s(sT0)}, {s(sT0)}, {LA + 32768}
          v_lshlrev_b32 {v(73)}, 2, {v(vLANE)}
          v_add_u32 {v(74)}, {s(sT0)}, {v(73)}
          s_nop 7
          v_cndmask_b32 {v(72)}, {v(32)}, {v(48)}, {s(sHI,2)}
          ds_write_b32 {v(74)}, {v(72)}""")
    arrive(C_R1)
    A(f"s_cmp_gt_u32 {s(sTB)}, 27\ns_cbranch_scc1 L_kvend\ns_cmp_lg_u32 {s(sW)}, 0\ns_cbranch_scc1 L_kvend")
    await_cnt(C_R1)
    A(f"""ds_read_b32 {v(75)}, {v(74)} offset:256
          ds_read_b32 {v(76)}, {v(74)} offset:512
          ds_read_b32 {v(77)}, {v(74)} offset:768
          s_lshl_b32 {s(sT1)}, {s(sTB)}, 9
          s_add_u32 {s(sT1)}, {s(sT1)}, {CS}
          v_lshlrev_b32 {v(74)}, 3, {v(vLANE)}
          s_waitcnt lgkmcnt(0)
          v_add_f32 {v(72)}, {v(72)}, {v(75)}
          v_add_f32 {v(73)}, {v(76)}, {v(77)}
          buffer_store_dwordx2 {v(72,2)}, {v(74)}, {s(SW,4)}, {s(sT1)} offen sc1
          s_lshl_b32 {s(sT0)}, {s(sTB)}, 7
          s_add_u32 {s(sT0)}, {s(sT0)}, {FC}
          v_mov_b32 {v(vT0)}, {s(sN)}
          v_mov_b32 {v(vT1)}, {s(sN+1)}
          v_mov_b32 {v(vT3)}, 0
          s_waitcnt vmcnt(0)
          s_mov_b64 exec, 1
          buffer_store_dwordx2 {v(vT0,2)}, {v(vT3)}, {s(SW,4)}, {s(sT0)} offen sc1
          s_mov_b64 exec, -1""")
    A.label("L_kvend")
    arrive(C_P4)
    stamp()
    dump_stamps()
    A("s_endpgm")


def att(vm_entry):
    A.label("L_att")
    A.vm = list(vm_entry)
    A.lg = []
    stamps["n"] = 1
    acc, cs, ring, ones = 32, 48, 64, 96
    vM, vR = 8, 9
    srd(SQ, P_WQ, 401408)
    A(f"""s_mul_i32 {s(sT0)}, {s(sCB)}, 112
          s_lshl_b32 {s(sT1)}, {s(sW)}, 3
          v_add_u32 {v(vT0)}, {s(sT1)}, {v(vC8)}
          v_mul_u32_u24 {v(vT0)}, 896, {v(vT0)}
          v_add3_u32 {v(vWQ)}, {v(vT0)}, {v(vC7)}, {s(sT0)}
          s_lshl_b32 {s(sPA)}, {s(sW)}, 10
          s_mul_i32 {s(sT0)}, {s(sP)}, 56
          v_add_u32 {v(103)}, {s(sT0)}, {v(103)}
          v_xor_b32 {v(103)}, {v(103)}, {v(102)}
          v_add_u32 {v(vT0)}, {v(vTRN)}, {v(103)}
          v_add_u32 {v(10)}, {LQ}, {v(vT0)}
          v_add_u32 {v(11)}, {LA}, {v(vT0)}""")
    nq0 = int(OPT.get("nq0", 11))
    for n in range(nq0):
        dma(sPA, LQ + n * 4096, vWQ, SQ, (f"s_mov_b32 {s(sT0)}, {n * 32 * 896}", s(sT0)), "WQ")
    early_stamp(6)
    A.wait_vm("X")
    barrier()
    early_dump()
    stamp()

    def first():
        for n in range(nq0, 14):
            dma(sPA, LQ + n * 4096 if n < 11 else LA + (n - 11) * 4096, vWQ, SQ, (f"s_mov_b32 {s(sT0)}, {n * 32 * 896}", s(sT0)), "WQ")
        nonce_issue(12)
        touch("p1")
    stat_part(lambda: None)
    barrier()
    first()
    stat_read()
    for ks in range(28):
        A.ds(f"ds_read_b128 {a(4*ks,4)}, {v(vXF + (ks & 3))} offset:{(ks >> 2) * 8192}", ("x", ks))
    stat_fin(vM, vR)
    A(f"v_add_f32 {v(vR)}, {f32(EPS)}, {v(vR)}\nv_rsq_f32 {v(vR)}, {v(vR)}")
    A.drain_lg()
    arrive(C_PA)
    A(f"v_mul_f32 {v(vR)}, {f32(QSCALE)}, {v(vR)}")
    A.wait_vm(["WQ", "nonce"])
    arrive(C_WQ)
    nonce_take(12)
    await_cnt(C_WQ)
    stamp()

    def wq(ks):
        tr(("v", ring + 4 * (ks % 8)), 10 if ks < 22 else 11, (ks % 22) * 2048, 512, ("w", ks))
    for ks in range(6):
        wq(ks)
    for ks in range(28):
        if ks + 6 < 28:
            wq(ks + 6)
        A.wait_lg(("w", ks))
        mfma(v(acc, 16), v(ring + 4 * (ks % 8), 4), a(4 * ks, 4), 0 if ks == 0 else None)
        mfma(v(cs, 16), v(ring + 4 * (ks % 8), 4), v(ones, 4), 0 if ks == 0 else None)
    vG, vF = 12, 8
    aO, aQ, aK, vV = 0, 48, 80, 72
    O0, S, P = 16, [32, 48], 64
    A(f"""s_lshl_b32 {s(sT0)}, {s(sW)}, 11
          s_add_u32 {s(sT0)}, {s(sT0)}, {L_QG}
          v_add_u32 {v(vG)}, {s(sT0)}, {v(vL16)}
          s_lshl_b32 {s(sT0)}, {s(sW)}, 8
          s_add_u32 {s(sT0)}, {s(sT0)}, {L_QN}
          v_lshlrev_b32 {v(14)}, 2, {v(vLANE)}
          v_add_u32 {v(15)}, {s(sT0)}, {v(14)}""")
    for i in range(16):
        A(f"v_mov_b32 {v(O0+i)}, 0")
    q = acc
    for i in range(16):
        A(f"v_fma_f32 {v(q+i)}, -{v(cs+i)}, {v(vM)}, {v(q+i)}\nv_mul_f32 {v(q+i)}, {v(q+i)}, {v(vR)}")
    A(f"s_mov_b64 exec, {s(sHI,2)}")
    for i in range(12, 16):
        A(f"v_mov_b32 {v(q+i)}, 0")
    A("s_mov_b64 exec, -1")
    for i in range(8):
        A(f"v_cvt_pk_bf16_f32 {v(48+i)}, {v(q+2*i)}, {v(q+2*i+1)}")
    A.ds(f"ds_write_b128 {v(vG)}, {v(48,4)}", "qg")
    A.ds(f"ds_write_b128 {v(vG)}, {v(52,4)} offset:1024", "qg")
    A(f"v_mul_f32 {v(56)}, {v(q)}, {v(q)}")
    for i in range(1, 16):
        A(f"v_fma_f32 {v(56)}, {v(q+i)}, {v(q+i)}, {v(56)}")
    halves(56, 57)
    A(f"v_add_f32 {v(56)}, {v(56)}, {v(57)}")
    A.ds(f"ds_write_b32 {v(15)}, {v(56)}", "qg")
    arrive(C_Q)
    for i in range(48):
        A(f"v_accvgpr_write_b32 {a(aO+i)}, 0")
    for i in range(4):
        A(f"v_mov_b32 {v(P+4+i)}, 0\nv_mov_b32 {v(vV+28+i)}, 0")
    await_cnt(C_Q)
    for sl in range(4):
        A(f"v_xor_b32 {v(104+sl)}, {sl << 11}, {v(vG)}")
    for sl in range(4):
        for c in range(2):
            A.ds(f"ds_read_b128 {a(aQ + 8*sl + 4*c, 4)}, {v(104+sl)} offset:{c*1024}", "q")
    A(f"v_add_u32 {v(14)}, {L_QN}, {v(14)}")
    for sl in range(4):
        A.ds(f"ds_read_b32 {v(108+sl)}, {v(14)} offset:{sl*256}", "q")
    A.drain_lg()
    arrive(C_QD)
    A(f"""v_max3_f32 {v(108)}, {v(108)}, {v(109)}, {v(110)}
          v_max_f32 {v(108)}, {v(108)}, {v(111)}
          s_add_u32 {s(sT0)}, {s(sCB)}, {s(sTB)}
          s_and_b32 {s(sT0)}, {s(sT0)}, 3
          s_lshl_b32 {s(sK)}, {s(sT0)}, 14
          s_add_u32 {s(sV)}, {s(sK)}, 0x4000
          s_and_b32 {s(sV)}, {s(sV)}, 0xffff
          s_lshl_b32 {s(sT0)}, {s(sW)}, 16
          v_add_u32 {v(vF)}, {s(sT0)}, {v(vL16)}
          v_add_u32 {v(vF+1)}, 4096, {v(vF)}
          v_add_u32 {v(vF+2)}, 8192, {v(vF)}
          v_add_u32 {v(vF+3)}, 12288, {v(vF)}""")
    stamp()

    def setup_k():
        A(f"""v_lshlrev_b32 {v(vT1)}, 7, {v(vLANE)}
              v_add_u32 {v(vT1)}, {FK}, {v(vT1)}
              s_mov_b64 {s(sINV,2)}, {s(sHI,2)}""")
        lanes_to(vT1)

    def pay_k():
        A(f"v_mov_b32 {v(113)}, {L_KP}\nds_max_u32 {v(113)}, {v(114)}")
    gate(G_K, setup_k, 112, payload=pay_k)
    stamp()

    hi = "prl" not in OPT

    def kload(slot, base):
        for c in range(2):
            A.vmem(f"buffer_load_dwordx4 {a(aK + 8*slot + 4*c, 4)}, {v(vF+slot)}, {s(SW,4)}, {s(base)} offen offset:{c*1024} sc1", "K")

    def vload(slot, base):
        for c in range(2):
            A.vmem(f"buffer_load_dwordx4 {v(vV + 8*slot + 4*c, 4)}, {v(vF+slot)}, {s(SW,4)}, {s(base)} offen offset:{2048 + c*1024} sc1", "V")

    A(f"s_setprio 3\nv_mov_b32 {v(113)}, {L_KP}\nds_read_b32 {v(112)}, {v(113)}")
    for slot in range(3):
        kload(slot, sK)
        vload(slot, sK)
        if slot == 0:
            A("s_setprio " + OPT.get("aprio", "0"))
    kload(3, sK)
    A(f"""s_waitcnt lgkmcnt(0)
          v_mul_f32 {v(108)}, {v(112)}, {v(108)}
          v_cmp_nge_f32 vcc, {f32(-1.0 if FORCE_SLOW else BOUND2)}, {v(108)}
          s_cmp_lg_u64 vcc, 0
          s_cbranch_scc1 L_slow""")
    A.label("L_fast")
    A("s_waitcnt vmcnt(12)")

    def Oreg(sl):
        return v(O0, 16) if sl == 0 else a(aO + 16 * (sl - 1), 16)

    mfma(v(S[0], 16), a(aK, 4), a(aQ, 4), 0)
    mfma(v(S[0], 16), a(aK + 4, 4), a(aQ + 4, 4))
    A(f"s_mov_b32 {s(sT4)}, 4\ns_nop 7\ns_nop 1")
    A.label("L_aloop")

    def period(sg, qt):
        cur, nxt = S[qt & 1], S[(qt + 1) & 1]
        ks = sg if qt < 3 else (sg + 1) & 3
        vs = sg if qt > 0 else (sg - 1) & 3
        nq, pq = (qt + 1) & 3, (qt - 1) & 3
        e = lambda i: A(f"v_exp_f32 {v(cur+i)}, {v(cur+i)}")
        c = lambda i: A(f"v_cvt_pk_bf16_f32 {v(P+i)}, {v(cur+2*i)}, {v(cur+2*i+1)}")
        if qt == 3:
            A("s_waitcnt vmcnt(10)")
        mfma(v(nxt, 16), a(aK + 8 * ks, 4), a(aQ + 8 * nq, 4), 0)
        if qt in (1, 3):
            if hi:
                A("s_setprio 3")
            if qt == 3:
                kload(sg, sV)
            else:
                vload((sg - 1) & 3, sK if sg == 0 else sV)
            if hi:
                A("s_setprio " + OPT.get("aprio", "0"))
        e(0); e(1); e(2); e(3)
        mfma(Oreg(pq), v(vV + 8 * vs + 4, 4), v(P + 4, 4))
        c(0); c(1); e(4); e(5); e(6); e(7)
        mfma(v(nxt, 16), a(aK + 8 * ks + 4, 4), a(aQ + 8 * nq + 4, 4))
        c(2); c(3); e(8); e(9); e(10); e(11)
        if qt == 0:
            A("s_waitcnt vmcnt(10)")
        mfma(Oreg(qt), v(vV + 8 * sg, 4), v(P, 4))
        c(4); c(5); e(12); e(13); e(14); e(15); c(6); c(7)

    for sg in range(4):
        for qt in range(4):
            period(sg, qt)
            A.vm = []
    A(f"""s_mov_b32 {s(sK)}, {s(sV)}
          s_add_u32 {s(sV)}, {s(sV)}, 0x4000
          s_and_b32 {s(sV)}, {s(sV)}, 0xffff
          s_cmp_eq_u32 {s(sT4)}, 2
          s_cselect_b32 {s(sV)}, {OOB}, {s(sV)}
          s_sub_u32 {s(sT4)}, {s(sT4)}, 1
          s_cmp_lg_u32 {s(sT4)}, 0
          s_cbranch_scc1 L_aloop""")
    mfma(Oreg(3), v(vV + 28, 4), v(P + 4, 4))
    stamp()
    await_cnt(C_P4)
    A(f"""s_mul_i32 {s(sT0)}, {s(sW)}, 12288
          s_add_u32 {s(sT0)}, {s(sT0)}, {LA}
          v_add_u32 {v(8)}, {s(sT0)}, {v(vL16)}
          s_nop 7""")
    offs = [(0, i * 1024) for i in range(12)]
    reduce_out([("a", aO), ("a", aO + 16), ("a", aO + 32)], C_MRG, [8], offs)

    def mk(sl):
        A(f"""s_xor_b32 {s(sT0)}, {s(sW)}, {sl}
              s_mul_i32 {s(sT0)}, {s(sT0)}, 12288
              s_add_u32 {s(sT0)}, {s(sT0)}, {LA}
              v_add_u32 {v(8+sl)}, {s(sT0)}, {v(vL16)}""")
        return [8 + sl]
    reduce_in(O0, [32, 48, 104], C_MRG, mk, offs)
    A(f"v_mov_b32 {v(32)}, {v(O0+12)}")
    halves(32, 33)
    A(f"""v_rcp_f32 {v(33)}, {v(33)}
          s_lshl_b32 {s(sT0)}, {s(sGT)}, 4
          s_lshl_b32 {s(sT1)}, {s(sCB)}, 1
          s_add_u32 {s(sT0)}, {s(sT0)}, {s(sT1)}
          s_add_u32 {s(sT0)}, {s(sT0)}, {s(sP)}
          s_lshl_b32 {s(sT0)}, {s(sT0)}, 11
          s_add_u32 {s(sT4)}, {s(sT0)}, {OB}""")
    for i in range(16):
        A(f"v_mul_f32 {v(O0+i)}, {v(O0+i)}, {v(33)}")
    for i in range(8):
        A(f"v_cvt_pk_bf16_f32 {v(40+i)}, {v(O0+2*i)}, {v(O0+2*i+1)}")
    A(f"s_mov_b64 exec, {s(sHI,2)}\nv_mov_b32 {v(46)}, 0\nv_mov_b32 {v(47)}, 0\ns_mov_b64 exec, -1")
    A(f"buffer_store_dwordx4 {v(40,4)}, {v(vL16)}, {s(SW,4)}, {s(sT4)} offen sc1")
    A(f"buffer_store_dwordx4 {v(44,4)}, {v(vL16)}, {s(SW,4)}, {s(sT4)} offen offset:1024 sc1")
    signal(N_O, own_slot(FO))
    stamp()
    dump_stamps()
    A("s_endpgm")

    A.label("L_slow")
    mx, kf = 104, 112
    for sl in range(4):
        A(f"v_mov_b32 {v(mx+sl)}, 0xff800000")
    A(f"s_mov_b32 {s(sT4)}, 0")
    A.label("L_sloop")
    A(f"""buffer_load_dwordx4 {v(kf,4)}, {v(vF)}, {s(SW,4)}, {s(sT4)} offen sc1
          buffer_load_dwordx4 {v(kf+4,4)}, {v(vF)}, {s(SW,4)}, {s(sT4)} offen offset:1024 sc1
          s_add_u32 {s(sT4)}, {s(sT4)}, 4096
          s_waitcnt vmcnt(0)""")
    for sl in range(4):
        mfma(v(S[0], 16), v(kf, 4), a(aQ + 8 * sl, 4), 0)
        mfma(v(S[0], 16), v(kf + 4, 4), a(aQ + 8 * sl + 4, 4))
        A("s_nop 11")
        for i in range(8):
            A(f"v_max3_f32 {v(mx+sl)}, {v(mx+sl)}, {v(S[0]+2*i)}, {v(S[0]+2*i+1)}")
    A(f"s_cmp_lt_u32 {s(sT4)}, 0x10000\ns_cbranch_scc1 L_sloop")
    A(f"v_and_b32 {v(kf)}, 31, {v(vLANE)}\nv_lshlrev_b32 {v(kf)}, 2, {v(kf)}\nv_add_u32 {v(kf)}, {L_MX}, {v(kf)}")
    for sl in range(4):
        halves(mx + sl, kf + 1)
        A(f"""v_max_f32 {v(mx+sl)}, {v(mx+sl)}, {v(kf+1)}
              s_xor_b32 {s(sT0)}, {s(sW)}, {sl}
              s_lshl_b32 {s(sT0)}, {s(sT0)}, 7
              v_add_u32 {v(kf+4+sl)}, {s(sT0)}, {v(kf)}""")
    A(f"ds_write_b32 {v(kf+4)}, {v(mx)}")
    arrive(C_MAX)
    await_cnt(C_MAX)
    for sl in range(1, 4):
        A(f"ds_max_f32 {v(kf+4+sl)}, {v(mx+sl)}")
    arrive(C_MAX)
    await_cnt(C_MAX, 8)
    t = 120
    for sl in range(4):
        A(f"""ds_read_b32 {v(t)}, {v(kf+4+sl)}
              s_waitcnt lgkmcnt(0)
              v_sub_f32 {v(t)}, 0, {v(t)}
              v_cvt_pk_bf16_f32 {v(t+1)}, {v(t)}, {v(t)}
              v_and_b32 {v(t+1)}, 0xffff0000, {v(t+1)}
              v_sub_f32 {v(t+2)}, {v(t)}, {v(t+1)}
              v_cvt_pk_bf16_f32 {v(t+3)}, {v(t)}, {v(t+2)}
              v_and_b32 {v(t+1)}, 0xffff0000, {v(t+3)}
              v_sub_f32 {v(t+2)}, {v(t+2)}, {v(t+1)}
              v_cvt_pk_bf16_f32 {v(t+2)}, {v(t+2)}, 0
              s_mov_b64 exec, {s(sHI,2)}
              v_accvgpr_write_b32 {a(aQ + 8*sl + 6)}, {v(t+3)}
              v_accvgpr_write_b32 {a(aQ + 8*sl + 7)}, {v(t+2)}
              s_mov_b64 exec, -1""")
    A("s_nop 1\ns_branch L_fast")


def header():
    ref = open(f"cdna_kernels/{NAME}.s.ref").read().split("\n")
    out = [l for l in ref if l.startswith(";") and "@launch" not in l and "Override" not in l and "grid=ceil" not in l]
    out.append(f"; @launch grid=(256,1,1) block=(512,1,1) lds={LDS_SIZE}")
    out += ['.amdgcn_target "amdgcn-amd-amdhsa--gfx950"', ".text", f".globl {NAME}_kernel", ".p2align 8",
            f".type {NAME}_kernel,@function", f"{NAME}_kernel:"]
    return "\n".join(out) + "\n"


def footer():
    return f"""L_end:
    s_endpgm
L_code_end:
.section .rodata,"a"
.p2align 6
.amdhsa_kernel {NAME}_kernel
  .amdhsa_next_free_vgpr 256
  .amdhsa_next_free_sgpr 102
  .amdhsa_accum_offset 128
  .amdhsa_group_segment_fixed_size 0
  .amdhsa_kernarg_size 104
  .amdhsa_user_sgpr_count 2
  .amdhsa_user_sgpr_kernarg_segment_ptr 1
  .amdhsa_system_sgpr_workgroup_id_x 1
.end_amdhsa_kernel
"""


if __name__ == "__main__":
    vm0 = prologue()
    mlp(vm0)
    att(vm0)
    out = [x for x in sys.argv[1:] if not x.startswith("--")]
    open(out[0] if out else "k.s", "w").write(header() + A.text() + footer())
```

```python
import math
import sys
from asmlib import Asm, a, f32, s, v, weave

NAME = "recurrent_scan__grouped_kv_mqa__mixer_s_mlp__prompt"
PROFILE = "--prof" in sys.argv or "--cyc" in sys.argv
CLOCK = "s_memtime" if "--cyc" in sys.argv else "s_memrealtime"
FORCE_SLOW = "--slow" in sys.argv
OPT = {x[2:].split("=")[0]: (x.split("=") + [""])[1] for x in sys.argv if x.startswith("--")}


class Stop(Exception):
    pass


def cut(name):
    if OPT.get("mlpstop") == name:
        arrive(C_P4)
        A.drain_vm()
        dump_stamps()
        A("s_endpgm")


KV, CS, FK, FC, FH, FX, FG, FO, FG2 = 0x0, 0x40000, 0x48000, 0x49000, 0x50000, 0x58000, 0x60000, 0x68000, 0x70000
TS = 0x80000
HB, ST, X1, HH, OB = 0x100000, 0x2C0000, 0x300000, 0x500000, 0xC00000
WS_SIZE = 0xE00000
OOB = 0x7FFF0000
LX, LA, LQ, LS = 0, 57344, 114688, 159744
LDS_SIZE = 163840
(C_PA, C_W2, C_WQ, C_Q, C_QD, C_MAX, C_MRG, C_R1, C_XA, C_XB, C_P4, C_R2, C_R3, N_H, N_X, N_G, N_G2, N_O, N_K, N_C,
 G_H, G_X, G_G, G_G2, G_O, G_K, L_KM, L_KP) = [LS + 4 * i for i in range(28)]
L_QN, L_STAT = LS + 1024, LS + 2048
L_MX = LS + 256
L_QG, L_VT = LA + 16384, LA + 24576
NRING = 12
assert L_QG % 8192 == 0
LOG2E = 1.4426950408889634
QSCALE = 28 ** -0.5 * LOG2E
GC1 = -2 * LOG2E * math.sqrt(2 / math.pi)
GC2 = GC1 * 0.044715
EPS = 1e-5
BOUND2 = 3500.0
ONES = 0x3F803F80
GSPIN, LSPIN = 20000, 400000
SX, SA, SQ, SW, S4, SO, SOUT, SD, S2 = 4, 8, 12, 16, 20, 24, 28, 32, 36
P_X, P_WQ, P_WK, P_WV, P_WO, P_W1, P_W2, P_W3, P_W4, P_OUT, P_DBG, P_WS = 40, 42, 44, 46, 48, 52, 54, 56, 58, 60, 62, 64
sN = 66
sW8, sW, sTB, sCB, sTT, sP, sGT = 68, 69, 70, 71, 72, 73, 74
sHI = 76
sINV = 78
sT0, sT1, sT2, sT3, sT4, sT5 = 80, 81, 82, 83, 84, 85
sPA, sPB, sB1, sB4, sSP = 86, 87, 88, 89, 90
sK, sV, sR, sRG, sRH = 91, 92, 93, 96, 97
sTS = 40
vLANE, vL16, vTRN, vTRD, vT0, vT1, vT2, vT3 = 0, 1, 2, 3, 4, 5, 6, 7
MF = "v_mfma_f32_32x32x16_bf16"

A = Asm()
stamps = {"n": 0}


def stamp():
    if PROFILE:
        i = stamps["n"]
        stamps["n"] += 1
        A(f"s_waitcnt lgkmcnt(0)\n{CLOCK} {s(94,2)}\ns_waitcnt lgkmcnt(0)\ns_mov_b32 {s(sTS+i)}, s94")
        A.lg = []


def early_stamp(i):
    if "startup" in OPT:
        A(f"s_memtime {s(94,2)}\ns_waitcnt lgkmcnt(0)\ns_mov_b32 {s([98, 99, 100, 101, 3, 75, 97][i])}, s94")


def early_dump():
    if "startup" in OPT:
        for i, r in enumerate([98, 99, 100, 101, 3, 75, 97]):
            A(f"s_mov_b32 {s(sTS+i)}, {s(r)}")
        stamps["n"] = 7
        stamp()
        dump_stamps()
        A("s_endpgm")


def dump_stamps():
    if PROFILE:
        n = stamps["n"]
        A(f"s_lshl_b32 {s(sT0)}, s2, 3\ns_add_u32 {s(sT0)}, {s(sT0)}, {s(sW8)}\ns_lshl_b32 {s(sT0)}, {s(sT0)}, 7\n"
          f"s_add_u32 {s(sT0)}, {s(sT0)}, {TS}\nv_mov_b32 {v(vT1)}, 0")
        for i in range(n):
            A(f"v_mov_b32 {v(vT0)}, {s(sTS+i)}\nbuffer_store_dword {v(vT0)}, {v(vT1)}, {s(SW,4)}, {s(sT0)} offen offset:{4*i}")
        A.drain_vm()
    stamps["n"] = 0


def srd(r, ptr, size):
    A(f"s_mov_b32 {s(r)}, {s(ptr)}\ns_mov_b32 {s(r+1)}, {s(ptr+1)}\ns_mov_b32 {s(r+2)}, {size}\ns_mov_b32 {s(r+3)}, 0x20000")


def mfma(d, x, y, c=None):
    A(f"{MF} {d}, {x}, {y}, {d if c is None else c}")


def dma(m0_base, m0_off, voff, desc, soff, tag, imm=0, sc=""):
    if m0_base is None:
        A(f"s_mov_b32 m0, {m0_off - imm}")
    else:
        A(f"s_add_u32 m0, {s(m0_base)}, {m0_off - imm}")
    pre, so = soff
    if pre:
        A(pre)
    else:
        A("s_nop 0")
    A.vmem(f"buffer_load_dwordx4 {v(voff)}, {s(desc,4)}, {so} offen" + (f" offset:{imm}" if imm else "") + f"{sc} lds", tag)


def tr(dst, addr, off, second, tag):
    k, i = dst
    r = v if k == "v" else a
    A.ds(f"ds_read_b64_tr_b16 {r(i,2)}, {v(addr)} offset:{off}", tag)
    A.ds(f"ds_read_b64_tr_b16 {r(i+2,2)}, {v(addr)} offset:{off+second}", tag)


def arrive(cnt):
    A(f"s_mov_b64 exec, 1\nv_mov_b32 {v(vT0)}, {cnt}\nv_mov_b32 {v(vT1)}, 1")
    A.ds(f"ds_add_u32 {v(vT0)}, {v(vT1)}", "cnt")
    A("s_mov_b64 exec, -1")


def await_cnt(cnt, target=4):
    lp, ok = A.newlabel("ls"), A.newlabel("lk")
    A(f"v_mov_b32 {v(vT0)}, {cnt}\ns_mov_b32 {s(sSP)}, 0")
    A.label(lp)
    A(f"""ds_read_b32 {v(vT1)}, {v(vT0)}
          s_add_u32 {s(sSP)}, {s(sSP)}, 1
          s_waitcnt lgkmcnt(0)
          v_readfirstlane_b32 {s(sT0)}, {v(vT1)}
          s_cmp_ge_u32 {s(sT0)}, {target}
          s_cbranch_scc1 {ok}
          {"s_sleep " + OPT["lsleep"] if "lsleep" in OPT else ""}
          s_cmp_lt_u32 {s(sSP)}, {LSPIN}
          s_cbranch_scc1 {lp}""")
    A.label(ok)
    A.lg = []


def gate(go, setup, tmp, payload=None):
    lp, ok, rest = A.newlabel("gs"), A.newlabel("gk"), A.newlabel("gw")
    A(f"s_cmp_lg_u32 {s(sW)}, 0\ns_cbranch_scc1 {rest}")
    setup()
    A(f"s_mov_b32 {s(sSP)}, 0")
    A.label(lp)
    n = 4 if payload else 2
    A(f"""buffer_load_dwordx{n} {v(tmp,n)}, {v(vT2)}, {s(SW,4)}, 0 offen sc1
          s_add_u32 {s(sSP)}, {s(sSP)}, 1
          s_waitcnt vmcnt(0)
          v_cmp_eq_u64 vcc, {s(sN,2)}, {v(tmp,2)}
          s_or_b64 vcc, vcc, {s(sINV,2)}
          s_cmp_eq_u64 vcc, -1
          s_cbranch_scc1 {ok}
          s_cmp_lt_u32 {s(sSP)}, {GSPIN}
          s_cbranch_scc1 {lp}""")
    A.label(ok)
    if payload:
        payload()
    keep = list(A.lg)
    arrive(go)
    A.lg = keep
    A.label(rest)
    await_cnt(go, 1)


def peek_issue(setup, data=vT0, addr=vT2, n=2):
    setup()
    if addr != vT2:
        A(f"v_mov_b32 {v(addr)}, {v(vT2)}")
    A.vmem(f"buffer_load_dwordx{n} {v(data,n)}, {v(addr)}, {s(SW,4)}, 0 offen sc1", "peek")


def peek_check(data=vT0, addr=vT2, n=2):
    lp, ok = A.newlabel("ps"), A.newlabel("pk")
    A.wait_vm("peek")
    A(f"s_mov_b32 {s(sSP)}, {GSPIN}")
    A.label(lp)
    A(f"""v_cmp_eq_u64 vcc, {s(sN,2)}, {v(data,2)}
          s_or_b64 vcc, vcc, {s(sINV,2)}
          s_cmp_eq_u64 vcc, -1
          s_cbranch_scc1 {ok}
          s_sub_u32 {s(sSP)}, {s(sSP)}, 1
          s_cbranch_scc1 {ok}
          buffer_load_dwordx{n} {v(data,n)}, {v(addr)}, {s(SW,4)}, 0 offen sc1
          s_waitcnt vmcnt(0)
          s_branch {lp}""")
    A.label(ok)


def lanes_to(addr_reg):
    A(f"s_mov_b64 vcc, {s(sINV,2)}\nv_mov_b32 {v(vT3)}, {OOB}\nv_cndmask_b32 {v(vT2)}, {v(addr_reg)}, {v(vT3)}, vcc")


def signal(cnt, soff_expr, tags=None, payload=None):
    skip = A.newlabel("sg")
    if tags is None:
        A.drain_vm()
    else:
        A.wait_vm(tags)
    A(f"""s_mov_b64 exec, 1
          v_mov_b32 {v(vT0)}, {cnt}
          v_mov_b32 {v(vT1)}, 1
          ds_add_rtn_u32 {v(vT1)}, {v(vT0)}, {v(vT1)}""")
    if payload:
        A(f"ds_read_b32 {v(vT2)}, {v(vT0)} offset:{payload - cnt}")
    A(soff_expr)
    A(f"""s_waitcnt lgkmcnt(0)
          v_readfirstlane_b32 {s(sT1)}, {v(vT1)}
          s_cmp_lg_u32 {s(sT1)}, 3
          s_cbranch_scc1 {skip}
          v_mov_b32 {v(vT0)}, {s(sN)}
          v_mov_b32 {v(vT1)}, {s(sN+1)}
          v_mov_b32 {v(vT3)}, 0
          buffer_store_dwordx4 {v(vT0,4)}, {v(vT3)}, {s(SW,4)}, {s(sT0)} offen sc1""")
    A.label(skip)
    A("s_mov_b64 exec, -1\ns_nop 0")
    A.lg = []


def nonce_issue(tmp):
    A(f"v_mov_b32 {v(vT3)}, 0")
    A.vmem(f"buffer_load_dwordx2 {v(tmp,2)}, {v(vT3)}, {s(SD,4)}, 0 offen sc1", "nonce")


def nonce_take(tmp):
    lp, ok = A.newlabel("ns"), A.newlabel("nk")
    A.wait_vm("nonce")
    A(f"s_mov_b32 {s(sSP)}, 0\nv_mov_b32 {v(vT3)}, 0")
    A.label(lp)
    A(f"""v_readfirstlane_b32 {s(sN)}, {v(tmp)}
          v_readfirstlane_b32 {s(sN+1)}, {v(tmp+1)}
          s_add_u32 {s(sSP)}, {s(sSP)}, 1
          s_cmp_lg_u64 {s(sN,2)}, 0
          s_cbranch_scc1 {ok}
          s_cmp_ge_u32 {s(sSP)}, {GSPIN}
          s_cbranch_scc1 {ok}
          buffer_load_dwordx2 {v(tmp,2)}, {v(vT3)}, {s(SD,4)}, 0 offen sc1
          s_waitcnt vmcnt(0)
          s_branch {lp}""")
    A.label(ok)


def halves(x, t):
    A(f"v_mov_b32 {v(t)}, {v(x)}\ns_nop 1\nv_permlane32_swap_b32 {v(x)}, {v(t)}")


def wave_max(x, full):
    for sh in (1, 2, 4, 8):
        A(f"s_nop 1\nv_max_f32_dpp {v(x)}, {v(x)}, {v(x)} row_shr:{sh} row_mask:0xf bank_mask:0xf bound_ctrl:0")
    A(f"s_nop 1\nv_max_f32_dpp {v(x)}, {v(x)}, {v(x)} row_bcast:15 row_mask:0xa bank_mask:0xf")
    if full:
        A(f"s_nop 1\nv_max_f32_dpp {v(x)}, {v(x)}, {v(x)} row_bcast:31 row_mask:0xc bank_mask:0xf")
    A("s_nop 1")


def gelu_ops(y, t, dst, c1, c2, ri):
    o = []
    for e in (0, 1):
        o.append(f"v_mul_f32 {v(t+e)}, {v(y+e)}, {v(y+e)}")
    for e in (0, 1):
        o.append(f"v_fma_f32 {v(t+e)}, {v(t+e)}, {v(c2)}, {v(c1)}")
    for e in (0, 1):
        o.append(f"v_mul_f32 {v(t+e)}, {v(t+e)}, {v(y+e)}")
    for e in (0, 1):
        o.append(f"v_exp_f32 {v(t+e)}, {v(t+e)}")
    for e in (0, 1):
        o.append(f"v_fma_f32 {v(t+e)}, {v(t+e)}, {v(ri)}, {v(ri)}")
    for e in (0, 1):
        o.append(f"v_rcp_f32 {v(t+e)}, {v(t+e)}")
    for e in (0, 1):
        o.append(f"v_mul_f32 {v(t+e)}, {v(t+e)}, {v(y+e)}")
    o.append(f"v_cvt_pk_bf16_f32 {v(dst)}, {v(t)}, {v(t+1)}")
    return o


def ring_addr(slot):
    return (sPA, slot * 2048) if slot < 7 else (sPB, (slot - 7) * 2048)


def reduce_out(srcs, cnt, vbase, offs, fill=()):
    def wr(i):
        k, r = srcs[i // 4]
        reg = (v if k == "v" else a)(r + 4 * (i % 4), 4)
        b, o = offs[i]
        A.ds(f"ds_write_b128 {v(vbase[b])}, {reg} offset:{o}", "red")
        if i == 11:
            arrive(cnt)
    weave(A, [lambda i=i: wr(i) for i in range(12)], list(fill))


def reduce_in(acc, tmp, cnt, mkaddr, offs, between=None):
    tmp = tmp if isinstance(tmp, list) else [tmp, tmp + 16, tmp + 32]
    await_cnt(cnt)
    for sl in (1, 2, 3):
        regs = mkaddr(sl)
        for q in range(4):
            b, o = offs[(sl - 1) * 4 + q]
            A.ds(f"ds_read_b128 {v(tmp[sl-1] + 4*q, 4)}, {v(regs[b])} offset:{o}", ("rd", sl))
    if between:
        between()
    for sl in (1, 2, 3):
        A.wait_lg(("rd", sl))
        for i in range(16):
            A(f"v_add_f32 {v(acc+i)}, {v(acc+i)}, {v(tmp[sl-1] + i)}")


vC8, vC7, vXF, vWQ = 100, 101, 104, 109
SXR = [16, 20, 88, 92, 112, 116, 120]


def image(base, off, voff, desc, sreg_expr, rs, tag, halves_=(0, 1)):
    for h in halves_:
        dma(base, off + h * 1024, voff, desc, (sreg_expr(h * 8 * rs), s(sT0)), tag)


def gaps(mfmas, pieces):
    n, m, done = len(mfmas), len(pieces), 0
    for i, f in enumerate(mfmas):
        f()
        while done < -(-m * (i + 1) // n):
            pieces[done]()
            done += 1


def prologue():
    A(f"""s_cmp_ge_u32 s2, 256
          s_cbranch_scc1 L_end
          s_load_dwordx16 {s(40,16)}, s[0:1], 0
          s_load_dwordx8 {s(56,8)}, s[0:1], 64
          s_load_dwordx2 {s(64,2)}, s[0:1], 96
          s_memrealtime {s(sN,2)}
          {CLOCK + " " + s(98,2) if PROFILE else ""}
          s_getpc_b64 {s(sT2,2)}
          v_lshrrev_b32 {v(vT0)}, 6, v0
          s_lshr_b32 {s(sT0)}, s2, 3
          v_readfirstlane_b32 {s(sW8)}, {v(vT0)}
          v_and_b32 {v(vLANE)}, 63, v0
          v_lshlrev_b32 {v(vT2)}, 7, {v(vLANE)}
          s_and_b32 {s(sT2)}, {s(sT2)}, 0xffffff00""")
    A(f"""s_mul_i32 {s(sT4)}, {s(sT0)}, 57
          s_lshr_b32 {s(sT4)}, {s(sT4)}, 9
          s_mul_i32 {s(sT4)}, {s(sT4)}, 9
          s_sub_u32 {s(sT4)}, {s(sT0)}, {s(sT4)}
          s_lshl_b32 {s(sT4)}, {s(sT4)}, 3
          s_add_u32 {s(sT4)}, {s(sT4)}, {s(sW8)}
          s_lshl_b32 {s(sT4)}, {s(sT4)}, 9
          v_add_u32 {v(vT1)}, {s(sT4)}, {v(vT2)}
          v_min_u32 {v(vT1)}, L_code_end-{NAME}_kernel-4, {v(vT1)}
          s_mov_b64 exec, 15""")
    A.vmem(f"global_load_dword {a(124)}, {v(vT1)}, {s(sT2,2)}", "pf")
    A(f"""s_mov_b64 exec, -1
          s_and_b32 {s(sT1)}, {s(sT0)}, 3
          s_and_b32 {s(sTB)}, s2, 7
          s_lshl_b32 {s(sTB)}, {s(sTB)}, 2
          s_add_u32 {s(sTB)}, {s(sTB)}, {s(sT1)}
          s_lshr_b32 {s(sCB)}, {s(sT0)}, 2
          v_lshlrev_b32 {v(vL16)}, 4, {v(vLANE)}
          v_lshrrev_b32 {v(vC8)}, 3, {v(vLANE)}
          v_lshrrev_b32 {v(vT0)}, 2, {v(vLANE)}
          v_and_b32 {v(vT0)}, 4, {v(vT0)}
          v_xor_b32 {v(vT0)}, {v(vT0)}, {v(vLANE)}
          v_and_b32 {v(vT0)}, 7, {v(vT0)}
          v_lshlrev_b32 {v(vC7)}, 4, {v(vT0)}""")
    A(f"""s_lshl_b32 {s(sT1)}, {s(sT1)}, 1
          s_add_u32 {s(sT1)}, {s(sT1)}, {s(sW8)}
          s_and_b32 {s(sT1)}, {s(sT1)}, 7
          s_lshl_b32 {s(sT4)}, {s(sT1)}, 10
          s_lshl_b32 {s(sT5)}, {s(sT1)}, 3
          v_add_u32 {v(vT1)}, {s(sT5)}, {v(vC8)}
          s_lshl_b32 {s(sT2)}, {s(sCB)}, 7
          s_sub_u32 {s(sT2)}, {s(sT2)}, 128
          v_mul_u32_u24 {v(vT3)}, 896, {v(vT1)}
          v_add3_u32 {v(103)}, {v(vT3)}, {v(vC7)}, {s(sT2)}
          s_and_b32 {s(sW)}, {s(sW8)}, 3
          s_mul_i32 {s(sT1)}, {s(sW)}, 7168
          v_add_u32 {v(vT3)}, {s(sT1)}, {v(vL16)}
          s_mul_i32 {s(sT1)}, {s(sW8)}, 7168
          s_cmp_eq_u32 {s(sCB)}, 0
          s_cselect_b64 vcc, -1, 0
          s_cselect_b32 {s(sT1)}, {s(sT1)}, {s(sT4)}
          s_mov_b32 {s(sT2)}, 1024
          s_cselect_b32 {s(sT3)}, {s(sT2)}, {64 * 896}
          s_cselect_b32 {s(sT5)}, {s(sT2)}, 8192
          v_cndmask_b32 {v(103)}, {v(103)}, {v(vT3)}, vcc
          s_add_u32 m0, {s(sT1)}, {LA}""")
    A(f"""s_lshl_b32 {s(sB1)}, {s(sTB)}, 3
          s_add_u32 {s(sB1)}, {s(sB1)}, {s(sCB)}
          s_lshl_b32 {s(sB1)}, {s(sB1)}, 3
          s_add_u32 {s(sB1)}, {s(sB1)}, {s(sW8)}
          s_mul_i32 {s(sB1)}, {s(sB1)}, 896
          s_mul_i32 {s(sB4)}, {s(sTB)}, 7
          s_add_u32 {s(sB4)}, {s(sB4)}, {s(sW8)}
          s_mul_i32 {s(sB4)}, {s(sB4)}, {2 * 896}
          s_mul_i32 {s(sT0)}, {s(sCB)}, 112
          s_add_u32 {s(sB4)}, {s(sB4)}, {s(sT0)}
          s_cmp_eq_u32 {s(sW8)}, 7
          s_cselect_b32 {s(sB4)}, {OOB}, {s(sB4)}
          v_lshrrev_b32 {v(102)}, 1, {v(vLANE)}
          v_mul_u32_u24 {v(102)}, 896, {v(102)}
          v_and_b32 {v(vT3)}, 1, {v(vLANE)}
          v_mul_u32_u24 {v(vT3)}, 120, {v(vT3)}
          v_add_u32 {v(102)}, {v(102)}, {v(vT3)}
          s_mov_b32 {s(SX+2)}, 1835008
          s_mov_b32 {s(SX+3)}, 0x20000
          s_mov_b32 {s(SQ+2)}, 401408
          s_mov_b32 {s(SQ+3)}, 0x20000
          s_mov_b32 {s(SA+3)}, 0x20000
          s_mov_b32 {s(SA+2)}, 25088
          s_cmp_eq_u32 {s(sCB)}, 0
          s_cselect_b32 {s(SA+2)}, {s(SA+2)}, 401408
          s_mov_b32 {s(sT0)}, 0
          s_cmp_lt_u32 {s(sW8)}, 4
          s_waitcnt lgkmcnt(0)
          s_cselect_b64 {s(SA,2)}, {s(P_WK,2)}, {s(P_WV,2)}
          s_cmp_eq_u32 {s(sCB)}, 0
          s_cselect_b64 {s(SA,2)}, {s(SA,2)}, {s(P_W1,2)}
          s_mov_b64 {s(SX,2)}, {s(P_X,2)}
          s_mov_b64 {s(SQ,2)}, {s(P_WQ,2)}""")
    early_stamp(1)
    if "nopre" not in OPT:
        A("s_mov_b64 exec, 0x7f")
        A.vmem(f"buffer_load_dword {a(126)}, {v(vT2)}, {s(SX,4)}, {s(sB1)} offen", "pre")
        A("s_mov_b64 exec, 15")
        A.vmem(f"buffer_load_dword {a(125)}, {v(102)}, {s(SQ,4)}, {s(sB4)} offen", "pre")
        A("s_mov_b64 exec, -1")
    for n in range(7):
        if n:
            A(f"s_add_u32 m0, m0, {s(sT5)}\ns_add_u32 {s(sT0)}, {s(sT0)}, {s(sT3)}")
        A.vmem(f"buffer_load_dwordx4 {v(103)}, {s(SA,4)}, {s(sT0)} offen lds", "WA")
    early_stamp(2)
    A(f"""s_lshl_b32 {s(sT0)}, {s(sTB)}, 6
          v_add_u32 {v(vT1)}, {s(sT0)}, {v(vT1)}
          v_mul_u32_u24 {v(vT2)}, 896, {v(vT1)}
          v_lshrrev_b32 {v(vT1)}, 1, {v(vT1)}
          v_xor_b32 {v(vT1)}, {v(vT1)}, {v(vLANE)}
          v_and_b32 {v(vT1)}, 7, {v(vT1)}
          v_lshl_add_u32 {v(vWQ)}, {v(vT1)}, 4, {v(vT2)}
          s_and_b32 {s(sTT)}, {s(sW8)}, 1
          s_lshr_b32 {s(sP)}, {s(sW)}, 1""")
    if PROFILE:
        A(f"s_mov_b32 {s(sTS)}, s98")
        stamps["n"] = 1
    srd(SW, P_WS, WS_SIZE)
    srd(SD, P_DBG, 256)
    A(f"""s_cmp_lg_u32 {s(sW8)}, 0
          s_cbranch_scc1 L_nz
          v_lshlrev_b32 {v(vT0)}, 2, {v(vLANE)}
          v_add_u32 {v(vT0)}, {LS}, {v(vT0)}
          v_mov_b32 {v(vT1)}, 0
          ds_write_b32 {v(vT0)}, {v(vT1)}
          s_waitcnt lgkmcnt(0)
          s_cmp_lg_u32 s2, 0
          s_cbranch_scc1 L_nz
          s_or_b32 {s(sN)}, {s(sN)}, 1
          v_mov_b32 {v(vT2)}, {s(sN)}
          v_mov_b32 {v(vT3)}, {s(sN+1)}
          s_mov_b64 exec, 1
          buffer_store_dwordx2 {v(vT2,2)}, {v(vT1)}, {s(SD,4)}, 0 offen sc1
          s_mov_b64 exec, -1""")
    A.label("L_nz")
    A(f"""s_lshl_b32 {s(sGT)}, {s(sTB)}, 1
          s_add_u32 {s(sGT)}, {s(sGT)}, {s(sTT)}
          s_mov_b32 {s(sHI)}, 0
          s_mov_b32 {s(sHI+1)}, -1""")
    A(f"""v_bfe_u32 {v(vT0)}, {v(vLANE)}, 2, 2
          v_lshlrev_b32 {v(vT0)}, 7, {v(vT0)}
          v_lshrrev_b32 {v(vT1)}, 5, {v(vLANE)}
          v_lshl_add_u32 {v(vTRN)}, {v(vT1)}, 10, {v(vT0)}
          v_lshl_add_u32 {v(vTRD)}, {v(vT1)}, 9, {v(vT0)}
          v_bfe_u32 {v(vT0)}, {v(vLANE)}, 4, 1
          v_and_b32 {v(vT2)}, 3, {v(vLANE)}
          v_lshlrev_b32 {v(vT2)}, 3, {v(vT2)}
          v_lshl_add_u32 {v(103)}, {v(vT0)}, 5, {v(vT2)}
          v_bfe_u32 {v(vT0)}, {v(vLANE)}, 3, 1
          v_lshlrev_b32 {v(102)}, 6, {v(vT0)}""")
    A(f"""v_and_b32 {v(vT3)}, 31, {v(vLANE)}
          s_lshl_b32 {s(sT0)}, {s(sTT)}, 5
          v_add_u32 {v(vT0)}, {s(sT0)}, {v(vT3)}
          v_bfe_u32 {v(vT2)}, {v(vT0)}, 1, 3
          v_lshlrev_b32 {v(vT0)}, 7, {v(vT0)}
          v_xor_b32 {v(vT2)}, {v(vT2)}, {v(vT1)}
          v_lshl_add_u32 {v(vXF)}, {v(vT2)}, 4, {v(vT0)}
          v_xor_b32 {v(vXF+1)}, 32, {v(vXF)}
          v_xor_b32 {v(vXF+2)}, 64, {v(vXF)}
          v_xor_b32 {v(vXF+3)}, 96, {v(vXF)}
          s_lshr_b32 {s(sT1)}, {s(sW8)}, 1
          s_lshl_b32 {s(sT0)}, {s(sT1)}, 5
          v_xor_b32 {v(108)}, {s(sT0)}, {v(vXF)}
          s_lshl_b32 {s(sT0)}, {s(sTT)}, 10
          s_add_u32 {s(sT0)}, {s(sT0)}, {L_STAT}
          v_lshl_add_u32 {v(110)}, {v(vT3)}, 3, {s(sT0)}
          s_lshl_b32 {s(sT0)}, {s(sT1)}, 8
          v_add_u32 {v(111)}, {s(sT0)}, {v(110)}
          v_mov_b32 {v(30)}, 0
          v_mov_b32 {v(31)}, 0
          s_mov_b32 {s(sT5)}, {ONES}""")
    for i in range(4):
        A(f"v_mov_b32 {v(96+i)}, {ONES}")
    A(f"""s_lshl_b32 {s(sT0)}, s2, 3
          s_add_u32 {s(sT0)}, {s(sT0)}, {s(sW8)}
          s_cmp_ge_u32 {s(sT0)}, {392 if OPT.get("tw", "23") == "23" else 4096}
          s_cselect_b64 {s(SA,2)}, {s(P_W3,2)}, {s(P_W2,2)}
          s_mov_b32 {s(SA+2)}, 401408
          s_cselect_b32 {s(SA+2)}, 1605632, {s(SA+2)}
          s_cselect_b32 {s(sT1)}, 392, 0
          s_sub_u32 {s(sT0)}, {s(sT0)}, {s(sT1)}
          s_lshl_b32 {s(sRG)}, {s(sT0)}, {10 if OPT.get("tw", "23") == "23" else 8}""")
    A(f"""s_lshl_b32 {s(sT0)}, {s(sP)}, 6
          v_xor_b32 {v(vT0)}, {v(103)}, {v(102)}
          v_xor_b32 {v(vT0)}, {s(sT0)}, {v(vT0)}
          v_add_u32 {v(vT0)}, {v(vT0)}, {v(vTRN)}
          v_lshrrev_b32 {v(vT1)}, 7, {v(vTRN)}
          v_mul_u32_u24 {v(vT1)}, 56, {v(vT1)}
          s_mul_i32 {s(sT0)}, {s(sP)}, 28672
          v_add3_u32 {v(vT1)}, {v(vT1)}, {v(103)}, {s(sT0)}
          s_cmp_eq_u32 {s(sCB)}, 0
          s_cselect_b64 vcc, -1, 0
          v_cndmask_b32 {v(vT0)}, {v(vT0)}, {v(vT1)}, vcc
          v_add_u32 {v(29)}, {LA}, {v(vT0)}""")
    early_stamp(3)
    barrier()
    for kb in range(7):
        dma(sT4, LX + kb * 8192, vWQ, SX, (None, "0"), "X", imm=kb * 128)
    touch("x")
    early_stamp(4)
    A.wait_vm("WA")
    barrier()
    early_stamp(5)
    A(f"s_cmp_ge_u32 {s(sW8)}, 4\ns_cbranch_scc1 L_att")
    return list(A.vm)


def touch(where):
    if OPT.get("tat", "p1") != where:
        return
    A(f"v_lshlrev_b32 {v(vT0)}, 7, {v(vLANE)}\ns_mov_b64 exec, {255 if OPT.get('tw', '23') == '23' else 3}")
    A.vmem(f"buffer_load_dword {a(127)}, {v(vT0)}, {s(SA,4)}, {s(sRG)} offen", "t")
    A("s_mov_b64 exec, -1")


def stat_part(between):
    for j in range(7):
        A.ds(f"ds_read_b128 {v(SXR[j],4)}, {v(108)} offset:{j*8192}", ("sx", j))
    between()
    for j in range(7):
        A.wait_lg(("sx", j))
        for i in range(4):
            r = SXR[j] + i
            A(f"v_dot2c_f32_bf16 {v(30)}, {s(sT5)}, {v(r)}\nv_dot2c_f32_bf16 {v(31)}, {v(r)}, {v(r)}")
    A("s_nop 2")
    halves(30, vT2)
    halves(31, vT3)
    A(f"v_add_f32 {v(30)}, {v(30)}, {v(vT2)}\nv_add_f32 {v(31)}, {v(31)}, {v(vT3)}")
    A.ds(f"ds_write_b64 {v(111)}, {v(30,2)}", "statw")
    A.drain_lg()


def barrier():
    A("s_barrier")


def stat_read():
    for q in range(4):
        A.ds(f"ds_read_b64 {v(112+2*q,2)}, {v(110)} offset:{q*256}", "stat")


def stat_fin(vM, vVar):
    A.wait_lg("stat")
    A(f"""v_add_f32 {v(112)}, {v(112)}, {v(114)}
          v_add_f32 {v(113)}, {v(113)}, {v(115)}
          v_add_f32 {v(116)}, {v(116)}, {v(118)}
          v_add_f32 {v(117)}, {v(117)}, {v(119)}
          v_add_f32 {v(112)}, {v(112)}, {v(116)}
          v_add_f32 {v(113)}, {v(113)}, {v(117)}
          v_mul_f32 {v(vM)}, {f32(1/448)}, {v(112)}
          v_mul_f32 {v(112)}, {v(vM)}, {v(vM)}
          v_mul_f32 {v(113)}, {f32(1/448)}, {v(113)}
          v_sub_f32 {v(113)}, {v(113)}, {v(112)}
          v_max_f32 {v(vVar)}, 0, {v(113)}""")


def own_slot(base):
    return (f"s_lshl_b32 {s(sT0)}, {s(sTB)}, 3\ns_add_u32 {s(sT0)}, {s(sT0)}, {s(sCB)}\n"
            f"s_lshl_b32 {s(sT0)}, {s(sT0)}, 7\ns_add_u32 {s(sT0)}, {s(sT0)}, {base}")


late = []


def mlp(vm_entry):
    A.vm = list(vm_entry)
    vXD, vX1P, vW, vW3, vM, vR, vWA = 8, 16, 24, 26, 27, 28, 29
    vRA, vRB = [2, 3], [25, 31]
    acc, cs, ring, ones = 32, 48, 64, 96
    A("s_setprio " + OPT.get("prio", "2"))
    vXA = 124
    setup = []
    for r, p, n in ((S2, P_W2, 401408), (SQ, P_W3, 1605632), (S4, P_W4, 1605632), (SO, P_WO, 401408), (SOUT, P_OUT, 1835008)):
        setup += [f"s_mov_b64 {s(r,2)}, {s(p,2)}", f"s_mov_b32 {s(r+2)}, {n}", f"s_mov_b32 {s(r+3)}, 0x20000"]
    setup += f"""s_max_u32 {s(sT1)}, {s(sCB)}, 1
          s_sub_u32 {s(sT1)}, {s(sT1)}, 1
          s_lshl_b32 {s(sT4)}, {s(sT1)}, 1
          s_add_u32 {s(sT4)}, {s(sT4)}, {s(sP)}
          s_mul_i32 {s(sPA)}, {s(sW)}, 14336
          s_mul_i32 {s(sPB)}, {s(sW)}, 11264
          s_add_u32 {s(sPB)}, {s(sPB)}, {LQ}
          s_mul_i32 {s(sB1)}, {s(sW)}, {112*896}
          s_mul_i32 {s(sB4)}, {s(sW)}, {448*896}
          s_add_u32 {s(sR)}, {s(sTB)}, {s(sCB)}
          s_and_b32 {s(sR)}, {s(sR)}, 3
          v_mul_u32_u24 {v(vT0)}, 896, {v(vC8)}
          s_lshl_b32 {s(sT0)}, {s(sT1)}, 7
          v_add3_u32 {v(vW)}, {v(vT0)}, {v(vC7)}, {s(sT0)}
          v_mul_u32_u24 {v(vT0)}, 3584, {v(vC8)}
          s_lshl_b32 {s(sT0)}, {s(sT1)}, 9
          s_lshl_b32 {s(sT2)}, {s(sW)}, 7
          s_add_u32 {s(sT0)}, {s(sT0)}, {s(sT2)}
          v_add3_u32 {v(vW3)}, {v(vT0)}, {v(vC7)}, {s(sT0)}
          s_lshl_b32 {s(sT0)}, {s(sP)}, 6
          v_xor_b32 {v(103)}, {v(103)}, {v(102)}
          v_xor_b32 {v(102)}, {s(sT0)}, {v(103)}
          s_lshl_b32 {s(sT3)}, {s(sT1)}, 13
          v_lshrrev_b32 {v(vT1)}, 5, {v(vLANE)}
          v_lshlrev_b32 {v(vT2)}, 4, {v(vT1)}
          v_xor_b32 {v(vXA)}, {v(vXF)}, {v(vT2)}
          v_xor_b32 {v(vXA)}, {s(sT0)}, {v(vXA)}
          v_lshl_add_u32 {v(vXA)}, {v(vT1)}, 3, {v(vXA)}
          v_add_u32 {v(vXA)}, {s(sT3)}, {v(vXA)}
          v_xor_b32 {v(vXA+1)}, 16, {v(vXA)}
          v_xor_b32 {v(vXA+2)}, 32, {v(vXA)}
          v_xor_b32 {v(vXA+3)}, 48, {v(vXA)}""".split("\n")

    def colsums(kstride, second):
        def step(ks):
            if ks < 28:
                tr(("a", 4 * ks), vWA, ks * kstride, second, ("w", ks))
            if ks >= 4:
                A.wait_lg(("w", ks - 4))
                mfma(v(cs, 16), a(4 * (ks - 4), 4), v(ones, 4), 0 if ks == 4 else None)
        weave(A, [lambda ks=ks: step(ks) for ks in range(32)], [lambda t=t: A(t) for t in setup])

    A(f"s_cmp_eq_u32 {s(sCB)}, 0\ns_cbranch_scc1 L_cskv")
    colsums(2048, 512)
    A.label("L_csdone")
    late.append(lambda: (A.label("L_cskv"), colsums(896, 224), A("s_branch L_csdone")))
    early_stamp(6)
    A.wait_vm("X")
    barrier()
    early_dump()
    stamp()
    NX = 6

    def xr(ks):
        A.ds(f"ds_read_b128 {v(ring + 4 * (ks % NX), 4)}, {v(vXF + (ks & 3))} offset:{(ks >> 2) * 8192}", ("x", ks))

    def first():
        for ks in range(NX - 1):
            xr(ks)
        for g in range(4):
            A.ds(f"ds_read_b64 {v(vXD+2*g,2)}, {v(vXA+g)}", "xd")
    stat_part(first)
    barrier()
    vC1g, vC2g, vRI, vR2 = 120, 121, 122, 123
    ne2 = int(OPT.get("ne2", 0))

    def w2dma(j, hs=(0, 1)):
        base, off = (sT3, LA + 24576 + j * 2048) if j < ne2 else (sPA, j * 2048)
        image(base, off, vW, S2, lambda e: f"s_add_u32 {s(sT0)}, {s(sB1)}, {j * 16 * 896 + e}", 896, "W2", hs)
    A(f"s_lshl_b32 {s(sT3)}, {s(sW)}, 13")
    for ks in range(28):
        if ks + NX - 1 < 28:
            xr(ks + NX - 1)
        if ks == 0:
            stat_read()
            nonce_issue(30)
        A.wait_lg(("x", ks))
        mfma(v(acc, 16), a(4 * ks, 4), v(ring + 4 * (ks % NX), 4), 0 if ks == 0 else None)
        if ks == 1:
            touch("p1")
        if 3 <= ks < 3 + 2 * ne2:
            skip = A.newlabel("w2")
            A(f"s_cmp_eq_u32 {s(sCB)}, 0\ns_cbranch_scc1 {skip}")
            w2dma((ks - 3) >> 1, ((ks - 3) & 1,))
            A.label(skip)
        if ks == 6:
            stat_fin(vM, vR)
        if ks == 10:
            A(f"""v_add_f32 {v(vT0)}, {f32(EPS)}, {v(vR)}
                  v_rsq_f32 {v(vT1)}, {v(vT0)}
                  v_mov_b32 {v(vT3)}, {f32(EPS)}
                  v_mul_f32 {v(vT2)}, {v(vT1)}, {v(vT1)}""")
        if ks == 11:
            A(f"""v_fma_f32 {v(vT2)}, {v(vT2)}, {v(vR)}, {v(vT3)}
                  v_rsq_f32 {v(vT2)}, {v(vT2)}
                  v_mov_b32 {v(vR)}, {v(vT1)}
                  v_mul_f32 {v(vR2)}, {v(vT1)}, {v(vT2)}""")
        if ks == 12:
            A(f"""v_rcp_f32 {v(vRI)}, {v(vR2)}
                  v_mul_f32 {v(vC1g)}, {f32(GC1)}, {v(vR2)}
                  v_mul_f32 {v(vC2g)}, {v(vR2)}, {v(vR2)}
                  v_mul_f32 {v(vC2g)}, {v(vC2g)}, {v(vR2)}""")
        if ks == 13:
            A(f"v_mul_f32 {v(vC2g)}, {f32(GC2)}, {v(vC2g)}")
        if 14 <= ks < 22:
            A(f"v_mul_f32 {v(cs+2*(ks-14))}, {v(cs+2*(ks-14))}, {v(vM)}\nv_mul_f32 {v(cs+2*(ks-14)+1)}, {v(cs+2*(ks-14)+1)}, {v(vM)}")
    arrive(C_PA)
    vm_kv = [t for t in A.vm if t != "W2"]
    A(f"s_cmp_eq_u32 {s(sCB)}, 0\ns_cbranch_scc1 L_kv\ns_nop 4")
    for i in range(16):
        A(f"v_sub_f32 {v(acc+i)}, {v(acc+i)}, {v(cs+i)}")
    stamp()
    pk = 64
    vHS = 74
    for i in range(8):
        for op in gelu_ops(acc + 2 * i, 72, pk + i, vC1g, vC2g, vRI):
            A(op)
        if i == 2:
            A(f"""v_and_b32 {v(vT0)}, 31, {v(vLANE)}
                  s_lshl_b32 {s(sT0)}, {s(sGT)}, 5
                  v_add_u32 {v(vT0)}, {s(sT0)}, {v(vT0)}
                  v_lshrrev_b32 {v(vT1)}, 5, {v(vLANE)}
                  v_lshlrev_b32 {v(vT1)}, 15, {v(vT1)}
                  v_lshl_add_u32 {v(vHS)}, {v(vT0)}, 4, {v(vT1)}
                  s_lshl_b32 {s(sT0)}, {s(sT4)}, 17
                  s_add_u32 {s(sT0)}, {s(sT0)}, {HB}
                  s_add_u32 {s(sT1)}, {s(sT0)}, 0x10000""")
        if i in (3, 7):
            A.vmem(f"buffer_store_dwordx4 {v(pk+(i&4),4)}, {v(vHS)}, {s(SW,4)}, {s(sT0 if i == 3 else sT1)} offen sc1", "hst")
    await_cnt(C_PA, 8)
    for j in range(ne2, 7):
        w2dma(j)
    nonce_take(30)
    signal(N_H, own_slot(FH), "hst")
    stamp()
    A(f"""s_add_u32 {s(sT0)}, {s(sT3)}, {LA + 24576}
          v_add3_u32 {v(32)}, {v(vTRD)}, {v(102)}, {s(sT0)}
          v_xor_b32 {v(33)}, 64, {v(32)}
          v_add_u32 {v(vT0)}, {s(sPA)}, {v(vTRD)}
          v_add_u32 {v(vT1)}, {s(sPB)}, {v(vTRD)}
          v_add_u32 {v(vRA[0])}, {v(vT0)}, {v(102)}
          v_xor_b32 {v(vRA[1])}, 64, {v(vRA[0])}
          v_add_u32 {v(vRB[0])}, {v(vT1)}, {v(102)}
          v_xor_b32 {v(vRB[1])}, 64, {v(vRB[0])}""")
    A.wait_vm("W2")
    for j in range(7):
        for b in range(2):
            tr(("a", 8 * j + 4 * b), 32 + b if j < ne2 else vRA[b], j * 2048, 1024, "w2")
    vH = 29
    A(f"""s_add_u32 {s(sT0)}, {s(sP)}, 1
          s_sub_u32 {s(sT1)}, 0, {s(sT0)}
          s_cmp_eq_u32 {s(sTT)}, 0
          s_cselect_b32 {s(sT0)}, {s(sT1)}, {s(sT0)}
          s_lshl_b32 {s(sT1)}, {s(sGT)}, 5
          s_add_u32 {s(sT1)}, {s(sT1)}, {s(sT0)}
          s_xor_b32 {s(sT2)}, {s(sGT)}, 1
          s_lshl_b32 {s(sT2)}, {s(sT2)}, 5
          s_add_u32 {s(sT2)}, {s(sT2)}, {s(sT0)}
          v_and_b32 {v(vT0)}, 31, {v(vLANE)}
          v_lshrrev_b32 {v(vT1)}, 5, {v(vLANE)}
          v_lshlrev_b32 {v(vT1)}, 15, {v(vT1)}
          v_mov_b32 {v(vT3)}, {OOB}""")
    for sl, sr in ((0, sT1), (1, sT2)):
        A(f"""v_add_u32 {v(vT2)}, {s(sr)}, {v(vT0)}
              v_cmp_gt_u32 vcc, 2048, {v(vT2)}
              v_lshl_add_u32 {v(vT2)}, {v(vT2)}, 4, {v(vT1)}
              s_nop 0
              v_cndmask_b32 {v(vH+sl)}, {v(vT3)}, {v(vT2)}, vcc""")

    def rot7(reg, u, scale, base):
        if u == 0:
            A(f"s_mul_i32 {s(reg)}, {s(sR)}, {2 * scale}")
        else:
            A(f"""s_add_u32 {s(reg)}, {s(reg)}, {scale}
                  s_cmp_ge_u32 {s(reg)}, {7 * scale}
                  s_cselect_b32 {s(sT0)}, {7 * scale}, 0
                  s_sub_u32 {s(reg)}, {s(reg)}, {s(sT0)}""")

    def sdma(n, hs=(0, 1)):
        base, off = ring_addr(n % NRING)
        if n < 28:
            if n % 7 == 0 and 0 in hs:
                A(f"""s_add_u32 {s(sRG)}, {s(sR)}, {n // 7}
                      s_and_b32 {s(sRG)}, {s(sRG)}, 3
                      s_mul_i32 {s(sRG)}, {s(sRG)}, {7 * 16 * 3584}""")
            image(base, off, vW3, SQ, lambda e: f"s_add_u32 {s(sT0)}, {s(sRG)}, {(n % 7) * 16 * 3584 + e}", 3584, ("S", n), hs)
        elif n < 56:
            p = n - 28
            if p % 2 == 0 and 0 in hs:
                rot7(sRG, (p % 14) // 2, 64 * 896, None)
                A(f"s_add_u32 {s(sT3)}, {s(sRG)}, {s(sB4)}")
            image(base, off, vW, S4, lambda e: f"s_add_u32 {s(sT0)}, {s(sT3)}, {(2 * (p // 14) + p % 2) * 16 * 896 + e}", 896, ("S", n), hs)
        else:
            k = n - 56
            image(base, off, vW, SO, lambda e: f"s_add_u32 {s(sT0)}, {s(sB1)}, {((k >> 1) * 28 + (k & 1) * 16) * 896 + e}", 896, ("S", n), hs)

    def sreg(n, b):
        return 8 * (n % 16) + 4 * b

    def sread(n, bs=(0, 1)):
        base, off = ring_addr(n % NRING)
        if n == 28 and 0 in bs:
            flip()
        A.wait_vm(("S", n))
        for b in bs:
            tr(("a", sreg(n, b)), (vRA if base == sPA else vRB)[b], off, 1024, ("s", n))

    def refill(n, hs=(0, 1)):
        if n < 64:
            A.wait_lg(("s", n - NRING))
            sdma(n, hs)

    def sread_p(n):
        return [lambda: sread(n, (0,)), lambda: sread(n, (1,))]

    def refill_p(n):
        return [lambda: refill(n, (0,)), lambda: refill(n, (1,))] if n < 64 else []

    def flip():
        A(f"s_lshl_b32 {s(sT0)}, {s(sP)}, 6")
        for r in vRA + vRB:
            A(f"v_xor_b32 {v(r)}, {s(sT0)}, {v(r)}")

    flip()
    early = int(OPT.get("early", 3))
    mid = int(OPT.get("mid", 6))
    A.drain_lg()
    arrive(C_W2)
    for n in range(early):
        sdma(n)
    cut("h")

    def setup_h():
        A(f"""v_lshrrev_b32 {v(vT0)}, 3, {v(vLANE)}
              s_sub_u32 {s(sT0)}, {s(sTB)}, 1
              v_add_u32 {v(vT0)}, {s(sT0)}, {v(vT0)}
              v_cmp_le_u32 vcc, 32, {v(vT0)}
              s_lshl_b32 {s(sT0)}, {s(sT0)}, 10
              s_add_u32 {s(sT0)}, {s(sT0)}, {FH}
              v_lshlrev_b32 {v(vT1)}, 7, {v(vLANE)}
              v_add_u32 {v(vT1)}, {s(sT0)}, {v(vT1)}
              s_mov_b32 {s(sINV)}, 0xff010101
              s_mov_b32 {s(sINV+1)}, -1
              s_or_b64 {s(sINV,2)}, {s(sINV,2)}, vcc""")
        lanes_to(vT1)

    gate(G_H, setup_h, 32)
    stamp()
    hf = 32
    A(f"s_mul_i32 {s(sT5)}, {s(sW)}, {7 << 16}\ns_add_u32 {s(sT5)}, {s(sT5)}, {HB}")
    for j in range(7):
        if j:
            A(f"s_add_u32 {s(sT5)}, {s(sT5)}, 0x10000")
        for sl in range(2):
            A.vmem(f"buffer_load_dwordx4 {v(hf + 8*j + 4*sl, 4)}, {v(vH+sl)}, {s(SW,4)}, {s(sT5)} offen sc1", ("h", j))
    await_cnt(C_QD)
    await_cnt(C_W2)
    acc0, vRW = 104, 120
    accs = [v(acc0, 16), a(64, 16), a(80, 16), a(96, 16)]
    A(f"s_add_u32 {s(sT0)}, {s(sPA)}, {LA}\nv_add_u32 {v(vRW)}, {s(sT0)}, {v(vL16)}\nv_mul_f32 {v(vM)}, {v(vM)}, {v(vR)}")
    for j in range(7):
        A.wait_vm(("h", j))
        for sl in (1, 2, 3, 0):
            mfma(accs[sl], a(8 * j + 4 * (sl >> 1), 4), v(hf + 8 * j + 4 * (sl & 1), 4), 0 if j == 0 else None)
    sdma(early)
    A("s_nop 3")
    offs1 = [(0, i * 1024) for i in range(12)]
    reduce_out([("a", 64), ("a", 80), ("a", 96)], C_R1, [vRW], offs1, [lambda n=n: sdma(n) for n in range(early + 1, early + mid)])

    def mk1(sl):
        A(f"""s_xor_b32 {s(sT0)}, {s(sW)}, {sl}
              s_mul_i32 {s(sT0)}, {s(sT0)}, 14336
              s_add_u32 {s(sT0)}, {s(sT0)}, {LA}
              v_add_u32 {v(vRW+sl)}, {s(sT0)}, {v(vL16)}""")
        return [vRW + sl]
    for i in range(8):
        A(f"""v_lshlrev_b32 {v(88)}, 16, {v(vXD+i)}
              v_and_b32 {v(89)}, 0xffff0000, {v(vXD+i)}
              v_fma_f32 {v(88)}, {v(88)}, {v(vR)}, -{v(vM)}
              v_fma_f32 {v(89)}, {v(89)}, {v(vR)}, -{v(vM)}
              v_add_f32 {v(acc0+2*i)}, {v(acc0+2*i)}, {v(88)}
              v_add_f32 {v(acc0+2*i+1)}, {v(acc0+2*i+1)}, {v(89)}""")
    reduce_in(acc0, 32, C_R1, mk1, offs1)
    for i in range(8):
        A(f"v_cvt_pk_bf16_f32 {v(vX1P+i)}, {v(acc0+2*i)}, {v(acc0+2*i+1)}")
    A(f"""s_mul_i32 {s(sT0)}, {s(sGT)}, 14
          s_add_u32 {s(sT0)}, {s(sT0)}, {s(sT4)}
          s_lshl_b32 {s(sT1)}, {s(sT0)}, 11
          s_add_u32 {s(sT1)}, {s(sT1)}, {X1}
          s_lshl_b32 {s(sT0)}, {s(sT0)}, 8
          s_add_u32 {s(sT2)}, {s(sT0)}, {ST}""")
    A.vmem(f"buffer_store_dwordx4 {v(vX1P,4)}, {v(vL16)}, {s(SW,4)}, {s(sT1)} offen sc1", "xst")
    A.vmem(f"buffer_store_dwordx4 {v(vX1P+4,4)}, {v(vL16)}, {s(SW,4)}, {s(sT1)} offen offset:1024 sc1", "xst")
    A(f"""v_add_f32 {v(32)}, {v(acc0)}, {v(acc0+1)}
          v_mul_f32 {v(33)}, {v(acc0)}, {v(acc0)}
          v_fma_f32 {v(33)}, {v(acc0+1)}, {v(acc0+1)}, {v(33)}""")
    for i in range(2, 16):
        A(f"v_add_f32 {v(32)}, {v(32)}, {v(acc0+i)}\nv_fma_f32 {v(33)}, {v(acc0+i)}, {v(acc0+i)}, {v(33)}")
    halves(32, 34)
    halves(33, 35)
    A(f"""v_add_f32 {v(32)}, {v(32)}, {v(34)}
          v_add_f32 {v(33)}, {v(33)}, {v(35)}
          v_lshlrev_b32 {v(34)}, 3, {v(vLANE)}
          s_not_b64 exec, {s(sHI,2)}""")
    A.vmem(f"buffer_store_dwordx2 {v(32,2)}, {v(34)}, {s(SW,4)}, {s(sT2)} offen sc1", "xst")
    A("s_mov_b64 exec, -1")
    stamp()
    cut("p2")
    for n in range(early + mid, NRING):
        sdma(n)
    npre = int(OPT.get("npre", 9))
    xsig = int(OPT.get("xsig", 4))
    for n in range(npre + 1):
        if n < npre:
            sread(n)
        if n == xsig:
            signal(N_X, own_slot(FX), "xst")
        if n >= 1:
            refill(n - 1 + NRING)
    stamp()
    cut("w3")

    def setup_x():
        A(f"""s_lshl_b32 {s(sT0)}, {s(sTB)}, 10
              s_add_u32 {s(sT0)}, {s(sT0)}, {FX}
              s_lshl_b32 {s(sT1)}, {s(sCB)}, 9
              s_add_u32 {s(sT1)}, {s(sT1)}, {FC - 512 - 1024}
              v_lshlrev_b32 {v(vT0)}, 7, {v(vLANE)}
              v_add_u32 {v(vT1)}, {s(sT0)}, {v(vT0)}
              v_add_u32 {v(vT0)}, {s(sT1)}, {v(vT0)}
              s_mov_b64 vcc, 0xff
              v_cndmask_b32 {v(vT1)}, {v(vT0)}, {v(vT1)}, vcc
              s_mov_b32 {s(sINV)}, 0xfffff001
              s_mov_b32 {s(sINV+1)}, -1""")
        lanes_to(vT1)
    gate(G_X, setup_x, 32)
    stamp()
    A(f"""s_mul_i32 {s(sT1)}, {s(sTB)}, {56 * 1024}
          s_add_u32 {s(sT1)}, {s(sT1)}, {X1}
          s_lshl_b32 {s(sT3)}, {s(sW)}, 10
          s_mul_i32 {s(sT2)}, {s(sR)}, 7168
          s_add_u32 {s(sT2)}, {s(sT2)}, {s(sT3)}
          s_add_u32 {s(sT3)}, {s(sT3)}, {LA}""")
    for i in range(7):
        if i:
            A(f"""s_add_u32 {s(sT2)}, {s(sT2)}, 4096
                  s_sub_u32 {s(sT5)}, {s(sT2)}, 28672
                  s_cmp_ge_u32 {s(sT2)}, 28672
                  s_cselect_b32 {s(sT2)}, {s(sT5)}, {s(sT2)}""")
        A(f"s_add_u32 {s(sT5)}, {s(sT1)}, {s(sT2)}")
        for tt in range(2):
            dma(sT3, tt * 28672 + i * 4096, vL16, SW, (f"s_add_u32 {s(sT0)}, {s(sT5)}, {tt * 28672}", s(sT0)), ("x1", min(i // 2, 2)), sc=" sc1")
    vB, stt, cst, bring = 27, 32, 28, 40
    A(f"""v_and_b32 {v(vT0)}, 31, {v(vLANE)}
          v_lshrrev_b32 {v(vT1)}, 5, {v(vLANE)}
          v_mul_u32_u24 {v(vT1)}, {14 * 256}, {v(vT1)}
          v_lshl_add_u32 {v(vT2)}, {v(vT0)}, 3, {v(vT1)}
          s_mul_i32 {s(sT1)}, {s(sTB)}, {28 * 256}
          s_lshl_b32 {s(sT2)}, {s(sW)}, 8
          s_add_u32 {s(sT1)}, {s(sT1)}, {s(sT2)}
          s_add_u32 {s(sT1)}, {s(sT1)}, {ST}
          s_cmp_lt_u32 {s(sW)}, 2
          s_cselect_b32 {s(sT2)}, {s(sT1)}, {OOB}
          v_add_u32 {v(vB)}, {LA}, {v(vL16)}""")
    for i in range(4):
        A.vmem(f"buffer_load_dwordx2 {v(stt+2*i,2)}, {v(vT2)}, {s(SW,4)}, {s(sT1 if i < 3 else sT2)} offen offset:{i*1024} sc1", "st")
    A(f"""s_lshl_b32 {s(sT1)}, {s(sCB)}, 2
          s_add_u32 {s(sT1)}, {s(sT1)}, {s(sW)}
          s_lshl_b32 {s(sT1)}, {s(sT1)}, 9
          s_add_u32 {s(sT1)}, {s(sT1)}, {CS - 2048}
          v_lshlrev_b32 {v(vT3)}, 3, {v(vLANE)}""")
    A.vmem(f"buffer_load_dwordx2 {v(cst,2)}, {v(vT3)}, {s(SW,4)}, {s(sT1)} offen sc1", "cs")
    A(f"""s_mul_i32 {s(sK)}, {s(sTB)}, {2 * 112}
          s_lshl_b32 {s(sT0)}, {s(sCB)}, 2
          s_add_u32 {s(sT0)}, {s(sT0)}, {s(sW)}
          s_sub_u32 {s(sT0)}, {s(sT0)}, 4
          s_lshl_b32 {s(sT0)}, {s(sT0)}, 2
          s_add_u32 {s(sK)}, {s(sK)}, {s(sT0)}
          s_lshl_b32 {s(sK)}, {s(sK)}, 10
          s_add_u32 {s(sK)}, {s(sK)}, {HH}""")
    A.wait_vm(("x1", 0))
    arrive(C_XA)
    await_cnt(C_XA)
    acc4 = [64, 80, 96, 112]

    def bread(ks):
        for tt in range(2):
            A.ds(f"ds_read_b128 {v(bring + 8 * (ks % 3) + 4 * tt, 4)}, {v(vB)} offset:{(tt * 28 + ks) * 1024}", ("b", ks))

    lag = int(OPT.get("lag", 7))
    plan, rstep = {}, {}
    nxt = npre
    for ks in range(28):
        while nxt < 44 and len(plan.get(ks, [])) < 2:
            ready = nxt - 16 < ks and (nxt - NRING < npre or rstep[nxt - NRING] + 1 + lag <= ks)
            if not (ready or (nxt < 28 and nxt - 2 <= ks)):
                break
            plan.setdefault(ks, []).append(nxt)
            rstep[nxt] = ks
            nxt += 1
    assert nxt >= 28 and all(n - 16 < ks and (n >= 28 or n >= ks + 1) for ks in plan for n in plan[ks]), plan
    pend = []
    if "p4" in OPT:
        stamp()
    bread(0)
    bread(1)
    for ks in range(28):
        if ks == 2:
            A.wait_vm(("x1", 1))
            arrive(C_XA)
        if ks == 5:
            await_cnt(C_XA, 8)
        if ks == 8:
            A.wait_vm(["cs", "st", ("x1", 2)])
            A(f"""v_add_f32 {v(stt)}, {v(stt)}, {v(stt+2)}
                  v_add_f32 {v(stt+1)}, {v(stt+1)}, {v(stt+3)}
                  v_add_f32 {v(stt+4)}, {v(stt+4)}, {v(stt+6)}
                  v_add_f32 {v(stt+5)}, {v(stt+5)}, {v(stt+7)}
                  s_lshl_b32 {s(sT0)}, {s(sW)}, 9
                  s_add_u32 {s(sT0)}, {s(sT0)}, {L_STAT}
                  v_add_f32 {v(stt)}, {v(stt)}, {v(stt+4)}
                  v_add_f32 {v(stt+1)}, {v(stt+1)}, {v(stt+5)}
                  v_lshl_add_u32 {v(vT2)}, {v(vLANE)}, 3, {s(sT0)}""")
            A.ds(f"ds_write_b64 {v(vT2)}, {v(stt,2)}", "sw")
            arrive(C_XB)
        if ks == 13:
            await_cnt(C_XB)
            A(f"v_lshlrev_b32 {v(vT2)}, 3, {v(vLANE)}\nv_add_u32 {v(vT2)}, {L_STAT}, {v(vT2)}")
            for q in range(4):
                A.ds(f"ds_read_b64 {v(stt+2*q,2)}, {v(vT2)} offset:{q*512}", "sr")
        A.wait_lg([("b", ks), ("s", ks)])
        acts = [lambda: bread(ks + 2)] if ks + 2 < 28 else []
        rd = [f for n in plan.get(ks, []) for f in sread_p(n)]
        rf = [f for n in pend for f in refill_p(n + NRING)]
        while rd or rf:
            acts += rf[:1] + rd[:1]
            rf, rd = rf[1:], rd[1:]
        pend = plan.get(ks, [])
        gaps([lambda t=t: mfma(v(acc4[t], 16), a(sreg(ks, t >> 1), 4), v(bring + 8 * (ks % 3) + 4 * (t & 1), 4), 0 if ks == 0 else None)
              for t in range(4)], acts)
        if "p4" in OPT and ks in (3, 6, 12, 15, 21):
            stamp()
        if ks == 16:
            A.wait_lg("sr")
            A(f"""v_add_f32 {v(stt)}, {v(stt)}, {v(stt+2)}
                  v_add_f32 {v(stt+1)}, {v(stt+1)}, {v(stt+3)}
                  v_add_f32 {v(stt+4)}, {v(stt+4)}, {v(stt+6)}
                  v_add_f32 {v(stt+5)}, {v(stt+5)}, {v(stt+7)}
                  v_add_f32 {v(stt)}, {v(stt)}, {v(stt+4)}
                  v_add_f32 {v(stt+1)}, {v(stt+1)}, {v(stt+5)}
                  v_add_f32 {v(cst)}, {v(cst)}, {v(cst+1)}""")
        if ks == 17:
            A(f"""v_mul_f32 {v(stt)}, {f32(-1/448)}, {v(stt)}
                  v_mul_f32 {v(stt+1)}, {f32(1/448)}, {v(stt+1)}
                  v_mul_f32 {v(stt+2)}, {v(stt)}, {v(stt)}
                  v_sub_f32 {v(stt+1)}, {v(stt+1)}, {v(stt+2)}
                  v_max_f32 {v(stt+1)}, 0, {v(stt+1)}
                  v_add_f32 {v(stt+1)}, {f32(EPS)}, {v(stt+1)}""")
        if ks == 18:
            halves(stt, stt + 2)
            halves(stt + 1, stt + 3)
            halves(cst, cst + 1)
    arrive(C_P4)
    vAE, vBE, gt, gpk = 40, 48, 56, 40
    for nt in range(2):
        c = cst + nt
        A(f"""v_cvt_pk_bf16_f32 {v(vT0)}, {v(c)}, {v(c)}
              v_and_b32 {v(vT1)}, 0xffff0000, {v(vT0)}
              v_sub_f32 {v(vT1)}, {v(c)}, {v(vT1)}
              v_cvt_pk_bf16_f32 {v(vAE+4*nt)}, {v(c)}, {v(vT1)}
              v_and_b32 {v(vAE+4*nt+1)}, 0xffff, {v(vT0)}
              v_mov_b32 {v(vAE+4*nt+2)}, 0
              v_mov_b32 {v(vAE+4*nt+3)}, 0""")
    for tt in range(2):
        m, b = stt + 2 * tt, vBE + 4 * tt
        A(f"""v_cvt_pk_bf16_f32 {v(vT0)}, {v(m)}, {v(m)}
              v_and_b32 {v(vT1)}, 0xffff0000, {v(vT0)}
              v_sub_f32 {v(vT1)}, {v(m)}, {v(vT1)}
              v_cvt_pk_bf16_f32 {v(vT1)}, {v(vT1)}, 0
              v_cndmask_b32 {v(b)}, {v(vT0)}, 0, {s(sHI,2)}
              v_cndmask_b32 {v(b+1)}, {v(vT1)}, 0, {s(sHI,2)}
              v_mov_b32 {v(b+2)}, 0
              v_mov_b32 {v(b+3)}, 0""")
    A("s_nop 0")
    for t in range(4):
        mfma(v(acc4[t], 16), v(vAE + 4 * (t >> 1), 4), v(vBE + 4 * (t & 1), 4))
    kk = [60, 36]
    for tt in range(2):
        e, k = stt + 2 * tt + 1, kk[tt]
        A(f"""v_rsq_f32 {v(vT0)}, {v(e)}
              s_nop 0
              v_mul_f32 {v(k+2)}, {v(e)}, {v(vT0)}
              v_mul_f32 {v(k)}, {f32(GC1)}, {v(vT0)}
              v_mul_f32 {v(k+1)}, {v(vT0)}, {v(vT0)}
              v_mul_f32 {v(k+1)}, {v(k+1)}, {v(vT0)}
              v_mul_f32 {v(k+1)}, {f32(GC2)}, {v(k+1)}""")
    stamp()
    ops = []
    for t in range(4):
        tt, b = t & 1, t >> 1
        for i in range(8):
            def pair(i=i, t=t, tt=tt):
                for op in gelu_ops(acc4[t] + 2 * i, gt, gpk + 8 * (t & 1) + i, kk[tt], kk[tt] + 1, kk[tt] + 2):
                    A(op)
            ops.append(pair)
            if i in (3, 7):
                def st(c=i >> 2, t=t, tt=tt, b=b):
                    A(f"s_add_u32 {s(sT0)}, {s(sK)}, {(tt * 112 + b * 2) * 1024}")
                    A.vmem(f"buffer_store_dwordx4 {v(gpk+8*(t&1)+4*c,4)}, {v(vL16)}, {s(SW,4)}, {s(sT0)} offen offset:{c*1024} sc1", ("Hst", b))
                ops.append(st)
        if t == 2:
            ops.append(lambda: signal(N_G, own_slot(FG), ("Hst", 0)))
    fill = [f for n in pend for f in refill_p(n + NRING)]
    for n in range(nxt, 44):
        fill.append(lambda n=n: sread(n))
        if n > nxt:
            fill += refill_p(n - 1 + NRING)
    weave(A, ops, fill)
    if nxt < 44:
        refill(43 + NRING)
    vHH = 26
    A(f"""s_mul_i32 {s(sT0)}, {s(sGT)}, 4
          s_add_u32 {s(sT0)}, {s(sT0)}, {s(sW)}
          s_mul_i32 {s(sT0)}, {s(sT0)}, {28 * 1024}
          v_add_u32 {v(vHH)}, {s(sT0)}, {v(vL16)}
          s_xor_b32 {s(sT0)}, {s(sGT)}, 1
          s_mul_i32 {s(sT0)}, {s(sT0)}, 4
          s_add_u32 {s(sT0)}, {s(sT0)}, {s(sW)}
          s_mul_i32 {s(sT0)}, {s(sT0)}, {28 * 1024}
          v_add_u32 {v(vHH+1)}, {s(sT0)}, {v(vL16)}""")
    acc6 = [64, 80, 96, 112]
    for i in range(8):
        A(f"v_lshlrev_b32 {v(64+2*i)}, 16, {v(vX1P+i)}\nv_and_b32 {v(65+2*i)}, 0xffff0000, {v(vX1P+i)}")
    stamp()
    cut("w4")

    def setup_tb(base, inv):
        def f():
            A(f"""s_lshl_b32 {s(sT0)}, {s(sTB)}, 10
                  s_add_u32 {s(sT0)}, {s(sT0)}, {base}
                  v_lshlrev_b32 {v(vT1)}, 7, {v(vLANE)}
                  v_add_u32 {v(vT1)}, {s(sT0)}, {v(vT1)}
                  s_mov_b32 {s(sINV)}, {inv}
                  s_mov_b32 {s(sINV+1)}, -1""")
            lanes_to(vT1)
        return f
    peek_issue(setup_tb(FG, 0xffffff01), 34, 36)
    vO, vOUT = 28, 30
    A(f"""s_lshl_b32 {s(sT0)}, {s(sGT)}, 2
          s_add_u32 {s(sT0)}, {s(sT0)}, {s(sW)}
          s_lshl_b32 {s(sT0)}, {s(sT0)}, 13
          v_add_u32 {v(vO)}, {s(sT0)}, {v(vL16)}
          v_xor_b32 {v(vO+1)}, 0x8000, {v(vO)}
          v_and_b32 {v(32)}, 31, {v(vLANE)}
          s_lshl_b32 {s(sT0)}, {s(sGT)}, 5
          v_add_u32 {v(32)}, {s(sT0)}, {v(32)}
          v_mul_u32_u24 {v(32)}, 896, {v(32)}
          v_lshrrev_b32 {v(33)}, 5, {v(vLANE)}
          v_lshl_add_u32 {v(32)}, {v(33)}, 4, {v(32)}
          s_lshl_b32 {s(sT0)}, {s(sT4)}, 6
          v_add_u32 {v(vOUT)}, {s(sT0)}, {v(32)}""")
    signal(N_G2, own_slot(FG2), ("Hst", 1))
    peek_check(34, 36)
    stamp()
    hslots = [16, 20, 32, 36, 40, 44, 48, 52, 56, 60]
    NH = int(OPT.get("nh", 10))
    hsc = "" if "hplain" in OPT else " sc1"

    def bload(n):
        p, sl = n >> 1, n & 1
        if n < 56:
            if p % 2 == 0 and sl == 0:
                rot7(sRH, (p % 14) // 2, 4096, None)
                A(f"s_add_u32 {s(sV)}, {s(sRH)}, {HH}")
            addr, imm = vHH + sl, (2 * (p // 14) + p % 2) * 1024
        else:
            if p % 4 == 0 and sl == 0:
                A(f"s_mov_b32 {s(sV)}, {OB + 1024 * (p - 28)}")
            addr, imm = vO + sl, (p & 3) * 1024
        A.vmem(f"buffer_load_dwordx4 {v(hslots[n % NH], 4)}, {v(addr)}, {s(SW,4)}, {s(sV)} offen offset:{imm}{hsc}", ("H", n))

    def slotoffs(first):
        return [(0, i * 1024) if i < 14 else (1, (i - 14) * 1024) for i in range(first, first + 12)]

    vRW2 = [24, 25]
    for n in range(NH):
        bload(n)
    if OPT.get("tail", "ring") == "ring":
        h2out = []
        for i in range(12):
            b, o = slotoffs(0)[i]
            h2out.append(lambda i=i, b=b, o=o: A.ds(f"ds_write_b128 {v(vRW2[b])}, {v(80 + 4 * i, 4)} offset:{o}", "red"))
        h2out.append(lambda: arrive(C_R2))
        for j in range(36):
            A.wait_vm(("H", 2 * j + 1))
            A.wait_lg(("s", 28 + j))
            if 2 * j + NH in (28, 56):
                peek_check()

            def mm(sl):
                d = v(acc6[sl], 16) if j < 28 else a(16 * sl, 16)
                mfma(d, a(sreg(28 + j, sl >> 1), 4), v(hslots[(2 * j + (sl & 1)) % NH], 4), 0 if (j == 0 and sl) or j == 28 else None)
            rd = sread_p(43 + j) if 1 <= j <= 20 else [None, None]
            rf = (refill_p(43 + j - 1 + NRING) if j >= 2 else []) or [None, None]
            ld = [(lambda n=n: bload(n)) if n < 72 else None for n in (2 * j + NH, 2 * j + NH + 1)]
            wr = [h2out.pop(0) if j >= 30 and h2out else None for _ in range(3)]
            for sl, todo in ((0, [rf[0], wr[0]]), (2, [ld[0], rd[0], wr[1]]), (1, [rf[1], wr[2]]), (3, [ld[1], rd[1]])):
                mm(sl)
                for f in todo:
                    if f:
                        f()
            if 2 * j + NH == 22:
                peek_issue(setup_tb(FG2, 0xffffff01))
            if 2 * j + NH == 50:
                peek_issue(setup_tb(FO, 0xffffff00))
            if j == 27:
                stamp()
            if j == 29:
                A.drain_lg()
                A(f"v_add_u32 {v(24)}, {s(sPA)}, {v(vL16)}\nv_add_u32 {v(25)}, {s(sPB)}, {v(vL16)}")
        assert not h2out
        stamp()

        def mk2(sl):
            A(f"""s_xor_b32 {s(sT0)}, {s(sW)}, {sl}
                  s_mul_i32 {s(sT1)}, {s(sT0)}, 14336
                  s_mul_i32 {s(sT0)}, {s(sT0)}, 11264
                  s_add_u32 {s(sT0)}, {s(sT0)}, {LQ}
                  v_add_u32 {v(14+2*sl)}, {s(sT1)}, {v(vL16)}
                  v_add_u32 {v(15+2*sl)}, {s(sT0)}, {v(vL16)}""")
            return [14 + 2 * sl, 15 + 2 * sl]

        vG = 64
        reduce_in(vG, 80, C_R2, mk2, slotoffs(0),
                  lambda: reduce_out([("a", 16), ("a", 32), ("a", 48)], C_R3, vRW2, slotoffs(12)))
        for i in range(8):
            y = vG + 2 * i
            A(f"""v_mul_f32 {v(80)}, {f32(-LOG2E)}, {v(y)}
                  v_mul_f32 {v(81)}, {f32(-LOG2E)}, {v(y+1)}
                  v_exp_f32 {v(80)}, {v(80)}
                  v_exp_f32 {v(81)}, {v(81)}
                  v_add_f32 {v(80)}, 1.0, {v(80)}
                  v_add_f32 {v(81)}, 1.0, {v(81)}
                  v_rcp_f32 {v(80)}, {v(80)}
                  v_rcp_f32 {v(81)}, {v(81)}
                  v_mul_f32 {v(y)}, {v(y)}, {v(80)}
                  v_mul_f32 {v(y+1)}, {v(y+1)}, {v(81)}
                  v_accvgpr_read_b32 {v(32+2*i)}, {a(2*i)}
                  v_accvgpr_read_b32 {v(33+2*i)}, {a(2*i+1)}""")
        stamp()
        reduce_in(32, 80, C_R3, lambda sl: [14 + 2 * sl, 15 + 2 * sl], slotoffs(12))
        vS = 32
    else:
        for j in range(28):
            A.wait_vm(("H", 2 * j + 1))
            A.wait_lg(("s", 28 + j))
            if 2 * j + NH == 28:
                peek_check()
            rd = sread_p(43 + j) if 1 <= j <= 20 else [None, None]
            rf = (refill_p(43 + j - 1 + NRING) if j >= 2 else []) or [None, None]
            ld = [(lambda n=n: bload(n)) if n < 56 else None for n in (2 * j + NH, 2 * j + NH + 1)]
            for sl, todo in ((0, [rf[0]]), (2, [ld[0], rd[0]]), (1, [rf[1]]), (3, [ld[1], rd[1]])):
                mfma(v(acc6[sl], 16), a(sreg(28 + j, sl >> 1), 4), v(hslots[(2 * j + (sl & 1)) % NH], 4), 0 if j == 0 and sl else None)
                for f in todo:
                    if f:
                        f()
            if 2 * j + NH == 22:
                peek_issue(setup_tb(FG2, 0xffffff01))
            if "p6" in OPT and j in (3, 8, 9, 13, 18, 22):
                stamp()
            if j == 23:
                A.drain_lg()
                A(f"v_add_u32 {v(24)}, {s(sPA)}, {v(vL16)}\nv_add_u32 {v(25)}, {s(sPB)}, {v(vL16)}")
            if j == 25:
                peek_issue(setup_tb(FO, 0xffffff00), 16, 18)
        stamp()

        def mk2(sl):
            A(f"""s_xor_b32 {s(sT0)}, {s(sW)}, {sl}
                  s_mul_i32 {s(sT1)}, {s(sT0)}, 14336
                  s_mul_i32 {s(sT0)}, {s(sT0)}, 11264
                  s_add_u32 {s(sT0)}, {s(sT0)}, {LQ}
                  v_add_u32 {v(50+2*sl)}, {s(sT1)}, {v(vL16)}
                  v_add_u32 {v(51+2*sl)}, {s(sT0)}, {v(vL16)}""")
            return [50 + 2 * sl, 51 + 2 * sl]

        def oloads():
            for kq in range(8):
                if kq % 4 == 0:
                    A(f"s_mov_b32 {s(sV)}, {OB + 1024 * kq}")
                for sl in range(2):
                    A.vmem(f"buffer_load_dwordx4 {a(8 * kq + 4 * sl, 4)}, {v(vO+sl)}, {s(SW,4)}, {s(sV)} offen offset:{(kq & 3) * 1024} sc1", ("o", kq))

        later, both = A.newlabel("ol"), A.newlabel("ob")
        A.wait_vm("peek")
        A(f"""v_cmp_eq_u64 vcc, {s(sN,2)}, {v(16,2)}
              s_or_b64 vcc, vcc, {s(sINV,2)}
              s_cmp_eq_u64 vcc, -1
              s_cselect_b32 {s(sRH)}, 1, 0
              s_cbranch_scc0 {later}""")
        oloads()
        A.label(later)
        A("s_nop 5")
        reduce_out([("v", 80), ("v", 96), ("v", 112)], C_R2, vRW2, slotoffs(0))
        vG = 32
        reduce_in(64, 80, C_R2, mk2, slotoffs(0))
        for i in range(8):
            y = 64 + 2 * i
            A(f"""v_mul_f32 {v(80)}, {f32(-LOG2E)}, {v(y)}
                  v_mul_f32 {v(81)}, {f32(-LOG2E)}, {v(y+1)}
                  v_exp_f32 {v(80)}, {v(80)}
                  v_exp_f32 {v(81)}, {v(81)}
                  v_add_f32 {v(80)}, 1.0, {v(80)}
                  v_add_f32 {v(81)}, 1.0, {v(81)}
                  v_rcp_f32 {v(80)}, {v(80)}
                  v_rcp_f32 {v(81)}, {v(81)}
                  v_mul_f32 {v(vG+2*i)}, {v(y)}, {v(80)}
                  v_mul_f32 {v(vG+2*i+1)}, {v(y+1)}, {v(81)}""")
        stamp()
        A(f"s_cmp_lg_u32 {s(sRH)}, 0\ns_cbranch_scc1 {both}")
        keep = list(A.vm)
        A.vm = []
        peek_check(16, 18)
        oloads()
        A.vm = keep
        A.label(both)
        for kq in range(8):
            A.wait_vm(("o", kq))
            for sl in (1, 2, 3, 0):
                mfma(v(acc6[sl], 16), a(sreg(56 + kq, sl >> 1), 4), a(8 * kq + 4 * (sl & 1), 4), 0 if kq == 0 else None)
        stamp()
        A("s_nop 7\ns_nop 1")
        reduce_out([("v", 80), ("v", 96), ("v", 112)], C_R3, vRW2, slotoffs(12))
        reduce_in(64, 80, C_R3, lambda sl: [50 + 2 * sl, 51 + 2 * sl], slotoffs(12))
        vS = 64
    for i in range(8):
        y = vS + 2 * i
        A(f"""v_lshlrev_b32 {v(80)}, 16, {v(vXD+i)}
              v_and_b32 {v(81)}, 0xffff0000, {v(vXD+i)}
              v_fma_f32 {v(80)}, {v(y)}, {v(vG+2*i)}, {v(80)}
              v_fma_f32 {v(81)}, {v(y+1)}, {v(vG+2*i+1)}, {v(81)}
              v_cvt_pk_bf16_f32 {v(84+i)}, {v(80)}, {v(81)}""")
    A("s_nop 1")
    for p in range(2):
        A(f"v_permlane32_swap_b32 {v(84+4*p)}, {v(86+4*p)}\nv_permlane32_swap_b32 {v(85+4*p)}, {v(87+4*p)}")
    for p in range(2):
        A.vmem(f"buffer_store_dwordx4 {v(84+4*p,4)}, {v(vOUT)}, {s(SOUT,4)}, 0 offen offset:{32*p}", "out")
    stamp()
    dump_stamps()
    A("s_endpgm")

    for blk in late:
        A.lg = []
        blk()
    A.label("L_kv")
    A.vm = list(vm_kv)
    A.lg = []
    A(f"""v_mul_u32_u24 {v(vT0)}, 3584, {v(vC8)}
          s_min_u32 {s(sT2)}, {s(sTB)}, 27
          s_lshl_b32 {s(sT0)}, {s(sT2)}, 7
          s_mul_i32 {s(sT1)}, {s(sW)}, {112 * 3584}
          s_add_u32 {s(sT0)}, {s(sT0)}, {s(sT1)}
          v_add3_u32 {v(vW3)}, {v(vT0)}, {v(vC7)}, {s(sT0)}""")
    for i in range(16):
        A(f"v_sub_f32 {v(acc+i)}, {v(acc+i)}, {v(cs+i)}\nv_mul_f32 {v(acc+i)}, {v(acc+i)}, {v(vR)}")
    A(f"s_mov_b64 exec, {s(sHI,2)}")
    for i in range(12, 16):
        A(f"v_mov_b32 {v(acc+i)}, 0")
    A("s_mov_b64 exec, -1")
    for i in range(8):
        A(f"v_cvt_pk_bf16_f32 {v(pk+i)}, {v(acc+2*i)}, {v(acc+2*i+1)}")
    A(f"""s_lshl_b32 {s(sT4)}, {s(sGT)}, 12
          s_cmp_eq_u32 {s(sP)}, 1
          s_cbranch_scc1 L_v
          s_mov_b64 exec, {s(sHI,2)}
          v_mov_b32 {v(pk+6)}, {ONES}
          v_mov_b32 {v(pk+7)}, 0x3f80
          s_mov_b64 exec, -1
          buffer_store_dwordx4 {v(pk,4)}, {v(vL16)}, {s(SW,4)}, {s(sT4)} offen sc1
          buffer_store_dwordx4 {v(pk+4,4)}, {v(vL16)}, {s(SW,4)}, {s(sT4)} offen offset:1024 sc1
          v_mul_f32 {v(72)}, {v(acc)}, {v(acc)}""")
    for i in range(1, 16):
        A(f"v_fma_f32 {v(72)}, {v(acc+i)}, {v(acc+i)}, {v(72)}")
    halves(72, 73)
    A(f"""v_add_f32 {v(72)}, {v(72)}, {v(73)}
          v_mov_b32 {v(73)}, {L_KM}
          ds_max_u32 {v(73)}, {v(72)}
          s_branch L_kvdone""")
    A.label("L_v")
    A(f"""s_mov_b64 exec, {s(sHI,2)}
          v_mov_b32 {v(pk+6)}, 0x3f80
          s_mov_b64 exec, -1
          s_lshl_b32 {s(sT0)}, {s(sTT)}, 12
          s_add_u32 {s(sT0)}, {s(sT0)}, {L_VT}
          v_and_b32 {v(72)}, 31, {v(vLANE)}
          v_bfe_u32 {v(74)}, {v(72)}, 1, 1
          v_lshlrev_b32 {v(74)}, 6, {v(74)}
          v_lshrrev_b32 {v(73)}, 5, {v(vLANE)}
          v_lshl_add_u32 {v(73)}, {v(73)}, 3, {v(74)}
          v_lshl_add_u32 {v(72)}, {v(72)}, 7, {v(73)}
          v_add_u32 {v(72)}, {s(sT0)}, {v(72)}
          v_add3_u32 {v(73)}, {v(vTRD)}, {v(103)}, {s(sT0)}""")
    for g in range(4):
        A.ds(f"ds_write_b64 {v(72)}, {v(pk+2*g,2)} offset:{16*g}", "vt")
    for c in range(2):
        tr(("v", 76 + 4 * c), 73, c * 2048, 1024, "vr")
    A.drain_lg()
    A(f"buffer_store_dwordx4 {v(76,4)}, {v(vL16)}, {s(SW,4)}, {s(sT4)} offen offset:2048 sc1")
    A(f"buffer_store_dwordx4 {v(80,4)}, {v(vL16)}, {s(SW,4)}, {s(sT4)} offen offset:3072 sc1")
    A.label("L_kvdone")
    A.vm += ["kv", "kv"]
    nonce_take(30)
    signal(N_K, f"s_lshl_b32 {s(sT0)}, {s(sTB)}, 7\ns_add_u32 {s(sT0)}, {s(sT0)}, {FK}", "kv", payload=L_KM)
    stamps["n"] = 2
    stamp()
    await_cnt(C_PA, 8)
    for j in range(7):
        image(sPA, j * 2048, vW3, SQ, lambda e, j=j: f"s_mov_b32 {s(sT0)}, {j * 16 * 3584 + e}", 3584, "W3")
    A(f"""s_lshl_b32 {s(sT0)}, {s(sTB)}, 2
          s_add_u32 {s(sT0)}, {s(sT0)}, {s(sW)}
          s_mul_i32 {s(sT1)}, {s(sT0)}, 12544
          s_mul_i32 {s(sT2)}, {s(sT0)}, 3136
          v_lshlrev_b32 {v(74)}, 7, {v(vLANE)}""")
    if "notouch" not in OPT:
        A.vmem(f"buffer_load_dword {v(84)}, {v(74)}, {s(S4,4)}, {s(sT1)} offen", "t")
        A(f"s_add_u32 {s(sT1)}, {s(sT1)}, 8192\ns_bfm_b64 exec, 34, 0")
        A.vmem(f"buffer_load_dword {v(85)}, {v(74)}, {s(S4,4)}, {s(sT1)} offen", "t")
        A("s_bfm_b64 exec, 25, 0")
        A.vmem(f"buffer_load_dword {v(86)}, {v(74)}, {s(SO,4)}, {s(sT2)} offen", "t")
        A("s_mov_b64 exec, -1")
    A(f"v_add3_u32 {v(72)}, {v(vTRD)}, {v(103)}, {s(sPA)}\nv_xor_b32 {v(73)}, 64, {v(72)}")
    A.wait_vm("W3")
    for i in range(14):
        tr(("a", 4 * i), 72 + (i & 1), (i >> 1) * 2048, 1024, ("c", i))
    for i in range(14):
        A.wait_lg(("c", i))
        mfma(v(32 + 16 * (i & 1), 16), v(ones, 4), a(4 * i, 4), 0 if i < 2 else None)
    A(f"""s_lshl_b32 {s(sT0)}, {s(sW)}, 8
          s_add_u32 {s(sT0)}, {s(sT0)}, {LA + 32768}
          v_lshlrev_b32 {v(73)}, 2, {v(vLANE)}
          v_add_u32 {v(74)}, {s(sT0)}, {v(73)}
          s_nop 7
          v_cndmask_b32 {v(72)}, {v(32)}, {v(48)}, {s(sHI,2)}
          ds_write_b32 {v(74)}, {v(72)}""")
    arrive(C_R1)
    A(f"s_cmp_gt_u32 {s(sTB)}, 27\ns_cbranch_scc1 L_kvend\ns_cmp_lg_u32 {s(sW)}, 0\ns_cbranch_scc1 L_kvend")
    await_cnt(C_R1)
    A(f"""ds_read_b32 {v(75)}, {v(74)} offset:256
          ds_read_b32 {v(76)}, {v(74)} offset:512
          ds_read_b32 {v(77)}, {v(74)} offset:768
          s_lshl_b32 {s(sT1)}, {s(sTB)}, 9
          s_add_u32 {s(sT1)}, {s(sT1)}, {CS}
          v_lshlrev_b32 {v(74)}, 3, {v(vLANE)}
          s_waitcnt lgkmcnt(0)
          v_add_f32 {v(72)}, {v(72)}, {v(75)}
          v_add_f32 {v(73)}, {v(76)}, {v(77)}
          buffer_store_dwordx2 {v(72,2)}, {v(74)}, {s(SW,4)}, {s(sT1)} offen sc1
          s_lshl_b32 {s(sT0)}, {s(sTB)}, 7
          s_add_u32 {s(sT0)}, {s(sT0)}, {FC}
          v_mov_b32 {v(vT0)}, {s(sN)}
          v_mov_b32 {v(vT1)}, {s(sN+1)}
          v_mov_b32 {v(vT3)}, 0
          s_waitcnt vmcnt(0)
          s_mov_b64 exec, 1
          buffer_store_dwordx2 {v(vT0,2)}, {v(vT3)}, {s(SW,4)}, {s(sT0)} offen sc1
          s_mov_b64 exec, -1""")
    A.label("L_kvend")
    arrive(C_P4)
    stamp()
    dump_stamps()
    A("s_endpgm")


def att(vm_entry):
    A.label("L_att")
    A.vm = list(vm_entry)
    A.lg = []
    stamps["n"] = 1
    acc, cs, ring, ones = 32, 48, 64, 96
    vM, vR = 8, 9
    A(f"""s_mul_i32 {s(sT0)}, {s(sCB)}, 112
          s_lshl_b32 {s(sT1)}, {s(sW)}, 3
          v_add_u32 {v(vT0)}, {s(sT1)}, {v(vC8)}
          v_mul_u32_u24 {v(vT0)}, 896, {v(vT0)}
          v_add3_u32 {v(vWQ)}, {v(vT0)}, {v(vC7)}, {s(sT0)}
          s_lshl_b32 {s(sPA)}, {s(sW)}, 10
          s_mul_i32 {s(sT0)}, {s(sP)}, 56
          v_add_u32 {v(103)}, {s(sT0)}, {v(103)}
          v_xor_b32 {v(103)}, {v(103)}, {v(102)}
          v_add_u32 {v(vT0)}, {v(vTRN)}, {v(103)}
          v_add_u32 {v(10)}, {LQ}, {v(vT0)}
          v_add_u32 {v(11)}, {LA}, {v(vT0)}""")
    nq0 = int(OPT.get("nq0", 11))
    for n in range(nq0):
        dma(sPA, LQ + n * 4096, vWQ, SQ, (f"s_mov_b32 {s(sT0)}, {n * 32 * 896}", s(sT0)), "WQ")
    early_stamp(6)
    A.wait_vm("X")
    barrier()
    early_dump()
    stamp()

    def first():
        for n in range(nq0, 14):
            dma(sPA, LQ + n * 4096 if n < 11 else LA + (n - 11) * 4096, vWQ, SQ, (f"s_mov_b32 {s(sT0)}, {n * 32 * 896}", s(sT0)), "WQ")
        nonce_issue(12)
        touch("p1")
    stat_part(lambda: None)
    barrier()
    first()
    stat_read()
    for ks in range(28):
        A.ds(f"ds_read_b128 {a(4*ks,4)}, {v(vXF + (ks & 3))} offset:{(ks >> 2) * 8192}", ("x", ks))
    stat_fin(vM, vR)
    A(f"v_add_f32 {v(vR)}, {f32(EPS)}, {v(vR)}\nv_rsq_f32 {v(vR)}, {v(vR)}")
    A.drain_lg()
    arrive(C_PA)
    A(f"v_mul_f32 {v(vR)}, {f32(QSCALE)}, {v(vR)}")
    A.wait_vm(["WQ", "nonce"])
    arrive(C_WQ)
    nonce_take(12)
    await_cnt(C_WQ)
    stamp()

    def wq(ks):
        tr(("v", ring + 4 * (ks % 8)), 10 if ks < 22 else 11, (ks % 22) * 2048, 512, ("w", ks))
    vG, vF = 12, 104
    aO, aQ, aK, vV = 0, 48, 80, 72
    O0, S, P = 16, [32, 48], 64

    def setup_k():
        A(f"""v_lshlrev_b32 {v(vT1)}, 7, {v(vLANE)}
              v_add_u32 {v(vT1)}, {FK}, {v(vT1)}
              s_mov_b64 {s(sINV,2)}, {s(sHI,2)}""")
        lanes_to(vT1)

    misc = f"""s_lshl_b32 {s(sT0)}, {s(sW)}, 11
          s_add_u32 {s(sT0)}, {s(sT0)}, {L_QG}
          v_add_u32 {v(vG)}, {s(sT0)}, {v(vL16)}
          s_lshl_b32 {s(sT0)}, {s(sW)}, 8
          s_add_u32 {s(sT0)}, {s(sT0)}, {L_QN}
          v_lshlrev_b32 {v(14)}, 2, {v(vLANE)}
          v_add_u32 {v(15)}, {s(sT0)}, {v(14)}
          v_add_u32 {v(14)}, {L_QN}, {v(14)}
          s_add_u32 {s(sT0)}, {s(sCB)}, {s(sTB)}
          s_and_b32 {s(sT0)}, {s(sT0)}, 3
          s_lshl_b32 {s(sK)}, {s(sT0)}, 14
          s_add_u32 {s(sV)}, {s(sK)}, 0x4000
          s_and_b32 {s(sV)}, {s(sV)}, 0xffff
          s_lshl_b32 {s(sT0)}, {s(sW)}, 16
          v_add_u32 {v(vF)}, {s(sT0)}, {v(vL16)}
          v_add_u32 {v(vF+1)}, 4096, {v(vF)}
          v_add_u32 {v(vF+2)}, 8192, {v(vF)}
          v_add_u32 {v(vF+3)}, 12288, {v(vF)}""".split("\n")
    misc += [f"v_mov_b32 {v(O0+i)}, 0" for i in range(16)]
    misc += [f"v_xor_b32 {v(108+sl)}, {sl << 11}, {v(vG)}" for sl in range(1, 4)]

    def qstep(ks):
        if ks + 6 < 28:
            wq(ks + 6)
        A.wait_lg(("w", ks))
        mfma(v(acc, 16), v(ring + 4 * (ks % 8), 4), a(4 * ks, 4), 0 if ks == 0 else None)
        mfma(v(cs, 16), v(ring + 4 * (ks % 8), 4), v(ones, 4), 0 if ks == 0 else None)
    for ks in range(6):
        wq(ks)
    weave(A, [lambda ks=ks: qstep(ks) for ks in range(28)], [lambda t=t: A(t) for t in misc])
    hi = "prl" not in OPT

    def kload(slot, base):
        for c in range(2):
            A.vmem(f"buffer_load_dwordx4 {a(aK + 8*slot + 4*c, 4)}, {v(vF+slot)}, {s(SW,4)}, {s(base)} offen offset:{c*1024} sc1", "K")

    def vload(slot, base):
        for c in range(2):
            A.vmem(f"buffer_load_dwordx4 {v(vV + 8*slot + 4*c, 4)}, {v(vF+slot)}, {s(SW,4)}, {s(base)} offen offset:{2048 + c*1024} sc1", "V")

    def first_loads():
        A("s_setprio 3")
        for slot in range(3):
            kload(slot, sK)
            vload(slot, sK)
            if slot == 0:
                A("s_setprio " + OPT.get("aprio", "0"))
        kload(3, sK)
        A.vm = []

    stamp()
    A("s_nop 7")
    q = acc
    for i in range(16):
        A(f"v_fma_f32 {v(q+i)}, -{v(cs+i)}, {v(vM)}, {v(q+i)}\nv_mul_f32 {v(q+i)}, {v(q+i)}, {v(vR)}")
    A(f"s_mov_b64 exec, {s(sHI,2)}")
    for i in range(12, 16):
        A(f"v_mov_b32 {v(q+i)}, 0")
    A("s_mov_b64 exec, -1")
    for i in range(8):
        A(f"v_cvt_pk_bf16_f32 {v(48+i)}, {v(q+2*i)}, {v(q+2*i+1)}")
    A.ds(f"ds_write_b128 {v(vG)}, {v(48,4)}", "qg")
    A.ds(f"ds_write_b128 {v(vG)}, {v(52,4)} offset:1024", "qg")
    A(f"v_mul_f32 {v(56)}, {v(q)}, {v(q)}")
    for i in range(1, 16):
        A(f"v_fma_f32 {v(56)}, {v(q+i)}, {v(q+i)}, {v(56)}")
    halves(56, 57)
    A(f"v_add_f32 {v(56)}, {v(56)}, {v(57)}")
    A.ds(f"ds_write_b32 {v(15)}, {v(56)}", "qg")
    arrive(C_Q)
    for i in range(48):
        A(f"v_accvgpr_write_b32 {a(aO+i)}, 0")
    for i in range(4):
        A(f"v_mov_b32 {v(P+4+i)}, 0\nv_mov_b32 {v(vV+28+i)}, 0")
    await_cnt(C_Q)
    for sl in range(4):
        for c in range(2):
            A.ds(f"ds_read_b128 {a(aQ + 8*sl + 4*c, 4)}, {v(108+sl if sl else vG)} offset:{c*1024}", "q")
    for sl in range(4):
        A.ds(f"ds_read_b32 {v(120+sl)}, {v(14)} offset:{sl*256}", "q")
    A.drain_lg()
    arrive(C_QD)
    A("s_setprio 3")
    gate(G_K, setup_k, 112, payload=lambda: A(f"v_mov_b32 {v(113)}, {L_KP}\nds_max_u32 {v(113)}, {v(114)}"))
    stamp()
    A(f"v_mov_b32 {v(113)}, {L_KP}\nds_read_b32 {v(112)}, {v(113)}")
    first_loads()
    A(f"""s_waitcnt lgkmcnt(0)
          v_max3_f32 {v(120)}, {v(120)}, {v(121)}, {v(122)}
          v_max_f32 {v(120)}, {v(120)}, {v(123)}
          v_mul_f32 {v(108)}, {v(112)}, {v(120)}
          v_cmp_nge_f32 vcc, {f32(-1.0 if FORCE_SLOW else BOUND2)}, {v(108)}
          s_cmp_lg_u64 vcc, 0
          s_cbranch_scc1 L_slow""")
    A.label("L_fast")
    A("s_waitcnt vmcnt(12)")

    def Oreg(sl):
        return v(O0, 16) if sl == 0 else a(aO + 16 * (sl - 1), 16)

    mfma(v(S[0], 16), a(aK, 4), a(aQ, 4), 0)
    mfma(v(S[0], 16), a(aK + 4, 4), a(aQ + 4, 4))
    A(f"s_mov_b32 {s(sT4)}, 4\ns_nop 7\ns_nop 1")
    A.label("L_aloop")

    def period(sg, qt):
        cur, nxt = S[qt & 1], S[(qt + 1) & 1]
        ks = sg if qt < 3 else (sg + 1) & 3
        vs = sg if qt > 0 else (sg - 1) & 3
        nq, pq = (qt + 1) & 3, (qt - 1) & 3
        e = lambda i: A(f"v_exp_f32 {v(cur+i)}, {v(cur+i)}")
        c = lambda i: A(f"v_cvt_pk_bf16_f32 {v(P+i)}, {v(cur+2*i)}, {v(cur+2*i+1)}")
        if qt == 3:
            A("s_waitcnt vmcnt(10)")
        mfma(v(nxt, 16), a(aK + 8 * ks, 4), a(aQ + 8 * nq, 4), 0)
        if qt in (1, 3):
            if hi:
                A("s_setprio 3")
            if qt == 3:
                kload(sg, sV)
            else:
                vload((sg - 1) & 3, sK if sg == 0 else sV)
            if hi:
                A("s_setprio " + OPT.get("aprio", "0"))
        e(0); e(1); e(2); e(3)
        mfma(Oreg(pq), v(vV + 8 * vs + 4, 4), v(P + 4, 4))
        c(0); c(1); e(4); e(5); e(6); e(7)
        mfma(v(nxt, 16), a(aK + 8 * ks + 4, 4), a(aQ + 8 * nq + 4, 4))
        c(2); c(3); e(8); e(9); e(10); e(11)
        if qt == 0:
            A("s_waitcnt vmcnt(10)")
        mfma(Oreg(qt), v(vV + 8 * sg, 4), v(P, 4))
        c(4); c(5); e(12); e(13); e(14); e(15); c(6); c(7)

    for sg in range(4):
        for qt in range(4):
            period(sg, qt)
            A.vm = []
    A(f"""s_mov_b32 {s(sK)}, {s(sV)}
          s_add_u32 {s(sV)}, {s(sV)}, 0x4000
          s_and_b32 {s(sV)}, {s(sV)}, 0xffff
          s_cmp_eq_u32 {s(sT4)}, 2
          s_cselect_b32 {s(sV)}, {OOB}, {s(sV)}
          s_sub_u32 {s(sT4)}, {s(sT4)}, 1
          s_cmp_lg_u32 {s(sT4)}, 0
          s_cbranch_scc1 L_aloop""")
    mfma(Oreg(3), v(vV + 28, 4), v(P + 4, 4))
    stamp()
    A("s_setprio 3")
    await_cnt(C_P4)
    A(f"""s_mul_i32 {s(sT0)}, {s(sW)}, 12288
          s_add_u32 {s(sT0)}, {s(sT0)}, {LA}
          v_add_u32 {v(8)}, {s(sT0)}, {v(vL16)}
          s_nop 7""")
    offs = [(0, i * 1024) for i in range(12)]
    reduce_out([("a", aO), ("a", aO + 16), ("a", aO + 32)], C_MRG, [8], offs)

    def mk(sl):
        A(f"""s_xor_b32 {s(sT0)}, {s(sW)}, {sl}
              s_mul_i32 {s(sT0)}, {s(sT0)}, 12288
              s_add_u32 {s(sT0)}, {s(sT0)}, {LA}
              v_add_u32 {v(8+sl)}, {s(sT0)}, {v(vL16)}""")
        return [8 + sl]
    reduce_in(O0, [32, 48, 104], C_MRG, mk, offs)
    A(f"v_mov_b32 {v(32)}, {v(O0+12)}")
    halves(32, 33)
    A(f"""v_rcp_f32 {v(33)}, {v(33)}
          s_lshl_b32 {s(sT0)}, {s(sGT)}, 4
          s_lshl_b32 {s(sT1)}, {s(sCB)}, 1
          s_add_u32 {s(sT0)}, {s(sT0)}, {s(sT1)}
          s_add_u32 {s(sT0)}, {s(sT0)}, {s(sP)}
          s_lshl_b32 {s(sT0)}, {s(sT0)}, 11
          s_add_u32 {s(sT4)}, {s(sT0)}, {OB}""")
    for i in range(16):
        A(f"v_mul_f32 {v(O0+i)}, {v(O0+i)}, {v(33)}")
    for i in range(8):
        A(f"v_cvt_pk_bf16_f32 {v(40+i)}, {v(O0+2*i)}, {v(O0+2*i+1)}")
    A(f"s_mov_b64 exec, {s(sHI,2)}\nv_mov_b32 {v(46)}, 0\nv_mov_b32 {v(47)}, 0\ns_mov_b64 exec, -1")
    A(f"buffer_store_dwordx4 {v(40,4)}, {v(vL16)}, {s(SW,4)}, {s(sT4)} offen sc1")
    A(f"buffer_store_dwordx4 {v(44,4)}, {v(vL16)}, {s(SW,4)}, {s(sT4)} offen offset:1024 sc1")
    signal(N_O, own_slot(FO))
    stamp()
    dump_stamps()
    A("s_endpgm")

    A.label("L_slow")
    mx, kf = 108, 112
    for sl in range(4):
        A(f"v_mov_b32 {v(mx+sl)}, 0xff800000")
    A(f"s_mov_b32 {s(sT4)}, 0")
    A.label("L_sloop")
    A(f"""buffer_load_dwordx4 {v(kf,4)}, {v(vF)}, {s(SW,4)}, {s(sT4)} offen sc1
          buffer_load_dwordx4 {v(kf+4,4)}, {v(vF)}, {s(SW,4)}, {s(sT4)} offen offset:1024 sc1
          s_add_u32 {s(sT4)}, {s(sT4)}, 4096
          s_waitcnt vmcnt(0)""")
    for sl in range(4):
        mfma(v(S[0], 16), v(kf, 4), a(aQ + 8 * sl, 4), 0)
        mfma(v(S[0], 16), v(kf + 4, 4), a(aQ + 8 * sl + 4, 4))
        A("s_nop 11")
        for i in range(8):
            A(f"v_max3_f32 {v(mx+sl)}, {v(mx+sl)}, {v(S[0]+2*i)}, {v(S[0]+2*i+1)}")
    A(f"s_cmp_lt_u32 {s(sT4)}, 0x10000\ns_cbranch_scc1 L_sloop")
    A(f"v_and_b32 {v(kf)}, 31, {v(vLANE)}\nv_lshlrev_b32 {v(kf)}, 2, {v(kf)}\nv_add_u32 {v(kf)}, {L_MX}, {v(kf)}")
    for sl in range(4):
        halves(mx + sl, kf + 1)
        A(f"""v_max_f32 {v(mx+sl)}, {v(mx+sl)}, {v(kf+1)}
              s_xor_b32 {s(sT0)}, {s(sW)}, {sl}
              s_lshl_b32 {s(sT0)}, {s(sT0)}, 7
              v_add_u32 {v(kf+4+sl)}, {s(sT0)}, {v(kf)}""")
    A(f"ds_write_b32 {v(kf+4)}, {v(mx)}")
    arrive(C_MAX)
    await_cnt(C_MAX)
    for sl in range(1, 4):
        A(f"ds_max_f32 {v(kf+4+sl)}, {v(mx+sl)}")
    arrive(C_MAX)
    await_cnt(C_MAX, 8)
    t = 120
    for sl in range(4):
        A(f"""ds_read_b32 {v(t)}, {v(kf+4+sl)}
              s_waitcnt lgkmcnt(0)
              v_sub_f32 {v(t)}, 0, {v(t)}
              v_cvt_pk_bf16_f32 {v(t+1)}, {v(t)}, {v(t)}
              v_and_b32 {v(t+1)}, 0xffff0000, {v(t+1)}
              v_sub_f32 {v(t+2)}, {v(t)}, {v(t+1)}
              v_cvt_pk_bf16_f32 {v(t+3)}, {v(t)}, {v(t+2)}
              v_and_b32 {v(t+1)}, 0xffff0000, {v(t+3)}
              v_sub_f32 {v(t+2)}, {v(t+2)}, {v(t+1)}
              v_cvt_pk_bf16_f32 {v(t+2)}, {v(t+2)}, 0
              s_mov_b64 exec, {s(sHI,2)}
              v_accvgpr_write_b32 {a(aQ + 8*sl + 6)}, {v(t+3)}
              v_accvgpr_write_b32 {a(aQ + 8*sl + 7)}, {v(t+2)}
              s_mov_b64 exec, -1""")
    A("s_nop 1\ns_branch L_fast")


def header():
    ref = open(f"cdna_kernels/{NAME}.s.ref").read().split("\n")
    out = [l for l in ref if l.startswith(";") and "@launch" not in l and "Override" not in l and "grid=ceil" not in l]
    out.append(f"; @launch grid=(256,1,1) block=(512,1,1) lds={LDS_SIZE}")
    out += ['.amdgcn_target "amdgcn-amd-amdhsa--gfx950"', ".text", f".globl {NAME}_kernel", ".p2align 8",
            f".type {NAME}_kernel,@function", f"{NAME}_kernel:"]
    return "\n".join(out) + "\n"


def footer():
    return f"""L_end:
    s_endpgm
L_code_end:
.section .rodata,"a"
.p2align 6
.amdhsa_kernel {NAME}_kernel
  .amdhsa_next_free_vgpr 256
  .amdhsa_next_free_sgpr 102
  .amdhsa_accum_offset 128
  .amdhsa_group_segment_fixed_size 0
  .amdhsa_kernarg_size 104
  .amdhsa_user_sgpr_count 2
  .amdhsa_user_sgpr_kernarg_segment_ptr 1
  .amdhsa_system_sgpr_workgroup_id_x 1
.end_amdhsa_kernel
"""


if __name__ == "__main__":
    vm0 = prologue()
    mlp(vm0)
    att(vm0)
    out = [x for x in sys.argv[1:] if not x.startswith("--")]
    open(out[0] if out else "k.s", "w").write(header() + A.text() + footer())
```

```python
import math
import sys
from asmlib import Asm, a, f32, s, v, weave

NAME = "recurrent_scan__grouped_kv_mqa__mixer_s_mlp__prompt"
PROFILE = "--prof" in sys.argv or "--cyc" in sys.argv
CLOCK = "s_memtime" if "--cyc" in sys.argv else "s_memrealtime"
FORCE_SLOW = "--slow" in sys.argv
OPT = {x[2:].split("=")[0]: (x.split("=") + [""])[1] for x in sys.argv if x.startswith("--")}


class Stop(Exception):
    pass


def cut(name):
    if OPT.get("mlpstop") == name:
        arrive(C_P4)
        A.drain_vm()
        dump_stamps()
        A("s_endpgm")


KV, CS, FK, FC, FH, FX, FG, FO, FG2 = 0x0, 0x40000, 0x48000, 0x49000, 0x50000, 0x58000, 0x60000, 0x68000, 0x70000
TS = 0x80000
HB, ST, X1, HH, OB = 0x100000, 0x2C0000, 0x300000, 0x500000, 0xC00000
WS_SIZE = 0xE00000
OOB = 0x7FFF0000
LX, LA, LQ, LS = 0, 57344, 114688, 159744
LDS_SIZE = 163840
(C_PA, C_W2, C_WQ, C_Q, C_QD, C_MAX, C_MRG, C_R1, C_XA, C_XB, C_P4, C_R2, C_R3, N_H, N_X, N_G, N_G2, N_O, N_K, N_C,
 G_H, G_X, G_G, G_G2, G_O, G_K, L_KM, L_KP) = [LS + 4 * i for i in range(28)]
L_QN, L_STAT = LS + 1024, LS + 2048
L_MX = LS + 256
L_QG, L_VT = LA + 16384, LA + 24576
NRING = 12
assert L_QG % 8192 == 0
LOG2E = 1.4426950408889634
QSCALE = 28 ** -0.5 * LOG2E
GC1 = -2 * LOG2E * math.sqrt(2 / math.pi)
GC2 = GC1 * 0.044715
EPS = 1e-5
BOUND2 = 3500.0
ONES = 0x3F803F80
GSPIN, LSPIN = 20000, 400000
SX, SA, SQ, SW, S4, SO, SOUT, SD, S2 = 4, 8, 12, 16, 20, 24, 28, 32, 36
P_X, P_WQ, P_WK, P_WV, P_WO, P_W1, P_W2, P_W3, P_W4, P_OUT, P_DBG, P_WS = 40, 42, 44, 46, 48, 52, 54, 56, 58, 60, 62, 64
sN = 66
sW8, sW, sTB, sCB, sTT, sP, sGT = 68, 69, 70, 71, 72, 73, 74
sHI = 76
sINV = 78
sT0, sT1, sT2, sT3, sT4, sT5 = 80, 81, 82, 83, 84, 85
sPA, sPB, sB1, sB4, sSP = 86, 87, 88, 89, 90
sK, sV, sR, sRG, sRH = 91, 92, 93, 96, 97
sTS = 40
vLANE, vL16, vTRN, vTRD, vT0, vT1, vT2, vT3 = 0, 1, 2, 3, 4, 5, 6, 7
MF = "v_mfma_f32_32x32x16_bf16"

A = Asm()
stamps = {"n": 0}


def stamp():
    if PROFILE:
        i = stamps["n"]
        stamps["n"] += 1
        A(f"s_waitcnt lgkmcnt(0)\n{CLOCK} {s(94,2)}\ns_waitcnt lgkmcnt(0)\ns_mov_b32 {s(sTS+i)}, s94")
        if "both" in OPT:
            A(f"s_memrealtime {s(94,2)}\ns_and_b32 {s(sTS+i)}, {s(sTS+i)}, 0xfffff\ns_waitcnt lgkmcnt(0)\n"
              f"s_lshl_b32 s94, s94, 20\ns_or_b32 {s(sTS+i)}, {s(sTS+i)}, s94")
        A.lg = []


def early_stamp(i):
    if "startup" in OPT:
        A(f"s_memtime {s(94,2)}\ns_waitcnt lgkmcnt(0)\ns_mov_b32 {s([98, 99, 100, 101, 3, 75, 97][i])}, s94")


def early_dump():
    if "startup" in OPT:
        for i, r in enumerate([98, 99, 100, 101, 3, 75, 97]):
            A(f"s_mov_b32 {s(sTS+i)}, {s(r)}")
        stamps["n"] = 7
        stamp()
        dump_stamps()
        A("s_endpgm")


def dump_stamps():
    if PROFILE:
        n = stamps["n"]
        A(f"s_lshl_b32 {s(sT0)}, s2, 3\ns_add_u32 {s(sT0)}, {s(sT0)}, {s(sW8)}\ns_lshl_b32 {s(sT0)}, {s(sT0)}, 7\n"
          f"s_add_u32 {s(sT0)}, {s(sT0)}, {TS}\nv_mov_b32 {v(vT1)}, 0")
        for i in range(n):
            A(f"v_mov_b32 {v(vT0)}, {s(sTS+i)}\nbuffer_store_dword {v(vT0)}, {v(vT1)}, {s(SW,4)}, {s(sT0)} offen offset:{4*i}")
        A.drain_vm()
    stamps["n"] = 0


def srd(r, ptr, size):
    A(f"s_mov_b32 {s(r)}, {s(ptr)}\ns_mov_b32 {s(r+1)}, {s(ptr+1)}\ns_mov_b32 {s(r+2)}, {size}\ns_mov_b32 {s(r+3)}, 0x20000")


def mfma(d, x, y, c=None):
    A(f"{MF} {d}, {x}, {y}, {d if c is None else c}")


def dma(m0_base, m0_off, voff, desc, soff, tag, imm=0, sc=""):
    if m0_base is None:
        A(f"s_mov_b32 m0, {m0_off - imm}")
    else:
        A(f"s_add_u32 m0, {s(m0_base)}, {m0_off - imm}")
    pre, so = soff
    if pre:
        A(pre)
    else:
        A("s_nop 0")
    A.vmem(f"buffer_load_dwordx4 {v(voff)}, {s(desc,4)}, {so} offen" + (f" offset:{imm}" if imm else "") + f"{sc} lds", tag)


def tr(dst, addr, off, second, tag):
    k, i = dst
    r = v if k == "v" else a
    A.ds(f"ds_read_b64_tr_b16 {r(i,2)}, {v(addr)} offset:{off}", tag)
    A.ds(f"ds_read_b64_tr_b16 {r(i+2,2)}, {v(addr)} offset:{off+second}", tag)


def arrive(cnt):
    A(f"s_mov_b64 exec, 1\nv_mov_b32 {v(vT0)}, {cnt}\nv_mov_b32 {v(vT1)}, 1")
    A.ds(f"ds_add_u32 {v(vT0)}, {v(vT1)}", "cnt")
    A("s_mov_b64 exec, -1")


def await_cnt(cnt, target=4):
    lp, ok = A.newlabel("ls"), A.newlabel("lk")
    A(f"v_mov_b32 {v(vT0)}, {cnt}\ns_mov_b32 {s(sSP)}, 0")
    A.label(lp)
    A(f"""ds_read_b32 {v(vT1)}, {v(vT0)}
          s_add_u32 {s(sSP)}, {s(sSP)}, 1
          s_waitcnt lgkmcnt(0)
          v_readfirstlane_b32 {s(sT0)}, {v(vT1)}
          s_cmp_ge_u32 {s(sT0)}, {target}
          s_cbranch_scc1 {ok}
          {"s_sleep " + OPT["lsleep"] if "lsleep" in OPT else ""}
          s_cmp_lt_u32 {s(sSP)}, {LSPIN}
          s_cbranch_scc1 {lp}""")
    A.label(ok)
    A.lg = []


def gate(go, setup, tmp, payload=None):
    lp, ok, rest = A.newlabel("gs"), A.newlabel("gk"), A.newlabel("gw")
    every = "allpoll" in OPT and not payload
    if not every:
        A(f"s_cmp_lg_u32 {s(sW)}, 0\ns_cbranch_scc1 {rest}")
    setup()
    A(f"s_mov_b32 {s(sSP)}, 0")
    A.label(lp)
    n = 4 if payload else 2
    A(f"""buffer_load_dwordx{n} {v(tmp,n)}, {v(vT2)}, {s(SW,4)}, 0 offen sc1
          s_add_u32 {s(sSP)}, {s(sSP)}, 1
          s_waitcnt vmcnt(0)
          v_cmp_eq_u64 vcc, {s(sN,2)}, {v(tmp,2)}
          s_or_b64 vcc, vcc, {s(sINV,2)}
          s_cmp_eq_u64 vcc, -1
          s_cbranch_scc1 {ok}
          s_cmp_lt_u32 {s(sSP)}, {GSPIN}
          s_cbranch_scc1 {lp}""")
    A.label(ok)
    if every:
        return
    if payload:
        payload()
    keep = list(A.lg)
    arrive(go)
    A.lg = keep
    A.label(rest)
    await_cnt(go, 1)


def peek_issue(setup, data=vT0, addr=vT2, n=2):
    setup()
    if addr != vT2:
        A(f"v_mov_b32 {v(addr)}, {v(vT2)}")
    A.vmem(f"buffer_load_dwordx{n} {v(data,n)}, {v(addr)}, {s(SW,4)}, 0 offen sc1", "peek")


def peek_check(data=vT0, addr=vT2, n=2):
    lp, ok = A.newlabel("ps"), A.newlabel("pk")
    A.wait_vm("peek")
    A(f"s_mov_b32 {s(sSP)}, {GSPIN}")
    A.label(lp)
    A(f"""v_cmp_eq_u64 vcc, {s(sN,2)}, {v(data,2)}
          s_or_b64 vcc, vcc, {s(sINV,2)}
          s_cmp_eq_u64 vcc, -1
          s_cbranch_scc1 {ok}
          s_sub_u32 {s(sSP)}, {s(sSP)}, 1
          s_cbranch_scc1 {ok}
          buffer_load_dwordx{n} {v(data,n)}, {v(addr)}, {s(SW,4)}, 0 offen sc1
          s_waitcnt vmcnt(0)
          s_branch {lp}""")
    A.label(ok)


def lanes_to(addr_reg):
    A(f"s_mov_b64 vcc, {s(sINV,2)}\nv_mov_b32 {v(vT3)}, {OOB}\nv_cndmask_b32 {v(vT2)}, {v(addr_reg)}, {v(vT3)}, vcc")


def signal(cnt, soff_expr, tags=None, payload=None):
    skip = A.newlabel("sg")
    if tags is None:
        A.drain_vm()
    else:
        A.wait_vm(tags)
    A(f"""s_mov_b64 exec, 1
          v_mov_b32 {v(vT0)}, {cnt}
          v_mov_b32 {v(vT1)}, 1
          ds_add_rtn_u32 {v(vT1)}, {v(vT0)}, {v(vT1)}""")
    if payload:
        A(f"ds_read_b32 {v(vT2)}, {v(vT0)} offset:{payload - cnt}")
    A(soff_expr)
    A(f"""s_waitcnt lgkmcnt(0)
          v_readfirstlane_b32 {s(sT1)}, {v(vT1)}
          s_cmp_lg_u32 {s(sT1)}, 3
          s_cbranch_scc1 {skip}
          v_mov_b32 {v(vT0)}, {s(sN)}
          v_mov_b32 {v(vT1)}, {s(sN+1)}
          v_mov_b32 {v(vT3)}, 0
          buffer_store_dwordx4 {v(vT0,4)}, {v(vT3)}, {s(SW,4)}, {s(sT0)} offen sc1""")
    A.label(skip)
    A("s_mov_b64 exec, -1\ns_nop 0")
    A.lg = []


def nonce_issue(tmp):
    A(f"v_mov_b32 {v(vT3)}, 0")
    A.vmem(f"buffer_load_dwordx2 {v(tmp,2)}, {v(vT3)}, {s(SD,4)}, 0 offen sc1", "nonce")


def nonce_take(tmp):
    lp, ok = A.newlabel("ns"), A.newlabel("nk")
    A.wait_vm("nonce")
    A(f"s_mov_b32 {s(sSP)}, 0\nv_mov_b32 {v(vT3)}, 0")
    A.label(lp)
    A(f"""v_readfirstlane_b32 {s(sN)}, {v(tmp)}
          v_readfirstlane_b32 {s(sN+1)}, {v(tmp+1)}
          s_add_u32 {s(sSP)}, {s(sSP)}, 1
          s_cmp_lg_u64 {s(sN,2)}, 0
          s_cbranch_scc1 {ok}
          s_cmp_ge_u32 {s(sSP)}, {GSPIN}
          s_cbranch_scc1 {ok}
          buffer_load_dwordx2 {v(tmp,2)}, {v(vT3)}, {s(SD,4)}, 0 offen sc1
          s_waitcnt vmcnt(0)
          s_branch {lp}""")
    A.label(ok)


def halves(x, t):
    A(f"v_mov_b32 {v(t)}, {v(x)}\ns_nop 1\nv_permlane32_swap_b32 {v(x)}, {v(t)}")


def wave_max(x, full):
    for sh in (1, 2, 4, 8):
        A(f"s_nop 1\nv_max_f32_dpp {v(x)}, {v(x)}, {v(x)} row_shr:{sh} row_mask:0xf bank_mask:0xf bound_ctrl:0")
    A(f"s_nop 1\nv_max_f32_dpp {v(x)}, {v(x)}, {v(x)} row_bcast:15 row_mask:0xa bank_mask:0xf")
    if full:
        A(f"s_nop 1\nv_max_f32_dpp {v(x)}, {v(x)}, {v(x)} row_bcast:31 row_mask:0xc bank_mask:0xf")
    A("s_nop 1")


def gelu_ops(y, t, dst, c1, c2, ri):
    o = []
    for e in (0, 1):
        o.append(f"v_mul_f32 {v(t+e)}, {v(y+e)}, {v(y+e)}")
    for e in (0, 1):
        o.append(f"v_fma_f32 {v(t+e)}, {v(t+e)}, {v(c2)}, {v(c1)}")
    for e in (0, 1):
        o.append(f"v_mul_f32 {v(t+e)}, {v(t+e)}, {v(y+e)}")
    for e in (0, 1):
        o.append(f"v_exp_f32 {v(t+e)}, {v(t+e)}")
    for e in (0, 1):
        o.append(f"v_fma_f32 {v(t+e)}, {v(t+e)}, {v(ri)}, {v(ri)}")
    for e in (0, 1):
        o.append(f"v_rcp_f32 {v(t+e)}, {v(t+e)}")
    for e in (0, 1):
        o.append(f"v_mul_f32 {v(t+e)}, {v(t+e)}, {v(y+e)}")
    o.append(f"v_cvt_pk_bf16_f32 {v(dst)}, {v(t)}, {v(t+1)}")
    return o


def ring_addr(slot):
    return (sPA, slot * 2048) if slot < 7 else (sPB, (slot - 7) * 2048)


def reduce_out(srcs, cnt, vbase, offs, fill=()):
    def wr(i):
        k, r = srcs[i // 4]
        reg = (v if k == "v" else a)(r + 4 * (i % 4), 4)
        b, o = offs[i]
        A.ds(f"ds_write_b128 {v(vbase[b])}, {reg} offset:{o}", "red")
        if i == 11:
            arrive(cnt)
    weave(A, [lambda i=i: wr(i) for i in range(12)], list(fill))


def reduce_in(acc, tmp, cnt, mkaddr, offs, between=None):
    tmp = tmp if isinstance(tmp, list) else [tmp, tmp + 16, tmp + 32]
    await_cnt(cnt)
    for sl in (1, 2, 3):
        regs = mkaddr(sl)
        for q in range(4):
            b, o = offs[(sl - 1) * 4 + q]
            A.ds(f"ds_read_b128 {v(tmp[sl-1] + 4*q, 4)}, {v(regs[b])} offset:{o}", ("rd", sl))
    if between:
        between()
    for sl in (1, 2, 3):
        A.wait_lg(("rd", sl))
        for i in range(16):
            A(f"v_add_f32 {v(acc+i)}, {v(acc+i)}, {v(tmp[sl-1] + i)}")


vC8, vC7, vXF, vWQ = 100, 101, 104, 109
SXR = [16, 20, 88, 92, 112, 116, 120]


def image(base, off, voff, desc, sreg_expr, rs, tag, halves_=(0, 1)):
    for h in halves_:
        dma(base, off + h * 1024, voff, desc, (sreg_expr(h * 8 * rs), s(sT0)), tag)


def gaps(mfmas, pieces):
    n, m, done = len(mfmas), len(pieces), 0
    for i, f in enumerate(mfmas):
        f()
        while done < -(-m * (i + 1) // n):
            pieces[done]()
            done += 1


def prologue():
    A(f"""s_cmp_ge_u32 s2, 256
          s_cbranch_scc1 L_end
          s_load_dwordx16 {s(40,16)}, s[0:1], 0
          s_load_dwordx8 {s(56,8)}, s[0:1], 64
          s_load_dwordx2 {s(64,2)}, s[0:1], 96
          s_memrealtime {s(sN,2)}
          {CLOCK + " " + s(98,2) if PROFILE else ""}
          s_getpc_b64 {s(sT2,2)}
          v_lshrrev_b32 {v(vT0)}, 6, v0
          s_lshr_b32 {s(sT0)}, s2, 3
          v_readfirstlane_b32 {s(sW8)}, {v(vT0)}
          v_and_b32 {v(vLANE)}, 63, v0
          v_lshlrev_b32 {v(vT2)}, 7, {v(vLANE)}
          s_and_b32 {s(sT2)}, {s(sT2)}, 0xffffff00""")
    A(f"""s_mul_i32 {s(sT4)}, {s(sT0)}, 57
          s_lshr_b32 {s(sT4)}, {s(sT4)}, 9
          s_mul_i32 {s(sT4)}, {s(sT4)}, 9
          s_sub_u32 {s(sT4)}, {s(sT0)}, {s(sT4)}
          s_lshl_b32 {s(sT4)}, {s(sT4)}, 3
          s_add_u32 {s(sT4)}, {s(sT4)}, {s(sW8)}
          s_lshl_b32 {s(sT4)}, {s(sT4)}, 9
          v_add_u32 {v(vT1)}, {s(sT4)}, {v(vT2)}
          v_min_u32 {v(vT1)}, L_code_end-{NAME}_kernel-4, {v(vT1)}
          s_mov_b64 exec, 15""")
    if "nopf" not in OPT:
        A.vmem(f"global_load_dword {a(124)}, {v(vT1)}, {s(sT2,2)}", "pf")
    A("s_mov_b64 exec, -1")
    nk = int(OPT.get("nk", 8))
    if nk == 8:
        A(f"""s_and_b32 {s(sT1)}, {s(sT0)}, 3
              s_and_b32 {s(sTB)}, s2, 7
              s_lshl_b32 {s(sTB)}, {s(sTB)}, 2
              s_add_u32 {s(sTB)}, {s(sTB)}, {s(sT1)}
              s_lshr_b32 {s(sCB)}, {s(sT0)}, 2""")
    else:
        per = 32 // nk
        perm = [int(c) for c in OPT.get("perm", "40516273")]
        A(f"""s_and_b32 {s(sT1)}, s2, 7
              s_lshl_b32 {s(sT1)}, {s(sT1)}, 2
              s_lshr_b32 {s(sT1)}, {sum(p << (4 * i) for i, p in enumerate(perm))}, {s(sT1)}
              s_and_b32 {s(sT1)}, {s(sT1)}, 7
              s_min_u32 {s(sT2)}, {s(sT1)}, {nk - 1}
              s_add_u32 {s(sT2)}, {s(sT2)}, 1
              s_mul_i32 {s(sT2)}, {s(sT2)}, {per}
              s_lshl_b32 {s(sT3)}, {s(sT1)}, 5
              s_add_u32 {s(sT3)}, {s(sT3)}, {s(sT0)}
              s_sub_u32 {s(sT3)}, {s(sT3)}, {s(sT2)}
              s_mul_i32 {s(sTB)}, {s(sT3)}, 9363
              s_lshr_b32 {s(sTB)}, {s(sTB)}, 16
              s_mul_i32 {s(sCB)}, {s(sTB)}, 7
              s_sub_u32 {s(sCB)}, {s(sT3)}, {s(sCB)}
              s_add_u32 {s(sCB)}, {s(sCB)}, 1
              s_mul_i32 {s(sT2)}, {s(sT1)}, {per}
              s_add_u32 {s(sT2)}, {s(sT2)}, {s(sT0)}
              s_cmp_lt_u32 {s(sT1)}, {nk}
              s_cselect_b32 {s(sT1)}, {per}, 0
              s_cmp_lt_u32 {s(sT0)}, {s(sT1)}
              s_cselect_b32 {s(sTB)}, {s(sT2)}, {s(sTB)}
              s_cselect_b32 {s(sCB)}, 0, {s(sCB)}
              s_and_b32 {s(sT1)}, {s(sTB)}, 3""")
    A(f"""v_lshlrev_b32 {v(vL16)}, 4, {v(vLANE)}
          v_lshrrev_b32 {v(vC8)}, 3, {v(vLANE)}
          v_lshrrev_b32 {v(vT0)}, 2, {v(vLANE)}
          v_and_b32 {v(vT0)}, 4, {v(vT0)}
          v_xor_b32 {v(vT0)}, {v(vT0)}, {v(vLANE)}
          v_and_b32 {v(vT0)}, 7, {v(vT0)}
          v_lshlrev_b32 {v(vC7)}, 4, {v(vT0)}""")
    A(f"""s_lshl_b32 {s(sT1)}, {s(sT1)}, 1
          s_add_u32 {s(sT1)}, {s(sT1)}, {s(sW8)}
          s_and_b32 {s(sT1)}, {s(sT1)}, 7
          s_lshl_b32 {s(sT4)}, {s(sT1)}, 10
          s_lshl_b32 {s(sT5)}, {s(sT1)}, 3
          v_add_u32 {v(vT1)}, {s(sT5)}, {v(vC8)}
          s_lshl_b32 {s(sT2)}, {s(sCB)}, 7
          s_sub_u32 {s(sT2)}, {s(sT2)}, 128
          v_mul_u32_u24 {v(vT3)}, 896, {v(vT1)}
          v_add3_u32 {v(103)}, {v(vT3)}, {v(vC7)}, {s(sT2)}
          s_and_b32 {s(sW)}, {s(sW8)}, 3
          s_mul_i32 {s(sT1)}, {s(sW)}, 7168
          v_add_u32 {v(vT3)}, {s(sT1)}, {v(vL16)}
          s_mul_i32 {s(sT1)}, {s(sW8)}, 7168
          s_cmp_eq_u32 {s(sCB)}, 0
          s_cselect_b64 vcc, -1, 0
          s_cselect_b32 {s(sT1)}, {s(sT1)}, {s(sT4)}
          s_mov_b32 {s(sT2)}, 1024
          s_cselect_b32 {s(sT3)}, {s(sT2)}, {64 * 896}
          s_cselect_b32 {s(sT5)}, {s(sT2)}, 8192
          v_cndmask_b32 {v(103)}, {v(103)}, {v(vT3)}, vcc
          s_add_u32 m0, {s(sT1)}, {LA}""")
    A(f"""s_lshl_b32 {s(sB1)}, {s(sTB)}, 3
          s_add_u32 {s(sB1)}, {s(sB1)}, {s(sCB)}
          s_lshl_b32 {s(sB1)}, {s(sB1)}, 3
          s_add_u32 {s(sB1)}, {s(sB1)}, {s(sW8)}
          s_mul_i32 {s(sB1)}, {s(sB1)}, 896
          s_mul_i32 {s(sB4)}, {s(sTB)}, 7
          s_add_u32 {s(sB4)}, {s(sB4)}, {s(sW8)}
          s_mul_i32 {s(sB4)}, {s(sB4)}, {2 * 896}
          s_mul_i32 {s(sT0)}, {s(sCB)}, 112
          s_add_u32 {s(sB4)}, {s(sB4)}, {s(sT0)}
          s_cmp_eq_u32 {s(sW8)}, 7
          s_cselect_b32 {s(sB4)}, {OOB}, {s(sB4)}
          v_lshrrev_b32 {v(102)}, 1, {v(vLANE)}
          v_mul_u32_u24 {v(102)}, 896, {v(102)}
          v_and_b32 {v(vT3)}, 1, {v(vLANE)}
          v_mul_u32_u24 {v(vT3)}, 120, {v(vT3)}
          v_add_u32 {v(102)}, {v(102)}, {v(vT3)}
          s_mov_b32 {s(SX+2)}, 1835008
          s_mov_b32 {s(SX+3)}, 0x20000
          s_mov_b32 {s(SQ+2)}, 401408
          s_mov_b32 {s(SQ+3)}, 0x20000
          s_mov_b32 {s(SA+3)}, 0x20000
          s_mov_b32 {s(SA+2)}, 25088
          s_cmp_eq_u32 {s(sCB)}, 0
          s_cselect_b32 {s(SA+2)}, {s(SA+2)}, 401408
          s_mov_b32 {s(sT0)}, 0
          s_cmp_lt_u32 {s(sW8)}, 4
          s_waitcnt lgkmcnt(0)
          s_cselect_b64 {s(SA,2)}, {s(P_WK,2)}, {s(P_WV,2)}
          s_cmp_eq_u32 {s(sCB)}, 0
          s_cselect_b64 {s(SA,2)}, {s(SA,2)}, {s(P_W1,2)}
          s_mov_b64 {s(SX,2)}, {s(P_X,2)}
          s_mov_b64 {s(SQ,2)}, {s(P_WQ,2)}""")
    early_stamp(1)
    if "nopre" not in OPT:
        A("s_mov_b64 exec, 0x7f")
        A.vmem(f"buffer_load_dword {a(126)}, {v(vT2)}, {s(SX,4)}, {s(sB1)} offen", "pre")
        A("s_mov_b64 exec, 15")
        A.vmem(f"buffer_load_dword {a(125)}, {v(102)}, {s(SQ,4)}, {s(sB4)} offen", "pre")
        A("s_mov_b64 exec, -1")
    for n in range(7):
        if n:
            A(f"s_add_u32 m0, m0, {s(sT5)}\ns_add_u32 {s(sT0)}, {s(sT0)}, {s(sT3)}")
        A.vmem(f"buffer_load_dwordx4 {v(103)}, {s(SA,4)}, {s(sT0)} offen lds", "WA")
    early_stamp(2)
    A(f"""s_lshl_b32 {s(sT0)}, {s(sTB)}, 6
          v_add_u32 {v(vT1)}, {s(sT0)}, {v(vT1)}
          v_mul_u32_u24 {v(vT2)}, 896, {v(vT1)}
          v_lshrrev_b32 {v(vT1)}, 1, {v(vT1)}
          v_xor_b32 {v(vT1)}, {v(vT1)}, {v(vLANE)}
          v_and_b32 {v(vT1)}, 7, {v(vT1)}
          v_lshl_add_u32 {v(vWQ)}, {v(vT1)}, 4, {v(vT2)}
          s_and_b32 {s(sTT)}, {s(sW8)}, 1
          s_lshr_b32 {s(sP)}, {s(sW)}, 1""")
    if PROFILE:
        A(f"s_mov_b32 {s(sTS)}, s98")
        stamps["n"] = 1
    srd(SW, P_WS, WS_SIZE)
    srd(SD, P_DBG, 256)
    A(f"""s_cmp_lg_u32 {s(sW8)}, 0
          s_cbranch_scc1 L_nz
          v_lshlrev_b32 {v(vT0)}, 2, {v(vLANE)}
          v_add_u32 {v(vT0)}, {LS}, {v(vT0)}
          v_mov_b32 {v(vT1)}, 0
          ds_write_b32 {v(vT0)}, {v(vT1)}
          s_waitcnt lgkmcnt(0)
          s_cmp_lg_u32 s2, 0
          s_cbranch_scc1 L_nz
          s_or_b32 {s(sN)}, {s(sN)}, 1
          v_mov_b32 {v(vT2)}, {s(sN)}
          v_mov_b32 {v(vT3)}, {s(sN+1)}
          s_mov_b64 exec, 1
          buffer_store_dwordx2 {v(vT2,2)}, {v(vT1)}, {s(SD,4)}, 0 offen sc1
          s_mov_b64 exec, -1""")
    A.label("L_nz")
    A(f"""s_lshl_b32 {s(sGT)}, {s(sTB)}, 1
          s_add_u32 {s(sGT)}, {s(sGT)}, {s(sTT)}
          s_mov_b32 {s(sHI)}, 0
          s_mov_b32 {s(sHI+1)}, -1""")
    A(f"""v_bfe_u32 {v(vT0)}, {v(vLANE)}, 2, 2
          v_lshlrev_b32 {v(vT0)}, 7, {v(vT0)}
          v_lshrrev_b32 {v(vT1)}, 5, {v(vLANE)}
          v_lshl_add_u32 {v(vTRN)}, {v(vT1)}, 10, {v(vT0)}
          v_lshl_add_u32 {v(vTRD)}, {v(vT1)}, 9, {v(vT0)}
          v_bfe_u32 {v(vT0)}, {v(vLANE)}, 4, 1
          v_and_b32 {v(vT2)}, 3, {v(vLANE)}
          v_lshlrev_b32 {v(vT2)}, 3, {v(vT2)}
          v_lshl_add_u32 {v(103)}, {v(vT0)}, 5, {v(vT2)}
          v_bfe_u32 {v(vT0)}, {v(vLANE)}, 3, 1
          v_lshlrev_b32 {v(102)}, 6, {v(vT0)}""")
    A(f"""v_and_b32 {v(vT3)}, 31, {v(vLANE)}
          s_lshl_b32 {s(sT0)}, {s(sTT)}, 5
          v_add_u32 {v(vT0)}, {s(sT0)}, {v(vT3)}
          v_bfe_u32 {v(vT2)}, {v(vT0)}, 1, 3
          v_lshlrev_b32 {v(vT0)}, 7, {v(vT0)}
          v_xor_b32 {v(vT2)}, {v(vT2)}, {v(vT1)}
          v_lshl_add_u32 {v(vXF)}, {v(vT2)}, 4, {v(vT0)}
          v_xor_b32 {v(vXF+1)}, 32, {v(vXF)}
          v_xor_b32 {v(vXF+2)}, 64, {v(vXF)}
          v_xor_b32 {v(vXF+3)}, 96, {v(vXF)}
          s_lshr_b32 {s(sT1)}, {s(sW8)}, 1
          s_lshl_b32 {s(sT0)}, {s(sT1)}, 5
          v_xor_b32 {v(108)}, {s(sT0)}, {v(vXF)}
          s_lshl_b32 {s(sT0)}, {s(sTT)}, 10
          s_add_u32 {s(sT0)}, {s(sT0)}, {L_STAT}
          v_lshl_add_u32 {v(110)}, {v(vT3)}, 3, {s(sT0)}
          s_lshl_b32 {s(sT0)}, {s(sT1)}, 8
          v_add_u32 {v(111)}, {s(sT0)}, {v(110)}
          v_mov_b32 {v(30)}, 0
          v_mov_b32 {v(31)}, 0
          s_mov_b32 {s(sT5)}, {ONES}""")
    for i in range(4):
        A(f"v_mov_b32 {v(96+i)}, {ONES}")
    A(f"""s_lshl_b32 {s(sT0)}, s2, 3
          s_add_u32 {s(sT0)}, {s(sT0)}, {s(sW8)}
          s_cmp_ge_u32 {s(sT0)}, {392 if OPT.get("tw", "23") == "23" else 4096}
          s_cselect_b64 {s(SA,2)}, {s(P_W3,2)}, {s(P_W2,2)}
          s_mov_b32 {s(SA+2)}, 401408
          s_cselect_b32 {s(SA+2)}, 1605632, {s(SA+2)}
          s_cselect_b32 {s(sT1)}, 392, 0
          s_sub_u32 {s(sT0)}, {s(sT0)}, {s(sT1)}
          s_lshl_b32 {s(sRG)}, {s(sT0)}, {10 if OPT.get("tw", "23") == "23" else 8}""")
    A(f"""s_lshl_b32 {s(sT0)}, {s(sP)}, 6
          v_xor_b32 {v(vT0)}, {v(103)}, {v(102)}
          v_xor_b32 {v(vT0)}, {s(sT0)}, {v(vT0)}
          v_add_u32 {v(vT0)}, {v(vT0)}, {v(vTRN)}
          v_lshrrev_b32 {v(vT1)}, 7, {v(vTRN)}
          v_mul_u32_u24 {v(vT1)}, 56, {v(vT1)}
          s_mul_i32 {s(sT0)}, {s(sP)}, 28672
          v_add3_u32 {v(vT1)}, {v(vT1)}, {v(103)}, {s(sT0)}
          s_cmp_eq_u32 {s(sCB)}, 0
          s_cselect_b64 vcc, -1, 0
          v_cndmask_b32 {v(vT0)}, {v(vT0)}, {v(vT1)}, vcc
          v_add_u32 {v(29)}, {LA}, {v(vT0)}""")
    early_stamp(3)
    barrier()
    for kb in range(7):
        dma(sT4, LX + kb * 8192, vWQ, SX, (None, "0"), "X", imm=kb * 128)
    touch("x")
    early_stamp(4)
    A.wait_vm("WA")
    barrier()
    early_stamp(5)
    A(f"s_cmp_ge_u32 {s(sW8)}, 4\ns_cbranch_scc1 L_att")
    return list(A.vm)


def touch(where):
    if OPT.get("tat", "p1") != where:
        return
    A(f"v_lshlrev_b32 {v(vT0)}, 7, {v(vLANE)}\ns_mov_b64 exec, {255 if OPT.get('tw', '23') == '23' else 3}")
    A.vmem(f"buffer_load_dword {a(127)}, {v(vT0)}, {s(SA,4)}, {s(sRG)} offen", "t")
    A("s_mov_b64 exec, -1")


def stat_part(between):
    for j in range(7):
        A.ds(f"ds_read_b128 {v(SXR[j],4)}, {v(108)} offset:{j*8192}", ("sx", j))
    between()
    for j in range(7):
        A.wait_lg(("sx", j))
        for i in range(4):
            r = SXR[j] + i
            A(f"v_dot2c_f32_bf16 {v(30)}, {s(sT5)}, {v(r)}\nv_dot2c_f32_bf16 {v(31)}, {v(r)}, {v(r)}")
    A("s_nop 2")
    halves(30, vT2)
    halves(31, vT3)
    A(f"v_add_f32 {v(30)}, {v(30)}, {v(vT2)}\nv_add_f32 {v(31)}, {v(31)}, {v(vT3)}")
    A.ds(f"ds_write_b64 {v(111)}, {v(30,2)}", "statw")
    A.drain_lg()


def barrier():
    A("s_barrier")


def stat_read():
    for q in range(4):
        A.ds(f"ds_read_b64 {v(112+2*q,2)}, {v(110)} offset:{q*256}", "stat")


def stat_fin(vM, vVar):
    A.wait_lg("stat")
    for op in stat_fin_ops(vM, vVar):
        A(op)


def stat_fin_ops(vM, vVar):
    return (f"""v_add_f32 {v(112)}, {v(112)}, {v(114)}
          v_add_f32 {v(113)}, {v(113)}, {v(115)}
          v_add_f32 {v(116)}, {v(116)}, {v(118)}
          v_add_f32 {v(117)}, {v(117)}, {v(119)}
          v_add_f32 {v(112)}, {v(112)}, {v(116)}
          v_add_f32 {v(113)}, {v(113)}, {v(117)}
          v_mul_f32 {v(vM)}, {f32(1/448)}, {v(112)}
          v_mul_f32 {v(112)}, {v(vM)}, {v(vM)}
          v_mul_f32 {v(113)}, {f32(1/448)}, {v(113)}
          v_sub_f32 {v(113)}, {v(113)}, {v(112)}
          v_max_f32 {v(vVar)}, 0, {v(113)}""").split("\n")


def own_slot(base):
    return (f"s_lshl_b32 {s(sT0)}, {s(sTB)}, 3\ns_add_u32 {s(sT0)}, {s(sT0)}, {s(sCB)}\n"
            f"s_lshl_b32 {s(sT0)}, {s(sT0)}, 7\ns_add_u32 {s(sT0)}, {s(sT0)}, {base}")


late = []


def mlp(vm_entry):
    A.vm = list(vm_entry)
    vXD, vX1P, vW, vW3, vM, vR, vWA = 8, 16, 24, 26, 27, 28, 29
    vRA, vRB = [2, 3], [25, 31]
    acc, cs, ring, ones = 32, 48, 64, 96
    A("s_setprio " + OPT.get("prio", "2"))
    vXA = 124
    setup = []
    for r, p, n in ((S2, P_W2, 401408), (SQ, P_W3, 1605632), (S4, P_W4, 1605632), (SO, P_WO, 401408), (SOUT, P_OUT, 1835008)):
        setup += [f"s_mov_b64 {s(r,2)}, {s(p,2)}", f"s_mov_b32 {s(r+2)}, {n}", f"s_mov_b32 {s(r+3)}, 0x20000"]
    setup += f"""s_max_u32 {s(sT1)}, {s(sCB)}, 1
          s_sub_u32 {s(sT1)}, {s(sT1)}, 1
          s_lshl_b32 {s(sT4)}, {s(sT1)}, 1
          s_add_u32 {s(sT4)}, {s(sT4)}, {s(sP)}
          s_mul_i32 {s(sPA)}, {s(sW)}, 14336
          s_mul_i32 {s(sPB)}, {s(sW)}, 11264
          s_add_u32 {s(sPB)}, {s(sPB)}, {LQ}
          s_mul_i32 {s(sB1)}, {s(sW)}, {112*896}
          s_mul_i32 {s(sB4)}, {s(sW)}, {448*896}
          s_add_u32 {s(sR)}, {s(sTB)}, {s(sCB)}
          s_and_b32 {s(sR)}, {s(sR)}, 3
          v_mul_u32_u24 {v(vT0)}, 896, {v(vC8)}
          s_lshl_b32 {s(sT0)}, {s(sT1)}, 7
          v_add3_u32 {v(vW)}, {v(vT0)}, {v(vC7)}, {s(sT0)}
          v_mul_u32_u24 {v(vT0)}, 3584, {v(vC8)}
          s_lshl_b32 {s(sT0)}, {s(sT1)}, 9
          s_lshl_b32 {s(sT2)}, {s(sW)}, 7
          s_add_u32 {s(sT0)}, {s(sT0)}, {s(sT2)}
          v_add3_u32 {v(vW3)}, {v(vT0)}, {v(vC7)}, {s(sT0)}
          s_lshl_b32 {s(sT0)}, {s(sP)}, 6
          v_xor_b32 {v(103)}, {v(103)}, {v(102)}
          v_xor_b32 {v(102)}, {s(sT0)}, {v(103)}
          s_lshl_b32 {s(sT3)}, {s(sT1)}, 13
          v_lshrrev_b32 {v(vT1)}, 5, {v(vLANE)}
          v_lshlrev_b32 {v(vT2)}, 4, {v(vT1)}
          v_xor_b32 {v(vXA)}, {v(vXF)}, {v(vT2)}
          v_xor_b32 {v(vXA)}, {s(sT0)}, {v(vXA)}
          v_lshl_add_u32 {v(vXA)}, {v(vT1)}, 3, {v(vXA)}
          v_add_u32 {v(vXA)}, {s(sT3)}, {v(vXA)}
          v_xor_b32 {v(vXA+1)}, 16, {v(vXA)}
          v_xor_b32 {v(vXA+2)}, 32, {v(vXA)}
          v_xor_b32 {v(vXA+3)}, 48, {v(vXA)}""".split("\n")

    def colsums(kstride, second):
        def step(ks):
            if ks < 28:
                tr(("a", 4 * ks), vWA, ks * kstride, second, ("w", ks))
            if ks >= 4:
                A.wait_lg(("w", ks - 4))
                mfma(v(cs, 16), a(4 * (ks - 4), 4), v(ones, 4), 0 if ks == 4 else None)
        weave(A, [lambda ks=ks: step(ks) for ks in range(32)], [lambda t=t: A(t) for t in setup])

    A(f"s_cmp_eq_u32 {s(sCB)}, 0\ns_cbranch_scc1 L_cskv")
    colsums(2048, 512)
    A.label("L_csdone")
    late.append(lambda: (A.label("L_cskv"), colsums(896, 224), A("s_branch L_csdone")))
    early_stamp(6)
    A.wait_vm("X")
    barrier()
    early_dump()
    stamp()
    NX = 6

    def xr(ks):
        A.ds(f"ds_read_b128 {v(ring + 4 * (ks % NX), 4)}, {v(vXF + (ks & 3))} offset:{(ks >> 2) * 8192}", ("x", ks))

    def first():
        for ks in range(NX - 1):
            xr(ks)
        for g in range(4):
            A.ds(f"ds_read_b64 {v(vXD+2*g,2)}, {v(vXA+g)}", "xd")
    stat_part(first)
    barrier()
    vC1g, vC2g, vRI, vR2 = 120, 121, 122, 123
    ne2 = int(OPT.get("ne2", 0))

    def w2dma(j, hs=(0, 1)):
        base, off = (sT3, LA + 24576 + j * 2048) if j < ne2 else (sPA, j * 2048)
        image(base, off, vW, S2, lambda e: f"s_add_u32 {s(sT0)}, {s(sB1)}, {j * 16 * 896 + e}", 896, "W2", hs)
    A(f"s_lshl_b32 {s(sT3)}, {s(sW)}, 13")
    fin = stat_fin_ops(vM, vR) + f"""v_add_f32 {v(vT0)}, {f32(EPS)}, {v(vR)}
          v_rsq_f32 {v(vT1)}, {v(vT0)}
          v_mov_b32 {v(vT3)}, {f32(EPS)}
          v_mul_f32 {v(vT2)}, {v(vT1)}, {v(vT1)}
          v_fma_f32 {v(vT2)}, {v(vT2)}, {v(vR)}, {v(vT3)}
          v_rsq_f32 {v(vT2)}, {v(vT2)}
          v_mov_b32 {v(vR)}, {v(vT1)}
          v_mul_f32 {v(vR2)}, {v(vT1)}, {v(vT2)}
          v_rcp_f32 {v(vRI)}, {v(vR2)}
          v_mul_f32 {v(vC1g)}, {f32(GC1)}, {v(vR2)}
          v_mul_f32 {v(vC2g)}, {v(vR2)}, {v(vR2)}
          v_mul_f32 {v(vC2g)}, {v(vC2g)}, {v(vR2)}
          v_mul_f32 {v(vC2g)}, {f32(GC2)}, {v(vC2g)}""".split("\n")
    fin += [f"v_mul_f32 {v(cs+i)}, {v(cs+i)}, {v(vM)}" for i in range(16)]
    for ks in range(28):
        if ks + NX - 1 < 28:
            xr(ks + NX - 1)
        if ks == 0:
            stat_read()
            nonce_issue(30)
        A.wait_lg(("x", ks))
        mfma(v(acc, 16), a(4 * ks, 4), v(ring + 4 * (ks % NX), 4), 0 if ks == 0 else None)
        if ks == 1:
            touch("p1")
        if 3 <= ks < 3 + 2 * ne2:
            skip = A.newlabel("w2")
            A(f"s_cmp_eq_u32 {s(sCB)}, 0\ns_cbranch_scc1 {skip}")
            w2dma((ks - 3) >> 1, ((ks - 3) & 1,))
            A.label(skip)
        if ks == 5:
            A.wait_lg("stat")
        if ks >= 5:
            for _ in range(3):
                if fin:
                    A(fin.pop(0))
    assert not fin
    arrive(C_PA)
    vm_kv = [t for t in A.vm if t != "W2"]
    A(f"s_cmp_eq_u32 {s(sCB)}, 0\ns_cbranch_scc1 L_kv\ns_nop 4")
    for i in range(16):
        A(f"v_sub_f32 {v(acc+i)}, {v(acc+i)}, {v(cs+i)}")
    stamp()
    pk = 64
    vHS = 74
    for i in range(8):
        for op in gelu_ops(acc + 2 * i, 72, pk + i, vC1g, vC2g, vRI):
            A(op)
        if i == 2:
            A(f"""v_and_b32 {v(vT0)}, 31, {v(vLANE)}
                  s_lshl_b32 {s(sT0)}, {s(sGT)}, 5
                  v_add_u32 {v(vT0)}, {s(sT0)}, {v(vT0)}
                  v_lshrrev_b32 {v(vT1)}, 5, {v(vLANE)}
                  v_lshlrev_b32 {v(vT1)}, 15, {v(vT1)}
                  v_lshl_add_u32 {v(vHS)}, {v(vT0)}, 4, {v(vT1)}
                  s_lshl_b32 {s(sT0)}, {s(sT4)}, 17
                  s_add_u32 {s(sT0)}, {s(sT0)}, {HB}
                  s_add_u32 {s(sT1)}, {s(sT0)}, 0x10000""")
        if i in (3, 7):
            A.vmem(f"buffer_store_dwordx4 {v(pk+(i&4),4)}, {v(vHS)}, {s(SW,4)}, {s(sT0 if i == 3 else sT1)} offen sc1", "hst")
    await_cnt(C_PA, 8)
    for j in range(ne2, 7):
        w2dma(j)
    nonce_take(30)
    signal(N_H, own_slot(FH), "hst")
    stamp()
    A(f"""s_add_u32 {s(sT0)}, {s(sT3)}, {LA + 24576}
          v_add3_u32 {v(32)}, {v(vTRD)}, {v(102)}, {s(sT0)}
          v_xor_b32 {v(33)}, 64, {v(32)}
          v_add_u32 {v(vT0)}, {s(sPA)}, {v(vTRD)}
          v_add_u32 {v(vT1)}, {s(sPB)}, {v(vTRD)}
          v_add_u32 {v(vRA[0])}, {v(vT0)}, {v(102)}
          v_xor_b32 {v(vRA[1])}, 64, {v(vRA[0])}
          v_add_u32 {v(vRB[0])}, {v(vT1)}, {v(102)}
          v_xor_b32 {v(vRB[1])}, 64, {v(vRB[0])}""")
    A.wait_vm("W2")
    for j in range(7):
        for b in range(2):
            tr(("a", 8 * j + 4 * b), 32 + b if j < ne2 else vRA[b], j * 2048, 1024, "w2")
    vH = 29
    A(f"""s_add_u32 {s(sT0)}, {s(sP)}, 1
          s_sub_u32 {s(sT1)}, 0, {s(sT0)}
          s_cmp_eq_u32 {s(sTT)}, 0
          s_cselect_b32 {s(sT0)}, {s(sT1)}, {s(sT0)}
          s_lshl_b32 {s(sT1)}, {s(sGT)}, 5
          s_add_u32 {s(sT1)}, {s(sT1)}, {s(sT0)}
          s_xor_b32 {s(sT2)}, {s(sGT)}, 1
          s_lshl_b32 {s(sT2)}, {s(sT2)}, 5
          s_add_u32 {s(sT2)}, {s(sT2)}, {s(sT0)}
          v_and_b32 {v(vT0)}, 31, {v(vLANE)}
          v_lshrrev_b32 {v(vT1)}, 5, {v(vLANE)}
          v_lshlrev_b32 {v(vT1)}, 15, {v(vT1)}
          v_mov_b32 {v(vT3)}, {OOB}""")
    for sl, sr in ((0, sT1), (1, sT2)):
        A(f"""v_add_u32 {v(vT2)}, {s(sr)}, {v(vT0)}
              v_cmp_gt_u32 vcc, 2048, {v(vT2)}
              v_lshl_add_u32 {v(vT2)}, {v(vT2)}, 4, {v(vT1)}
              s_nop 0
              v_cndmask_b32 {v(vH+sl)}, {v(vT3)}, {v(vT2)}, vcc""")

    def rot7(reg, u, scale, base):
        if u == 0:
            A(f"s_mul_i32 {s(reg)}, {s(sR)}, {2 * scale}")
        else:
            A(f"""s_add_u32 {s(reg)}, {s(reg)}, {scale}
                  s_cmp_ge_u32 {s(reg)}, {7 * scale}
                  s_cselect_b32 {s(sT0)}, {7 * scale}, 0
                  s_sub_u32 {s(reg)}, {s(reg)}, {s(sT0)}""")

    def sdma(n, hs=(0, 1)):
        base, off = ring_addr(n % NRING)
        if n < 28:
            if n % 7 == 0 and 0 in hs:
                A(f"""s_add_u32 {s(sRG)}, {s(sR)}, {n // 7}
                      s_and_b32 {s(sRG)}, {s(sRG)}, 3
                      s_mul_i32 {s(sRG)}, {s(sRG)}, {7 * 16 * 3584}""")
            image(base, off, vW3, SQ, lambda e: f"s_add_u32 {s(sT0)}, {s(sRG)}, {(n % 7) * 16 * 3584 + e}", 3584, ("S", n), hs)
        elif n < 56:
            p = n - 28
            if p % 2 == 0 and 0 in hs:
                rot7(sRG, (p % 14) // 2, 64 * 896, None)
                A(f"s_add_u32 {s(sT3)}, {s(sRG)}, {s(sB4)}")
            image(base, off, vW, S4, lambda e: f"s_add_u32 {s(sT0)}, {s(sT3)}, {(2 * (p // 14) + p % 2) * 16 * 896 + e}", 896, ("S", n), hs)
        else:
            k = n - 56
            image(base, off, vW, SO, lambda e: f"s_add_u32 {s(sT0)}, {s(sB1)}, {((k >> 1) * 28 + (k & 1) * 16) * 896 + e}", 896, ("S", n), hs)

    def sreg(n, b):
        return 8 * (n % 16) + 4 * b

    def sread(n, bs=(0, 1)):
        base, off = ring_addr(n % NRING)
        if n == 28 and 0 in bs:
            flip()
        A.wait_vm(("S", n))
        for b in bs:
            tr(("a", sreg(n, b)), (vRA if base == sPA else vRB)[b], off, 1024, ("s", n))

    def refill(n, hs=(0, 1)):
        if n < 64:
            A.wait_lg(("s", n - NRING))
            sdma(n, hs)

    def sread_p(n):
        return [lambda: sread(n, (0,)), lambda: sread(n, (1,))]

    def refill_p(n):
        return [lambda: refill(n, (0,)), lambda: refill(n, (1,))] if n < 64 else []

    def flip():
        A(f"s_lshl_b32 {s(sT0)}, {s(sP)}, 6")
        for r in vRA + vRB:
            A(f"v_xor_b32 {v(r)}, {s(sT0)}, {v(r)}")

    flip()
    early = int(OPT.get("early", 3))
    mid = int(OPT.get("mid", 6))
    A.drain_lg()
    arrive(C_W2)
    for n in range(early):
        sdma(n)
    cut("h")

    def setup_h():
        A(f"""v_lshrrev_b32 {v(vT0)}, 3, {v(vLANE)}
              s_sub_u32 {s(sT0)}, {s(sTB)}, 1
              v_add_u32 {v(vT0)}, {s(sT0)}, {v(vT0)}
              v_cmp_le_u32 vcc, 32, {v(vT0)}
              s_lshl_b32 {s(sT0)}, {s(sT0)}, 10
              s_add_u32 {s(sT0)}, {s(sT0)}, {FH}
              v_lshlrev_b32 {v(vT1)}, 7, {v(vLANE)}
              v_add_u32 {v(vT1)}, {s(sT0)}, {v(vT1)}
              s_mov_b32 {s(sINV)}, 0xff010101
              s_mov_b32 {s(sINV+1)}, -1
              s_or_b64 {s(sINV,2)}, {s(sINV,2)}, vcc""")
        lanes_to(vT1)

    gate(G_H, setup_h, 32)
    if "hold" in OPT:
        await_cnt(G_K, 1)
    stamp()
    hf = 32
    A(f"s_mul_i32 {s(sT5)}, {s(sW)}, {7 << 16}\ns_add_u32 {s(sT5)}, {s(sT5)}, {HB}")
    for j in range(7):
        if j:
            A(f"s_add_u32 {s(sT5)}, {s(sT5)}, 0x10000")
        for sl in range(2):
            A.vmem(f"buffer_load_dwordx4 {v(hf + 8*j + 4*sl, 4)}, {v(vH+sl)}, {s(SW,4)}, {s(sT5)} offen sc1", ("h", j))
    await_cnt(C_QD)
    await_cnt(C_W2)
    acc0, vRW = 104, 120
    accs = [v(acc0, 16), a(64, 16), a(80, 16), a(96, 16)]
    A(f"s_add_u32 {s(sT0)}, {s(sPA)}, {LA}\nv_add_u32 {v(vRW)}, {s(sT0)}, {v(vL16)}\nv_mul_f32 {v(vM)}, {v(vM)}, {v(vR)}")
    for j in range(7):
        A.wait_vm(("h", j))
        for sl in (1, 2, 3, 0):
            mfma(accs[sl], a(8 * j + 4 * (sl >> 1), 4), v(hf + 8 * j + 4 * (sl & 1), 4), 0 if j == 0 else None)
    sdma(early)
    A("s_nop 3")
    offs1 = [(0, i * 1024) for i in range(12)]
    reduce_out([("a", 64), ("a", 80), ("a", 96)], C_R1, [vRW], offs1, [lambda n=n: sdma(n) for n in range(early + 1, early + mid)])

    def mk1(sl):
        A(f"""s_xor_b32 {s(sT0)}, {s(sW)}, {sl}
              s_mul_i32 {s(sT0)}, {s(sT0)}, 14336
              s_add_u32 {s(sT0)}, {s(sT0)}, {LA}
              v_add_u32 {v(vRW+sl)}, {s(sT0)}, {v(vL16)}""")
        return [vRW + sl]
    for i in range(8):
        A(f"""v_lshlrev_b32 {v(88)}, 16, {v(vXD+i)}
              v_and_b32 {v(89)}, 0xffff0000, {v(vXD+i)}
              v_fma_f32 {v(88)}, {v(88)}, {v(vR)}, -{v(vM)}
              v_fma_f32 {v(89)}, {v(89)}, {v(vR)}, -{v(vM)}
              v_add_f32 {v(acc0+2*i)}, {v(acc0+2*i)}, {v(88)}
              v_add_f32 {v(acc0+2*i+1)}, {v(acc0+2*i+1)}, {v(89)}""")
    reduce_in(acc0, 32, C_R1, mk1, offs1)
    for i in range(8):
        A(f"v_cvt_pk_bf16_f32 {v(vX1P+i)}, {v(acc0+2*i)}, {v(acc0+2*i+1)}")
    A(f"""s_mul_i32 {s(sT0)}, {s(sGT)}, 14
          s_add_u32 {s(sT0)}, {s(sT0)}, {s(sT4)}
          s_lshl_b32 {s(sT1)}, {s(sT0)}, 11
          s_add_u32 {s(sT1)}, {s(sT1)}, {X1}
          s_lshl_b32 {s(sT0)}, {s(sT0)}, 8
          s_add_u32 {s(sT2)}, {s(sT0)}, {ST}""")
    A.vmem(f"buffer_store_dwordx4 {v(vX1P,4)}, {v(vL16)}, {s(SW,4)}, {s(sT1)} offen sc1", "xst")
    A.vmem(f"buffer_store_dwordx4 {v(vX1P+4,4)}, {v(vL16)}, {s(SW,4)}, {s(sT1)} offen offset:1024 sc1", "xst")
    A(f"""v_add_f32 {v(32)}, {v(acc0)}, {v(acc0+1)}
          v_mul_f32 {v(33)}, {v(acc0)}, {v(acc0)}
          v_fma_f32 {v(33)}, {v(acc0+1)}, {v(acc0+1)}, {v(33)}""")
    for i in range(2, 16):
        A(f"v_add_f32 {v(32)}, {v(32)}, {v(acc0+i)}\nv_fma_f32 {v(33)}, {v(acc0+i)}, {v(acc0+i)}, {v(33)}")
    halves(32, 34)
    halves(33, 35)
    A(f"""v_add_f32 {v(32)}, {v(32)}, {v(34)}
          v_add_f32 {v(33)}, {v(33)}, {v(35)}
          v_lshlrev_b32 {v(34)}, 3, {v(vLANE)}
          s_not_b64 exec, {s(sHI,2)}""")
    A.vmem(f"buffer_store_dwordx2 {v(32,2)}, {v(34)}, {s(SW,4)}, {s(sT2)} offen sc1", "xst")
    A("s_mov_b64 exec, -1")
    stamp()
    cut("p2")
    for n in range(early + mid, NRING):
        sdma(n)
    npre = int(OPT.get("npre", 9))
    xsig = int(OPT.get("xsig", 4))
    for n in range(npre + 1):
        if n < npre:
            sread(n)
        if n == xsig:
            signal(N_X, own_slot(FX), "xst")
        if n >= 1:
            refill(n - 1 + NRING)
    stamp()
    cut("w3")

    def setup_x():
        A(f"""s_lshl_b32 {s(sT0)}, {s(sTB)}, 10
              s_add_u32 {s(sT0)}, {s(sT0)}, {FX}
              s_lshl_b32 {s(sT1)}, {s(sCB)}, 9
              s_add_u32 {s(sT1)}, {s(sT1)}, {FC - 512 - 1024}
              v_lshlrev_b32 {v(vT0)}, 7, {v(vLANE)}
              v_add_u32 {v(vT1)}, {s(sT0)}, {v(vT0)}
              v_add_u32 {v(vT0)}, {s(sT1)}, {v(vT0)}
              s_mov_b64 vcc, 0xff
              v_cndmask_b32 {v(vT1)}, {v(vT0)}, {v(vT1)}, vcc
              s_mov_b32 {s(sINV)}, 0xfffff001
              s_mov_b32 {s(sINV+1)}, -1""")
        lanes_to(vT1)
    gate(G_X, setup_x, 32)
    stamp()
    A(f"""s_mul_i32 {s(sT1)}, {s(sTB)}, {56 * 1024}
          s_add_u32 {s(sT1)}, {s(sT1)}, {X1}
          s_lshl_b32 {s(sT3)}, {s(sW)}, 10
          s_mul_i32 {s(sT2)}, {s(sR)}, 7168
          s_add_u32 {s(sT2)}, {s(sT2)}, {s(sT3)}
          s_add_u32 {s(sT3)}, {s(sT3)}, {LA}""")
    for i in range(7):
        if i:
            A(f"""s_add_u32 {s(sT2)}, {s(sT2)}, 4096
                  s_sub_u32 {s(sT5)}, {s(sT2)}, 28672
                  s_cmp_ge_u32 {s(sT2)}, 28672
                  s_cselect_b32 {s(sT2)}, {s(sT5)}, {s(sT2)}""")
        A(f"s_add_u32 {s(sT5)}, {s(sT1)}, {s(sT2)}")
        for tt in range(2):
            dma(sT3, tt * 28672 + i * 4096, vL16, SW, (f"s_add_u32 {s(sT0)}, {s(sT5)}, {tt * 28672}", s(sT0)), ("x1", min(i // 2, 2)), sc=" sc1")
    vB, stt, cst, bring = 27, 32, 28, 40
    A(f"""v_and_b32 {v(vT0)}, 31, {v(vLANE)}
          v_lshrrev_b32 {v(vT1)}, 5, {v(vLANE)}
          v_mul_u32_u24 {v(vT1)}, {14 * 256}, {v(vT1)}
          v_lshl_add_u32 {v(vT2)}, {v(vT0)}, 3, {v(vT1)}
          s_mul_i32 {s(sT1)}, {s(sTB)}, {28 * 256}
          s_lshl_b32 {s(sT2)}, {s(sW)}, 8
          s_add_u32 {s(sT1)}, {s(sT1)}, {s(sT2)}
          s_add_u32 {s(sT1)}, {s(sT1)}, {ST}
          s_cmp_lt_u32 {s(sW)}, 2
          s_cselect_b32 {s(sT2)}, {s(sT1)}, {OOB}
          v_add_u32 {v(vB)}, {LA}, {v(vL16)}""")
    for i in range(4):
        A.vmem(f"buffer_load_dwordx2 {v(stt+2*i,2)}, {v(vT2)}, {s(SW,4)}, {s(sT1 if i < 3 else sT2)} offen offset:{i*1024} sc1", "st")
    A(f"""s_lshl_b32 {s(sT1)}, {s(sCB)}, 2
          s_add_u32 {s(sT1)}, {s(sT1)}, {s(sW)}
          s_lshl_b32 {s(sT1)}, {s(sT1)}, 9
          s_add_u32 {s(sT1)}, {s(sT1)}, {CS - 2048}
          v_lshlrev_b32 {v(vT3)}, 3, {v(vLANE)}""")
    A.vmem(f"buffer_load_dwordx2 {v(cst,2)}, {v(vT3)}, {s(SW,4)}, {s(sT1)} offen sc1", "cs")
    A(f"""s_mul_i32 {s(sK)}, {s(sTB)}, {2 * 112}
          s_lshl_b32 {s(sT0)}, {s(sCB)}, 2
          s_add_u32 {s(sT0)}, {s(sT0)}, {s(sW)}
          s_sub_u32 {s(sT0)}, {s(sT0)}, 4
          s_lshl_b32 {s(sT0)}, {s(sT0)}, 2
          s_add_u32 {s(sK)}, {s(sK)}, {s(sT0)}
          s_lshl_b32 {s(sK)}, {s(sK)}, 10
          s_add_u32 {s(sK)}, {s(sK)}, {HH}""")
    A.wait_vm(("x1", 0))
    arrive(C_XA)
    await_cnt(C_XA)
    acc4 = [64, 80, 96, 112]

    def bread(ks):
        for tt in range(2):
            A.ds(f"ds_read_b128 {v(bring + 8 * (ks % 3) + 4 * tt, 4)}, {v(vB)} offset:{(tt * 28 + ks) * 1024}", ("b", ks))

    lag = int(OPT.get("lag", 7))
    plan, rstep = {}, {}
    nxt = npre
    for ks in range(28):
        while nxt < 44 and len(plan.get(ks, [])) < 2:
            ready = nxt - 16 < ks and (nxt - NRING < npre or rstep[nxt - NRING] + 1 + lag <= ks)
            if not (ready or (nxt < 28 and nxt - 2 <= ks)):
                break
            plan.setdefault(ks, []).append(nxt)
            rstep[nxt] = ks
            nxt += 1
    assert nxt >= 28 and all(n - 16 < ks and (n >= 28 or n >= ks + 1) for ks in plan for n in plan[ks]), plan
    pend = []
    if "p4" in OPT:
        stamp()
    bread(0)
    bread(1)
    for ks in range(28):
        if ks == 2:
            A.wait_vm(("x1", 1))
            arrive(C_XA)
        if ks == 5:
            await_cnt(C_XA, 8)
        if ks == 8:
            A.wait_vm(["cs", "st", ("x1", 2)])
            A(f"""v_add_f32 {v(stt)}, {v(stt)}, {v(stt+2)}
                  v_add_f32 {v(stt+1)}, {v(stt+1)}, {v(stt+3)}
                  v_add_f32 {v(stt+4)}, {v(stt+4)}, {v(stt+6)}
                  v_add_f32 {v(stt+5)}, {v(stt+5)}, {v(stt+7)}
                  s_lshl_b32 {s(sT0)}, {s(sW)}, 9
                  s_add_u32 {s(sT0)}, {s(sT0)}, {L_STAT}
                  v_add_f32 {v(stt)}, {v(stt)}, {v(stt+4)}
                  v_add_f32 {v(stt+1)}, {v(stt+1)}, {v(stt+5)}
                  v_lshl_add_u32 {v(vT2)}, {v(vLANE)}, 3, {s(sT0)}""")
            A.ds(f"ds_write_b64 {v(vT2)}, {v(stt,2)}", "sw")
            arrive(C_XB)
        if ks == 13:
            await_cnt(C_XB)
            A(f"v_lshlrev_b32 {v(vT2)}, 3, {v(vLANE)}\nv_add_u32 {v(vT2)}, {L_STAT}, {v(vT2)}")
            for q in range(4):
                A.ds(f"ds_read_b64 {v(stt+2*q,2)}, {v(vT2)} offset:{q*512}", "sr")
        A.wait_lg([("b", ks), ("s", ks)])
        acts = [lambda: bread(ks + 2)] if ks + 2 < 28 else []
        rd = [f for n in plan.get(ks, []) for f in sread_p(n)]
        rf = [f for n in pend for f in refill_p(n + NRING)]
        while rd or rf:
            acts += rf[:1] + rd[:1]
            rf, rd = rf[1:], rd[1:]
        pend = plan.get(ks, [])
        gaps([lambda t=t: mfma(v(acc4[t], 16), a(sreg(ks, t >> 1), 4), v(bring + 8 * (ks % 3) + 4 * (t & 1), 4), 0 if ks == 0 else None)
              for t in range(4)], acts)
        if "p4" in OPT and ks in (3, 6, 12, 15, 21):
            stamp()
        if ks == 16:
            A.wait_lg("sr")
            A(f"""v_add_f32 {v(stt)}, {v(stt)}, {v(stt+2)}
                  v_add_f32 {v(stt+1)}, {v(stt+1)}, {v(stt+3)}
                  v_add_f32 {v(stt+4)}, {v(stt+4)}, {v(stt+6)}
                  v_add_f32 {v(stt+5)}, {v(stt+5)}, {v(stt+7)}
                  v_add_f32 {v(stt)}, {v(stt)}, {v(stt+4)}
                  v_add_f32 {v(stt+1)}, {v(stt+1)}, {v(stt+5)}
                  v_add_f32 {v(cst)}, {v(cst)}, {v(cst+1)}""")
        if ks == 17:
            A(f"""v_mul_f32 {v(stt)}, {f32(-1/448)}, {v(stt)}
                  v_mul_f32 {v(stt+1)}, {f32(1/448)}, {v(stt+1)}
                  v_mul_f32 {v(stt+2)}, {v(stt)}, {v(stt)}
                  v_sub_f32 {v(stt+1)}, {v(stt+1)}, {v(stt+2)}
                  v_max_f32 {v(stt+1)}, 0, {v(stt+1)}
                  v_add_f32 {v(stt+1)}, {f32(EPS)}, {v(stt+1)}""")
        if ks == 18:
            halves(stt, stt + 2)
            halves(stt + 1, stt + 3)
            halves(cst, cst + 1)
    arrive(C_P4)
    vAE, vBE, gt, gpk = 40, 48, 56, 40
    for nt in range(2):
        c = cst + nt
        A(f"""v_cvt_pk_bf16_f32 {v(vT0)}, {v(c)}, {v(c)}
              v_and_b32 {v(vT1)}, 0xffff0000, {v(vT0)}
              v_sub_f32 {v(vT1)}, {v(c)}, {v(vT1)}
              v_cvt_pk_bf16_f32 {v(vAE+4*nt)}, {v(c)}, {v(vT1)}
              v_and_b32 {v(vAE+4*nt+1)}, 0xffff, {v(vT0)}
              v_mov_b32 {v(vAE+4*nt+2)}, 0
              v_mov_b32 {v(vAE+4*nt+3)}, 0""")
    for tt in range(2):
        m, b = stt + 2 * tt, vBE + 4 * tt
        A(f"""v_cvt_pk_bf16_f32 {v(vT0)}, {v(m)}, {v(m)}
              v_and_b32 {v(vT1)}, 0xffff0000, {v(vT0)}
              v_sub_f32 {v(vT1)}, {v(m)}, {v(vT1)}
              v_cvt_pk_bf16_f32 {v(vT1)}, {v(vT1)}, 0
              v_cndmask_b32 {v(b)}, {v(vT0)}, 0, {s(sHI,2)}
              v_cndmask_b32 {v(b+1)}, {v(vT1)}, 0, {s(sHI,2)}
              v_mov_b32 {v(b+2)}, 0
              v_mov_b32 {v(b+3)}, 0""")
    A("s_nop 0")
    for t in range(4):
        mfma(v(acc4[t], 16), v(vAE + 4 * (t >> 1), 4), v(vBE + 4 * (t & 1), 4))
    kk = [60, 36]
    for tt in range(2):
        e, k = stt + 2 * tt + 1, kk[tt]
        A(f"""v_rsq_f32 {v(vT0)}, {v(e)}
              s_nop 0
              v_mul_f32 {v(k+2)}, {v(e)}, {v(vT0)}
              v_mul_f32 {v(k)}, {f32(GC1)}, {v(vT0)}
              v_mul_f32 {v(k+1)}, {v(vT0)}, {v(vT0)}
              v_mul_f32 {v(k+1)}, {v(k+1)}, {v(vT0)}
              v_mul_f32 {v(k+1)}, {f32(GC2)}, {v(k+1)}""")
    stamp()
    ops = []
    for t in range(4):
        tt, b = t & 1, t >> 1
        for i in range(8):
            def pair(i=i, t=t, tt=tt):
                for op in gelu_ops(acc4[t] + 2 * i, gt, gpk + 8 * (t & 1) + i, kk[tt], kk[tt] + 1, kk[tt] + 2):
                    A(op)
            ops.append(pair)
            if i in (3, 7):
                def st(c=i >> 2, t=t, tt=tt, b=b):
                    A(f"s_add_u32 {s(sT0)}, {s(sK)}, {(tt * 112 + b * 2) * 1024}")
                    A.vmem(f"buffer_store_dwordx4 {v(gpk+8*(t&1)+4*c,4)}, {v(vL16)}, {s(SW,4)}, {s(sT0)} offen offset:{c*1024} sc1", ("Hst", b))
                ops.append(st)
        if t == 2:
            ops.append(lambda: signal(N_G, own_slot(FG), ("Hst", 0)))
    fill = [f for n in pend for f in refill_p(n + NRING)]
    for n in range(nxt, 44):
        fill.append(lambda n=n: sread(n))
        if n > nxt:
            fill += refill_p(n - 1 + NRING)
    weave(A, ops, fill)
    if nxt < 44:
        refill(43 + NRING)
    vHH = 26
    A(f"""s_mul_i32 {s(sT0)}, {s(sGT)}, 4
          s_add_u32 {s(sT0)}, {s(sT0)}, {s(sW)}
          s_mul_i32 {s(sT0)}, {s(sT0)}, {28 * 1024}
          v_add_u32 {v(vHH)}, {s(sT0)}, {v(vL16)}
          s_xor_b32 {s(sT0)}, {s(sGT)}, 1
          s_mul_i32 {s(sT0)}, {s(sT0)}, 4
          s_add_u32 {s(sT0)}, {s(sT0)}, {s(sW)}
          s_mul_i32 {s(sT0)}, {s(sT0)}, {28 * 1024}
          v_add_u32 {v(vHH+1)}, {s(sT0)}, {v(vL16)}""")
    acc6 = [64, 80, 96, 112]
    for i in range(8):
        A(f"v_lshlrev_b32 {v(64+2*i)}, 16, {v(vX1P+i)}\nv_and_b32 {v(65+2*i)}, 0xffff0000, {v(vX1P+i)}")
    stamp()
    cut("w4")

    def setup_tb(base, inv):
        def f():
            A(f"""s_lshl_b32 {s(sT0)}, {s(sTB)}, 10
                  s_add_u32 {s(sT0)}, {s(sT0)}, {base}
                  v_lshlrev_b32 {v(vT1)}, 7, {v(vLANE)}
                  v_add_u32 {v(vT1)}, {s(sT0)}, {v(vT1)}
                  s_mov_b32 {s(sINV)}, {inv}
                  s_mov_b32 {s(sINV+1)}, -1""")
            lanes_to(vT1)
        return f
    peek_issue(setup_tb(FG, 0xffffff01), 34, 36)
    vO, vOUT = 28, 30
    A(f"""s_lshl_b32 {s(sT0)}, {s(sGT)}, 2
          s_add_u32 {s(sT0)}, {s(sT0)}, {s(sW)}
          s_lshl_b32 {s(sT0)}, {s(sT0)}, 13
          v_add_u32 {v(vO)}, {s(sT0)}, {v(vL16)}
          v_xor_b32 {v(vO+1)}, 0x8000, {v(vO)}
          v_and_b32 {v(32)}, 31, {v(vLANE)}
          s_lshl_b32 {s(sT0)}, {s(sGT)}, 5
          v_add_u32 {v(32)}, {s(sT0)}, {v(32)}
          v_mul_u32_u24 {v(32)}, 896, {v(32)}
          v_lshrrev_b32 {v(33)}, 5, {v(vLANE)}
          v_lshl_add_u32 {v(32)}, {v(33)}, 4, {v(32)}
          s_lshl_b32 {s(sT0)}, {s(sT4)}, 6
          v_add_u32 {v(vOUT)}, {s(sT0)}, {v(32)}""")
    signal(N_G2, own_slot(FG2), ("Hst", 1))
    peek_check(34, 36)
    stamp()
    hslots = [16, 20, 32, 36, 40, 44, 48, 52, 56, 60]
    NH = int(OPT.get("nh", 10))
    hsc = "" if "hplain" in OPT else " sc1"

    def bload(n):
        p, sl = n >> 1, n & 1
        if n < 56:
            if p % 2 == 0 and sl == 0:
                rot7(sRH, (p % 14) // 2, 4096, None)
                A(f"s_add_u32 {s(sV)}, {s(sRH)}, {HH}")
            addr, imm = vHH + sl, (2 * (p // 14) + p % 2) * 1024
        else:
            if p % 4 == 0 and sl == 0:
                A(f"s_mov_b32 {s(sV)}, {OB + 1024 * (p - 28)}")
            addr, imm = vO + sl, (p & 3) * 1024
        A.vmem(f"buffer_load_dwordx4 {v(hslots[n % NH], 4)}, {v(addr)}, {s(SW,4)}, {s(sV)} offen offset:{imm}{hsc}", ("H", n))

    def slotoffs(first):
        return [(0, i * 1024) if i < 14 else (1, (i - 14) * 1024) for i in range(first, first + 12)]

    vRW2 = [24, 25]
    for n in range(NH):
        bload(n)
    if OPT.get("tail", "ring") == "ring":
        vG, vA2 = 64, [24, 25, 26, 27, 2, 3, 31, 29]

        def partner(sl):
            A(f"""s_xor_b32 {s(sT0)}, {s(sW)}, {sl}
                  s_mul_i32 {s(sT1)}, {s(sT0)}, 14336
                  s_mul_i32 {s(sT0)}, {s(sT0)}, 11264
                  s_add_u32 {s(sT0)}, {s(sT0)}, {LQ}
                  v_add_u32 {v(vA2[2*sl])}, {s(sT1)}, {v(vL16)}
                  v_add_u32 {v(vA2[2*sl+1])}, {s(sT0)}, {v(vL16)}""")
        side = {28: [], 29: [], 30: [], 31: [], 32: [], 33: [], 34: [], 35: []}
        for i in range(12):
            side[28 + (i + 2) // 5 + (1 if i < 0 else 0)].append(
                lambda i=i: A.ds(f"ds_write_b128 {v(24)}, {v(80 + 4 * i, 4)} offset:{i * 1024}", "red"))
        side[30].append(lambda: arrive(C_R2))
        side[32].append(lambda: await_cnt(C_R2))
        for sl in (1, 2, 3):
            side[32].append(lambda sl=sl: [A.ds(f"ds_read_b128 {v(64 + 16 * sl + 4 * q, 4)}, {v(vA2[2*sl])} offset:{((sl - 1) * 4 + q) * 1024}", ("rd", sl)) for q in range(4)])
        valu = []
        for sl in (1, 2, 3):
            valu.append(lambda sl=sl: A.wait_lg(("rd", sl)))
            valu += [lambda sl=sl, i=i: A(f"v_add_f32 {v(vG+i)}, {v(vG+i)}, {v(64 + 16 * sl + i)}") for i in range(16)]
        for i in range(8):
            y = vG + 2 * i
            valu += [lambda t=t: A(t) for t in f"""v_mul_f32 {v(80)}, {f32(-LOG2E)}, {v(y)}
                  v_mul_f32 {v(81)}, {f32(-LOG2E)}, {v(y+1)}
                  v_exp_f32 {v(80)}, {v(80)}
                  v_exp_f32 {v(81)}, {v(81)}
                  v_add_f32 {v(80)}, 1.0, {v(80)}
                  v_add_f32 {v(81)}, 1.0, {v(81)}
                  v_rcp_f32 {v(80)}, {v(80)}
                  v_rcp_f32 {v(81)}, {v(81)}
                  v_mul_f32 {v(y)}, {v(y)}, {v(80)}
                  v_mul_f32 {v(y+1)}, {v(y+1)}, {v(81)}""".split("\n")]
        nin = int(OPT.get("nin", 90))
        for n, f in enumerate(valu[:nin]):
            side[33 + (3 * n) // nin].append(f)
        for j in range(36):
            A.wait_vm(("H", 2 * j + 1))
            A.wait_lg(("s", 28 + j))
            if 2 * j + NH in (28, 56):
                peek_check()

            def mm(sl):
                d = v(acc6[sl], 16) if j < 28 else a(16 * sl, 16)
                mfma(d, a(sreg(28 + j, sl >> 1), 4), v(hslots[(2 * j + (sl & 1)) % NH], 4), 0 if (j == 0 and sl) or j == 28 else None)
            rd = sread_p(43 + j) if 1 <= j <= 20 else [None, None]
            rf = (refill_p(43 + j - 1 + NRING) if j >= 2 else []) or [None, None]
            ld = [(lambda n=n: bload(n)) if n < 72 else None for n in (2 * j + NH, 2 * j + NH + 1)]
            ex = side.get(j, [])
            lo = 2 if j == 28 else 0
            cut_ = [0] * (lo + 1) + [-(-len(ex) * (g + 1) // (4 - lo)) for g in range(4 - lo)]
            for g, (sl, todo) in enumerate(((0, [rf[0]]), (2, [ld[0], rd[0]]), (1, [rf[1]]), (3, [ld[1], rd[1]]))):
                mm(sl)
                if j == 28 and g == 1:
                    A("s_nop 6")
                for f in todo + ex[cut_[g]:cut_[g + 1]]:
                    if f:
                        f()
            if 2 * j + NH == 22:
                peek_issue(setup_tb(FG2, 0xffffff01))
            if 2 * j + NH == 50:
                peek_issue(setup_tb(FO, 0xffffff00))
            if j == 24:
                A.drain_lg()
                A(f"v_add_u32 {v(24)}, {s(sPA)}, {v(vL16)}\nv_add_u32 {v(25)}, {s(sPB)}, {v(vL16)}")
                partner(1)
                partner(2)
            if j == 27:
                stamp()
            if j == 31:
                partner(3)
        stamp()
        left = valu[nin:]
        for f in left[:12]:
            f()
        reduce_out([("a", 16), ("a", 32), ("a", 48)], C_R3, [24, 25], slotoffs(12), left[12:])
        for i in range(16):
            A(f"v_accvgpr_read_b32 {v(32+i)}, {a(i)}")
        stamp()
        reduce_in(32, 80, C_R3, lambda sl: vA2[2 * sl:2 * sl + 2], slotoffs(12))
        vS = 32
    else:
        for j in range(28):
            A.wait_vm(("H", 2 * j + 1))
            A.wait_lg(("s", 28 + j))
            if 2 * j + NH == 28:
                peek_check()
            rd = sread_p(43 + j) if 1 <= j <= 20 else [None, None]
            rf = (refill_p(43 + j - 1 + NRING) if j >= 2 else []) or [None, None]
            ld = [(lambda n=n: bload(n)) if n < 56 else None for n in (2 * j + NH, 2 * j + NH + 1)]
            for sl, todo in ((0, [rf[0]]), (2, [ld[0], rd[0]]), (1, [rf[1]]), (3, [ld[1], rd[1]])):
                mfma(v(acc6[sl], 16), a(sreg(28 + j, sl >> 1), 4), v(hslots[(2 * j + (sl & 1)) % NH], 4), 0 if j == 0 and sl else None)
                for f in todo:
                    if f:
                        f()
            if 2 * j + NH == 22:
                peek_issue(setup_tb(FG2, 0xffffff01))
            if "p6" in OPT and j in (3, 8, 9, 13, 18, 22):
                stamp()
            if j == 23:
                A.drain_lg()
                A(f"v_add_u32 {v(24)}, {s(sPA)}, {v(vL16)}\nv_add_u32 {v(25)}, {s(sPB)}, {v(vL16)}")
            if j == 25:
                peek_issue(setup_tb(FO, 0xffffff00), 16, 18)
        stamp()

        def mk2(sl):
            A(f"""s_xor_b32 {s(sT0)}, {s(sW)}, {sl}
                  s_mul_i32 {s(sT1)}, {s(sT0)}, 14336
                  s_mul_i32 {s(sT0)}, {s(sT0)}, 11264
                  s_add_u32 {s(sT0)}, {s(sT0)}, {LQ}
                  v_add_u32 {v(50+2*sl)}, {s(sT1)}, {v(vL16)}
                  v_add_u32 {v(51+2*sl)}, {s(sT0)}, {v(vL16)}""")
            return [50 + 2 * sl, 51 + 2 * sl]

        def oloads():
            for kq in range(8):
                if kq % 4 == 0:
                    A(f"s_mov_b32 {s(sV)}, {OB + 1024 * kq}")
                for sl in range(2):
                    A.vmem(f"buffer_load_dwordx4 {a(8 * kq + 4 * sl, 4)}, {v(vO+sl)}, {s(SW,4)}, {s(sV)} offen offset:{(kq & 3) * 1024} sc1", ("o", kq))

        later, both = A.newlabel("ol"), A.newlabel("ob")
        A.wait_vm("peek")
        A(f"""v_cmp_eq_u64 vcc, {s(sN,2)}, {v(16,2)}
              s_or_b64 vcc, vcc, {s(sINV,2)}
              s_cmp_eq_u64 vcc, -1
              s_cselect_b32 {s(sRH)}, 1, 0
              s_cbranch_scc0 {later}""")
        oloads()
        A.label(later)
        A("s_nop 5")
        reduce_out([("v", 80), ("v", 96), ("v", 112)], C_R2, vRW2, slotoffs(0))
        vG = 32
        reduce_in(64, 80, C_R2, mk2, slotoffs(0))
        for i in range(8):
            y = 64 + 2 * i
            A(f"""v_mul_f32 {v(80)}, {f32(-LOG2E)}, {v(y)}
                  v_mul_f32 {v(81)}, {f32(-LOG2E)}, {v(y+1)}
                  v_exp_f32 {v(80)}, {v(80)}
                  v_exp_f32 {v(81)}, {v(81)}
                  v_add_f32 {v(80)}, 1.0, {v(80)}
                  v_add_f32 {v(81)}, 1.0, {v(81)}
                  v_rcp_f32 {v(80)}, {v(80)}
                  v_rcp_f32 {v(81)}, {v(81)}
                  v_mul_f32 {v(vG+2*i)}, {v(y)}, {v(80)}
                  v_mul_f32 {v(vG+2*i+1)}, {v(y+1)}, {v(81)}""")
        stamp()
        A(f"s_cmp_lg_u32 {s(sRH)}, 0\ns_cbranch_scc1 {both}")
        keep = list(A.vm)
        A.vm = []
        peek_check(16, 18)
        oloads()
        A.vm = keep
        A.label(both)
        for kq in range(8):
            A.wait_vm(("o", kq))
            for sl in (1, 2, 3, 0):
                mfma(v(acc6[sl], 16), a(sreg(56 + kq, sl >> 1), 4), a(8 * kq + 4 * (sl & 1), 4), 0 if kq == 0 else None)
        stamp()
        A("s_nop 7\ns_nop 1")
        reduce_out([("v", 80), ("v", 96), ("v", 112)], C_R3, vRW2, slotoffs(12))
        reduce_in(64, 80, C_R3, lambda sl: [50 + 2 * sl, 51 + 2 * sl], slotoffs(12))
        vS = 64
    for i in range(8):
        y = vS + 2 * i
        A(f"""v_lshlrev_b32 {v(80)}, 16, {v(vXD+i)}
              v_and_b32 {v(81)}, 0xffff0000, {v(vXD+i)}
              v_fma_f32 {v(80)}, {v(y)}, {v(vG+2*i)}, {v(80)}
              v_fma_f32 {v(81)}, {v(y+1)}, {v(vG+2*i+1)}, {v(81)}
              v_cvt_pk_bf16_f32 {v(84+i)}, {v(80)}, {v(81)}""")
    A("s_nop 1")
    for p in range(2):
        A(f"v_permlane32_swap_b32 {v(84+4*p)}, {v(86+4*p)}\nv_permlane32_swap_b32 {v(85+4*p)}, {v(87+4*p)}")
    for p in range(2):
        A.vmem(f"buffer_store_dwordx4 {v(84+4*p,4)}, {v(vOUT)}, {s(SOUT,4)}, 0 offen offset:{32*p}", "out")
    stamp()
    dump_stamps()
    A("s_endpgm")

    for blk in late:
        A.lg = []
        blk()
    A.label("L_kv")
    A.vm = list(vm_kv)
    A.lg = []
    A(f"""v_mul_u32_u24 {v(vT0)}, 3584, {v(vC8)}
          s_min_u32 {s(sT2)}, {s(sTB)}, 27
          s_lshl_b32 {s(sT0)}, {s(sT2)}, 7
          s_mul_i32 {s(sT1)}, {s(sW)}, {112 * 3584}
          s_add_u32 {s(sT0)}, {s(sT0)}, {s(sT1)}
          v_add3_u32 {v(vW3)}, {v(vT0)}, {v(vC7)}, {s(sT0)}""")
    for i in range(16):
        A(f"v_sub_f32 {v(acc+i)}, {v(acc+i)}, {v(cs+i)}\nv_mul_f32 {v(acc+i)}, {v(acc+i)}, {v(vR)}")
    A(f"s_mov_b64 exec, {s(sHI,2)}")
    for i in range(12, 16):
        A(f"v_mov_b32 {v(acc+i)}, 0")
    A("s_mov_b64 exec, -1")
    for i in range(8):
        A(f"v_cvt_pk_bf16_f32 {v(pk+i)}, {v(acc+2*i)}, {v(acc+2*i+1)}")
    A(f"""s_lshl_b32 {s(sT4)}, {s(sGT)}, 12
          s_cmp_eq_u32 {s(sP)}, 1
          s_cbranch_scc1 L_v
          s_mov_b64 exec, {s(sHI,2)}
          v_mov_b32 {v(pk+6)}, {ONES}
          v_mov_b32 {v(pk+7)}, 0x3f80
          s_mov_b64 exec, -1
          buffer_store_dwordx4 {v(pk,4)}, {v(vL16)}, {s(SW,4)}, {s(sT4)} offen sc1
          buffer_store_dwordx4 {v(pk+4,4)}, {v(vL16)}, {s(SW,4)}, {s(sT4)} offen offset:1024 sc1
          v_mul_f32 {v(72)}, {v(acc)}, {v(acc)}""")
    for i in range(1, 16):
        A(f"v_fma_f32 {v(72)}, {v(acc+i)}, {v(acc+i)}, {v(72)}")
    halves(72, 73)
    A(f"""v_add_f32 {v(72)}, {v(72)}, {v(73)}
          v_mov_b32 {v(73)}, {L_KM}
          ds_max_u32 {v(73)}, {v(72)}
          s_branch L_kvdone""")
    A.label("L_v")
    A(f"""s_mov_b64 exec, {s(sHI,2)}
          v_mov_b32 {v(pk+6)}, 0x3f80
          s_mov_b64 exec, -1
          s_lshl_b32 {s(sT0)}, {s(sTT)}, 12
          s_add_u32 {s(sT0)}, {s(sT0)}, {L_VT}
          v_and_b32 {v(72)}, 31, {v(vLANE)}
          v_bfe_u32 {v(74)}, {v(72)}, 1, 1
          v_lshlrev_b32 {v(74)}, 6, {v(74)}
          v_lshrrev_b32 {v(73)}, 5, {v(vLANE)}
          v_lshl_add_u32 {v(73)}, {v(73)}, 3, {v(74)}
          v_lshl_add_u32 {v(72)}, {v(72)}, 7, {v(73)}
          v_add_u32 {v(72)}, {s(sT0)}, {v(72)}
          v_add3_u32 {v(73)}, {v(vTRD)}, {v(103)}, {s(sT0)}""")
    for g in range(4):
        A.ds(f"ds_write_b64 {v(72)}, {v(pk+2*g,2)} offset:{16*g}", "vt")
    for c in range(2):
        tr(("v", 76 + 4 * c), 73, c * 2048, 1024, "vr")
    A.drain_lg()
    A(f"buffer_store_dwordx4 {v(76,4)}, {v(vL16)}, {s(SW,4)}, {s(sT4)} offen offset:2048 sc1")
    A(f"buffer_store_dwordx4 {v(80,4)}, {v(vL16)}, {s(SW,4)}, {s(sT4)} offen offset:3072 sc1")
    A.label("L_kvdone")
    A.vm += ["kv", "kv"]
    nonce_take(30)
    signal(N_K, f"s_lshl_b32 {s(sT0)}, {s(sTB)}, 7\ns_add_u32 {s(sT0)}, {s(sT0)}, {FK}", "kv", payload=L_KM)
    stamps["n"] = 2
    stamp()
    await_cnt(C_PA, 8)
    for j in range(7):
        image(sPA, j * 2048, vW3, SQ, lambda e, j=j: f"s_mov_b32 {s(sT0)}, {j * 16 * 3584 + e}", 3584, "W3")
    A(f"""s_lshl_b32 {s(sT0)}, {s(sTB)}, 2
          s_add_u32 {s(sT0)}, {s(sT0)}, {s(sW)}
          s_mul_i32 {s(sT1)}, {s(sT0)}, 12544
          s_mul_i32 {s(sT2)}, {s(sT0)}, 3136
          v_lshlrev_b32 {v(74)}, 7, {v(vLANE)}""")
    if "notouch" not in OPT:
        A.vmem(f"buffer_load_dword {v(84)}, {v(74)}, {s(S4,4)}, {s(sT1)} offen", "t")
        A(f"s_add_u32 {s(sT1)}, {s(sT1)}, 8192\ns_bfm_b64 exec, 34, 0")
        A.vmem(f"buffer_load_dword {v(85)}, {v(74)}, {s(S4,4)}, {s(sT1)} offen", "t")
        A("s_bfm_b64 exec, 25, 0")
        A.vmem(f"buffer_load_dword {v(86)}, {v(74)}, {s(SO,4)}, {s(sT2)} offen", "t")
        A("s_mov_b64 exec, -1")
    A(f"v_add3_u32 {v(72)}, {v(vTRD)}, {v(103)}, {s(sPA)}\nv_xor_b32 {v(73)}, 64, {v(72)}")
    A.wait_vm("W3")
    for i in range(14):
        tr(("a", 4 * i), 72 + (i & 1), (i >> 1) * 2048, 1024, ("c", i))
    for i in range(14):
        A.wait_lg(("c", i))
        mfma(v(32 + 16 * (i & 1), 16), v(ones, 4), a(4 * i, 4), 0 if i < 2 else None)
    A(f"""s_lshl_b32 {s(sT0)}, {s(sW)}, 8
          s_add_u32 {s(sT0)}, {s(sT0)}, {LA + 32768}
          v_lshlrev_b32 {v(73)}, 2, {v(vLANE)}
          v_add_u32 {v(74)}, {s(sT0)}, {v(73)}
          s_nop 7
          v_cndmask_b32 {v(72)}, {v(32)}, {v(48)}, {s(sHI,2)}
          ds_write_b32 {v(74)}, {v(72)}""")
    arrive(C_R1)
    A(f"s_cmp_gt_u32 {s(sTB)}, 27\ns_cbranch_scc1 L_kvend\ns_cmp_lg_u32 {s(sW)}, 0\ns_cbranch_scc1 L_kvend")
    await_cnt(C_R1)
    A(f"""ds_read_b32 {v(75)}, {v(74)} offset:256
          ds_read_b32 {v(76)}, {v(74)} offset:512
          ds_read_b32 {v(77)}, {v(74)} offset:768
          s_lshl_b32 {s(sT1)}, {s(sTB)}, 9
          s_add_u32 {s(sT1)}, {s(sT1)}, {CS}
          v_lshlrev_b32 {v(74)}, 3, {v(vLANE)}
          s_waitcnt lgkmcnt(0)
          v_add_f32 {v(72)}, {v(72)}, {v(75)}
          v_add_f32 {v(73)}, {v(76)}, {v(77)}
          buffer_store_dwordx2 {v(72,2)}, {v(74)}, {s(SW,4)}, {s(sT1)} offen sc1
          s_lshl_b32 {s(sT0)}, {s(sTB)}, 7
          s_add_u32 {s(sT0)}, {s(sT0)}, {FC}
          v_mov_b32 {v(vT0)}, {s(sN)}
          v_mov_b32 {v(vT1)}, {s(sN+1)}
          v_mov_b32 {v(vT3)}, 0
          s_waitcnt vmcnt(0)
          s_mov_b64 exec, 1
          buffer_store_dwordx2 {v(vT0,2)}, {v(vT3)}, {s(SW,4)}, {s(sT0)} offen sc1
          s_mov_b64 exec, -1""")
    A.label("L_kvend")
    arrive(C_P4)
    stamp()
    dump_stamps()
    A("s_endpgm")


def att(vm_entry):
    A.label("L_att")
    A.vm = list(vm_entry)
    A.lg = []
    stamps["n"] = 1
    acc, cs, ring, ones = 32, 48, 64, 96
    vM, vR = 8, 9
    A(f"""s_mul_i32 {s(sT0)}, {s(sCB)}, 112
          s_lshl_b32 {s(sT1)}, {s(sW)}, 3
          v_add_u32 {v(vT0)}, {s(sT1)}, {v(vC8)}
          v_mul_u32_u24 {v(vT0)}, 896, {v(vT0)}
          v_add3_u32 {v(vWQ)}, {v(vT0)}, {v(vC7)}, {s(sT0)}
          s_lshl_b32 {s(sPA)}, {s(sW)}, 10
          s_mul_i32 {s(sT0)}, {s(sP)}, 56
          v_add_u32 {v(103)}, {s(sT0)}, {v(103)}
          v_xor_b32 {v(103)}, {v(103)}, {v(102)}
          v_add_u32 {v(vT0)}, {v(vTRN)}, {v(103)}
          v_add_u32 {v(10)}, {LQ}, {v(vT0)}
          v_add_u32 {v(11)}, {LA}, {v(vT0)}""")
    nq0 = int(OPT.get("nq0", 11))
    for n in range(nq0):
        dma(sPA, LQ + n * 4096, vWQ, SQ, (f"s_mov_b32 {s(sT0)}, {n * 32 * 896}", s(sT0)), "WQ")
    early_stamp(6)
    A.wait_vm("X")
    barrier()
    early_dump()
    stamp()

    def first():
        for n in range(nq0, 14):
            dma(sPA, LQ + n * 4096 if n < 11 else LA + (n - 11) * 4096, vWQ, SQ, (f"s_mov_b32 {s(sT0)}, {n * 32 * 896}", s(sT0)), "WQ")
        nonce_issue(12)
        touch("p1")
    stat_part(lambda: None)
    barrier()
    first()
    stat_read()
    for ks in range(28):
        A.ds(f"ds_read_b128 {a(4*ks,4)}, {v(vXF + (ks & 3))} offset:{(ks >> 2) * 8192}", ("x", ks))
    stat_fin(vM, vR)
    A(f"v_add_f32 {v(vR)}, {f32(EPS)}, {v(vR)}\nv_rsq_f32 {v(vR)}, {v(vR)}")
    A.drain_lg()
    arrive(C_PA)
    A(f"v_mul_f32 {v(vR)}, {f32(QSCALE)}, {v(vR)}")
    A.wait_vm(["WQ", "nonce"])
    arrive(C_WQ)
    nonce_take(12)
    await_cnt(C_WQ)
    stamp()

    def wq(ks):
        tr(("v", ring + 4 * (ks % 8)), 10 if ks < 22 else 11, (ks % 22) * 2048, 512, ("w", ks))
    vG, vF = 12, 104
    aO, aQ, aK, vV = 0, 48, 80, 72
    O0, S, P = 16, [32, 48], 64

    def setup_k():
        A(f"""v_lshlrev_b32 {v(vT1)}, 7, {v(vLANE)}
              v_add_u32 {v(vT1)}, {FK}, {v(vT1)}
              s_mov_b64 {s(sINV,2)}, {s(sHI,2)}""")
        lanes_to(vT1)

    misc = f"""s_lshl_b32 {s(sT0)}, {s(sW)}, 11
          s_add_u32 {s(sT0)}, {s(sT0)}, {L_QG}
          v_add_u32 {v(vG)}, {s(sT0)}, {v(vL16)}
          s_lshl_b32 {s(sT0)}, {s(sW)}, 8
          s_add_u32 {s(sT0)}, {s(sT0)}, {L_QN}
          v_lshlrev_b32 {v(14)}, 2, {v(vLANE)}
          v_add_u32 {v(15)}, {s(sT0)}, {v(14)}
          v_add_u32 {v(14)}, {L_QN}, {v(14)}
          s_add_u32 {s(sT0)}, {s(sCB)}, {s(sTB)}
          s_and_b32 {s(sT0)}, {s(sT0)}, 3
          s_lshl_b32 {s(sK)}, {s(sT0)}, 14
          s_add_u32 {s(sV)}, {s(sK)}, 0x4000
          s_and_b32 {s(sV)}, {s(sV)}, 0xffff
          s_lshl_b32 {s(sT0)}, {s(sW)}, 16
          v_add_u32 {v(vF)}, {s(sT0)}, {v(vL16)}
          v_add_u32 {v(vF+1)}, 4096, {v(vF)}
          v_add_u32 {v(vF+2)}, 8192, {v(vF)}
          v_add_u32 {v(vF+3)}, 12288, {v(vF)}""".split("\n")
    misc += [f"v_mov_b32 {v(O0+i)}, 0" for i in range(16)]
    misc += [f"v_xor_b32 {v(108+sl)}, {sl << 11}, {v(vG)}" for sl in range(1, 4)]

    def qstep(ks):
        if ks + 6 < 28:
            wq(ks + 6)
        A.wait_lg(("w", ks))
        mfma(v(acc, 16), v(ring + 4 * (ks % 8), 4), a(4 * ks, 4), 0 if ks == 0 else None)
        mfma(v(cs, 16), v(ring + 4 * (ks % 8), 4), v(ones, 4), 0 if ks == 0 else None)
        if 14 <= ks < 26:
            for i in range(4):
                A(f"v_accvgpr_write_b32 {a(aO + 4 * (ks - 14) + i)}, 0")
    for ks in range(6):
        wq(ks)
    weave(A, [lambda ks=ks: qstep(ks) for ks in range(28)], [lambda t=t: A(t) for t in misc])
    hi = "prl" not in OPT

    def kload(slot, base):
        for c in range(2):
            A.vmem(f"buffer_load_dwordx4 {a(aK + 8*slot + 4*c, 4)}, {v(vF+slot)}, {s(SW,4)}, {s(base)} offen offset:{c*1024} sc1", "K")

    def vload(slot, base):
        for c in range(2):
            A.vmem(f"buffer_load_dwordx4 {v(vV + 8*slot + 4*c, 4)}, {v(vF+slot)}, {s(SW,4)}, {s(base)} offen offset:{2048 + c*1024} sc1", "V")

    def first_loads():
        A("s_setprio 3")
        for slot in range(3):
            kload(slot, sK)
            vload(slot, sK)
            if slot == 0:
                A("s_setprio " + OPT.get("aprio", "0"))
        kload(3, sK)
        A.vm = []

    stamp()
    A("s_nop 7")
    q = acc
    for i in range(16):
        A(f"v_fma_f32 {v(q+i)}, -{v(cs+i)}, {v(vM)}, {v(q+i)}\nv_mul_f32 {v(q+i)}, {v(q+i)}, {v(vR)}")
    A(f"s_mov_b64 exec, {s(sHI,2)}")
    for i in range(12, 16):
        A(f"v_mov_b32 {v(q+i)}, 0")
    A("s_mov_b64 exec, -1")
    for i in range(8):
        A(f"v_cvt_pk_bf16_f32 {v(48+i)}, {v(q+2*i)}, {v(q+2*i+1)}")
    A.ds(f"ds_write_b128 {v(vG)}, {v(48,4)}", "qg")
    A.ds(f"ds_write_b128 {v(vG)}, {v(52,4)} offset:1024", "qg")
    A(f"v_mul_f32 {v(56)}, {v(q)}, {v(q)}")
    for i in range(1, 16):
        A(f"v_fma_f32 {v(56)}, {v(q+i)}, {v(q+i)}, {v(56)}")
    halves(56, 57)
    A(f"v_add_f32 {v(56)}, {v(56)}, {v(57)}")
    A.ds(f"ds_write_b32 {v(15)}, {v(56)}", "qg")
    arrive(C_Q)
    for i in range(4):
        A(f"v_mov_b32 {v(P+4+i)}, 0\nv_mov_b32 {v(vV+28+i)}, 0")
    await_cnt(C_Q)
    for sl in range(4):
        for c in range(2):
            A.ds(f"ds_read_b128 {a(aQ + 8*sl + 4*c, 4)}, {v(108+sl if sl else vG)} offset:{c*1024}", "q")
    for sl in range(4):
        A.ds(f"ds_read_b32 {v(120+sl)}, {v(14)} offset:{sl*256}", "q")
    A.drain_lg()
    arrive(C_QD)
    A("s_setprio 3")
    gate(G_K, setup_k, 112, payload=lambda: A(f"v_mov_b32 {v(113)}, {L_KP}\nds_max_u32 {v(113)}, {v(114)}"))
    stamp()
    A(f"v_mov_b32 {v(113)}, {L_KP}\nds_read_b32 {v(112)}, {v(113)}")
    first_loads()
    A(f"""s_waitcnt lgkmcnt(0)
          v_max3_f32 {v(120)}, {v(120)}, {v(121)}, {v(122)}
          v_max_f32 {v(120)}, {v(120)}, {v(123)}
          v_mul_f32 {v(108)}, {v(112)}, {v(120)}
          v_cmp_nge_f32 vcc, {f32(-1.0 if FORCE_SLOW else BOUND2)}, {v(108)}
          s_cmp_lg_u64 vcc, 0
          s_cbranch_scc1 L_slow""")
    A.label("L_fast")
    A("s_waitcnt vmcnt(10)")

    def Oreg(sl):
        return v(O0, 16) if sl == 0 else a(aO + 16 * (sl - 1), 16)

    mfma(v(S[0], 16), a(aK, 4), a(aQ, 4), 0)
    mfma(v(S[0], 16), a(aK + 4, 4), a(aQ + 4, 4))
    A(f"s_mov_b32 {s(sT4)}, 4\ns_nop 7\ns_nop 1")
    A.label("L_aloop")

    def period(sg, qt):
        cur, nxt = S[qt & 1], S[(qt + 1) & 1]
        ks = sg if qt < 3 else (sg + 1) & 3
        vs = sg if qt > 0 else (sg - 1) & 3
        nq, pq = (qt + 1) & 3, (qt - 1) & 3
        e = lambda i: A(f"v_exp_f32 {v(cur+i)}, {v(cur+i)}")
        c = lambda i: A(f"v_cvt_pk_bf16_f32 {v(P+i)}, {v(cur+2*i)}, {v(cur+2*i+1)}")
        if qt == 3:
            A("s_waitcnt vmcnt(6)")
        mfma(v(nxt, 16), a(aK + 8 * ks, 4), a(aQ + 8 * nq, 4), 0)
        if qt == 3:
            A("s_setprio 3")
            vload((sg - 1) & 3, sK if sg == 0 else sV)
            kload(sg, sV)
            A("s_setprio " + OPT.get("aprio", "0"))
        e(0); e(1); e(2); e(3)
        mfma(Oreg(pq), v(vV + 8 * vs + 4, 4), v(P + 4, 4))
        c(0); c(1); e(4); e(5); e(6); e(7)
        mfma(v(nxt, 16), a(aK + 8 * ks + 4, 4), a(aQ + 8 * nq + 4, 4))
        c(2); c(3); e(8); e(9); e(10); e(11)
        mfma(Oreg(qt), v(vV + 8 * sg, 4), v(P, 4))
        c(4); c(5); e(12); e(13); e(14); e(15); c(6); c(7)

    for sg in range(4):
        for qt in range(4):
            period(sg, qt)
            A.vm = []
    A(f"""s_mov_b32 {s(sK)}, {s(sV)}
          s_add_u32 {s(sV)}, {s(sV)}, 0x4000
          s_and_b32 {s(sV)}, {s(sV)}, 0xffff
          s_cmp_eq_u32 {s(sT4)}, 2
          s_cselect_b32 {s(sV)}, {OOB}, {s(sV)}
          s_sub_u32 {s(sT4)}, {s(sT4)}, 1
          s_cmp_lg_u32 {s(sT4)}, 0
          s_cbranch_scc1 L_aloop""")
    mfma(Oreg(3), v(vV + 28, 4), v(P + 4, 4))
    stamp()
    A("s_setprio 3")
    await_cnt(C_P4)
    A(f"""s_mul_i32 {s(sT0)}, {s(sW)}, 12288
          s_add_u32 {s(sT0)}, {s(sT0)}, {LA}
          v_add_u32 {v(8)}, {s(sT0)}, {v(vL16)}
          s_nop 7""")
    offs = [(0, i * 1024) for i in range(12)]
    reduce_out([("a", aO), ("a", aO + 16), ("a", aO + 32)], C_MRG, [8], offs)

    def mk(sl):
        A(f"""s_xor_b32 {s(sT0)}, {s(sW)}, {sl}
              s_mul_i32 {s(sT0)}, {s(sT0)}, 12288
              s_add_u32 {s(sT0)}, {s(sT0)}, {LA}
              v_add_u32 {v(8+sl)}, {s(sT0)}, {v(vL16)}""")
        return [8 + sl]
    reduce_in(O0, [32, 48, 104], C_MRG, mk, offs)
    A(f"v_mov_b32 {v(32)}, {v(O0+12)}")
    halves(32, 33)
    A(f"""v_rcp_f32 {v(33)}, {v(33)}
          s_lshl_b32 {s(sT0)}, {s(sGT)}, 4
          s_lshl_b32 {s(sT1)}, {s(sCB)}, 1
          s_add_u32 {s(sT0)}, {s(sT0)}, {s(sT1)}
          s_add_u32 {s(sT0)}, {s(sT0)}, {s(sP)}
          s_lshl_b32 {s(sT0)}, {s(sT0)}, 11
          s_add_u32 {s(sT4)}, {s(sT0)}, {OB}""")
    for i in range(16):
        A(f"v_mul_f32 {v(O0+i)}, {v(O0+i)}, {v(33)}")
    for i in range(8):
        A(f"v_cvt_pk_bf16_f32 {v(40+i)}, {v(O0+2*i)}, {v(O0+2*i+1)}")
    A(f"s_mov_b64 exec, {s(sHI,2)}\nv_mov_b32 {v(46)}, 0\nv_mov_b32 {v(47)}, 0\ns_mov_b64 exec, -1")
    A(f"buffer_store_dwordx4 {v(40,4)}, {v(vL16)}, {s(SW,4)}, {s(sT4)} offen sc1")
    A(f"buffer_store_dwordx4 {v(44,4)}, {v(vL16)}, {s(SW,4)}, {s(sT4)} offen offset:1024 sc1")
    signal(N_O, own_slot(FO))
    stamp()
    dump_stamps()
    A("s_endpgm")

    A.label("L_slow")
    mx, kf = 108, 112
    for sl in range(4):
        A(f"v_mov_b32 {v(mx+sl)}, 0xff800000")
    A(f"s_mov_b32 {s(sT4)}, 0")
    A.label("L_sloop")
    A(f"""buffer_load_dwordx4 {v(kf,4)}, {v(vF)}, {s(SW,4)}, {s(sT4)} offen sc1
          buffer_load_dwordx4 {v(kf+4,4)}, {v(vF)}, {s(SW,4)}, {s(sT4)} offen offset:1024 sc1
          s_add_u32 {s(sT4)}, {s(sT4)}, 4096
          s_waitcnt vmcnt(0)""")
    for sl in range(4):
        mfma(v(S[0], 16), v(kf, 4), a(aQ + 8 * sl, 4), 0)
        mfma(v(S[0], 16), v(kf + 4, 4), a(aQ + 8 * sl + 4, 4))
        A("s_nop 11")
        for i in range(8):
            A(f"v_max3_f32 {v(mx+sl)}, {v(mx+sl)}, {v(S[0]+2*i)}, {v(S[0]+2*i+1)}")
    A(f"s_cmp_lt_u32 {s(sT4)}, 0x10000\ns_cbranch_scc1 L_sloop")
    A(f"v_and_b32 {v(kf)}, 31, {v(vLANE)}\nv_lshlrev_b32 {v(kf)}, 2, {v(kf)}\nv_add_u32 {v(kf)}, {L_MX}, {v(kf)}")
    for sl in range(4):
        halves(mx + sl, kf + 1)
        A(f"""v_max_f32 {v(mx+sl)}, {v(mx+sl)}, {v(kf+1)}
              s_xor_b32 {s(sT0)}, {s(sW)}, {sl}
              s_lshl_b32 {s(sT0)}, {s(sT0)}, 7
              v_add_u32 {v(kf+4+sl)}, {s(sT0)}, {v(kf)}""")
    A(f"ds_write_b32 {v(kf+4)}, {v(mx)}")
    arrive(C_MAX)
    await_cnt(C_MAX)
    for sl in range(1, 4):
        A(f"ds_max_f32 {v(kf+4+sl)}, {v(mx+sl)}")
    arrive(C_MAX)
    await_cnt(C_MAX, 8)
    t = 120
    for sl in range(4):
        A(f"""ds_read_b32 {v(t)}, {v(kf+4+sl)}
              s_waitcnt lgkmcnt(0)
              v_sub_f32 {v(t)}, 0, {v(t)}
              v_cvt_pk_bf16_f32 {v(t+1)}, {v(t)}, {v(t)}
              v_and_b32 {v(t+1)}, 0xffff0000, {v(t+1)}
              v_sub_f32 {v(t+2)}, {v(t)}, {v(t+1)}
              v_cvt_pk_bf16_f32 {v(t+3)}, {v(t)}, {v(t+2)}
              v_and_b32 {v(t+1)}, 0xffff0000, {v(t+3)}
              v_sub_f32 {v(t+2)}, {v(t+2)}, {v(t+1)}
              v_cvt_pk_bf16_f32 {v(t+2)}, {v(t+2)}, 0
              s_mov_b64 exec, {s(sHI,2)}
              v_accvgpr_write_b32 {a(aQ + 8*sl + 6)}, {v(t+3)}
              v_accvgpr_write_b32 {a(aQ + 8*sl + 7)}, {v(t+2)}
              s_mov_b64 exec, -1""")
    A("s_nop 1\ns_branch L_fast")


def header():
    ref = open(f"cdna_kernels/{NAME}.s.ref").read().split("\n")
    out = [l for l in ref if l.startswith(";") and "@launch" not in l and "Override" not in l and "grid=ceil" not in l]
    out.append(f"; @launch grid=(256,1,1) block=(512,1,1) lds={LDS_SIZE}")
    out += ['.amdgcn_target "amdgcn-amd-amdhsa--gfx950"', ".text", f".globl {NAME}_kernel", ".p2align 8",
            f".type {NAME}_kernel,@function", f"{NAME}_kernel:"]
    return "\n".join(out) + "\n"


def footer():
    return f"""L_end:
    s_endpgm
L_code_end:
.section .rodata,"a"
.p2align 6
.amdhsa_kernel {NAME}_kernel
  .amdhsa_next_free_vgpr 256
  .amdhsa_next_free_sgpr 102
  .amdhsa_accum_offset 128
  .amdhsa_group_segment_fixed_size 0
  .amdhsa_kernarg_size 104
  .amdhsa_user_sgpr_count 2
  .amdhsa_user_sgpr_kernarg_segment_ptr 1
  .amdhsa_system_sgpr_workgroup_id_x 1
.end_amdhsa_kernel
"""


if __name__ == "__main__":
    vm0 = prologue()
    mlp(vm0)
    att(vm0)
    out = [x for x in sys.argv[1:] if not x.startswith("--")]
    open(out[0] if out else "k.s", "w").write(header() + A.text() + footer())
```

```python
import math
import sys
from asmlib import Asm, a, f32, s, v, weave

NAME = "recurrent_scan__grouped_kv_mqa__mixer_s_mlp__prompt"
PROFILE = "--prof" in sys.argv or "--cyc" in sys.argv
CLOCK = "s_memtime" if "--cyc" in sys.argv else "s_memrealtime"
FORCE_SLOW = "--slow" in sys.argv
OPT = {x[2:].split("=")[0]: (x.split("=") + [""])[1] for x in sys.argv if x.startswith("--")}


class Stop(Exception):
    pass


def cut(name):
    if OPT.get("mlpstop") == name:
        arrive(C_P4)
        A.drain_vm()
        dump_stamps()
        A("s_endpgm")


KV, CS, FK, FC, FH, FX, FG, FO, FG2 = 0x0, 0x40000, 0x48000, 0x49000, 0x50000, 0x58000, 0x60000, 0x68000, 0x70000
TS = 0x80000
HB, ST, X1, HH, OB = 0x100000, 0x2C0000, 0x300000, 0x500000, 0xC00000
WS_SIZE = 0xE00000
OOB = 0x7FFF0000
LX, LA, LQ, LS = 0, 57344, 114688, 159744
LDS_SIZE = 163840
(C_PA, C_W2, C_WQ, C_Q, C_QD, C_MAX, C_MRG, C_R1, C_XA, C_XB, C_P4, C_R2, C_R3, N_H, N_X, N_G, N_G2, N_O, N_K, N_C,
 G_H, G_X, G_G, G_G2, G_O, G_K, L_KM, L_KP, L_MODE) = [LS + 4 * i for i in range(29)]
L_QN, L_STAT = LS + 1024, LS + 2048
L_MX = LS + 256
L_QG, L_VT = LA + 16384, LA + 24576
NRING = 12
assert L_QG % 8192 == 0
LOG2E = 1.4426950408889634
QSCALE = 28 ** -0.5 * LOG2E
GC1 = -2 * LOG2E * math.sqrt(2 / math.pi)
GC2 = GC1 * 0.044715
EPS = 1e-5
BOUND2 = 3500.0
ONES = 0x3F803F80
GSPIN, LSPIN = 20000, 400000
SX, SA, SQ, SW, S4, SO, SOUT, SD, S2 = 4, 8, 12, 16, 20, 24, 28, 32, 36
P_X, P_WQ, P_WK, P_WV, P_WO, P_W1, P_W2, P_W3, P_W4, P_OUT, P_DBG, P_WS = 40, 42, 44, 46, 48, 52, 54, 56, 58, 60, 62, 64
sN = 66
sW8, sW, sTB, sCB, sTT, sP, sGT = 68, 69, 70, 71, 72, 73, 74
sHI = 76
sINV = 78
sT0, sT1, sT2, sT3, sT4, sT5 = 80, 81, 82, 83, 84, 85
sPA, sPB, sB1, sB4, sSP = 86, 87, 88, 89, 90
sK, sV, sR, sRG, sRH = 91, 92, 93, 96, 97
sXC, sLOC = 75, 3
sTS = 40
vLANE, vL16, vTRN, vTRD, vT0, vT1, vT2, vT3 = 0, 1, 2, 3, 4, 5, 6, 7
MF = "v_mfma_f32_32x32x16_bf16"

A = Asm()
stamps = {"n": 0}


def stamp():
    if PROFILE:
        i = stamps["n"]
        stamps["n"] += 1
        A(f"s_waitcnt lgkmcnt(0)\n{CLOCK} {s(94,2)}\ns_waitcnt lgkmcnt(0)\ns_mov_b32 {s(sTS+i)}, s94")
        if "both" in OPT:
            A(f"s_memrealtime {s(94,2)}\ns_and_b32 {s(sTS+i)}, {s(sTS+i)}, 0xfffff\ns_waitcnt lgkmcnt(0)\n"
              f"s_lshl_b32 s94, s94, 20\ns_or_b32 {s(sTS+i)}, {s(sTS+i)}, s94")
        A.lg = []


def early_stamp(i):
    if "startup" in OPT:
        A(f"s_memtime {s(94,2)}\ns_waitcnt lgkmcnt(0)\ns_mov_b32 {s([98, 99, 100, 101, 3, 75, 97][i])}, s94")


def early_dump():
    if "startup" in OPT:
        for i, r in enumerate([98, 99, 100, 101, 3, 75, 97]):
            A(f"s_mov_b32 {s(sTS+i)}, {s(r)}")
        stamps["n"] = 7
        stamp()
        dump_stamps()
        A("s_endpgm")


def dump_stamps():
    if PROFILE:
        n = stamps["n"]
        A(f"s_lshl_b32 {s(sT0)}, s2, 3\ns_add_u32 {s(sT0)}, {s(sT0)}, {s(sW8)}\ns_lshl_b32 {s(sT0)}, {s(sT0)}, 7\n"
          f"s_add_u32 {s(sT0)}, {s(sT0)}, {TS}\nv_mov_b32 {v(vT1)}, 0")
        for i in range(n):
            A(f"v_mov_b32 {v(vT0)}, {s(sTS+i)}\nbuffer_store_dword {v(vT0)}, {v(vT1)}, {s(SW,4)}, {s(sT0)} offen offset:{4*i}")
        A.drain_vm()
    stamps["n"] = 0


def srd(r, ptr, size):
    A(f"s_mov_b32 {s(r)}, {s(ptr)}\ns_mov_b32 {s(r+1)}, {s(ptr+1)}\ns_mov_b32 {s(r+2)}, {size}\ns_mov_b32 {s(r+3)}, 0x20000")


def mfma(d, x, y, c=None):
    A(f"{MF} {d}, {x}, {y}, {d if c is None else c}")


def dma(m0_base, m0_off, voff, desc, soff, tag, imm=0, sc=""):
    if m0_base is None:
        A(f"s_mov_b32 m0, {m0_off - imm}")
    else:
        A(f"s_add_u32 m0, {s(m0_base)}, {m0_off - imm}")
    pre, so = soff
    if pre:
        A(pre)
    else:
        A("s_nop 0")
    A.vmem(f"buffer_load_dwordx4 {v(voff)}, {s(desc,4)}, {so} offen" + (f" offset:{imm}" if imm else "") + f"{sc} lds", tag)


def tr(dst, addr, off, second, tag):
    k, i = dst
    r = v if k == "v" else a
    A.ds(f"ds_read_b64_tr_b16 {r(i,2)}, {v(addr)} offset:{off}", tag)
    A.ds(f"ds_read_b64_tr_b16 {r(i+2,2)}, {v(addr)} offset:{off+second}", tag)


def arrive(cnt):
    A(f"s_mov_b64 exec, 1\nv_mov_b32 {v(vT0)}, {cnt}\nv_mov_b32 {v(vT1)}, 1")
    A.ds(f"ds_add_u32 {v(vT0)}, {v(vT1)}", "cnt")
    A("s_mov_b64 exec, -1")


def await_cnt(cnt, target=4):
    lp, ok = A.newlabel("ls"), A.newlabel("lk")
    A(f"v_mov_b32 {v(vT0)}, {cnt}\ns_mov_b32 {s(sSP)}, 0")
    A.label(lp)
    A(f"""ds_read_b32 {v(vT1)}, {v(vT0)}
          s_add_u32 {s(sSP)}, {s(sSP)}, 1
          s_waitcnt lgkmcnt(0)
          v_readfirstlane_b32 {s(sT0)}, {v(vT1)}
          s_cmp_ge_u32 {s(sT0)}, {target}
          s_cbranch_scc1 {ok}
          {"s_sleep " + OPT["lsleep"] if "lsleep" in OPT else ""}
          s_cmp_lt_u32 {s(sSP)}, {LSPIN}
          s_cbranch_scc1 {lp}""")
    A.label(ok)
    A.lg = []


def gate(go, setup, tmp, payload=None, release=True):
    lp, ok, rest = A.newlabel("gs"), A.newlabel("gk"), A.newlabel("gw")
    every = "allpoll" in OPT and not payload
    if not every:
        A(f"s_cmp_lg_u32 {s(sW)}, 0\ns_cbranch_scc1 {rest}")
    setup()
    A(f"s_mov_b32 {s(sSP)}, 0")
    A.label(lp)
    n = 4 if payload else 2
    A(f"""buffer_load_dwordx{n} {v(tmp,n)}, {v(vT2)}, {s(SW,4)}, 0 offen sc1
          s_add_u32 {s(sSP)}, {s(sSP)}, 1
          s_waitcnt vmcnt(0)
          v_cmp_eq_u64 vcc, {s(sN,2)}, {v(tmp,2)}
          s_or_b64 vcc, vcc, {s(sINV,2)}
          s_cmp_eq_u64 vcc, -1
          s_cbranch_scc1 {ok}
          s_cmp_lt_u32 {s(sSP)}, {GSPIN}
          s_cbranch_scc1 {lp}""")
    A.label(ok)
    if every:
        return
    if payload:
        payload()
    if not release:
        A.label(rest)
        return
    keep = list(A.lg)
    arrive(go)
    A.lg = keep
    A.label(rest)
    await_cnt(go, 1)


def peek_issue(setup, data=vT0, addr=vT2, n=2):
    setup()
    if addr != vT2:
        A(f"v_mov_b32 {v(addr)}, {v(vT2)}")
    A.vmem(f"buffer_load_dwordx{n} {v(data,n)}, {v(addr)}, {s(SW,4)}, 0 offen sc1", "peek")


def peek_check(data=vT0, addr=vT2, n=2):
    lp, ok = A.newlabel("ps"), A.newlabel("pk")
    A.wait_vm("peek")
    A(f"s_mov_b32 {s(sSP)}, {GSPIN}")
    A.label(lp)
    A(f"""v_cmp_eq_u64 vcc, {s(sN,2)}, {v(data,2)}
          s_or_b64 vcc, vcc, {s(sINV,2)}
          s_cmp_eq_u64 vcc, -1
          s_cbranch_scc1 {ok}
          s_sub_u32 {s(sSP)}, {s(sSP)}, 1
          s_cbranch_scc1 {ok}
          buffer_load_dwordx{n} {v(data,n)}, {v(addr)}, {s(SW,4)}, 0 offen sc1
          s_waitcnt vmcnt(0)
          s_branch {lp}""")
    A.label(ok)


def lanes_to(addr_reg):
    A(f"s_mov_b64 vcc, {s(sINV,2)}\nv_mov_b32 {v(vT3)}, {OOB}\nv_cndmask_b32 {v(vT2)}, {v(addr_reg)}, {v(vT3)}, vcc")


def hstore(stores, tag=None, allow=True):
    if not allow:
        for t in stores:
            A.vmem(t + " sc1", tag)
        return
    near, done = A.newlabel("hn"), A.newlabel("hd")
    A(f"s_cmp_lg_u32 {s(sLOC)}, 0\ns_cbranch_scc1 {near}")
    for t in stores:
        A(t + " sc1")
    A(f"s_branch {done}")
    A.label(near)
    for t in stores:
        if tag is None:
            A(t)
        else:
            A.vmem(t, tag)
    A.label(done)


def note_die(data):
    A(f"""v_cmp_eq_u32 vcc, {s(sXC)}, {v(data)}
          s_and_b32 {s(sT0)}, vcc_lo, {s(sT2)}
          s_cmp_eq_u32 {s(sT0)}, {s(sT2)}
          s_cselect_b32 {s(sT0)}, {0 if "remote" in OPT else 1}, 0
          v_mov_b32 {v(vT0)}, {L_MODE}
          v_mov_b32 {v(vT1)}, {s(sT0)}
          ds_write_b32 {v(vT0)}, {v(vT1)}""")


def read_mode():
    A(f"""v_mov_b32 {v(vT0)}, {L_MODE}
          ds_read_b32 {v(vT1)}, {v(vT0)}
          s_waitcnt lgkmcnt(0)
          v_readfirstlane_b32 {s(sLOC)}, {v(vT1)}""")
    A.lg = []


def warm(dst, voff, soff, mask):
    if "nowarm" in OPT:
        return
    if isinstance(mask, str):
        A(f"s_bfm_b64 exec, {len(mask[2:]) * 4}, 0")
    else:
        A(f"s_mov_b64 exec, {mask}")
    A.vmem(f"buffer_load_dword {a(dst)}, {v(voff)}, {s(SW,4)}, {s(soff)} offen sc1", "warm")
    A("s_mov_b64 exec, -1")


def signal(cnt, soff_expr, tags=None, payload=None, near=False):
    skip = A.newlabel("sg")
    if tags is None:
        A.drain_vm()
    else:
        A.wait_vm(tags)
    A(f"""s_mov_b64 exec, 1
          v_mov_b32 {v(vT0)}, {cnt}
          v_mov_b32 {v(vT1)}, 1
          ds_add_rtn_u32 {v(vT1)}, {v(vT0)}, {v(vT1)}""")
    if payload:
        A(f"ds_read_b32 {v(vT2)}, {v(vT0)} offset:{payload - cnt}")
    A(soff_expr)
    A(f"""s_waitcnt lgkmcnt(0)
          v_readfirstlane_b32 {s(sT1)}, {v(vT1)}
          s_cmp_lg_u32 {s(sT1)}, 3
          s_cbranch_scc1 {skip}
          v_mov_b32 {v(vT0)}, {s(sN)}
          v_mov_b32 {v(vT1)}, {s(sN+1)}
          v_mov_b32 {v(vT3)}, 0""")
    if not payload:
        A(f"v_mov_b32 {v(vT2)}, {s(sXC)}")
    st = f"buffer_store_dwordx4 {v(vT0,4)}, {v(vT3)}, {s(SW,4)}, {s(sT0)} offen"
    if near:
        hstore([st])
    else:
        A(st + " sc1")
    A.label(skip)
    A("s_mov_b64 exec, -1\ns_nop 0")
    A.lg = []


def nonce_issue(tmp):
    A(f"v_mov_b32 {v(vT3)}, 0")
    A.vmem(f"buffer_load_dwordx2 {v(tmp,2)}, {v(vT3)}, {s(SD,4)}, 0 offen sc1", "nonce")


def nonce_take(tmp):
    lp, ok = A.newlabel("ns"), A.newlabel("nk")
    A.wait_vm("nonce")
    A(f"s_mov_b32 {s(sSP)}, 0\nv_mov_b32 {v(vT3)}, 0")
    A.label(lp)
    A(f"""v_readfirstlane_b32 {s(sN)}, {v(tmp)}
          v_readfirstlane_b32 {s(sN+1)}, {v(tmp+1)}
          s_add_u32 {s(sSP)}, {s(sSP)}, 1
          s_cmp_lg_u64 {s(sN,2)}, 0
          s_cbranch_scc1 {ok}
          s_cmp_ge_u32 {s(sSP)}, {GSPIN}
          s_cbranch_scc1 {ok}
          buffer_load_dwordx2 {v(tmp,2)}, {v(vT3)}, {s(SD,4)}, 0 offen sc1
          s_waitcnt vmcnt(0)
          s_branch {lp}""")
    A.label(ok)


def halves(x, t):
    A(f"v_mov_b32 {v(t)}, {v(x)}\ns_nop 1\nv_permlane32_swap_b32 {v(x)}, {v(t)}")


def wave_max(x, full):
    for sh in (1, 2, 4, 8):
        A(f"s_nop 1\nv_max_f32_dpp {v(x)}, {v(x)}, {v(x)} row_shr:{sh} row_mask:0xf bank_mask:0xf bound_ctrl:0")
    A(f"s_nop 1\nv_max_f32_dpp {v(x)}, {v(x)}, {v(x)} row_bcast:15 row_mask:0xa bank_mask:0xf")
    if full:
        A(f"s_nop 1\nv_max_f32_dpp {v(x)}, {v(x)}, {v(x)} row_bcast:31 row_mask:0xc bank_mask:0xf")
    A("s_nop 1")


def gelu_ops(y, t, dst, c1, c2, ri):
    o = []
    for e in (0, 1):
        o.append(f"v_mul_f32 {v(t+e)}, {v(y+e)}, {v(y+e)}")
    for e in (0, 1):
        o.append(f"v_fma_f32 {v(t+e)}, {v(t+e)}, {v(c2)}, {v(c1)}")
    for e in (0, 1):
        o.append(f"v_mul_f32 {v(t+e)}, {v(t+e)}, {v(y+e)}")
    for e in (0, 1):
        o.append(f"v_exp_f32 {v(t+e)}, {v(t+e)}")
    for e in (0, 1):
        o.append(f"v_fma_f32 {v(t+e)}, {v(t+e)}, {v(ri)}, {v(ri)}")
    for e in (0, 1):
        o.append(f"v_rcp_f32 {v(t+e)}, {v(t+e)}")
    for e in (0, 1):
        o.append(f"v_mul_f32 {v(t+e)}, {v(t+e)}, {v(y+e)}")
    o.append(f"v_cvt_pk_bf16_f32 {v(dst)}, {v(t)}, {v(t+1)}")
    return o


def ring_addr(slot):
    return (sPA, slot * 2048) if slot < 7 else (sPB, (slot - 7) * 2048)


def reduce_out(srcs, cnt, vbase, offs, fill=()):
    def wr(i):
        k, r = srcs[i // 4]
        reg = (v if k == "v" else a)(r + 4 * (i % 4), 4)
        b, o = offs[i]
        A.ds(f"ds_write_b128 {v(vbase[b])}, {reg} offset:{o}", "red")
        if i == 11:
            arrive(cnt)
    weave(A, [lambda i=i: wr(i) for i in range(12)], list(fill))


def reduce_in(acc, tmp, cnt, mkaddr, offs, between=None):
    tmp = tmp if isinstance(tmp, list) else [tmp, tmp + 16, tmp + 32]
    await_cnt(cnt)
    for sl in (1, 2, 3):
        regs = mkaddr(sl)
        for q in range(4):
            b, o = offs[(sl - 1) * 4 + q]
            A.ds(f"ds_read_b128 {v(tmp[sl-1] + 4*q, 4)}, {v(regs[b])} offset:{o}", ("rd", sl))
    if between:
        between()
    for sl in (1, 2, 3):
        A.wait_lg(("rd", sl))
        for i in range(16):
            A(f"v_add_f32 {v(acc+i)}, {v(acc+i)}, {v(tmp[sl-1] + i)}")


vC8, vC7, vXF, vWQ = 100, 101, 104, 109
SXR = [16, 20, 88, 92, 112, 116, 120]


def image(base, off, voff, desc, sreg_expr, rs, tag, halves_=(0, 1)):
    for h in halves_:
        dma(base, off + h * 1024, voff, desc, (sreg_expr(h * 8 * rs), s(sT0)), tag)


def gaps(mfmas, pieces):
    n, m, done = len(mfmas), len(pieces), 0
    for i, f in enumerate(mfmas):
        f()
        while done < -(-m * (i + 1) // n):
            pieces[done]()
            done += 1


def prologue():
    A(f"""s_cmp_ge_u32 s2, 256
          s_cbranch_scc1 L_end
          s_load_dwordx16 {s(40,16)}, s[0:1], 0
          s_load_dwordx8 {s(56,8)}, s[0:1], 64
          s_load_dwordx2 {s(64,2)}, s[0:1], 96
          s_memrealtime {s(sN,2)}
          {CLOCK + " " + s(98,2) if PROFILE else ""}
          s_getpc_b64 {s(sT2,2)}
          v_lshrrev_b32 {v(vT0)}, 6, v0
          s_lshr_b32 {s(sT0)}, s2, 3
          v_readfirstlane_b32 {s(sW8)}, {v(vT0)}
          v_and_b32 {v(vLANE)}, 63, v0
          v_lshlrev_b32 {v(vT2)}, 7, {v(vLANE)}
          s_and_b32 {s(sT2)}, {s(sT2)}, 0xffffff00""")
    A(f"""s_mul_i32 {s(sT4)}, {s(sT0)}, 26
          s_lshr_b32 {s(sT4)}, {s(sT4)}, 8
          s_mul_i32 {s(sT4)}, {s(sT4)}, 10
          s_sub_u32 {s(sT4)}, {s(sT0)}, {s(sT4)}
          s_lshl_b32 {s(sT4)}, {s(sT4)}, 3
          s_add_u32 {s(sT4)}, {s(sT4)}, {s(sW8)}
          s_lshl_b32 {s(sT4)}, {s(sT4)}, 9
          v_add_u32 {v(vT1)}, {s(sT4)}, {v(vT2)}
          v_min_u32 {v(vT1)}, L_code_end-{NAME}_kernel-4, {v(vT1)}
          s_mov_b64 exec, 15""")
    if "nopf" not in OPT:
        A.vmem(f"global_load_dword {a(124)}, {v(vT1)}, {s(sT2,2)}", "pf")
    A("s_mov_b64 exec, -1")
    nk = int(OPT.get("nk", 8))
    if nk == 8:
        A(f"""s_and_b32 {s(sT1)}, {s(sT0)}, 3
              s_and_b32 {s(sTB)}, s2, 7
              s_lshl_b32 {s(sTB)}, {s(sTB)}, 2
              s_add_u32 {s(sTB)}, {s(sTB)}, {s(sT1)}
              s_lshr_b32 {s(sCB)}, {s(sT0)}, 2""")
    else:
        per = 32 // nk
        perm = [int(c) for c in OPT.get("perm", "40516273")]
        A(f"""s_and_b32 {s(sT1)}, s2, 7
              s_lshl_b32 {s(sT1)}, {s(sT1)}, 2
              s_lshr_b32 {s(sT1)}, {sum(p << (4 * i) for i, p in enumerate(perm))}, {s(sT1)}
              s_and_b32 {s(sT1)}, {s(sT1)}, 7
              s_min_u32 {s(sT2)}, {s(sT1)}, {nk - 1}
              s_add_u32 {s(sT2)}, {s(sT2)}, 1
              s_mul_i32 {s(sT2)}, {s(sT2)}, {per}
              s_lshl_b32 {s(sT3)}, {s(sT1)}, 5
              s_add_u32 {s(sT3)}, {s(sT3)}, {s(sT0)}
              s_sub_u32 {s(sT3)}, {s(sT3)}, {s(sT2)}
              s_mul_i32 {s(sTB)}, {s(sT3)}, 9363
              s_lshr_b32 {s(sTB)}, {s(sTB)}, 16
              s_mul_i32 {s(sCB)}, {s(sTB)}, 7
              s_sub_u32 {s(sCB)}, {s(sT3)}, {s(sCB)}
              s_add_u32 {s(sCB)}, {s(sCB)}, 1
              s_mul_i32 {s(sT2)}, {s(sT1)}, {per}
              s_add_u32 {s(sT2)}, {s(sT2)}, {s(sT0)}
              s_cmp_lt_u32 {s(sT1)}, {nk}
              s_cselect_b32 {s(sT1)}, {per}, 0
              s_cmp_lt_u32 {s(sT0)}, {s(sT1)}
              s_cselect_b32 {s(sTB)}, {s(sT2)}, {s(sTB)}
              s_cselect_b32 {s(sCB)}, 0, {s(sCB)}
              s_and_b32 {s(sT1)}, {s(sTB)}, 3""")
    A(f"""v_lshlrev_b32 {v(vL16)}, 4, {v(vLANE)}
          v_lshrrev_b32 {v(vC8)}, 3, {v(vLANE)}
          v_lshrrev_b32 {v(vT0)}, 2, {v(vLANE)}
          v_and_b32 {v(vT0)}, 4, {v(vT0)}
          v_xor_b32 {v(vT0)}, {v(vT0)}, {v(vLANE)}
          v_and_b32 {v(vT0)}, 7, {v(vT0)}
          v_lshlrev_b32 {v(vC7)}, 4, {v(vT0)}""")
    A(f"""s_lshl_b32 {s(sT1)}, {s(sT1)}, 1
          s_add_u32 {s(sT1)}, {s(sT1)}, {s(sW8)}
          s_and_b32 {s(sT1)}, {s(sT1)}, 7
          s_lshl_b32 {s(sT4)}, {s(sT1)}, 10
          s_lshl_b32 {s(sT5)}, {s(sT1)}, 3
          v_add_u32 {v(vT1)}, {s(sT5)}, {v(vC8)}
          s_lshl_b32 {s(sT2)}, {s(sCB)}, 7
          s_sub_u32 {s(sT2)}, {s(sT2)}, 128
          v_mul_u32_u24 {v(vT3)}, 896, {v(vT1)}
          v_add3_u32 {v(103)}, {v(vT3)}, {v(vC7)}, {s(sT2)}
          s_and_b32 {s(sW)}, {s(sW8)}, 3
          s_mul_i32 {s(sT1)}, {s(sW)}, 7168
          v_add_u32 {v(vT3)}, {s(sT1)}, {v(vL16)}
          s_mul_i32 {s(sT1)}, {s(sW8)}, 7168
          s_cmp_eq_u32 {s(sCB)}, 0
          s_cselect_b64 vcc, -1, 0
          s_cselect_b32 {s(sT1)}, {s(sT1)}, {s(sT4)}
          s_mov_b32 {s(sT2)}, 1024
          s_cselect_b32 {s(sT3)}, {s(sT2)}, {64 * 896}
          s_cselect_b32 {s(sT5)}, {s(sT2)}, 8192
          v_cndmask_b32 {v(103)}, {v(103)}, {v(vT3)}, vcc
          s_add_u32 m0, {s(sT1)}, {LA}""")
    A(f"""s_lshl_b32 {s(sB1)}, {s(sTB)}, 3
          s_add_u32 {s(sB1)}, {s(sB1)}, {s(sCB)}
          s_lshl_b32 {s(sB1)}, {s(sB1)}, 3
          s_add_u32 {s(sB1)}, {s(sB1)}, {s(sW8)}
          s_mul_i32 {s(sB1)}, {s(sB1)}, 896
          s_mul_i32 {s(sB4)}, {s(sTB)}, 7
          s_add_u32 {s(sB4)}, {s(sB4)}, {s(sW8)}
          s_mul_i32 {s(sB4)}, {s(sB4)}, {2 * 896}
          s_mul_i32 {s(sT0)}, {s(sCB)}, 112
          s_add_u32 {s(sB4)}, {s(sB4)}, {s(sT0)}
          s_cmp_eq_u32 {s(sW8)}, 7
          s_cselect_b32 {s(sB4)}, {OOB}, {s(sB4)}
          v_lshrrev_b32 {v(102)}, 1, {v(vLANE)}
          v_mul_u32_u24 {v(102)}, 896, {v(102)}
          v_and_b32 {v(vT3)}, 1, {v(vLANE)}
          v_mul_u32_u24 {v(vT3)}, 120, {v(vT3)}
          v_add_u32 {v(102)}, {v(102)}, {v(vT3)}
          s_mov_b32 {s(SX+2)}, 1835008
          s_mov_b32 {s(SX+3)}, 0x20000
          s_mov_b32 {s(SQ+2)}, 401408
          s_mov_b32 {s(SQ+3)}, 0x20000
          s_mov_b32 {s(SA+3)}, 0x20000
          s_mov_b32 {s(SA+2)}, 25088
          s_cmp_eq_u32 {s(sCB)}, 0
          s_cselect_b32 {s(SA+2)}, {s(SA+2)}, 401408
          s_mov_b32 {s(sT0)}, 0
          s_cmp_lt_u32 {s(sW8)}, 4
          s_waitcnt lgkmcnt(0)
          s_cselect_b64 {s(SA,2)}, {s(P_WK,2)}, {s(P_WV,2)}
          s_cmp_eq_u32 {s(sCB)}, 0
          s_cselect_b64 {s(SA,2)}, {s(SA,2)}, {s(P_W1,2)}
          s_mov_b64 {s(SX,2)}, {s(P_X,2)}
          s_mov_b64 {s(SQ,2)}, {s(P_WQ,2)}""")
    early_stamp(1)
    if "nopre" not in OPT:
        A("s_mov_b64 exec, 0x7f")
        A.vmem(f"buffer_load_dword {a(126)}, {v(vT2)}, {s(SX,4)}, {s(sB1)} offen", "pre")
        A("s_mov_b64 exec, 15")
        A.vmem(f"buffer_load_dword {a(125)}, {v(102)}, {s(SQ,4)}, {s(sB4)} offen", "pre")
        A("s_mov_b64 exec, -1")
    for n in range(7):
        if n:
            A(f"s_add_u32 m0, m0, {s(sT5)}\ns_add_u32 {s(sT0)}, {s(sT0)}, {s(sT3)}")
        A.vmem(f"buffer_load_dwordx4 {v(103)}, {s(SA,4)}, {s(sT0)} offen lds", "WA")
    early_stamp(2)
    A(f"""s_lshl_b32 {s(sT0)}, {s(sTB)}, 6
          v_add_u32 {v(vT1)}, {s(sT0)}, {v(vT1)}
          v_mul_u32_u24 {v(vT2)}, 896, {v(vT1)}
          v_lshrrev_b32 {v(vT1)}, 1, {v(vT1)}
          v_xor_b32 {v(vT1)}, {v(vT1)}, {v(vLANE)}
          v_and_b32 {v(vT1)}, 7, {v(vT1)}
          v_lshl_add_u32 {v(vWQ)}, {v(vT1)}, 4, {v(vT2)}
          s_and_b32 {s(sTT)}, {s(sW8)}, 1
          s_lshr_b32 {s(sP)}, {s(sW)}, 1""")
    if PROFILE:
        A(f"s_mov_b32 {s(sTS)}, s98")
        stamps["n"] = 1
    srd(SW, P_WS, WS_SIZE)
    srd(SD, P_DBG, 256)
    A(f"""s_cmp_lg_u32 {s(sW8)}, 0
          s_cbranch_scc1 L_nz
          v_lshlrev_b32 {v(vT0)}, 2, {v(vLANE)}
          v_add_u32 {v(vT0)}, {LS}, {v(vT0)}
          v_mov_b32 {v(vT1)}, 0
          ds_write_b32 {v(vT0)}, {v(vT1)}
          s_waitcnt lgkmcnt(0)
          s_cmp_lg_u32 s2, 0
          s_cbranch_scc1 L_nz
          s_or_b32 {s(sN)}, {s(sN)}, 1
          v_mov_b32 {v(vT2)}, {s(sN)}
          v_mov_b32 {v(vT3)}, {s(sN+1)}
          s_mov_b64 exec, 1
          buffer_store_dwordx2 {v(vT2,2)}, {v(vT1)}, {s(SD,4)}, 0 offen sc1
          s_mov_b64 exec, -1""")
    A.label("L_nz")
    A(f"""s_lshl_b32 {s(sGT)}, {s(sTB)}, 1
          s_add_u32 {s(sGT)}, {s(sGT)}, {s(sTT)}
          s_mov_b32 {s(sHI)}, 0
          s_mov_b32 {s(sHI+1)}, -1
          s_getreg_b32 {s(sXC)}, hwreg(HW_REG_XCC_ID, 0, 4)
          s_mov_b32 {s(sLOC)}, 0""")
    A(f"""v_bfe_u32 {v(vT0)}, {v(vLANE)}, 2, 2
          v_lshlrev_b32 {v(vT0)}, 7, {v(vT0)}
          v_lshrrev_b32 {v(vT1)}, 5, {v(vLANE)}
          v_lshl_add_u32 {v(vTRN)}, {v(vT1)}, 10, {v(vT0)}
          v_lshl_add_u32 {v(vTRD)}, {v(vT1)}, 9, {v(vT0)}
          v_bfe_u32 {v(vT0)}, {v(vLANE)}, 4, 1
          v_and_b32 {v(vT2)}, 3, {v(vLANE)}
          v_lshlrev_b32 {v(vT2)}, 3, {v(vT2)}
          v_lshl_add_u32 {v(103)}, {v(vT0)}, 5, {v(vT2)}
          v_bfe_u32 {v(vT0)}, {v(vLANE)}, 3, 1
          v_lshlrev_b32 {v(102)}, 6, {v(vT0)}""")
    A(f"""v_and_b32 {v(vT3)}, 31, {v(vLANE)}
          s_lshl_b32 {s(sT0)}, {s(sTT)}, 5
          v_add_u32 {v(vT0)}, {s(sT0)}, {v(vT3)}
          v_bfe_u32 {v(vT2)}, {v(vT0)}, 1, 3
          v_lshlrev_b32 {v(vT0)}, 7, {v(vT0)}
          v_xor_b32 {v(vT2)}, {v(vT2)}, {v(vT1)}
          v_lshl_add_u32 {v(vXF)}, {v(vT2)}, 4, {v(vT0)}
          v_xor_b32 {v(vXF+1)}, 32, {v(vXF)}
          v_xor_b32 {v(vXF+2)}, 64, {v(vXF)}
          v_xor_b32 {v(vXF+3)}, 96, {v(vXF)}
          s_lshr_b32 {s(sT1)}, {s(sW8)}, 1
          s_lshl_b32 {s(sT0)}, {s(sT1)}, 5
          v_xor_b32 {v(108)}, {s(sT0)}, {v(vXF)}
          s_lshl_b32 {s(sT0)}, {s(sTT)}, 10
          s_add_u32 {s(sT0)}, {s(sT0)}, {L_STAT}
          v_lshl_add_u32 {v(110)}, {v(vT3)}, 3, {s(sT0)}
          s_lshl_b32 {s(sT0)}, {s(sT1)}, 8
          v_add_u32 {v(111)}, {s(sT0)}, {v(110)}
          v_mov_b32 {v(30)}, 0
          v_mov_b32 {v(31)}, 0
          s_mov_b32 {s(sT5)}, {ONES}""")
    for i in range(4):
        A(f"v_mov_b32 {v(96+i)}, {ONES}")
    A(f"""s_lshl_b32 {s(sT0)}, s2, 3
          s_add_u32 {s(sT0)}, {s(sT0)}, {s(sW8)}
          s_cmp_ge_u32 {s(sT0)}, {392 if OPT.get("tw", "23") == "23" else 4096}
          s_cselect_b64 {s(SA,2)}, {s(P_W3,2)}, {s(P_W2,2)}
          s_mov_b32 {s(SA+2)}, 401408
          s_cselect_b32 {s(SA+2)}, 1605632, {s(SA+2)}
          s_cselect_b32 {s(sT1)}, 392, 0
          s_sub_u32 {s(sT0)}, {s(sT0)}, {s(sT1)}
          s_lshl_b32 {s(sRG)}, {s(sT0)}, {10 if OPT.get("tw", "23") == "23" else 8}""")
    A(f"""s_lshl_b32 {s(sT0)}, {s(sP)}, 6
          v_xor_b32 {v(vT0)}, {v(103)}, {v(102)}
          v_xor_b32 {v(vT0)}, {s(sT0)}, {v(vT0)}
          v_add_u32 {v(vT0)}, {v(vT0)}, {v(vTRN)}
          v_lshrrev_b32 {v(vT1)}, 7, {v(vTRN)}
          v_mul_u32_u24 {v(vT1)}, 56, {v(vT1)}
          s_mul_i32 {s(sT0)}, {s(sP)}, 28672
          v_add3_u32 {v(vT1)}, {v(vT1)}, {v(103)}, {s(sT0)}
          s_cmp_eq_u32 {s(sCB)}, 0
          s_cselect_b64 vcc, -1, 0
          v_cndmask_b32 {v(vT0)}, {v(vT0)}, {v(vT1)}, vcc
          v_add_u32 {v(29)}, {LA}, {v(vT0)}""")
    early_stamp(3)
    barrier()
    for kb in range(7):
        dma(sT4, LX + kb * 8192, vWQ, SX, (None, "0"), "X", imm=kb * 128)
    touch("x")
    early_stamp(4)
    A.wait_vm("WA")
    barrier()
    early_stamp(5)
    A(f"s_cmp_ge_u32 {s(sW8)}, 4\ns_cbranch_scc1 L_att")
    return list(A.vm)


def touch(where):
    if OPT.get("tat", "p1") != where:
        return
    A(f"v_lshlrev_b32 {v(vT0)}, 7, {v(vLANE)}\ns_mov_b64 exec, {255 if OPT.get('tw', '23') == '23' else 3}")
    A.vmem(f"buffer_load_dword {a(127)}, {v(vT0)}, {s(SA,4)}, {s(sRG)} offen", "t")
    A("s_mov_b64 exec, -1")


def stat_part(between):
    for j in range(7):
        A.ds(f"ds_read_b128 {v(SXR[j],4)}, {v(108)} offset:{j*8192}", ("sx", j))
    between()
    for j in range(7):
        A.wait_lg(("sx", j))
        for i in range(4):
            r = SXR[j] + i
            A(f"v_dot2c_f32_bf16 {v(30)}, {s(sT5)}, {v(r)}\nv_dot2c_f32_bf16 {v(31)}, {v(r)}, {v(r)}")
    A("s_nop 2")
    halves(30, vT2)
    halves(31, vT3)
    A(f"v_add_f32 {v(30)}, {v(30)}, {v(vT2)}\nv_add_f32 {v(31)}, {v(31)}, {v(vT3)}")
    A.ds(f"ds_write_b64 {v(111)}, {v(30,2)}", "statw")
    A.drain_lg()


def barrier():
    A("s_barrier")


def stat_read():
    for q in range(4):
        A.ds(f"ds_read_b64 {v(112+2*q,2)}, {v(110)} offset:{q*256}", "stat")


def stat_fin(vM, vVar):
    A.wait_lg("stat")
    for op in stat_fin_ops(vM, vVar):
        A(op)


def stat_fin_ops(vM, vVar):
    return (f"""v_add_f32 {v(112)}, {v(112)}, {v(114)}
          v_add_f32 {v(113)}, {v(113)}, {v(115)}
          v_add_f32 {v(116)}, {v(116)}, {v(118)}
          v_add_f32 {v(117)}, {v(117)}, {v(119)}
          v_add_f32 {v(112)}, {v(112)}, {v(116)}
          v_add_f32 {v(113)}, {v(113)}, {v(117)}
          v_mul_f32 {v(vM)}, {f32(1/448)}, {v(112)}
          v_mul_f32 {v(112)}, {v(vM)}, {v(vM)}
          v_mul_f32 {v(113)}, {f32(1/448)}, {v(113)}
          v_sub_f32 {v(113)}, {v(113)}, {v(112)}
          v_max_f32 {v(vVar)}, 0, {v(113)}""").split("\n")


def own_slot(base):
    return (f"s_lshl_b32 {s(sT0)}, {s(sTB)}, 3\ns_add_u32 {s(sT0)}, {s(sT0)}, {s(sCB)}\n"
            f"s_lshl_b32 {s(sT0)}, {s(sT0)}, 7\ns_add_u32 {s(sT0)}, {s(sT0)}, {base}")


late = []


def mlp(vm_entry):
    A.vm = list(vm_entry)
    vXD, vX1P, vW, vW3, vM, vR, vWA = 8, 16, 24, 26, 27, 28, 29
    vRA, vRB = [2, 3], [25, 31]
    acc, cs, ring, ones = 32, 48, 64, 96
    xnear = "xfar" not in OPT
    A("s_setprio " + OPT.get("prio", "2"))
    vXA = 124
    setup = []
    for r, p, n in ((S2, P_W2, 401408), (SQ, P_W3, 1605632), (S4, P_W4, 1605632), (SO, P_WO, 401408), (SOUT, P_OUT, 1835008)):
        setup += [f"s_mov_b64 {s(r,2)}, {s(p,2)}", f"s_mov_b32 {s(r+2)}, {n}", f"s_mov_b32 {s(r+3)}, 0x20000"]
    setup += f"""s_max_u32 {s(sT1)}, {s(sCB)}, 1
          s_sub_u32 {s(sT1)}, {s(sT1)}, 1
          s_lshl_b32 {s(sT4)}, {s(sT1)}, 1
          s_add_u32 {s(sT4)}, {s(sT4)}, {s(sP)}
          s_mul_i32 {s(sPA)}, {s(sW)}, 14336
          s_mul_i32 {s(sPB)}, {s(sW)}, 11264
          s_add_u32 {s(sPB)}, {s(sPB)}, {LQ}
          s_mul_i32 {s(sB1)}, {s(sW)}, {112*896}
          s_mul_i32 {s(sB4)}, {s(sW)}, {448*896}
          s_add_u32 {s(sR)}, {s(sTB)}, {s(sCB)}
          s_and_b32 {s(sR)}, {s(sR)}, 3
          v_mul_u32_u24 {v(vT0)}, 896, {v(vC8)}
          s_lshl_b32 {s(sT0)}, {s(sT1)}, 7
          v_add3_u32 {v(vW)}, {v(vT0)}, {v(vC7)}, {s(sT0)}
          v_mul_u32_u24 {v(vT0)}, 3584, {v(vC8)}
          s_lshl_b32 {s(sT0)}, {s(sT1)}, 9
          s_lshl_b32 {s(sT2)}, {s(sW)}, 7
          s_add_u32 {s(sT0)}, {s(sT0)}, {s(sT2)}
          v_add3_u32 {v(vW3)}, {v(vT0)}, {v(vC7)}, {s(sT0)}
          s_lshl_b32 {s(sT0)}, {s(sP)}, 6
          v_xor_b32 {v(103)}, {v(103)}, {v(102)}
          v_xor_b32 {v(102)}, {s(sT0)}, {v(103)}
          s_lshl_b32 {s(sT3)}, {s(sT1)}, 13
          v_lshrrev_b32 {v(vT1)}, 5, {v(vLANE)}
          v_lshlrev_b32 {v(vT2)}, 4, {v(vT1)}
          v_xor_b32 {v(vXA)}, {v(vXF)}, {v(vT2)}
          v_xor_b32 {v(vXA)}, {s(sT0)}, {v(vXA)}
          v_lshl_add_u32 {v(vXA)}, {v(vT1)}, 3, {v(vXA)}
          v_add_u32 {v(vXA)}, {s(sT3)}, {v(vXA)}
          v_xor_b32 {v(vXA+1)}, 16, {v(vXA)}
          v_xor_b32 {v(vXA+2)}, 32, {v(vXA)}
          v_xor_b32 {v(vXA+3)}, 48, {v(vXA)}""".split("\n")

    def colsums(kstride, second):
        def step(ks):
            if ks < 28:
                tr(("a", 4 * ks), vWA, ks * kstride, second, ("w", ks))
            if ks >= 4:
                A.wait_lg(("w", ks - 4))
                mfma(v(cs, 16), a(4 * (ks - 4), 4), v(ones, 4), 0 if ks == 4 else None)
        weave(A, [lambda ks=ks: step(ks) for ks in range(32)], [lambda t=t: A(t) for t in setup])

    A(f"s_cmp_eq_u32 {s(sCB)}, 0\ns_cbranch_scc1 L_cskv")
    colsums(2048, 512)
    A.label("L_csdone")
    late.append(lambda: (A.label("L_cskv"), colsums(896, 224), A("s_branch L_csdone")))
    early_stamp(6)
    A.wait_vm("X")
    barrier()
    early_dump()
    stamp()
    NX = 6

    def xr(ks):
        A.ds(f"ds_read_b128 {v(ring + 4 * (ks % NX), 4)}, {v(vXF + (ks & 3))} offset:{(ks >> 2) * 8192}", ("x", ks))

    def first():
        for ks in range(NX - 1):
            xr(ks)
        for g in range(4):
            A.ds(f"ds_read_b64 {v(vXD+2*g,2)}, {v(vXA+g)}", "xd")
    stat_part(first)
    barrier()
    vC1g, vC2g, vRI, vR2 = 120, 121, 122, 123
    ne2 = int(OPT.get("ne2", 0))

    def w2dma(j, hs=(0, 1)):
        base, off = (sT3, LA + 24576 + j * 2048) if j < ne2 else (sPA, j * 2048)
        image(base, off, vW, S2, lambda e: f"s_add_u32 {s(sT0)}, {s(sB1)}, {j * 16 * 896 + e}", 896, "W2", hs)
    A(f"s_lshl_b32 {s(sT3)}, {s(sW)}, 13")
    fin = stat_fin_ops(vM, vR) + f"""v_add_f32 {v(vT0)}, {f32(EPS)}, {v(vR)}
          v_rsq_f32 {v(vT1)}, {v(vT0)}
          v_mov_b32 {v(vT3)}, {f32(EPS)}
          v_mul_f32 {v(vT2)}, {v(vT1)}, {v(vT1)}
          v_fma_f32 {v(vT2)}, {v(vT2)}, {v(vR)}, {v(vT3)}
          v_rsq_f32 {v(vT2)}, {v(vT2)}
          v_mov_b32 {v(vR)}, {v(vT1)}
          v_mul_f32 {v(vR2)}, {v(vT1)}, {v(vT2)}
          v_rcp_f32 {v(vRI)}, {v(vR2)}
          v_mul_f32 {v(vC1g)}, {f32(GC1)}, {v(vR2)}
          v_mul_f32 {v(vC2g)}, {v(vR2)}, {v(vR2)}
          v_mul_f32 {v(vC2g)}, {v(vC2g)}, {v(vR2)}
          v_mul_f32 {v(vC2g)}, {f32(GC2)}, {v(vC2g)}""".split("\n")
    fin += [f"v_mul_f32 {v(cs+i)}, {v(cs+i)}, {v(vM)}" for i in range(16)]
    for ks in range(28):
        if ks + NX - 1 < 28:
            xr(ks + NX - 1)
        if ks == 0:
            stat_read()
            nonce_issue(30)
        A.wait_lg(("x", ks))
        mfma(v(acc, 16), a(4 * ks, 4), v(ring + 4 * (ks % NX), 4), 0 if ks == 0 else None)
        if ks == 1:
            touch("p1")
        if 3 <= ks < 3 + 2 * ne2:
            skip = A.newlabel("w2")
            A(f"s_cmp_eq_u32 {s(sCB)}, 0\ns_cbranch_scc1 {skip}")
            w2dma((ks - 3) >> 1, ((ks - 3) & 1,))
            A.label(skip)
        if ks == 5:
            A.wait_lg("stat")
        if ks >= 5:
            for _ in range(3):
                if fin:
                    A(fin.pop(0))
    assert not fin
    arrive(C_PA)
    vm_kv = [t for t in A.vm if t != "W2"]
    A(f"s_cmp_eq_u32 {s(sCB)}, 0\ns_cbranch_scc1 L_kv\ns_nop 4")
    for i in range(16):
        A(f"v_sub_f32 {v(acc+i)}, {v(acc+i)}, {v(cs+i)}")
    stamp()
    pk = 64
    vHS = 74
    for i in range(8):
        for op in gelu_ops(acc + 2 * i, 72, pk + i, vC1g, vC2g, vRI):
            A(op)
        if i == 2:
            A(f"""v_and_b32 {v(vT0)}, 31, {v(vLANE)}
                  s_lshl_b32 {s(sT0)}, {s(sGT)}, 5
                  v_add_u32 {v(vT0)}, {s(sT0)}, {v(vT0)}
                  v_lshrrev_b32 {v(vT1)}, 5, {v(vLANE)}
                  v_lshlrev_b32 {v(vT1)}, 15, {v(vT1)}
                  v_lshl_add_u32 {v(vHS)}, {v(vT0)}, 4, {v(vT1)}
                  s_lshl_b32 {s(sT0)}, {s(sT4)}, 17
                  s_add_u32 {s(sT0)}, {s(sT0)}, {HB}
                  s_add_u32 {s(sT1)}, {s(sT0)}, 0x10000""")
        if i in (3, 7):
            A.vmem(f"buffer_store_dwordx4 {v(pk+(i&4),4)}, {v(vHS)}, {s(SW,4)}, {s(sT0 if i == 3 else sT1)} offen sc1", "hst")
    await_cnt(C_PA, 8)
    for j in range(ne2, 7):
        w2dma(j)
    nonce_take(30)
    signal(N_H, own_slot(FH), "hst")
    stamp()
    A(f"""s_add_u32 {s(sT0)}, {s(sT3)}, {LA + 24576}
          v_add3_u32 {v(32)}, {v(vTRD)}, {v(102)}, {s(sT0)}
          v_xor_b32 {v(33)}, 64, {v(32)}
          v_add_u32 {v(vT0)}, {s(sPA)}, {v(vTRD)}
          v_add_u32 {v(vT1)}, {s(sPB)}, {v(vTRD)}
          v_add_u32 {v(vRA[0])}, {v(vT0)}, {v(102)}
          v_xor_b32 {v(vRA[1])}, 64, {v(vRA[0])}
          v_add_u32 {v(vRB[0])}, {v(vT1)}, {v(102)}
          v_xor_b32 {v(vRB[1])}, 64, {v(vRB[0])}""")
    A.wait_vm("W2")
    for j in range(7):
        for b in range(2):
            tr(("a", 8 * j + 4 * b), 32 + b if j < ne2 else vRA[b], j * 2048, 1024, "w2")
    vH = 29
    A(f"""s_add_u32 {s(sT0)}, {s(sP)}, 1
          s_sub_u32 {s(sT1)}, 0, {s(sT0)}
          s_cmp_eq_u32 {s(sTT)}, 0
          s_cselect_b32 {s(sT0)}, {s(sT1)}, {s(sT0)}
          s_lshl_b32 {s(sT1)}, {s(sGT)}, 5
          s_add_u32 {s(sT1)}, {s(sT1)}, {s(sT0)}
          s_xor_b32 {s(sT2)}, {s(sGT)}, 1
          s_lshl_b32 {s(sT2)}, {s(sT2)}, 5
          s_add_u32 {s(sT2)}, {s(sT2)}, {s(sT0)}
          v_and_b32 {v(vT0)}, 31, {v(vLANE)}
          v_lshrrev_b32 {v(vT1)}, 5, {v(vLANE)}
          v_lshlrev_b32 {v(vT1)}, 15, {v(vT1)}
          v_mov_b32 {v(vT3)}, {OOB}""")
    for sl, sr in ((0, sT1), (1, sT2)):
        A(f"""v_add_u32 {v(vT2)}, {s(sr)}, {v(vT0)}
              v_cmp_gt_u32 vcc, 2048, {v(vT2)}
              v_lshl_add_u32 {v(vT2)}, {v(vT2)}, 4, {v(vT1)}
              s_nop 0
              v_cndmask_b32 {v(vH+sl)}, {v(vT3)}, {v(vT2)}, vcc""")

    def rot7(reg, u, scale, base):
        if u == 0:
            A(f"s_mul_i32 {s(reg)}, {s(sR)}, {2 * scale}")
        else:
            A(f"""s_add_u32 {s(reg)}, {s(reg)}, {scale}
                  s_cmp_ge_u32 {s(reg)}, {7 * scale}
                  s_cselect_b32 {s(sT0)}, {7 * scale}, 0
                  s_sub_u32 {s(reg)}, {s(reg)}, {s(sT0)}""")

    def sdma(n, hs=(0, 1)):
        base, off = ring_addr(n % NRING)
        if n < 28:
            if n % 7 == 0 and 0 in hs:
                A(f"""s_add_u32 {s(sRG)}, {s(sR)}, {n // 7}
                      s_and_b32 {s(sRG)}, {s(sRG)}, 3
                      s_mul_i32 {s(sRG)}, {s(sRG)}, {7 * 16 * 3584}""")
            image(base, off, vW3, SQ, lambda e: f"s_add_u32 {s(sT0)}, {s(sRG)}, {(n % 7) * 16 * 3584 + e}", 3584, ("S", n), hs)
        elif n < 56:
            p = n - 28
            if p % 2 == 0 and 0 in hs:
                rot7(sRG, (p % 14) // 2, 64 * 896, None)
                A(f"s_add_u32 {s(sT3)}, {s(sRG)}, {s(sB4)}")
            image(base, off, vW, S4, lambda e: f"s_add_u32 {s(sT0)}, {s(sT3)}, {(2 * (p // 14) + p % 2) * 16 * 896 + e}", 896, ("S", n), hs)
        else:
            k = n - 56
            image(base, off, vW, SO, lambda e: f"s_add_u32 {s(sT0)}, {s(sB1)}, {((k >> 1) * 28 + (k & 1) * 16) * 896 + e}", 896, ("S", n), hs)

    def sreg(n, b):
        return 8 * (n % 16) + 4 * b

    def sread(n, bs=(0, 1)):
        base, off = ring_addr(n % NRING)
        if n == 28 and 0 in bs:
            flip()
        A.wait_vm(("S", n))
        for b in bs:
            tr(("a", sreg(n, b)), (vRA if base == sPA else vRB)[b], off, 1024, ("s", n))

    def refill(n, hs=(0, 1)):
        if n < 64:
            A.wait_lg(("s", n - NRING))
            sdma(n, hs)

    def sread_p(n):
        return [lambda: sread(n, (0,)), lambda: sread(n, (1,))]

    def refill_p(n):
        return [lambda: refill(n, (0,)), lambda: refill(n, (1,))] if n < 64 else []

    def flip():
        A(f"s_lshl_b32 {s(sT0)}, {s(sP)}, 6")
        for r in vRA + vRB:
            A(f"v_xor_b32 {v(r)}, {s(sT0)}, {v(r)}")

    flip()
    early = int(OPT.get("early", 3))
    mid = int(OPT.get("mid", 6))
    A.drain_lg()
    arrive(C_W2)
    for n in range(early):
        sdma(n)
    cut("h")

    def setup_h():
        A(f"""v_lshrrev_b32 {v(vT0)}, 3, {v(vLANE)}
              s_sub_u32 {s(sT0)}, {s(sTB)}, 1
              v_add_u32 {v(vT0)}, {s(sT0)}, {v(vT0)}
              v_cmp_le_u32 vcc, 32, {v(vT0)}
              s_lshl_b32 {s(sT0)}, {s(sT0)}, 10
              s_add_u32 {s(sT0)}, {s(sT0)}, {FH}
              v_lshlrev_b32 {v(vT1)}, 7, {v(vLANE)}
              v_add_u32 {v(vT1)}, {s(sT0)}, {v(vT1)}
              s_mov_b32 {s(sINV)}, 0xff010101
              s_mov_b32 {s(sINV+1)}, -1
              s_or_b64 {s(sINV,2)}, {s(sINV,2)}, vcc""")
        lanes_to(vT1)

    gate(G_H, setup_h, 32, payload=lambda: (A(f"s_mov_b32 {s(sT2)}, 0xfe00"), note_die(34)))
    read_mode()
    if "hold" in OPT:
        await_cnt(G_K, 1)
    stamp()
    hf = 32
    A(f"s_mul_i32 {s(sT5)}, {s(sW)}, {7 << 16}\ns_add_u32 {s(sT5)}, {s(sT5)}, {HB}")
    for j in range(7):
        if j:
            A(f"s_add_u32 {s(sT5)}, {s(sT5)}, 0x10000")
        for sl in range(2):
            A.vmem(f"buffer_load_dwordx4 {v(hf + 8*j + 4*sl, 4)}, {v(vH+sl)}, {s(SW,4)}, {s(sT5)} offen sc1", ("h", j))
    await_cnt(C_QD)
    await_cnt(C_W2)
    acc0, vRW = 104, 120
    accs = [v(acc0, 16), a(64, 16), a(80, 16), a(96, 16)]
    A(f"s_add_u32 {s(sT0)}, {s(sPA)}, {LA}\nv_add_u32 {v(vRW)}, {s(sT0)}, {v(vL16)}\nv_mul_f32 {v(vM)}, {v(vM)}, {v(vR)}")
    for j in range(7):
        A.wait_vm(("h", j))
        for sl in (1, 2, 3, 0):
            mfma(accs[sl], a(8 * j + 4 * (sl >> 1), 4), v(hf + 8 * j + 4 * (sl & 1), 4), 0 if j == 0 else None)
    sdma(early)
    A("s_nop 3")
    offs1 = [(0, i * 1024) for i in range(12)]
    reduce_out([("a", 64), ("a", 80), ("a", 96)], C_R1, [vRW], offs1, [lambda n=n: sdma(n) for n in range(early + 1, early + mid)])

    def mk1(sl):
        A(f"""s_xor_b32 {s(sT0)}, {s(sW)}, {sl}
              s_mul_i32 {s(sT0)}, {s(sT0)}, 14336
              s_add_u32 {s(sT0)}, {s(sT0)}, {LA}
              v_add_u32 {v(vRW+sl)}, {s(sT0)}, {v(vL16)}""")
        return [vRW + sl]
    for i in range(8):
        A(f"""v_lshlrev_b32 {v(88)}, 16, {v(vXD+i)}
              v_and_b32 {v(89)}, 0xffff0000, {v(vXD+i)}
              v_fma_f32 {v(88)}, {v(88)}, {v(vR)}, -{v(vM)}
              v_fma_f32 {v(89)}, {v(89)}, {v(vR)}, -{v(vM)}
              v_add_f32 {v(acc0+2*i)}, {v(acc0+2*i)}, {v(88)}
              v_add_f32 {v(acc0+2*i+1)}, {v(acc0+2*i+1)}, {v(89)}""")
    reduce_in(acc0, 32, C_R1, mk1, offs1)
    for i in range(8):
        A(f"v_cvt_pk_bf16_f32 {v(vX1P+i)}, {v(acc0+2*i)}, {v(acc0+2*i+1)}")
    A(f"""s_mul_i32 {s(sT0)}, {s(sGT)}, 14
          s_add_u32 {s(sT0)}, {s(sT0)}, {s(sT4)}
          s_lshl_b32 {s(sT1)}, {s(sT0)}, 11
          s_add_u32 {s(sT1)}, {s(sT1)}, {X1}
          s_lshl_b32 {s(sT0)}, {s(sT0)}, 8
          s_add_u32 {s(sT2)}, {s(sT0)}, {ST}""")
    hstore([f"buffer_store_dwordx4 {v(vX1P,4)}, {v(vL16)}, {s(SW,4)}, {s(sT1)} offen",
            f"buffer_store_dwordx4 {v(vX1P+4,4)}, {v(vL16)}, {s(SW,4)}, {s(sT1)} offen offset:1024"], "xst", xnear)
    A(f"""v_add_f32 {v(32)}, {v(acc0)}, {v(acc0+1)}
          v_mul_f32 {v(33)}, {v(acc0)}, {v(acc0)}
          v_fma_f32 {v(33)}, {v(acc0+1)}, {v(acc0+1)}, {v(33)}""")
    for i in range(2, 16):
        A(f"v_add_f32 {v(32)}, {v(32)}, {v(acc0+i)}\nv_fma_f32 {v(33)}, {v(acc0+i)}, {v(acc0+i)}, {v(33)}")
    halves(32, 34)
    halves(33, 35)
    A(f"""v_add_f32 {v(32)}, {v(32)}, {v(34)}
          v_add_f32 {v(33)}, {v(33)}, {v(35)}
          v_lshlrev_b32 {v(34)}, 3, {v(vLANE)}
          s_not_b64 exec, {s(sHI,2)}""")
    hstore([f"buffer_store_dwordx2 {v(32,2)}, {v(34)}, {s(SW,4)}, {s(sT2)} offen"], "xst", xnear)
    A("s_mov_b64 exec, -1")
    stamp()
    cut("p2")
    for n in range(early + mid, NRING):
        sdma(n)
    A(f"""s_mul_i32 {s(sK)}, {s(sTB)}, {2 * 112}
          s_lshl_b32 {s(sT0)}, {s(sCB)}, 2
          s_add_u32 {s(sT0)}, {s(sT0)}, {s(sW)}
          s_sub_u32 {s(sT0)}, {s(sT0)}, 4
          s_lshl_b32 {s(sT0)}, {s(sT0)}, 2
          s_add_u32 {s(sK)}, {s(sK)}, {s(sT0)}
          s_lshl_b32 {s(sK)}, {s(sK)}, 10
          s_add_u32 {s(sK)}, {s(sK)}, {HH}""")
    npre = int(OPT.get("npre", 9))
    xsig = int(OPT.get("xsig", 4))
    for n in range(npre + 1):
        if n < npre:
            sread(n)
        if n == xsig:
            signal(N_X, own_slot(FX), "xst", near=xnear)
        if n >= 1:
            refill(n - 1 + NRING)
    stamp()
    cut("w3")

    def setup_x():
        A(f"""s_lshl_b32 {s(sT0)}, {s(sTB)}, 10
              s_add_u32 {s(sT0)}, {s(sT0)}, {FX}
              s_lshl_b32 {s(sT1)}, {s(sCB)}, 9
              s_add_u32 {s(sT1)}, {s(sT1)}, {FC - 512 - 1024}
              v_lshlrev_b32 {v(vT0)}, 7, {v(vLANE)}
              v_add_u32 {v(vT1)}, {s(sT0)}, {v(vT0)}
              v_add_u32 {v(vT0)}, {s(sT1)}, {v(vT0)}
              s_mov_b64 vcc, 0xff
              v_cndmask_b32 {v(vT1)}, {v(vT0)}, {v(vT1)}, vcc
              s_mov_b32 {s(sINV)}, 0xfffff001
              s_mov_b32 {s(sINV+1)}, -1""")
        lanes_to(vT1)
    gate(G_X, setup_x, 32)
    stamp()
    A(f"""s_mul_i32 {s(sT1)}, {s(sTB)}, {56 * 1024}
          s_add_u32 {s(sT1)}, {s(sT1)}, {X1}
          s_lshl_b32 {s(sT3)}, {s(sW)}, 10
          s_mul_i32 {s(sT2)}, {s(sR)}, 7168
          s_add_u32 {s(sT2)}, {s(sT2)}, {s(sT3)}
          s_add_u32 {s(sT3)}, {s(sT3)}, {LA}""")
    for i in range(7):
        if i:
            A(f"""s_add_u32 {s(sT2)}, {s(sT2)}, 4096
                  s_sub_u32 {s(sT5)}, {s(sT2)}, 28672
                  s_cmp_ge_u32 {s(sT2)}, 28672
                  s_cselect_b32 {s(sT2)}, {s(sT5)}, {s(sT2)}""")
        A(f"s_add_u32 {s(sT5)}, {s(sT1)}, {s(sT2)}")
        for tt in range(2):
            dma(sT3, tt * 28672 + i * 4096, vL16, SW, (f"s_add_u32 {s(sT0)}, {s(sT5)}, {tt * 28672}", s(sT0)), ("x1", min(i // 2, 2)), sc=" sc1")
    vB, stt, cst, bring = 27, 32, 28, 40
    A(f"""v_and_b32 {v(vT0)}, 31, {v(vLANE)}
          v_lshrrev_b32 {v(vT1)}, 5, {v(vLANE)}
          v_mul_u32_u24 {v(vT1)}, {14 * 256}, {v(vT1)}
          v_lshl_add_u32 {v(vT2)}, {v(vT0)}, 3, {v(vT1)}
          s_mul_i32 {s(sT1)}, {s(sTB)}, {28 * 256}
          s_lshl_b32 {s(sT2)}, {s(sW)}, 8
          s_add_u32 {s(sT1)}, {s(sT1)}, {s(sT2)}
          s_add_u32 {s(sT1)}, {s(sT1)}, {ST}
          s_cmp_lt_u32 {s(sW)}, 2
          s_cselect_b32 {s(sT2)}, {s(sT1)}, {OOB}
          v_add_u32 {v(vB)}, {LA}, {v(vL16)}""")
    for i in range(4):
        A.vmem(f"buffer_load_dwordx2 {v(stt+2*i,2)}, {v(vT2)}, {s(SW,4)}, {s(sT1 if i < 3 else sT2)} offen offset:{i*1024} sc1", "st")
    A(f"""s_lshl_b32 {s(sT1)}, {s(sCB)}, 2
          s_add_u32 {s(sT1)}, {s(sT1)}, {s(sW)}
          s_lshl_b32 {s(sT1)}, {s(sT1)}, 9
          s_add_u32 {s(sT1)}, {s(sT1)}, {CS - 2048}
          v_lshlrev_b32 {v(vT3)}, 3, {v(vLANE)}""")
    A.vmem(f"buffer_load_dwordx2 {v(cst,2)}, {v(vT3)}, {s(SW,4)}, {s(sT1)} offen sc1", "cs")
    A.wait_vm(("x1", 0))
    arrive(C_XA)
    await_cnt(C_XA)
    acc4 = [64, 80, 96, 112]

    def bread(ks):
        for tt in range(2):
            A.ds(f"ds_read_b128 {v(bring + 8 * (ks % 3) + 4 * tt, 4)}, {v(vB)} offset:{(tt * 28 + ks) * 1024}", ("b", ks))

    lag = int(OPT.get("lag", 7))
    plan, rstep = {}, {}
    nxt = npre
    for ks in range(28):
        while nxt < 44 and len(plan.get(ks, [])) < 2:
            ready = nxt - 16 < ks and (nxt - NRING < npre or rstep[nxt - NRING] + 1 + lag <= ks)
            if not (ready or (nxt < 28 and nxt - 2 <= ks)):
                break
            plan.setdefault(ks, []).append(nxt)
            rstep[nxt] = ks
            nxt += 1
    assert nxt >= 28 and all(n - 16 < ks and (n >= 28 or n >= ks + 1) for ks in plan for n in plan[ks]), plan
    pend = []
    if "p4" in OPT:
        stamp()
    bread(0)
    bread(1)
    for ks in range(28):
        if ks == 2:
            A.wait_vm(("x1", 1))
            arrive(C_XA)
        if ks == 5:
            await_cnt(C_XA, 8)
        if ks == 8:
            A.wait_vm(["cs", "st", ("x1", 2)])
            A(f"""v_add_f32 {v(stt)}, {v(stt)}, {v(stt+2)}
                  v_add_f32 {v(stt+1)}, {v(stt+1)}, {v(stt+3)}
                  v_add_f32 {v(stt+4)}, {v(stt+4)}, {v(stt+6)}
                  v_add_f32 {v(stt+5)}, {v(stt+5)}, {v(stt+7)}
                  s_lshl_b32 {s(sT0)}, {s(sW)}, 9
                  s_add_u32 {s(sT0)}, {s(sT0)}, {L_STAT}
                  v_add_f32 {v(stt)}, {v(stt)}, {v(stt+4)}
                  v_add_f32 {v(stt+1)}, {v(stt+1)}, {v(stt+5)}
                  v_lshl_add_u32 {v(vT2)}, {v(vLANE)}, 3, {s(sT0)}""")
            A.ds(f"ds_write_b64 {v(vT2)}, {v(stt,2)}", "sw")
            arrive(C_XB)
        if ks == 13:
            await_cnt(C_XB)
            A(f"v_lshlrev_b32 {v(vT2)}, 3, {v(vLANE)}\nv_add_u32 {v(vT2)}, {L_STAT}, {v(vT2)}")
            for q in range(4):
                A.ds(f"ds_read_b64 {v(stt+2*q,2)}, {v(vT2)} offset:{q*512}", "sr")
        A.wait_lg([("b", ks), ("s", ks)])
        acts = [lambda: bread(ks + 2)] if ks + 2 < 28 else []
        rd = [f for n in plan.get(ks, []) for f in sread_p(n)]
        rf = [f for n in pend for f in refill_p(n + NRING)]
        while rd or rf:
            acts += rf[:1] + rd[:1]
            rf, rd = rf[1:], rd[1:]
        pend = plan.get(ks, [])
        gaps([lambda t=t: mfma(v(acc4[t], 16), a(sreg(ks, t >> 1), 4), v(bring + 8 * (ks % 3) + 4 * (t & 1), 4), 0 if ks == 0 else None)
              for t in range(4)], acts)
        if "p4" in OPT and ks in (3, 6, 12, 15, 21):
            stamp()
        if ks == 16:
            A.wait_lg("sr")
            A(f"""v_add_f32 {v(stt)}, {v(stt)}, {v(stt+2)}
                  v_add_f32 {v(stt+1)}, {v(stt+1)}, {v(stt+3)}
                  v_add_f32 {v(stt+4)}, {v(stt+4)}, {v(stt+6)}
                  v_add_f32 {v(stt+5)}, {v(stt+5)}, {v(stt+7)}
                  v_add_f32 {v(stt)}, {v(stt)}, {v(stt+4)}
                  v_add_f32 {v(stt+1)}, {v(stt+1)}, {v(stt+5)}
                  v_add_f32 {v(cst)}, {v(cst)}, {v(cst+1)}""")
        if ks == 17:
            A(f"""v_mul_f32 {v(stt)}, {f32(-1/448)}, {v(stt)}
                  v_mul_f32 {v(stt+1)}, {f32(1/448)}, {v(stt+1)}
                  v_mul_f32 {v(stt+2)}, {v(stt)}, {v(stt)}
                  v_sub_f32 {v(stt+1)}, {v(stt+1)}, {v(stt+2)}
                  v_max_f32 {v(stt+1)}, 0, {v(stt+1)}
                  v_add_f32 {v(stt+1)}, {f32(EPS)}, {v(stt+1)}""")
        if ks == 18:
            halves(stt, stt + 2)
            halves(stt + 1, stt + 3)
            halves(cst, cst + 1)
    arrive(C_P4)
    vAE, vBE, gt, gpk = 40, 48, 56, 40
    for nt in range(2):
        c = cst + nt
        A(f"""v_cvt_pk_bf16_f32 {v(vT0)}, {v(c)}, {v(c)}
              v_and_b32 {v(vT1)}, 0xffff0000, {v(vT0)}
              v_sub_f32 {v(vT1)}, {v(c)}, {v(vT1)}
              v_cvt_pk_bf16_f32 {v(vAE+4*nt)}, {v(c)}, {v(vT1)}
              v_and_b32 {v(vAE+4*nt+1)}, 0xffff, {v(vT0)}
              v_mov_b32 {v(vAE+4*nt+2)}, 0
              v_mov_b32 {v(vAE+4*nt+3)}, 0""")
    for tt in range(2):
        m, b = stt + 2 * tt, vBE + 4 * tt
        A(f"""v_cvt_pk_bf16_f32 {v(vT0)}, {v(m)}, {v(m)}
              v_and_b32 {v(vT1)}, 0xffff0000, {v(vT0)}
              v_sub_f32 {v(vT1)}, {v(m)}, {v(vT1)}
              v_cvt_pk_bf16_f32 {v(vT1)}, {v(vT1)}, 0
              v_cndmask_b32 {v(b)}, {v(vT0)}, 0, {s(sHI,2)}
              v_cndmask_b32 {v(b+1)}, {v(vT1)}, 0, {s(sHI,2)}
              v_mov_b32 {v(b+2)}, 0
              v_mov_b32 {v(b+3)}, 0""")
    A("s_nop 0")
    for t in range(4):
        mfma(v(acc4[t], 16), v(vAE + 4 * (t >> 1), 4), v(vBE + 4 * (t & 1), 4))
    kk = [60, 36]
    for tt in range(2):
        e, k = stt + 2 * tt + 1, kk[tt]
        A(f"""v_rsq_f32 {v(vT0)}, {v(e)}
              s_nop 0
              v_mul_f32 {v(k+2)}, {v(e)}, {v(vT0)}
              v_mul_f32 {v(k)}, {f32(GC1)}, {v(vT0)}
              v_mul_f32 {v(k+1)}, {v(vT0)}, {v(vT0)}
              v_mul_f32 {v(k+1)}, {v(k+1)}, {v(vT0)}
              v_mul_f32 {v(k+1)}, {f32(GC2)}, {v(k+1)}""")
    stamp()
    ops = []
    for t in range(4):
        tt, b = t & 1, t >> 1
        for i in range(8):
            def pair(i=i, t=t, tt=tt):
                for op in gelu_ops(acc4[t] + 2 * i, gt, gpk + 8 * (t & 1) + i, kk[tt], kk[tt] + 1, kk[tt] + 2):
                    A(op)
            ops.append(pair)
            if i in (3, 7):
                def st(c=i >> 2, t=t, tt=tt, b=b):
                    A(f"s_add_u32 {s(sT0)}, {s(sK)}, {(tt * 112 + b * 2) * 1024}")
                    hstore([f"buffer_store_dwordx4 {v(gpk+8*(t&1)+4*c,4)}, {v(vL16)}, {s(SW,4)}, {s(sT0)} offen offset:{c*1024}"], ("Hst", b))
                ops.append(st)
        if t == 2:
            ops.append(lambda: signal(N_G, own_slot(FG), ("Hst", 0), near=True))
    fill = [f for n in pend for f in refill_p(n + NRING)]
    for n in range(nxt, 44):
        fill.append(lambda n=n: sread(n))
        if n > nxt:
            fill += refill_p(n - 1 + NRING)
    weave(A, ops, fill)
    if nxt < 44:
        refill(43 + NRING)
    vHH = 26
    A(f"""s_mul_i32 {s(sT0)}, {s(sGT)}, 4
          s_add_u32 {s(sT0)}, {s(sT0)}, {s(sW)}
          s_mul_i32 {s(sT0)}, {s(sT0)}, {28 * 1024}
          v_add_u32 {v(vHH)}, {s(sT0)}, {v(vL16)}
          s_xor_b32 {s(sT0)}, {s(sGT)}, 1
          s_mul_i32 {s(sT0)}, {s(sT0)}, 4
          s_add_u32 {s(sT0)}, {s(sT0)}, {s(sW)}
          s_mul_i32 {s(sT0)}, {s(sT0)}, {28 * 1024}
          v_add_u32 {v(vHH+1)}, {s(sT0)}, {v(vL16)}""")
    acc6 = [64, 80, 96, 112]
    for i in range(8):
        A(f"v_lshlrev_b32 {v(64+2*i)}, 16, {v(vX1P+i)}\nv_and_b32 {v(65+2*i)}, 0xffff0000, {v(vX1P+i)}")
    stamp()
    cut("w4")

    def setup_tb(base, inv):
        def f():
            A(f"""s_lshl_b32 {s(sT0)}, {s(sTB)}, 10
                  s_add_u32 {s(sT0)}, {s(sT0)}, {base}
                  v_lshlrev_b32 {v(vT1)}, 7, {v(vLANE)}
                  v_add_u32 {v(vT1)}, {s(sT0)}, {v(vT1)}
                  s_mov_b32 {s(sINV)}, {inv}
                  s_mov_b32 {s(sINV+1)}, -1""")
            lanes_to(vT1)
        return f
    peek_issue(setup_tb(FG, 0xffffff01), 34, 36)
    vO, vOUT = 28, 30
    A(f"""s_lshl_b32 {s(sT0)}, {s(sGT)}, 2
          s_add_u32 {s(sT0)}, {s(sT0)}, {s(sW)}
          s_lshl_b32 {s(sT0)}, {s(sT0)}, 13
          v_add_u32 {v(vO)}, {s(sT0)}, {v(vL16)}
          v_xor_b32 {v(vO+1)}, 0x8000, {v(vO)}
          v_and_b32 {v(32)}, 31, {v(vLANE)}
          s_lshl_b32 {s(sT0)}, {s(sGT)}, 5
          v_add_u32 {v(32)}, {s(sT0)}, {v(32)}
          v_mul_u32_u24 {v(32)}, 896, {v(32)}
          v_lshrrev_b32 {v(33)}, 5, {v(vLANE)}
          v_lshl_add_u32 {v(32)}, {v(33)}, 4, {v(32)}
          s_lshl_b32 {s(sT0)}, {s(sT4)}, 6
          v_add_u32 {v(vOUT)}, {s(sT0)}, {v(32)}""")
    signal(N_G2, own_slot(FG2), ("Hst", 1), near=True)
    peek_check(34, 36)
    stamp()
    hslots = [16, 20, 32, 36, 40, 44, 48, 52, 56, 60]
    NH = int(OPT.get("nh", 6))
    hsc = "" if "hplain" in OPT else " sc1"

    def bload(n):
        p, sl = n >> 1, n & 1
        if n < 56:
            if p % 2 == 0 and sl == 0:
                rot7(sRH, (p % 14) // 2, 4096, None)
                A(f"s_add_u32 {s(sV)}, {s(sRH)}, {HH}")
            addr, imm = vHH + sl, (2 * (p // 14) + p % 2) * 1024
        else:
            if p % 4 == 0 and sl == 0:
                A(f"s_mov_b32 {s(sV)}, {OB + 1024 * (p - 28)}")
            addr, imm = vO + sl, (p & 3) * 1024
        A.vmem(f"buffer_load_dwordx4 {v(hslots[n % NH], 4)}, {v(addr)}, {s(SW,4)}, {s(sV)} offen offset:{imm}{hsc}", ("H", n))

    def slotoffs(first):
        return [(0, i * 1024) if i < 14 else (1, (i - 14) * 1024) for i in range(first, first + 12)]

    vRW2 = [24, 25]
    for n in range(NH):
        bload(n)
    if OPT.get("tail", "ring") == "ring":
        vG, vA2 = 64, [24, 25, 26, 27, 2, 3, 31, 29 if NH == 10 else 63]

        def partner(sl):
            A(f"""s_xor_b32 {s(sT0)}, {s(sW)}, {sl}
                  s_mul_i32 {s(sT1)}, {s(sT0)}, 14336
                  s_mul_i32 {s(sT0)}, {s(sT0)}, 11264
                  s_add_u32 {s(sT0)}, {s(sT0)}, {LQ}
                  v_add_u32 {v(vA2[2*sl])}, {s(sT1)}, {v(vL16)}
                  v_add_u32 {v(vA2[2*sl+1])}, {s(sT0)}, {v(vL16)}""")
        side = {28: [], 29: [], 30: [], 31: [], 32: [], 33: [], 34: [], 35: []}
        for i in range(12):
            side[28 + (i + 2) // 5 + (1 if i < 0 else 0)].append(
                lambda i=i: A.ds(f"ds_write_b128 {v(24)}, {v(80 + 4 * i, 4)} offset:{i * 1024}", "red"))
        side[30].append(lambda: arrive(C_R2))
        side[32].append(lambda: await_cnt(C_R2))
        for sl in (1, 2, 3):
            side[32].append(lambda sl=sl: [A.ds(f"ds_read_b128 {v(64 + 16 * sl + 4 * q, 4)}, {v(vA2[2*sl])} offset:{((sl - 1) * 4 + q) * 1024}", ("rd", sl)) for q in range(4)])
        valu = []
        for sl in (1, 2, 3):
            valu.append(lambda sl=sl: A.wait_lg(("rd", sl)))
            valu += [lambda sl=sl, i=i: A(f"v_add_f32 {v(vG+i)}, {v(vG+i)}, {v(64 + 16 * sl + i)}") for i in range(16)]
        for i in range(8):
            y = vG + 2 * i
            valu += [lambda t=t: A(t) for t in f"""v_mul_f32 {v(80)}, {f32(-LOG2E)}, {v(y)}
                  v_mul_f32 {v(81)}, {f32(-LOG2E)}, {v(y+1)}
                  v_exp_f32 {v(80)}, {v(80)}
                  v_exp_f32 {v(81)}, {v(81)}
                  v_add_f32 {v(80)}, 1.0, {v(80)}
                  v_add_f32 {v(81)}, 1.0, {v(81)}
                  v_rcp_f32 {v(80)}, {v(80)}
                  v_rcp_f32 {v(81)}, {v(81)}
                  v_mul_f32 {v(y)}, {v(y)}, {v(80)}
                  v_mul_f32 {v(y+1)}, {v(y+1)}, {v(81)}""".split("\n")]
        nin = int(OPT.get("nin", 90))
        for n, f in enumerate(valu[:nin]):
            side[33 + (3 * n) // nin].append(f)
        for j in range(36):
            A.wait_vm(("H", 2 * j + 1))
            A.wait_lg(("s", 28 + j))
            if 2 * j + NH in (28, 56):
                peek_check()

            def mm(sl):
                d = v(acc6[sl], 16) if j < 28 else a(16 * sl, 16)
                mfma(d, a(sreg(28 + j, sl >> 1), 4), v(hslots[(2 * j + (sl & 1)) % NH], 4), 0 if (j == 0 and sl) or j == 28 else None)
            rd = sread_p(43 + j) if 1 <= j <= 20 else [None, None]
            rf = (refill_p(43 + j - 1 + NRING) if j >= 2 else []) or [None, None]
            ld = [(lambda n=n: bload(n)) if n < 72 else None for n in (2 * j + NH, 2 * j + NH + 1)]
            ex = side.get(j, [])
            lo = 2 if j == 28 else 0
            cut_ = [0] * (lo + 1) + [-(-len(ex) * (g + 1) // (4 - lo)) for g in range(4 - lo)]
            for g, (sl, todo) in enumerate(((0, [rf[0]]), (2, [ld[0], rd[0]]), (1, [rf[1]]), (3, [ld[1], rd[1]]))):
                mm(sl)
                if j == 28 and g == 1:
                    A("s_nop 6")
                for f in todo + ex[cut_[g]:cut_[g + 1]]:
                    if f:
                        f()
            if 2 * j + NH == 22:
                peek_issue(setup_tb(FG2, 0xffffff01))
            if 2 * j + NH == 50:
                peek_issue(setup_tb(FO, 0xffffff00))
            if j == 26:
                A.drain_lg()
                A(f"v_add_u32 {v(24)}, {s(sPA)}, {v(vL16)}\nv_add_u32 {v(25)}, {s(sPB)}, {v(vL16)}")
                partner(1)
                partner(2)
            if j == 27:
                stamp()
            if j == 31:
                partner(3)
        stamp()
        left = valu[nin:]
        for f in left[:12]:
            f()
        reduce_out([("a", 16), ("a", 32), ("a", 48)], C_R3, [24, 25], slotoffs(12), left[12:])
        for i in range(16):
            A(f"v_accvgpr_read_b32 {v(32+i)}, {a(i)}")
        stamp()
        reduce_in(32, 80, C_R3, lambda sl: vA2[2 * sl:2 * sl + 2], slotoffs(12))
        vS = 32
    else:
        for j in range(28):
            A.wait_vm(("H", 2 * j + 1))
            A.wait_lg(("s", 28 + j))
            if 2 * j + NH == 28:
                peek_check()
            rd = sread_p(43 + j) if 1 <= j <= 20 else [None, None]
            rf = (refill_p(43 + j - 1 + NRING) if j >= 2 else []) or [None, None]
            ld = [(lambda n=n: bload(n)) if n < 56 else None for n in (2 * j + NH, 2 * j + NH + 1)]
            for sl, todo in ((0, [rf[0]]), (2, [ld[0], rd[0]]), (1, [rf[1]]), (3, [ld[1], rd[1]])):
                mfma(v(acc6[sl], 16), a(sreg(28 + j, sl >> 1), 4), v(hslots[(2 * j + (sl & 1)) % NH], 4), 0 if j == 0 and sl else None)
                for f in todo:
                    if f:
                        f()
            if 2 * j + NH == 22:
                peek_issue(setup_tb(FG2, 0xffffff01))
            if "p6" in OPT and j in (3, 8, 9, 13, 18, 22):
                stamp()
            if j == 23:
                A.drain_lg()
                A(f"v_add_u32 {v(24)}, {s(sPA)}, {v(vL16)}\nv_add_u32 {v(25)}, {s(sPB)}, {v(vL16)}")
            if j == 25:
                peek_issue(setup_tb(FO, 0xffffff00), 16, 18)
        stamp()

        def mk2(sl):
            A(f"""s_xor_b32 {s(sT0)}, {s(sW)}, {sl}
                  s_mul_i32 {s(sT1)}, {s(sT0)}, 14336
                  s_mul_i32 {s(sT0)}, {s(sT0)}, 11264
                  s_add_u32 {s(sT0)}, {s(sT0)}, {LQ}
                  v_add_u32 {v(50+2*sl)}, {s(sT1)}, {v(vL16)}
                  v_add_u32 {v(51+2*sl)}, {s(sT0)}, {v(vL16)}""")
            return [50 + 2 * sl, 51 + 2 * sl]

        def oloads():
            for kq in range(8):
                if kq % 4 == 0:
                    A(f"s_mov_b32 {s(sV)}, {OB + 1024 * kq}")
                for sl in range(2):
                    A.vmem(f"buffer_load_dwordx4 {a(8 * kq + 4 * sl, 4)}, {v(vO+sl)}, {s(SW,4)}, {s(sV)} offen offset:{(kq & 3) * 1024} sc1", ("o", kq))

        later, both = A.newlabel("ol"), A.newlabel("ob")
        A.wait_vm("peek")
        A(f"""v_cmp_eq_u64 vcc, {s(sN,2)}, {v(16,2)}
              s_or_b64 vcc, vcc, {s(sINV,2)}
              s_cmp_eq_u64 vcc, -1
              s_cselect_b32 {s(sRH)}, 1, 0
              s_cbranch_scc0 {later}""")
        oloads()
        A.label(later)
        A("s_nop 5")
        reduce_out([("v", 80), ("v", 96), ("v", 112)], C_R2, vRW2, slotoffs(0))
        vG = 32
        reduce_in(64, 80, C_R2, mk2, slotoffs(0))
        for i in range(8):
            y = 64 + 2 * i
            A(f"""v_mul_f32 {v(80)}, {f32(-LOG2E)}, {v(y)}
                  v_mul_f32 {v(81)}, {f32(-LOG2E)}, {v(y+1)}
                  v_exp_f32 {v(80)}, {v(80)}
                  v_exp_f32 {v(81)}, {v(81)}
                  v_add_f32 {v(80)}, 1.0, {v(80)}
                  v_add_f32 {v(81)}, 1.0, {v(81)}
                  v_rcp_f32 {v(80)}, {v(80)}
                  v_rcp_f32 {v(81)}, {v(81)}
                  v_mul_f32 {v(vG+2*i)}, {v(y)}, {v(80)}
                  v_mul_f32 {v(vG+2*i+1)}, {v(y+1)}, {v(81)}""")
        stamp()
        A(f"s_cmp_lg_u32 {s(sRH)}, 0\ns_cbranch_scc1 {both}")
        keep = list(A.vm)
        A.vm = []
        peek_check(16, 18)
        oloads()
        A.vm = keep
        A.label(both)
        for kq in range(8):
            A.wait_vm(("o", kq))
            for sl in (1, 2, 3, 0):
                mfma(v(acc6[sl], 16), a(sreg(56 + kq, sl >> 1), 4), a(8 * kq + 4 * (sl & 1), 4), 0 if kq == 0 else None)
        stamp()
        A("s_nop 7\ns_nop 1")
        reduce_out([("v", 80), ("v", 96), ("v", 112)], C_R3, vRW2, slotoffs(12))
        reduce_in(64, 80, C_R3, lambda sl: [50 + 2 * sl, 51 + 2 * sl], slotoffs(12))
        vS = 64
    for i in range(8):
        y = vS + 2 * i
        A(f"""v_lshlrev_b32 {v(80)}, 16, {v(vXD+i)}
              v_and_b32 {v(81)}, 0xffff0000, {v(vXD+i)}
              v_fma_f32 {v(80)}, {v(y)}, {v(vG+2*i)}, {v(80)}
              v_fma_f32 {v(81)}, {v(y+1)}, {v(vG+2*i+1)}, {v(81)}
              v_cvt_pk_bf16_f32 {v(84+i)}, {v(80)}, {v(81)}""")
    A("s_nop 1")
    for p in range(2):
        A(f"v_permlane32_swap_b32 {v(84+4*p)}, {v(86+4*p)}\nv_permlane32_swap_b32 {v(85+4*p)}, {v(87+4*p)}")
    for p in range(2):
        A.vmem(f"buffer_store_dwordx4 {v(84+4*p,4)}, {v(vOUT)}, {s(SOUT,4)}, 0 offen offset:{32*p}", "out")
    stamp()
    dump_stamps()
    A("s_endpgm")

    for blk in late:
        A.lg = []
        blk()
    A.label("L_kv")
    A.vm = list(vm_kv)
    A.lg = []
    A(f"""v_mul_u32_u24 {v(vT0)}, 3584, {v(vC8)}
          s_min_u32 {s(sT2)}, {s(sTB)}, 27
          s_lshl_b32 {s(sT0)}, {s(sT2)}, 7
          s_mul_i32 {s(sT1)}, {s(sW)}, {112 * 3584}
          s_add_u32 {s(sT0)}, {s(sT0)}, {s(sT1)}
          v_add3_u32 {v(vW3)}, {v(vT0)}, {v(vC7)}, {s(sT0)}""")
    for i in range(16):
        A(f"v_sub_f32 {v(acc+i)}, {v(acc+i)}, {v(cs+i)}\nv_mul_f32 {v(acc+i)}, {v(acc+i)}, {v(vR)}")
    A(f"s_mov_b64 exec, {s(sHI,2)}")
    for i in range(12, 16):
        A(f"v_mov_b32 {v(acc+i)}, 0")
    A("s_mov_b64 exec, -1")
    for i in range(8):
        A(f"v_cvt_pk_bf16_f32 {v(pk+i)}, {v(acc+2*i)}, {v(acc+2*i+1)}")
    A(f"""s_lshl_b32 {s(sT4)}, {s(sGT)}, 12
          s_cmp_eq_u32 {s(sP)}, 1
          s_cbranch_scc1 L_v
          s_mov_b64 exec, {s(sHI,2)}
          v_mov_b32 {v(pk+6)}, {ONES}
          v_mov_b32 {v(pk+7)}, 0x3f80
          s_mov_b64 exec, -1
          buffer_store_dwordx4 {v(pk,4)}, {v(vL16)}, {s(SW,4)}, {s(sT4)} offen sc1
          buffer_store_dwordx4 {v(pk+4,4)}, {v(vL16)}, {s(SW,4)}, {s(sT4)} offen offset:1024 sc1
          v_mul_f32 {v(72)}, {v(acc)}, {v(acc)}""")
    for i in range(1, 16):
        A(f"v_fma_f32 {v(72)}, {v(acc+i)}, {v(acc+i)}, {v(72)}")
    halves(72, 73)
    A(f"""v_add_f32 {v(72)}, {v(72)}, {v(73)}
          v_mov_b32 {v(73)}, {L_KM}
          ds_max_u32 {v(73)}, {v(72)}
          s_branch L_kvdone""")
    A.label("L_v")
    A(f"""s_mov_b64 exec, {s(sHI,2)}
          v_mov_b32 {v(pk+6)}, 0x3f80
          s_mov_b64 exec, -1
          s_lshl_b32 {s(sT0)}, {s(sTT)}, 12
          s_add_u32 {s(sT0)}, {s(sT0)}, {L_VT}
          v_and_b32 {v(72)}, 31, {v(vLANE)}
          v_bfe_u32 {v(74)}, {v(72)}, 1, 1
          v_lshlrev_b32 {v(74)}, 6, {v(74)}
          v_lshrrev_b32 {v(73)}, 5, {v(vLANE)}
          v_lshl_add_u32 {v(73)}, {v(73)}, 3, {v(74)}
          v_lshl_add_u32 {v(72)}, {v(72)}, 7, {v(73)}
          v_add_u32 {v(72)}, {s(sT0)}, {v(72)}
          v_add3_u32 {v(73)}, {v(vTRD)}, {v(103)}, {s(sT0)}""")
    for g in range(4):
        A.ds(f"ds_write_b64 {v(72)}, {v(pk+2*g,2)} offset:{16*g}", "vt")
    for c in range(2):
        tr(("v", 76 + 4 * c), 73, c * 2048, 1024, "vr")
    A.drain_lg()
    A(f"buffer_store_dwordx4 {v(76,4)}, {v(vL16)}, {s(SW,4)}, {s(sT4)} offen offset:2048 sc1")
    A(f"buffer_store_dwordx4 {v(80,4)}, {v(vL16)}, {s(SW,4)}, {s(sT4)} offen offset:3072 sc1")
    A.label("L_kvdone")
    A.vm += ["kv", "kv"]
    nonce_take(30)
    signal(N_K, f"s_lshl_b32 {s(sT0)}, {s(sTB)}, 7\ns_add_u32 {s(sT0)}, {s(sT0)}, {FK}", "kv", payload=L_KM)
    stamps["n"] = 2
    stamp()
    await_cnt(C_PA, 8)
    for j in range(7):
        image(sPA, j * 2048, vW3, SQ, lambda e, j=j: f"s_mov_b32 {s(sT0)}, {j * 16 * 3584 + e}", 3584, "W3")
    A(f"v_add3_u32 {v(72)}, {v(vTRD)}, {v(103)}, {s(sPA)}\nv_xor_b32 {v(73)}, 64, {v(72)}")
    A.wait_vm("W3")
    for i in range(14):
        tr(("a", 4 * i), 72 + (i & 1), (i >> 1) * 2048, 1024, ("c", i))
    for i in range(14):
        A.wait_lg(("c", i))
        mfma(v(32 + 16 * (i & 1), 16), v(ones, 4), a(4 * i, 4), 0 if i < 2 else None)
    A(f"""s_lshl_b32 {s(sT0)}, {s(sW)}, 8
          s_add_u32 {s(sT0)}, {s(sT0)}, {LA + 32768}
          v_lshlrev_b32 {v(73)}, 2, {v(vLANE)}
          v_add_u32 {v(74)}, {s(sT0)}, {v(73)}
          s_nop 7
          v_cndmask_b32 {v(72)}, {v(32)}, {v(48)}, {s(sHI,2)}
          ds_write_b32 {v(74)}, {v(72)}""")
    arrive(C_R1)
    A(f"s_cmp_gt_u32 {s(sTB)}, 27\ns_cbranch_scc1 L_kvend\ns_cmp_lg_u32 {s(sW)}, 0\ns_cbranch_scc1 L_kvend")
    await_cnt(C_R1)
    A(f"""ds_read_b32 {v(75)}, {v(74)} offset:256
          ds_read_b32 {v(76)}, {v(74)} offset:512
          ds_read_b32 {v(77)}, {v(74)} offset:768
          s_lshl_b32 {s(sT1)}, {s(sTB)}, 9
          s_add_u32 {s(sT1)}, {s(sT1)}, {CS}
          v_lshlrev_b32 {v(74)}, 3, {v(vLANE)}
          s_waitcnt lgkmcnt(0)
          v_add_f32 {v(72)}, {v(72)}, {v(75)}
          v_add_f32 {v(73)}, {v(76)}, {v(77)}
          buffer_store_dwordx2 {v(72,2)}, {v(74)}, {s(SW,4)}, {s(sT1)} offen sc1
          s_lshl_b32 {s(sT0)}, {s(sTB)}, 7
          s_add_u32 {s(sT0)}, {s(sT0)}, {FC}
          v_mov_b32 {v(vT0)}, {s(sN)}
          v_mov_b32 {v(vT1)}, {s(sN+1)}
          v_mov_b32 {v(vT3)}, 0
          s_waitcnt vmcnt(0)
          s_mov_b64 exec, 1
          buffer_store_dwordx2 {v(vT0,2)}, {v(vT3)}, {s(SW,4)}, {s(sT0)} offen sc1
          s_mov_b64 exec, -1""")
    A.label("L_kvend")

    gate(G_H, setup_tb(FH, 0xffffff01), 32, payload=lambda: (A(f"s_mov_b32 {s(sT2)}, 0xfe"), note_die(34)))
    arrive(C_P4)
    read_mode()
    A(f"""s_lshl_b32 {s(sT0)}, {s(sTB)}, 2
          s_add_u32 {s(sT0)}, {s(sT0)}, {s(sW)}
          s_mul_i32 {s(sT1)}, {s(sT0)}, 12544
          s_mul_i32 {s(sT2)}, {s(sT0)}, 3136
          v_lshlrev_b32 {v(74)}, 7, {v(vLANE)}""")
    if "notouch" not in OPT:
        A.vmem(f"buffer_load_dword {v(84)}, {v(74)}, {s(S4,4)}, {s(sT1)} offen", "t")
        A(f"s_add_u32 {s(sT1)}, {s(sT1)}, 8192\ns_bfm_b64 exec, 34, 0")
        A.vmem(f"buffer_load_dword {v(85)}, {v(74)}, {s(S4,4)}, {s(sT1)} offen", "t")
        A("s_bfm_b64 exec, 25, 0")
        A.vmem(f"buffer_load_dword {v(86)}, {v(74)}, {s(SO,4)}, {s(sT2)} offen", "t")
        A("s_mov_b64 exec, -1")
    A(f"""s_setprio 0
          s_cmp_eq_u32 {s(sLOC)}, 0
          s_cbranch_scc1 L_kvquit
          v_lshlrev_b32 {v(36)}, 7, {v(vLANE)}
          v_and_b32 {v(37)}, 7, {v(vLANE)}
          v_lshrrev_b32 {v(38)}, 3, {v(vLANE)}
          v_lshlrev_b32 {v(38)}, 15, {v(38)}
          v_lshl_add_u32 {v(37)}, {v(37)}, 7, {v(38)}
          s_lshl_b32 {s(sT0)}, {s(sTB)}, 10
          s_add_u32 {s(sT0)}, {s(sT0)}, {FX}
          s_lshl_b32 {s(sT3)}, {s(sW)}, 13""")
    A.vm = []
    warm(0, 37, sT0, "0xffffffff")
    jobs = ([(X1, 56 * 1024, 2), (ST, 7168, 1)] if xnear else []) + [(HH, 224 * 1024, 7), (OB, 64 * 1024, 2)]
    n = 1
    for base, size, cnt in jobs:
        A(f"""s_mul_i32 {s(sT1)}, {s(sTB)}, {size}
              s_add_u32 {s(sT1)}, {s(sT1)}, {base}
              s_add_u32 {s(sT2)}, {s(sT1)}, {size}
              s_add_u32 {s(sT1)}, {s(sT1)}, {s(sT3)}""")
        for i in range(cnt):
            A(f"""s_cmp_lt_u32 {s(sT1)}, {s(sT2)}
                  s_cselect_b32 {s(sT0)}, {s(sT1)}, {OOB}
                  s_add_u32 {s(sT1)}, {s(sT1)}, 32768""")
            warm(n, 36, sT0, "0xffffffffffffff" if size == 7168 else -1)
            A(f"s_waitcnt vmcnt({OPT.get('wdepth', 0)})")
            n += 1
    A.label("L_kvquit")
    stamp()
    dump_stamps()
    A("s_endpgm")


def att(vm_entry):
    A.label("L_att")
    A.vm = list(vm_entry)
    A.lg = []
    stamps["n"] = 1
    acc, cs, ring, ones = 32, 48, 64, 96
    vM, vR = 8, 9
    A(f"""s_mul_i32 {s(sT0)}, {s(sCB)}, 112
          s_lshl_b32 {s(sT1)}, {s(sW)}, 3
          v_add_u32 {v(vT0)}, {s(sT1)}, {v(vC8)}
          v_mul_u32_u24 {v(vT0)}, 896, {v(vT0)}
          v_add3_u32 {v(vWQ)}, {v(vT0)}, {v(vC7)}, {s(sT0)}
          s_lshl_b32 {s(sPA)}, {s(sW)}, 10
          s_mul_i32 {s(sT0)}, {s(sP)}, 56
          v_add_u32 {v(103)}, {s(sT0)}, {v(103)}
          v_xor_b32 {v(103)}, {v(103)}, {v(102)}
          v_add_u32 {v(vT0)}, {v(vTRN)}, {v(103)}
          v_add_u32 {v(10)}, {LQ}, {v(vT0)}
          v_add_u32 {v(11)}, {LA}, {v(vT0)}""")
    nq0 = int(OPT.get("nq0", 11))
    for n in range(nq0):
        dma(sPA, LQ + n * 4096, vWQ, SQ, (f"s_mov_b32 {s(sT0)}, {n * 32 * 896}", s(sT0)), "WQ")
    early_stamp(6)
    A.wait_vm("X")
    barrier()
    early_dump()
    stamp()

    def first():
        for n in range(nq0, 14):
            dma(sPA, LQ + n * 4096 if n < 11 else LA + (n - 11) * 4096, vWQ, SQ, (f"s_mov_b32 {s(sT0)}, {n * 32 * 896}", s(sT0)), "WQ")
        nonce_issue(12)
        touch("p1")
    stat_part(lambda: None)
    barrier()
    first()
    stat_read()
    for ks in range(28):
        A.ds(f"ds_read_b128 {a(4*ks,4)}, {v(vXF + (ks & 3))} offset:{(ks >> 2) * 8192}", ("x", ks))
    stat_fin(vM, vR)
    A(f"v_add_f32 {v(vR)}, {f32(EPS)}, {v(vR)}\nv_rsq_f32 {v(vR)}, {v(vR)}")
    A.drain_lg()
    arrive(C_PA)
    A(f"v_mul_f32 {v(vR)}, {f32(QSCALE)}, {v(vR)}")
    A.wait_vm(["WQ", "nonce"])
    arrive(C_WQ)
    nonce_take(12)
    A(f"""s_lshl_b32 {s(sT0)}, {s(sGT)}, 4
          s_lshl_b32 {s(sT1)}, {s(sCB)}, 1
          s_add_u32 {s(sT0)}, {s(sT0)}, {s(sT1)}
          s_add_u32 {s(sT0)}, {s(sT0)}, {s(sP)}
          s_lshl_b32 {s(sT0)}, {s(sT0)}, 11
          s_add_u32 {s(sB4)}, {s(sT0)}, {OB}
""")
    await_cnt(C_WQ)
    stamp()

    def wq(ks):
        tr(("v", ring + 4 * (ks % 8)), 10 if ks < 22 else 11, (ks % 22) * 2048, 512, ("w", ks))
    vG, vF = 12, 104
    aO, aQ, aK, vV = 0, 48, 80, 72
    O0, S, P = 16, [32, 48], 64

    def setup_k():
        A(f"""v_lshlrev_b32 {v(vT1)}, 7, {v(vLANE)}
              v_add_u32 {v(vT1)}, {FK}, {v(vT1)}
              s_mov_b64 {s(sINV,2)}, {s(sHI,2)}""")
        lanes_to(vT1)

    misc = f"""s_lshl_b32 {s(sT0)}, {s(sW)}, 11
          s_add_u32 {s(sT0)}, {s(sT0)}, {L_QG}
          v_add_u32 {v(vG)}, {s(sT0)}, {v(vL16)}
          s_lshl_b32 {s(sT0)}, {s(sW)}, 8
          s_add_u32 {s(sT0)}, {s(sT0)}, {L_QN}
          v_lshlrev_b32 {v(14)}, 2, {v(vLANE)}
          v_add_u32 {v(15)}, {s(sT0)}, {v(14)}
          v_add_u32 {v(14)}, {L_QN}, {v(14)}
          s_add_u32 {s(sT0)}, {s(sCB)}, {s(sTB)}
          s_and_b32 {s(sT0)}, {s(sT0)}, 3
          s_lshl_b32 {s(sK)}, {s(sT0)}, 14
          s_add_u32 {s(sV)}, {s(sK)}, 0x4000
          s_and_b32 {s(sV)}, {s(sV)}, 0xffff
          s_lshl_b32 {s(sT0)}, {s(sW)}, 16
          v_add_u32 {v(vF)}, {s(sT0)}, {v(vL16)}
          v_add_u32 {v(vF+1)}, 4096, {v(vF)}
          v_add_u32 {v(vF+2)}, 8192, {v(vF)}
          v_add_u32 {v(vF+3)}, 12288, {v(vF)}""".split("\n")
    misc += [f"v_mov_b32 {v(O0+i)}, 0" for i in range(16)]
    misc += [f"v_xor_b32 {v(108+sl)}, {sl << 11}, {v(vG)}" for sl in range(1, 4)]

    def qstep(ks):
        if ks + 6 < 28:
            wq(ks + 6)
        A.wait_lg(("w", ks))
        mfma(v(acc, 16), v(ring + 4 * (ks % 8), 4), a(4 * ks, 4), 0 if ks == 0 else None)
        mfma(v(cs, 16), v(ring + 4 * (ks % 8), 4), v(ones, 4), 0 if ks == 0 else None)
        if 14 <= ks < 26:
            for i in range(4):
                A(f"v_accvgpr_write_b32 {a(aO + 4 * (ks - 14) + i)}, 0")
    for ks in range(6):
        wq(ks)
    weave(A, [lambda ks=ks: qstep(ks) for ks in range(28)], [lambda t=t: A(t) for t in misc])
    hi = "prl" not in OPT

    def kload(slot, base):
        for c in range(2):
            A.vmem(f"buffer_load_dwordx4 {a(aK + 8*slot + 4*c, 4)}, {v(vF+slot)}, {s(SW,4)}, {s(base)} offen offset:{c*1024} sc1", "K")

    def vload(slot, base):
        for c in range(2):
            A.vmem(f"buffer_load_dwordx4 {v(vV + 8*slot + 4*c, 4)}, {v(vF+slot)}, {s(SW,4)}, {s(base)} offen offset:{2048 + c*1024} sc1", "V")

    def first_loads():
        A("s_setprio 3")
        for slot in range(3):
            kload(slot, sK)
            vload(slot, sK)
            if slot == 0:
                A("s_setprio " + OPT.get("aprio", "0"))
        kload(3, sK)
        A.vm = []

    stamp()
    A("s_nop 7")
    q = acc
    for i in range(16):
        A(f"v_fma_f32 {v(q+i)}, -{v(cs+i)}, {v(vM)}, {v(q+i)}\nv_mul_f32 {v(q+i)}, {v(q+i)}, {v(vR)}")
    A(f"s_mov_b64 exec, {s(sHI,2)}")
    for i in range(12, 16):
        A(f"v_mov_b32 {v(q+i)}, 0")
    A("s_mov_b64 exec, -1")
    for i in range(8):
        A(f"v_cvt_pk_bf16_f32 {v(48+i)}, {v(q+2*i)}, {v(q+2*i+1)}")
    A.ds(f"ds_write_b128 {v(vG)}, {v(48,4)}", "qg")
    A.ds(f"ds_write_b128 {v(vG)}, {v(52,4)} offset:1024", "qg")
    A(f"v_mul_f32 {v(56)}, {v(q)}, {v(q)}")
    for i in range(1, 16):
        A(f"v_fma_f32 {v(56)}, {v(q+i)}, {v(q+i)}, {v(56)}")
    halves(56, 57)
    A(f"v_add_f32 {v(56)}, {v(56)}, {v(57)}")
    A.ds(f"ds_write_b32 {v(15)}, {v(56)}", "qg")
    arrive(C_Q)
    for i in range(4):
        A(f"v_mov_b32 {v(P+4+i)}, 0\nv_mov_b32 {v(vV+28+i)}, 0")
    await_cnt(C_Q)
    for sl in range(4):
        for c in range(2):
            A.ds(f"ds_read_b128 {a(aQ + 8*sl + 4*c, 4)}, {v(108+sl if sl else vG)} offset:{c*1024}", "q")
    for sl in range(4):
        A.ds(f"ds_read_b32 {v(120+sl)}, {v(14)} offset:{sl*256}", "q")
    A.drain_lg()
    arrive(C_QD)
    A("s_setprio 3")
    gate(G_K, setup_k, 112, payload=lambda: A(f"v_mov_b32 {v(113)}, {L_KP}\nds_max_u32 {v(113)}, {v(114)}"))
    stamp()
    A(f"v_mov_b32 {v(113)}, {L_KP}\nds_read_b32 {v(112)}, {v(113)}")
    first_loads()
    A(f"""s_waitcnt lgkmcnt(0)
          v_max3_f32 {v(120)}, {v(120)}, {v(121)}, {v(122)}
          v_max_f32 {v(120)}, {v(120)}, {v(123)}
          v_mul_f32 {v(108)}, {v(112)}, {v(120)}
          v_cmp_nge_f32 vcc, {f32(-1.0 if FORCE_SLOW else BOUND2)}, {v(108)}
          s_cmp_lg_u64 vcc, 0
          s_cbranch_scc1 L_slow""")
    A.label("L_fast")
    A("s_waitcnt vmcnt(10)")

    def Oreg(sl):
        return v(O0, 16) if sl == 0 else a(aO + 16 * (sl - 1), 16)

    mfma(v(S[0], 16), a(aK, 4), a(aQ, 4), 0)
    mfma(v(S[0], 16), a(aK + 4, 4), a(aQ + 4, 4))
    A(f"s_mov_b32 {s(sT4)}, 4\ns_nop 7\ns_nop 1")
    A.label("L_aloop")

    def period(sg, qt):
        cur, nxt = S[qt & 1], S[(qt + 1) & 1]
        ks = sg if qt < 3 else (sg + 1) & 3
        vs = sg if qt > 0 else (sg - 1) & 3
        nq, pq = (qt + 1) & 3, (qt - 1) & 3
        e = lambda i: A(f"v_exp_f32 {v(cur+i)}, {v(cur+i)}")
        c = lambda i: A(f"v_cvt_pk_bf16_f32 {v(P+i)}, {v(cur+2*i)}, {v(cur+2*i+1)}")
        if qt == 3:
            A("s_waitcnt vmcnt(6)")
        mfma(v(nxt, 16), a(aK + 8 * ks, 4), a(aQ + 8 * nq, 4), 0)
        if qt == 3:
            A("s_setprio 3")
            vload((sg - 1) & 3, sK if sg == 0 else sV)
            kload(sg, sV)
            A("s_setprio " + OPT.get("aprio", "0"))
        e(0); e(1); e(2); e(3)
        mfma(Oreg(pq), v(vV + 8 * vs + 4, 4), v(P + 4, 4))
        c(0); c(1); e(4); e(5); e(6); e(7)
        mfma(v(nxt, 16), a(aK + 8 * ks + 4, 4), a(aQ + 8 * nq + 4, 4))
        c(2); c(3); e(8); e(9); e(10); e(11)
        mfma(Oreg(qt), v(vV + 8 * sg, 4), v(P, 4))
        c(4); c(5); e(12); e(13); e(14); e(15); c(6); c(7)

    for sg in range(4):
        for qt in range(4):
            period(sg, qt)
            A.vm = []
    A(f"""s_mov_b32 {s(sK)}, {s(sV)}
          s_add_u32 {s(sV)}, {s(sV)}, 0x4000
          s_and_b32 {s(sV)}, {s(sV)}, 0xffff
          s_cmp_eq_u32 {s(sT4)}, 2
          s_cselect_b32 {s(sV)}, {OOB}, {s(sV)}
          s_sub_u32 {s(sT4)}, {s(sT4)}, 1
          s_cmp_lg_u32 {s(sT4)}, 0
          s_cbranch_scc1 L_aloop""")
    mfma(Oreg(3), v(vV + 28, 4), v(P + 4, 4))
    stamp()
    A("s_setprio 3")
    await_cnt(C_P4)
    read_mode()
    A(f"""s_mul_i32 {s(sT0)}, {s(sW)}, 12288
          s_add_u32 {s(sT0)}, {s(sT0)}, {LA}
          v_add_u32 {v(8)}, {s(sT0)}, {v(vL16)}
          s_nop 7""")
    offs = [(0, i * 1024) for i in range(12)]
    reduce_out([("a", aO), ("a", aO + 16), ("a", aO + 32)], C_MRG, [8], offs)

    def mk(sl):
        A(f"""s_xor_b32 {s(sT0)}, {s(sW)}, {sl}
              s_mul_i32 {s(sT0)}, {s(sT0)}, 12288
              s_add_u32 {s(sT0)}, {s(sT0)}, {LA}
              v_add_u32 {v(8+sl)}, {s(sT0)}, {v(vL16)}""")
        return [8 + sl]
    reduce_in(O0, [32, 48, 104], C_MRG, mk, offs)
    A(f"v_mov_b32 {v(32)}, {v(O0+12)}")
    halves(32, 33)
    A(f"v_rcp_f32 {v(33)}, {v(33)}\ns_nop 0")
    for i in range(16):
        A(f"v_mul_f32 {v(O0+i)}, {v(O0+i)}, {v(33)}")
    for i in range(8):
        A(f"v_cvt_pk_bf16_f32 {v(40+i)}, {v(O0+2*i)}, {v(O0+2*i+1)}")
    A(f"s_mov_b64 exec, {s(sHI,2)}\nv_mov_b32 {v(46)}, 0\nv_mov_b32 {v(47)}, 0\ns_mov_b64 exec, -1")
    hstore([f"buffer_store_dwordx4 {v(40,4)}, {v(vL16)}, {s(SW,4)}, {s(sB4)} offen",
            f"buffer_store_dwordx4 {v(44,4)}, {v(vL16)}, {s(SW,4)}, {s(sB4)} offen offset:1024"])
    signal(N_O, own_slot(FO), near=True)
    stamp()
    dump_stamps()
    A("s_endpgm")

    A.label("L_slow")
    mx, kf = 108, 112
    for sl in range(4):
        A(f"v_mov_b32 {v(mx+sl)}, 0xff800000")
    A(f"s_mov_b32 {s(sT4)}, 0")
    A.label("L_sloop")
    A(f"""buffer_load_dwordx4 {v(kf,4)}, {v(vF)}, {s(SW,4)}, {s(sT4)} offen sc1
          buffer_load_dwordx4 {v(kf+4,4)}, {v(vF)}, {s(SW,4)}, {s(sT4)} offen offset:1024 sc1
          s_add_u32 {s(sT4)}, {s(sT4)}, 4096
          s_waitcnt vmcnt(0)""")
    for sl in range(4):
        mfma(v(S[0], 16), v(kf, 4), a(aQ + 8 * sl, 4), 0)
        mfma(v(S[0], 16), v(kf + 4, 4), a(aQ + 8 * sl + 4, 4))
        A("s_nop 11")
        for i in range(8):
            A(f"v_max3_f32 {v(mx+sl)}, {v(mx+sl)}, {v(S[0]+2*i)}, {v(S[0]+2*i+1)}")
    A(f"s_cmp_lt_u32 {s(sT4)}, 0x10000\ns_cbranch_scc1 L_sloop")
    A(f"v_and_b32 {v(kf)}, 31, {v(vLANE)}\nv_lshlrev_b32 {v(kf)}, 2, {v(kf)}\nv_add_u32 {v(kf)}, {L_MX}, {v(kf)}")
    for sl in range(4):
        halves(mx + sl, kf + 1)
        A(f"""v_max_f32 {v(mx+sl)}, {v(mx+sl)}, {v(kf+1)}
              s_xor_b32 {s(sT0)}, {s(sW)}, {sl}
              s_lshl_b32 {s(sT0)}, {s(sT0)}, 7
              v_add_u32 {v(kf+4+sl)}, {s(sT0)}, {v(kf)}""")
    A(f"ds_write_b32 {v(kf+4)}, {v(mx)}")
    arrive(C_MAX)
    await_cnt(C_MAX)
    for sl in range(1, 4):
        A(f"ds_max_f32 {v(kf+4+sl)}, {v(mx+sl)}")
    arrive(C_MAX)
    await_cnt(C_MAX, 8)
    t = 120
    for sl in range(4):
        A(f"""ds_read_b32 {v(t)}, {v(kf+4+sl)}
              s_waitcnt lgkmcnt(0)
              v_sub_f32 {v(t)}, 0, {v(t)}
              v_cvt_pk_bf16_f32 {v(t+1)}, {v(t)}, {v(t)}
              v_and_b32 {v(t+1)}, 0xffff0000, {v(t+1)}
              v_sub_f32 {v(t+2)}, {v(t)}, {v(t+1)}
              v_cvt_pk_bf16_f32 {v(t+3)}, {v(t)}, {v(t+2)}
              v_and_b32 {v(t+1)}, 0xffff0000, {v(t+3)}
              v_sub_f32 {v(t+2)}, {v(t+2)}, {v(t+1)}
              v_cvt_pk_bf16_f32 {v(t+2)}, {v(t+2)}, 0
              s_mov_b64 exec, {s(sHI,2)}
              v_accvgpr_write_b32 {a(aQ + 8*sl + 6)}, {v(t+3)}
              v_accvgpr_write_b32 {a(aQ + 8*sl + 7)}, {v(t+2)}
              s_mov_b64 exec, -1""")
    A("s_nop 1\ns_branch L_fast")


def header():
    ref = open(f"cdna_kernels/{NAME}.s.ref").read().split("\n")
    out = [l for l in ref if l.startswith(";") and "@launch" not in l and "Override" not in l and "grid=ceil" not in l]
    out.append(f"; @launch grid=(256,1,1) block=(512,1,1) lds={LDS_SIZE}")
    out += ['.amdgcn_target "amdgcn-amd-amdhsa--gfx950"', ".text", f".globl {NAME}_kernel", ".p2align 8",
            f".type {NAME}_kernel,@function", f"{NAME}_kernel:"]
    return "\n".join(out) + "\n"


def footer():
    return f"""L_end:
    s_endpgm
L_code_end:
.section .rodata,"a"
.p2align 6
.amdhsa_kernel {NAME}_kernel
  .amdhsa_next_free_vgpr 256
  .amdhsa_next_free_sgpr 102
  .amdhsa_accum_offset 128
  .amdhsa_group_segment_fixed_size 0
  .amdhsa_kernarg_size 104
  .amdhsa_user_sgpr_count 2
  .amdhsa_user_sgpr_kernarg_segment_ptr 1
  .amdhsa_system_sgpr_workgroup_id_x 1
.end_amdhsa_kernel
"""


if __name__ == "__main__":
    vm0 = prologue()
    mlp(vm0)
    att(vm0)
    out = [x for x in sys.argv[1:] if not x.startswith("--")]
    open(out[0] if out else "k.s", "w").write(header() + A.text() + footer())
```

```python
import math
import sys
from asmlib import Asm, a, f32, s, v, weave

NAME = "recurrent_scan__grouped_kv_mqa__mixer_s_mlp__prompt"
PROFILE = "--prof" in sys.argv or "--cyc" in sys.argv
CLOCK = "s_memtime" if "--cyc" in sys.argv else "s_memrealtime"
FORCE_SLOW = "--slow" in sys.argv
OPT = {x[2:].split("=")[0]: (x.split("=") + [""])[1] for x in sys.argv if x.startswith("--")}


class Stop(Exception):
    pass


def cut(name):
    if OPT.get("mlpstop") == name:
        arrive(C_P4)
        A.drain_vm()
        dump_stamps()
        A("s_endpgm")


KV, CS, FK, FC, FH, FX, FG, FO, FG2 = 0x0, 0x40000, 0x48000, 0x49000, 0x50000, 0x58000, 0x60000, 0x68000, 0x70000
TS = 0x80000
HB, ST, X1, HH, OB = 0x100000, 0x2C0000, 0x300000, 0x500000, 0xC00000
WS_SIZE = 0xE00000
OOB = 0x7FFF0000
LX, LA, LQ, LS = 0, 57344, 114688, 159744
LDS_SIZE = 163840
(C_PA, C_W2, C_WQ, C_Q, C_QD, C_MAX, C_MRG, C_R1, C_XA, C_XB, C_P4, C_R2, C_R3, N_H, N_X, N_G, N_G2, N_O, N_K, N_C,
 G_H, G_X, G_G, G_G2, G_O, G_K, L_KM, L_KP, L_MODE) = [LS + 4 * i for i in range(29)]
L_QN, L_STAT = LS + 1024, LS + 2048
L_MX = LS + 256
L_QG, L_VT = LA + 16384, LA + 24576
NRING = 12
assert L_QG % 8192 == 0
LOG2E = 1.4426950408889634
QSCALE = 28 ** -0.5 * LOG2E
GC1 = -2 * LOG2E * math.sqrt(2 / math.pi)
GC2 = GC1 * 0.044715
EPS = 1e-5
BOUND2 = 3500.0
ONES = 0x3F803F80
GSPIN, LSPIN = 20000, 400000
SX, SA, SQ, SW, S4, SO, SOUT, SD, S2 = 4, 8, 12, 16, 20, 24, 28, 32, 36
P_X, P_WQ, P_WK, P_WV, P_WO, P_W1, P_W2, P_W3, P_W4, P_OUT, P_DBG, P_WS = 40, 42, 44, 46, 48, 52, 54, 56, 58, 60, 62, 64
sN = 66
sW8, sW, sTB, sCB, sTT, sP, sGT = 68, 69, 70, 71, 72, 73, 74
sHI = 76
sINV = 78
sT0, sT1, sT2, sT3, sT4, sT5 = 80, 81, 82, 83, 84, 85
sPA, sPB, sB1, sB4, sSP = 86, 87, 88, 89, 90
sK, sV, sR, sRG, sRH = 91, 92, 93, 96, 97
sXC, sLOC = 75, 3
sTS = 40
vLANE, vL16, vTRN, vTRD, vT0, vT1, vT2, vT3 = 0, 1, 2, 3, 4, 5, 6, 7
MF = "v_mfma_f32_32x32x16_bf16"

A = Asm()
stamps = {"n": 0}


def stamp():
    if PROFILE:
        i = stamps["n"]
        stamps["n"] += 1
        A(f"s_waitcnt lgkmcnt(0)\n{CLOCK} {s(94,2)}\ns_waitcnt lgkmcnt(0)\ns_mov_b32 {s(sTS+i)}, s94")
        if "both" in OPT:
            A(f"s_memrealtime {s(94,2)}\ns_and_b32 {s(sTS+i)}, {s(sTS+i)}, 0xfffff\ns_waitcnt lgkmcnt(0)\n"
              f"s_lshl_b32 s94, s94, 20\ns_or_b32 {s(sTS+i)}, {s(sTS+i)}, s94")
        A.lg = []


def early_stamp(i):
    if "startup" in OPT:
        A(f"s_memtime {s(94,2)}\ns_waitcnt lgkmcnt(0)\ns_mov_b32 {s([98, 99, 100, 101, 3, 75, 97][i])}, s94")


def early_dump():
    if "startup" in OPT:
        for i, r in enumerate([98, 99, 100, 101, 3, 75, 97]):
            A(f"s_mov_b32 {s(sTS+i)}, {s(r)}")
        stamps["n"] = 7
        stamp()
        dump_stamps()
        A("s_endpgm")


def dump_stamps():
    if PROFILE:
        n = stamps["n"]
        A(f"s_lshl_b32 {s(sT0)}, s2, 3\ns_add_u32 {s(sT0)}, {s(sT0)}, {s(sW8)}\ns_lshl_b32 {s(sT0)}, {s(sT0)}, 7\n"
          f"s_add_u32 {s(sT0)}, {s(sT0)}, {TS}\nv_mov_b32 {v(vT1)}, 0")
        for i in range(n):
            A(f"v_mov_b32 {v(vT0)}, {s(sTS+i)}\nbuffer_store_dword {v(vT0)}, {v(vT1)}, {s(SW,4)}, {s(sT0)} offen offset:{4*i}")
        A.drain_vm()
    stamps["n"] = 0


def srd(r, ptr, size):
    A(f"s_mov_b32 {s(r)}, {s(ptr)}\ns_mov_b32 {s(r+1)}, {s(ptr+1)}\ns_mov_b32 {s(r+2)}, {size}\ns_mov_b32 {s(r+3)}, 0x20000")


def mfma(d, x, y, c=None):
    A(f"{MF} {d}, {x}, {y}, {d if c is None else c}")


def dma(m0_base, m0_off, voff, desc, soff, tag, imm=0, sc=""):
    if m0_base is None:
        A(f"s_mov_b32 m0, {m0_off - imm}")
    else:
        A(f"s_add_u32 m0, {s(m0_base)}, {m0_off - imm}")
    pre, so = soff
    if pre:
        A(pre)
    else:
        A("s_nop 0")
    A.vmem(f"buffer_load_dwordx4 {v(voff)}, {s(desc,4)}, {so} offen" + (f" offset:{imm}" if imm else "") + f"{sc} lds", tag)


def tr(dst, addr, off, second, tag):
    k, i = dst
    r = v if k == "v" else a
    A.ds(f"ds_read_b64_tr_b16 {r(i,2)}, {v(addr)} offset:{off}", tag)
    A.ds(f"ds_read_b64_tr_b16 {r(i+2,2)}, {v(addr)} offset:{off+second}", tag)


def arrive(cnt):
    A(f"s_mov_b64 exec, 1\nv_mov_b32 {v(vT0)}, {cnt}\nv_mov_b32 {v(vT1)}, 1")
    A.ds(f"ds_add_u32 {v(vT0)}, {v(vT1)}", "cnt")
    A("s_mov_b64 exec, -1")


def await_cnt(cnt, target=4):
    lp, ok = A.newlabel("ls"), A.newlabel("lk")
    A(f"v_mov_b32 {v(vT0)}, {cnt}\ns_mov_b32 {s(sSP)}, 0")
    A.label(lp)
    A(f"""ds_read_b32 {v(vT1)}, {v(vT0)}
          s_add_u32 {s(sSP)}, {s(sSP)}, 1
          s_waitcnt lgkmcnt(0)
          v_readfirstlane_b32 {s(sT0)}, {v(vT1)}
          s_cmp_ge_u32 {s(sT0)}, {target}
          s_cbranch_scc1 {ok}
          {"s_sleep " + OPT["lsleep"] if "lsleep" in OPT else ""}
          s_cmp_lt_u32 {s(sSP)}, {LSPIN}
          s_cbranch_scc1 {lp}""")
    A.label(ok)
    A.lg = []


def gate(go, setup, tmp, payload=None, release=True):
    lp, ok, rest = A.newlabel("gs"), A.newlabel("gk"), A.newlabel("gw")
    every = "allpoll" in OPT and not payload
    if not every:
        A(f"s_cmp_lg_u32 {s(sW)}, 0\ns_cbranch_scc1 {rest}")
    setup()
    A(f"s_mov_b32 {s(sSP)}, 0")
    A.label(lp)
    n = 4 if payload else 2
    A(f"""buffer_load_dwordx{n} {v(tmp,n)}, {v(vT2)}, {s(SW,4)}, 0 offen sc1
          s_add_u32 {s(sSP)}, {s(sSP)}, 1
          s_waitcnt vmcnt(0)
          v_cmp_eq_u64 vcc, {s(sN,2)}, {v(tmp,2)}
          s_or_b64 vcc, vcc, {s(sINV,2)}
          s_cmp_eq_u64 vcc, -1
          s_cbranch_scc1 {ok}
          s_cmp_lt_u32 {s(sSP)}, {GSPIN}
          s_cbranch_scc1 {lp}""")
    A.label(ok)
    if every:
        return
    if payload:
        payload()
    if not release:
        A.label(rest)
        return
    keep = list(A.lg)
    arrive(go)
    A.lg = keep
    A.label(rest)
    await_cnt(go, 1)


def peek_issue(setup, data=vT0, addr=vT2, n=2):
    setup()
    if addr != vT2:
        A(f"v_mov_b32 {v(addr)}, {v(vT2)}")
    A.vmem(f"buffer_load_dwordx{n} {v(data,n)}, {v(addr)}, {s(SW,4)}, 0 offen sc1", "peek")


def peek_check(data=vT0, addr=vT2, n=2):
    lp, ok = A.newlabel("ps"), A.newlabel("pk")
    A.wait_vm("peek")
    A(f"s_mov_b32 {s(sSP)}, {GSPIN}")
    A.label(lp)
    A(f"""v_cmp_eq_u64 vcc, {s(sN,2)}, {v(data,2)}
          s_or_b64 vcc, vcc, {s(sINV,2)}
          s_cmp_eq_u64 vcc, -1
          s_cbranch_scc1 {ok}
          s_sub_u32 {s(sSP)}, {s(sSP)}, 1
          s_cbranch_scc1 {ok}
          buffer_load_dwordx{n} {v(data,n)}, {v(addr)}, {s(SW,4)}, 0 offen sc1
          s_waitcnt vmcnt(0)
          s_branch {lp}""")
    A.label(ok)


def lanes_to(addr_reg):
    A(f"s_mov_b64 vcc, {s(sINV,2)}\nv_mov_b32 {v(vT3)}, {OOB}\nv_cndmask_b32 {v(vT2)}, {v(addr_reg)}, {v(vT3)}, vcc")


def hstore(stores, tag=None, allow=True):
    if not allow:
        for t in stores:
            A.vmem(t + " sc1", tag)
        return
    near, done = A.newlabel("hn"), A.newlabel("hd")
    A(f"s_cmp_lg_u32 {s(sLOC)}, 0\ns_cbranch_scc1 {near}")
    for t in stores:
        A(t + " sc1")
    A(f"s_branch {done}")
    A.label(near)
    for t in stores:
        if tag is None:
            A(t)
        else:
            A.vmem(t, tag)
    A.label(done)


def note_die(data):
    A(f"""v_cmp_eq_u32 vcc, {s(sXC)}, {v(data)}
          s_and_b32 {s(sT0)}, vcc_lo, {s(sT2)}
          s_cmp_eq_u32 {s(sT0)}, {s(sT2)}
          s_cselect_b32 {s(sT0)}, {0 if "remote" in OPT else 1}, 0
          v_mov_b32 {v(vT0)}, {L_MODE}
          v_mov_b32 {v(vT1)}, {s(sT0)}
          ds_write_b32 {v(vT0)}, {v(vT1)}""")


def read_mode():
    A(f"""v_mov_b32 {v(vT0)}, {L_MODE}
          ds_read_b32 {v(vT1)}, {v(vT0)}
          s_waitcnt lgkmcnt(0)
          v_readfirstlane_b32 {s(sLOC)}, {v(vT1)}""")
    A.lg = []


def warm(dst, voff, soff, mask):
    if "nowarm" in OPT:
        return
    if isinstance(mask, str):
        A(f"s_bfm_b64 exec, {len(mask[2:]) * 4}, 0")
    else:
        A(f"s_mov_b64 exec, {mask}")
    A.vmem(f"buffer_load_dword {a(dst)}, {v(voff)}, {s(SW,4)}, {s(soff)} offen sc1", "warm")
    A("s_mov_b64 exec, -1")


def signal(cnt, soff_expr, tags=None, payload=None, near=False):
    skip = A.newlabel("sg")
    if tags is None:
        A.drain_vm()
    else:
        A.wait_vm(tags)
    A(f"""s_mov_b64 exec, 1
          v_mov_b32 {v(vT0)}, {cnt}
          v_mov_b32 {v(vT1)}, 1
          ds_add_rtn_u32 {v(vT1)}, {v(vT0)}, {v(vT1)}""")
    if payload:
        A(f"ds_read_b32 {v(vT2)}, {v(vT0)} offset:{payload - cnt}")
    A(soff_expr)
    A(f"""s_waitcnt lgkmcnt(0)
          v_readfirstlane_b32 {s(sT1)}, {v(vT1)}
          s_cmp_lg_u32 {s(sT1)}, 3
          s_cbranch_scc1 {skip}
          v_mov_b32 {v(vT0)}, {s(sN)}
          v_mov_b32 {v(vT1)}, {s(sN+1)}
          v_mov_b32 {v(vT3)}, 0""")
    if not payload:
        A(f"v_mov_b32 {v(vT2)}, {s(sXC)}")
    st = f"buffer_store_dwordx4 {v(vT0,4)}, {v(vT3)}, {s(SW,4)}, {s(sT0)} offen"
    if near:
        hstore([st])
    else:
        A(st + " sc1")
    A.label(skip)
    A("s_mov_b64 exec, -1\ns_nop 0")
    A.lg = []


def nonce_issue(tmp):
    A(f"v_mov_b32 {v(vT3)}, 0")
    A.vmem(f"buffer_load_dwordx2 {v(tmp,2)}, {v(vT3)}, {s(SD,4)}, 0 offen sc1", "nonce")


def nonce_take(tmp):
    lp, ok = A.newlabel("ns"), A.newlabel("nk")
    A.wait_vm("nonce")
    A(f"s_mov_b32 {s(sSP)}, 0\nv_mov_b32 {v(vT3)}, 0")
    A.label(lp)
    A(f"""v_readfirstlane_b32 {s(sN)}, {v(tmp)}
          v_readfirstlane_b32 {s(sN+1)}, {v(tmp+1)}
          s_add_u32 {s(sSP)}, {s(sSP)}, 1
          s_cmp_lg_u64 {s(sN,2)}, 0
          s_cbranch_scc1 {ok}
          s_cmp_ge_u32 {s(sSP)}, {GSPIN}
          s_cbranch_scc1 {ok}
          buffer_load_dwordx2 {v(tmp,2)}, {v(vT3)}, {s(SD,4)}, 0 offen sc1
          s_waitcnt vmcnt(0)
          s_branch {lp}""")
    A.label(ok)


def halves(x, t):
    A(f"v_mov_b32 {v(t)}, {v(x)}\ns_nop 1\nv_permlane32_swap_b32 {v(x)}, {v(t)}")


def wave_max(x, full):
    for sh in (1, 2, 4, 8):
        A(f"s_nop 1\nv_max_f32_dpp {v(x)}, {v(x)}, {v(x)} row_shr:{sh} row_mask:0xf bank_mask:0xf bound_ctrl:0")
    A(f"s_nop 1\nv_max_f32_dpp {v(x)}, {v(x)}, {v(x)} row_bcast:15 row_mask:0xa bank_mask:0xf")
    if full:
        A(f"s_nop 1\nv_max_f32_dpp {v(x)}, {v(x)}, {v(x)} row_bcast:31 row_mask:0xc bank_mask:0xf")
    A("s_nop 1")


def gelu_ops(y, t, dst, c1, c2, ri):
    o = []
    for e in (0, 1):
        o.append(f"v_mul_f32 {v(t+e)}, {v(y+e)}, {v(y+e)}")
    for e in (0, 1):
        o.append(f"v_fma_f32 {v(t+e)}, {v(t+e)}, {v(c2)}, {v(c1)}")
    for e in (0, 1):
        o.append(f"v_mul_f32 {v(t+e)}, {v(t+e)}, {v(y+e)}")
    for e in (0, 1):
        o.append(f"v_exp_f32 {v(t+e)}, {v(t+e)}")
    for e in (0, 1):
        o.append(f"v_fma_f32 {v(t+e)}, {v(t+e)}, {v(ri)}, {v(ri)}")
    for e in (0, 1):
        o.append(f"v_rcp_f32 {v(t+e)}, {v(t+e)}")
    for e in (0, 1):
        o.append(f"v_mul_f32 {v(t+e)}, {v(t+e)}, {v(y+e)}")
    o.append(f"v_cvt_pk_bf16_f32 {v(dst)}, {v(t)}, {v(t+1)}")
    return o


def ring_addr(slot):
    return (sPA, slot * 2048) if slot < 7 else (sPB, (slot - 7) * 2048)


def reduce_out(srcs, cnt, vbase, offs, fill=()):
    def wr(i):
        k, r = srcs[i // 4]
        reg = (v if k == "v" else a)(r + 4 * (i % 4), 4)
        b, o = offs[i]
        A.ds(f"ds_write_b128 {v(vbase[b])}, {reg} offset:{o}", "red")
        if i == 11:
            arrive(cnt)
    weave(A, [lambda i=i: wr(i) for i in range(12)], list(fill))


def reduce_in(acc, tmp, cnt, mkaddr, offs, between=None):
    tmp = tmp if isinstance(tmp, list) else [tmp, tmp + 16, tmp + 32]
    await_cnt(cnt)
    for sl in (1, 2, 3):
        regs = mkaddr(sl)
        for q in range(4):
            b, o = offs[(sl - 1) * 4 + q]
            A.ds(f"ds_read_b128 {v(tmp[sl-1] + 4*q, 4)}, {v(regs[b])} offset:{o}", ("rd", sl))
    if between:
        between()
    for sl in (1, 2, 3):
        A.wait_lg(("rd", sl))
        for i in range(16):
            A(f"v_add_f32 {v(acc+i)}, {v(acc+i)}, {v(tmp[sl-1] + i)}")


vC8, vC7, vXF, vWQ = 100, 101, 104, 109
SXR = [16, 20, 88, 92, 112, 116, 120]


def image(base, off, voff, desc, sreg_expr, rs, tag, halves_=(0, 1)):
    for h in halves_:
        dma(base, off + h * 1024, voff, desc, (sreg_expr(h * 8 * rs), s(sT0)), tag)


def gaps(mfmas, pieces):
    n, m, done = len(mfmas), len(pieces), 0
    for i, f in enumerate(mfmas):
        f()
        while done < -(-m * (i + 1) // n):
            pieces[done]()
            done += 1


def prologue():
    A(f"""s_cmp_ge_u32 s2, 256
          s_cbranch_scc1 L_end
          s_load_dwordx16 {s(40,16)}, s[0:1], 0
          s_load_dwordx8 {s(56,8)}, s[0:1], 64
          s_load_dwordx2 {s(64,2)}, s[0:1], 96
          s_memrealtime {s(sN,2)}
          {CLOCK + " " + s(98,2) if PROFILE else ""}
          s_getpc_b64 {s(sT2,2)}
          v_lshrrev_b32 {v(vT0)}, 6, v0
          s_lshr_b32 {s(sT0)}, s2, 3
          v_readfirstlane_b32 {s(sW8)}, {v(vT0)}
          v_and_b32 {v(vLANE)}, 63, v0
          v_lshlrev_b32 {v(vT2)}, 7, {v(vLANE)}
          s_and_b32 {s(sT2)}, {s(sT2)}, 0xffffff00""")
    A(f"""s_mul_i32 {s(sT4)}, {s(sT0)}, 26
          s_lshr_b32 {s(sT4)}, {s(sT4)}, 8
          s_mul_i32 {s(sT4)}, {s(sT4)}, 10
          s_sub_u32 {s(sT4)}, {s(sT0)}, {s(sT4)}
          s_lshl_b32 {s(sT4)}, {s(sT4)}, 3
          s_add_u32 {s(sT4)}, {s(sT4)}, {s(sW8)}
          s_lshl_b32 {s(sT4)}, {s(sT4)}, 9
          v_add_u32 {v(vT1)}, {s(sT4)}, {v(vT2)}
          v_min_u32 {v(vT1)}, L_code_end-{NAME}_kernel-4, {v(vT1)}
          s_mov_b64 exec, 15""")
    if "nopf" not in OPT:
        A.vmem(f"global_load_dword {a(124)}, {v(vT1)}, {s(sT2,2)}", "pf")
    A("s_mov_b64 exec, -1")
    nk = int(OPT.get("nk", 8))
    if nk == 8:
        A(f"""s_and_b32 {s(sT1)}, {s(sT0)}, 3
              s_and_b32 {s(sTB)}, s2, 7
              s_lshl_b32 {s(sTB)}, {s(sTB)}, 2
              s_add_u32 {s(sTB)}, {s(sTB)}, {s(sT1)}
              s_lshr_b32 {s(sCB)}, {s(sT0)}, 2""")
    else:
        per = 32 // nk
        perm = [int(c) for c in OPT.get("perm", "40516273")]
        A(f"""s_and_b32 {s(sT1)}, s2, 7
              s_lshl_b32 {s(sT1)}, {s(sT1)}, 2
              s_lshr_b32 {s(sT1)}, {sum(p << (4 * i) for i, p in enumerate(perm))}, {s(sT1)}
              s_and_b32 {s(sT1)}, {s(sT1)}, 7
              s_min_u32 {s(sT2)}, {s(sT1)}, {nk - 1}
              s_add_u32 {s(sT2)}, {s(sT2)}, 1
              s_mul_i32 {s(sT2)}, {s(sT2)}, {per}
              s_lshl_b32 {s(sT3)}, {s(sT1)}, 5
              s_add_u32 {s(sT3)}, {s(sT3)}, {s(sT0)}
              s_sub_u32 {s(sT3)}, {s(sT3)}, {s(sT2)}
              s_mul_i32 {s(sTB)}, {s(sT3)}, 9363
              s_lshr_b32 {s(sTB)}, {s(sTB)}, 16
              s_mul_i32 {s(sCB)}, {s(sTB)}, 7
              s_sub_u32 {s(sCB)}, {s(sT3)}, {s(sCB)}
              s_add_u32 {s(sCB)}, {s(sCB)}, 1
              s_mul_i32 {s(sT2)}, {s(sT1)}, {per}
              s_add_u32 {s(sT2)}, {s(sT2)}, {s(sT0)}
              s_cmp_lt_u32 {s(sT1)}, {nk}
              s_cselect_b32 {s(sT1)}, {per}, 0
              s_cmp_lt_u32 {s(sT0)}, {s(sT1)}
              s_cselect_b32 {s(sTB)}, {s(sT2)}, {s(sTB)}
              s_cselect_b32 {s(sCB)}, 0, {s(sCB)}
              s_and_b32 {s(sT1)}, {s(sTB)}, 3""")
    A(f"""v_lshlrev_b32 {v(vL16)}, 4, {v(vLANE)}
          v_lshrrev_b32 {v(vC8)}, 3, {v(vLANE)}
          v_lshrrev_b32 {v(vT0)}, 2, {v(vLANE)}
          v_and_b32 {v(vT0)}, 4, {v(vT0)}
          v_xor_b32 {v(vT0)}, {v(vT0)}, {v(vLANE)}
          v_and_b32 {v(vT0)}, 7, {v(vT0)}
          v_lshlrev_b32 {v(vC7)}, 4, {v(vT0)}""")
    A(f"""s_lshl_b32 {s(sT1)}, {s(sT1)}, 1
          s_add_u32 {s(sT1)}, {s(sT1)}, {s(sW8)}
          s_and_b32 {s(sT1)}, {s(sT1)}, 7
          s_lshl_b32 {s(sT4)}, {s(sT1)}, 10
          s_lshl_b32 {s(sT5)}, {s(sT1)}, 3
          v_add_u32 {v(vT1)}, {s(sT5)}, {v(vC8)}
          s_lshl_b32 {s(sT2)}, {s(sCB)}, 7
          s_sub_u32 {s(sT2)}, {s(sT2)}, 128
          v_mul_u32_u24 {v(vT3)}, 896, {v(vT1)}
          v_add3_u32 {v(103)}, {v(vT3)}, {v(vC7)}, {s(sT2)}
          s_and_b32 {s(sW)}, {s(sW8)}, 3
          s_mul_i32 {s(sT1)}, {s(sW)}, 7168
          v_add_u32 {v(vT3)}, {s(sT1)}, {v(vL16)}
          s_mul_i32 {s(sT1)}, {s(sW8)}, 7168
          s_cmp_eq_u32 {s(sCB)}, 0
          s_cselect_b64 vcc, -1, 0
          s_cselect_b32 {s(sT1)}, {s(sT1)}, {s(sT4)}
          s_mov_b32 {s(sT2)}, 1024
          s_cselect_b32 {s(sT3)}, {s(sT2)}, {64 * 896}
          s_cselect_b32 {s(sT5)}, {s(sT2)}, 8192
          v_cndmask_b32 {v(103)}, {v(103)}, {v(vT3)}, vcc
          s_add_u32 m0, {s(sT1)}, {LA}""")
    A(f"""s_lshl_b32 {s(sB1)}, {s(sTB)}, 3
          s_add_u32 {s(sB1)}, {s(sB1)}, {s(sCB)}
          s_lshl_b32 {s(sB1)}, {s(sB1)}, 3
          s_add_u32 {s(sB1)}, {s(sB1)}, {s(sW8)}
          s_mul_i32 {s(sB1)}, {s(sB1)}, 896
          s_mul_i32 {s(sB4)}, {s(sTB)}, 7
          s_add_u32 {s(sB4)}, {s(sB4)}, {s(sW8)}
          s_mul_i32 {s(sB4)}, {s(sB4)}, {2 * 896}
          s_mul_i32 {s(sT0)}, {s(sCB)}, 112
          s_add_u32 {s(sB4)}, {s(sB4)}, {s(sT0)}
          s_cmp_eq_u32 {s(sW8)}, 7
          s_cselect_b32 {s(sB4)}, {OOB}, {s(sB4)}
          v_lshrrev_b32 {v(102)}, 1, {v(vLANE)}
          v_mul_u32_u24 {v(102)}, 896, {v(102)}
          v_and_b32 {v(vT3)}, 1, {v(vLANE)}
          v_mul_u32_u24 {v(vT3)}, 120, {v(vT3)}
          v_add_u32 {v(102)}, {v(102)}, {v(vT3)}
          s_mov_b32 {s(SX+2)}, 1835008
          s_mov_b32 {s(SX+3)}, 0x20000
          s_mov_b32 {s(SQ+2)}, 401408
          s_mov_b32 {s(SQ+3)}, 0x20000
          s_mov_b32 {s(SA+3)}, 0x20000
          s_mov_b32 {s(SA+2)}, 25088
          s_cmp_eq_u32 {s(sCB)}, 0
          s_cselect_b32 {s(SA+2)}, {s(SA+2)}, 401408
          s_mov_b32 {s(sT0)}, 0
          s_cmp_lt_u32 {s(sW8)}, 4
          s_waitcnt lgkmcnt(0)
          s_cselect_b64 {s(SA,2)}, {s(P_WK,2)}, {s(P_WV,2)}
          s_cmp_eq_u32 {s(sCB)}, 0
          s_cselect_b64 {s(SA,2)}, {s(SA,2)}, {s(P_W1,2)}
          s_mov_b64 {s(SX,2)}, {s(P_X,2)}
          s_mov_b64 {s(SQ,2)}, {s(P_WQ,2)}""")
    early_stamp(1)
    if "nopre" not in OPT:
        A("s_mov_b64 exec, 0x7f")
        A.vmem(f"buffer_load_dword {a(126)}, {v(vT2)}, {s(SX,4)}, {s(sB1)} offen", "pre")
        A("s_mov_b64 exec, 15")
        A.vmem(f"buffer_load_dword {a(125)}, {v(102)}, {s(SQ,4)}, {s(sB4)} offen", "pre")
        A("s_mov_b64 exec, -1")
    for n in range(7):
        if n:
            A(f"s_add_u32 m0, m0, {s(sT5)}\ns_add_u32 {s(sT0)}, {s(sT0)}, {s(sT3)}")
        A.vmem(f"buffer_load_dwordx4 {v(103)}, {s(SA,4)}, {s(sT0)} offen lds", "WA")
    early_stamp(2)
    A(f"""s_lshl_b32 {s(sT0)}, {s(sTB)}, 6
          v_add_u32 {v(vT1)}, {s(sT0)}, {v(vT1)}
          v_mul_u32_u24 {v(vT2)}, 896, {v(vT1)}
          v_lshrrev_b32 {v(vT1)}, 1, {v(vT1)}
          v_xor_b32 {v(vT1)}, {v(vT1)}, {v(vLANE)}
          v_and_b32 {v(vT1)}, 7, {v(vT1)}
          v_lshl_add_u32 {v(vWQ)}, {v(vT1)}, 4, {v(vT2)}
          s_and_b32 {s(sTT)}, {s(sW8)}, 1
          s_lshr_b32 {s(sP)}, {s(sW)}, 1""")
    if PROFILE:
        A(f"s_mov_b32 {s(sTS)}, s98")
        stamps["n"] = 1
    srd(SW, P_WS, WS_SIZE)
    srd(SD, P_DBG, 256)
    A(f"""s_cmp_lg_u32 {s(sW8)}, 0
          s_cbranch_scc1 L_nz
          v_lshlrev_b32 {v(vT0)}, 2, {v(vLANE)}
          v_add_u32 {v(vT0)}, {LS}, {v(vT0)}
          v_mov_b32 {v(vT1)}, 0
          ds_write_b32 {v(vT0)}, {v(vT1)}
          s_waitcnt lgkmcnt(0)
          s_cmp_lg_u32 s2, 0
          s_cbranch_scc1 L_nz
          s_or_b32 {s(sN)}, {s(sN)}, 1
          v_mov_b32 {v(vT2)}, {s(sN)}
          v_mov_b32 {v(vT3)}, {s(sN+1)}
          s_mov_b64 exec, 1
          buffer_store_dwordx2 {v(vT2,2)}, {v(vT1)}, {s(SD,4)}, 0 offen sc1
          s_mov_b64 exec, -1""")
    A.label("L_nz")
    A(f"""s_lshl_b32 {s(sGT)}, {s(sTB)}, 1
          s_add_u32 {s(sGT)}, {s(sGT)}, {s(sTT)}
          s_mov_b32 {s(sHI)}, 0
          s_mov_b32 {s(sHI+1)}, -1
          s_getreg_b32 {s(sXC)}, hwreg(HW_REG_XCC_ID, 0, 4)
          s_mov_b32 {s(sLOC)}, 0""")
    A(f"""v_bfe_u32 {v(vT0)}, {v(vLANE)}, 2, 2
          v_lshlrev_b32 {v(vT0)}, 7, {v(vT0)}
          v_lshrrev_b32 {v(vT1)}, 5, {v(vLANE)}
          v_lshl_add_u32 {v(vTRN)}, {v(vT1)}, 10, {v(vT0)}
          v_lshl_add_u32 {v(vTRD)}, {v(vT1)}, 9, {v(vT0)}
          v_bfe_u32 {v(vT0)}, {v(vLANE)}, 4, 1
          v_and_b32 {v(vT2)}, 3, {v(vLANE)}
          v_lshlrev_b32 {v(vT2)}, 3, {v(vT2)}
          v_lshl_add_u32 {v(103)}, {v(vT0)}, 5, {v(vT2)}
          v_bfe_u32 {v(vT0)}, {v(vLANE)}, 3, 1
          v_lshlrev_b32 {v(102)}, 6, {v(vT0)}""")
    A(f"""v_and_b32 {v(vT3)}, 31, {v(vLANE)}
          s_lshl_b32 {s(sT0)}, {s(sTT)}, 5
          v_add_u32 {v(vT0)}, {s(sT0)}, {v(vT3)}
          v_bfe_u32 {v(vT2)}, {v(vT0)}, 1, 3
          v_lshlrev_b32 {v(vT0)}, 7, {v(vT0)}
          v_xor_b32 {v(vT2)}, {v(vT2)}, {v(vT1)}
          v_lshl_add_u32 {v(vXF)}, {v(vT2)}, 4, {v(vT0)}
          v_xor_b32 {v(vXF+1)}, 32, {v(vXF)}
          v_xor_b32 {v(vXF+2)}, 64, {v(vXF)}
          v_xor_b32 {v(vXF+3)}, 96, {v(vXF)}
          s_lshr_b32 {s(sT1)}, {s(sW8)}, 1
          s_lshl_b32 {s(sT0)}, {s(sT1)}, 5
          v_xor_b32 {v(108)}, {s(sT0)}, {v(vXF)}
          s_lshl_b32 {s(sT0)}, {s(sTT)}, 10
          s_add_u32 {s(sT0)}, {s(sT0)}, {L_STAT}
          v_lshl_add_u32 {v(110)}, {v(vT3)}, 3, {s(sT0)}
          s_lshl_b32 {s(sT0)}, {s(sT1)}, 8
          v_add_u32 {v(111)}, {s(sT0)}, {v(110)}
          v_mov_b32 {v(30)}, 0
          v_mov_b32 {v(31)}, 0
          s_mov_b32 {s(sT5)}, {ONES}""")
    for i in range(4):
        A(f"v_mov_b32 {v(96+i)}, {ONES}")
    A(f"""s_lshl_b32 {s(sT0)}, s2, 3
          s_add_u32 {s(sT0)}, {s(sT0)}, {s(sW8)}
          s_cmp_ge_u32 {s(sT0)}, {392 if OPT.get("tw", "23") == "23" else 4096}
          s_cselect_b64 {s(SA,2)}, {s(P_W3,2)}, {s(P_W2,2)}
          s_mov_b32 {s(SA+2)}, 401408
          s_cselect_b32 {s(SA+2)}, 1605632, {s(SA+2)}
          s_cselect_b32 {s(sT1)}, 392, 0
          s_sub_u32 {s(sT0)}, {s(sT0)}, {s(sT1)}
          s_lshl_b32 {s(sRG)}, {s(sT0)}, {10 if OPT.get("tw", "23") == "23" else 8}""")
    A(f"""s_lshl_b32 {s(sT0)}, {s(sP)}, 6
          v_xor_b32 {v(vT0)}, {v(103)}, {v(102)}
          v_xor_b32 {v(vT0)}, {s(sT0)}, {v(vT0)}
          v_add_u32 {v(vT0)}, {v(vT0)}, {v(vTRN)}
          v_lshrrev_b32 {v(vT1)}, 7, {v(vTRN)}
          v_mul_u32_u24 {v(vT1)}, 56, {v(vT1)}
          s_mul_i32 {s(sT0)}, {s(sP)}, 28672
          v_add3_u32 {v(vT1)}, {v(vT1)}, {v(103)}, {s(sT0)}
          s_cmp_eq_u32 {s(sCB)}, 0
          s_cselect_b64 vcc, -1, 0
          v_cndmask_b32 {v(vT0)}, {v(vT0)}, {v(vT1)}, vcc
          v_add_u32 {v(29)}, {LA}, {v(vT0)}""")
    early_stamp(3)
    barrier()
    for kb in range(7):
        dma(sT4, LX + kb * 8192, vWQ, SX, (None, "0"), "X", imm=kb * 128)
    touch("x")
    early_stamp(4)
    A.wait_vm("WA")
    barrier()
    early_stamp(5)
    A(f"s_cmp_ge_u32 {s(sW8)}, 4\ns_cbranch_scc1 L_att")
    return list(A.vm)


def touch(where):
    if OPT.get("tat", "p1") != where:
        return
    A(f"v_lshlrev_b32 {v(vT0)}, 7, {v(vLANE)}\ns_mov_b64 exec, {255 if OPT.get('tw', '23') == '23' else 3}")
    A.vmem(f"buffer_load_dword {a(127)}, {v(vT0)}, {s(SA,4)}, {s(sRG)} offen", "t")
    A("s_mov_b64 exec, -1")


def stat_part(between):
    for j in range(7):
        A.ds(f"ds_read_b128 {v(SXR[j],4)}, {v(108)} offset:{j*8192}", ("sx", j))
    between()
    for j in range(7):
        A.wait_lg(("sx", j))
        for i in range(4):
            r = SXR[j] + i
            A(f"v_dot2c_f32_bf16 {v(30)}, {s(sT5)}, {v(r)}\nv_dot2c_f32_bf16 {v(31)}, {v(r)}, {v(r)}")
    A("s_nop 2")
    halves(30, vT2)
    halves(31, vT3)
    A(f"v_add_f32 {v(30)}, {v(30)}, {v(vT2)}\nv_add_f32 {v(31)}, {v(31)}, {v(vT3)}")
    A.ds(f"ds_write_b64 {v(111)}, {v(30,2)}", "statw")
    A.drain_lg()


def barrier():
    A("s_barrier")


def stat_read():
    for q in range(4):
        A.ds(f"ds_read_b64 {v(112+2*q,2)}, {v(110)} offset:{q*256}", "stat")


def stat_fin(vM, vVar):
    A.wait_lg("stat")
    for op in stat_fin_ops(vM, vVar):
        A(op)


def stat_fin_ops(vM, vVar):
    return (f"""v_add_f32 {v(112)}, {v(112)}, {v(114)}
          v_add_f32 {v(113)}, {v(113)}, {v(115)}
          v_add_f32 {v(116)}, {v(116)}, {v(118)}
          v_add_f32 {v(117)}, {v(117)}, {v(119)}
          v_add_f32 {v(112)}, {v(112)}, {v(116)}
          v_add_f32 {v(113)}, {v(113)}, {v(117)}
          v_mul_f32 {v(vM)}, {f32(1/448)}, {v(112)}
          v_mul_f32 {v(112)}, {v(vM)}, {v(vM)}
          v_mul_f32 {v(113)}, {f32(1/448)}, {v(113)}
          v_sub_f32 {v(113)}, {v(113)}, {v(112)}
          v_max_f32 {v(vVar)}, 0, {v(113)}""").split("\n")


def own_slot(base):
    return (f"s_lshl_b32 {s(sT0)}, {s(sTB)}, 3\ns_add_u32 {s(sT0)}, {s(sT0)}, {s(sCB)}\n"
            f"s_lshl_b32 {s(sT0)}, {s(sT0)}, 7\ns_add_u32 {s(sT0)}, {s(sT0)}, {base}")


late = []


def mlp(vm_entry):
    A.vm = list(vm_entry)
    vXD, vX1P, vW, vW3, vM, vR, vWA = 8, 16, 24, 26, 27, 28, 29
    vRA, vRB = [2, 3], [25, 31]
    acc, cs, ring, ones = 32, 48, 64, 96
    xnear, hnear = "x" in OPT.get("near", "xho"), "h" in OPT.get("near", "xho")
    A("s_setprio " + OPT.get("prio", "2"))
    vXA = 124
    setup = []
    for r, p, n in ((S2, P_W2, 401408), (SQ, P_W3, 1605632), (S4, P_W4, 1605632), (SO, P_WO, 401408), (SOUT, P_OUT, 1835008)):
        setup += [f"s_mov_b64 {s(r,2)}, {s(p,2)}", f"s_mov_b32 {s(r+2)}, {n}", f"s_mov_b32 {s(r+3)}, 0x20000"]
    setup += f"""s_max_u32 {s(sT1)}, {s(sCB)}, 1
          s_sub_u32 {s(sT1)}, {s(sT1)}, 1
          s_lshl_b32 {s(sT4)}, {s(sT1)}, 1
          s_add_u32 {s(sT4)}, {s(sT4)}, {s(sP)}
          s_mul_i32 {s(sPA)}, {s(sW)}, 14336
          s_mul_i32 {s(sPB)}, {s(sW)}, 11264
          s_add_u32 {s(sPB)}, {s(sPB)}, {LQ}
          s_mul_i32 {s(sB1)}, {s(sW)}, {112*896}
          s_mul_i32 {s(sB4)}, {s(sW)}, {448*896}
          s_add_u32 {s(sR)}, {s(sTB)}, {s(sCB)}
          s_and_b32 {s(sR)}, {s(sR)}, 3
          v_mul_u32_u24 {v(vT0)}, 896, {v(vC8)}
          s_lshl_b32 {s(sT0)}, {s(sT1)}, 7
          v_add3_u32 {v(vW)}, {v(vT0)}, {v(vC7)}, {s(sT0)}
          v_mul_u32_u24 {v(vT0)}, 3584, {v(vC8)}
          s_lshl_b32 {s(sT0)}, {s(sT1)}, 9
          s_lshl_b32 {s(sT2)}, {s(sW)}, 7
          s_add_u32 {s(sT0)}, {s(sT0)}, {s(sT2)}
          v_add3_u32 {v(vW3)}, {v(vT0)}, {v(vC7)}, {s(sT0)}
          s_lshl_b32 {s(sT0)}, {s(sP)}, 6
          v_xor_b32 {v(103)}, {v(103)}, {v(102)}
          v_xor_b32 {v(102)}, {s(sT0)}, {v(103)}
          s_lshl_b32 {s(sT3)}, {s(sT1)}, 13
          v_lshrrev_b32 {v(vT1)}, 5, {v(vLANE)}
          v_lshlrev_b32 {v(vT2)}, 4, {v(vT1)}
          v_xor_b32 {v(vXA)}, {v(vXF)}, {v(vT2)}
          v_xor_b32 {v(vXA)}, {s(sT0)}, {v(vXA)}
          v_lshl_add_u32 {v(vXA)}, {v(vT1)}, 3, {v(vXA)}
          v_add_u32 {v(vXA)}, {s(sT3)}, {v(vXA)}
          v_xor_b32 {v(vXA+1)}, 16, {v(vXA)}
          v_xor_b32 {v(vXA+2)}, 32, {v(vXA)}
          v_xor_b32 {v(vXA+3)}, 48, {v(vXA)}""".split("\n")

    def colsums(kstride, second):
        def step(ks):
            if ks < 28:
                tr(("a", 4 * ks), vWA, ks * kstride, second, ("w", ks))
            if ks >= 4:
                A.wait_lg(("w", ks - 4))
                mfma(v(cs, 16), a(4 * (ks - 4), 4), v(ones, 4), 0 if ks == 4 else None)
        weave(A, [lambda ks=ks: step(ks) for ks in range(32)], [lambda t=t: A(t) for t in setup])

    A(f"s_cmp_eq_u32 {s(sCB)}, 0\ns_cbranch_scc1 L_cskv")
    colsums(2048, 512)
    A.label("L_csdone")
    late.append(lambda: (A.label("L_cskv"), colsums(896, 224), A("s_branch L_csdone")))
    early_stamp(6)
    A.wait_vm("X")
    barrier()
    early_dump()
    stamp()
    NX = 6

    def xr(ks):
        A.ds(f"ds_read_b128 {v(ring + 4 * (ks % NX), 4)}, {v(vXF + (ks & 3))} offset:{(ks >> 2) * 8192}", ("x", ks))

    def first():
        for ks in range(NX - 1):
            xr(ks)
        for g in range(4):
            A.ds(f"ds_read_b64 {v(vXD+2*g,2)}, {v(vXA+g)}", "xd")
    stat_part(first)
    barrier()
    vC1g, vC2g, vRI, vR2 = 120, 121, 122, 123
    ne2 = int(OPT.get("ne2", 0))

    def w2dma(j, hs=(0, 1)):
        base, off = (sT3, LA + 24576 + j * 2048) if j < ne2 else (sPA, j * 2048)
        image(base, off, vW, S2, lambda e: f"s_add_u32 {s(sT0)}, {s(sB1)}, {j * 16 * 896 + e}", 896, "W2", hs)
    A(f"s_lshl_b32 {s(sT3)}, {s(sW)}, 13")
    fin = stat_fin_ops(vM, vR) + f"""v_add_f32 {v(vT0)}, {f32(EPS)}, {v(vR)}
          v_rsq_f32 {v(vT1)}, {v(vT0)}
          v_mov_b32 {v(vT3)}, {f32(EPS)}
          v_mul_f32 {v(vT2)}, {v(vT1)}, {v(vT1)}
          v_fma_f32 {v(vT2)}, {v(vT2)}, {v(vR)}, {v(vT3)}
          v_rsq_f32 {v(vT2)}, {v(vT2)}
          v_mov_b32 {v(vR)}, {v(vT1)}
          v_mul_f32 {v(vR2)}, {v(vT1)}, {v(vT2)}
          v_rcp_f32 {v(vRI)}, {v(vR2)}
          v_mul_f32 {v(vC1g)}, {f32(GC1)}, {v(vR2)}
          v_mul_f32 {v(vC2g)}, {v(vR2)}, {v(vR2)}
          v_mul_f32 {v(vC2g)}, {v(vC2g)}, {v(vR2)}
          v_mul_f32 {v(vC2g)}, {f32(GC2)}, {v(vC2g)}""".split("\n")
    fin += [f"v_mul_f32 {v(cs+i)}, {v(cs+i)}, {v(vM)}" for i in range(16)]
    for ks in range(28):
        if ks + NX - 1 < 28:
            xr(ks + NX - 1)
        if ks == 0:
            stat_read()
            nonce_issue(30)
        A.wait_lg(("x", ks))
        mfma(v(acc, 16), a(4 * ks, 4), v(ring + 4 * (ks % NX), 4), 0 if ks == 0 else None)
        if ks == 1:
            touch("p1")
        if 3 <= ks < 3 + 2 * ne2:
            skip = A.newlabel("w2")
            A(f"s_cmp_eq_u32 {s(sCB)}, 0\ns_cbranch_scc1 {skip}")
            w2dma((ks - 3) >> 1, ((ks - 3) & 1,))
            A.label(skip)
        if ks == 5:
            A.wait_lg("stat")
        if ks >= 5:
            for _ in range(3):
                if fin:
                    A(fin.pop(0))
    assert not fin
    arrive(C_PA)
    vm_kv = [t for t in A.vm if t != "W2"]
    A(f"s_cmp_eq_u32 {s(sCB)}, 0\ns_cbranch_scc1 L_kv\ns_nop 4")
    for i in range(16):
        A(f"v_sub_f32 {v(acc+i)}, {v(acc+i)}, {v(cs+i)}")
    stamp()
    pk = 64
    vHS = 74
    for i in range(8):
        for op in gelu_ops(acc + 2 * i, 72, pk + i, vC1g, vC2g, vRI):
            A(op)
        if i == 2:
            A(f"""v_and_b32 {v(vT0)}, 31, {v(vLANE)}
                  s_lshl_b32 {s(sT0)}, {s(sGT)}, 5
                  v_add_u32 {v(vT0)}, {s(sT0)}, {v(vT0)}
                  v_lshrrev_b32 {v(vT1)}, 5, {v(vLANE)}
                  v_lshlrev_b32 {v(vT1)}, 15, {v(vT1)}
                  v_lshl_add_u32 {v(vHS)}, {v(vT0)}, 4, {v(vT1)}
                  s_lshl_b32 {s(sT0)}, {s(sT4)}, 17
                  s_add_u32 {s(sT0)}, {s(sT0)}, {HB}
                  s_add_u32 {s(sT1)}, {s(sT0)}, 0x10000""")
        if i in (3, 7):
            A.vmem(f"buffer_store_dwordx4 {v(pk+(i&4),4)}, {v(vHS)}, {s(SW,4)}, {s(sT0 if i == 3 else sT1)} offen sc1", "hst")
    await_cnt(C_PA, 8)
    for j in range(ne2, 7):
        w2dma(j)
    nonce_take(30)
    signal(N_H, own_slot(FH), "hst")
    stamp()
    A(f"""s_add_u32 {s(sT0)}, {s(sT3)}, {LA + 24576}
          v_add3_u32 {v(32)}, {v(vTRD)}, {v(102)}, {s(sT0)}
          v_xor_b32 {v(33)}, 64, {v(32)}
          v_add_u32 {v(vT0)}, {s(sPA)}, {v(vTRD)}
          v_add_u32 {v(vT1)}, {s(sPB)}, {v(vTRD)}
          v_add_u32 {v(vRA[0])}, {v(vT0)}, {v(102)}
          v_xor_b32 {v(vRA[1])}, 64, {v(vRA[0])}
          v_add_u32 {v(vRB[0])}, {v(vT1)}, {v(102)}
          v_xor_b32 {v(vRB[1])}, 64, {v(vRB[0])}""")
    A.wait_vm("W2")
    for j in range(7):
        for b in range(2):
            tr(("a", 8 * j + 4 * b), 32 + b if j < ne2 else vRA[b], j * 2048, 1024, "w2")
    vH = 29
    A(f"""s_add_u32 {s(sT0)}, {s(sP)}, 1
          s_sub_u32 {s(sT1)}, 0, {s(sT0)}
          s_cmp_eq_u32 {s(sTT)}, 0
          s_cselect_b32 {s(sT0)}, {s(sT1)}, {s(sT0)}
          s_lshl_b32 {s(sT1)}, {s(sGT)}, 5
          s_add_u32 {s(sT1)}, {s(sT1)}, {s(sT0)}
          s_xor_b32 {s(sT2)}, {s(sGT)}, 1
          s_lshl_b32 {s(sT2)}, {s(sT2)}, 5
          s_add_u32 {s(sT2)}, {s(sT2)}, {s(sT0)}
          v_and_b32 {v(vT0)}, 31, {v(vLANE)}
          v_lshrrev_b32 {v(vT1)}, 5, {v(vLANE)}
          v_lshlrev_b32 {v(vT1)}, 15, {v(vT1)}
          v_mov_b32 {v(vT3)}, {OOB}""")
    for sl, sr in ((0, sT1), (1, sT2)):
        A(f"""v_add_u32 {v(vT2)}, {s(sr)}, {v(vT0)}
              v_cmp_gt_u32 vcc, 2048, {v(vT2)}
              v_lshl_add_u32 {v(vT2)}, {v(vT2)}, 4, {v(vT1)}
              s_nop 0
              v_cndmask_b32 {v(vH+sl)}, {v(vT3)}, {v(vT2)}, vcc""")

    def rot7(reg, u, scale, base):
        if u == 0:
            A(f"s_mul_i32 {s(reg)}, {s(sR)}, {2 * scale}")
        else:
            A(f"""s_add_u32 {s(reg)}, {s(reg)}, {scale}
                  s_cmp_ge_u32 {s(reg)}, {7 * scale}
                  s_cselect_b32 {s(sT0)}, {7 * scale}, 0
                  s_sub_u32 {s(reg)}, {s(reg)}, {s(sT0)}""")

    def sdma(n, hs=(0, 1)):
        base, off = ring_addr(n % NRING)
        if n < 28:
            if n % 7 == 0 and 0 in hs:
                A(f"""s_add_u32 {s(sRG)}, {s(sR)}, {n // 7}
                      s_and_b32 {s(sRG)}, {s(sRG)}, 3
                      s_mul_i32 {s(sRG)}, {s(sRG)}, {7 * 16 * 3584}""")
            image(base, off, vW3, SQ, lambda e: f"s_add_u32 {s(sT0)}, {s(sRG)}, {(n % 7) * 16 * 3584 + e}", 3584, ("S", n), hs)
        elif n < 56:
            p = n - 28
            if p % 2 == 0 and 0 in hs:
                rot7(sRG, (p % 14) // 2, 64 * 896, None)
                A(f"s_add_u32 {s(sT3)}, {s(sRG)}, {s(sB4)}")
            image(base, off, vW, S4, lambda e: f"s_add_u32 {s(sT0)}, {s(sT3)}, {(2 * (p // 14) + p % 2) * 16 * 896 + e}", 896, ("S", n), hs)
        else:
            k = n - 56
            image(base, off, vW, SO, lambda e: f"s_add_u32 {s(sT0)}, {s(sB1)}, {((k >> 1) * 28 + (k & 1) * 16) * 896 + e}", 896, ("S", n), hs)

    def sreg(n, b):
        return 8 * (n % 16) + 4 * b

    def sread(n, bs=(0, 1)):
        base, off = ring_addr(n % NRING)
        if n == 28 and 0 in bs:
            flip()
        A.wait_vm(("S", n))
        for b in bs:
            tr(("a", sreg(n, b)), (vRA if base == sPA else vRB)[b], off, 1024, ("s", n))

    def refill(n, hs=(0, 1)):
        if n < 64:
            A.wait_lg(("s", n - NRING))
            sdma(n, hs)

    def sread_p(n):
        return [lambda: sread(n, (0,)), lambda: sread(n, (1,))]

    def refill_p(n):
        return [lambda: refill(n, (0,)), lambda: refill(n, (1,))] if n < 64 else []

    def flip():
        A(f"s_lshl_b32 {s(sT0)}, {s(sP)}, 6")
        for r in vRA + vRB:
            A(f"v_xor_b32 {v(r)}, {s(sT0)}, {v(r)}")

    flip()
    early = int(OPT.get("early", 3))
    mid = int(OPT.get("mid", 6))
    A.drain_lg()
    arrive(C_W2)
    for n in range(early):
        sdma(n)
    cut("h")

    def setup_h():
        A(f"""v_lshrrev_b32 {v(vT0)}, 3, {v(vLANE)}
              s_sub_u32 {s(sT0)}, {s(sTB)}, 1
              v_add_u32 {v(vT0)}, {s(sT0)}, {v(vT0)}
              v_cmp_le_u32 vcc, 32, {v(vT0)}
              s_lshl_b32 {s(sT0)}, {s(sT0)}, 10
              s_add_u32 {s(sT0)}, {s(sT0)}, {FH}
              v_lshlrev_b32 {v(vT1)}, 7, {v(vLANE)}
              v_add_u32 {v(vT1)}, {s(sT0)}, {v(vT1)}
              s_mov_b32 {s(sINV)}, 0xff010101
              s_mov_b32 {s(sINV+1)}, -1
              s_or_b64 {s(sINV,2)}, {s(sINV,2)}, vcc""")
        lanes_to(vT1)

    gate(G_H, setup_h, 32, payload=lambda: (A(f"s_mov_b32 {s(sT2)}, 0xfe00"), note_die(34)))
    read_mode()
    if "hold" in OPT:
        await_cnt(G_K, 1)
    stamp()
    hf = 32
    A(f"s_mul_i32 {s(sT5)}, {s(sW)}, {7 << 16}\ns_add_u32 {s(sT5)}, {s(sT5)}, {HB}")
    for j in range(7):
        if j:
            A(f"s_add_u32 {s(sT5)}, {s(sT5)}, 0x10000")
        for sl in range(2):
            A.vmem(f"buffer_load_dwordx4 {v(hf + 8*j + 4*sl, 4)}, {v(vH+sl)}, {s(SW,4)}, {s(sT5)} offen sc1", ("h", j))
    await_cnt(C_QD)
    await_cnt(C_W2)
    acc0, vRW = 104, 120
    accs = [v(acc0, 16), a(64, 16), a(80, 16), a(96, 16)]
    A(f"s_add_u32 {s(sT0)}, {s(sPA)}, {LA}\nv_add_u32 {v(vRW)}, {s(sT0)}, {v(vL16)}\nv_mul_f32 {v(vM)}, {v(vM)}, {v(vR)}")
    for j in range(7):
        A.wait_vm(("h", j))
        for sl in (1, 2, 3, 0):
            mfma(accs[sl], a(8 * j + 4 * (sl >> 1), 4), v(hf + 8 * j + 4 * (sl & 1), 4), 0 if j == 0 else None)
    sdma(early)
    A("s_nop 3")
    offs1 = [(0, i * 1024) for i in range(12)]
    reduce_out([("a", 64), ("a", 80), ("a", 96)], C_R1, [vRW], offs1, [lambda n=n: sdma(n) for n in range(early + 1, early + mid)])

    def mk1(sl):
        A(f"""s_xor_b32 {s(sT0)}, {s(sW)}, {sl}
              s_mul_i32 {s(sT0)}, {s(sT0)}, 14336
              s_add_u32 {s(sT0)}, {s(sT0)}, {LA}
              v_add_u32 {v(vRW+sl)}, {s(sT0)}, {v(vL16)}""")
        return [vRW + sl]
    for i in range(8):
        A(f"""v_lshlrev_b32 {v(88)}, 16, {v(vXD+i)}
              v_and_b32 {v(89)}, 0xffff0000, {v(vXD+i)}
              v_fma_f32 {v(88)}, {v(88)}, {v(vR)}, -{v(vM)}
              v_fma_f32 {v(89)}, {v(89)}, {v(vR)}, -{v(vM)}
              v_add_f32 {v(acc0+2*i)}, {v(acc0+2*i)}, {v(88)}
              v_add_f32 {v(acc0+2*i+1)}, {v(acc0+2*i+1)}, {v(89)}""")
    reduce_in(acc0, 32, C_R1, mk1, offs1)
    for i in range(8):
        A(f"v_cvt_pk_bf16_f32 {v(vX1P+i)}, {v(acc0+2*i)}, {v(acc0+2*i+1)}")
    A(f"""s_mul_i32 {s(sT0)}, {s(sGT)}, 14
          s_add_u32 {s(sT0)}, {s(sT0)}, {s(sT4)}
          s_lshl_b32 {s(sT1)}, {s(sT0)}, 11
          s_add_u32 {s(sT1)}, {s(sT1)}, {X1}
          s_lshl_b32 {s(sT0)}, {s(sT0)}, 8
          s_add_u32 {s(sT2)}, {s(sT0)}, {ST}""")
    hstore([f"buffer_store_dwordx4 {v(vX1P,4)}, {v(vL16)}, {s(SW,4)}, {s(sT1)} offen",
            f"buffer_store_dwordx4 {v(vX1P+4,4)}, {v(vL16)}, {s(SW,4)}, {s(sT1)} offen offset:1024"], "xst", xnear)
    A(f"""v_add_f32 {v(32)}, {v(acc0)}, {v(acc0+1)}
          v_mul_f32 {v(33)}, {v(acc0)}, {v(acc0)}
          v_fma_f32 {v(33)}, {v(acc0+1)}, {v(acc0+1)}, {v(33)}""")
    for i in range(2, 16):
        A(f"v_add_f32 {v(32)}, {v(32)}, {v(acc0+i)}\nv_fma_f32 {v(33)}, {v(acc0+i)}, {v(acc0+i)}, {v(33)}")
    halves(32, 34)
    halves(33, 35)
    A(f"""v_add_f32 {v(32)}, {v(32)}, {v(34)}
          v_add_f32 {v(33)}, {v(33)}, {v(35)}
          v_lshlrev_b32 {v(34)}, 3, {v(vLANE)}
          s_not_b64 exec, {s(sHI,2)}""")
    hstore([f"buffer_store_dwordx2 {v(32,2)}, {v(34)}, {s(SW,4)}, {s(sT2)} offen"], "xst", xnear)
    A("s_mov_b64 exec, -1")
    stamp()
    cut("p2")
    for n in range(early + mid, NRING):
        sdma(n)
    A(f"""s_mul_i32 {s(sK)}, {s(sTB)}, {2 * 112}
          s_lshl_b32 {s(sT0)}, {s(sCB)}, 2
          s_add_u32 {s(sT0)}, {s(sT0)}, {s(sW)}
          s_sub_u32 {s(sT0)}, {s(sT0)}, 4
          s_lshl_b32 {s(sT0)}, {s(sT0)}, 2
          s_add_u32 {s(sK)}, {s(sK)}, {s(sT0)}
          s_lshl_b32 {s(sK)}, {s(sK)}, 10
          s_add_u32 {s(sK)}, {s(sK)}, {HH}""")
    npre = int(OPT.get("npre", 9))
    xsig = int(OPT.get("xsig", 4))
    for n in range(npre + 1):
        if n < npre:
            sread(n)
        if n == xsig:
            signal(N_X, own_slot(FX), "xst", near=xnear)
        if n >= 1:
            refill(n - 1 + NRING)
    stamp()
    cut("w3")

    def setup_x():
        A(f"""s_lshl_b32 {s(sT0)}, {s(sTB)}, 10
              s_add_u32 {s(sT0)}, {s(sT0)}, {FX}
              s_lshl_b32 {s(sT1)}, {s(sCB)}, 9
              s_add_u32 {s(sT1)}, {s(sT1)}, {FC - 512 - 1024}
              v_lshlrev_b32 {v(vT0)}, 7, {v(vLANE)}
              v_add_u32 {v(vT1)}, {s(sT0)}, {v(vT0)}
              v_add_u32 {v(vT0)}, {s(sT1)}, {v(vT0)}
              s_mov_b64 vcc, 0xff
              v_cndmask_b32 {v(vT1)}, {v(vT0)}, {v(vT1)}, vcc
              s_mov_b32 {s(sINV)}, 0xfffff001
              s_mov_b32 {s(sINV+1)}, -1""")
        lanes_to(vT1)
    gate(G_X, setup_x, 32)
    stamp()
    A(f"""s_mul_i32 {s(sT1)}, {s(sTB)}, {56 * 1024}
          s_add_u32 {s(sT1)}, {s(sT1)}, {X1}
          s_lshl_b32 {s(sT3)}, {s(sW)}, 10
          s_mul_i32 {s(sT2)}, {s(sR)}, 7168
          s_add_u32 {s(sT2)}, {s(sT2)}, {s(sT3)}
          s_add_u32 {s(sT3)}, {s(sT3)}, {LA}""")
    for i in range(7):
        if i:
            A(f"""s_add_u32 {s(sT2)}, {s(sT2)}, 4096
                  s_sub_u32 {s(sT5)}, {s(sT2)}, 28672
                  s_cmp_ge_u32 {s(sT2)}, 28672
                  s_cselect_b32 {s(sT2)}, {s(sT5)}, {s(sT2)}""")
        A(f"s_add_u32 {s(sT5)}, {s(sT1)}, {s(sT2)}")
        for tt in range(2):
            dma(sT3, tt * 28672 + i * 4096, vL16, SW, (f"s_add_u32 {s(sT0)}, {s(sT5)}, {tt * 28672}", s(sT0)), ("x1", min(i // 2, 2)), sc=" sc1")
    vB, stt, cst, bring = 27, 32, 28, 40
    A(f"""v_and_b32 {v(vT0)}, 31, {v(vLANE)}
          v_lshrrev_b32 {v(vT1)}, 5, {v(vLANE)}
          v_mul_u32_u24 {v(vT1)}, {14 * 256}, {v(vT1)}
          v_lshl_add_u32 {v(vT2)}, {v(vT0)}, 3, {v(vT1)}
          s_mul_i32 {s(sT1)}, {s(sTB)}, {28 * 256}
          s_lshl_b32 {s(sT2)}, {s(sW)}, 8
          s_add_u32 {s(sT1)}, {s(sT1)}, {s(sT2)}
          s_add_u32 {s(sT1)}, {s(sT1)}, {ST}
          s_cmp_lt_u32 {s(sW)}, 2
          s_cselect_b32 {s(sT2)}, {s(sT1)}, {OOB}
          v_add_u32 {v(vB)}, {LA}, {v(vL16)}""")
    for i in range(4):
        A.vmem(f"buffer_load_dwordx2 {v(stt+2*i,2)}, {v(vT2)}, {s(SW,4)}, {s(sT1 if i < 3 else sT2)} offen offset:{i*1024} sc1", "st")
    A(f"""s_lshl_b32 {s(sT1)}, {s(sCB)}, 2
          s_add_u32 {s(sT1)}, {s(sT1)}, {s(sW)}
          s_lshl_b32 {s(sT1)}, {s(sT1)}, 9
          s_add_u32 {s(sT1)}, {s(sT1)}, {CS - 2048}
          v_lshlrev_b32 {v(vT3)}, 3, {v(vLANE)}""")
    A.vmem(f"buffer_load_dwordx2 {v(cst,2)}, {v(vT3)}, {s(SW,4)}, {s(sT1)} offen sc1", "cs")
    A.wait_vm(("x1", 0))
    arrive(C_XA)
    await_cnt(C_XA)
    acc4 = [64, 80, 96, 112]

    def bread(ks):
        for tt in range(2):
            A.ds(f"ds_read_b128 {v(bring + 8 * (ks % 3) + 4 * tt, 4)}, {v(vB)} offset:{(tt * 28 + ks) * 1024}", ("b", ks))

    lag = int(OPT.get("lag", 7))
    plan, rstep = {}, {}
    nxt = npre
    for ks in range(28):
        while nxt < 44 and len(plan.get(ks, [])) < 2:
            ready = nxt - 16 < ks and (nxt - NRING < npre or rstep[nxt - NRING] + 1 + lag <= ks)
            if not (ready or (nxt < 28 and nxt - 2 <= ks)):
                break
            plan.setdefault(ks, []).append(nxt)
            rstep[nxt] = ks
            nxt += 1
    assert nxt >= 28 and all(n - 16 < ks and (n >= 28 or n >= ks + 1) for ks in plan for n in plan[ks]), plan
    pend = []
    if "p4" in OPT:
        stamp()
    bread(0)
    bread(1)
    for ks in range(28):
        if ks == 2:
            A.wait_vm(("x1", 1))
            arrive(C_XA)
        if ks == 5:
            await_cnt(C_XA, 8)
        if ks == 8:
            A.wait_vm(["cs", "st", ("x1", 2)])
            A(f"""v_add_f32 {v(stt)}, {v(stt)}, {v(stt+2)}
                  v_add_f32 {v(stt+1)}, {v(stt+1)}, {v(stt+3)}
                  v_add_f32 {v(stt+4)}, {v(stt+4)}, {v(stt+6)}
                  v_add_f32 {v(stt+5)}, {v(stt+5)}, {v(stt+7)}
                  s_lshl_b32 {s(sT0)}, {s(sW)}, 9
                  s_add_u32 {s(sT0)}, {s(sT0)}, {L_STAT}
                  v_add_f32 {v(stt)}, {v(stt)}, {v(stt+4)}
                  v_add_f32 {v(stt+1)}, {v(stt+1)}, {v(stt+5)}
                  v_lshl_add_u32 {v(vT2)}, {v(vLANE)}, 3, {s(sT0)}""")
            A.ds(f"ds_write_b64 {v(vT2)}, {v(stt,2)}", "sw")
            arrive(C_XB)
        if ks == 13:
            await_cnt(C_XB)
            A(f"v_lshlrev_b32 {v(vT2)}, 3, {v(vLANE)}\nv_add_u32 {v(vT2)}, {L_STAT}, {v(vT2)}")
            for q in range(4):
                A.ds(f"ds_read_b64 {v(stt+2*q,2)}, {v(vT2)} offset:{q*512}", "sr")
        A.wait_lg([("b", ks), ("s", ks)])
        acts = [lambda: bread(ks + 2)] if ks + 2 < 28 else []
        rd = [f for n in plan.get(ks, []) for f in sread_p(n)]
        rf = [f for n in pend for f in refill_p(n + NRING)]
        while rd or rf:
            acts += rf[:1] + rd[:1]
            rf, rd = rf[1:], rd[1:]
        pend = plan.get(ks, [])
        gaps([lambda t=t: mfma(v(acc4[t], 16), a(sreg(ks, t >> 1), 4), v(bring + 8 * (ks % 3) + 4 * (t & 1), 4), 0 if ks == 0 else None)
              for t in range(4)], acts)
        if "p4" in OPT and ks in (3, 6, 12, 15, 21):
            stamp()
        if ks == 16:
            A.wait_lg("sr")
            A(f"""v_add_f32 {v(stt)}, {v(stt)}, {v(stt+2)}
                  v_add_f32 {v(stt+1)}, {v(stt+1)}, {v(stt+3)}
                  v_add_f32 {v(stt+4)}, {v(stt+4)}, {v(stt+6)}
                  v_add_f32 {v(stt+5)}, {v(stt+5)}, {v(stt+7)}
                  v_add_f32 {v(stt)}, {v(stt)}, {v(stt+4)}
                  v_add_f32 {v(stt+1)}, {v(stt+1)}, {v(stt+5)}
                  v_add_f32 {v(cst)}, {v(cst)}, {v(cst+1)}""")
        if ks == 17:
            A(f"""v_mul_f32 {v(stt)}, {f32(-1/448)}, {v(stt)}
                  v_mul_f32 {v(stt+1)}, {f32(1/448)}, {v(stt+1)}
                  v_mul_f32 {v(stt+2)}, {v(stt)}, {v(stt)}
                  v_sub_f32 {v(stt+1)}, {v(stt+1)}, {v(stt+2)}
                  v_max_f32 {v(stt+1)}, 0, {v(stt+1)}
                  v_add_f32 {v(stt+1)}, {f32(EPS)}, {v(stt+1)}""")
        if ks == 18:
            halves(stt, stt + 2)
            halves(stt + 1, stt + 3)
            halves(cst, cst + 1)
    arrive(C_P4)
    vAE, vBE, gt, gpk = 40, 48, 56, 40
    for nt in range(2):
        c = cst + nt
        A(f"""v_cvt_pk_bf16_f32 {v(vT0)}, {v(c)}, {v(c)}
              v_and_b32 {v(vT1)}, 0xffff0000, {v(vT0)}
              v_sub_f32 {v(vT1)}, {v(c)}, {v(vT1)}
              v_cvt_pk_bf16_f32 {v(vAE+4*nt)}, {v(c)}, {v(vT1)}
              v_and_b32 {v(vAE+4*nt+1)}, 0xffff, {v(vT0)}
              v_mov_b32 {v(vAE+4*nt+2)}, 0
              v_mov_b32 {v(vAE+4*nt+3)}, 0""")
    for tt in range(2):
        m, b = stt + 2 * tt, vBE + 4 * tt
        A(f"""v_cvt_pk_bf16_f32 {v(vT0)}, {v(m)}, {v(m)}
              v_and_b32 {v(vT1)}, 0xffff0000, {v(vT0)}
              v_sub_f32 {v(vT1)}, {v(m)}, {v(vT1)}
              v_cvt_pk_bf16_f32 {v(vT1)}, {v(vT1)}, 0
              v_cndmask_b32 {v(b)}, {v(vT0)}, 0, {s(sHI,2)}
              v_cndmask_b32 {v(b+1)}, {v(vT1)}, 0, {s(sHI,2)}
              v_mov_b32 {v(b+2)}, 0
              v_mov_b32 {v(b+3)}, 0""")
    A("s_nop 0")
    for t in range(4):
        mfma(v(acc4[t], 16), v(vAE + 4 * (t >> 1), 4), v(vBE + 4 * (t & 1), 4))
    kk = [60, 36]
    for tt in range(2):
        e, k = stt + 2 * tt + 1, kk[tt]
        A(f"""v_rsq_f32 {v(vT0)}, {v(e)}
              s_nop 0
              v_mul_f32 {v(k+2)}, {v(e)}, {v(vT0)}
              v_mul_f32 {v(k)}, {f32(GC1)}, {v(vT0)}
              v_mul_f32 {v(k+1)}, {v(vT0)}, {v(vT0)}
              v_mul_f32 {v(k+1)}, {v(k+1)}, {v(vT0)}
              v_mul_f32 {v(k+1)}, {f32(GC2)}, {v(k+1)}""")
    stamp()
    ops = []
    for t in range(4):
        tt, b = t & 1, t >> 1
        for i in range(8):
            def pair(i=i, t=t, tt=tt):
                for op in gelu_ops(acc4[t] + 2 * i, gt, gpk + 8 * (t & 1) + i, kk[tt], kk[tt] + 1, kk[tt] + 2):
                    A(op)
            ops.append(pair)
            if i in (3, 7):
                def st(c=i >> 2, t=t, tt=tt, b=b):
                    A(f"s_add_u32 {s(sT0)}, {s(sK)}, {(tt * 112 + b * 2) * 1024}")
                    hstore([f"buffer_store_dwordx4 {v(gpk+8*(t&1)+4*c,4)}, {v(vL16)}, {s(SW,4)}, {s(sT0)} offen offset:{c*1024}"], ("Hst", b), hnear)
                ops.append(st)
        if t == 2:
            ops.append(lambda: signal(N_G, own_slot(FG), ("Hst", 0), near=hnear))
    fill = [f for n in pend for f in refill_p(n + NRING)]
    for n in range(nxt, 44):
        fill.append(lambda n=n: sread(n))
        if n > nxt:
            fill += refill_p(n - 1 + NRING)
    weave(A, ops, fill)
    if nxt < 44:
        refill(43 + NRING)
    vHH = 26
    A(f"""s_mul_i32 {s(sT0)}, {s(sGT)}, 4
          s_add_u32 {s(sT0)}, {s(sT0)}, {s(sW)}
          s_mul_i32 {s(sT0)}, {s(sT0)}, {28 * 1024}
          v_add_u32 {v(vHH)}, {s(sT0)}, {v(vL16)}
          s_xor_b32 {s(sT0)}, {s(sGT)}, 1
          s_mul_i32 {s(sT0)}, {s(sT0)}, 4
          s_add_u32 {s(sT0)}, {s(sT0)}, {s(sW)}
          s_mul_i32 {s(sT0)}, {s(sT0)}, {28 * 1024}
          v_add_u32 {v(vHH+1)}, {s(sT0)}, {v(vL16)}""")
    acc6 = [64, 80, 96, 112]
    for i in range(8):
        A(f"v_lshlrev_b32 {v(64+2*i)}, 16, {v(vX1P+i)}\nv_and_b32 {v(65+2*i)}, 0xffff0000, {v(vX1P+i)}")
    stamp()
    cut("w4")

    def setup_tb(base, inv):
        def f():
            A(f"""s_lshl_b32 {s(sT0)}, {s(sTB)}, 10
                  s_add_u32 {s(sT0)}, {s(sT0)}, {base}
                  v_lshlrev_b32 {v(vT1)}, 7, {v(vLANE)}
                  v_add_u32 {v(vT1)}, {s(sT0)}, {v(vT1)}
                  s_mov_b32 {s(sINV)}, {inv}
                  s_mov_b32 {s(sINV+1)}, -1""")
            lanes_to(vT1)
        return f
    peek_issue(setup_tb(FG, 0xffffff01), 34, 36)
    vO, vOUT = 28, 30
    A(f"""s_lshl_b32 {s(sT0)}, {s(sGT)}, 2
          s_add_u32 {s(sT0)}, {s(sT0)}, {s(sW)}
          s_lshl_b32 {s(sT0)}, {s(sT0)}, 13
          v_add_u32 {v(vO)}, {s(sT0)}, {v(vL16)}
          v_xor_b32 {v(vO+1)}, 0x8000, {v(vO)}
          v_and_b32 {v(32)}, 31, {v(vLANE)}
          s_lshl_b32 {s(sT0)}, {s(sGT)}, 5
          v_add_u32 {v(32)}, {s(sT0)}, {v(32)}
          v_mul_u32_u24 {v(32)}, 896, {v(32)}
          v_lshrrev_b32 {v(33)}, 5, {v(vLANE)}
          v_lshl_add_u32 {v(32)}, {v(33)}, 4, {v(32)}
          s_lshl_b32 {s(sT0)}, {s(sT4)}, 6
          v_add_u32 {v(vOUT)}, {s(sT0)}, {v(32)}""")
    signal(N_G2, own_slot(FG2), ("Hst", 1), near=hnear)
    peek_check(34, 36)
    stamp()
    hslots = [16, 20, 32, 36, 40, 44, 48, 52, 56, 60]
    NH = int(OPT.get("nh", 6))
    hsc = "" if "hplain" in OPT else " sc1"

    def bload(n):
        p, sl = n >> 1, n & 1
        if n < 56:
            if p % 2 == 0 and sl == 0:
                rot7(sRH, (p % 14) // 2, 4096, None)
                A(f"s_add_u32 {s(sV)}, {s(sRH)}, {HH}")
            addr, imm = vHH + sl, (2 * (p // 14) + p % 2) * 1024
        else:
            if p % 4 == 0 and sl == 0:
                A(f"s_mov_b32 {s(sV)}, {OB + 1024 * (p - 28)}")
            addr, imm = vO + sl, (p & 3) * 1024
        A.vmem(f"buffer_load_dwordx4 {v(hslots[n % NH], 4)}, {v(addr)}, {s(SW,4)}, {s(sV)} offen offset:{imm}{hsc}", ("H", n))

    def slotoffs(first):
        return [(0, i * 1024) if i < 14 else (1, (i - 14) * 1024) for i in range(first, first + 12)]

    vRW2 = [24, 25]
    for n in range(NH):
        bload(n)
    if OPT.get("tail", "ring") == "ring":
        vG, vA2 = 64, [24, 25, 26, 27, 2, 3, 31, 29 if NH == 10 else 63]

        def partner(sl):
            A(f"""s_xor_b32 {s(sT0)}, {s(sW)}, {sl}
                  s_mul_i32 {s(sT1)}, {s(sT0)}, 14336
                  s_mul_i32 {s(sT0)}, {s(sT0)}, 11264
                  s_add_u32 {s(sT0)}, {s(sT0)}, {LQ}
                  v_add_u32 {v(vA2[2*sl])}, {s(sT1)}, {v(vL16)}
                  v_add_u32 {v(vA2[2*sl+1])}, {s(sT0)}, {v(vL16)}""")
        side = {28: [], 29: [], 30: [], 31: [], 32: [], 33: [], 34: [], 35: []}
        for i in range(12):
            side[28 + (i + 2) // 5 + (1 if i < 0 else 0)].append(
                lambda i=i: A.ds(f"ds_write_b128 {v(24)}, {v(80 + 4 * i, 4)} offset:{i * 1024}", "red"))
        side[30].append(lambda: arrive(C_R2))
        side[32].append(lambda: await_cnt(C_R2))
        for sl in (1, 2, 3):
            side[32].append(lambda sl=sl: [A.ds(f"ds_read_b128 {v(64 + 16 * sl + 4 * q, 4)}, {v(vA2[2*sl])} offset:{((sl - 1) * 4 + q) * 1024}", ("rd", sl)) for q in range(4)])
        valu = []
        for sl in (1, 2, 3):
            valu.append(lambda sl=sl: A.wait_lg(("rd", sl)))
            valu += [lambda sl=sl, i=i: A(f"v_add_f32 {v(vG+i)}, {v(vG+i)}, {v(64 + 16 * sl + i)}") for i in range(16)]
        for i in range(8):
            y = vG + 2 * i
            valu += [lambda t=t: A(t) for t in f"""v_mul_f32 {v(80)}, {f32(-LOG2E)}, {v(y)}
                  v_mul_f32 {v(81)}, {f32(-LOG2E)}, {v(y+1)}
                  v_exp_f32 {v(80)}, {v(80)}
                  v_exp_f32 {v(81)}, {v(81)}
                  v_add_f32 {v(80)}, 1.0, {v(80)}
                  v_add_f32 {v(81)}, 1.0, {v(81)}
                  v_rcp_f32 {v(80)}, {v(80)}
                  v_rcp_f32 {v(81)}, {v(81)}
                  v_mul_f32 {v(y)}, {v(y)}, {v(80)}
                  v_mul_f32 {v(y+1)}, {v(y+1)}, {v(81)}""".split("\n")]
        nin = int(OPT.get("nin", 90))
        for n, f in enumerate(valu[:nin]):
            side[33 + (3 * n) // nin].append(f)
        for j in range(36):
            A.wait_vm(("H", 2 * j + 1))
            A.wait_lg(("s", 28 + j))
            if 2 * j + NH in (28, 56):
                peek_check()

            def mm(sl):
                d = v(acc6[sl], 16) if j < 28 else a(16 * sl, 16)
                mfma(d, a(sreg(28 + j, sl >> 1), 4), v(hslots[(2 * j + (sl & 1)) % NH], 4), 0 if (j == 0 and sl) or j == 28 else None)
            rd = sread_p(43 + j) if 1 <= j <= 20 else [None, None]
            rf = (refill_p(43 + j - 1 + NRING) if j >= 2 else []) or [None, None]
            ld = [(lambda n=n: bload(n)) if n < 72 else None for n in (2 * j + NH, 2 * j + NH + 1)]
            ex = side.get(j, [])
            lo = 2 if j == 28 else 0
            cut_ = [0] * (lo + 1) + [-(-len(ex) * (g + 1) // (4 - lo)) for g in range(4 - lo)]
            for g, (sl, todo) in enumerate(((0, [rf[0]]), (2, [ld[0], rd[0]]), (1, [rf[1]]), (3, [ld[1], rd[1]]))):
                mm(sl)
                if j == 28 and g == 1:
                    A("s_nop 6")
                for f in todo + ex[cut_[g]:cut_[g + 1]]:
                    if f:
                        f()
            if 2 * j + NH == 22:
                peek_issue(setup_tb(FG2, 0xffffff01))
            if 2 * j + NH == 50:
                peek_issue(setup_tb(FO, 0xffffff00))
            if j == 26:
                A.drain_lg()
                A(f"v_add_u32 {v(24)}, {s(sPA)}, {v(vL16)}\nv_add_u32 {v(25)}, {s(sPB)}, {v(vL16)}")
                partner(1)
                partner(2)
            if j == 27:
                stamp()
            if j == 31:
                partner(3)
        stamp()
        left = valu[nin:]
        for f in left[:12]:
            f()
        reduce_out([("a", 16), ("a", 32), ("a", 48)], C_R3, [24, 25], slotoffs(12), left[12:])
        for i in range(16):
            A(f"v_accvgpr_read_b32 {v(32+i)}, {a(i)}")
        stamp()
        reduce_in(32, 80, C_R3, lambda sl: vA2[2 * sl:2 * sl + 2], slotoffs(12))
        vS = 32
    else:
        for j in range(28):
            A.wait_vm(("H", 2 * j + 1))
            A.wait_lg(("s", 28 + j))
            if 2 * j + NH == 28:
                peek_check()
            rd = sread_p(43 + j) if 1 <= j <= 20 else [None, None]
            rf = (refill_p(43 + j - 1 + NRING) if j >= 2 else []) or [None, None]
            ld = [(lambda n=n: bload(n)) if n < 56 else None for n in (2 * j + NH, 2 * j + NH + 1)]
            for sl, todo in ((0, [rf[0]]), (2, [ld[0], rd[0]]), (1, [rf[1]]), (3, [ld[1], rd[1]])):
                mfma(v(acc6[sl], 16), a(sreg(28 + j, sl >> 1), 4), v(hslots[(2 * j + (sl & 1)) % NH], 4), 0 if j == 0 and sl else None)
                for f in todo:
                    if f:
                        f()
            if 2 * j + NH == 22:
                peek_issue(setup_tb(FG2, 0xffffff01))
            if "p6" in OPT and j in (3, 8, 9, 13, 18, 22):
                stamp()
            if j == 23:
                A.drain_lg()
                A(f"v_add_u32 {v(24)}, {s(sPA)}, {v(vL16)}\nv_add_u32 {v(25)}, {s(sPB)}, {v(vL16)}")
            if j == 25:
                peek_issue(setup_tb(FO, 0xffffff00), 16, 18)
        stamp()

        def mk2(sl):
            A(f"""s_xor_b32 {s(sT0)}, {s(sW)}, {sl}
                  s_mul_i32 {s(sT1)}, {s(sT0)}, 14336
                  s_mul_i32 {s(sT0)}, {s(sT0)}, 11264
                  s_add_u32 {s(sT0)}, {s(sT0)}, {LQ}
                  v_add_u32 {v(50+2*sl)}, {s(sT1)}, {v(vL16)}
                  v_add_u32 {v(51+2*sl)}, {s(sT0)}, {v(vL16)}""")
            return [50 + 2 * sl, 51 + 2 * sl]

        def oloads():
            for kq in range(8):
                if kq % 4 == 0:
                    A(f"s_mov_b32 {s(sV)}, {OB + 1024 * kq}")
                for sl in range(2):
                    A.vmem(f"buffer_load_dwordx4 {a(8 * kq + 4 * sl, 4)}, {v(vO+sl)}, {s(SW,4)}, {s(sV)} offen offset:{(kq & 3) * 1024} sc1", ("o", kq))

        later, both = A.newlabel("ol"), A.newlabel("ob")
        A.wait_vm("peek")
        A(f"""v_cmp_eq_u64 vcc, {s(sN,2)}, {v(16,2)}
              s_or_b64 vcc, vcc, {s(sINV,2)}
              s_cmp_eq_u64 vcc, -1
              s_cselect_b32 {s(sRH)}, 1, 0
              s_cbranch_scc0 {later}""")
        oloads()
        A.label(later)
        A("s_nop 5")
        reduce_out([("v", 80), ("v", 96), ("v", 112)], C_R2, vRW2, slotoffs(0))
        vG = 32
        reduce_in(64, 80, C_R2, mk2, slotoffs(0))
        for i in range(8):
            y = 64 + 2 * i
            A(f"""v_mul_f32 {v(80)}, {f32(-LOG2E)}, {v(y)}
                  v_mul_f32 {v(81)}, {f32(-LOG2E)}, {v(y+1)}
                  v_exp_f32 {v(80)}, {v(80)}
                  v_exp_f32 {v(81)}, {v(81)}
                  v_add_f32 {v(80)}, 1.0, {v(80)}
                  v_add_f32 {v(81)}, 1.0, {v(81)}
                  v_rcp_f32 {v(80)}, {v(80)}
                  v_rcp_f32 {v(81)}, {v(81)}
                  v_mul_f32 {v(vG+2*i)}, {v(y)}, {v(80)}
                  v_mul_f32 {v(vG+2*i+1)}, {v(y+1)}, {v(81)}""")
        stamp()
        A(f"s_cmp_lg_u32 {s(sRH)}, 0\ns_cbranch_scc1 {both}")
        keep = list(A.vm)
        A.vm = []
        peek_check(16, 18)
        oloads()
        A.vm = keep
        A.label(both)
        for kq in range(8):
            A.wait_vm(("o", kq))
            for sl in (1, 2, 3, 0):
                mfma(v(acc6[sl], 16), a(sreg(56 + kq, sl >> 1), 4), a(8 * kq + 4 * (sl & 1), 4), 0 if kq == 0 else None)
        stamp()
        A("s_nop 7\ns_nop 1")
        reduce_out([("v", 80), ("v", 96), ("v", 112)], C_R3, vRW2, slotoffs(12))
        reduce_in(64, 80, C_R3, lambda sl: [50 + 2 * sl, 51 + 2 * sl], slotoffs(12))
        vS = 64
    for i in range(8):
        y = vS + 2 * i
        A(f"""v_lshlrev_b32 {v(80)}, 16, {v(vXD+i)}
              v_and_b32 {v(81)}, 0xffff0000, {v(vXD+i)}
              v_fma_f32 {v(80)}, {v(y)}, {v(vG+2*i)}, {v(80)}
              v_fma_f32 {v(81)}, {v(y+1)}, {v(vG+2*i+1)}, {v(81)}
              v_cvt_pk_bf16_f32 {v(84+i)}, {v(80)}, {v(81)}""")
    A("s_nop 1")
    for p in range(2):
        A(f"v_permlane32_swap_b32 {v(84+4*p)}, {v(86+4*p)}\nv_permlane32_swap_b32 {v(85+4*p)}, {v(87+4*p)}")
    for p in range(2):
        A.vmem(f"buffer_store_dwordx4 {v(84+4*p,4)}, {v(vOUT)}, {s(SOUT,4)}, 0 offen offset:{32*p}", "out")
    stamp()
    dump_stamps()
    A("s_endpgm")

    for blk in late:
        A.lg = []
        blk()
    A.label("L_kv")
    A.vm = list(vm_kv)
    A.lg = []
    A(f"""v_mul_u32_u24 {v(vT0)}, 3584, {v(vC8)}
          s_min_u32 {s(sT2)}, {s(sTB)}, 27
          s_lshl_b32 {s(sT0)}, {s(sT2)}, 7
          s_mul_i32 {s(sT1)}, {s(sW)}, {112 * 3584}
          s_add_u32 {s(sT0)}, {s(sT0)}, {s(sT1)}
          v_add3_u32 {v(vW3)}, {v(vT0)}, {v(vC7)}, {s(sT0)}""")
    for i in range(16):
        A(f"v_sub_f32 {v(acc+i)}, {v(acc+i)}, {v(cs+i)}\nv_mul_f32 {v(acc+i)}, {v(acc+i)}, {v(vR)}")
    A(f"s_mov_b64 exec, {s(sHI,2)}")
    for i in range(12, 16):
        A(f"v_mov_b32 {v(acc+i)}, 0")
    A("s_mov_b64 exec, -1")
    for i in range(8):
        A(f"v_cvt_pk_bf16_f32 {v(pk+i)}, {v(acc+2*i)}, {v(acc+2*i+1)}")
    A(f"""s_lshl_b32 {s(sT4)}, {s(sGT)}, 12
          s_cmp_eq_u32 {s(sP)}, 1
          s_cbranch_scc1 L_v
          s_mov_b64 exec, {s(sHI,2)}
          v_mov_b32 {v(pk+6)}, {ONES}
          v_mov_b32 {v(pk+7)}, 0x3f80
          s_mov_b64 exec, -1
          buffer_store_dwordx4 {v(pk,4)}, {v(vL16)}, {s(SW,4)}, {s(sT4)} offen sc1
          buffer_store_dwordx4 {v(pk+4,4)}, {v(vL16)}, {s(SW,4)}, {s(sT4)} offen offset:1024 sc1
          v_mul_f32 {v(72)}, {v(acc)}, {v(acc)}""")
    for i in range(1, 16):
        A(f"v_fma_f32 {v(72)}, {v(acc+i)}, {v(acc+i)}, {v(72)}")
    halves(72, 73)
    A(f"""v_add_f32 {v(72)}, {v(72)}, {v(73)}
          v_mov_b32 {v(73)}, {L_KM}
          ds_max_u32 {v(73)}, {v(72)}
          s_branch L_kvdone""")
    A.label("L_v")
    A(f"""s_mov_b64 exec, {s(sHI,2)}
          v_mov_b32 {v(pk+6)}, 0x3f80
          s_mov_b64 exec, -1
          s_lshl_b32 {s(sT0)}, {s(sTT)}, 12
          s_add_u32 {s(sT0)}, {s(sT0)}, {L_VT}
          v_and_b32 {v(72)}, 31, {v(vLANE)}
          v_bfe_u32 {v(74)}, {v(72)}, 1, 1
          v_lshlrev_b32 {v(74)}, 6, {v(74)}
          v_lshrrev_b32 {v(73)}, 5, {v(vLANE)}
          v_lshl_add_u32 {v(73)}, {v(73)}, 3, {v(74)}
          v_lshl_add_u32 {v(72)}, {v(72)}, 7, {v(73)}
          v_add_u32 {v(72)}, {s(sT0)}, {v(72)}
          v_add3_u32 {v(73)}, {v(vTRD)}, {v(103)}, {s(sT0)}""")
    for g in range(4):
        A.ds(f"ds_write_b64 {v(72)}, {v(pk+2*g,2)} offset:{16*g}", "vt")
    for c in range(2):
        tr(("v", 76 + 4 * c), 73, c * 2048, 1024, "vr")
    A.drain_lg()
    A(f"buffer_store_dwordx4 {v(76,4)}, {v(vL16)}, {s(SW,4)}, {s(sT4)} offen offset:2048 sc1")
    A(f"buffer_store_dwordx4 {v(80,4)}, {v(vL16)}, {s(SW,4)}, {s(sT4)} offen offset:3072 sc1")
    A.label("L_kvdone")
    A.vm += ["kv", "kv"]
    nonce_take(30)
    signal(N_K, f"s_lshl_b32 {s(sT0)}, {s(sTB)}, 7\ns_add_u32 {s(sT0)}, {s(sT0)}, {FK}", "kv", payload=L_KM)
    stamps["n"] = 2
    stamp()
    await_cnt(C_PA, 8)
    for j in range(7):
        image(sPA, j * 2048, vW3, SQ, lambda e, j=j: f"s_mov_b32 {s(sT0)}, {j * 16 * 3584 + e}", 3584, "W3")
    A(f"v_add3_u32 {v(72)}, {v(vTRD)}, {v(103)}, {s(sPA)}\nv_xor_b32 {v(73)}, 64, {v(72)}")
    A.wait_vm("W3")
    for i in range(14):
        tr(("a", 4 * i), 72 + (i & 1), (i >> 1) * 2048, 1024, ("c", i))
    for i in range(14):
        A.wait_lg(("c", i))
        mfma(v(32 + 16 * (i & 1), 16), v(ones, 4), a(4 * i, 4), 0 if i < 2 else None)
    A(f"""s_lshl_b32 {s(sT0)}, {s(sW)}, 8
          s_add_u32 {s(sT0)}, {s(sT0)}, {LA + 32768}
          v_lshlrev_b32 {v(73)}, 2, {v(vLANE)}
          v_add_u32 {v(74)}, {s(sT0)}, {v(73)}
          s_nop 7
          v_cndmask_b32 {v(72)}, {v(32)}, {v(48)}, {s(sHI,2)}
          ds_write_b32 {v(74)}, {v(72)}""")
    arrive(C_R1)
    A(f"s_cmp_gt_u32 {s(sTB)}, 27\ns_cbranch_scc1 L_kvend\ns_cmp_lg_u32 {s(sW)}, 0\ns_cbranch_scc1 L_kvend")
    await_cnt(C_R1)
    A(f"""ds_read_b32 {v(75)}, {v(74)} offset:256
          ds_read_b32 {v(76)}, {v(74)} offset:512
          ds_read_b32 {v(77)}, {v(74)} offset:768
          s_lshl_b32 {s(sT1)}, {s(sTB)}, 9
          s_add_u32 {s(sT1)}, {s(sT1)}, {CS}
          v_lshlrev_b32 {v(74)}, 3, {v(vLANE)}
          s_waitcnt lgkmcnt(0)
          v_add_f32 {v(72)}, {v(72)}, {v(75)}
          v_add_f32 {v(73)}, {v(76)}, {v(77)}
          buffer_store_dwordx2 {v(72,2)}, {v(74)}, {s(SW,4)}, {s(sT1)} offen sc1
          s_lshl_b32 {s(sT0)}, {s(sTB)}, 7
          s_add_u32 {s(sT0)}, {s(sT0)}, {FC}
          v_mov_b32 {v(vT0)}, {s(sN)}
          v_mov_b32 {v(vT1)}, {s(sN+1)}
          v_mov_b32 {v(vT3)}, 0
          s_waitcnt vmcnt(0)
          s_mov_b64 exec, 1
          buffer_store_dwordx2 {v(vT0,2)}, {v(vT3)}, {s(SW,4)}, {s(sT0)} offen sc1
          s_mov_b64 exec, -1""")
    A.label("L_kvend")

    gate(G_H, setup_tb(FH, 0xffffff01), 32, payload=lambda: (A(f"s_mov_b32 {s(sT2)}, 0xfe"), note_die(34)))
    arrive(C_P4)
    read_mode()
    A(f"""s_lshl_b32 {s(sT0)}, {s(sTB)}, 2
          s_add_u32 {s(sT0)}, {s(sT0)}, {s(sW)}
          s_mul_i32 {s(sT1)}, {s(sT0)}, 12544
          s_mul_i32 {s(sT2)}, {s(sT0)}, 3136
          v_lshlrev_b32 {v(74)}, 7, {v(vLANE)}""")
    if "notouch" not in OPT:
        A.vmem(f"buffer_load_dword {v(84)}, {v(74)}, {s(S4,4)}, {s(sT1)} offen", "t")
        A(f"s_add_u32 {s(sT1)}, {s(sT1)}, 8192\ns_bfm_b64 exec, 34, 0")
        A.vmem(f"buffer_load_dword {v(85)}, {v(74)}, {s(S4,4)}, {s(sT1)} offen", "t")
        A("s_bfm_b64 exec, 25, 0")
        A.vmem(f"buffer_load_dword {v(86)}, {v(74)}, {s(SO,4)}, {s(sT2)} offen", "t")
        A("s_mov_b64 exec, -1")
    A(f"""s_setprio 0
          s_cmp_eq_u32 {s(sLOC)}, 0
          s_cbranch_scc1 L_kvquit
          v_lshlrev_b32 {v(36)}, 7, {v(vLANE)}
          v_and_b32 {v(37)}, 7, {v(vLANE)}
          v_lshrrev_b32 {v(38)}, 3, {v(vLANE)}
          v_lshlrev_b32 {v(38)}, 15, {v(38)}
          v_lshl_add_u32 {v(37)}, {v(37)}, 7, {v(38)}
          s_lshl_b32 {s(sT0)}, {s(sTB)}, 10
          s_add_u32 {s(sT0)}, {s(sT0)}, {FX}
          s_lshl_b32 {s(sT3)}, {s(sW)}, 13""")
    A.vm = []
    warm(0, 37, sT0, "0xffffffff")
    jobs = ([(X1, 56 * 1024, 2), (ST, 7168, 1)] if xnear else []) + ([(HH, 224 * 1024, 7)] if hnear else []) + [(OB, 64 * 1024, 2)]
    n = 1
    for base, size, cnt in jobs:
        A(f"""s_mul_i32 {s(sT1)}, {s(sTB)}, {size}
              s_add_u32 {s(sT1)}, {s(sT1)}, {base}
              s_add_u32 {s(sT2)}, {s(sT1)}, {size}
              s_add_u32 {s(sT1)}, {s(sT1)}, {s(sT3)}""")
        for i in range(cnt):
            A(f"""s_cmp_lt_u32 {s(sT1)}, {s(sT2)}
                  s_cselect_b32 {s(sT0)}, {s(sT1)}, {OOB}
                  s_add_u32 {s(sT1)}, {s(sT1)}, 32768""")
            warm(n, 36, sT0, "0xffffffffffffff" if size == 7168 else -1)
            A(f"s_waitcnt vmcnt({OPT.get('wdepth', 0)})")
            n += 1
    A.label("L_kvquit")
    stamp()
    dump_stamps()
    A("s_endpgm")


def att(vm_entry):
    A.label("L_att")
    A.vm = list(vm_entry)
    A.lg = []
    stamps["n"] = 1
    acc, cs, ring, ones = 32, 48, 64, 96
    vM, vR = 8, 9
    A(f"""s_mul_i32 {s(sT0)}, {s(sCB)}, 112
          s_lshl_b32 {s(sT1)}, {s(sW)}, 3
          v_add_u32 {v(vT0)}, {s(sT1)}, {v(vC8)}
          v_mul_u32_u24 {v(vT0)}, 896, {v(vT0)}
          v_add3_u32 {v(vWQ)}, {v(vT0)}, {v(vC7)}, {s(sT0)}
          s_lshl_b32 {s(sPA)}, {s(sW)}, 10
          s_mul_i32 {s(sT0)}, {s(sP)}, 56
          v_add_u32 {v(103)}, {s(sT0)}, {v(103)}
          v_xor_b32 {v(103)}, {v(103)}, {v(102)}
          v_add_u32 {v(vT0)}, {v(vTRN)}, {v(103)}
          v_add_u32 {v(10)}, {LQ}, {v(vT0)}
          v_add_u32 {v(11)}, {LA}, {v(vT0)}""")
    nq0 = int(OPT.get("nq0", 11))
    for n in range(nq0):
        dma(sPA, LQ + n * 4096, vWQ, SQ, (f"s_mov_b32 {s(sT0)}, {n * 32 * 896}", s(sT0)), "WQ")
    early_stamp(6)
    A.wait_vm("X")
    barrier()
    early_dump()
    stamp()

    def first():
        for n in range(nq0, 14):
            dma(sPA, LQ + n * 4096 if n < 11 else LA + (n - 11) * 4096, vWQ, SQ, (f"s_mov_b32 {s(sT0)}, {n * 32 * 896}", s(sT0)), "WQ")
        nonce_issue(12)
        touch("p1")
    stat_part(lambda: None)
    barrier()
    first()
    stat_read()
    for ks in range(28):
        A.ds(f"ds_read_b128 {a(4*ks,4)}, {v(vXF + (ks & 3))} offset:{(ks >> 2) * 8192}", ("x", ks))
    stat_fin(vM, vR)
    A(f"v_add_f32 {v(vR)}, {f32(EPS)}, {v(vR)}\nv_rsq_f32 {v(vR)}, {v(vR)}")
    A.drain_lg()
    arrive(C_PA)
    A(f"v_mul_f32 {v(vR)}, {f32(QSCALE)}, {v(vR)}")
    A.wait_vm(["WQ", "nonce"])
    arrive(C_WQ)
    nonce_take(12)
    A(f"""s_lshl_b32 {s(sT0)}, {s(sGT)}, 4
          s_lshl_b32 {s(sT1)}, {s(sCB)}, 1
          s_add_u32 {s(sT0)}, {s(sT0)}, {s(sT1)}
          s_add_u32 {s(sT0)}, {s(sT0)}, {s(sP)}
          s_lshl_b32 {s(sT0)}, {s(sT0)}, 11
          s_add_u32 {s(sB4)}, {s(sT0)}, {OB}
""")
    await_cnt(C_WQ)
    stamp()

    def wq(ks):
        tr(("v", ring + 4 * (ks % 8)), 10 if ks < 22 else 11, (ks % 22) * 2048, 512, ("w", ks))
    vG, vF = 12, 104
    aO, aQ, aK, vV = 0, 48, 80, 72
    O0, S, P = 16, [32, 48], 64

    def setup_k():
        A(f"""v_lshlrev_b32 {v(vT1)}, 7, {v(vLANE)}
              v_add_u32 {v(vT1)}, {FK}, {v(vT1)}
              s_mov_b64 {s(sINV,2)}, {s(sHI,2)}""")
        lanes_to(vT1)

    misc = f"""s_lshl_b32 {s(sT0)}, {s(sW)}, 11
          s_add_u32 {s(sT0)}, {s(sT0)}, {L_QG}
          v_add_u32 {v(vG)}, {s(sT0)}, {v(vL16)}
          s_lshl_b32 {s(sT0)}, {s(sW)}, 8
          s_add_u32 {s(sT0)}, {s(sT0)}, {L_QN}
          v_lshlrev_b32 {v(14)}, 2, {v(vLANE)}
          v_add_u32 {v(15)}, {s(sT0)}, {v(14)}
          v_add_u32 {v(14)}, {L_QN}, {v(14)}
          s_add_u32 {s(sT0)}, {s(sCB)}, {s(sTB)}
          s_and_b32 {s(sT0)}, {s(sT0)}, 3
          s_lshl_b32 {s(sK)}, {s(sT0)}, 14
          s_add_u32 {s(sV)}, {s(sK)}, 0x4000
          s_and_b32 {s(sV)}, {s(sV)}, 0xffff
          s_lshl_b32 {s(sT0)}, {s(sW)}, 16
          v_add_u32 {v(vF)}, {s(sT0)}, {v(vL16)}
          v_add_u32 {v(vF+1)}, 4096, {v(vF)}
          v_add_u32 {v(vF+2)}, 8192, {v(vF)}
          v_add_u32 {v(vF+3)}, 12288, {v(vF)}""".split("\n")
    misc += [f"v_mov_b32 {v(O0+i)}, 0" for i in range(16)]
    misc += [f"v_xor_b32 {v(108+sl)}, {sl << 11}, {v(vG)}" for sl in range(1, 4)]

    def qstep(ks):
        if ks + 6 < 28:
            wq(ks + 6)
        A.wait_lg(("w", ks))
        mfma(v(acc, 16), v(ring + 4 * (ks % 8), 4), a(4 * ks, 4), 0 if ks == 0 else None)
        mfma(v(cs, 16), v(ring + 4 * (ks % 8), 4), v(ones, 4), 0 if ks == 0 else None)
        if 14 <= ks < 26:
            for i in range(4):
                A(f"v_accvgpr_write_b32 {a(aO + 4 * (ks - 14) + i)}, 0")
    for ks in range(6):
        wq(ks)
    weave(A, [lambda ks=ks: qstep(ks) for ks in range(28)], [lambda t=t: A(t) for t in misc])
    hi = "prl" not in OPT

    def kload(slot, base):
        for c in range(2):
            A.vmem(f"buffer_load_dwordx4 {a(aK + 8*slot + 4*c, 4)}, {v(vF+slot)}, {s(SW,4)}, {s(base)} offen offset:{c*1024} sc1", "K")

    def vload(slot, base):
        for c in range(2):
            A.vmem(f"buffer_load_dwordx4 {v(vV + 8*slot + 4*c, 4)}, {v(vF+slot)}, {s(SW,4)}, {s(base)} offen offset:{2048 + c*1024} sc1", "V")

    def first_loads():
        A("s_setprio 3")
        for slot in range(3):
            kload(slot, sK)
            vload(slot, sK)
            if slot == 0:
                A("s_setprio " + OPT.get("aprio", "0"))
        kload(3, sK)
        A.vm = []

    stamp()
    A("s_nop 7")
    q = acc
    for i in range(16):
        A(f"v_fma_f32 {v(q+i)}, -{v(cs+i)}, {v(vM)}, {v(q+i)}\nv_mul_f32 {v(q+i)}, {v(q+i)}, {v(vR)}")
    A(f"s_mov_b64 exec, {s(sHI,2)}")
    for i in range(12, 16):
        A(f"v_mov_b32 {v(q+i)}, 0")
    A("s_mov_b64 exec, -1")
    for i in range(8):
        A(f"v_cvt_pk_bf16_f32 {v(48+i)}, {v(q+2*i)}, {v(q+2*i+1)}")
    A.ds(f"ds_write_b128 {v(vG)}, {v(48,4)}", "qg")
    A.ds(f"ds_write_b128 {v(vG)}, {v(52,4)} offset:1024", "qg")
    A(f"v_mul_f32 {v(56)}, {v(q)}, {v(q)}")
    for i in range(1, 16):
        A(f"v_fma_f32 {v(56)}, {v(q+i)}, {v(q+i)}, {v(56)}")
    halves(56, 57)
    A(f"v_add_f32 {v(56)}, {v(56)}, {v(57)}")
    A.ds(f"ds_write_b32 {v(15)}, {v(56)}", "qg")
    arrive(C_Q)
    for i in range(4):
        A(f"v_mov_b32 {v(P+4+i)}, 0\nv_mov_b32 {v(vV+28+i)}, 0")
    await_cnt(C_Q)
    for sl in range(4):
        for c in range(2):
            A.ds(f"ds_read_b128 {a(aQ + 8*sl + 4*c, 4)}, {v(108+sl if sl else vG)} offset:{c*1024}", "q")
    for sl in range(4):
        A.ds(f"ds_read_b32 {v(120+sl)}, {v(14)} offset:{sl*256}", "q")
    A.drain_lg()
    arrive(C_QD)
    A("s_setprio 3")
    gate(G_K, setup_k, 112, payload=lambda: A(f"v_mov_b32 {v(113)}, {L_KP}\nds_max_u32 {v(113)}, {v(114)}"))
    stamp()
    A(f"v_mov_b32 {v(113)}, {L_KP}\nds_read_b32 {v(112)}, {v(113)}")
    first_loads()
    A(f"""s_waitcnt lgkmcnt(0)
          v_max3_f32 {v(120)}, {v(120)}, {v(121)}, {v(122)}
          v_max_f32 {v(120)}, {v(120)}, {v(123)}
          v_mul_f32 {v(108)}, {v(112)}, {v(120)}
          v_cmp_nge_f32 vcc, {f32(-1.0 if FORCE_SLOW else BOUND2)}, {v(108)}
          s_cmp_lg_u64 vcc, 0
          s_cbranch_scc1 L_slow""")
    A.label("L_fast")
    A("s_waitcnt vmcnt(10)")

    def Oreg(sl):
        return v(O0, 16) if sl == 0 else a(aO + 16 * (sl - 1), 16)

    mfma(v(S[0], 16), a(aK, 4), a(aQ, 4), 0)
    mfma(v(S[0], 16), a(aK + 4, 4), a(aQ + 4, 4))
    A(f"s_mov_b32 {s(sT4)}, 4\ns_nop 7\ns_nop 1")
    A.label("L_aloop")

    def period(sg, qt):
        cur, nxt = S[qt & 1], S[(qt + 1) & 1]
        ks = sg if qt < 3 else (sg + 1) & 3
        vs = sg if qt > 0 else (sg - 1) & 3
        nq, pq = (qt + 1) & 3, (qt - 1) & 3
        e = lambda i: A(f"v_exp_f32 {v(cur+i)}, {v(cur+i)}")
        c = lambda i: A(f"v_cvt_pk_bf16_f32 {v(P+i)}, {v(cur+2*i)}, {v(cur+2*i+1)}")
        if qt == 3:
            A("s_waitcnt vmcnt(6)")
        mfma(v(nxt, 16), a(aK + 8 * ks, 4), a(aQ + 8 * nq, 4), 0)
        if qt == 3:
            A("s_setprio 3")
            vload((sg - 1) & 3, sK if sg == 0 else sV)
            kload(sg, sV)
            A("s_setprio " + OPT.get("aprio", "0"))
        e(0); e(1); e(2); e(3)
        mfma(Oreg(pq), v(vV + 8 * vs + 4, 4), v(P + 4, 4))
        c(0); c(1); e(4); e(5); e(6); e(7)
        mfma(v(nxt, 16), a(aK + 8 * ks + 4, 4), a(aQ + 8 * nq + 4, 4))
        c(2); c(3); e(8); e(9); e(10); e(11)
        mfma(Oreg(qt), v(vV + 8 * sg, 4), v(P, 4))
        c(4); c(5); e(12); e(13); e(14); e(15); c(6); c(7)

    for sg in range(4):
        for qt in range(4):
            period(sg, qt)
            A.vm = []
    A(f"""s_mov_b32 {s(sK)}, {s(sV)}
          s_add_u32 {s(sV)}, {s(sV)}, 0x4000
          s_and_b32 {s(sV)}, {s(sV)}, 0xffff
          s_cmp_eq_u32 {s(sT4)}, 2
          s_cselect_b32 {s(sV)}, {OOB}, {s(sV)}
          s_sub_u32 {s(sT4)}, {s(sT4)}, 1
          s_cmp_lg_u32 {s(sT4)}, 0
          s_cbranch_scc1 L_aloop""")
    mfma(Oreg(3), v(vV + 28, 4), v(P + 4, 4))
    stamp()
    A("s_setprio 3")
    await_cnt(C_P4)
    read_mode()
    A(f"""s_mul_i32 {s(sT0)}, {s(sW)}, 12288
          s_add_u32 {s(sT0)}, {s(sT0)}, {LA}
          v_add_u32 {v(8)}, {s(sT0)}, {v(vL16)}
          s_nop 7""")
    offs = [(0, i * 1024) for i in range(12)]
    reduce_out([("a", aO), ("a", aO + 16), ("a", aO + 32)], C_MRG, [8], offs)

    def mk(sl):
        A(f"""s_xor_b32 {s(sT0)}, {s(sW)}, {sl}
              s_mul_i32 {s(sT0)}, {s(sT0)}, 12288
              s_add_u32 {s(sT0)}, {s(sT0)}, {LA}
              v_add_u32 {v(8+sl)}, {s(sT0)}, {v(vL16)}""")
        return [8 + sl]
    reduce_in(O0, [32, 48, 104], C_MRG, mk, offs)
    A(f"v_mov_b32 {v(32)}, {v(O0+12)}")
    halves(32, 33)
    A(f"v_rcp_f32 {v(33)}, {v(33)}\ns_nop 0")
    for i in range(16):
        A(f"v_mul_f32 {v(O0+i)}, {v(O0+i)}, {v(33)}")
    for i in range(8):
        A(f"v_cvt_pk_bf16_f32 {v(40+i)}, {v(O0+2*i)}, {v(O0+2*i+1)}")
    A(f"s_mov_b64 exec, {s(sHI,2)}\nv_mov_b32 {v(46)}, 0\nv_mov_b32 {v(47)}, 0\ns_mov_b64 exec, -1")
    hstore([f"buffer_store_dwordx4 {v(40,4)}, {v(vL16)}, {s(SW,4)}, {s(sB4)} offen",
            f"buffer_store_dwordx4 {v(44,4)}, {v(vL16)}, {s(SW,4)}, {s(sB4)} offen offset:1024"])
    signal(N_O, own_slot(FO), near=True)
    stamp()
    dump_stamps()
    A("s_endpgm")

    A.label("L_slow")
    mx, kf = 108, 112
    for sl in range(4):
        A(f"v_mov_b32 {v(mx+sl)}, 0xff800000")
    A(f"s_mov_b32 {s(sT4)}, 0")
    A.label("L_sloop")
    A(f"""buffer_load_dwordx4 {v(kf,4)}, {v(vF)}, {s(SW,4)}, {s(sT4)} offen sc1
          buffer_load_dwordx4 {v(kf+4,4)}, {v(vF)}, {s(SW,4)}, {s(sT4)} offen offset:1024 sc1
          s_add_u32 {s(sT4)}, {s(sT4)}, 4096
          s_waitcnt vmcnt(0)""")
    for sl in range(4):
        mfma(v(S[0], 16), v(kf, 4), a(aQ + 8 * sl, 4), 0)
        mfma(v(S[0], 16), v(kf + 4, 4), a(aQ + 8 * sl + 4, 4))
        A("s_nop 11")
        for i in range(8):
            A(f"v_max3_f32 {v(mx+sl)}, {v(mx+sl)}, {v(S[0]+2*i)}, {v(S[0]+2*i+1)}")
    A(f"s_cmp_lt_u32 {s(sT4)}, 0x10000\ns_cbranch_scc1 L_sloop")
    A(f"v_and_b32 {v(kf)}, 31, {v(vLANE)}\nv_lshlrev_b32 {v(kf)}, 2, {v(kf)}\nv_add_u32 {v(kf)}, {L_MX}, {v(kf)}")
    for sl in range(4):
        halves(mx + sl, kf + 1)
        A(f"""v_max_f32 {v(mx+sl)}, {v(mx+sl)}, {v(kf+1)}
              s_xor_b32 {s(sT0)}, {s(sW)}, {sl}
              s_lshl_b32 {s(sT0)}, {s(sT0)}, 7
              v_add_u32 {v(kf+4+sl)}, {s(sT0)}, {v(kf)}""")
    A(f"ds_write_b32 {v(kf+4)}, {v(mx)}")
    arrive(C_MAX)
    await_cnt(C_MAX)
    for sl in range(1, 4):
        A(f"ds_max_f32 {v(kf+4+sl)}, {v(mx+sl)}")
    arrive(C_MAX)
    await_cnt(C_MAX, 8)
    t = 120
    for sl in range(4):
        A(f"""ds_read_b32 {v(t)}, {v(kf+4+sl)}
              s_waitcnt lgkmcnt(0)
              v_sub_f32 {v(t)}, 0, {v(t)}
              v_cvt_pk_bf16_f32 {v(t+1)}, {v(t)}, {v(t)}
              v_and_b32 {v(t+1)}, 0xffff0000, {v(t+1)}
              v_sub_f32 {v(t+2)}, {v(t)}, {v(t+1)}
              v_cvt_pk_bf16_f32 {v(t+3)}, {v(t)}, {v(t+2)}
              v_and_b32 {v(t+1)}, 0xffff0000, {v(t+3)}
              v_sub_f32 {v(t+2)}, {v(t+2)}, {v(t+1)}
              v_cvt_pk_bf16_f32 {v(t+2)}, {v(t+2)}, 0
              s_mov_b64 exec, {s(sHI,2)}
              v_accvgpr_write_b32 {a(aQ + 8*sl + 6)}, {v(t+3)}
              v_accvgpr_write_b32 {a(aQ + 8*sl + 7)}, {v(t+2)}
              s_mov_b64 exec, -1""")
    A("s_nop 1\ns_branch L_fast")


def header():
    ref = open(f"cdna_kernels/{NAME}.s.ref").read().split("\n")
    out = [l for l in ref if l.startswith(";") and "@launch" not in l and "Override" not in l and "grid=ceil" not in l]
    out.append(f"; @launch grid=(256,1,1) block=(512,1,1) lds={LDS_SIZE}")
    out += ['.amdgcn_target "amdgcn-amd-amdhsa--gfx950"', ".text", f".globl {NAME}_kernel", ".p2align 8",
            f".type {NAME}_kernel,@function", f"{NAME}_kernel:"]
    return "\n".join(out) + "\n"


def footer():
    return f"""L_end:
    s_endpgm
L_code_end:
.section .rodata,"a"
.p2align 6
.amdhsa_kernel {NAME}_kernel
  .amdhsa_next_free_vgpr 256
  .amdhsa_next_free_sgpr 102
  .amdhsa_accum_offset 128
  .amdhsa_group_segment_fixed_size 0
  .amdhsa_kernarg_size 104
  .amdhsa_user_sgpr_count 2
  .amdhsa_user_sgpr_kernarg_segment_ptr 1
  .amdhsa_system_sgpr_workgroup_id_x 1
.end_amdhsa_kernel
"""


if __name__ == "__main__":
    vm0 = prologue()
    mlp(vm0)
    att(vm0)
    out = [x for x in sys.argv[1:] if not x.startswith("--")]
    open(out[0] if out else "k.s", "w").write(header() + A.text() + footer())
```

```python
import math
import sys
from asmlib import Asm, a, f32, s, v, weave

NAME = "recurrent_scan__grouped_kv_mqa__mixer_s_mlp__prompt"
PROFILE = "--prof" in sys.argv or "--cyc" in sys.argv
CLOCK = "s_memtime" if "--cyc" in sys.argv else "s_memrealtime"
FORCE_SLOW = "--slow" in sys.argv
OPT = {x[2:].split("=")[0]: (x.split("=") + [""])[1] for x in sys.argv if x.startswith("--")}


class Stop(Exception):
    pass


def cut(name):
    if OPT.get("mlpstop") == name:
        arrive(C_P4)
        A.drain_vm()
        dump_stamps()
        A("s_endpgm")


KV, CS, FK, FC, FH, FX, FG, FO, FG2 = 0x0, 0x40000, 0x48000, 0x49000, 0x50000, 0x58000, 0x60000, 0x68000, 0x70000
TS = 0x80000
HB, ST, X1, HH, OB = 0x100000, 0x2C0000, 0x300000, 0x500000, 0xC00000
WS_SIZE = 0xE00000
OOB = 0x7FFF0000
LX, LA, LQ, LS = 0, 57344, 114688, 159744
LDS_SIZE = 163840
(C_PA, C_W2, C_WQ, C_Q, C_QD, C_MAX, C_MRG, C_R1, C_XA, C_XB, C_P4, C_R2, C_R3, N_H, N_X, N_G, N_G2, N_O, N_K, N_C,
 G_H, G_X, G_G, G_G2, G_O, G_K, L_KM, L_KP, L_MODE) = [LS + 4 * i for i in range(29)]
L_QN, L_STAT = LS + 1024, LS + 2048
L_MX = LS + 256
L_QG, L_VT = LA + 16384, LA + 24576
NRING = 12
assert L_QG % 8192 == 0
LOG2E = 1.4426950408889634
QSCALE = 28 ** -0.5 * LOG2E
GC1 = -2 * LOG2E * math.sqrt(2 / math.pi)
GC2 = GC1 * 0.044715
EPS = 1e-5
BOUND2 = 3500.0
ONES = 0x3F803F80
GSPIN, LSPIN = 20000, 400000
SX, SA, SQ, SW, S4, SO, SOUT, SD, S2 = 4, 8, 12, 16, 20, 24, 28, 32, 36
P_X, P_WQ, P_WK, P_WV, P_WO, P_W1, P_W2, P_W3, P_W4, P_OUT, P_DBG, P_WS = 40, 42, 44, 46, 48, 52, 54, 56, 58, 60, 62, 64
sN = 66
sW8, sW, sTB, sCB, sTT, sP, sGT = 68, 69, 70, 71, 72, 73, 74
sHI = 76
sINV = 78
sT0, sT1, sT2, sT3, sT4, sT5 = 80, 81, 82, 83, 84, 85
sPA, sPB, sB1, sB4, sSP = 86, 87, 88, 89, 90
sK, sV, sR, sRG, sRH = 91, 92, 93, 96, 97
sXC, sLOC = 75, 3
sTS = 40
vLANE, vL16, vTRN, vTRD, vT0, vT1, vT2, vT3 = 0, 1, 2, 3, 4, 5, 6, 7
MF = "v_mfma_f32_32x32x16_bf16"

A = Asm()
stamps = {"n": 0}


def stamp():
    if PROFILE:
        i = stamps["n"]
        stamps["n"] += 1
        A(f"s_waitcnt lgkmcnt(0)\n{CLOCK} {s(94,2)}\ns_waitcnt lgkmcnt(0)\ns_mov_b32 {s(sTS+i)}, s94")
        if "both" in OPT:
            A(f"s_memrealtime {s(94,2)}\ns_and_b32 {s(sTS+i)}, {s(sTS+i)}, 0xfffff\ns_waitcnt lgkmcnt(0)\n"
              f"s_lshl_b32 s94, s94, 20\ns_or_b32 {s(sTS+i)}, {s(sTS+i)}, s94")
        A.lg = []


def early_stamp(i):
    if "startup" in OPT:
        A(f"s_memtime {s(94,2)}\ns_waitcnt lgkmcnt(0)\ns_mov_b32 {s([98, 99, 100, 101, 3, 75, 97][i])}, s94")


def early_dump():
    if "startup" in OPT:
        for i, r in enumerate([98, 99, 100, 101, 3, 75, 97]):
            A(f"s_mov_b32 {s(sTS+i)}, {s(r)}")
        stamps["n"] = 7
        stamp()
        dump_stamps()
        A("s_endpgm")


def dump_stamps():
    if PROFILE:
        n = stamps["n"]
        A(f"s_lshl_b32 {s(sT0)}, s2, 3\ns_add_u32 {s(sT0)}, {s(sT0)}, {s(sW8)}\ns_lshl_b32 {s(sT0)}, {s(sT0)}, 7\n"
          f"s_add_u32 {s(sT0)}, {s(sT0)}, {TS}\nv_mov_b32 {v(vT1)}, 0")
        for i in range(n):
            A(f"v_mov_b32 {v(vT0)}, {s(sTS+i)}\nbuffer_store_dword {v(vT0)}, {v(vT1)}, {s(SW,4)}, {s(sT0)} offen offset:{4*i}")
        A.drain_vm()
    stamps["n"] = 0


def srd(r, ptr, size):
    A(f"s_mov_b32 {s(r)}, {s(ptr)}\ns_mov_b32 {s(r+1)}, {s(ptr+1)}\ns_mov_b32 {s(r+2)}, {size}\ns_mov_b32 {s(r+3)}, 0x20000")


def mfma(d, x, y, c=None):
    A(f"{MF} {d}, {x}, {y}, {d if c is None else c}")


def dma(m0_base, m0_off, voff, desc, soff, tag, imm=0, sc=""):
    if m0_base is None:
        A(f"s_mov_b32 m0, {m0_off - imm}")
    else:
        A(f"s_add_u32 m0, {s(m0_base)}, {m0_off - imm}")
    pre, so = soff
    if pre:
        A(pre)
    else:
        A("s_nop 0")
    A.vmem(f"buffer_load_dwordx4 {v(voff)}, {s(desc,4)}, {so} offen" + (f" offset:{imm}" if imm else "") + f"{sc} lds", tag)


def tr(dst, addr, off, second, tag):
    k, i = dst
    r = v if k == "v" else a
    A.ds(f"ds_read_b64_tr_b16 {r(i,2)}, {v(addr)} offset:{off}", tag)
    A.ds(f"ds_read_b64_tr_b16 {r(i+2,2)}, {v(addr)} offset:{off+second}", tag)


def arrive(cnt):
    A(f"s_mov_b64 exec, 1\nv_mov_b32 {v(vT0)}, {cnt}\nv_mov_b32 {v(vT1)}, 1")
    A.ds(f"ds_add_u32 {v(vT0)}, {v(vT1)}", "cnt")
    A("s_mov_b64 exec, -1")


def await_cnt(cnt, target=4):
    lp, ok = A.newlabel("ls"), A.newlabel("lk")
    A(f"v_mov_b32 {v(vT0)}, {cnt}\ns_mov_b32 {s(sSP)}, 0")
    A.label(lp)
    A(f"""ds_read_b32 {v(vT1)}, {v(vT0)}
          s_add_u32 {s(sSP)}, {s(sSP)}, 1
          s_waitcnt lgkmcnt(0)
          v_readfirstlane_b32 {s(sT0)}, {v(vT1)}
          s_cmp_ge_u32 {s(sT0)}, {target}
          s_cbranch_scc1 {ok}
          {"s_sleep " + OPT["lsleep"] if "lsleep" in OPT else ""}
          s_cmp_lt_u32 {s(sSP)}, {LSPIN}
          s_cbranch_scc1 {lp}""")
    A.label(ok)
    A.lg = []


def gate(go, setup, tmp, payload=None, release=True):
    lp, ok, rest = A.newlabel("gs"), A.newlabel("gk"), A.newlabel("gw")
    every = "allpoll" in OPT and not payload
    if not every:
        A(f"s_cmp_lg_u32 {s(sW)}, 0\ns_cbranch_scc1 {rest}")
    setup()
    A(f"s_mov_b32 {s(sSP)}, 0")
    A.label(lp)
    n = 4 if payload else 2
    A(f"""buffer_load_dwordx{n} {v(tmp,n)}, {v(vT2)}, {s(SW,4)}, 0 offen sc1
          s_add_u32 {s(sSP)}, {s(sSP)}, 1
          s_waitcnt vmcnt(0)
          v_cmp_eq_u64 vcc, {s(sN,2)}, {v(tmp,2)}
          s_or_b64 vcc, vcc, {s(sINV,2)}
          s_cmp_eq_u64 vcc, -1
          s_cbranch_scc1 {ok}
          {"" if release else "s_sleep 8"}
          s_cmp_lt_u32 {s(sSP)}, {GSPIN}
          s_cbranch_scc1 {lp}""")
    A.label(ok)
    if every:
        return
    if payload:
        payload()
    if not release:
        A.label(rest)
        return
    keep = list(A.lg)
    arrive(go)
    A.lg = keep
    A.label(rest)
    await_cnt(go, 1)


def peek_issue(setup, data=vT0, addr=vT2, n=2):
    setup()
    if addr != vT2:
        A(f"v_mov_b32 {v(addr)}, {v(vT2)}")
    A.vmem(f"buffer_load_dwordx{n} {v(data,n)}, {v(addr)}, {s(SW,4)}, 0 offen sc1", "peek")


def peek_check(data=vT0, addr=vT2, n=2):
    lp, ok = A.newlabel("ps"), A.newlabel("pk")
    A.wait_vm("peek")
    A(f"s_mov_b32 {s(sSP)}, {GSPIN}")
    A.label(lp)
    A(f"""v_cmp_eq_u64 vcc, {s(sN,2)}, {v(data,2)}
          s_or_b64 vcc, vcc, {s(sINV,2)}
          s_cmp_eq_u64 vcc, -1
          s_cbranch_scc1 {ok}
          s_sub_u32 {s(sSP)}, {s(sSP)}, 1
          s_cbranch_scc1 {ok}
          buffer_load_dwordx{n} {v(data,n)}, {v(addr)}, {s(SW,4)}, 0 offen sc1
          s_waitcnt vmcnt(0)
          s_branch {lp}""")
    A.label(ok)


def lanes_to(addr_reg):
    A(f"s_mov_b64 vcc, {s(sINV,2)}\nv_mov_b32 {v(vT3)}, {OOB}\nv_cndmask_b32 {v(vT2)}, {v(addr_reg)}, {v(vT3)}, vcc")


def hstore(stores, tag=None, allow=True):
    if not allow:
        for t in stores:
            A.vmem(t + " sc1", tag)
        return
    near, done = A.newlabel("hn"), A.newlabel("hd")
    A(f"s_cmp_lg_u32 {s(sLOC)}, 0\ns_cbranch_scc1 {near}")
    for t in stores:
        A(t + " sc1")
    A(f"s_branch {done}")
    A.label(near)
    for t in stores:
        if tag is None:
            A(t)
        else:
            A.vmem(t, tag)
    A.label(done)


def note_die(data):
    A(f"""v_cmp_eq_u32 vcc, {s(sXC)}, {v(data)}
          s_and_b32 {s(sT0)}, vcc_lo, {s(sT2)}
          s_cmp_eq_u32 {s(sT0)}, {s(sT2)}
          s_cselect_b32 {s(sT0)}, {0 if "remote" in OPT else 1}, 0
          v_mov_b32 {v(vT0)}, {L_MODE}
          v_mov_b32 {v(vT1)}, {s(sT0)}
          ds_write_b32 {v(vT0)}, {v(vT1)}""")


def read_mode():
    A(f"""v_mov_b32 {v(vT0)}, {L_MODE}
          ds_read_b32 {v(vT1)}, {v(vT0)}
          s_waitcnt lgkmcnt(0)
          v_readfirstlane_b32 {s(sLOC)}, {v(vT1)}""")
    A.lg = []


def warm(dst, voff, soff, mask):
    if "nowarm" in OPT:
        return
    if isinstance(mask, str):
        A(f"s_bfm_b64 exec, {len(mask[2:]) * 4}, 0")
    else:
        A(f"s_mov_b64 exec, {mask}")
    A.vmem(f"buffer_load_dword {a(dst)}, {v(voff)}, {s(SW,4)}, {s(soff)} offen sc1", "warm")
    A("s_mov_b64 exec, -1")


def signal(cnt, soff_expr, tags=None, payload=None, near=False):
    skip = A.newlabel("sg")
    if tags is None:
        A.drain_vm()
    else:
        A.wait_vm(tags)
    A(f"""s_mov_b64 exec, 1
          v_mov_b32 {v(vT0)}, {cnt}
          v_mov_b32 {v(vT1)}, 1
          ds_add_rtn_u32 {v(vT1)}, {v(vT0)}, {v(vT1)}""")
    if payload:
        A(f"ds_read_b32 {v(vT2)}, {v(vT0)} offset:{payload - cnt}")
    A(soff_expr)
    A(f"""s_waitcnt lgkmcnt(0)
          v_readfirstlane_b32 {s(sT1)}, {v(vT1)}
          s_cmp_lg_u32 {s(sT1)}, 3
          s_cbranch_scc1 {skip}
          v_mov_b32 {v(vT0)}, {s(sN)}
          v_mov_b32 {v(vT1)}, {s(sN+1)}
          v_mov_b32 {v(vT3)}, 0""")
    if not payload:
        A(f"v_mov_b32 {v(vT2)}, {s(sXC)}")
    st = f"buffer_store_dwordx4 {v(vT0,4)}, {v(vT3)}, {s(SW,4)}, {s(sT0)} offen"
    if near:
        hstore([st])
    else:
        A(st + " sc1")
    A.label(skip)
    A("s_mov_b64 exec, -1\ns_nop 0")
    A.lg = []


def nonce_issue(tmp):
    A(f"v_mov_b32 {v(vT3)}, 0")
    A.vmem(f"buffer_load_dwordx2 {v(tmp,2)}, {v(vT3)}, {s(SD,4)}, 0 offen sc1", "nonce")


def nonce_take(tmp):
    lp, ok = A.newlabel("ns"), A.newlabel("nk")
    A.wait_vm("nonce")
    A(f"s_mov_b32 {s(sSP)}, 0\nv_mov_b32 {v(vT3)}, 0")
    A.label(lp)
    A(f"""v_readfirstlane_b32 {s(sN)}, {v(tmp)}
          v_readfirstlane_b32 {s(sN+1)}, {v(tmp+1)}
          s_add_u32 {s(sSP)}, {s(sSP)}, 1
          s_cmp_lg_u64 {s(sN,2)}, 0
          s_cbranch_scc1 {ok}
          s_cmp_ge_u32 {s(sSP)}, {GSPIN}
          s_cbranch_scc1 {ok}
          buffer_load_dwordx2 {v(tmp,2)}, {v(vT3)}, {s(SD,4)}, 0 offen sc1
          s_waitcnt vmcnt(0)
          s_branch {lp}""")
    A.label(ok)


def halves(x, t):
    A(f"v_mov_b32 {v(t)}, {v(x)}\ns_nop 1\nv_permlane32_swap_b32 {v(x)}, {v(t)}")


def wave_max(x, full):
    for sh in (1, 2, 4, 8):
        A(f"s_nop 1\nv_max_f32_dpp {v(x)}, {v(x)}, {v(x)} row_shr:{sh} row_mask:0xf bank_mask:0xf bound_ctrl:0")
    A(f"s_nop 1\nv_max_f32_dpp {v(x)}, {v(x)}, {v(x)} row_bcast:15 row_mask:0xa bank_mask:0xf")
    if full:
        A(f"s_nop 1\nv_max_f32_dpp {v(x)}, {v(x)}, {v(x)} row_bcast:31 row_mask:0xc bank_mask:0xf")
    A("s_nop 1")


def gelu_ops(y, t, dst, c1, c2, ri):
    o = []
    for e in (0, 1):
        o.append(f"v_mul_f32 {v(t+e)}, {v(y+e)}, {v(y+e)}")
    for e in (0, 1):
        o.append(f"v_fma_f32 {v(t+e)}, {v(t+e)}, {v(c2)}, {v(c1)}")
    for e in (0, 1):
        o.append(f"v_mul_f32 {v(t+e)}, {v(t+e)}, {v(y+e)}")
    for e in (0, 1):
        o.append(f"v_exp_f32 {v(t+e)}, {v(t+e)}")
    for e in (0, 1):
        o.append(f"v_fma_f32 {v(t+e)}, {v(t+e)}, {v(ri)}, {v(ri)}")
    for e in (0, 1):
        o.append(f"v_rcp_f32 {v(t+e)}, {v(t+e)}")
    for e in (0, 1):
        o.append(f"v_mul_f32 {v(t+e)}, {v(t+e)}, {v(y+e)}")
    o.append(f"v_cvt_pk_bf16_f32 {v(dst)}, {v(t)}, {v(t+1)}")
    return o


def ring_addr(slot):
    return (sPA, slot * 2048) if slot < 7 else (sPB, (slot - 7) * 2048)


def reduce_out(srcs, cnt, vbase, offs, fill=()):
    def wr(i):
        k, r = srcs[i // 4]
        reg = (v if k == "v" else a)(r + 4 * (i % 4), 4)
        b, o = offs[i]
        A.ds(f"ds_write_b128 {v(vbase[b])}, {reg} offset:{o}", "red")
        if i == 11:
            arrive(cnt)
    weave(A, [lambda i=i: wr(i) for i in range(12)], list(fill))


def reduce_in(acc, tmp, cnt, mkaddr, offs, between=None):
    tmp = tmp if isinstance(tmp, list) else [tmp, tmp + 16, tmp + 32]
    await_cnt(cnt)
    for sl in (1, 2, 3):
        regs = mkaddr(sl)
        for q in range(4):
            b, o = offs[(sl - 1) * 4 + q]
            A.ds(f"ds_read_b128 {v(tmp[sl-1] + 4*q, 4)}, {v(regs[b])} offset:{o}", ("rd", sl))
    if between:
        between()
    for sl in (1, 2, 3):
        A.wait_lg(("rd", sl))
        for i in range(16):
            A(f"v_add_f32 {v(acc+i)}, {v(acc+i)}, {v(tmp[sl-1] + i)}")


vC8, vC7, vXF, vWQ = 100, 101, 104, 109
SXR = [16, 20, 88, 92, 112, 116, 120]


def image(base, off, voff, desc, sreg_expr, rs, tag, halves_=(0, 1)):
    for h in halves_:
        dma(base, off + h * 1024, voff, desc, (sreg_expr(h * 8 * rs), s(sT0)), tag)


def gaps(mfmas, pieces):
    n, m, done = len(mfmas), len(pieces), 0
    for i, f in enumerate(mfmas):
        f()
        while done < -(-m * (i + 1) // n):
            pieces[done]()
            done += 1


def prologue():
    A(f"""s_cmp_ge_u32 s2, 256
          s_cbranch_scc1 L_end
          s_load_dwordx16 {s(40,16)}, s[0:1], 0
          s_load_dwordx8 {s(56,8)}, s[0:1], 64
          s_load_dwordx2 {s(64,2)}, s[0:1], 96
          s_memrealtime {s(sN,2)}
          {CLOCK + " " + s(98,2) if PROFILE else ""}
          s_getpc_b64 {s(sT2,2)}
          v_lshrrev_b32 {v(vT0)}, 6, v0
          s_lshr_b32 {s(sT0)}, s2, 3
          v_readfirstlane_b32 {s(sW8)}, {v(vT0)}
          v_and_b32 {v(vLANE)}, 63, v0
          v_lshlrev_b32 {v(vT2)}, 7, {v(vLANE)}
          s_and_b32 {s(sT2)}, {s(sT2)}, 0xffffff00""")
    A(f"""s_mul_i32 {s(sT4)}, {s(sT0)}, 26
          s_lshr_b32 {s(sT4)}, {s(sT4)}, 8
          s_mul_i32 {s(sT4)}, {s(sT4)}, 10
          s_sub_u32 {s(sT4)}, {s(sT0)}, {s(sT4)}
          s_lshl_b32 {s(sT4)}, {s(sT4)}, 3
          s_add_u32 {s(sT4)}, {s(sT4)}, {s(sW8)}
          s_lshl_b32 {s(sT4)}, {s(sT4)}, 9
          v_add_u32 {v(vT1)}, {s(sT4)}, {v(vT2)}
          v_min_u32 {v(vT1)}, L_code_end-{NAME}_kernel-4, {v(vT1)}
          s_mov_b64 exec, 15""")
    if "nopf" not in OPT:
        A.vmem(f"global_load_dword {a(124)}, {v(vT1)}, {s(sT2,2)}", "pf")
    A("s_mov_b64 exec, -1")
    nk = int(OPT.get("nk", 8))
    if nk == 8:
        A(f"""s_and_b32 {s(sT1)}, {s(sT0)}, 3
              s_and_b32 {s(sTB)}, s2, 7
              s_lshl_b32 {s(sTB)}, {s(sTB)}, 2
              s_add_u32 {s(sTB)}, {s(sTB)}, {s(sT1)}
              s_lshr_b32 {s(sCB)}, {s(sT0)}, 2""")
    else:
        per = 32 // nk
        perm = [int(c) for c in OPT.get("perm", "40516273")]
        A(f"""s_and_b32 {s(sT1)}, s2, 7
              s_lshl_b32 {s(sT1)}, {s(sT1)}, 2
              s_lshr_b32 {s(sT1)}, {sum(p << (4 * i) for i, p in enumerate(perm))}, {s(sT1)}
              s_and_b32 {s(sT1)}, {s(sT1)}, 7
              s_min_u32 {s(sT2)}, {s(sT1)}, {nk - 1}
              s_add_u32 {s(sT2)}, {s(sT2)}, 1
              s_mul_i32 {s(sT2)}, {s(sT2)}, {per}
              s_lshl_b32 {s(sT3)}, {s(sT1)}, 5
              s_add_u32 {s(sT3)}, {s(sT3)}, {s(sT0)}
              s_sub_u32 {s(sT3)}, {s(sT3)}, {s(sT2)}
              s_mul_i32 {s(sTB)}, {s(sT3)}, 9363
              s_lshr_b32 {s(sTB)}, {s(sTB)}, 16
              s_mul_i32 {s(sCB)}, {s(sTB)}, 7
              s_sub_u32 {s(sCB)}, {s(sT3)}, {s(sCB)}
              s_add_u32 {s(sCB)}, {s(sCB)}, 1
              s_mul_i32 {s(sT2)}, {s(sT1)}, {per}
              s_add_u32 {s(sT2)}, {s(sT2)}, {s(sT0)}
              s_cmp_lt_u32 {s(sT1)}, {nk}
              s_cselect_b32 {s(sT1)}, {per}, 0
              s_cmp_lt_u32 {s(sT0)}, {s(sT1)}
              s_cselect_b32 {s(sTB)}, {s(sT2)}, {s(sTB)}
              s_cselect_b32 {s(sCB)}, 0, {s(sCB)}
              s_and_b32 {s(sT1)}, {s(sTB)}, 3""")
    A(f"""v_lshlrev_b32 {v(vL16)}, 4, {v(vLANE)}
          v_lshrrev_b32 {v(vC8)}, 3, {v(vLANE)}
          v_lshrrev_b32 {v(vT0)}, 2, {v(vLANE)}
          v_and_b32 {v(vT0)}, 4, {v(vT0)}
          v_xor_b32 {v(vT0)}, {v(vT0)}, {v(vLANE)}
          v_and_b32 {v(vT0)}, 7, {v(vT0)}
          v_lshlrev_b32 {v(vC7)}, 4, {v(vT0)}""")
    A(f"""s_lshl_b32 {s(sT1)}, {s(sT1)}, 1
          s_add_u32 {s(sT1)}, {s(sT1)}, {s(sW8)}
          s_and_b32 {s(sT1)}, {s(sT1)}, 7
          s_lshl_b32 {s(sT4)}, {s(sT1)}, 10
          s_lshl_b32 {s(sT5)}, {s(sT1)}, 3
          v_add_u32 {v(vT1)}, {s(sT5)}, {v(vC8)}
          s_lshl_b32 {s(sT2)}, {s(sCB)}, 7
          s_sub_u32 {s(sT2)}, {s(sT2)}, 128
          v_mul_u32_u24 {v(vT3)}, 896, {v(vT1)}
          v_add3_u32 {v(103)}, {v(vT3)}, {v(vC7)}, {s(sT2)}
          s_and_b32 {s(sW)}, {s(sW8)}, 3
          s_mul_i32 {s(sT1)}, {s(sW)}, 7168
          v_add_u32 {v(vT3)}, {s(sT1)}, {v(vL16)}
          s_mul_i32 {s(sT1)}, {s(sW8)}, 7168
          s_cmp_eq_u32 {s(sCB)}, 0
          s_cselect_b64 vcc, -1, 0
          s_cselect_b32 {s(sT1)}, {s(sT1)}, {s(sT4)}
          s_mov_b32 {s(sT2)}, 1024
          s_cselect_b32 {s(sT3)}, {s(sT2)}, {64 * 896}
          s_cselect_b32 {s(sT5)}, {s(sT2)}, 8192
          v_cndmask_b32 {v(103)}, {v(103)}, {v(vT3)}, vcc
          s_add_u32 m0, {s(sT1)}, {LA}""")
    A(f"""s_lshl_b32 {s(sB1)}, {s(sTB)}, 3
          s_add_u32 {s(sB1)}, {s(sB1)}, {s(sCB)}
          s_lshl_b32 {s(sB1)}, {s(sB1)}, 3
          s_add_u32 {s(sB1)}, {s(sB1)}, {s(sW8)}
          s_mul_i32 {s(sB1)}, {s(sB1)}, 896
          s_mul_i32 {s(sB4)}, {s(sTB)}, 7
          s_add_u32 {s(sB4)}, {s(sB4)}, {s(sW8)}
          s_mul_i32 {s(sB4)}, {s(sB4)}, {2 * 896}
          s_mul_i32 {s(sT0)}, {s(sCB)}, 112
          s_add_u32 {s(sB4)}, {s(sB4)}, {s(sT0)}
          s_cmp_eq_u32 {s(sW8)}, 7
          s_cselect_b32 {s(sB4)}, {OOB}, {s(sB4)}
          v_lshrrev_b32 {v(102)}, 1, {v(vLANE)}
          v_mul_u32_u24 {v(102)}, 896, {v(102)}
          v_and_b32 {v(vT3)}, 1, {v(vLANE)}
          v_mul_u32_u24 {v(vT3)}, 120, {v(vT3)}
          v_add_u32 {v(102)}, {v(102)}, {v(vT3)}
          s_mov_b32 {s(SX+2)}, 1835008
          s_mov_b32 {s(SX+3)}, 0x20000
          s_mov_b32 {s(SQ+2)}, 401408
          s_mov_b32 {s(SQ+3)}, 0x20000
          s_mov_b32 {s(SA+3)}, 0x20000
          s_mov_b32 {s(SA+2)}, 25088
          s_cmp_eq_u32 {s(sCB)}, 0
          s_cselect_b32 {s(SA+2)}, {s(SA+2)}, 401408
          s_mov_b32 {s(sT0)}, 0
          s_cmp_lt_u32 {s(sW8)}, 4
          s_waitcnt lgkmcnt(0)
          s_cselect_b64 {s(SA,2)}, {s(P_WK,2)}, {s(P_WV,2)}
          s_cmp_eq_u32 {s(sCB)}, 0
          s_cselect_b64 {s(SA,2)}, {s(SA,2)}, {s(P_W1,2)}
          s_mov_b64 {s(SX,2)}, {s(P_X,2)}
          s_mov_b64 {s(SQ,2)}, {s(P_WQ,2)}""")
    early_stamp(1)
    if "nopre" not in OPT:
        A("s_mov_b64 exec, 0x7f")
        A.vmem(f"buffer_load_dword {a(126)}, {v(vT2)}, {s(SX,4)}, {s(sB1)} offen", "pre")
        A("s_mov_b64 exec, 15")
        A.vmem(f"buffer_load_dword {a(125)}, {v(102)}, {s(SQ,4)}, {s(sB4)} offen", "pre")
        A("s_mov_b64 exec, -1")
    for n in range(7):
        if n:
            A(f"s_add_u32 m0, m0, {s(sT5)}\ns_add_u32 {s(sT0)}, {s(sT0)}, {s(sT3)}")
        A.vmem(f"buffer_load_dwordx4 {v(103)}, {s(SA,4)}, {s(sT0)} offen lds", "WA")
    early_stamp(2)
    A(f"""s_lshl_b32 {s(sT0)}, {s(sTB)}, 6
          v_add_u32 {v(vT1)}, {s(sT0)}, {v(vT1)}
          v_mul_u32_u24 {v(vT2)}, 896, {v(vT1)}
          v_lshrrev_b32 {v(vT1)}, 1, {v(vT1)}
          v_xor_b32 {v(vT1)}, {v(vT1)}, {v(vLANE)}
          v_and_b32 {v(vT1)}, 7, {v(vT1)}
          v_lshl_add_u32 {v(vWQ)}, {v(vT1)}, 4, {v(vT2)}
          s_and_b32 {s(sTT)}, {s(sW8)}, 1
          s_lshr_b32 {s(sP)}, {s(sW)}, 1""")
    if PROFILE:
        A(f"s_mov_b32 {s(sTS)}, s98")
        stamps["n"] = 1
    srd(SW, P_WS, WS_SIZE)
    srd(SD, P_DBG, 256)
    A(f"""s_cmp_lg_u32 {s(sW8)}, 0
          s_cbranch_scc1 L_nz
          v_lshlrev_b32 {v(vT0)}, 2, {v(vLANE)}
          v_add_u32 {v(vT0)}, {LS}, {v(vT0)}
          v_mov_b32 {v(vT1)}, 0
          ds_write_b32 {v(vT0)}, {v(vT1)}
          s_waitcnt lgkmcnt(0)
          s_cmp_lg_u32 s2, 0
          s_cbranch_scc1 L_nz
          s_or_b32 {s(sN)}, {s(sN)}, 1
          v_mov_b32 {v(vT2)}, {s(sN)}
          v_mov_b32 {v(vT3)}, {s(sN+1)}
          s_mov_b64 exec, 1
          buffer_store_dwordx2 {v(vT2,2)}, {v(vT1)}, {s(SD,4)}, 0 offen sc1
          s_mov_b64 exec, -1""")
    A.label("L_nz")
    A(f"""s_lshl_b32 {s(sGT)}, {s(sTB)}, 1
          s_add_u32 {s(sGT)}, {s(sGT)}, {s(sTT)}
          s_mov_b32 {s(sHI)}, 0
          s_mov_b32 {s(sHI+1)}, -1
          s_getreg_b32 {s(sXC)}, hwreg(HW_REG_XCC_ID, 0, 4)
          s_mov_b32 {s(sLOC)}, 0""")
    A(f"""v_bfe_u32 {v(vT0)}, {v(vLANE)}, 2, 2
          v_lshlrev_b32 {v(vT0)}, 7, {v(vT0)}
          v_lshrrev_b32 {v(vT1)}, 5, {v(vLANE)}
          v_lshl_add_u32 {v(vTRN)}, {v(vT1)}, 10, {v(vT0)}
          v_lshl_add_u32 {v(vTRD)}, {v(vT1)}, 9, {v(vT0)}
          v_bfe_u32 {v(vT0)}, {v(vLANE)}, 4, 1
          v_and_b32 {v(vT2)}, 3, {v(vLANE)}
          v_lshlrev_b32 {v(vT2)}, 3, {v(vT2)}
          v_lshl_add_u32 {v(103)}, {v(vT0)}, 5, {v(vT2)}
          v_bfe_u32 {v(vT0)}, {v(vLANE)}, 3, 1
          v_lshlrev_b32 {v(102)}, 6, {v(vT0)}""")
    A(f"""v_and_b32 {v(vT3)}, 31, {v(vLANE)}
          s_lshl_b32 {s(sT0)}, {s(sTT)}, 5
          v_add_u32 {v(vT0)}, {s(sT0)}, {v(vT3)}
          v_bfe_u32 {v(vT2)}, {v(vT0)}, 1, 3
          v_lshlrev_b32 {v(vT0)}, 7, {v(vT0)}
          v_xor_b32 {v(vT2)}, {v(vT2)}, {v(vT1)}
          v_lshl_add_u32 {v(vXF)}, {v(vT2)}, 4, {v(vT0)}
          v_xor_b32 {v(vXF+1)}, 32, {v(vXF)}
          v_xor_b32 {v(vXF+2)}, 64, {v(vXF)}
          v_xor_b32 {v(vXF+3)}, 96, {v(vXF)}
          s_lshr_b32 {s(sT1)}, {s(sW8)}, 1
          s_lshl_b32 {s(sT0)}, {s(sT1)}, 5
          v_xor_b32 {v(108)}, {s(sT0)}, {v(vXF)}
          s_lshl_b32 {s(sT0)}, {s(sTT)}, 10
          s_add_u32 {s(sT0)}, {s(sT0)}, {L_STAT}
          v_lshl_add_u32 {v(110)}, {v(vT3)}, 3, {s(sT0)}
          s_lshl_b32 {s(sT0)}, {s(sT1)}, 8
          v_add_u32 {v(111)}, {s(sT0)}, {v(110)}
          v_mov_b32 {v(30)}, 0
          v_mov_b32 {v(31)}, 0
          s_mov_b32 {s(sT5)}, {ONES}""")
    for i in range(4):
        A(f"v_mov_b32 {v(96+i)}, {ONES}")
    A(f"""s_lshl_b32 {s(sT0)}, s2, 3
          s_add_u32 {s(sT0)}, {s(sT0)}, {s(sW8)}
          s_cmp_ge_u32 {s(sT0)}, {392 if OPT.get("tw", "23") == "23" else 4096}
          s_cselect_b64 {s(SA,2)}, {s(P_W3,2)}, {s(P_W2,2)}
          s_mov_b32 {s(SA+2)}, 401408
          s_cselect_b32 {s(SA+2)}, 1605632, {s(SA+2)}
          s_cselect_b32 {s(sT1)}, 392, 0
          s_sub_u32 {s(sT0)}, {s(sT0)}, {s(sT1)}
          s_lshl_b32 {s(sRG)}, {s(sT0)}, {10 if OPT.get("tw", "23") == "23" else 8}""")
    A(f"""s_lshl_b32 {s(sT0)}, {s(sP)}, 6
          v_xor_b32 {v(vT0)}, {v(103)}, {v(102)}
          v_xor_b32 {v(vT0)}, {s(sT0)}, {v(vT0)}
          v_add_u32 {v(vT0)}, {v(vT0)}, {v(vTRN)}
          v_lshrrev_b32 {v(vT1)}, 7, {v(vTRN)}
          v_mul_u32_u24 {v(vT1)}, 56, {v(vT1)}
          s_mul_i32 {s(sT0)}, {s(sP)}, 28672
          v_add3_u32 {v(vT1)}, {v(vT1)}, {v(103)}, {s(sT0)}
          s_cmp_eq_u32 {s(sCB)}, 0
          s_cselect_b64 vcc, -1, 0
          v_cndmask_b32 {v(vT0)}, {v(vT0)}, {v(vT1)}, vcc
          v_add_u32 {v(29)}, {LA}, {v(vT0)}""")
    early_stamp(3)
    barrier()
    for kb in range(7):
        dma(sT4, LX + kb * 8192, vWQ, SX, (None, "0"), "X", imm=kb * 128)
    touch("x")
    early_stamp(4)
    A.wait_vm("WA")
    barrier()
    early_stamp(5)
    A(f"s_cmp_ge_u32 {s(sW8)}, 4\ns_cbranch_scc1 L_att")
    return list(A.vm)


def touch(where):
    if OPT.get("tat", "p1") != where:
        return
    A(f"v_lshlrev_b32 {v(vT0)}, 7, {v(vLANE)}\ns_mov_b64 exec, {255 if OPT.get('tw', '23') == '23' else 3}")
    A.vmem(f"buffer_load_dword {a(127)}, {v(vT0)}, {s(SA,4)}, {s(sRG)} offen", "t")
    A("s_mov_b64 exec, -1")


def stat_part(between):
    for j in range(7):
        A.ds(f"ds_read_b128 {v(SXR[j],4)}, {v(108)} offset:{j*8192}", ("sx", j))
    between()
    for j in range(7):
        A.wait_lg(("sx", j))
        for i in range(4):
            r = SXR[j] + i
            A(f"v_dot2c_f32_bf16 {v(30)}, {s(sT5)}, {v(r)}\nv_dot2c_f32_bf16 {v(31)}, {v(r)}, {v(r)}")
    A("s_nop 2")
    halves(30, vT2)
    halves(31, vT3)
    A(f"v_add_f32 {v(30)}, {v(30)}, {v(vT2)}\nv_add_f32 {v(31)}, {v(31)}, {v(vT3)}")
    A.ds(f"ds_write_b64 {v(111)}, {v(30,2)}", "statw")
    A.drain_lg()


def barrier():
    A("s_barrier")


def stat_read():
    for q in range(4):
        A.ds(f"ds_read_b64 {v(112+2*q,2)}, {v(110)} offset:{q*256}", "stat")


def stat_fin(vM, vVar):
    A.wait_lg("stat")
    for op in stat_fin_ops(vM, vVar):
        A(op)


def stat_fin_ops(vM, vVar):
    return (f"""v_add_f32 {v(112)}, {v(112)}, {v(114)}
          v_add_f32 {v(113)}, {v(113)}, {v(115)}
          v_add_f32 {v(116)}, {v(116)}, {v(118)}
          v_add_f32 {v(117)}, {v(117)}, {v(119)}
          v_add_f32 {v(112)}, {v(112)}, {v(116)}
          v_add_f32 {v(113)}, {v(113)}, {v(117)}
          v_mul_f32 {v(vM)}, {f32(1/448)}, {v(112)}
          v_mul_f32 {v(112)}, {v(vM)}, {v(vM)}
          v_mul_f32 {v(113)}, {f32(1/448)}, {v(113)}
          v_sub_f32 {v(113)}, {v(113)}, {v(112)}
          v_max_f32 {v(vVar)}, 0, {v(113)}""").split("\n")


def own_slot(base):
    return (f"s_lshl_b32 {s(sT0)}, {s(sTB)}, 3\ns_add_u32 {s(sT0)}, {s(sT0)}, {s(sCB)}\n"
            f"s_lshl_b32 {s(sT0)}, {s(sT0)}, 7\ns_add_u32 {s(sT0)}, {s(sT0)}, {base}")


late = []


def mlp(vm_entry):
    A.vm = list(vm_entry)
    vXD, vX1P, vW, vW3, vM, vR, vWA = 8, 16, 24, 26, 27, 28, 29
    vRA, vRB = [2, 3], [25, 31]
    acc, cs, ring, ones = 32, 48, 64, 96
    xnear, hnear = "x" in OPT.get("near", "xo"), "h" in OPT.get("near", "xo")
    A("s_setprio " + OPT.get("prio", "2"))
    vXA = 124
    setup = []
    for r, p, n in ((S2, P_W2, 401408), (SQ, P_W3, 1605632), (S4, P_W4, 1605632), (SO, P_WO, 401408), (SOUT, P_OUT, 1835008)):
        setup += [f"s_mov_b64 {s(r,2)}, {s(p,2)}", f"s_mov_b32 {s(r+2)}, {n}", f"s_mov_b32 {s(r+3)}, 0x20000"]
    setup += f"""s_max_u32 {s(sT1)}, {s(sCB)}, 1
          s_sub_u32 {s(sT1)}, {s(sT1)}, 1
          s_lshl_b32 {s(sT4)}, {s(sT1)}, 1
          s_add_u32 {s(sT4)}, {s(sT4)}, {s(sP)}
          s_mul_i32 {s(sPA)}, {s(sW)}, 14336
          s_mul_i32 {s(sPB)}, {s(sW)}, 11264
          s_add_u32 {s(sPB)}, {s(sPB)}, {LQ}
          s_mul_i32 {s(sB1)}, {s(sW)}, {112*896}
          s_mul_i32 {s(sB4)}, {s(sW)}, {448*896}
          s_and_b32 {s(sR)}, {s(sTB)}, 3
          s_lshl_b32 {s(sR)}, {s(sR)}, 1
          s_add_u32 {s(sR)}, {s(sR)}, {s(sCB)}
          s_cmp_ge_u32 {s(sR)}, 7
          s_cselect_b32 {s(sT0)}, 7, 0
          s_sub_u32 {s(sR)}, {s(sR)}, {s(sT0)}
          v_mul_u32_u24 {v(vT0)}, 896, {v(vC8)}
          s_lshl_b32 {s(sT0)}, {s(sT1)}, 7
          v_add3_u32 {v(vW)}, {v(vT0)}, {v(vC7)}, {s(sT0)}
          v_mul_u32_u24 {v(vT0)}, 3584, {v(vC8)}
          s_lshl_b32 {s(sT0)}, {s(sT1)}, 9
          s_lshl_b32 {s(sT2)}, {s(sW)}, 7
          s_add_u32 {s(sT0)}, {s(sT0)}, {s(sT2)}
          v_add3_u32 {v(vW3)}, {v(vT0)}, {v(vC7)}, {s(sT0)}
          s_lshl_b32 {s(sT0)}, {s(sP)}, 6
          v_xor_b32 {v(103)}, {v(103)}, {v(102)}
          v_xor_b32 {v(102)}, {s(sT0)}, {v(103)}
          s_lshl_b32 {s(sT3)}, {s(sT1)}, 13
          v_lshrrev_b32 {v(vT1)}, 5, {v(vLANE)}
          v_lshlrev_b32 {v(vT2)}, 4, {v(vT1)}
          v_xor_b32 {v(vXA)}, {v(vXF)}, {v(vT2)}
          v_xor_b32 {v(vXA)}, {s(sT0)}, {v(vXA)}
          v_lshl_add_u32 {v(vXA)}, {v(vT1)}, 3, {v(vXA)}
          v_add_u32 {v(vXA)}, {s(sT3)}, {v(vXA)}
          v_xor_b32 {v(vXA+1)}, 16, {v(vXA)}
          v_xor_b32 {v(vXA+2)}, 32, {v(vXA)}
          v_xor_b32 {v(vXA+3)}, 48, {v(vXA)}""".split("\n")

    def colsums(kstride, second):
        def step(ks):
            if ks < 28:
                tr(("a", 4 * ks), vWA, ks * kstride, second, ("w", ks))
            if ks >= 4:
                A.wait_lg(("w", ks - 4))
                mfma(v(cs, 16), a(4 * (ks - 4), 4), v(ones, 4), 0 if ks == 4 else None)
        weave(A, [lambda ks=ks: step(ks) for ks in range(32)], [lambda t=t: A(t) for t in setup])

    A(f"s_cmp_eq_u32 {s(sCB)}, 0\ns_cbranch_scc1 L_cskv")
    colsums(2048, 512)
    A.label("L_csdone")
    late.append(lambda: (A.label("L_cskv"), colsums(896, 224), A("s_branch L_csdone")))
    early_stamp(6)
    A.wait_vm("X")
    barrier()
    early_dump()
    stamp()
    NX = 6

    def xr(ks):
        A.ds(f"ds_read_b128 {v(ring + 4 * (ks % NX), 4)}, {v(vXF + (ks & 3))} offset:{(ks >> 2) * 8192}", ("x", ks))

    def first():
        for ks in range(NX - 1):
            xr(ks)
        for g in range(4):
            A.ds(f"ds_read_b64 {v(vXD+2*g,2)}, {v(vXA+g)}", "xd")
    stat_part(first)
    barrier()
    vC1g, vC2g, vRI, vR2 = 120, 121, 122, 123
    ne2 = int(OPT.get("ne2", 0))

    def w2dma(j, hs=(0, 1)):
        base, off = (sT3, LA + 24576 + j * 2048) if j < ne2 else (sPA, j * 2048)
        image(base, off, vW, S2, lambda e: f"s_add_u32 {s(sT0)}, {s(sB1)}, {j * 16 * 896 + e}", 896, "W2", hs)
    A(f"s_lshl_b32 {s(sT3)}, {s(sW)}, 13")
    fin = stat_fin_ops(vM, vR) + f"""v_add_f32 {v(vT0)}, {f32(EPS)}, {v(vR)}
          v_rsq_f32 {v(vT1)}, {v(vT0)}
          v_mov_b32 {v(vT3)}, {f32(EPS)}
          v_mul_f32 {v(vT2)}, {v(vT1)}, {v(vT1)}
          v_fma_f32 {v(vT2)}, {v(vT2)}, {v(vR)}, {v(vT3)}
          v_rsq_f32 {v(vT2)}, {v(vT2)}
          v_mov_b32 {v(vR)}, {v(vT1)}
          v_mul_f32 {v(vR2)}, {v(vT1)}, {v(vT2)}
          v_rcp_f32 {v(vRI)}, {v(vR2)}
          v_mul_f32 {v(vC1g)}, {f32(GC1)}, {v(vR2)}
          v_mul_f32 {v(vC2g)}, {v(vR2)}, {v(vR2)}
          v_mul_f32 {v(vC2g)}, {v(vC2g)}, {v(vR2)}
          v_mul_f32 {v(vC2g)}, {f32(GC2)}, {v(vC2g)}""".split("\n")
    fin += [f"v_mul_f32 {v(cs+i)}, {v(cs+i)}, {v(vM)}" for i in range(16)]
    for ks in range(28):
        if ks + NX - 1 < 28:
            xr(ks + NX - 1)
        if ks == 0:
            stat_read()
            nonce_issue(30)
        A.wait_lg(("x", ks))
        mfma(v(acc, 16), a(4 * ks, 4), v(ring + 4 * (ks % NX), 4), 0 if ks == 0 else None)
        if ks == 1:
            touch("p1")
        if 3 <= ks < 3 + 2 * ne2:
            skip = A.newlabel("w2")
            A(f"s_cmp_eq_u32 {s(sCB)}, 0\ns_cbranch_scc1 {skip}")
            w2dma((ks - 3) >> 1, ((ks - 3) & 1,))
            A.label(skip)
        if ks == 5:
            A.wait_lg("stat")
        if ks >= 5:
            for _ in range(3):
                if fin:
                    A(fin.pop(0))
    assert not fin
    arrive(C_PA)
    vm_kv = [t for t in A.vm if t != "W2"]
    A(f"s_cmp_eq_u32 {s(sCB)}, 0\ns_cbranch_scc1 L_kv\ns_nop 4")
    for i in range(16):
        A(f"v_sub_f32 {v(acc+i)}, {v(acc+i)}, {v(cs+i)}")
    stamp()
    pk = 64
    vHS = 74
    for i in range(8):
        for op in gelu_ops(acc + 2 * i, 72, pk + i, vC1g, vC2g, vRI):
            A(op)
        if i == 2:
            A(f"""v_and_b32 {v(vT0)}, 31, {v(vLANE)}
                  s_lshl_b32 {s(sT0)}, {s(sGT)}, 5
                  v_add_u32 {v(vT0)}, {s(sT0)}, {v(vT0)}
                  v_lshrrev_b32 {v(vT1)}, 5, {v(vLANE)}
                  v_lshlrev_b32 {v(vT1)}, 15, {v(vT1)}
                  v_lshl_add_u32 {v(vHS)}, {v(vT0)}, 4, {v(vT1)}
                  s_lshl_b32 {s(sT0)}, {s(sT4)}, 17
                  s_add_u32 {s(sT0)}, {s(sT0)}, {HB}
                  s_add_u32 {s(sT1)}, {s(sT0)}, 0x10000""")
        if i in (3, 7):
            A.vmem(f"buffer_store_dwordx4 {v(pk+(i&4),4)}, {v(vHS)}, {s(SW,4)}, {s(sT0 if i == 3 else sT1)} offen sc1", "hst")
    await_cnt(C_PA, 8)
    for j in range(ne2, 7):
        w2dma(j)
    nonce_take(30)
    signal(N_H, own_slot(FH), "hst")
    stamp()
    A(f"""s_add_u32 {s(sT0)}, {s(sT3)}, {LA + 24576}
          v_add3_u32 {v(32)}, {v(vTRD)}, {v(102)}, {s(sT0)}
          v_xor_b32 {v(33)}, 64, {v(32)}
          v_add_u32 {v(vT0)}, {s(sPA)}, {v(vTRD)}
          v_add_u32 {v(vT1)}, {s(sPB)}, {v(vTRD)}
          v_add_u32 {v(vRA[0])}, {v(vT0)}, {v(102)}
          v_xor_b32 {v(vRA[1])}, 64, {v(vRA[0])}
          v_add_u32 {v(vRB[0])}, {v(vT1)}, {v(102)}
          v_xor_b32 {v(vRB[1])}, 64, {v(vRB[0])}""")
    A.wait_vm("W2")
    for j in range(7):
        for b in range(2):
            tr(("a", 8 * j + 4 * b), 32 + b if j < ne2 else vRA[b], j * 2048, 1024, "w2")
    vH = 29
    A(f"""s_add_u32 {s(sT0)}, {s(sP)}, 1
          s_sub_u32 {s(sT1)}, 0, {s(sT0)}
          s_cmp_eq_u32 {s(sTT)}, 0
          s_cselect_b32 {s(sT0)}, {s(sT1)}, {s(sT0)}
          s_lshl_b32 {s(sT1)}, {s(sGT)}, 5
          s_add_u32 {s(sT1)}, {s(sT1)}, {s(sT0)}
          s_xor_b32 {s(sT2)}, {s(sGT)}, 1
          s_lshl_b32 {s(sT2)}, {s(sT2)}, 5
          s_add_u32 {s(sT2)}, {s(sT2)}, {s(sT0)}
          v_and_b32 {v(vT0)}, 31, {v(vLANE)}
          v_lshrrev_b32 {v(vT1)}, 5, {v(vLANE)}
          v_lshlrev_b32 {v(vT1)}, 15, {v(vT1)}
          v_mov_b32 {v(vT3)}, {OOB}""")
    for sl, sr in ((0, sT1), (1, sT2)):
        A(f"""v_add_u32 {v(vT2)}, {s(sr)}, {v(vT0)}
              v_cmp_gt_u32 vcc, 2048, {v(vT2)}
              v_lshl_add_u32 {v(vT2)}, {v(vT2)}, 4, {v(vT1)}
              s_nop 0
              v_cndmask_b32 {v(vH+sl)}, {v(vT3)}, {v(vT2)}, vcc""")

    def rot7(reg, u, scale, base):
        if u == 0:
            A(f"s_mul_i32 {s(reg)}, {s(sR)}, {scale}")
        else:
            A(f"""s_add_u32 {s(reg)}, {s(reg)}, {scale}
                  s_cmp_ge_u32 {s(reg)}, {7 * scale}
                  s_cselect_b32 {s(sT0)}, {7 * scale}, 0
                  s_sub_u32 {s(reg)}, {s(reg)}, {s(sT0)}""")

    def sdma(n, hs=(0, 1)):
        base, off = ring_addr(n % NRING)
        if n < 28:
            if n % 4 == 0 and 0 in hs:
                rot7(sRG, n // 4, 64 * 3584, None)
            image(base, off, vW3, SQ, lambda e: f"s_add_u32 {s(sT0)}, {s(sRG)}, {(n % 4) * 16 * 3584 + e}", 3584, ("S", n), hs)
        elif n < 56:
            p = n - 28
            if p % 2 == 0 and 0 in hs:
                rot7(sRG, (p % 14) // 2, 64 * 896, None)
                A(f"s_add_u32 {s(sT3)}, {s(sRG)}, {s(sB4)}")
            image(base, off, vW, S4, lambda e: f"s_add_u32 {s(sT0)}, {s(sT3)}, {(2 * (p // 14) + p % 2) * 16 * 896 + e}", 896, ("S", n), hs)
        else:
            k = n - 56
            image(base, off, vW, SO, lambda e: f"s_add_u32 {s(sT0)}, {s(sB1)}, {((k >> 1) * 28 + (k & 1) * 16) * 896 + e}", 896, ("S", n), hs)

    def sreg(n, b):
        return 8 * (n % 16) + 4 * b

    def sread(n, bs=(0, 1)):
        base, off = ring_addr(n % NRING)
        if n == 28 and 0 in bs:
            flip()
        A.wait_vm(("S", n))
        for b in bs:
            tr(("a", sreg(n, b)), (vRA if base == sPA else vRB)[b], off, 1024, ("s", n))

    def refill(n, hs=(0, 1)):
        if n < 64:
            A.wait_lg(("s", n - NRING))
            sdma(n, hs)

    def sread_p(n):
        return [lambda: sread(n, (0,)), lambda: sread(n, (1,))]

    def refill_p(n):
        return [lambda: refill(n, (0,)), lambda: refill(n, (1,))] if n < 64 else []

    def flip():
        A(f"s_lshl_b32 {s(sT0)}, {s(sP)}, 6")
        for r in vRA + vRB:
            A(f"v_xor_b32 {v(r)}, {s(sT0)}, {v(r)}")

    flip()
    early = int(OPT.get("early", 3))
    mid = int(OPT.get("mid", 6))
    A.drain_lg()
    arrive(C_W2)
    for n in range(early):
        sdma(n)
    cut("h")

    def setup_h():
        A(f"""v_lshrrev_b32 {v(vT0)}, 3, {v(vLANE)}
              s_sub_u32 {s(sT0)}, {s(sTB)}, 1
              v_add_u32 {v(vT0)}, {s(sT0)}, {v(vT0)}
              v_cmp_le_u32 vcc, 32, {v(vT0)}
              s_lshl_b32 {s(sT0)}, {s(sT0)}, 10
              s_add_u32 {s(sT0)}, {s(sT0)}, {FH}
              v_lshlrev_b32 {v(vT1)}, 7, {v(vLANE)}
              v_add_u32 {v(vT1)}, {s(sT0)}, {v(vT1)}
              s_mov_b32 {s(sINV)}, 0xff010101
              s_mov_b32 {s(sINV+1)}, -1
              s_or_b64 {s(sINV,2)}, {s(sINV,2)}, vcc""")
        lanes_to(vT1)

    acc0, vRW = 104, 120
    A(f"v_mul_f32 {v(vM)}, {v(vM)}, {v(vR)}")
    for i in range(8):
        A(f"""v_lshlrev_b32 {v(88)}, 16, {v(vXD+i)}
              v_and_b32 {v(89)}, 0xffff0000, {v(vXD+i)}
              v_fma_f32 {v(acc0+2*i)}, {v(88)}, {v(vR)}, -{v(vM)}
              v_fma_f32 {v(acc0+2*i+1)}, {v(89)}, {v(vR)}, -{v(vM)}""")
    for sl in range(4):
        A(f"""s_xor_b32 {s(sT0)}, {s(sW)}, {sl}
              s_mul_i32 {s(sT0)}, {s(sT0)}, 14336
              s_add_u32 {s(sT0)}, {s(sT0)}, {LA}
              v_add_u32 {v(vRW+sl)}, {s(sT0)}, {v(vL16)}""")
    await_cnt(C_W2)
    gate(G_H, setup_h, 32, payload=lambda: (A(f"s_mov_b32 {s(sT2)}, 0xfe00"), note_die(34)))
    read_mode()
    if "hold" in OPT:
        await_cnt(G_K, 1)
    stamp()
    hf = 32
    A(f"s_mul_i32 {s(sT5)}, {s(sW)}, {7 << 16}\ns_add_u32 {s(sT5)}, {s(sT5)}, {HB}")
    for j in range(7):
        if j:
            A(f"s_add_u32 {s(sT5)}, {s(sT5)}, 0x10000")
        for sl in range(2):
            A.vmem(f"buffer_load_dwordx4 {v(hf + 8*j + 4*sl, 4)}, {v(vH+sl)}, {s(SW,4)}, {s(sT5)} offen sc1", ("h", j))
    await_cnt(C_QD)
    accs = [v(acc0, 16), a(64, 16), a(80, 16), a(96, 16)]
    for j in range(7):
        A.wait_vm(("h", j))
        for sl in (1, 2, 3, 0):
            mfma(accs[sl], a(8 * j + 4 * (sl >> 1), 4), v(hf + 8 * j + 4 * (sl & 1), 4), 0 if j == 0 and sl else None)
    sdma(early)
    A("s_nop 3")
    offs1 = [(0, i * 1024) for i in range(12)]
    reduce_out([("a", 64), ("a", 80), ("a", 96)], C_R1, [vRW], offs1, [lambda n=n: sdma(n) for n in range(early + 1, early + mid)])

    reduce_in(acc0, 32, C_R1, lambda sl: [vRW + sl], offs1)
    for i in range(8):
        A(f"v_cvt_pk_bf16_f32 {v(vX1P+i)}, {v(acc0+2*i)}, {v(acc0+2*i+1)}")
    A(f"""s_mul_i32 {s(sT0)}, {s(sGT)}, 14
          s_add_u32 {s(sT0)}, {s(sT0)}, {s(sT4)}
          s_lshl_b32 {s(sT1)}, {s(sT0)}, 11
          s_add_u32 {s(sT1)}, {s(sT1)}, {X1}
          s_lshl_b32 {s(sT0)}, {s(sT0)}, 8
          s_add_u32 {s(sT2)}, {s(sT0)}, {ST}""")
    hstore([f"buffer_store_dwordx4 {v(vX1P,4)}, {v(vL16)}, {s(SW,4)}, {s(sT1)} offen",
            f"buffer_store_dwordx4 {v(vX1P+4,4)}, {v(vL16)}, {s(SW,4)}, {s(sT1)} offen offset:1024"], "xst", xnear)
    A(f"""v_add_f32 {v(32)}, {v(acc0)}, {v(acc0+1)}
          v_mul_f32 {v(33)}, {v(acc0)}, {v(acc0)}
          v_fma_f32 {v(33)}, {v(acc0+1)}, {v(acc0+1)}, {v(33)}""")
    for i in range(2, 16):
        A(f"v_add_f32 {v(32)}, {v(32)}, {v(acc0+i)}\nv_fma_f32 {v(33)}, {v(acc0+i)}, {v(acc0+i)}, {v(33)}")
    halves(32, 34)
    halves(33, 35)
    A(f"""v_add_f32 {v(32)}, {v(32)}, {v(34)}
          v_add_f32 {v(33)}, {v(33)}, {v(35)}
          v_lshlrev_b32 {v(34)}, 3, {v(vLANE)}
          s_not_b64 exec, {s(sHI,2)}""")
    hstore([f"buffer_store_dwordx2 {v(32,2)}, {v(34)}, {s(SW,4)}, {s(sT2)} offen"], "xst", xnear)
    A("s_mov_b64 exec, -1")
    stamp()
    cut("p2")
    for n in range(early + mid, NRING):
        sdma(n)
    A(f"""s_mul_i32 {s(sK)}, {s(sTB)}, {2 * 112}
          s_lshl_b32 {s(sT0)}, {s(sCB)}, 2
          s_add_u32 {s(sT0)}, {s(sT0)}, {s(sW)}
          s_sub_u32 {s(sT0)}, {s(sT0)}, 4
          s_lshl_b32 {s(sT0)}, {s(sT0)}, 2
          s_add_u32 {s(sK)}, {s(sK)}, {s(sT0)}
          s_lshl_b32 {s(sK)}, {s(sK)}, 10
          s_add_u32 {s(sK)}, {s(sK)}, {HH}""")
    npre = int(OPT.get("npre", 9))
    xsig = int(OPT.get("xsig", 4))
    for n in range(npre + 1):
        if n < npre:
            sread(n)
        if n == xsig:
            signal(N_X, own_slot(FX), "xst", near=xnear)
        if n >= 1:
            refill(n - 1 + NRING)
    stamp()
    cut("w3")

    def setup_x():
        A(f"""s_lshl_b32 {s(sT0)}, {s(sTB)}, 10
              s_add_u32 {s(sT0)}, {s(sT0)}, {FX}
              s_lshl_b32 {s(sT1)}, {s(sCB)}, 9
              s_add_u32 {s(sT1)}, {s(sT1)}, {FC - 512 - 1024}
              v_lshlrev_b32 {v(vT0)}, 7, {v(vLANE)}
              v_add_u32 {v(vT1)}, {s(sT0)}, {v(vT0)}
              v_add_u32 {v(vT0)}, {s(sT1)}, {v(vT0)}
              s_mov_b64 vcc, 0xff
              v_cndmask_b32 {v(vT1)}, {v(vT0)}, {v(vT1)}, vcc
              s_mov_b32 {s(sINV)}, 0xfffff001
              s_mov_b32 {s(sINV+1)}, -1""")
        lanes_to(vT1)
    gate(G_X, setup_x, 32)
    stamp()
    A(f"""s_mul_i32 {s(sT1)}, {s(sTB)}, {56 * 1024}
          s_add_u32 {s(sT1)}, {s(sT1)}, {X1}
          s_lshl_b32 {s(sT3)}, {s(sW)}, 10
          s_lshl_b32 {s(sT2)}, {s(sR)}, 12
          s_add_u32 {s(sT2)}, {s(sT2)}, {s(sT3)}
          s_add_u32 {s(sT3)}, {s(sT3)}, {LA}""")
    for i in range(7):
        if i:
            A(f"""s_add_u32 {s(sT2)}, {s(sT2)}, 4096
                  s_sub_u32 {s(sT5)}, {s(sT2)}, 28672
                  s_cmp_ge_u32 {s(sT2)}, 28672
                  s_cselect_b32 {s(sT2)}, {s(sT5)}, {s(sT2)}""")
        A(f"s_add_u32 {s(sT5)}, {s(sT1)}, {s(sT2)}")
        for tt in range(2):
            dma(sT3, tt * 28672 + i * 4096, vL16, SW, (f"s_add_u32 {s(sT0)}, {s(sT5)}, {tt * 28672}", s(sT0)), ("x1", min(i // 2, 2)), sc=" sc1")
    vB, stt, cst, bring = 27, 32, 28, 40
    A(f"""v_and_b32 {v(vT0)}, 31, {v(vLANE)}
          v_lshrrev_b32 {v(vT1)}, 5, {v(vLANE)}
          v_mul_u32_u24 {v(vT1)}, {14 * 256}, {v(vT1)}
          v_lshl_add_u32 {v(vT2)}, {v(vT0)}, 3, {v(vT1)}
          s_mul_i32 {s(sT1)}, {s(sTB)}, {28 * 256}
          s_lshl_b32 {s(sT2)}, {s(sW)}, 8
          s_add_u32 {s(sT1)}, {s(sT1)}, {s(sT2)}
          s_add_u32 {s(sT1)}, {s(sT1)}, {ST}
          s_cmp_lt_u32 {s(sW)}, 2
          s_cselect_b32 {s(sT2)}, {s(sT1)}, {OOB}
          v_add_u32 {v(vB)}, {LA}, {v(vL16)}""")
    for i in range(4):
        A.vmem(f"buffer_load_dwordx2 {v(stt+2*i,2)}, {v(vT2)}, {s(SW,4)}, {s(sT1 if i < 3 else sT2)} offen offset:{i*1024} sc1", "st")
    A(f"""s_lshl_b32 {s(sT1)}, {s(sCB)}, 2
          s_add_u32 {s(sT1)}, {s(sT1)}, {s(sW)}
          s_lshl_b32 {s(sT1)}, {s(sT1)}, 9
          s_add_u32 {s(sT1)}, {s(sT1)}, {CS - 2048}
          v_lshlrev_b32 {v(vT3)}, 3, {v(vLANE)}""")
    A.vmem(f"buffer_load_dwordx2 {v(cst,2)}, {v(vT3)}, {s(SW,4)}, {s(sT1)} offen sc1", "cs")
    A.wait_vm(("x1", 0))
    arrive(C_XA)
    await_cnt(C_XA)
    acc4 = [64, 80, 96, 112]

    def bread(ks):
        for tt in range(2):
            A.ds(f"ds_read_b128 {v(bring + 8 * (ks % 3) + 4 * tt, 4)}, {v(vB)} offset:{(tt * 28 + ks) * 1024}", ("b", ks))

    lag = int(OPT.get("lag", 7))
    plan, rstep = {}, {}
    nxt = npre
    for ks in range(28):
        while nxt < 44 and len(plan.get(ks, [])) < 2:
            ready = nxt - 16 < ks and (nxt - NRING < npre or rstep[nxt - NRING] + 1 + lag <= ks)
            if not (ready or (nxt < 28 and nxt - 2 <= ks)):
                break
            plan.setdefault(ks, []).append(nxt)
            rstep[nxt] = ks
            nxt += 1
    assert nxt >= 28 and all(n - 16 < ks and (n >= 28 or n >= ks + 1) for ks in plan for n in plan[ks]), plan
    pend = []
    if "p4" in OPT:
        stamp()
    bread(0)
    bread(1)
    for ks in range(28):
        if ks == 2:
            A.wait_vm(("x1", 1))
            arrive(C_XA)
        if ks == 5:
            await_cnt(C_XA, 8)
        if ks == 8:
            A.wait_vm(["cs", "st", ("x1", 2)])
            A(f"""v_add_f32 {v(stt)}, {v(stt)}, {v(stt+2)}
                  v_add_f32 {v(stt+1)}, {v(stt+1)}, {v(stt+3)}
                  v_add_f32 {v(stt+4)}, {v(stt+4)}, {v(stt+6)}
                  v_add_f32 {v(stt+5)}, {v(stt+5)}, {v(stt+7)}
                  s_lshl_b32 {s(sT0)}, {s(sW)}, 9
                  s_add_u32 {s(sT0)}, {s(sT0)}, {L_STAT}
                  v_add_f32 {v(stt)}, {v(stt)}, {v(stt+4)}
                  v_add_f32 {v(stt+1)}, {v(stt+1)}, {v(stt+5)}
                  v_lshl_add_u32 {v(vT2)}, {v(vLANE)}, 3, {s(sT0)}""")
            A.ds(f"ds_write_b64 {v(vT2)}, {v(stt,2)}", "sw")
            arrive(C_XB)
        if ks == 13:
            await_cnt(C_XB)
            A(f"v_lshlrev_b32 {v(vT2)}, 3, {v(vLANE)}\nv_add_u32 {v(vT2)}, {L_STAT}, {v(vT2)}")
            for q in range(4):
                A.ds(f"ds_read_b64 {v(stt+2*q,2)}, {v(vT2)} offset:{q*512}", "sr")
        A.wait_lg([("b", ks), ("s", ks)])
        acts = [lambda: bread(ks + 2)] if ks + 2 < 28 else []
        rd = [f for n in plan.get(ks, []) for f in sread_p(n)]
        rf = [f for n in pend for f in refill_p(n + NRING)]
        while rd or rf:
            acts += rf[:1] + rd[:1]
            rf, rd = rf[1:], rd[1:]
        pend = plan.get(ks, [])
        gaps([lambda t=t: mfma(v(acc4[t], 16), a(sreg(ks, t >> 1), 4), v(bring + 8 * (ks % 3) + 4 * (t & 1), 4), 0 if ks == 0 else None)
              for t in range(4)], acts)
        if "p4" in OPT and ks in (3, 6, 12, 15, 21):
            stamp()
        if ks == 16:
            A.wait_lg("sr")
            A(f"""v_add_f32 {v(stt)}, {v(stt)}, {v(stt+2)}
                  v_add_f32 {v(stt+1)}, {v(stt+1)}, {v(stt+3)}
                  v_add_f32 {v(stt+4)}, {v(stt+4)}, {v(stt+6)}
                  v_add_f32 {v(stt+5)}, {v(stt+5)}, {v(stt+7)}
                  v_add_f32 {v(stt)}, {v(stt)}, {v(stt+4)}
                  v_add_f32 {v(stt+1)}, {v(stt+1)}, {v(stt+5)}
                  v_add_f32 {v(cst)}, {v(cst)}, {v(cst+1)}""")
        if ks == 17:
            A(f"""v_mul_f32 {v(stt)}, {f32(-1/448)}, {v(stt)}
                  v_mul_f32 {v(stt+1)}, {f32(1/448)}, {v(stt+1)}
                  v_mul_f32 {v(stt+2)}, {v(stt)}, {v(stt)}
                  v_sub_f32 {v(stt+1)}, {v(stt+1)}, {v(stt+2)}
                  v_max_f32 {v(stt+1)}, 0, {v(stt+1)}
                  v_add_f32 {v(stt+1)}, {f32(EPS)}, {v(stt+1)}""")
        if ks == 18:
            halves(stt, stt + 2)
            halves(stt + 1, stt + 3)
            halves(cst, cst + 1)
    arrive(C_P4)
    vAE, vBE, gt, gpk = 40, 48, 56, 40
    for nt in range(2):
        c = cst + nt
        A(f"""v_cvt_pk_bf16_f32 {v(vT0)}, {v(c)}, {v(c)}
              v_and_b32 {v(vT1)}, 0xffff0000, {v(vT0)}
              v_sub_f32 {v(vT1)}, {v(c)}, {v(vT1)}
              v_cvt_pk_bf16_f32 {v(vAE+4*nt)}, {v(c)}, {v(vT1)}
              v_and_b32 {v(vAE+4*nt+1)}, 0xffff, {v(vT0)}
              v_mov_b32 {v(vAE+4*nt+2)}, 0
              v_mov_b32 {v(vAE+4*nt+3)}, 0""")
    for tt in range(2):
        m, b = stt + 2 * tt, vBE + 4 * tt
        A(f"""v_cvt_pk_bf16_f32 {v(vT0)}, {v(m)}, {v(m)}
              v_and_b32 {v(vT1)}, 0xffff0000, {v(vT0)}
              v_sub_f32 {v(vT1)}, {v(m)}, {v(vT1)}
              v_cvt_pk_bf16_f32 {v(vT1)}, {v(vT1)}, 0
              v_cndmask_b32 {v(b)}, {v(vT0)}, 0, {s(sHI,2)}
              v_cndmask_b32 {v(b+1)}, {v(vT1)}, 0, {s(sHI,2)}
              v_mov_b32 {v(b+2)}, 0
              v_mov_b32 {v(b+3)}, 0""")
    A("s_nop 0")
    for t in range(4):
        mfma(v(acc4[t], 16), v(vAE + 4 * (t >> 1), 4), v(vBE + 4 * (t & 1), 4))
    kk = [60, 36]
    for tt in range(2):
        e, k = stt + 2 * tt + 1, kk[tt]
        A(f"""v_rsq_f32 {v(vT0)}, {v(e)}
              s_nop 0
              v_mul_f32 {v(k+2)}, {v(e)}, {v(vT0)}
              v_mul_f32 {v(k)}, {f32(GC1)}, {v(vT0)}
              v_mul_f32 {v(k+1)}, {v(vT0)}, {v(vT0)}
              v_mul_f32 {v(k+1)}, {v(k+1)}, {v(vT0)}
              v_mul_f32 {v(k+1)}, {f32(GC2)}, {v(k+1)}""")
    stamp()
    ops = []
    for t in range(4):
        tt, b = t & 1, t >> 1
        for i in range(8):
            def pair(i=i, t=t, tt=tt):
                for op in gelu_ops(acc4[t] + 2 * i, gt, gpk + 8 * (t & 1) + i, kk[tt], kk[tt] + 1, kk[tt] + 2):
                    A(op)
            ops.append(pair)
            if i in (3, 7):
                def st(c=i >> 2, t=t, tt=tt, b=b):
                    A(f"s_add_u32 {s(sT0)}, {s(sK)}, {(tt * 112 + b * 2) * 1024}")
                    hstore([f"buffer_store_dwordx4 {v(gpk+8*(t&1)+4*c,4)}, {v(vL16)}, {s(SW,4)}, {s(sT0)} offen offset:{c*1024}"], ("Hst", b), hnear)
                ops.append(st)
        if t == 2:
            ops.append(lambda: signal(N_G, own_slot(FG), ("Hst", 0), near=hnear))
    fill = [f for n in pend for f in refill_p(n + NRING)]
    for n in range(nxt, 44):
        fill.append(lambda n=n: sread(n))
        if n > nxt:
            fill += refill_p(n - 1 + NRING)
    weave(A, ops, fill)
    if nxt < 44:
        refill(43 + NRING)
    vHH = 26
    A(f"""s_mul_i32 {s(sT0)}, {s(sGT)}, 4
          s_add_u32 {s(sT0)}, {s(sT0)}, {s(sW)}
          s_mul_i32 {s(sT0)}, {s(sT0)}, {28 * 1024}
          v_add_u32 {v(vHH)}, {s(sT0)}, {v(vL16)}
          s_xor_b32 {s(sT0)}, {s(sGT)}, 1
          s_mul_i32 {s(sT0)}, {s(sT0)}, 4
          s_add_u32 {s(sT0)}, {s(sT0)}, {s(sW)}
          s_mul_i32 {s(sT0)}, {s(sT0)}, {28 * 1024}
          v_add_u32 {v(vHH+1)}, {s(sT0)}, {v(vL16)}""")
    acc6 = [64, 80, 96, 112]
    for i in range(8):
        A(f"v_lshlrev_b32 {v(64+2*i)}, 16, {v(vX1P+i)}\nv_and_b32 {v(65+2*i)}, 0xffff0000, {v(vX1P+i)}")
    stamp()
    cut("w4")

    def setup_tb(base, inv):
        def f():
            A(f"""s_lshl_b32 {s(sT0)}, {s(sTB)}, 10
                  s_add_u32 {s(sT0)}, {s(sT0)}, {base}
                  v_lshlrev_b32 {v(vT1)}, 7, {v(vLANE)}
                  v_add_u32 {v(vT1)}, {s(sT0)}, {v(vT1)}
                  s_mov_b32 {s(sINV)}, {inv}
                  s_mov_b32 {s(sINV+1)}, -1""")
            lanes_to(vT1)
        return f
    peek_issue(setup_tb(FG, 0xffffff01), 34, 36)
    vO, vOUT = 28, 30
    A(f"""s_lshl_b32 {s(sT0)}, {s(sGT)}, 2
          s_add_u32 {s(sT0)}, {s(sT0)}, {s(sW)}
          s_lshl_b32 {s(sT0)}, {s(sT0)}, 13
          v_add_u32 {v(vO)}, {s(sT0)}, {v(vL16)}
          v_xor_b32 {v(vO+1)}, 0x8000, {v(vO)}
          v_and_b32 {v(32)}, 31, {v(vLANE)}
          s_lshl_b32 {s(sT0)}, {s(sGT)}, 5
          v_add_u32 {v(32)}, {s(sT0)}, {v(32)}
          v_mul_u32_u24 {v(32)}, 896, {v(32)}
          v_lshrrev_b32 {v(33)}, 5, {v(vLANE)}
          v_lshl_add_u32 {v(32)}, {v(33)}, 4, {v(32)}
          s_lshl_b32 {s(sT0)}, {s(sT4)}, 6
          v_add_u32 {v(vOUT)}, {s(sT0)}, {v(32)}""")
    signal(N_G2, own_slot(FG2), ("Hst", 1), near=hnear)
    peek_check(34, 36)
    stamp()
    hslots = [16, 20, 32, 36, 40, 44, 48, 52, 56, 60]
    NH = int(OPT.get("nh", 10))
    hsc = "" if "hplain" in OPT else " sc1"

    def bload(n):
        p, sl = n >> 1, n & 1
        if n < 56:
            if p % 2 == 0 and sl == 0:
                rot7(sRH, (p % 14) // 2, 4096, None)
                A(f"s_add_u32 {s(sV)}, {s(sRH)}, {HH}")
            addr, imm = vHH + sl, (2 * (p // 14) + p % 2) * 1024
        else:
            if p % 4 == 0 and sl == 0:
                A(f"s_mov_b32 {s(sV)}, {OB + 1024 * (p - 28)}")
            addr, imm = vO + sl, (p & 3) * 1024
        A.vmem(f"buffer_load_dwordx4 {v(hslots[n % NH], 4)}, {v(addr)}, {s(SW,4)}, {s(sV)} offen offset:{imm}{hsc}", ("H", n))

    def slotoffs(first):
        return [(0, i * 1024) if i < 14 else (1, (i - 14) * 1024) for i in range(first, first + 12)]

    vRW2 = [24, 25]
    for n in range(NH):
        bload(n)
    if OPT.get("tail", "ring") == "ring":
        vG, vA2 = 64, [24, 25, 26, 27, 2, 3, 31, 29 if NH == 10 else 63]

        def partner(sl):
            A(f"""s_xor_b32 {s(sT0)}, {s(sW)}, {sl}
                  s_mul_i32 {s(sT1)}, {s(sT0)}, 14336
                  s_mul_i32 {s(sT0)}, {s(sT0)}, 11264
                  s_add_u32 {s(sT0)}, {s(sT0)}, {LQ}
                  v_add_u32 {v(vA2[2*sl])}, {s(sT1)}, {v(vL16)}
                  v_add_u32 {v(vA2[2*sl+1])}, {s(sT0)}, {v(vL16)}""")
        side = {28: [], 29: [], 30: [], 31: [], 32: [], 33: [], 34: [], 35: []}
        for i in range(12):
            side[28 + (i + 2) // 5 + (1 if i < 0 else 0)].append(
                lambda i=i: A.ds(f"ds_write_b128 {v(24)}, {v(80 + 4 * i, 4)} offset:{i * 1024}", "red"))
        side[30].append(lambda: arrive(C_R2))
        side[32].append(lambda: await_cnt(C_R2))
        for sl in (1, 2, 3):
            side[32].append(lambda sl=sl: [A.ds(f"ds_read_b128 {v(64 + 16 * sl + 4 * q, 4)}, {v(vA2[2*sl])} offset:{((sl - 1) * 4 + q) * 1024}", ("rd", sl)) for q in range(4)])
        valu = []
        for sl in (1, 2, 3):
            valu.append(lambda sl=sl: A.wait_lg(("rd", sl)))
            valu += [lambda sl=sl, i=i: A(f"v_add_f32 {v(vG+i)}, {v(vG+i)}, {v(64 + 16 * sl + i)}") for i in range(16)]
        for i in range(8):
            y = vG + 2 * i
            valu += [lambda t=t: A(t) for t in f"""v_mul_f32 {v(80)}, {f32(-LOG2E)}, {v(y)}
                  v_mul_f32 {v(81)}, {f32(-LOG2E)}, {v(y+1)}
                  v_exp_f32 {v(80)}, {v(80)}
                  v_exp_f32 {v(81)}, {v(81)}
                  v_add_f32 {v(80)}, 1.0, {v(80)}
                  v_add_f32 {v(81)}, 1.0, {v(81)}
                  v_rcp_f32 {v(80)}, {v(80)}
                  v_rcp_f32 {v(81)}, {v(81)}
                  v_mul_f32 {v(y)}, {v(y)}, {v(80)}
                  v_mul_f32 {v(y+1)}, {v(y+1)}, {v(81)}""".split("\n")]
        nin = int(OPT.get("nin", 90))
        for n, f in enumerate(valu[:nin]):
            side[33 + (3 * n) // nin].append(f)
        for j in range(36):
            A.wait_vm(("H", 2 * j + 1))
            A.wait_lg(("s", 28 + j))
            if 2 * j + NH in (28, 56):
                peek_check()

            def mm(sl):
                d = v(acc6[sl], 16) if j < 28 else a(16 * sl, 16)
                mfma(d, a(sreg(28 + j, sl >> 1), 4), v(hslots[(2 * j + (sl & 1)) % NH], 4), 0 if (j == 0 and sl) or j == 28 else None)
            rd = sread_p(43 + j) if 1 <= j <= 20 else [None, None]
            rf = (refill_p(43 + j - 1 + NRING) if j >= 2 else []) or [None, None]
            ld = [(lambda n=n: bload(n)) if n < 72 else None for n in (2 * j + NH, 2 * j + NH + 1)]
            ex = side.get(j, [])
            lo = 2 if j == 28 else 0
            cut_ = [0] * (lo + 1) + [-(-len(ex) * (g + 1) // (4 - lo)) for g in range(4 - lo)]
            for g, (sl, todo) in enumerate(((0, [rf[0]]), (2, [ld[0], rd[0]]), (1, [rf[1]]), (3, [ld[1], rd[1]]))):
                mm(sl)
                if j == 28 and g == 1:
                    A("s_nop 6")
                for f in todo + ex[cut_[g]:cut_[g + 1]]:
                    if f:
                        f()
            if 2 * j + NH == 22:
                peek_issue(setup_tb(FG2, 0xffffff01))
            if 2 * j + NH == 50:
                peek_issue(setup_tb(FO, 0xffffff00))
            if j == 26:
                A.drain_lg()
                A(f"v_add_u32 {v(24)}, {s(sPA)}, {v(vL16)}\nv_add_u32 {v(25)}, {s(sPB)}, {v(vL16)}")
                partner(1)
                partner(2)
            if j == 27:
                stamp()
            if j == 31:
                partner(3)
        stamp()
        left = valu[nin:]
        for f in left[:12]:
            f()
        reduce_out([("a", 16), ("a", 32), ("a", 48)], C_R3, [24, 25], slotoffs(12), left[12:])
        for i in range(16):
            A(f"v_accvgpr_read_b32 {v(32+i)}, {a(i)}")
        stamp()
        reduce_in(32, 80, C_R3, lambda sl: vA2[2 * sl:2 * sl + 2], slotoffs(12))
        vS = 32
    else:
        vA2 = [24, 25, 26, 27, 2, 3, 31, 63]
        assert NH <= 8

        def partner(sl):
            A(f"""s_xor_b32 {s(sT0)}, {s(sW)}, {sl}
                  s_mul_i32 {s(sT1)}, {s(sT0)}, 14336
                  s_mul_i32 {s(sT0)}, {s(sT0)}, 11264
                  s_add_u32 {s(sT0)}, {s(sT0)}, {LQ}
                  v_add_u32 {v(vA2[2*sl])}, {s(sT1)}, {v(vL16)}
                  v_add_u32 {v(vA2[2*sl+1])}, {s(sT0)}, {v(vL16)}""")
        for j in range(28):
            A.wait_vm(("H", 2 * j + 1))
            A.wait_lg(("s", 28 + j))
            if 2 * j + NH == 28:
                peek_check()
            rd = sread_p(43 + j) if 1 <= j <= 20 else [None, None]
            rf = (refill_p(43 + j - 1 + NRING) if j >= 2 else []) or [None, None]
            ld = [(lambda n=n: bload(n)) if n < 56 else None for n in (2 * j + NH, 2 * j + NH + 1)]
            for sl, todo in ((0, [rf[0]]), (2, [ld[0], rd[0]]), (1, [rf[1]]), (3, [ld[1], rd[1]])):
                mfma(v(acc6[sl], 16), a(sreg(28 + j, sl >> 1), 4), v(hslots[(2 * j + (sl & 1)) % NH], 4), 0 if j == 0 and sl else None)
                for f in todo:
                    if f:
                        f()
            if 2 * j + NH == 22:
                peek_issue(setup_tb(FG2, 0xffffff01))
            if j == 25:
                A.drain_lg()
                peek_issue(setup_tb(FO, 0xffffff00), 60, 62)
                A(f"s_mov_b32 {s(sRH)}, 0\ns_mov_b32 {s(sV)}, {OB}\ns_mov_b32 {s(sRG)}, {OB + 4096}")
            if j == 26:
                A(f"v_add_u32 {v(24)}, {s(sPA)}, {v(vL16)}\nv_add_u32 {v(25)}, {s(sPB)}, {v(vL16)}")
                for sl in (1, 2, 3):
                    partner(sl)
        stamp()

        def oload(kq):
            for sl in range(2):
                A.vmem(f"buffer_load_dwordx4 {a(8 * kq + 4 * sl, 4)}, {v(vO+sl)}, {s(SW,4)}, {s(sV if kq < 4 else sRG)} offen offset:{(kq & 3) * 1024} sc1", ("o", kq))

        def try_o(last):
            done, again = A.newlabel("od"), A.newlabel("oa")
            A(f"s_cmp_lg_u32 {s(sRH)}, 0\ns_cbranch_scc1 {done}")
            A.vm = ["peek"]
            if last:
                peek_check(60, 62)
            else:
                A(f"""s_waitcnt vmcnt(0)
                      v_cmp_eq_u64 vcc, {s(sN,2)}, {v(60,2)}
                      s_or_b64 vcc, vcc, {s(sINV,2)}
                      s_cmp_eq_u64 vcc, -1
                      s_cbranch_scc0 {again}
                      s_mov_b32 {s(sRH)}, 1""")
            A.vm = []
            for kq in range(4):
                oload(kq)
            if not last:
                A(f"s_branch {done}")
                A.label(again)
                A(f"buffer_load_dwordx2 {v(60,2)}, {v(62)}, {s(SW,4)}, 0 offen sc1")
            A.label(done)

        try_o(False)
        A("s_nop 5")
        reduce_out([("v", 80), ("v", 96), ("v", 112)], C_R2, vA2[:2], slotoffs(0))
        try_o(False)
        vG = 32
        reduce_in(64, 80, C_R2, lambda sl: vA2[2 * sl:2 * sl + 2], slotoffs(0))
        for i in range(8):
            if i in (0, 4):
                try_o(False)
            y = 64 + 2 * i
            A(f"""v_mul_f32 {v(80)}, {f32(-LOG2E)}, {v(y)}
                  v_mul_f32 {v(81)}, {f32(-LOG2E)}, {v(y+1)}
                  v_exp_f32 {v(80)}, {v(80)}
                  v_exp_f32 {v(81)}, {v(81)}
                  v_add_f32 {v(80)}, 1.0, {v(80)}
                  v_add_f32 {v(81)}, 1.0, {v(81)}
                  v_rcp_f32 {v(80)}, {v(80)}
                  v_rcp_f32 {v(81)}, {v(81)}
                  v_mul_f32 {v(vG+2*i)}, {v(y)}, {v(80)}
                  v_mul_f32 {v(vG+2*i+1)}, {v(y+1)}, {v(81)}""")
        try_o(True)
        stamp()
        for kq in range(8):
            A.wait_vm(("o", kq))
            for n, sl in enumerate((1, 2, 3, 0)):
                mfma(v(acc6[sl], 16), a(sreg(56 + kq, sl >> 1), 4), a(8 * kq + 4 * (sl & 1), 4), 0 if kq == 0 else None)
                if n == 0 and kq < 4:
                    oload(kq + 4)
        stamp()
        A("s_nop 7\ns_nop 1")
        reduce_out([("v", 80), ("v", 96), ("v", 112)], C_R3, vA2[:2], slotoffs(12))
        reduce_in(64, 80, C_R3, lambda sl: vA2[2 * sl:2 * sl + 2], slotoffs(12))
        vS = 64
    for i in range(8):
        y = vS + 2 * i
        A(f"""v_lshlrev_b32 {v(80)}, 16, {v(vXD+i)}
              v_and_b32 {v(81)}, 0xffff0000, {v(vXD+i)}
              v_fma_f32 {v(80)}, {v(y)}, {v(vG+2*i)}, {v(80)}
              v_fma_f32 {v(81)}, {v(y+1)}, {v(vG+2*i+1)}, {v(81)}
              v_cvt_pk_bf16_f32 {v(84+i)}, {v(80)}, {v(81)}""")
    A("s_nop 1")
    for p in range(2):
        A(f"v_permlane32_swap_b32 {v(84+4*p)}, {v(86+4*p)}\nv_permlane32_swap_b32 {v(85+4*p)}, {v(87+4*p)}")
    for p in range(2):
        A.vmem(f"buffer_store_dwordx4 {v(84+4*p,4)}, {v(vOUT)}, {s(SOUT,4)}, 0 offen offset:{32*p} {OPT.get('osc', '').replace('+', ' ')}", "out")
    stamp()
    dump_stamps()
    A("s_endpgm")

    for blk in late:
        A.lg = []
        blk()
    A.label("L_kv")
    A.vm = list(vm_kv)
    A.lg = []
    A(f"""v_mul_u32_u24 {v(vT0)}, 3584, {v(vC8)}
          s_min_u32 {s(sT2)}, {s(sTB)}, 27
          s_lshl_b32 {s(sT0)}, {s(sT2)}, 7
          s_mul_i32 {s(sT1)}, {s(sW)}, {112 * 3584}
          s_add_u32 {s(sT0)}, {s(sT0)}, {s(sT1)}
          v_add3_u32 {v(vW3)}, {v(vT0)}, {v(vC7)}, {s(sT0)}""")
    for i in range(16):
        A(f"v_sub_f32 {v(acc+i)}, {v(acc+i)}, {v(cs+i)}\nv_mul_f32 {v(acc+i)}, {v(acc+i)}, {v(vR)}")
    A(f"s_mov_b64 exec, {s(sHI,2)}")
    for i in range(12, 16):
        A(f"v_mov_b32 {v(acc+i)}, 0")
    A("s_mov_b64 exec, -1")
    for i in range(8):
        A(f"v_cvt_pk_bf16_f32 {v(pk+i)}, {v(acc+2*i)}, {v(acc+2*i+1)}")
    A(f"""s_lshl_b32 {s(sT4)}, {s(sGT)}, 12
          s_cmp_eq_u32 {s(sP)}, 1
          s_cbranch_scc1 L_v
          s_mov_b64 exec, {s(sHI,2)}
          v_mov_b32 {v(pk+6)}, {ONES}
          v_mov_b32 {v(pk+7)}, 0x3f80
          s_mov_b64 exec, -1
          buffer_store_dwordx4 {v(pk,4)}, {v(vL16)}, {s(SW,4)}, {s(sT4)} offen sc1
          buffer_store_dwordx4 {v(pk+4,4)}, {v(vL16)}, {s(SW,4)}, {s(sT4)} offen offset:1024 sc1
          v_mul_f32 {v(72)}, {v(acc)}, {v(acc)}""")
    for i in range(1, 16):
        A(f"v_fma_f32 {v(72)}, {v(acc+i)}, {v(acc+i)}, {v(72)}")
    halves(72, 73)
    A(f"""v_add_f32 {v(72)}, {v(72)}, {v(73)}
          v_mov_b32 {v(73)}, {L_KM}
          ds_max_u32 {v(73)}, {v(72)}
          s_branch L_kvdone""")
    A.label("L_v")
    A(f"""s_mov_b64 exec, {s(sHI,2)}
          v_mov_b32 {v(pk+6)}, 0x3f80
          s_mov_b64 exec, -1
          s_lshl_b32 {s(sT0)}, {s(sTT)}, 12
          s_add_u32 {s(sT0)}, {s(sT0)}, {L_VT}
          v_and_b32 {v(72)}, 31, {v(vLANE)}
          v_bfe_u32 {v(74)}, {v(72)}, 1, 1
          v_lshlrev_b32 {v(74)}, 6, {v(74)}
          v_lshrrev_b32 {v(73)}, 5, {v(vLANE)}
          v_lshl_add_u32 {v(73)}, {v(73)}, 3, {v(74)}
          v_lshl_add_u32 {v(72)}, {v(72)}, 7, {v(73)}
          v_add_u32 {v(72)}, {s(sT0)}, {v(72)}
          v_add3_u32 {v(73)}, {v(vTRD)}, {v(103)}, {s(sT0)}""")
    for g in range(4):
        A.ds(f"ds_write_b64 {v(72)}, {v(pk+2*g,2)} offset:{16*g}", "vt")
    for c in range(2):
        tr(("v", 76 + 4 * c), 73, c * 2048, 1024, "vr")
    A.drain_lg()
    A(f"buffer_store_dwordx4 {v(76,4)}, {v(vL16)}, {s(SW,4)}, {s(sT4)} offen offset:2048 sc1")
    A(f"buffer_store_dwordx4 {v(80,4)}, {v(vL16)}, {s(SW,4)}, {s(sT4)} offen offset:3072 sc1")
    A.label("L_kvdone")
    A.vm += ["kv", "kv"]
    nonce_take(30)
    signal(N_K, f"s_lshl_b32 {s(sT0)}, {s(sTB)}, 7\ns_add_u32 {s(sT0)}, {s(sT0)}, {FK}", "kv", payload=L_KM)
    stamps["n"] = 2
    stamp()
    await_cnt(C_PA, 8)
    for j in range(7):
        image(sPA, j * 2048, vW3, SQ, lambda e, j=j: f"s_mov_b32 {s(sT0)}, {j * 16 * 3584 + e}", 3584, "W3")
    A(f"v_add3_u32 {v(72)}, {v(vTRD)}, {v(103)}, {s(sPA)}\nv_xor_b32 {v(73)}, 64, {v(72)}")
    A.wait_vm("W3")
    for i in range(14):
        tr(("a", 4 * i), 72 + (i & 1), (i >> 1) * 2048, 1024, ("c", i))
    for i in range(14):
        A.wait_lg(("c", i))
        mfma(v(32 + 16 * (i & 1), 16), v(ones, 4), a(4 * i, 4), 0 if i < 2 else None)
    A(f"""s_lshl_b32 {s(sT0)}, {s(sW)}, 8
          s_add_u32 {s(sT0)}, {s(sT0)}, {LA + 32768}
          v_lshlrev_b32 {v(73)}, 2, {v(vLANE)}
          v_add_u32 {v(74)}, {s(sT0)}, {v(73)}
          s_nop 7
          v_cndmask_b32 {v(72)}, {v(32)}, {v(48)}, {s(sHI,2)}
          ds_write_b32 {v(74)}, {v(72)}""")
    arrive(C_R1)
    A(f"s_cmp_gt_u32 {s(sTB)}, 27\ns_cbranch_scc1 L_kvend\ns_cmp_lg_u32 {s(sW)}, 0\ns_cbranch_scc1 L_kvend")
    await_cnt(C_R1)
    A(f"""ds_read_b32 {v(75)}, {v(74)} offset:256
          ds_read_b32 {v(76)}, {v(74)} offset:512
          ds_read_b32 {v(77)}, {v(74)} offset:768
          s_lshl_b32 {s(sT1)}, {s(sTB)}, 9
          s_add_u32 {s(sT1)}, {s(sT1)}, {CS}
          v_lshlrev_b32 {v(74)}, 3, {v(vLANE)}
          s_waitcnt lgkmcnt(0)
          v_add_f32 {v(72)}, {v(72)}, {v(75)}
          v_add_f32 {v(73)}, {v(76)}, {v(77)}
          buffer_store_dwordx2 {v(72,2)}, {v(74)}, {s(SW,4)}, {s(sT1)} offen sc1
          s_lshl_b32 {s(sT0)}, {s(sTB)}, 7
          s_add_u32 {s(sT0)}, {s(sT0)}, {FC}
          v_mov_b32 {v(vT0)}, {s(sN)}
          v_mov_b32 {v(vT1)}, {s(sN+1)}
          v_mov_b32 {v(vT3)}, 0
          s_waitcnt vmcnt(0)
          s_mov_b64 exec, 1
          buffer_store_dwordx2 {v(vT0,2)}, {v(vT3)}, {s(SW,4)}, {s(sT0)} offen sc1
          s_mov_b64 exec, -1""")
    A.label("L_kvend")

    gate(G_H, setup_tb(FH, 0xffffff01), 32, payload=lambda: (A(f"s_mov_b32 {s(sT2)}, 0xfe"), note_die(34)))
    arrive(C_P4)
    read_mode()
    A(f"""s_lshl_b32 {s(sT0)}, {s(sTB)}, 2
          s_add_u32 {s(sT0)}, {s(sT0)}, {s(sW)}
          s_mul_i32 {s(sT1)}, {s(sT0)}, 12544
          s_mul_i32 {s(sT2)}, {s(sT0)}, 3136
          v_lshlrev_b32 {v(74)}, 7, {v(vLANE)}""")
    if "notouch" not in OPT:
        A.vmem(f"buffer_load_dword {v(84)}, {v(74)}, {s(S4,4)}, {s(sT1)} offen", "t")
        A(f"s_add_u32 {s(sT1)}, {s(sT1)}, 8192\ns_bfm_b64 exec, 34, 0")
        A.vmem(f"buffer_load_dword {v(85)}, {v(74)}, {s(S4,4)}, {s(sT1)} offen", "t")
        A("s_bfm_b64 exec, 25, 0")
        A.vmem(f"buffer_load_dword {v(86)}, {v(74)}, {s(SO,4)}, {s(sT2)} offen", "t")
        A("s_mov_b64 exec, -1")
    A(f"""s_setprio 0
          s_cmp_eq_u32 {s(sLOC)}, 0
          s_cbranch_scc1 L_kvquit
          v_lshlrev_b32 {v(36)}, 7, {v(vLANE)}
          v_and_b32 {v(37)}, 7, {v(vLANE)}
          v_lshrrev_b32 {v(38)}, 3, {v(vLANE)}
          v_lshlrev_b32 {v(38)}, 15, {v(38)}
          v_lshl_add_u32 {v(37)}, {v(37)}, 7, {v(38)}
          s_lshl_b32 {s(sT0)}, {s(sTB)}, 10
          s_add_u32 {s(sT0)}, {s(sT0)}, {FX}
          s_lshl_b32 {s(sT3)}, {s(sW)}, 13""")
    A.vm = []
    warm(0, 37, sT0, "0xffffffff")
    jobs = ([(X1, 56 * 1024, 2), (ST, 7168, 1)] if xnear else []) + ([(HH, 224 * 1024, 7)] if hnear else []) + [(OB, 64 * 1024, 2)]
    n = 1
    for base, size, cnt in jobs:
        A(f"""s_mul_i32 {s(sT1)}, {s(sTB)}, {size}
              s_add_u32 {s(sT1)}, {s(sT1)}, {base}
              s_add_u32 {s(sT2)}, {s(sT1)}, {size}
              s_add_u32 {s(sT1)}, {s(sT1)}, {s(sT3)}""")
        for i in range(cnt):
            A(f"""s_cmp_lt_u32 {s(sT1)}, {s(sT2)}
                  s_cselect_b32 {s(sT0)}, {s(sT1)}, {OOB}
                  s_add_u32 {s(sT1)}, {s(sT1)}, 32768""")
            warm(n, 36, sT0, "0xffffffffffffff" if size == 7168 else -1)
            A(f"s_waitcnt vmcnt({OPT.get('wdepth', 0)})")
            n += 1
    A.label("L_kvquit")
    stamp()
    dump_stamps()
    A("s_endpgm")


def att(vm_entry):
    A.label("L_att")
    A.vm = list(vm_entry)
    A.lg = []
    stamps["n"] = 1
    acc, cs, ring, ones = 32, 48, 64, 96
    vM, vR = 8, 9
    A(f"""s_mul_i32 {s(sT0)}, {s(sCB)}, 112
          s_lshl_b32 {s(sT1)}, {s(sW)}, 3
          v_add_u32 {v(vT0)}, {s(sT1)}, {v(vC8)}
          v_mul_u32_u24 {v(vT0)}, 896, {v(vT0)}
          v_add3_u32 {v(vWQ)}, {v(vT0)}, {v(vC7)}, {s(sT0)}
          s_lshl_b32 {s(sPA)}, {s(sW)}, 10
          s_mul_i32 {s(sT0)}, {s(sP)}, 56
          v_add_u32 {v(103)}, {s(sT0)}, {v(103)}
          v_xor_b32 {v(103)}, {v(103)}, {v(102)}
          v_add_u32 {v(vT0)}, {v(vTRN)}, {v(103)}
          v_add_u32 {v(10)}, {LQ}, {v(vT0)}
          v_add_u32 {v(11)}, {LA}, {v(vT0)}""")
    nq0 = int(OPT.get("nq0", 11))
    for n in range(nq0):
        dma(sPA, LQ + n * 4096, vWQ, SQ, (f"s_mov_b32 {s(sT0)}, {n * 32 * 896}", s(sT0)), "WQ")
    early_stamp(6)
    A.wait_vm("X")
    barrier()
    early_dump()
    stamp()

    def first():
        for n in range(nq0, 14):
            dma(sPA, LQ + n * 4096 if n < 11 else LA + (n - 11) * 4096, vWQ, SQ, (f"s_mov_b32 {s(sT0)}, {n * 32 * 896}", s(sT0)), "WQ")
        nonce_issue(12)
        touch("p1")
    stat_part(lambda: None)
    barrier()
    first()
    stat_read()
    for ks in range(28):
        A.ds(f"ds_read_b128 {a(4*ks,4)}, {v(vXF + (ks & 3))} offset:{(ks >> 2) * 8192}", ("x", ks))
    stat_fin(vM, vR)
    A(f"v_add_f32 {v(vR)}, {f32(EPS)}, {v(vR)}\nv_rsq_f32 {v(vR)}, {v(vR)}")
    A.drain_lg()
    arrive(C_PA)
    A(f"v_mul_f32 {v(vR)}, {f32(QSCALE)}, {v(vR)}")
    A.wait_vm(["WQ", "nonce"])
    arrive(C_WQ)
    nonce_take(12)
    A(f"""s_lshl_b32 {s(sT0)}, {s(sGT)}, 4
          s_lshl_b32 {s(sT1)}, {s(sCB)}, 1
          s_add_u32 {s(sT0)}, {s(sT0)}, {s(sT1)}
          s_add_u32 {s(sT0)}, {s(sT0)}, {s(sP)}
          s_lshl_b32 {s(sT0)}, {s(sT0)}, 11
          s_add_u32 {s(sB4)}, {s(sT0)}, {OB}
""")
    await_cnt(C_WQ)
    stamp()

    def wq(ks):
        tr(("v", ring + 4 * (ks % 8)), 10 if ks < 22 else 11, (ks % 22) * 2048, 512, ("w", ks))
    vG, vF = 12, 104
    aO, aQ, aK, vV = 0, 48, 80, 72
    O0, S, P = 16, [32, 48], 64

    def setup_k():
        A(f"""v_lshlrev_b32 {v(vT1)}, 7, {v(vLANE)}
              v_add_u32 {v(vT1)}, {FK}, {v(vT1)}
              s_mov_b64 {s(sINV,2)}, {s(sHI,2)}""")
        lanes_to(vT1)

    misc = f"""s_lshl_b32 {s(sT0)}, {s(sW)}, 11
          s_add_u32 {s(sT0)}, {s(sT0)}, {L_QG}
          v_add_u32 {v(vG)}, {s(sT0)}, {v(vL16)}
          s_lshl_b32 {s(sT0)}, {s(sW)}, 8
          s_add_u32 {s(sT0)}, {s(sT0)}, {L_QN}
          v_lshlrev_b32 {v(14)}, 2, {v(vLANE)}
          v_add_u32 {v(15)}, {s(sT0)}, {v(14)}
          v_add_u32 {v(14)}, {L_QN}, {v(14)}
          s_add_u32 {s(sT0)}, {s(sCB)}, {s(sTB)}
          s_and_b32 {s(sT0)}, {s(sT0)}, 3
          s_lshl_b32 {s(sK)}, {s(sT0)}, 14
          s_add_u32 {s(sV)}, {s(sK)}, 0x4000
          s_and_b32 {s(sV)}, {s(sV)}, 0xffff
          s_lshl_b32 {s(sT0)}, {s(sW)}, 16
          v_add_u32 {v(vF)}, {s(sT0)}, {v(vL16)}
          v_add_u32 {v(vF+1)}, 4096, {v(vF)}
          v_add_u32 {v(vF+2)}, 8192, {v(vF)}
          v_add_u32 {v(vF+3)}, 12288, {v(vF)}""".split("\n")
    for sl in range(4):
        misc += [f"s_xor_b32 {s(sT0)}, {s(sW)}, {sl}", f"s_mul_i32 {s(sT0)}, {s(sT0)}, 12288",
                 f"s_add_u32 {s(sT0)}, {s(sT0)}, {LA}", f"v_add_u32 {v(124+sl)}, {s(sT0)}, {v(vL16)}"]
    misc += [f"v_mov_b32 {v(O0+i)}, 0" for i in range(16)]
    misc += [f"v_xor_b32 {v(108+sl)}, {sl << 11}, {v(vG)}" for sl in range(1, 4)]

    def qstep(ks):
        if ks + 6 < 28:
            wq(ks + 6)
        A.wait_lg(("w", ks))
        mfma(v(acc, 16), v(ring + 4 * (ks % 8), 4), a(4 * ks, 4), 0 if ks == 0 else None)
        mfma(v(cs, 16), v(ring + 4 * (ks % 8), 4), v(ones, 4), 0 if ks == 0 else None)
        if 14 <= ks < 26:
            for i in range(4):
                A(f"v_accvgpr_write_b32 {a(aO + 4 * (ks - 14) + i)}, 0")
    for ks in range(6):
        wq(ks)
    weave(A, [lambda ks=ks: qstep(ks) for ks in range(28)], [lambda t=t: A(t) for t in misc])
    hi = "prl" not in OPT

    def kload(slot, base):
        for c in range(2):
            A.vmem(f"buffer_load_dwordx4 {a(aK + 8*slot + 4*c, 4)}, {v(vF+slot)}, {s(SW,4)}, {s(base)} offen offset:{c*1024} sc1", "K")

    def vload(slot, base):
        for c in range(2):
            A.vmem(f"buffer_load_dwordx4 {v(vV + 8*slot + 4*c, 4)}, {v(vF+slot)}, {s(SW,4)}, {s(base)} offen offset:{2048 + c*1024} sc1", "V")

    def first_loads():
        A("s_setprio 3")
        for slot in range(3):
            kload(slot, sK)
            vload(slot, sK)
            if slot == 0:
                A("s_setprio " + OPT.get("aprio", "0"))
        kload(3, sK)
        A.vm = []

    stamp()
    A("s_nop 7")
    q = acc
    for i in range(16):
        A(f"v_fma_f32 {v(q+i)}, -{v(cs+i)}, {v(vM)}, {v(q+i)}\nv_mul_f32 {v(q+i)}, {v(q+i)}, {v(vR)}")
    A(f"s_mov_b64 exec, {s(sHI,2)}")
    for i in range(12, 16):
        A(f"v_mov_b32 {v(q+i)}, 0")
    A("s_mov_b64 exec, -1")
    for i in range(8):
        A(f"v_cvt_pk_bf16_f32 {v(48+i)}, {v(q+2*i)}, {v(q+2*i+1)}")
    A.ds(f"ds_write_b128 {v(vG)}, {v(48,4)}", "qg")
    A.ds(f"ds_write_b128 {v(vG)}, {v(52,4)} offset:1024", "qg")
    A(f"v_mul_f32 {v(56)}, {v(q)}, {v(q)}")
    for i in range(1, 16):
        A(f"v_fma_f32 {v(56)}, {v(q+i)}, {v(q+i)}, {v(56)}")
    halves(56, 57)
    A(f"v_add_f32 {v(56)}, {v(56)}, {v(57)}")
    A.ds(f"ds_write_b32 {v(15)}, {v(56)}", "qg")
    arrive(C_Q)
    for i in range(4):
        A(f"v_mov_b32 {v(P+4+i)}, 0\nv_mov_b32 {v(vV+28+i)}, 0")
    await_cnt(C_Q)
    for sl in range(4):
        for c in range(2):
            A.ds(f"ds_read_b128 {a(aQ + 8*sl + 4*c, 4)}, {v(108+sl if sl else vG)} offset:{c*1024}", "q")
    for sl in range(4):
        A.ds(f"ds_read_b32 {v(120+sl)}, {v(14)} offset:{sl*256}", "q")
    A.drain_lg()
    arrive(C_QD)
    A("s_setprio 3")
    gate(G_K, setup_k, 112, payload=lambda: A(f"v_mov_b32 {v(113)}, {L_KP}\nds_max_u32 {v(113)}, {v(114)}"))
    stamp()
    A(f"v_mov_b32 {v(113)}, {L_KP}\nds_read_b32 {v(112)}, {v(113)}")
    first_loads()
    A(f"""s_waitcnt lgkmcnt(0)
          v_max3_f32 {v(120)}, {v(120)}, {v(121)}, {v(122)}
          v_max_f32 {v(120)}, {v(120)}, {v(123)}
          v_mul_f32 {v(108)}, {v(112)}, {v(120)}
          v_cmp_nge_f32 vcc, {f32(-1.0 if FORCE_SLOW else BOUND2)}, {v(108)}
          s_cmp_lg_u64 vcc, 0
          s_cbranch_scc1 L_slow""")
    A.label("L_fast")
    A("s_waitcnt vmcnt(10)")

    def Oreg(sl):
        return v(O0, 16) if sl == 0 else a(aO + 16 * (sl - 1), 16)

    mfma(v(S[0], 16), a(aK, 4), a(aQ, 4), 0)
    mfma(v(S[0], 16), a(aK + 4, 4), a(aQ + 4, 4))
    A(f"s_mov_b32 {s(sT4)}, 4\ns_nop 7\ns_nop 1")
    A.label("L_aloop")

    def period(sg, qt):
        cur, nxt = S[qt & 1], S[(qt + 1) & 1]
        ks = sg if qt < 3 else (sg + 1) & 3
        vs = sg if qt > 0 else (sg - 1) & 3
        nq, pq = (qt + 1) & 3, (qt - 1) & 3
        e = lambda i: A(f"v_exp_f32 {v(cur+i)}, {v(cur+i)}")
        c = lambda i: A(f"v_cvt_pk_bf16_f32 {v(P+i)}, {v(cur+2*i)}, {v(cur+2*i+1)}")
        if qt == 3:
            A("s_waitcnt vmcnt(6)")
        mfma(v(nxt, 16), a(aK + 8 * ks, 4), a(aQ + 8 * nq, 4), 0)
        if qt == 3:
            A("s_setprio 3")
            vload((sg - 1) & 3, sK if sg == 0 else sV)
            kload(sg, sV)
            A("s_setprio " + OPT.get("aprio", "0"))
        e(0); e(1); e(2); e(3)
        mfma(Oreg(pq), v(vV + 8 * vs + 4, 4), v(P + 4, 4))
        c(0); c(1); e(4); e(5); e(6); e(7)
        mfma(v(nxt, 16), a(aK + 8 * ks + 4, 4), a(aQ + 8 * nq + 4, 4))
        c(2); c(3); e(8); e(9); e(10); e(11)
        mfma(Oreg(qt), v(vV + 8 * sg, 4), v(P, 4))
        c(4); c(5); e(12); e(13); e(14); e(15); c(6); c(7)

    for sg in range(4):
        for qt in range(4):
            period(sg, qt)
            A.vm = []
    A(f"""s_mov_b32 {s(sK)}, {s(sV)}
          s_add_u32 {s(sV)}, {s(sV)}, 0x4000
          s_and_b32 {s(sV)}, {s(sV)}, 0xffff
          s_cmp_eq_u32 {s(sT4)}, 2
          s_cselect_b32 {s(sV)}, {OOB}, {s(sV)}
          s_sub_u32 {s(sT4)}, {s(sT4)}, 1
          s_cmp_lg_u32 {s(sT4)}, 0
          s_cbranch_scc1 L_aloop""")
    mfma(Oreg(3), v(vV + 28, 4), v(P + 4, 4))
    stamp()
    A("s_setprio 3")
    A(f"""v_mov_b32 {v(vT0)}, {C_P4}
          ds_read_b32 {v(vT1)}, {v(vT0)}
          ds_read_b32 {v(vT2)}, {v(vT0)} offset:{L_MODE - C_P4}
          s_waitcnt lgkmcnt(0)
          v_readfirstlane_b32 {s(sT0)}, {v(vT1)}
          v_readfirstlane_b32 {s(sLOC)}, {v(vT2)}
          s_cmp_ge_u32 {s(sT0)}, 4
          s_cbranch_scc1 L_free""")
    await_cnt(C_P4)
    read_mode()
    A.label("L_free")
    A("s_nop 2")
    offs = [(0, i * 1024) for i in range(12)]
    if "mrg" in OPT:
        stamp()
    reduce_out([("a", aO), ("a", aO + 16), ("a", aO + 32)], C_MRG, [124], offs)
    if "mrg" in OPT:
        stamp()
        await_cnt(C_MRG)
        stamp()

    reduce_in(O0, [32, 48, 104], C_MRG, lambda sl: [124 + sl], offs)
    if "mrg" in OPT:
        stamp()
    A(f"v_mov_b32 {v(32)}, {v(O0+12)}")
    halves(32, 33)
    A(f"v_rcp_f32 {v(33)}, {v(33)}\ns_nop 0")
    for i in range(16):
        A(f"v_mul_f32 {v(O0+i)}, {v(O0+i)}, {v(33)}")
    for i in range(8):
        A(f"v_cvt_pk_bf16_f32 {v(40+i)}, {v(O0+2*i)}, {v(O0+2*i+1)}")
    A(f"s_mov_b64 exec, {s(sHI,2)}\nv_mov_b32 {v(46)}, 0\nv_mov_b32 {v(47)}, 0\ns_mov_b64 exec, -1")
    hstore([f"buffer_store_dwordx4 {v(40,4)}, {v(vL16)}, {s(SW,4)}, {s(sB4)} offen",
            f"buffer_store_dwordx4 {v(44,4)}, {v(vL16)}, {s(SW,4)}, {s(sB4)} offen offset:1024"])
    if "mrg" in OPT:
        stamp()
        A.drain_vm()
        stamp()
    signal(N_O, own_slot(FO), near=True)
    stamp()
    dump_stamps()
    A("s_endpgm")

    A.label("L_slow")
    mx, kf = 108, 112
    for sl in range(4):
        A(f"v_mov_b32 {v(mx+sl)}, 0xff800000")
    A(f"s_mov_b32 {s(sT4)}, 0")
    A.label("L_sloop")
    A(f"""buffer_load_dwordx4 {v(kf,4)}, {v(vF)}, {s(SW,4)}, {s(sT4)} offen sc1
          buffer_load_dwordx4 {v(kf+4,4)}, {v(vF)}, {s(SW,4)}, {s(sT4)} offen offset:1024 sc1
          s_add_u32 {s(sT4)}, {s(sT4)}, 4096
          s_waitcnt vmcnt(0)""")
    for sl in range(4):
        mfma(v(S[0], 16), v(kf, 4), a(aQ + 8 * sl, 4), 0)
        mfma(v(S[0], 16), v(kf + 4, 4), a(aQ + 8 * sl + 4, 4))
        A("s_nop 11")
        for i in range(8):
            A(f"v_max3_f32 {v(mx+sl)}, {v(mx+sl)}, {v(S[0]+2*i)}, {v(S[0]+2*i+1)}")
    A(f"s_cmp_lt_u32 {s(sT4)}, 0x10000\ns_cbranch_scc1 L_sloop")
    A(f"v_and_b32 {v(kf)}, 31, {v(vLANE)}\nv_lshlrev_b32 {v(kf)}, 2, {v(kf)}\nv_add_u32 {v(kf)}, {L_MX}, {v(kf)}")
    for sl in range(4):
        halves(mx + sl, kf + 1)
        A(f"""v_max_f32 {v(mx+sl)}, {v(mx+sl)}, {v(kf+1)}
              s_xor_b32 {s(sT0)}, {s(sW)}, {sl}
              s_lshl_b32 {s(sT0)}, {s(sT0)}, 7
              v_add_u32 {v(kf+4+sl)}, {s(sT0)}, {v(kf)}""")
    A(f"ds_write_b32 {v(kf+4)}, {v(mx)}")
    arrive(C_MAX)
    await_cnt(C_MAX)
    for sl in range(1, 4):
        A(f"ds_max_f32 {v(kf+4+sl)}, {v(mx+sl)}")
    arrive(C_MAX)
    await_cnt(C_MAX, 8)
    t = 120
    for sl in range(4):
        A(f"""ds_read_b32 {v(t)}, {v(kf+4+sl)}
              s_waitcnt lgkmcnt(0)
              v_sub_f32 {v(t)}, 0, {v(t)}
              v_cvt_pk_bf16_f32 {v(t+1)}, {v(t)}, {v(t)}
              v_and_b32 {v(t+1)}, 0xffff0000, {v(t+1)}
              v_sub_f32 {v(t+2)}, {v(t)}, {v(t+1)}
              v_cvt_pk_bf16_f32 {v(t+3)}, {v(t)}, {v(t+2)}
              v_and_b32 {v(t+1)}, 0xffff0000, {v(t+3)}
              v_sub_f32 {v(t+2)}, {v(t+2)}, {v(t+1)}
              v_cvt_pk_bf16_f32 {v(t+2)}, {v(t+2)}, 0
              s_mov_b64 exec, {s(sHI,2)}
              v_accvgpr_write_b32 {a(aQ + 8*sl + 6)}, {v(t+3)}
              v_accvgpr_write_b32 {a(aQ + 8*sl + 7)}, {v(t+2)}
              s_mov_b64 exec, -1""")
    A("s_nop 1\ns_branch L_fast")


def header():
    ref = open(f"cdna_kernels/{NAME}.s.ref").read().split("\n")
    out = [l for l in ref if l.startswith(";") and "@launch" not in l and "Override" not in l and "grid=ceil" not in l]
    out.append(f"; @launch grid=(256,1,1) block=(512,1,1) lds={LDS_SIZE}")
    out += ['.amdgcn_target "amdgcn-amd-amdhsa--gfx950"', ".text", f".globl {NAME}_kernel", ".p2align 8",
            f".type {NAME}_kernel,@function", f"{NAME}_kernel:"]
    return "\n".join(out) + "\n"


def footer():
    return f"""L_end:
    s_endpgm
L_code_end:
.section .rodata,"a"
.p2align 6
.amdhsa_kernel {NAME}_kernel
  .amdhsa_next_free_vgpr 256
  .amdhsa_next_free_sgpr 102
  .amdhsa_accum_offset 128
  .amdhsa_group_segment_fixed_size 0
  .amdhsa_kernarg_size 104
  .amdhsa_user_sgpr_count 2
  .amdhsa_user_sgpr_kernarg_segment_ptr 1
  .amdhsa_system_sgpr_workgroup_id_x 1
.end_amdhsa_kernel
"""


if __name__ == "__main__":
    vm0 = prologue()
    mlp(vm0)
    att(vm0)
    out = [x for x in sys.argv[1:] if not x.startswith("--")]
    open(out[0] if out else "k.s", "w").write(header() + A.text() + footer())
```

```python
import math
import sys
from asmlib import Asm, a, f32, s, v, weave

NAME = "recurrent_scan__grouped_kv_mqa__mixer_s_mlp__prompt"
PROFILE = "--prof" in sys.argv or "--cyc" in sys.argv
CLOCK = "s_memtime" if "--cyc" in sys.argv else "s_memrealtime"
FORCE_SLOW = "--slow" in sys.argv
OPT = {x[2:].split("=")[0]: (x.split("=") + [""])[1] for x in sys.argv if x.startswith("--")}


class Stop(Exception):
    pass


def cut(name):
    if OPT.get("mlpstop") == name:
        arrive(C_P4)
        A.drain_vm()
        dump_stamps()
        A("s_endpgm")


KV, CS, FK, FC, FH, FX, FG, FO, FG2 = 0x0, 0x40000, 0x48000, 0x49000, 0x50000, 0x58000, 0x60000, 0x68000, 0x70000
TS = 0x80000
HB, ST, X1, HH, OB = 0x100000, 0x2C0000, 0x300000, 0x500000, 0xC00000
WS_SIZE = 0xE00000
OOB = 0x7FFF0000
LX, LA, LQ, LS = 0, 57344, 114688, 159744
LDS_SIZE = 163840
(C_PA, C_W2, C_WQ, C_Q, C_QD, C_MAX, C_MRG, C_R1, C_XA, C_XB, C_P4, C_R2, C_R3, N_H, N_X, N_G, N_G2, N_O, N_K, N_C,
 G_H, G_X, G_G, G_G2, G_O, G_K, L_KM, L_KP, L_MODE) = [LS + 4 * i for i in range(29)]
L_QN, L_STAT = LS + 1024, LS + 2048
L_MX = LS + 256
L_QG, L_VT = LA + 16384, LA + 24576
NRING = 12
assert L_QG % 8192 == 0
LOG2E = 1.4426950408889634
QSCALE = 28 ** -0.5 * LOG2E
GC1 = -2 * LOG2E * math.sqrt(2 / math.pi)
GC2 = GC1 * 0.044715
EPS = 1e-5
BOUND2 = 3500.0
ONES = 0x3F803F80
GSPIN, LSPIN = 20000, 400000
SX, SA, SQ, SW, S4, SO, SOUT, SD, S2 = 4, 8, 12, 16, 20, 24, 28, 32, 36
P_X, P_WQ, P_WK, P_WV, P_WO, P_W1, P_W2, P_W3, P_W4, P_OUT, P_DBG, P_WS = 40, 42, 44, 46, 48, 52, 54, 56, 58, 60, 62, 64
sN = 66
sW8, sW, sTB, sCB, sTT, sP, sGT = 68, 69, 70, 71, 72, 73, 74
sHI = 76
sINV = 78
sT0, sT1, sT2, sT3, sT4, sT5 = 80, 81, 82, 83, 84, 85
sPA, sPB, sB1, sB4, sSP = 86, 87, 88, 89, 90
sK, sV, sR, sRG, sRH = 91, 92, 93, 96, 97
sXC, sLOC = 75, 3
sTS = 40
vLANE, vL16, vTRN, vTRD, vT0, vT1, vT2, vT3 = 0, 1, 2, 3, 4, 5, 6, 7
MF = "v_mfma_f32_32x32x16_bf16"

A = Asm()
stamps = {"n": 0}


def stamp():
    if "anchor" in OPT:
        stamps["a"] = stamps.get("a", 0) + 1
        if stamps["a"] == int(OPT["anchor"]):
            A("s_waitcnt lgkmcnt(0)\ns_memrealtime s[98:99]\ns_waitcnt lgkmcnt(0)")
            A.lg = []
    if PROFILE:
        i = stamps["n"]
        stamps["n"] += 1
        A(f"s_waitcnt lgkmcnt(0)\n{CLOCK} {s(94,2)}\ns_waitcnt lgkmcnt(0)\ns_mov_b32 {s(sTS+i)}, s94")
        if "both" in OPT:
            A(f"s_memrealtime {s(94,2)}\ns_and_b32 {s(sTS+i)}, {s(sTS+i)}, 0xfffff\ns_waitcnt lgkmcnt(0)\n"
              f"s_lshl_b32 s94, s94, 20\ns_or_b32 {s(sTS+i)}, {s(sTS+i)}, s94")
        A.lg = []


def early_stamp(i):
    if "startup" in OPT:
        A(f"s_memtime {s(94,2)}\ns_waitcnt lgkmcnt(0)\ns_mov_b32 {s([98, 99, 100, 101, 3, 75, 97][i])}, s94")


def early_dump():
    if "startup" in OPT:
        for i, r in enumerate([98, 99, 100, 101, 3, 75, 97]):
            A(f"s_mov_b32 {s(sTS+i)}, {s(r)}")
        stamps["n"] = 7
        stamp()
        dump_stamps()
        A("s_endpgm")


def dump_stamps():
    if PROFILE:
        n = stamps["n"]
        A(f"s_lshl_b32 {s(sT0)}, s2, 3\ns_add_u32 {s(sT0)}, {s(sT0)}, {s(sW8)}\ns_lshl_b32 {s(sT0)}, {s(sT0)}, 7\n"
          f"s_add_u32 {s(sT0)}, {s(sT0)}, {TS}\nv_mov_b32 {v(vT1)}, 0")
        for i in range(n):
            A(f"v_mov_b32 {v(vT0)}, {s(sTS+i)}\nbuffer_store_dword {v(vT0)}, {v(vT1)}, {s(SW,4)}, {s(sT0)} offen offset:{4*i}")
        A.drain_vm()
    stamps["n"] = 0


def srd(r, ptr, size):
    A(f"s_mov_b32 {s(r)}, {s(ptr)}\ns_mov_b32 {s(r+1)}, {s(ptr+1)}\ns_mov_b32 {s(r+2)}, {size}\ns_mov_b32 {s(r+3)}, 0x20000")


def mfma(d, x, y, c=None):
    A(f"{MF} {d}, {x}, {y}, {d if c is None else c}")


def dma(m0_base, m0_off, voff, desc, soff, tag, imm=0, sc=""):
    if m0_base is None:
        A(f"s_mov_b32 m0, {m0_off - imm}")
    else:
        A(f"s_add_u32 m0, {s(m0_base)}, {m0_off - imm}")
    pre, so = soff
    if pre:
        A(pre)
    else:
        A("s_nop 0")
    A.vmem(f"buffer_load_dwordx4 {v(voff)}, {s(desc,4)}, {so} offen" + (f" offset:{imm}" if imm else "") + f"{sc} lds", tag)


def tr(dst, addr, off, second, tag):
    k, i = dst
    r = v if k == "v" else a
    A.ds(f"ds_read_b64_tr_b16 {r(i,2)}, {v(addr)} offset:{off}", tag)
    A.ds(f"ds_read_b64_tr_b16 {r(i+2,2)}, {v(addr)} offset:{off+second}", tag)


def arrive(cnt):
    A(f"s_mov_b64 exec, 1\nv_mov_b32 {v(vT0)}, {cnt}\nv_mov_b32 {v(vT1)}, 1")
    A.ds(f"ds_add_u32 {v(vT0)}, {v(vT1)}", "cnt")
    A("s_mov_b64 exec, -1")


def await_cnt(cnt, target=4):
    lp, ok = A.newlabel("ls"), A.newlabel("lk")
    A(f"v_mov_b32 {v(vT0)}, {cnt}\ns_mov_b32 {s(sSP)}, 0")
    A.label(lp)
    A(f"""ds_read_b32 {v(vT1)}, {v(vT0)}
          s_add_u32 {s(sSP)}, {s(sSP)}, 1
          s_waitcnt lgkmcnt(0)
          v_readfirstlane_b32 {s(sT0)}, {v(vT1)}
          s_cmp_ge_u32 {s(sT0)}, {target}
          s_cbranch_scc1 {ok}
          {"s_sleep " + OPT["lsleep"] if "lsleep" in OPT else ""}
          s_cmp_lt_u32 {s(sSP)}, {LSPIN}
          s_cbranch_scc1 {lp}""")
    A.label(ok)
    A.lg = []


def gate(go, setup, tmp, payload=None, release=True):
    lp, ok, rest = A.newlabel("gs"), A.newlabel("gk"), A.newlabel("gw")
    every = "allpoll" in OPT and not payload
    if not every:
        A(f"s_cmp_lg_u32 {s(sW)}, 0\ns_cbranch_scc1 {rest}")
    setup()
    A(f"s_mov_b32 {s(sSP)}, 0")
    A.label(lp)
    n = 4 if payload else 2
    A(f"""buffer_load_dwordx{n} {v(tmp,n)}, {v(vT2)}, {s(SW,4)}, 0 offen sc1
          s_add_u32 {s(sSP)}, {s(sSP)}, 1
          s_waitcnt vmcnt(0)
          v_cmp_eq_u64 vcc, {s(sN,2)}, {v(tmp,2)}
          s_or_b64 vcc, vcc, {s(sINV,2)}
          s_cmp_eq_u64 vcc, -1
          s_cbranch_scc1 {ok}
          {"" if release else "s_sleep 8"}
          s_cmp_lt_u32 {s(sSP)}, {GSPIN}
          s_cbranch_scc1 {lp}""")
    A.label(ok)
    if every:
        return
    if payload:
        payload()
    if not release:
        A.label(rest)
        return
    keep = list(A.lg)
    arrive(go)
    A.lg = keep
    A.label(rest)
    await_cnt(go, 1)


def peek_issue(setup, data=vT0, addr=vT2, n=2):
    setup()
    if addr != vT2:
        A(f"v_mov_b32 {v(addr)}, {v(vT2)}")
    A.vmem(f"buffer_load_dwordx{n} {v(data,n)}, {v(addr)}, {s(SW,4)}, 0 offen sc1", "peek")


def peek_check(data=vT0, addr=vT2, n=2):
    lp, ok = A.newlabel("ps"), A.newlabel("pk")
    A.wait_vm("peek")
    A(f"s_mov_b32 {s(sSP)}, {GSPIN}")
    A.label(lp)
    A(f"""v_cmp_eq_u64 vcc, {s(sN,2)}, {v(data,2)}
          s_or_b64 vcc, vcc, {s(sINV,2)}
          s_cmp_eq_u64 vcc, -1
          s_cbranch_scc1 {ok}
          s_sub_u32 {s(sSP)}, {s(sSP)}, 1
          s_cbranch_scc1 {ok}
          buffer_load_dwordx{n} {v(data,n)}, {v(addr)}, {s(SW,4)}, 0 offen sc1
          s_waitcnt vmcnt(0)
          s_branch {lp}""")
    A.label(ok)


def lanes_to(addr_reg):
    A(f"s_mov_b64 vcc, {s(sINV,2)}\nv_mov_b32 {v(vT3)}, {OOB}\nv_cndmask_b32 {v(vT2)}, {v(addr_reg)}, {v(vT3)}, vcc")


def hstore(stores, tag=None, allow=True):
    if not allow:
        for t in stores:
            A.vmem(t + " sc1", tag)
        return
    near, done = A.newlabel("hn"), A.newlabel("hd")
    A(f"s_cmp_lg_u32 {s(sLOC)}, 0\ns_cbranch_scc1 {near}")
    for t in stores:
        A(t + " sc1")
    A(f"s_branch {done}")
    A.label(near)
    for t in stores:
        if tag is None:
            A(t)
        else:
            A.vmem(t, tag)
    A.label(done)


def note_die(data):
    A(f"""v_cmp_eq_u32 vcc, {s(sXC)}, {v(data)}
          s_and_b32 {s(sT0)}, vcc_lo, {s(sT2)}
          s_cmp_eq_u32 {s(sT0)}, {s(sT2)}
          s_cselect_b32 {s(sT0)}, {0 if "remote" in OPT else 1}, 0
          v_mov_b32 {v(vT0)}, {L_MODE}
          v_mov_b32 {v(vT1)}, {s(sT0)}
          ds_write_b32 {v(vT0)}, {v(vT1)}""")


def read_mode():
    A(f"""v_mov_b32 {v(vT0)}, {L_MODE}
          ds_read_b32 {v(vT1)}, {v(vT0)}
          s_waitcnt lgkmcnt(0)
          v_readfirstlane_b32 {s(sLOC)}, {v(vT1)}""")
    A.lg = []


def warm(dst, voff, soff, mask):
    if "nowarm" in OPT:
        return
    if isinstance(mask, str):
        A(f"s_bfm_b64 exec, {len(mask[2:]) * 4}, 0")
    else:
        A(f"s_mov_b64 exec, {mask}")
    A.vmem(f"buffer_load_dword {a(dst)}, {v(voff)}, {s(SW,4)}, {s(soff)} offen sc1", "warm")
    A("s_mov_b64 exec, -1")


def signal(cnt, soff_expr, tags=None, payload=None, near=False):
    skip = A.newlabel("sg")
    if tags is None:
        A.drain_vm()
    else:
        A.wait_vm(tags)
    A(f"""s_mov_b64 exec, 1
          v_mov_b32 {v(vT0)}, {cnt}
          v_mov_b32 {v(vT1)}, 1
          ds_add_rtn_u32 {v(vT1)}, {v(vT0)}, {v(vT1)}""")
    if payload:
        A(f"ds_read_b32 {v(vT2)}, {v(vT0)} offset:{payload - cnt}")
    A(soff_expr)
    A(f"""s_waitcnt lgkmcnt(0)
          v_readfirstlane_b32 {s(sT1)}, {v(vT1)}
          s_cmp_lg_u32 {s(sT1)}, 3
          s_cbranch_scc1 {skip}
          v_mov_b32 {v(vT0)}, {s(sN)}
          v_mov_b32 {v(vT1)}, {s(sN+1)}
          v_mov_b32 {v(vT3)}, 0""")
    if not payload:
        A(f"v_mov_b32 {v(vT2)}, {s(sXC)}")
    st = f"buffer_store_dwordx4 {v(vT0,4)}, {v(vT3)}, {s(SW,4)}, {s(sT0)} offen"
    if near:
        hstore([st])
    else:
        A(st + " sc1")
    A.label(skip)
    A("s_mov_b64 exec, -1\ns_nop 0")
    A.lg = []


def nonce_issue(tmp):
    A(f"v_mov_b32 {v(vT3)}, 0")
    A.vmem(f"buffer_load_dwordx2 {v(tmp,2)}, {v(vT3)}, {s(SD,4)}, 0 offen sc1", "nonce")


def nonce_take(tmp):
    lp, ok = A.newlabel("ns"), A.newlabel("nk")
    A.wait_vm("nonce")
    A(f"s_mov_b32 {s(sSP)}, 0\nv_mov_b32 {v(vT3)}, 0")
    A.label(lp)
    A(f"""v_readfirstlane_b32 {s(sN)}, {v(tmp)}
          v_readfirstlane_b32 {s(sN+1)}, {v(tmp+1)}
          s_add_u32 {s(sSP)}, {s(sSP)}, 1
          s_cmp_lg_u64 {s(sN,2)}, 0
          s_cbranch_scc1 {ok}
          s_cmp_ge_u32 {s(sSP)}, {GSPIN}
          s_cbranch_scc1 {ok}
          buffer_load_dwordx2 {v(tmp,2)}, {v(vT3)}, {s(SD,4)}, 0 offen sc1
          s_waitcnt vmcnt(0)
          s_branch {lp}""")
    A.label(ok)


def halves(x, t):
    A(f"v_mov_b32 {v(t)}, {v(x)}\ns_nop 1\nv_permlane32_swap_b32 {v(x)}, {v(t)}")


def wave_max(x, full):
    for sh in (1, 2, 4, 8):
        A(f"s_nop 1\nv_max_f32_dpp {v(x)}, {v(x)}, {v(x)} row_shr:{sh} row_mask:0xf bank_mask:0xf bound_ctrl:0")
    A(f"s_nop 1\nv_max_f32_dpp {v(x)}, {v(x)}, {v(x)} row_bcast:15 row_mask:0xa bank_mask:0xf")
    if full:
        A(f"s_nop 1\nv_max_f32_dpp {v(x)}, {v(x)}, {v(x)} row_bcast:31 row_mask:0xc bank_mask:0xf")
    A("s_nop 1")


def gelu_ops(y, t, dst, c1, c2, ri):
    o = []
    for e in (0, 1):
        o.append(f"v_mul_f32 {v(t+e)}, {v(y+e)}, {v(y+e)}")
    for e in (0, 1):
        o.append(f"v_fma_f32 {v(t+e)}, {v(t+e)}, {v(c2)}, {v(c1)}")
    for e in (0, 1):
        o.append(f"v_mul_f32 {v(t+e)}, {v(t+e)}, {v(y+e)}")
    for e in (0, 1):
        o.append(f"v_exp_f32 {v(t+e)}, {v(t+e)}")
    for e in (0, 1):
        o.append(f"v_fma_f32 {v(t+e)}, {v(t+e)}, {v(ri)}, {v(ri)}")
    for e in (0, 1):
        o.append(f"v_rcp_f32 {v(t+e)}, {v(t+e)}")
    for e in (0, 1):
        o.append(f"v_mul_f32 {v(t+e)}, {v(t+e)}, {v(y+e)}")
    o.append(f"v_cvt_pk_bf16_f32 {v(dst)}, {v(t)}, {v(t+1)}")
    return o


def ring_addr(slot):
    return (sPA, slot * 2048) if slot < 7 else (sPB, (slot - 7) * 2048)


def reduce_out(srcs, cnt, vbase, offs, fill=()):
    def wr(i):
        k, r = srcs[i // 4]
        reg = (v if k == "v" else a)(r + 4 * (i % 4), 4)
        b, o = offs[i]
        A.ds(f"ds_write_b128 {v(vbase[b])}, {reg} offset:{o}", "red")
        if i == 11:
            arrive(cnt)
    weave(A, [lambda i=i: wr(i) for i in range(12)], list(fill))


def reduce_in(acc, tmp, cnt, mkaddr, offs, between=None):
    tmp = tmp if isinstance(tmp, list) else [tmp, tmp + 16, tmp + 32]
    await_cnt(cnt)
    for sl in (1, 2, 3):
        regs = mkaddr(sl)
        for q in range(4):
            b, o = offs[(sl - 1) * 4 + q]
            A.ds(f"ds_read_b128 {v(tmp[sl-1] + 4*q, 4)}, {v(regs[b])} offset:{o}", ("rd", sl))
    if between:
        between()
    for sl in (1, 2, 3):
        A.wait_lg(("rd", sl))
        for i in range(16):
            A(f"v_add_f32 {v(acc+i)}, {v(acc+i)}, {v(tmp[sl-1] + i)}")


vC8, vC7, vXF, vWQ = 100, 101, 104, 109
SXR = [16, 20, 88, 92, 112, 116, 120]


def image(base, off, voff, desc, sreg_expr, rs, tag, halves_=(0, 1)):
    for h in halves_:
        dma(base, off + h * 1024, voff, desc, (sreg_expr(h * 8 * rs), s(sT0)), tag)


def gaps(mfmas, pieces):
    n, m, done = len(mfmas), len(pieces), 0
    for i, f in enumerate(mfmas):
        f()
        while done < -(-m * (i + 1) // n):
            pieces[done]()
            done += 1


def prologue():
    A(f"""s_cmp_ge_u32 s2, 256
          s_cbranch_scc1 L_end
          s_load_dwordx16 {s(40,16)}, s[0:1], 0
          s_load_dwordx8 {s(56,8)}, s[0:1], 64
          s_load_dwordx2 {s(64,2)}, s[0:1], 96
          s_memrealtime {s(sN,2)}
          s_memrealtime s[98:99]
          s_getpc_b64 {s(sT2,2)}
          v_lshrrev_b32 {v(vT0)}, 6, v0
          s_lshr_b32 {s(sT0)}, s2, 3
          v_readfirstlane_b32 {s(sW8)}, {v(vT0)}
          v_and_b32 {v(vLANE)}, 63, v0
          v_lshlrev_b32 {v(vT2)}, 7, {v(vLANE)}
          s_and_b32 {s(sT2)}, {s(sT2)}, 0xffffff00""")
    A(f"""s_mul_i32 {s(sT4)}, {s(sT0)}, 26
          s_lshr_b32 {s(sT4)}, {s(sT4)}, 8
          s_mul_i32 {s(sT4)}, {s(sT4)}, 10
          s_sub_u32 {s(sT4)}, {s(sT0)}, {s(sT4)}
          s_lshl_b32 {s(sT4)}, {s(sT4)}, 3
          s_add_u32 {s(sT4)}, {s(sT4)}, {s(sW8)}
          s_lshl_b32 {s(sT4)}, {s(sT4)}, 9
          v_add_u32 {v(vT1)}, {s(sT4)}, {v(vT2)}
          v_min_u32 {v(vT1)}, L_code_end-{NAME}_kernel-4, {v(vT1)}
          s_mov_b64 exec, 15""")
    if "nopf" not in OPT:
        A.vmem(f"global_load_dword {a(124)}, {v(vT1)}, {s(sT2,2)}", "pf")
    A("s_mov_b64 exec, -1")
    nk = int(OPT.get("nk", 8))
    if nk == 8:
        A(f"""s_and_b32 {s(sT1)}, {s(sT0)}, 3
              s_and_b32 {s(sTB)}, s2, 7
              s_lshl_b32 {s(sTB)}, {s(sTB)}, 2
              s_add_u32 {s(sTB)}, {s(sTB)}, {s(sT1)}
              s_lshr_b32 {s(sCB)}, {s(sT0)}, 2""")
    else:
        per = 32 // nk
        perm = [int(c) for c in OPT.get("perm", "40516273")]
        A(f"""s_and_b32 {s(sT1)}, s2, 7
              s_lshl_b32 {s(sT1)}, {s(sT1)}, 2
              s_lshr_b32 {s(sT1)}, {sum(p << (4 * i) for i, p in enumerate(perm))}, {s(sT1)}
              s_and_b32 {s(sT1)}, {s(sT1)}, 7
              s_min_u32 {s(sT2)}, {s(sT1)}, {nk - 1}
              s_add_u32 {s(sT2)}, {s(sT2)}, 1
              s_mul_i32 {s(sT2)}, {s(sT2)}, {per}
              s_lshl_b32 {s(sT3)}, {s(sT1)}, 5
              s_add_u32 {s(sT3)}, {s(sT3)}, {s(sT0)}
              s_sub_u32 {s(sT3)}, {s(sT3)}, {s(sT2)}
              s_mul_i32 {s(sTB)}, {s(sT3)}, 9363
              s_lshr_b32 {s(sTB)}, {s(sTB)}, 16
              s_mul_i32 {s(sCB)}, {s(sTB)}, 7
              s_sub_u32 {s(sCB)}, {s(sT3)}, {s(sCB)}
              s_add_u32 {s(sCB)}, {s(sCB)}, 1
              s_mul_i32 {s(sT2)}, {s(sT1)}, {per}
              s_add_u32 {s(sT2)}, {s(sT2)}, {s(sT0)}
              s_cmp_lt_u32 {s(sT1)}, {nk}
              s_cselect_b32 {s(sT1)}, {per}, 0
              s_cmp_lt_u32 {s(sT0)}, {s(sT1)}
              s_cselect_b32 {s(sTB)}, {s(sT2)}, {s(sTB)}
              s_cselect_b32 {s(sCB)}, 0, {s(sCB)}
              s_and_b32 {s(sT1)}, {s(sTB)}, 3""")
    A(f"""v_lshlrev_b32 {v(vL16)}, 4, {v(vLANE)}
          v_lshrrev_b32 {v(vC8)}, 3, {v(vLANE)}
          v_lshrrev_b32 {v(vT0)}, 2, {v(vLANE)}
          v_and_b32 {v(vT0)}, 4, {v(vT0)}
          v_xor_b32 {v(vT0)}, {v(vT0)}, {v(vLANE)}
          v_and_b32 {v(vT0)}, 7, {v(vT0)}
          v_lshlrev_b32 {v(vC7)}, 4, {v(vT0)}""")
    A(f"""s_lshl_b32 {s(sT1)}, {s(sT1)}, 1
          s_add_u32 {s(sT1)}, {s(sT1)}, {s(sW8)}
          s_and_b32 {s(sT1)}, {s(sT1)}, 7
          s_lshl_b32 {s(sT4)}, {s(sT1)}, 10
          s_lshl_b32 {s(sT5)}, {s(sT1)}, 3
          v_add_u32 {v(vT1)}, {s(sT5)}, {v(vC8)}
          s_lshl_b32 {s(sT2)}, {s(sCB)}, 7
          s_sub_u32 {s(sT2)}, {s(sT2)}, 128
          v_mul_u32_u24 {v(vT3)}, 896, {v(vT1)}
          v_add3_u32 {v(103)}, {v(vT3)}, {v(vC7)}, {s(sT2)}
          s_and_b32 {s(sW)}, {s(sW8)}, 3
          s_mul_i32 {s(sT1)}, {s(sW)}, 7168
          v_add_u32 {v(vT3)}, {s(sT1)}, {v(vL16)}
          s_mul_i32 {s(sT1)}, {s(sW8)}, 7168
          s_cmp_eq_u32 {s(sCB)}, 0
          s_cselect_b64 vcc, -1, 0
          s_cselect_b32 {s(sT1)}, {s(sT1)}, {s(sT4)}
          s_mov_b32 {s(sT2)}, 1024
          s_cselect_b32 {s(sT3)}, {s(sT2)}, {64 * 896}
          s_cselect_b32 {s(sT5)}, {s(sT2)}, 8192
          v_cndmask_b32 {v(103)}, {v(103)}, {v(vT3)}, vcc
          s_add_u32 m0, {s(sT1)}, {LA}""")
    A(f"""s_lshl_b32 {s(sB1)}, {s(sTB)}, 3
          s_add_u32 {s(sB1)}, {s(sB1)}, {s(sCB)}
          s_lshl_b32 {s(sB1)}, {s(sB1)}, 3
          s_add_u32 {s(sB1)}, {s(sB1)}, {s(sW8)}
          s_mul_i32 {s(sB1)}, {s(sB1)}, 896
          s_mul_i32 {s(sB4)}, {s(sTB)}, 7
          s_add_u32 {s(sB4)}, {s(sB4)}, {s(sW8)}
          s_mul_i32 {s(sB4)}, {s(sB4)}, {2 * 896}
          s_mul_i32 {s(sT0)}, {s(sCB)}, 112
          s_add_u32 {s(sB4)}, {s(sB4)}, {s(sT0)}
          s_cmp_eq_u32 {s(sW8)}, 7
          s_cselect_b32 {s(sB4)}, {OOB}, {s(sB4)}
          v_lshrrev_b32 {v(102)}, 1, {v(vLANE)}
          v_mul_u32_u24 {v(102)}, 896, {v(102)}
          v_and_b32 {v(vT3)}, 1, {v(vLANE)}
          v_mul_u32_u24 {v(vT3)}, 120, {v(vT3)}
          v_add_u32 {v(102)}, {v(102)}, {v(vT3)}
          s_mov_b32 {s(SX+2)}, 1835008
          s_mov_b32 {s(SX+3)}, 0x20000
          s_mov_b32 {s(SQ+2)}, 401408
          s_mov_b32 {s(SQ+3)}, 0x20000
          s_mov_b32 {s(SA+3)}, 0x20000
          s_mov_b32 {s(SA+2)}, 25088
          s_cmp_eq_u32 {s(sCB)}, 0
          s_cselect_b32 {s(SA+2)}, {s(SA+2)}, 401408
          s_mov_b32 {s(sT0)}, 0
          s_cmp_lt_u32 {s(sW8)}, 4
          s_waitcnt lgkmcnt(0)
          s_cselect_b64 {s(SA,2)}, {s(P_WK,2)}, {s(P_WV,2)}
          s_cmp_eq_u32 {s(sCB)}, 0
          s_cselect_b64 {s(SA,2)}, {s(SA,2)}, {s(P_W1,2)}
          s_mov_b64 {s(SX,2)}, {s(P_X,2)}
          s_mov_b64 {s(SQ,2)}, {s(P_WQ,2)}""")
    early_stamp(1)
    if "nopre" not in OPT:
        A("s_mov_b64 exec, 0x7f")
        A.vmem(f"buffer_load_dword {a(126)}, {v(vT2)}, {s(SX,4)}, {s(sB1)} offen", "pre")
        A("s_mov_b64 exec, 15")
        A.vmem(f"buffer_load_dword {a(125)}, {v(102)}, {s(SQ,4)}, {s(sB4)} offen", "pre")
        A("s_mov_b64 exec, -1")
    for n in range(7):
        if n:
            A(f"s_add_u32 m0, m0, {s(sT5)}\ns_add_u32 {s(sT0)}, {s(sT0)}, {s(sT3)}")
        A.vmem(f"buffer_load_dwordx4 {v(103)}, {s(SA,4)}, {s(sT0)} offen lds", "WA")
    early_stamp(2)
    A(f"""s_lshl_b32 {s(sT0)}, {s(sTB)}, 6
          v_add_u32 {v(vT1)}, {s(sT0)}, {v(vT1)}
          v_mul_u32_u24 {v(vT2)}, 896, {v(vT1)}
          v_lshrrev_b32 {v(vT1)}, 1, {v(vT1)}
          v_xor_b32 {v(vT1)}, {v(vT1)}, {v(vLANE)}
          v_and_b32 {v(vT1)}, 7, {v(vT1)}
          v_lshl_add_u32 {v(vWQ)}, {v(vT1)}, 4, {v(vT2)}
          s_and_b32 {s(sTT)}, {s(sW8)}, 1
          s_lshr_b32 {s(sP)}, {s(sW)}, 1""")
    if PROFILE:
        A(f"s_mov_b32 {s(sTS)}, s98")
        stamps["n"] = 1
    srd(SW, P_WS, WS_SIZE)
    srd(SD, P_DBG, 256)
    A(f"""s_cmp_lg_u32 {s(sW8)}, 0
          s_cbranch_scc1 L_nz
          v_lshlrev_b32 {v(vT0)}, 2, {v(vLANE)}
          v_add_u32 {v(vT0)}, {LS}, {v(vT0)}
          v_mov_b32 {v(vT1)}, 0
          ds_write_b32 {v(vT0)}, {v(vT1)}
          s_waitcnt lgkmcnt(0)
          s_cmp_lg_u32 s2, 0
          s_cbranch_scc1 L_nz
          s_or_b32 {s(sN)}, {s(sN)}, 1
          v_mov_b32 {v(vT2)}, {s(sN)}
          v_mov_b32 {v(vT3)}, {s(sN+1)}
          s_mov_b64 exec, 1
          buffer_store_dwordx2 {v(vT2,2)}, {v(vT1)}, {s(SD,4)}, 0 offen sc1
          s_mov_b64 exec, -1""")
    A.label("L_nz")
    A(f"""s_lshl_b32 {s(sGT)}, {s(sTB)}, 1
          s_add_u32 {s(sGT)}, {s(sGT)}, {s(sTT)}
          s_mov_b32 {s(sHI)}, 0
          s_mov_b32 {s(sHI+1)}, -1
          s_getreg_b32 {s(sXC)}, hwreg(HW_REG_XCC_ID, 0, 4)
          s_mov_b32 {s(sLOC)}, 0""")
    A(f"""v_bfe_u32 {v(vT0)}, {v(vLANE)}, 2, 2
          v_lshlrev_b32 {v(vT0)}, 7, {v(vT0)}
          v_lshrrev_b32 {v(vT1)}, 5, {v(vLANE)}
          v_lshl_add_u32 {v(vTRN)}, {v(vT1)}, 10, {v(vT0)}
          v_lshl_add_u32 {v(vTRD)}, {v(vT1)}, 9, {v(vT0)}
          v_bfe_u32 {v(vT0)}, {v(vLANE)}, 4, 1
          v_and_b32 {v(vT2)}, 3, {v(vLANE)}
          v_lshlrev_b32 {v(vT2)}, 3, {v(vT2)}
          v_lshl_add_u32 {v(103)}, {v(vT0)}, 5, {v(vT2)}
          v_bfe_u32 {v(vT0)}, {v(vLANE)}, 3, 1
          v_lshlrev_b32 {v(102)}, 6, {v(vT0)}""")
    A(f"""v_and_b32 {v(vT3)}, 31, {v(vLANE)}
          s_lshl_b32 {s(sT0)}, {s(sTT)}, 5
          v_add_u32 {v(vT0)}, {s(sT0)}, {v(vT3)}
          v_bfe_u32 {v(vT2)}, {v(vT0)}, 1, 3
          v_lshlrev_b32 {v(vT0)}, 7, {v(vT0)}
          v_xor_b32 {v(vT2)}, {v(vT2)}, {v(vT1)}
          v_lshl_add_u32 {v(vXF)}, {v(vT2)}, 4, {v(vT0)}
          v_xor_b32 {v(vXF+1)}, 32, {v(vXF)}
          v_xor_b32 {v(vXF+2)}, 64, {v(vXF)}
          v_xor_b32 {v(vXF+3)}, 96, {v(vXF)}
          s_lshr_b32 {s(sT1)}, {s(sW8)}, 1
          s_lshl_b32 {s(sT0)}, {s(sT1)}, 5
          v_xor_b32 {v(108)}, {s(sT0)}, {v(vXF)}
          s_lshl_b32 {s(sT0)}, {s(sTT)}, 10
          s_add_u32 {s(sT0)}, {s(sT0)}, {L_STAT}
          v_lshl_add_u32 {v(110)}, {v(vT3)}, 3, {s(sT0)}
          s_lshl_b32 {s(sT0)}, {s(sT1)}, 8
          v_add_u32 {v(111)}, {s(sT0)}, {v(110)}
          v_mov_b32 {v(30)}, 0
          v_mov_b32 {v(31)}, 0
          s_mov_b32 {s(sT5)}, {ONES}""")
    for i in range(4):
        A(f"v_mov_b32 {v(96+i)}, {ONES}")
    A(f"""s_lshl_b32 {s(sT0)}, s2, 3
          s_add_u32 {s(sT0)}, {s(sT0)}, {s(sW8)}
          s_cmp_ge_u32 {s(sT0)}, {392 if OPT.get("tw", "23") == "23" else 4096}
          s_cselect_b64 {s(SA,2)}, {s(P_W3,2)}, {s(P_W2,2)}
          s_mov_b32 {s(SA+2)}, 401408
          s_cselect_b32 {s(SA+2)}, 1605632, {s(SA+2)}
          s_cselect_b32 {s(sT1)}, 392, 0
          s_sub_u32 {s(sT0)}, {s(sT0)}, {s(sT1)}
          s_lshl_b32 {s(sRG)}, {s(sT0)}, {10 if OPT.get("tw", "23") == "23" else 8}""")
    A(f"""s_lshl_b32 {s(sT0)}, {s(sP)}, 6
          v_xor_b32 {v(vT0)}, {v(103)}, {v(102)}
          v_xor_b32 {v(vT0)}, {s(sT0)}, {v(vT0)}
          v_add_u32 {v(vT0)}, {v(vT0)}, {v(vTRN)}
          v_lshrrev_b32 {v(vT1)}, 7, {v(vTRN)}
          v_mul_u32_u24 {v(vT1)}, 56, {v(vT1)}
          s_mul_i32 {s(sT0)}, {s(sP)}, 28672
          v_add3_u32 {v(vT1)}, {v(vT1)}, {v(103)}, {s(sT0)}
          s_cmp_eq_u32 {s(sCB)}, 0
          s_cselect_b64 vcc, -1, 0
          v_cndmask_b32 {v(vT0)}, {v(vT0)}, {v(vT1)}, vcc
          v_add_u32 {v(29)}, {LA}, {v(vT0)}""")
    early_stamp(3)
    barrier()
    for kb in range(7):
        dma(sT4, LX + kb * 8192, vWQ, SX, (None, "0"), "X", imm=kb * 128)
    touch("x")
    early_stamp(4)
    A.wait_vm("WA")
    barrier()
    early_stamp(5)
    A(f"s_cmp_ge_u32 {s(sW8)}, 4\ns_cbranch_scc1 L_att")
    return list(A.vm)


def touch(where):
    if OPT.get("tat", "p1") != where:
        return
    A(f"v_lshlrev_b32 {v(vT0)}, 7, {v(vLANE)}\ns_mov_b64 exec, {255 if OPT.get('tw', '23') == '23' else 3}")
    A.vmem(f"buffer_load_dword {a(127)}, {v(vT0)}, {s(SA,4)}, {s(sRG)} offen", "t")
    A("s_mov_b64 exec, -1")


def stat_part(between):
    for j in range(7):
        A.ds(f"ds_read_b128 {v(SXR[j],4)}, {v(108)} offset:{j*8192}", ("sx", j))
    between()
    for j in range(7):
        A.wait_lg(("sx", j))
        for i in range(4):
            r = SXR[j] + i
            A(f"v_dot2c_f32_bf16 {v(30)}, {s(sT5)}, {v(r)}\nv_dot2c_f32_bf16 {v(31)}, {v(r)}, {v(r)}")
    A("s_nop 2")
    halves(30, vT2)
    halves(31, vT3)
    A(f"v_add_f32 {v(30)}, {v(30)}, {v(vT2)}\nv_add_f32 {v(31)}, {v(31)}, {v(vT3)}")
    A.ds(f"ds_write_b64 {v(111)}, {v(30,2)}", "statw")
    A.drain_lg()


def barrier():
    A("s_barrier")


def stat_read():
    for q in range(4):
        A.ds(f"ds_read_b64 {v(112+2*q,2)}, {v(110)} offset:{q*256}", "stat")


def stat_fin(vM, vVar):
    A.wait_lg("stat")
    for op in stat_fin_ops(vM, vVar):
        A(op)


def stat_fin_ops(vM, vVar):
    return (f"""v_add_f32 {v(112)}, {v(112)}, {v(114)}
          v_add_f32 {v(113)}, {v(113)}, {v(115)}
          v_add_f32 {v(116)}, {v(116)}, {v(118)}
          v_add_f32 {v(117)}, {v(117)}, {v(119)}
          v_add_f32 {v(112)}, {v(112)}, {v(116)}
          v_add_f32 {v(113)}, {v(113)}, {v(117)}
          v_mul_f32 {v(vM)}, {f32(1/448)}, {v(112)}
          v_mul_f32 {v(112)}, {v(vM)}, {v(vM)}
          v_mul_f32 {v(113)}, {f32(1/448)}, {v(113)}
          v_sub_f32 {v(113)}, {v(113)}, {v(112)}
          v_max_f32 {v(vVar)}, 0, {v(113)}""").split("\n")


def own_slot(base):
    return (f"s_lshl_b32 {s(sT0)}, {s(sTB)}, 3\ns_add_u32 {s(sT0)}, {s(sT0)}, {s(sCB)}\n"
            f"s_lshl_b32 {s(sT0)}, {s(sT0)}, 7\ns_add_u32 {s(sT0)}, {s(sT0)}, {base}")


late = []


def mlp(vm_entry):
    A.vm = list(vm_entry)
    vXD, vX1P, vW, vW3, vM, vR, vWA = 8, 16, 24, 26, 27, 28, 29
    vRA, vRB = [2, 3], [25, 31]
    acc, cs, ring, ones = 32, 48, 64, 96
    xnear, hnear = "x" in OPT.get("near", "xo"), "h" in OPT.get("near", "xo")
    A("s_setprio " + OPT.get("prio", "2"))
    vXA = 124
    setup = []
    for r, p, n in ((S2, P_W2, 401408), (SQ, P_W3, 1605632), (S4, P_W4, 1605632), (SO, P_WO, 401408), (SOUT, P_OUT, 1835008)):
        setup += [f"s_mov_b64 {s(r,2)}, {s(p,2)}", f"s_mov_b32 {s(r+2)}, {n}", f"s_mov_b32 {s(r+3)}, 0x20000"]
    setup += f"""s_max_u32 {s(sT1)}, {s(sCB)}, 1
          s_sub_u32 {s(sT1)}, {s(sT1)}, 1
          s_lshl_b32 {s(sT4)}, {s(sT1)}, 1
          s_add_u32 {s(sT4)}, {s(sT4)}, {s(sP)}
          s_mul_i32 {s(sPA)}, {s(sW)}, 14336
          s_mul_i32 {s(sPB)}, {s(sW)}, 11264
          s_add_u32 {s(sPB)}, {s(sPB)}, {LQ}
          s_mul_i32 {s(sB1)}, {s(sW)}, {112*896}
          s_mul_i32 {s(sB4)}, {s(sW)}, {448*896}
          s_and_b32 {s(sR)}, {s(sTB)}, 3
          s_lshl_b32 {s(sR)}, {s(sR)}, 1
          s_add_u32 {s(sR)}, {s(sR)}, {s(sCB)}
          s_cmp_ge_u32 {s(sR)}, 7
          s_cselect_b32 {s(sT0)}, 7, 0
          s_sub_u32 {s(sR)}, {s(sR)}, {s(sT0)}
          v_mul_u32_u24 {v(vT0)}, 896, {v(vC8)}
          s_lshl_b32 {s(sT0)}, {s(sT1)}, 7
          v_add3_u32 {v(vW)}, {v(vT0)}, {v(vC7)}, {s(sT0)}
          v_mul_u32_u24 {v(vT0)}, 3584, {v(vC8)}
          s_lshl_b32 {s(sT0)}, {s(sT1)}, 9
          s_lshl_b32 {s(sT2)}, {s(sW)}, 7
          s_add_u32 {s(sT0)}, {s(sT0)}, {s(sT2)}
          v_add3_u32 {v(vW3)}, {v(vT0)}, {v(vC7)}, {s(sT0)}
          s_lshl_b32 {s(sT0)}, {s(sP)}, 6
          v_xor_b32 {v(103)}, {v(103)}, {v(102)}
          v_xor_b32 {v(102)}, {s(sT0)}, {v(103)}
          s_lshl_b32 {s(sT3)}, {s(sT1)}, 13
          v_lshrrev_b32 {v(vT1)}, 5, {v(vLANE)}
          v_lshlrev_b32 {v(vT2)}, 4, {v(vT1)}
          v_xor_b32 {v(vXA)}, {v(vXF)}, {v(vT2)}
          v_xor_b32 {v(vXA)}, {s(sT0)}, {v(vXA)}
          v_lshl_add_u32 {v(vXA)}, {v(vT1)}, 3, {v(vXA)}
          v_add_u32 {v(vXA)}, {s(sT3)}, {v(vXA)}
          v_xor_b32 {v(vXA+1)}, 16, {v(vXA)}
          v_xor_b32 {v(vXA+2)}, 32, {v(vXA)}
          v_xor_b32 {v(vXA+3)}, 48, {v(vXA)}""".split("\n")

    def colsums(kstride, second):
        def step(ks):
            if ks < 28:
                tr(("a", 4 * ks), vWA, ks * kstride, second, ("w", ks))
            if ks >= 4:
                A.wait_lg(("w", ks - 4))
                mfma(v(cs, 16), a(4 * (ks - 4), 4), v(ones, 4), 0 if ks == 4 else None)
        weave(A, [lambda ks=ks: step(ks) for ks in range(32)], [lambda t=t: A(t) for t in setup])

    A(f"s_cmp_eq_u32 {s(sCB)}, 0\ns_cbranch_scc1 L_cskv")
    colsums(2048, 512)
    A.label("L_csdone")
    late.append(lambda: (A.label("L_cskv"), colsums(896, 224), A("s_branch L_csdone")))
    early_stamp(6)
    A.wait_vm("X")
    barrier()
    early_dump()
    stamp()
    NX = 6

    def xr(ks):
        A.ds(f"ds_read_b128 {v(ring + 4 * (ks % NX), 4)}, {v(vXF + (ks & 3))} offset:{(ks >> 2) * 8192}", ("x", ks))

    def first():
        for ks in range(NX - 1):
            xr(ks)
        for g in range(4):
            A.ds(f"ds_read_b64 {v(vXD+2*g,2)}, {v(vXA+g)}", "xd")
    stat_part(first)
    barrier()
    vC1g, vC2g, vRI, vR2 = 120, 121, 122, 123
    ne2 = int(OPT.get("ne2", 0))

    def w2dma(j, hs=(0, 1)):
        base, off = (sT3, LA + 24576 + j * 2048) if j < ne2 else (sPA, j * 2048)
        image(base, off, vW, S2, lambda e: f"s_add_u32 {s(sT0)}, {s(sB1)}, {j * 16 * 896 + e}", 896, "W2", hs)
    A(f"s_lshl_b32 {s(sT3)}, {s(sW)}, 13")
    fin = stat_fin_ops(vM, vR) + f"""v_add_f32 {v(vT0)}, {f32(EPS)}, {v(vR)}
          v_rsq_f32 {v(vT1)}, {v(vT0)}
          v_mov_b32 {v(vT3)}, {f32(EPS)}
          v_mul_f32 {v(vT2)}, {v(vT1)}, {v(vT1)}
          v_fma_f32 {v(vT2)}, {v(vT2)}, {v(vR)}, {v(vT3)}
          v_rsq_f32 {v(vT2)}, {v(vT2)}
          v_mov_b32 {v(vR)}, {v(vT1)}
          v_mul_f32 {v(vR2)}, {v(vT1)}, {v(vT2)}
          v_rcp_f32 {v(vRI)}, {v(vR2)}
          v_mul_f32 {v(vC1g)}, {f32(GC1)}, {v(vR2)}
          v_mul_f32 {v(vC2g)}, {v(vR2)}, {v(vR2)}
          v_mul_f32 {v(vC2g)}, {v(vC2g)}, {v(vR2)}
          v_mul_f32 {v(vC2g)}, {f32(GC2)}, {v(vC2g)}""".split("\n")
    fin += [f"v_mul_f32 {v(cs+i)}, {v(cs+i)}, {v(vM)}" for i in range(16)]
    for ks in range(28):
        if ks + NX - 1 < 28:
            xr(ks + NX - 1)
        if ks == 0:
            stat_read()
            nonce_issue(30)
        A.wait_lg(("x", ks))
        mfma(v(acc, 16), a(4 * ks, 4), v(ring + 4 * (ks % NX), 4), 0 if ks == 0 else None)
        if ks == 1:
            touch("p1")
        if 3 <= ks < 3 + 2 * ne2:
            skip = A.newlabel("w2")
            A(f"s_cmp_eq_u32 {s(sCB)}, 0\ns_cbranch_scc1 {skip}")
            w2dma((ks - 3) >> 1, ((ks - 3) & 1,))
            A.label(skip)
        if ks == 5:
            A.wait_lg("stat")
        if ks >= 5:
            for _ in range(3):
                if fin:
                    A(fin.pop(0))
    assert not fin
    arrive(C_PA)
    vm_kv = [t for t in A.vm if t != "W2"]
    A(f"s_cmp_eq_u32 {s(sCB)}, 0\ns_cbranch_scc1 L_kv\ns_nop 4")
    for i in range(16):
        A(f"v_sub_f32 {v(acc+i)}, {v(acc+i)}, {v(cs+i)}")
    stamp()
    pk = 64
    vHS = 74
    for i in range(8):
        for op in gelu_ops(acc + 2 * i, 72, pk + i, vC1g, vC2g, vRI):
            A(op)
        if i == 2:
            A(f"""v_and_b32 {v(vT0)}, 31, {v(vLANE)}
                  s_lshl_b32 {s(sT0)}, {s(sGT)}, 5
                  v_add_u32 {v(vT0)}, {s(sT0)}, {v(vT0)}
                  v_lshrrev_b32 {v(vT1)}, 5, {v(vLANE)}
                  v_lshlrev_b32 {v(vT1)}, 15, {v(vT1)}
                  v_lshl_add_u32 {v(vHS)}, {v(vT0)}, 4, {v(vT1)}
                  s_lshl_b32 {s(sT0)}, {s(sT4)}, 17
                  s_add_u32 {s(sT0)}, {s(sT0)}, {HB}
                  s_add_u32 {s(sT1)}, {s(sT0)}, 0x10000""")
        if i in (3, 7):
            A.vmem(f"buffer_store_dwordx4 {v(pk+(i&4),4)}, {v(vHS)}, {s(SW,4)}, {s(sT0 if i == 3 else sT1)} offen sc1", "hst")
    await_cnt(C_PA, 8)
    for j in range(ne2, 7):
        w2dma(j)
    nonce_take(30)
    signal(N_H, own_slot(FH), "hst")
    stamp()
    A(f"""s_add_u32 {s(sT0)}, {s(sT3)}, {LA + 24576}
          v_add3_u32 {v(32)}, {v(vTRD)}, {v(102)}, {s(sT0)}
          v_xor_b32 {v(33)}, 64, {v(32)}
          v_add_u32 {v(vT0)}, {s(sPA)}, {v(vTRD)}
          v_add_u32 {v(vT1)}, {s(sPB)}, {v(vTRD)}
          v_add_u32 {v(vRA[0])}, {v(vT0)}, {v(102)}
          v_xor_b32 {v(vRA[1])}, 64, {v(vRA[0])}
          v_add_u32 {v(vRB[0])}, {v(vT1)}, {v(102)}
          v_xor_b32 {v(vRB[1])}, 64, {v(vRB[0])}""")
    A.wait_vm("W2")
    for j in range(7):
        for b in range(2):
            tr(("a", 8 * j + 4 * b), 32 + b if j < ne2 else vRA[b], j * 2048, 1024, "w2")
    vH = 29
    A(f"""s_add_u32 {s(sT0)}, {s(sP)}, 1
          s_sub_u32 {s(sT1)}, 0, {s(sT0)}
          s_cmp_eq_u32 {s(sTT)}, 0
          s_cselect_b32 {s(sT0)}, {s(sT1)}, {s(sT0)}
          s_lshl_b32 {s(sT1)}, {s(sGT)}, 5
          s_add_u32 {s(sT1)}, {s(sT1)}, {s(sT0)}
          s_xor_b32 {s(sT2)}, {s(sGT)}, 1
          s_lshl_b32 {s(sT2)}, {s(sT2)}, 5
          s_add_u32 {s(sT2)}, {s(sT2)}, {s(sT0)}
          v_and_b32 {v(vT0)}, 31, {v(vLANE)}
          v_lshrrev_b32 {v(vT1)}, 5, {v(vLANE)}
          v_lshlrev_b32 {v(vT1)}, 15, {v(vT1)}
          v_mov_b32 {v(vT3)}, {OOB}""")
    for sl, sr in ((0, sT1), (1, sT2)):
        A(f"""v_add_u32 {v(vT2)}, {s(sr)}, {v(vT0)}
              v_cmp_gt_u32 vcc, 2048, {v(vT2)}
              v_lshl_add_u32 {v(vT2)}, {v(vT2)}, 4, {v(vT1)}
              s_nop 0
              v_cndmask_b32 {v(vH+sl)}, {v(vT3)}, {v(vT2)}, vcc""")

    def rot7(reg, u, scale, base):
        if u == 0:
            A(f"s_mul_i32 {s(reg)}, {s(sR)}, {scale}")
        else:
            A(f"""s_add_u32 {s(reg)}, {s(reg)}, {scale}
                  s_cmp_ge_u32 {s(reg)}, {7 * scale}
                  s_cselect_b32 {s(sT0)}, {7 * scale}, 0
                  s_sub_u32 {s(reg)}, {s(reg)}, {s(sT0)}""")

    def sdma(n, hs=(0, 1)):
        base, off = ring_addr(n % NRING)
        if n < 28:
            if n % 4 == 0 and 0 in hs:
                rot7(sRG, n // 4, 64 * 3584, None)
            image(base, off, vW3, SQ, lambda e: f"s_add_u32 {s(sT0)}, {s(sRG)}, {(n % 4) * 16 * 3584 + e}", 3584, ("S", n), hs)
        elif n < 56:
            p = n - 28
            if p % 2 == 0 and 0 in hs:
                rot7(sRG, (p % 14) // 2, 64 * 896, None)
                A(f"s_add_u32 {s(sT3)}, {s(sRG)}, {s(sB4)}")
            image(base, off, vW, S4, lambda e: f"s_add_u32 {s(sT0)}, {s(sT3)}, {(2 * (p // 14) + p % 2) * 16 * 896 + e}", 896, ("S", n), hs)
        else:
            k = n - 56
            image(base, off, vW, SO, lambda e: f"s_add_u32 {s(sT0)}, {s(sB1)}, {((k >> 1) * 28 + (k & 1) * 16) * 896 + e}", 896, ("S", n), hs)

    def sreg(n, b):
        return 8 * (n % 16) + 4 * b

    def sread(n, bs=(0, 1)):
        base, off = ring_addr(n % NRING)
        if n == 28 and 0 in bs:
            flip()
        A.wait_vm(("S", n))
        for b in bs:
            tr(("a", sreg(n, b)), (vRA if base == sPA else vRB)[b], off, 1024, ("s", n))

    def refill(n, hs=(0, 1)):
        if n < 64:
            A.wait_lg(("s", n - NRING))
            sdma(n, hs)

    def sread_p(n):
        return [lambda: sread(n, (0,)), lambda: sread(n, (1,))]

    def refill_p(n):
        return [lambda: refill(n, (0,)), lambda: refill(n, (1,))] if n < 64 else []

    def flip():
        A(f"s_lshl_b32 {s(sT0)}, {s(sP)}, 6")
        for r in vRA + vRB:
            A(f"v_xor_b32 {v(r)}, {s(sT0)}, {v(r)}")

    flip()
    early = int(OPT.get("early", 3))
    mid = int(OPT.get("mid", 6))
    A.drain_lg()
    arrive(C_W2)
    for n in range(early):
        sdma(n)
    cut("h")

    def setup_h():
        A(f"""v_lshrrev_b32 {v(vT0)}, 3, {v(vLANE)}
              s_sub_u32 {s(sT0)}, {s(sTB)}, 1
              v_add_u32 {v(vT0)}, {s(sT0)}, {v(vT0)}
              v_cmp_le_u32 vcc, 32, {v(vT0)}
              s_lshl_b32 {s(sT0)}, {s(sT0)}, 10
              s_add_u32 {s(sT0)}, {s(sT0)}, {FH}
              v_lshlrev_b32 {v(vT1)}, 7, {v(vLANE)}
              v_add_u32 {v(vT1)}, {s(sT0)}, {v(vT1)}
              s_mov_b32 {s(sINV)}, 0xff010101
              s_mov_b32 {s(sINV+1)}, -1
              s_or_b64 {s(sINV,2)}, {s(sINV,2)}, vcc""")
        lanes_to(vT1)

    acc0, vRW = 104, 120
    A(f"v_mul_f32 {v(vM)}, {v(vM)}, {v(vR)}")
    for i in range(8):
        A(f"""v_lshlrev_b32 {v(88)}, 16, {v(vXD+i)}
              v_and_b32 {v(89)}, 0xffff0000, {v(vXD+i)}
              v_fma_f32 {v(acc0+2*i)}, {v(88)}, {v(vR)}, -{v(vM)}
              v_fma_f32 {v(acc0+2*i+1)}, {v(89)}, {v(vR)}, -{v(vM)}""")
    for sl in range(4):
        A(f"""s_xor_b32 {s(sT0)}, {s(sW)}, {sl}
              s_mul_i32 {s(sT0)}, {s(sT0)}, 14336
              s_add_u32 {s(sT0)}, {s(sT0)}, {LA}
              v_add_u32 {v(vRW+sl)}, {s(sT0)}, {v(vL16)}""")
    await_cnt(C_W2)
    gate(G_H, setup_h, 32, payload=lambda: (A(f"s_mov_b32 {s(sT2)}, 0xfe00"), note_die(34)))
    read_mode()
    if "hold" in OPT:
        await_cnt(G_K, 1)
    stamp()
    hf = 32
    A(f"s_mul_i32 {s(sT5)}, {s(sW)}, {7 << 16}\ns_add_u32 {s(sT5)}, {s(sT5)}, {HB}")
    for j in range(7):
        if j:
            A(f"s_add_u32 {s(sT5)}, {s(sT5)}, 0x10000")
        for sl in range(2):
            A.vmem(f"buffer_load_dwordx4 {v(hf + 8*j + 4*sl, 4)}, {v(vH+sl)}, {s(SW,4)}, {s(sT5)} offen sc1", ("h", j))
    await_cnt(C_QD)
    accs = [v(acc0, 16), a(64, 16), a(80, 16), a(96, 16)]
    for j in range(7):
        A.wait_vm(("h", j))
        for sl in (1, 2, 3, 0):
            mfma(accs[sl], a(8 * j + 4 * (sl >> 1), 4), v(hf + 8 * j + 4 * (sl & 1), 4), 0 if j == 0 and sl else None)
    sdma(early)
    A("s_nop 3")
    offs1 = [(0, i * 1024) for i in range(12)]
    reduce_out([("a", 64), ("a", 80), ("a", 96)], C_R1, [vRW], offs1, [lambda n=n: sdma(n) for n in range(early + 1, early + mid)])

    reduce_in(acc0, 32, C_R1, lambda sl: [vRW + sl], offs1)
    for i in range(8):
        A(f"v_cvt_pk_bf16_f32 {v(vX1P+i)}, {v(acc0+2*i)}, {v(acc0+2*i+1)}")
    A(f"""s_mul_i32 {s(sT0)}, {s(sGT)}, 14
          s_add_u32 {s(sT0)}, {s(sT0)}, {s(sT4)}
          s_lshl_b32 {s(sT1)}, {s(sT0)}, 11
          s_add_u32 {s(sT1)}, {s(sT1)}, {X1}
          s_lshl_b32 {s(sT0)}, {s(sT0)}, 8
          s_add_u32 {s(sT2)}, {s(sT0)}, {ST}""")
    hstore([f"buffer_store_dwordx4 {v(vX1P,4)}, {v(vL16)}, {s(SW,4)}, {s(sT1)} offen",
            f"buffer_store_dwordx4 {v(vX1P+4,4)}, {v(vL16)}, {s(SW,4)}, {s(sT1)} offen offset:1024"], "xst", xnear)
    A(f"""v_add_f32 {v(32)}, {v(acc0)}, {v(acc0+1)}
          v_mul_f32 {v(33)}, {v(acc0)}, {v(acc0)}
          v_fma_f32 {v(33)}, {v(acc0+1)}, {v(acc0+1)}, {v(33)}""")
    for i in range(2, 16):
        A(f"v_add_f32 {v(32)}, {v(32)}, {v(acc0+i)}\nv_fma_f32 {v(33)}, {v(acc0+i)}, {v(acc0+i)}, {v(33)}")
    halves(32, 34)
    halves(33, 35)
    A(f"""v_add_f32 {v(32)}, {v(32)}, {v(34)}
          v_add_f32 {v(33)}, {v(33)}, {v(35)}
          v_lshlrev_b32 {v(34)}, 3, {v(vLANE)}
          s_not_b64 exec, {s(sHI,2)}""")
    hstore([f"buffer_store_dwordx2 {v(32,2)}, {v(34)}, {s(SW,4)}, {s(sT2)} offen"], "xst", xnear)
    A("s_mov_b64 exec, -1")
    stamp()
    cut("p2")
    for n in range(early + mid, NRING):
        sdma(n)
    A(f"""s_mul_i32 {s(sK)}, {s(sTB)}, {2 * 112}
          s_lshl_b32 {s(sT0)}, {s(sCB)}, 2
          s_add_u32 {s(sT0)}, {s(sT0)}, {s(sW)}
          s_sub_u32 {s(sT0)}, {s(sT0)}, 4
          s_lshl_b32 {s(sT0)}, {s(sT0)}, 2
          s_add_u32 {s(sK)}, {s(sK)}, {s(sT0)}
          s_lshl_b32 {s(sK)}, {s(sK)}, 10
          s_add_u32 {s(sK)}, {s(sK)}, {HH}""")
    npre = int(OPT.get("npre", 9))
    xsig = int(OPT.get("xsig", 4))
    for n in range(npre + 1):
        if n < npre:
            sread(n)
        if n == xsig:
            signal(N_X, own_slot(FX), "xst", near=xnear)
        if n >= 1:
            refill(n - 1 + NRING)
    stamp()
    cut("w3")

    def setup_x():
        A(f"""s_lshl_b32 {s(sT0)}, {s(sTB)}, 10
              s_add_u32 {s(sT0)}, {s(sT0)}, {FX}
              s_lshl_b32 {s(sT1)}, {s(sCB)}, 9
              s_add_u32 {s(sT1)}, {s(sT1)}, {FC - 512 - 1024}
              v_lshlrev_b32 {v(vT0)}, 7, {v(vLANE)}
              v_add_u32 {v(vT1)}, {s(sT0)}, {v(vT0)}
              v_add_u32 {v(vT0)}, {s(sT1)}, {v(vT0)}
              s_mov_b64 vcc, 0xff
              v_cndmask_b32 {v(vT1)}, {v(vT0)}, {v(vT1)}, vcc
              s_mov_b32 {s(sINV)}, 0xfffff001
              s_mov_b32 {s(sINV+1)}, -1""")
        lanes_to(vT1)
    gate(G_X, setup_x, 32)
    stamp()
    A(f"""s_mul_i32 {s(sT1)}, {s(sTB)}, {56 * 1024}
          s_add_u32 {s(sT1)}, {s(sT1)}, {X1}
          s_lshl_b32 {s(sT3)}, {s(sW)}, 10
          s_lshl_b32 {s(sT2)}, {s(sR)}, 12
          s_add_u32 {s(sT2)}, {s(sT2)}, {s(sT3)}
          s_add_u32 {s(sT3)}, {s(sT3)}, {LA}""")
    for i in range(7):
        if i:
            A(f"""s_add_u32 {s(sT2)}, {s(sT2)}, 4096
                  s_sub_u32 {s(sT5)}, {s(sT2)}, 28672
                  s_cmp_ge_u32 {s(sT2)}, 28672
                  s_cselect_b32 {s(sT2)}, {s(sT5)}, {s(sT2)}""")
        A(f"s_add_u32 {s(sT5)}, {s(sT1)}, {s(sT2)}")
        for tt in range(2):
            dma(sT3, tt * 28672 + i * 4096, vL16, SW, (f"s_add_u32 {s(sT0)}, {s(sT5)}, {tt * 28672}", s(sT0)), ("x1", min(i // 2, 2)), sc=" sc1")
    vB, stt, cst, bring = 27, 32, 28, 40
    A(f"""v_and_b32 {v(vT0)}, 31, {v(vLANE)}
          v_lshrrev_b32 {v(vT1)}, 5, {v(vLANE)}
          v_mul_u32_u24 {v(vT1)}, {14 * 256}, {v(vT1)}
          v_lshl_add_u32 {v(vT2)}, {v(vT0)}, 3, {v(vT1)}
          s_mul_i32 {s(sT1)}, {s(sTB)}, {28 * 256}
          s_lshl_b32 {s(sT2)}, {s(sW)}, 8
          s_add_u32 {s(sT1)}, {s(sT1)}, {s(sT2)}
          s_add_u32 {s(sT1)}, {s(sT1)}, {ST}
          s_cmp_lt_u32 {s(sW)}, 2
          s_cselect_b32 {s(sT2)}, {s(sT1)}, {OOB}
          v_add_u32 {v(vB)}, {LA}, {v(vL16)}""")
    for i in range(4):
        A.vmem(f"buffer_load_dwordx2 {v(stt+2*i,2)}, {v(vT2)}, {s(SW,4)}, {s(sT1 if i < 3 else sT2)} offen offset:{i*1024} sc1", "st")
    A(f"""s_lshl_b32 {s(sT1)}, {s(sCB)}, 2
          s_add_u32 {s(sT1)}, {s(sT1)}, {s(sW)}
          s_lshl_b32 {s(sT1)}, {s(sT1)}, 9
          s_add_u32 {s(sT1)}, {s(sT1)}, {CS - 2048}
          v_lshlrev_b32 {v(vT3)}, 3, {v(vLANE)}""")
    A.vmem(f"buffer_load_dwordx2 {v(cst,2)}, {v(vT3)}, {s(SW,4)}, {s(sT1)} offen sc1", "cs")
    A.wait_vm(("x1", 0))
    arrive(C_XA)
    await_cnt(C_XA)
    acc4 = [64, 80, 96, 112]

    def bread(ks):
        for tt in range(2):
            A.ds(f"ds_read_b128 {v(bring + 8 * (ks % 3) + 4 * tt, 4)}, {v(vB)} offset:{(tt * 28 + ks) * 1024}", ("b", ks))

    lag = int(OPT.get("lag", 7))
    plan, rstep = {}, {}
    nxt = npre
    for ks in range(28):
        while nxt < 44 and len(plan.get(ks, [])) < 2:
            ready = nxt - 16 < ks and (nxt - NRING < npre or rstep[nxt - NRING] + 1 + lag <= ks)
            if not (ready or (nxt < 28 and nxt - 2 <= ks)):
                break
            plan.setdefault(ks, []).append(nxt)
            rstep[nxt] = ks
            nxt += 1
    assert nxt >= 28 and all(n - 16 < ks and (n >= 28 or n >= ks + 1) for ks in plan for n in plan[ks]), plan
    pend = []
    if "p4" in OPT:
        stamp()
    bread(0)
    bread(1)
    for ks in range(28):
        if ks == 2:
            A.wait_vm(("x1", 1))
            arrive(C_XA)
        if ks == 5:
            await_cnt(C_XA, 8)
        if ks == 8:
            A.wait_vm(["cs", "st", ("x1", 2)])
            A(f"""v_add_f32 {v(stt)}, {v(stt)}, {v(stt+2)}
                  v_add_f32 {v(stt+1)}, {v(stt+1)}, {v(stt+3)}
                  v_add_f32 {v(stt+4)}, {v(stt+4)}, {v(stt+6)}
                  v_add_f32 {v(stt+5)}, {v(stt+5)}, {v(stt+7)}
                  s_lshl_b32 {s(sT0)}, {s(sW)}, 9
                  s_add_u32 {s(sT0)}, {s(sT0)}, {L_STAT}
                  v_add_f32 {v(stt)}, {v(stt)}, {v(stt+4)}
                  v_add_f32 {v(stt+1)}, {v(stt+1)}, {v(stt+5)}
                  v_lshl_add_u32 {v(vT2)}, {v(vLANE)}, 3, {s(sT0)}""")
            A.ds(f"ds_write_b64 {v(vT2)}, {v(stt,2)}", "sw")
            arrive(C_XB)
        if ks == 13:
            await_cnt(C_XB)
            A(f"v_lshlrev_b32 {v(vT2)}, 3, {v(vLANE)}\nv_add_u32 {v(vT2)}, {L_STAT}, {v(vT2)}")
            for q in range(4):
                A.ds(f"ds_read_b64 {v(stt+2*q,2)}, {v(vT2)} offset:{q*512}", "sr")
        A.wait_lg([("b", ks), ("s", ks)])
        acts = [lambda: bread(ks + 2)] if ks + 2 < 28 else []
        rd = [f for n in plan.get(ks, []) for f in sread_p(n)]
        rf = [f for n in pend for f in refill_p(n + NRING)]
        while rd or rf:
            acts += rf[:1] + rd[:1]
            rf, rd = rf[1:], rd[1:]
        pend = plan.get(ks, [])
        gaps([lambda t=t: mfma(v(acc4[t], 16), a(sreg(ks, t >> 1), 4), v(bring + 8 * (ks % 3) + 4 * (t & 1), 4), 0 if ks == 0 else None)
              for t in range(4)], acts)
        if "p4" in OPT and ks in (3, 6, 12, 15, 21):
            stamp()
        if ks == 16:
            A.wait_lg("sr")
            A(f"""v_add_f32 {v(stt)}, {v(stt)}, {v(stt+2)}
                  v_add_f32 {v(stt+1)}, {v(stt+1)}, {v(stt+3)}
                  v_add_f32 {v(stt+4)}, {v(stt+4)}, {v(stt+6)}
                  v_add_f32 {v(stt+5)}, {v(stt+5)}, {v(stt+7)}
                  v_add_f32 {v(stt)}, {v(stt)}, {v(stt+4)}
                  v_add_f32 {v(stt+1)}, {v(stt+1)}, {v(stt+5)}
                  v_add_f32 {v(cst)}, {v(cst)}, {v(cst+1)}""")
        if ks == 17:
            A(f"""v_mul_f32 {v(stt)}, {f32(-1/448)}, {v(stt)}
                  v_mul_f32 {v(stt+1)}, {f32(1/448)}, {v(stt+1)}
                  v_mul_f32 {v(stt+2)}, {v(stt)}, {v(stt)}
                  v_sub_f32 {v(stt+1)}, {v(stt+1)}, {v(stt+2)}
                  v_max_f32 {v(stt+1)}, 0, {v(stt+1)}
                  v_add_f32 {v(stt+1)}, {f32(EPS)}, {v(stt+1)}""")
        if ks == 18:
            halves(stt, stt + 2)
            halves(stt + 1, stt + 3)
            halves(cst, cst + 1)
    arrive(C_P4)
    vAE, vBE, gt, gpk = 40, 48, 56, 40
    for nt in range(2):
        c = cst + nt
        A(f"""v_cvt_pk_bf16_f32 {v(vT0)}, {v(c)}, {v(c)}
              v_and_b32 {v(vT1)}, 0xffff0000, {v(vT0)}
              v_sub_f32 {v(vT1)}, {v(c)}, {v(vT1)}
              v_cvt_pk_bf16_f32 {v(vAE+4*nt)}, {v(c)}, {v(vT1)}
              v_and_b32 {v(vAE+4*nt+1)}, 0xffff, {v(vT0)}
              v_mov_b32 {v(vAE+4*nt+2)}, 0
              v_mov_b32 {v(vAE+4*nt+3)}, 0""")
    for tt in range(2):
        m, b = stt + 2 * tt, vBE + 4 * tt
        A(f"""v_cvt_pk_bf16_f32 {v(vT0)}, {v(m)}, {v(m)}
              v_and_b32 {v(vT1)}, 0xffff0000, {v(vT0)}
              v_sub_f32 {v(vT1)}, {v(m)}, {v(vT1)}
              v_cvt_pk_bf16_f32 {v(vT1)}, {v(vT1)}, 0
              v_cndmask_b32 {v(b)}, {v(vT0)}, 0, {s(sHI,2)}
              v_cndmask_b32 {v(b+1)}, {v(vT1)}, 0, {s(sHI,2)}
              v_mov_b32 {v(b+2)}, 0
              v_mov_b32 {v(b+3)}, 0""")
    A("s_nop 0")
    for t in range(4):
        mfma(v(acc4[t], 16), v(vAE + 4 * (t >> 1), 4), v(vBE + 4 * (t & 1), 4))
    kk = [60, 36]
    for tt in range(2):
        e, k = stt + 2 * tt + 1, kk[tt]
        A(f"""v_rsq_f32 {v(vT0)}, {v(e)}
              s_nop 0
              v_mul_f32 {v(k+2)}, {v(e)}, {v(vT0)}
              v_mul_f32 {v(k)}, {f32(GC1)}, {v(vT0)}
              v_mul_f32 {v(k+1)}, {v(vT0)}, {v(vT0)}
              v_mul_f32 {v(k+1)}, {v(k+1)}, {v(vT0)}
              v_mul_f32 {v(k+1)}, {f32(GC2)}, {v(k+1)}""")
    stamp()
    ops = []
    for t in range(4):
        tt, b = t & 1, t >> 1
        for i in range(8):
            def pair(i=i, t=t, tt=tt):
                for op in gelu_ops(acc4[t] + 2 * i, gt, gpk + 8 * (t & 1) + i, kk[tt], kk[tt] + 1, kk[tt] + 2):
                    A(op)
            ops.append(pair)
            if i in (3, 7):
                def st(c=i >> 2, t=t, tt=tt, b=b):
                    A(f"s_add_u32 {s(sT0)}, {s(sK)}, {(tt * 112 + b * 2) * 1024}")
                    hstore([f"buffer_store_dwordx4 {v(gpk+8*(t&1)+4*c,4)}, {v(vL16)}, {s(SW,4)}, {s(sT0)} offen offset:{c*1024}"], ("Hst", b), hnear)
                ops.append(st)
        if t == 2:
            ops.append(lambda: signal(N_G, own_slot(FG), ("Hst", 0), near=hnear))
    fill = [f for n in pend for f in refill_p(n + NRING)]
    for n in range(nxt, 44):
        fill.append(lambda n=n: sread(n))
        if n > nxt:
            fill += refill_p(n - 1 + NRING)
    weave(A, ops, fill)
    if nxt < 44:
        refill(43 + NRING)
    vHH = 26
    A(f"""s_mul_i32 {s(sT0)}, {s(sGT)}, 4
          s_add_u32 {s(sT0)}, {s(sT0)}, {s(sW)}
          s_mul_i32 {s(sT0)}, {s(sT0)}, {28 * 1024}
          v_add_u32 {v(vHH)}, {s(sT0)}, {v(vL16)}
          s_xor_b32 {s(sT0)}, {s(sGT)}, 1
          s_mul_i32 {s(sT0)}, {s(sT0)}, 4
          s_add_u32 {s(sT0)}, {s(sT0)}, {s(sW)}
          s_mul_i32 {s(sT0)}, {s(sT0)}, {28 * 1024}
          v_add_u32 {v(vHH+1)}, {s(sT0)}, {v(vL16)}""")
    acc6 = [64, 80, 96, 112]
    for i in range(8):
        A(f"v_lshlrev_b32 {v(64+2*i)}, 16, {v(vX1P+i)}\nv_and_b32 {v(65+2*i)}, 0xffff0000, {v(vX1P+i)}")
    stamp()
    cut("w4")

    def setup_tb(base, inv):
        def f():
            A(f"""s_lshl_b32 {s(sT0)}, {s(sTB)}, 10
                  s_add_u32 {s(sT0)}, {s(sT0)}, {base}
                  v_lshlrev_b32 {v(vT1)}, 7, {v(vLANE)}
                  v_add_u32 {v(vT1)}, {s(sT0)}, {v(vT1)}
                  s_mov_b32 {s(sINV)}, {inv}
                  s_mov_b32 {s(sINV+1)}, -1""")
            lanes_to(vT1)
        return f
    peek_issue(setup_tb(FG, 0xffffff01), 34, 36)
    vO, vOUT = 28, 30
    A(f"""s_lshl_b32 {s(sT0)}, {s(sGT)}, 2
          s_add_u32 {s(sT0)}, {s(sT0)}, {s(sW)}
          s_lshl_b32 {s(sT0)}, {s(sT0)}, 13
          v_add_u32 {v(vO)}, {s(sT0)}, {v(vL16)}
          v_xor_b32 {v(vO+1)}, 0x8000, {v(vO)}
          v_and_b32 {v(32)}, 31, {v(vLANE)}
          s_lshl_b32 {s(sT0)}, {s(sGT)}, 5
          v_add_u32 {v(32)}, {s(sT0)}, {v(32)}
          v_mul_u32_u24 {v(32)}, 896, {v(32)}
          v_lshrrev_b32 {v(33)}, 5, {v(vLANE)}
          v_lshl_add_u32 {v(32)}, {v(33)}, 4, {v(32)}
          s_lshl_b32 {s(sT0)}, {s(sT4)}, 6
          v_add_u32 {v(vOUT)}, {s(sT0)}, {v(32)}""")
    signal(N_G2, own_slot(FG2), ("Hst", 1), near=hnear)
    peek_check(34, 36)
    stamp()
    hslots = [16, 20, 32, 36, 40, 44, 48, 52, 56, 60]
    NH = int(OPT.get("nh", 10))
    hsc = "" if "hplain" in OPT else " sc1"

    def bload(n):
        p, sl = n >> 1, n & 1
        if n < 56:
            if p % 2 == 0 and sl == 0:
                rot7(sRH, (p % 14) // 2, 4096, None)
                A(f"s_add_u32 {s(sV)}, {s(sRH)}, {HH}")
            addr, imm = vHH + sl, (2 * (p // 14) + p % 2) * 1024
        else:
            if p % 4 == 0 and sl == 0:
                A(f"s_mov_b32 {s(sV)}, {OB + 1024 * (p - 28)}")
            addr, imm = vO + sl, (p & 3) * 1024
        A.vmem(f"buffer_load_dwordx4 {v(hslots[n % NH], 4)}, {v(addr)}, {s(SW,4)}, {s(sV)} offen offset:{imm}{hsc}", ("H", n))

    def slotoffs(first):
        return [(0, i * 1024) if i < 14 else (1, (i - 14) * 1024) for i in range(first, first + 12)]

    vRW2 = [24, 25]
    for n in range(NH):
        bload(n)
    if OPT.get("tail", "ring") == "ring":
        vG, vA2 = 64, [24, 25, 26, 27, 2, 3, 31, 29 if NH == 10 else 63]

        def partner(sl):
            A(f"""s_xor_b32 {s(sT0)}, {s(sW)}, {sl}
                  s_mul_i32 {s(sT1)}, {s(sT0)}, 14336
                  s_mul_i32 {s(sT0)}, {s(sT0)}, 11264
                  s_add_u32 {s(sT0)}, {s(sT0)}, {LQ}
                  v_add_u32 {v(vA2[2*sl])}, {s(sT1)}, {v(vL16)}
                  v_add_u32 {v(vA2[2*sl+1])}, {s(sT0)}, {v(vL16)}""")
        side = {28: [], 29: [], 30: [], 31: [], 32: [], 33: [], 34: [], 35: []}
        for i in range(12):
            side[28 + (i + 2) // 5 + (1 if i < 0 else 0)].append(
                lambda i=i: A.ds(f"ds_write_b128 {v(24)}, {v(80 + 4 * i, 4)} offset:{i * 1024}", "red"))
        side[30].append(lambda: arrive(C_R2))
        side[32].append(lambda: await_cnt(C_R2))
        for sl in (1, 2, 3):
            side[32].append(lambda sl=sl: [A.ds(f"ds_read_b128 {v(64 + 16 * sl + 4 * q, 4)}, {v(vA2[2*sl])} offset:{((sl - 1) * 4 + q) * 1024}", ("rd", sl)) for q in range(4)])
        valu = []
        for sl in (1, 2, 3):
            valu.append(lambda sl=sl: A.wait_lg(("rd", sl)))
            valu += [lambda sl=sl, i=i: A(f"v_add_f32 {v(vG+i)}, {v(vG+i)}, {v(64 + 16 * sl + i)}") for i in range(16)]
        for i in range(8):
            y = vG + 2 * i
            valu += [lambda t=t: A(t) for t in f"""v_mul_f32 {v(80)}, {f32(-LOG2E)}, {v(y)}
                  v_mul_f32 {v(81)}, {f32(-LOG2E)}, {v(y+1)}
                  v_exp_f32 {v(80)}, {v(80)}
                  v_exp_f32 {v(81)}, {v(81)}
                  v_add_f32 {v(80)}, 1.0, {v(80)}
                  v_add_f32 {v(81)}, 1.0, {v(81)}
                  v_rcp_f32 {v(80)}, {v(80)}
                  v_rcp_f32 {v(81)}, {v(81)}
                  v_mul_f32 {v(y)}, {v(y)}, {v(80)}
                  v_mul_f32 {v(y+1)}, {v(y+1)}, {v(81)}""".split("\n")]
        nin = int(OPT.get("nin", 90))
        for n, f in enumerate(valu[:nin]):
            side[33 + (3 * n) // nin].append(f)
        for j in range(36):
            A.wait_vm(("H", 2 * j + 1))
            A.wait_lg(("s", 28 + j))
            if 2 * j + NH in (28, 56):
                peek_check()

            def mm(sl):
                d = v(acc6[sl], 16) if j < 28 else a(16 * sl, 16)
                mfma(d, a(sreg(28 + j, sl >> 1), 4), v(hslots[(2 * j + (sl & 1)) % NH], 4), 0 if (j == 0 and sl) or j == 28 else None)
            rd = sread_p(43 + j) if 1 <= j <= 20 else [None, None]
            rf = (refill_p(43 + j - 1 + NRING) if j >= 2 else []) or [None, None]
            ld = [(lambda n=n: bload(n)) if n < 72 else None for n in (2 * j + NH, 2 * j + NH + 1)]
            ex = side.get(j, [])
            lo = 2 if j == 28 else 0
            cut_ = [0] * (lo + 1) + [-(-len(ex) * (g + 1) // (4 - lo)) for g in range(4 - lo)]
            for g, (sl, todo) in enumerate(((0, [rf[0]]), (2, [ld[0], rd[0]]), (1, [rf[1]]), (3, [ld[1], rd[1]]))):
                mm(sl)
                if j == 28 and g == 1:
                    A("s_nop 6")
                for f in todo + ex[cut_[g]:cut_[g + 1]]:
                    if f:
                        f()
            if 2 * j + NH == 22:
                peek_issue(setup_tb(FG2, 0xffffff01))
            if 2 * j + NH == 50:
                peek_issue(setup_tb(FO, 0xffffff00))
            if j == 26:
                A.drain_lg()
                A(f"v_add_u32 {v(24)}, {s(sPA)}, {v(vL16)}\nv_add_u32 {v(25)}, {s(sPB)}, {v(vL16)}")
                partner(1)
                partner(2)
            if j == 27:
                stamp()
            if j == 31:
                partner(3)
        stamp()
        left = valu[nin:]
        for f in left[:12]:
            f()
        reduce_out([("a", 16), ("a", 32), ("a", 48)], C_R3, [24, 25], slotoffs(12), left[12:])
        for i in range(16):
            A(f"v_accvgpr_read_b32 {v(32+i)}, {a(i)}")
        stamp()
        reduce_in(32, 80, C_R3, lambda sl: vA2[2 * sl:2 * sl + 2], slotoffs(12))
        vS = 32
    else:
        vA2 = [24, 25, 26, 27, 2, 3, 31, 63]
        assert NH <= 8

        def partner(sl):
            A(f"""s_xor_b32 {s(sT0)}, {s(sW)}, {sl}
                  s_mul_i32 {s(sT1)}, {s(sT0)}, 14336
                  s_mul_i32 {s(sT0)}, {s(sT0)}, 11264
                  s_add_u32 {s(sT0)}, {s(sT0)}, {LQ}
                  v_add_u32 {v(vA2[2*sl])}, {s(sT1)}, {v(vL16)}
                  v_add_u32 {v(vA2[2*sl+1])}, {s(sT0)}, {v(vL16)}""")
        for j in range(28):
            A.wait_vm(("H", 2 * j + 1))
            A.wait_lg(("s", 28 + j))
            if 2 * j + NH == 28:
                peek_check()
            rd = sread_p(43 + j) if 1 <= j <= 20 else [None, None]
            rf = (refill_p(43 + j - 1 + NRING) if j >= 2 else []) or [None, None]
            ld = [(lambda n=n: bload(n)) if n < 56 else None for n in (2 * j + NH, 2 * j + NH + 1)]
            for sl, todo in ((0, [rf[0]]), (2, [ld[0], rd[0]]), (1, [rf[1]]), (3, [ld[1], rd[1]])):
                mfma(v(acc6[sl], 16), a(sreg(28 + j, sl >> 1), 4), v(hslots[(2 * j + (sl & 1)) % NH], 4), 0 if j == 0 and sl else None)
                for f in todo:
                    if f:
                        f()
            if 2 * j + NH == 22:
                peek_issue(setup_tb(FG2, 0xffffff01))
            if j == 25:
                A.drain_lg()
                peek_issue(setup_tb(FO, 0xffffff00), 60, 62)
                A(f"s_mov_b32 {s(sRH)}, 0\ns_mov_b32 {s(sV)}, {OB}\ns_mov_b32 {s(sRG)}, {OB + 4096}")
            if j == 26:
                A(f"v_add_u32 {v(24)}, {s(sPA)}, {v(vL16)}\nv_add_u32 {v(25)}, {s(sPB)}, {v(vL16)}")
                for sl in (1, 2, 3):
                    partner(sl)
        stamp()

        def oload(kq):
            for sl in range(2):
                A.vmem(f"buffer_load_dwordx4 {a(8 * kq + 4 * sl, 4)}, {v(vO+sl)}, {s(SW,4)}, {s(sV if kq < 4 else sRG)} offen offset:{(kq & 3) * 1024} sc1", ("o", kq))

        def try_o(last):
            done, again = A.newlabel("od"), A.newlabel("oa")
            A(f"s_cmp_lg_u32 {s(sRH)}, 0\ns_cbranch_scc1 {done}")
            A.vm = ["peek"]
            if last:
                peek_check(60, 62)
            else:
                A(f"""s_waitcnt vmcnt(0)
                      v_cmp_eq_u64 vcc, {s(sN,2)}, {v(60,2)}
                      s_or_b64 vcc, vcc, {s(sINV,2)}
                      s_cmp_eq_u64 vcc, -1
                      s_cbranch_scc0 {again}
                      s_mov_b32 {s(sRH)}, 1""")
            A.vm = []
            for kq in range(4):
                oload(kq)
            if not last:
                A(f"s_branch {done}")
                A.label(again)
                A(f"buffer_load_dwordx2 {v(60,2)}, {v(62)}, {s(SW,4)}, 0 offen sc1")
            A.label(done)

        try_o(False)
        A("s_nop 5")
        reduce_out([("v", 80), ("v", 96), ("v", 112)], C_R2, vA2[:2], slotoffs(0))
        try_o(False)
        vG = 32
        reduce_in(64, 80, C_R2, lambda sl: vA2[2 * sl:2 * sl + 2], slotoffs(0))
        for i in range(8):
            if i in (0, 4):
                try_o(False)
            y = 64 + 2 * i
            A(f"""v_mul_f32 {v(80)}, {f32(-LOG2E)}, {v(y)}
                  v_mul_f32 {v(81)}, {f32(-LOG2E)}, {v(y+1)}
                  v_exp_f32 {v(80)}, {v(80)}
                  v_exp_f32 {v(81)}, {v(81)}
                  v_add_f32 {v(80)}, 1.0, {v(80)}
                  v_add_f32 {v(81)}, 1.0, {v(81)}
                  v_rcp_f32 {v(80)}, {v(80)}
                  v_rcp_f32 {v(81)}, {v(81)}
                  v_mul_f32 {v(vG+2*i)}, {v(y)}, {v(80)}
                  v_mul_f32 {v(vG+2*i+1)}, {v(y+1)}, {v(81)}""")
        try_o(True)
        stamp()
        for kq in range(8):
            A.wait_vm(("o", kq))
            for n, sl in enumerate((1, 2, 3, 0)):
                mfma(v(acc6[sl], 16), a(sreg(56 + kq, sl >> 1), 4), a(8 * kq + 4 * (sl & 1), 4), 0 if kq == 0 else None)
                if n == 0 and kq < 4:
                    oload(kq + 4)
        stamp()
        A("s_nop 7\ns_nop 1")
        reduce_out([("v", 80), ("v", 96), ("v", 112)], C_R3, vA2[:2], slotoffs(12))
        reduce_in(64, 80, C_R3, lambda sl: vA2[2 * sl:2 * sl + 2], slotoffs(12))
        vS = 64
    for i in range(8):
        y = vS + 2 * i
        A(f"""v_lshlrev_b32 {v(80)}, 16, {v(vXD+i)}
              v_and_b32 {v(81)}, 0xffff0000, {v(vXD+i)}
              v_fma_f32 {v(80)}, {v(y)}, {v(vG+2*i)}, {v(80)}
              v_fma_f32 {v(81)}, {v(y+1)}, {v(vG+2*i+1)}, {v(81)}
              v_cvt_pk_bf16_f32 {v(84+i)}, {v(80)}, {v(81)}""")
    A("s_nop 1")
    for p in range(2):
        A(f"v_permlane32_swap_b32 {v(84+4*p)}, {v(86+4*p)}\nv_permlane32_swap_b32 {v(85+4*p)}, {v(87+4*p)}")
    for p in range(2):
        A.vmem(f"buffer_store_dwordx4 {v(84+4*p,4)}, {v(vOUT)}, {s(SOUT,4)}, 0 offen offset:{32*p}", "out")
    stamp()
    A.label("L_pad")
    A(f"""s_memrealtime s[94:95]
          s_waitcnt lgkmcnt(0)
          s_sub_u32 s94, s94, s98
          s_cmp_lt_u32 s94, 4000
          s_cbranch_scc1 L_pad""")
    A("s_endpgm")

    for blk in late:
        A.lg = []
        blk()
    A.label("L_kv")
    A.vm = list(vm_kv)
    A.lg = []
    A(f"""v_mul_u32_u24 {v(vT0)}, 3584, {v(vC8)}
          s_min_u32 {s(sT2)}, {s(sTB)}, 27
          s_lshl_b32 {s(sT0)}, {s(sT2)}, 7
          s_mul_i32 {s(sT1)}, {s(sW)}, {112 * 3584}
          s_add_u32 {s(sT0)}, {s(sT0)}, {s(sT1)}
          v_add3_u32 {v(vW3)}, {v(vT0)}, {v(vC7)}, {s(sT0)}""")
    for i in range(16):
        A(f"v_sub_f32 {v(acc+i)}, {v(acc+i)}, {v(cs+i)}\nv_mul_f32 {v(acc+i)}, {v(acc+i)}, {v(vR)}")
    A(f"s_mov_b64 exec, {s(sHI,2)}")
    for i in range(12, 16):
        A(f"v_mov_b32 {v(acc+i)}, 0")
    A("s_mov_b64 exec, -1")
    for i in range(8):
        A(f"v_cvt_pk_bf16_f32 {v(pk+i)}, {v(acc+2*i)}, {v(acc+2*i+1)}")
    A(f"""s_lshl_b32 {s(sT4)}, {s(sGT)}, 12
          s_cmp_eq_u32 {s(sP)}, 1
          s_cbranch_scc1 L_v
          s_mov_b64 exec, {s(sHI,2)}
          v_mov_b32 {v(pk+6)}, {ONES}
          v_mov_b32 {v(pk+7)}, 0x3f80
          s_mov_b64 exec, -1
          buffer_store_dwordx4 {v(pk,4)}, {v(vL16)}, {s(SW,4)}, {s(sT4)} offen sc1
          buffer_store_dwordx4 {v(pk+4,4)}, {v(vL16)}, {s(SW,4)}, {s(sT4)} offen offset:1024 sc1
          v_mul_f32 {v(72)}, {v(acc)}, {v(acc)}""")
    for i in range(1, 16):
        A(f"v_fma_f32 {v(72)}, {v(acc+i)}, {v(acc+i)}, {v(72)}")
    halves(72, 73)
    A(f"""v_add_f32 {v(72)}, {v(72)}, {v(73)}
          v_mov_b32 {v(73)}, {L_KM}
          ds_max_u32 {v(73)}, {v(72)}
          s_branch L_kvdone""")
    A.label("L_v")
    A(f"""s_mov_b64 exec, {s(sHI,2)}
          v_mov_b32 {v(pk+6)}, 0x3f80
          s_mov_b64 exec, -1
          s_lshl_b32 {s(sT0)}, {s(sTT)}, 12
          s_add_u32 {s(sT0)}, {s(sT0)}, {L_VT}
          v_and_b32 {v(72)}, 31, {v(vLANE)}
          v_bfe_u32 {v(74)}, {v(72)}, 1, 1
          v_lshlrev_b32 {v(74)}, 6, {v(74)}
          v_lshrrev_b32 {v(73)}, 5, {v(vLANE)}
          v_lshl_add_u32 {v(73)}, {v(73)}, 3, {v(74)}
          v_lshl_add_u32 {v(72)}, {v(72)}, 7, {v(73)}
          v_add_u32 {v(72)}, {s(sT0)}, {v(72)}
          v_add3_u32 {v(73)}, {v(vTRD)}, {v(103)}, {s(sT0)}""")
    for g in range(4):
        A.ds(f"ds_write_b64 {v(72)}, {v(pk+2*g,2)} offset:{16*g}", "vt")
    for c in range(2):
        tr(("v", 76 + 4 * c), 73, c * 2048, 1024, "vr")
    A.drain_lg()
    A(f"buffer_store_dwordx4 {v(76,4)}, {v(vL16)}, {s(SW,4)}, {s(sT4)} offen offset:2048 sc1")
    A(f"buffer_store_dwordx4 {v(80,4)}, {v(vL16)}, {s(SW,4)}, {s(sT4)} offen offset:3072 sc1")
    A.label("L_kvdone")
    A.vm += ["kv", "kv"]
    nonce_take(30)
    signal(N_K, f"s_lshl_b32 {s(sT0)}, {s(sTB)}, 7\ns_add_u32 {s(sT0)}, {s(sT0)}, {FK}", "kv", payload=L_KM)
    stamps["n"] = 2
    stamp()
    await_cnt(C_PA, 8)
    for j in range(7):
        image(sPA, j * 2048, vW3, SQ, lambda e, j=j: f"s_mov_b32 {s(sT0)}, {j * 16 * 3584 + e}", 3584, "W3")
    A(f"v_add3_u32 {v(72)}, {v(vTRD)}, {v(103)}, {s(sPA)}\nv_xor_b32 {v(73)}, 64, {v(72)}")
    A.wait_vm("W3")
    for i in range(14):
        tr(("a", 4 * i), 72 + (i & 1), (i >> 1) * 2048, 1024, ("c", i))
    for i in range(14):
        A.wait_lg(("c", i))
        mfma(v(32 + 16 * (i & 1), 16), v(ones, 4), a(4 * i, 4), 0 if i < 2 else None)
    A(f"""s_lshl_b32 {s(sT0)}, {s(sW)}, 8
          s_add_u32 {s(sT0)}, {s(sT0)}, {LA + 32768}
          v_lshlrev_b32 {v(73)}, 2, {v(vLANE)}
          v_add_u32 {v(74)}, {s(sT0)}, {v(73)}
          s_nop 7
          v_cndmask_b32 {v(72)}, {v(32)}, {v(48)}, {s(sHI,2)}
          ds_write_b32 {v(74)}, {v(72)}""")
    arrive(C_R1)
    A(f"s_cmp_gt_u32 {s(sTB)}, 27\ns_cbranch_scc1 L_kvend\ns_cmp_lg_u32 {s(sW)}, 0\ns_cbranch_scc1 L_kvend")
    await_cnt(C_R1)
    A(f"""ds_read_b32 {v(75)}, {v(74)} offset:256
          ds_read_b32 {v(76)}, {v(74)} offset:512
          ds_read_b32 {v(77)}, {v(74)} offset:768
          s_lshl_b32 {s(sT1)}, {s(sTB)}, 9
          s_add_u32 {s(sT1)}, {s(sT1)}, {CS}
          v_lshlrev_b32 {v(74)}, 3, {v(vLANE)}
          s_waitcnt lgkmcnt(0)
          v_add_f32 {v(72)}, {v(72)}, {v(75)}
          v_add_f32 {v(73)}, {v(76)}, {v(77)}
          buffer_store_dwordx2 {v(72,2)}, {v(74)}, {s(SW,4)}, {s(sT1)} offen sc1
          s_lshl_b32 {s(sT0)}, {s(sTB)}, 7
          s_add_u32 {s(sT0)}, {s(sT0)}, {FC}
          v_mov_b32 {v(vT0)}, {s(sN)}
          v_mov_b32 {v(vT1)}, {s(sN+1)}
          v_mov_b32 {v(vT3)}, 0
          s_waitcnt vmcnt(0)
          s_mov_b64 exec, 1
          buffer_store_dwordx2 {v(vT0,2)}, {v(vT3)}, {s(SW,4)}, {s(sT0)} offen sc1
          s_mov_b64 exec, -1""")
    A.label("L_kvend")

    gate(G_H, setup_tb(FH, 0xffffff01), 32, payload=lambda: (A(f"s_mov_b32 {s(sT2)}, 0xfe"), note_die(34)))
    arrive(C_P4)
    read_mode()
    A(f"""s_lshl_b32 {s(sT0)}, {s(sTB)}, 2
          s_add_u32 {s(sT0)}, {s(sT0)}, {s(sW)}
          s_mul_i32 {s(sT1)}, {s(sT0)}, 12544
          s_mul_i32 {s(sT2)}, {s(sT0)}, 3136
          v_lshlrev_b32 {v(74)}, 7, {v(vLANE)}""")
    if "notouch" not in OPT:
        A.vmem(f"buffer_load_dword {v(84)}, {v(74)}, {s(S4,4)}, {s(sT1)} offen", "t")
        A(f"s_add_u32 {s(sT1)}, {s(sT1)}, 8192\ns_bfm_b64 exec, 34, 0")
        A.vmem(f"buffer_load_dword {v(85)}, {v(74)}, {s(S4,4)}, {s(sT1)} offen", "t")
        A("s_bfm_b64 exec, 25, 0")
        A.vmem(f"buffer_load_dword {v(86)}, {v(74)}, {s(SO,4)}, {s(sT2)} offen", "t")
        A("s_mov_b64 exec, -1")
    A(f"""s_setprio 0
          s_cmp_eq_u32 {s(sLOC)}, 0
          s_cbranch_scc1 L_kvquit
          v_lshlrev_b32 {v(36)}, 7, {v(vLANE)}
          v_and_b32 {v(37)}, 7, {v(vLANE)}
          v_lshrrev_b32 {v(38)}, 3, {v(vLANE)}
          v_lshlrev_b32 {v(38)}, 15, {v(38)}
          v_lshl_add_u32 {v(37)}, {v(37)}, 7, {v(38)}
          s_lshl_b32 {s(sT0)}, {s(sTB)}, 10
          s_add_u32 {s(sT0)}, {s(sT0)}, {FX}
          s_lshl_b32 {s(sT3)}, {s(sW)}, 13""")
    A.vm = []
    warm(0, 37, sT0, "0xffffffff")
    jobs = ([(X1, 56 * 1024, 2), (ST, 7168, 1)] if xnear else []) + ([(HH, 224 * 1024, 7)] if hnear else []) + [(OB, 64 * 1024, 2)]
    n = 1
    for base, size, cnt in jobs:
        A(f"""s_mul_i32 {s(sT1)}, {s(sTB)}, {size}
              s_add_u32 {s(sT1)}, {s(sT1)}, {base}
              s_add_u32 {s(sT2)}, {s(sT1)}, {size}
              s_add_u32 {s(sT1)}, {s(sT1)}, {s(sT3)}""")
        for i in range(cnt):
            A(f"""s_cmp_lt_u32 {s(sT1)}, {s(sT2)}
                  s_cselect_b32 {s(sT0)}, {s(sT1)}, {OOB}
                  s_add_u32 {s(sT1)}, {s(sT1)}, 32768""")
            warm(n, 36, sT0, "0xffffffffffffff" if size == 7168 else -1)
            A(f"s_waitcnt vmcnt({OPT.get('wdepth', 0)})")
            n += 1
    A.label("L_kvquit")
    stamp()
    dump_stamps()
    A("s_endpgm")


def att(vm_entry):
    A.label("L_att")
    A.vm = list(vm_entry)
    A.lg = []
    stamps["n"] = 1
    acc, cs, ring, ones = 32, 48, 64, 96
    vM, vR = 8, 9
    A(f"""s_mul_i32 {s(sT0)}, {s(sCB)}, 112
          s_lshl_b32 {s(sT1)}, {s(sW)}, 3
          v_add_u32 {v(vT0)}, {s(sT1)}, {v(vC8)}
          v_mul_u32_u24 {v(vT0)}, 896, {v(vT0)}
          v_add3_u32 {v(vWQ)}, {v(vT0)}, {v(vC7)}, {s(sT0)}
          s_lshl_b32 {s(sPA)}, {s(sW)}, 10
          s_mul_i32 {s(sT0)}, {s(sP)}, 56
          v_add_u32 {v(103)}, {s(sT0)}, {v(103)}
          v_xor_b32 {v(103)}, {v(103)}, {v(102)}
          v_add_u32 {v(vT0)}, {v(vTRN)}, {v(103)}
          v_add_u32 {v(10)}, {LQ}, {v(vT0)}
          v_add_u32 {v(11)}, {LA}, {v(vT0)}""")
    nq0 = int(OPT.get("nq0", 11))
    for n in range(nq0):
        dma(sPA, LQ + n * 4096, vWQ, SQ, (f"s_mov_b32 {s(sT0)}, {n * 32 * 896}", s(sT0)), "WQ")
    early_stamp(6)
    A.wait_vm("X")
    barrier()
    early_dump()
    stamp()

    def first():
        for n in range(nq0, 14):
            dma(sPA, LQ + n * 4096 if n < 11 else LA + (n - 11) * 4096, vWQ, SQ, (f"s_mov_b32 {s(sT0)}, {n * 32 * 896}", s(sT0)), "WQ")
        nonce_issue(12)
        touch("p1")
    stat_part(lambda: None)
    barrier()
    first()
    stat_read()
    for ks in range(28):
        A.ds(f"ds_read_b128 {a(4*ks,4)}, {v(vXF + (ks & 3))} offset:{(ks >> 2) * 8192}", ("x", ks))
    stat_fin(vM, vR)
    A(f"v_add_f32 {v(vR)}, {f32(EPS)}, {v(vR)}\nv_rsq_f32 {v(vR)}, {v(vR)}")
    A.drain_lg()
    arrive(C_PA)
    A(f"v_mul_f32 {v(vR)}, {f32(QSCALE)}, {v(vR)}")
    A.wait_vm(["WQ", "nonce"])
    arrive(C_WQ)
    nonce_take(12)
    A(f"""s_lshl_b32 {s(sT0)}, {s(sGT)}, 4
          s_lshl_b32 {s(sT1)}, {s(sCB)}, 1
          s_add_u32 {s(sT0)}, {s(sT0)}, {s(sT1)}
          s_add_u32 {s(sT0)}, {s(sT0)}, {s(sP)}
          s_lshl_b32 {s(sT0)}, {s(sT0)}, 11
          s_add_u32 {s(sB4)}, {s(sT0)}, {OB}
""")
    await_cnt(C_WQ)
    stamp()

    def wq(ks):
        tr(("v", ring + 4 * (ks % 8)), 10 if ks < 22 else 11, (ks % 22) * 2048, 512, ("w", ks))
    vG, vF = 12, 104
    aO, aQ, aK, vV = 0, 48, 80, 72
    O0, S, P = 16, [32, 48], 64

    def setup_k():
        A(f"""v_lshlrev_b32 {v(vT1)}, 7, {v(vLANE)}
              v_add_u32 {v(vT1)}, {FK}, {v(vT1)}
              s_mov_b64 {s(sINV,2)}, {s(sHI,2)}""")
        lanes_to(vT1)

    misc = f"""s_lshl_b32 {s(sT0)}, {s(sW)}, 11
          s_add_u32 {s(sT0)}, {s(sT0)}, {L_QG}
          v_add_u32 {v(vG)}, {s(sT0)}, {v(vL16)}
          s_lshl_b32 {s(sT0)}, {s(sW)}, 8
          s_add_u32 {s(sT0)}, {s(sT0)}, {L_QN}
          v_lshlrev_b32 {v(14)}, 2, {v(vLANE)}
          v_add_u32 {v(15)}, {s(sT0)}, {v(14)}
          v_add_u32 {v(14)}, {L_QN}, {v(14)}
          s_add_u32 {s(sT0)}, {s(sCB)}, {s(sTB)}
          s_and_b32 {s(sT0)}, {s(sT0)}, 3
          s_lshl_b32 {s(sK)}, {s(sT0)}, 14
          s_add_u32 {s(sV)}, {s(sK)}, 0x4000
          s_and_b32 {s(sV)}, {s(sV)}, 0xffff
          s_lshl_b32 {s(sT0)}, {s(sW)}, 16
          v_add_u32 {v(vF)}, {s(sT0)}, {v(vL16)}
          v_add_u32 {v(vF+1)}, 4096, {v(vF)}
          v_add_u32 {v(vF+2)}, 8192, {v(vF)}
          v_add_u32 {v(vF+3)}, 12288, {v(vF)}""".split("\n")
    for sl in range(4):
        misc += [f"s_xor_b32 {s(sT0)}, {s(sW)}, {sl}", f"s_mul_i32 {s(sT0)}, {s(sT0)}, 12288",
                 f"s_add_u32 {s(sT0)}, {s(sT0)}, {LA}", f"v_add_u32 {v(124+sl)}, {s(sT0)}, {v(vL16)}"]
    misc += [f"v_mov_b32 {v(O0+i)}, 0" for i in range(16)]
    misc += [f"v_xor_b32 {v(108+sl)}, {sl << 11}, {v(vG)}" for sl in range(1, 4)]

    def qstep(ks):
        if ks + 6 < 28:
            wq(ks + 6)
        A.wait_lg(("w", ks))
        mfma(v(acc, 16), v(ring + 4 * (ks % 8), 4), a(4 * ks, 4), 0 if ks == 0 else None)
        mfma(v(cs, 16), v(ring + 4 * (ks % 8), 4), v(ones, 4), 0 if ks == 0 else None)
        if 14 <= ks < 26:
            for i in range(4):
                A(f"v_accvgpr_write_b32 {a(aO + 4 * (ks - 14) + i)}, 0")
    for ks in range(6):
        wq(ks)
    weave(A, [lambda ks=ks: qstep(ks) for ks in range(28)], [lambda t=t: A(t) for t in misc])
    hi = "prl" not in OPT

    def kload(slot, base):
        for c in range(2):
            A.vmem(f"buffer_load_dwordx4 {a(aK + 8*slot + 4*c, 4)}, {v(vF+slot)}, {s(SW,4)}, {s(base)} offen offset:{c*1024} sc1", "K")

    def vload(slot, base):
        for c in range(2):
            A.vmem(f"buffer_load_dwordx4 {v(vV + 8*slot + 4*c, 4)}, {v(vF+slot)}, {s(SW,4)}, {s(base)} offen offset:{2048 + c*1024} sc1", "V")

    def first_loads():
        A("s_setprio 3")
        for slot in range(3):
            kload(slot, sK)
            vload(slot, sK)
            if slot == 0:
                A("s_setprio " + OPT.get("aprio", "0"))
        kload(3, sK)
        A.vm = []

    stamp()
    A("s_nop 7")
    q = acc
    for i in range(16):
        A(f"v_fma_f32 {v(q+i)}, -{v(cs+i)}, {v(vM)}, {v(q+i)}\nv_mul_f32 {v(q+i)}, {v(q+i)}, {v(vR)}")
    A(f"s_mov_b64 exec, {s(sHI,2)}")
    for i in range(12, 16):
        A(f"v_mov_b32 {v(q+i)}, 0")
    A("s_mov_b64 exec, -1")
    for i in range(8):
        A(f"v_cvt_pk_bf16_f32 {v(48+i)}, {v(q+2*i)}, {v(q+2*i+1)}")
    A.ds(f"ds_write_b128 {v(vG)}, {v(48,4)}", "qg")
    A.ds(f"ds_write_b128 {v(vG)}, {v(52,4)} offset:1024", "qg")
    A(f"v_mul_f32 {v(56)}, {v(q)}, {v(q)}")
    for i in range(1, 16):
        A(f"v_fma_f32 {v(56)}, {v(q+i)}, {v(q+i)}, {v(56)}")
    halves(56, 57)
    A(f"v_add_f32 {v(56)}, {v(56)}, {v(57)}")
    A.ds(f"ds_write_b32 {v(15)}, {v(56)}", "qg")
    arrive(C_Q)
    for i in range(4):
        A(f"v_mov_b32 {v(P+4+i)}, 0\nv_mov_b32 {v(vV+28+i)}, 0")
    await_cnt(C_Q)
    for sl in range(4):
        for c in range(2):
            A.ds(f"ds_read_b128 {a(aQ + 8*sl + 4*c, 4)}, {v(108+sl if sl else vG)} offset:{c*1024}", "q")
    for sl in range(4):
        A.ds(f"ds_read_b32 {v(120+sl)}, {v(14)} offset:{sl*256}", "q")
    A.drain_lg()
    arrive(C_QD)
    A("s_setprio 3")
    gate(G_K, setup_k, 112, payload=lambda: A(f"v_mov_b32 {v(113)}, {L_KP}\nds_max_u32 {v(113)}, {v(114)}"))
    stamp()
    A(f"v_mov_b32 {v(113)}, {L_KP}\nds_read_b32 {v(112)}, {v(113)}")
    first_loads()
    A(f"""s_waitcnt lgkmcnt(0)
          v_max3_f32 {v(120)}, {v(120)}, {v(121)}, {v(122)}
          v_max_f32 {v(120)}, {v(120)}, {v(123)}
          v_mul_f32 {v(108)}, {v(112)}, {v(120)}
          v_cmp_nge_f32 vcc, {f32(-1.0 if FORCE_SLOW else BOUND2)}, {v(108)}
          s_cmp_lg_u64 vcc, 0
          s_cbranch_scc1 L_slow""")
    A.label("L_fast")
    A("s_waitcnt vmcnt(10)")

    def Oreg(sl):
        return v(O0, 16) if sl == 0 else a(aO + 16 * (sl - 1), 16)

    mfma(v(S[0], 16), a(aK, 4), a(aQ, 4), 0)
    mfma(v(S[0], 16), a(aK + 4, 4), a(aQ + 4, 4))
    A(f"s_mov_b32 {s(sT4)}, 4\ns_nop 7\ns_nop 1")
    A.label("L_aloop")

    def period(sg, qt):
        cur, nxt = S[qt & 1], S[(qt + 1) & 1]
        ks = sg if qt < 3 else (sg + 1) & 3
        vs = sg if qt > 0 else (sg - 1) & 3
        nq, pq = (qt + 1) & 3, (qt - 1) & 3
        e = lambda i: A(f"v_exp_f32 {v(cur+i)}, {v(cur+i)}")
        c = lambda i: A(f"v_cvt_pk_bf16_f32 {v(P+i)}, {v(cur+2*i)}, {v(cur+2*i+1)}")
        if qt == 3:
            A("s_waitcnt vmcnt(6)")
        mfma(v(nxt, 16), a(aK + 8 * ks, 4), a(aQ + 8 * nq, 4), 0)
        if qt == 3:
            A("s_setprio 3")
            vload((sg - 1) & 3, sK if sg == 0 else sV)
            kload(sg, sV)
            A("s_setprio " + OPT.get("aprio", "0"))
        e(0); e(1); e(2); e(3)
        mfma(Oreg(pq), v(vV + 8 * vs + 4, 4), v(P + 4, 4))
        c(0); c(1); e(4); e(5); e(6); e(7)
        mfma(v(nxt, 16), a(aK + 8 * ks + 4, 4), a(aQ + 8 * nq + 4, 4))
        c(2); c(3); e(8); e(9); e(10); e(11)
        mfma(Oreg(qt), v(vV + 8 * sg, 4), v(P, 4))
        c(4); c(5); e(12); e(13); e(14); e(15); c(6); c(7)

    for sg in range(4):
        for qt in range(4):
            period(sg, qt)
            A.vm = []
    A(f"""s_mov_b32 {s(sK)}, {s(sV)}
          s_add_u32 {s(sV)}, {s(sV)}, 0x4000
          s_and_b32 {s(sV)}, {s(sV)}, 0xffff
          s_cmp_eq_u32 {s(sT4)}, 2
          s_cselect_b32 {s(sV)}, {OOB}, {s(sV)}
          s_sub_u32 {s(sT4)}, {s(sT4)}, 1
          s_cmp_lg_u32 {s(sT4)}, 0
          s_cbranch_scc1 L_aloop""")
    mfma(Oreg(3), v(vV + 28, 4), v(P + 4, 4))
    stamp()
    A("s_setprio 3")
    A(f"""v_mov_b32 {v(vT0)}, {C_P4}
          ds_read_b32 {v(vT1)}, {v(vT0)}
          ds_read_b32 {v(vT2)}, {v(vT0)} offset:{L_MODE - C_P4}
          s_waitcnt lgkmcnt(0)
          v_readfirstlane_b32 {s(sT0)}, {v(vT1)}
          v_readfirstlane_b32 {s(sLOC)}, {v(vT2)}
          s_cmp_ge_u32 {s(sT0)}, 4
          s_cbranch_scc1 L_free""")
    await_cnt(C_P4)
    read_mode()
    A.label("L_free")
    A("s_nop 2")
    offs = [(0, i * 1024) for i in range(12)]
    if "mrg" in OPT:
        stamp()
    reduce_out([("a", aO), ("a", aO + 16), ("a", aO + 32)], C_MRG, [124], offs)
    if "mrg" in OPT:
        stamp()
        await_cnt(C_MRG)
        stamp()

    reduce_in(O0, [32, 48, 104], C_MRG, lambda sl: [124 + sl], offs)
    if "mrg" in OPT:
        stamp()
    A(f"v_mov_b32 {v(32)}, {v(O0+12)}")
    halves(32, 33)
    A(f"v_rcp_f32 {v(33)}, {v(33)}\ns_nop 0")
    for i in range(16):
        A(f"v_mul_f32 {v(O0+i)}, {v(O0+i)}, {v(33)}")
    for i in range(8):
        A(f"v_cvt_pk_bf16_f32 {v(40+i)}, {v(O0+2*i)}, {v(O0+2*i+1)}")
    A(f"s_mov_b64 exec, {s(sHI,2)}\nv_mov_b32 {v(46)}, 0\nv_mov_b32 {v(47)}, 0\ns_mov_b64 exec, -1")
    hstore([f"buffer_store_dwordx4 {v(40,4)}, {v(vL16)}, {s(SW,4)}, {s(sB4)} offen",
            f"buffer_store_dwordx4 {v(44,4)}, {v(vL16)}, {s(SW,4)}, {s(sB4)} offen offset:1024"])
    if "mrg" in OPT:
        stamp()
        A.drain_vm()
        stamp()
    signal(N_O, own_slot(FO), near=True)
    stamp()
    dump_stamps()
    A("s_endpgm")

    A.label("L_slow")
    mx, kf = 108, 112
    for sl in range(4):
        A(f"v_mov_b32 {v(mx+sl)}, 0xff800000")
    A(f"s_mov_b32 {s(sT4)}, 0")
    A.label("L_sloop")
    A(f"""buffer_load_dwordx4 {v(kf,4)}, {v(vF)}, {s(SW,4)}, {s(sT4)} offen sc1
          buffer_load_dwordx4 {v(kf+4,4)}, {v(vF)}, {s(SW,4)}, {s(sT4)} offen offset:1024 sc1
          s_add_u32 {s(sT4)}, {s(sT4)}, 4096
          s_waitcnt vmcnt(0)""")
    for sl in range(4):
        mfma(v(S[0], 16), v(kf, 4), a(aQ + 8 * sl, 4), 0)
        mfma(v(S[0], 16), v(kf + 4, 4), a(aQ + 8 * sl + 4, 4))
        A("s_nop 11")
        for i in range(8):
            A(f"v_max3_f32 {v(mx+sl)}, {v(mx+sl)}, {v(S[0]+2*i)}, {v(S[0]+2*i+1)}")
    A(f"s_cmp_lt_u32 {s(sT4)}, 0x10000\ns_cbranch_scc1 L_sloop")
    A(f"v_and_b32 {v(kf)}, 31, {v(vLANE)}\nv_lshlrev_b32 {v(kf)}, 2, {v(kf)}\nv_add_u32 {v(kf)}, {L_MX}, {v(kf)}")
    for sl in range(4):
        halves(mx + sl, kf + 1)
        A(f"""v_max_f32 {v(mx+sl)}, {v(mx+sl)}, {v(kf+1)}
              s_xor_b32 {s(sT0)}, {s(sW)}, {sl}
              s_lshl_b32 {s(sT0)}, {s(sT0)}, 7
              v_add_u32 {v(kf+4+sl)}, {s(sT0)}, {v(kf)}""")
    A(f"ds_write_b32 {v(kf+4)}, {v(mx)}")
    arrive(C_MAX)
    await_cnt(C_MAX)
    for sl in range(1, 4):
        A(f"ds_max_f32 {v(kf+4+sl)}, {v(mx+sl)}")
    arrive(C_MAX)
    await_cnt(C_MAX, 8)
    t = 120
    for sl in range(4):
        A(f"""ds_read_b32 {v(t)}, {v(kf+4+sl)}
              s_waitcnt lgkmcnt(0)
              v_sub_f32 {v(t)}, 0, {v(t)}
              v_cvt_pk_bf16_f32 {v(t+1)}, {v(t)}, {v(t)}
              v_and_b32 {v(t+1)}, 0xffff0000, {v(t+1)}
              v_sub_f32 {v(t+2)}, {v(t)}, {v(t+1)}
              v_cvt_pk_bf16_f32 {v(t+3)}, {v(t)}, {v(t+2)}
              v_and_b32 {v(t+1)}, 0xffff0000, {v(t+3)}
              v_sub_f32 {v(t+2)}, {v(t+2)}, {v(t+1)}
              v_cvt_pk_bf16_f32 {v(t+2)}, {v(t+2)}, 0
              s_mov_b64 exec, {s(sHI,2)}
              v_accvgpr_write_b32 {a(aQ + 8*sl + 6)}, {v(t+3)}
              v_accvgpr_write_b32 {a(aQ + 8*sl + 7)}, {v(t+2)}
              s_mov_b64 exec, -1""")
    A("s_nop 1\ns_branch L_fast")


def header():
    ref = open(f"cdna_kernels/{NAME}.s.ref").read().split("\n")
    out = [l for l in ref if l.startswith(";") and "@launch" not in l and "Override" not in l and "grid=ceil" not in l]
    out.append(f"; @launch grid=(256,1,1) block=(512,1,1) lds={LDS_SIZE}")
    out += ['.amdgcn_target "amdgcn-amd-amdhsa--gfx950"', ".text", f".globl {NAME}_kernel", ".p2align 8",
            f".type {NAME}_kernel,@function", f"{NAME}_kernel:"]
    return "\n".join(out) + "\n"


def footer():
    return f"""L_end:
    s_endpgm
L_code_end:
.section .rodata,"a"
.p2align 6
.amdhsa_kernel {NAME}_kernel
  .amdhsa_next_free_vgpr 256
  .amdhsa_next_free_sgpr 102
  .amdhsa_accum_offset 128
  .amdhsa_group_segment_fixed_size 0
  .amdhsa_kernarg_size 104
  .amdhsa_user_sgpr_count 2
  .amdhsa_user_sgpr_kernarg_segment_ptr 1
  .amdhsa_system_sgpr_workgroup_id_x 1
.end_amdhsa_kernel
"""


if __name__ == "__main__":
    vm0 = prologue()
    mlp(vm0)
    att(vm0)
    out = [x for x in sys.argv[1:] if not x.startswith("--")]
    open(out[0] if out else "k.s", "w").write(header() + A.text() + footer())
```

```python
import math
import sys
from asmlib import Asm, a, f32, s, v, weave

NAME = "recurrent_scan__grouped_kv_mqa__mixer_s_mlp__prompt"
PROFILE = "--prof" in sys.argv or "--cyc" in sys.argv
CLOCK = "s_memtime" if "--cyc" in sys.argv else "s_memrealtime"
FORCE_SLOW = "--slow" in sys.argv
OPT = {x[2:].split("=")[0]: (x.split("=") + [""])[1] for x in sys.argv if x.startswith("--")}


class Stop(Exception):
    pass


def cut(name):
    if OPT.get("mlpstop") == name:
        arrive(C_P4)
        A.drain_vm()
        dump_stamps()
        A("s_endpgm")


KV, CS, FK, FC, FH, FX, FG, FO, FG2 = 0x0, 0x40000, 0x48000, 0x49000, 0x50000, 0x58000, 0x60000, 0x68000, 0x70000
TS = 0x80000
HB, ST, X1, HH, OB = 0x100000, 0x2C0000, 0x300000, 0x500000, 0xC00000
WS_SIZE = 0xE00000
OOB = 0x7FFF0000
LX, LA, LQ, LS = 0, 57344, 114688, 159744
LDS_SIZE = 163840
(C_PA, C_W2, C_WQ, C_Q, C_QD, C_MAX, C_MRG, C_R1, C_XA, C_XB, C_P4, C_R2, C_R3, N_H, N_X, N_G, N_G2, N_O, N_K, N_C,
 G_H, G_X, G_G, G_G2, G_O, G_K, L_KM, L_KP, L_MODE) = [LS + 4 * i for i in range(29)]
L_QN, L_STAT = LS + 1024, LS + 2048
L_MX = LS + 256
L_QG, L_VT = LA + 16384, LA + 24576
NRING = 12
assert L_QG % 8192 == 0
LOG2E = 1.4426950408889634
QSCALE = 28 ** -0.5 * LOG2E
GC1 = -2 * LOG2E * math.sqrt(2 / math.pi)
GC2 = GC1 * 0.044715
EPS = 1e-5
BOUND2 = 3500.0
ONES = 0x3F803F80
GSPIN, LSPIN = 20000, 400000
SX, SA, SQ, SW, S4, SO, SOUT, SD, S2 = 4, 8, 12, 16, 20, 24, 28, 32, 36
P_X, P_WQ, P_WK, P_WV, P_WO, P_W1, P_W2, P_W3, P_W4, P_OUT, P_DBG, P_WS = 40, 42, 44, 46, 48, 52, 54, 56, 58, 60, 62, 64
sN = 66
sW8, sW, sTB, sCB, sTT, sP, sGT = 68, 69, 70, 71, 72, 73, 74
sHI = 76
sINV = 78
sT0, sT1, sT2, sT3, sT4, sT5 = 80, 81, 82, 83, 84, 85
sPA, sPB, sB1, sB4, sSP = 86, 87, 88, 89, 90
sK, sV, sR, sRG, sRH = 91, 92, 93, 96, 97
sXC, sLOC = 75, 3
sTS = 40
vLANE, vL16, vTRN, vTRD, vT0, vT1, vT2, vT3 = 0, 1, 2, 3, 4, 5, 6, 7
MF = "v_mfma_f32_32x32x16_bf16"

A = Asm()
stamps = {"n": 0}


def stamp():
    if PROFILE:
        i = stamps["n"]
        stamps["n"] += 1
        A(f"s_waitcnt lgkmcnt(0)\n{CLOCK} {s(94,2)}\ns_waitcnt lgkmcnt(0)\ns_mov_b32 {s(sTS+i)}, s94")
        if "both" in OPT:
            A(f"s_memrealtime {s(94,2)}\ns_and_b32 {s(sTS+i)}, {s(sTS+i)}, 0xfffff\ns_waitcnt lgkmcnt(0)\n"
              f"s_lshl_b32 s94, s94, 20\ns_or_b32 {s(sTS+i)}, {s(sTS+i)}, s94")
        A.lg = []


def early_stamp(i):
    if "startup" in OPT:
        A(f"s_memtime {s(94,2)}\ns_waitcnt lgkmcnt(0)\ns_mov_b32 {s([98, 99, 100, 101, 3, 75, 97][i])}, s94")


def early_dump():
    if "startup" in OPT:
        for i, r in enumerate([98, 99, 100, 101, 3, 75, 97]):
            A(f"s_mov_b32 {s(sTS+i)}, {s(r)}")
        stamps["n"] = 7
        stamp()
        dump_stamps()
        A("s_endpgm")


def dump_stamps():
    if PROFILE:
        n = stamps["n"]
        A(f"s_lshl_b32 {s(sT0)}, s2, 3\ns_add_u32 {s(sT0)}, {s(sT0)}, {s(sW8)}\ns_lshl_b32 {s(sT0)}, {s(sT0)}, 7\n"
          f"s_add_u32 {s(sT0)}, {s(sT0)}, {TS}\nv_mov_b32 {v(vT1)}, 0")
        for i in range(n):
            A(f"v_mov_b32 {v(vT0)}, {s(sTS+i)}\nbuffer_store_dword {v(vT0)}, {v(vT1)}, {s(SW,4)}, {s(sT0)} offen offset:{4*i}")
        A.drain_vm()
    stamps["n"] = 0


def srd(r, ptr, size):
    A(f"s_mov_b32 {s(r)}, {s(ptr)}\ns_mov_b32 {s(r+1)}, {s(ptr+1)}\ns_mov_b32 {s(r+2)}, {size}\ns_mov_b32 {s(r+3)}, 0x20000")


def mfma(d, x, y, c=None):
    A(f"{MF} {d}, {x}, {y}, {d if c is None else c}")


def dma(m0_base, m0_off, voff, desc, soff, tag, imm=0, sc=""):
    if m0_base is None:
        A(f"s_mov_b32 m0, {m0_off - imm}")
    else:
        A(f"s_add_u32 m0, {s(m0_base)}, {m0_off - imm}")
    pre, so = soff
    if pre:
        A(pre)
    else:
        A("s_nop 0")
    A.vmem(f"buffer_load_dwordx4 {v(voff)}, {s(desc,4)}, {so} offen" + (f" offset:{imm}" if imm else "") + f"{sc} lds", tag)


def tr(dst, addr, off, second, tag):
    k, i = dst
    r = v if k == "v" else a
    A.ds(f"ds_read_b64_tr_b16 {r(i,2)}, {v(addr)} offset:{off}", tag)
    A.ds(f"ds_read_b64_tr_b16 {r(i+2,2)}, {v(addr)} offset:{off+second}", tag)


def arrive(cnt):
    A(f"s_mov_b64 exec, 1\nv_mov_b32 {v(vT0)}, {cnt}\nv_mov_b32 {v(vT1)}, 1")
    A.ds(f"ds_add_u32 {v(vT0)}, {v(vT1)}", "cnt")
    A("s_mov_b64 exec, -1")


def await_cnt(cnt, target=4):
    lp, ok = A.newlabel("ls"), A.newlabel("lk")
    A(f"v_mov_b32 {v(vT0)}, {cnt}\ns_mov_b32 {s(sSP)}, 0")
    A.label(lp)
    A(f"""ds_read_b32 {v(vT1)}, {v(vT0)}
          s_add_u32 {s(sSP)}, {s(sSP)}, 1
          s_waitcnt lgkmcnt(0)
          v_readfirstlane_b32 {s(sT0)}, {v(vT1)}
          s_cmp_ge_u32 {s(sT0)}, {target}
          s_cbranch_scc1 {ok}
          {"s_sleep " + OPT["lsleep"] if "lsleep" in OPT else ""}
          s_cmp_lt_u32 {s(sSP)}, {LSPIN}
          s_cbranch_scc1 {lp}""")
    A.label(ok)
    A.lg = []


def gate(go, setup, tmp, payload=None, release=True):
    lp, ok, rest = A.newlabel("gs"), A.newlabel("gk"), A.newlabel("gw")
    every = "allpoll" in OPT and not payload
    if not every:
        A(f"s_cmp_lg_u32 {s(sW)}, 0\ns_cbranch_scc1 {rest}")
    setup()
    A(f"s_mov_b32 {s(sSP)}, 0")
    A.label(lp)
    n = 4 if payload else 2
    A(f"""buffer_load_dwordx{n} {v(tmp,n)}, {v(vT2)}, {s(SW,4)}, 0 offen sc1
          s_add_u32 {s(sSP)}, {s(sSP)}, 1
          s_waitcnt vmcnt(0)
          v_cmp_eq_u64 vcc, {s(sN,2)}, {v(tmp,2)}
          s_or_b64 vcc, vcc, {s(sINV,2)}
          s_cmp_eq_u64 vcc, -1
          s_cbranch_scc1 {ok}
          {"" if release else "s_sleep 8"}
          s_cmp_lt_u32 {s(sSP)}, {GSPIN}
          s_cbranch_scc1 {lp}""")
    A.label(ok)
    if every:
        return
    if payload:
        payload()
    if not release:
        A.label(rest)
        return
    keep = list(A.lg)
    arrive(go)
    A.lg = keep
    A.label(rest)
    await_cnt(go, 1)


def peek_issue(setup, data=vT0, addr=vT2, n=2):
    setup()
    if addr != vT2:
        A(f"v_mov_b32 {v(addr)}, {v(vT2)}")
    A.vmem(f"buffer_load_dwordx{n} {v(data,n)}, {v(addr)}, {s(SW,4)}, 0 offen sc1", "peek")


def peek_check(data=vT0, addr=vT2, n=2):
    lp, ok = A.newlabel("ps"), A.newlabel("pk")
    A.wait_vm("peek")
    A(f"s_mov_b32 {s(sSP)}, {GSPIN}")
    A.label(lp)
    A(f"""v_cmp_eq_u64 vcc, {s(sN,2)}, {v(data,2)}
          s_or_b64 vcc, vcc, {s(sINV,2)}
          s_cmp_eq_u64 vcc, -1
          s_cbranch_scc1 {ok}
          s_sub_u32 {s(sSP)}, {s(sSP)}, 1
          s_cbranch_scc1 {ok}
          buffer_load_dwordx{n} {v(data,n)}, {v(addr)}, {s(SW,4)}, 0 offen sc1
          s_waitcnt vmcnt(0)
          s_branch {lp}""")
    A.label(ok)


def lanes_to(addr_reg):
    A(f"s_mov_b64 vcc, {s(sINV,2)}\nv_mov_b32 {v(vT3)}, {OOB}\nv_cndmask_b32 {v(vT2)}, {v(addr_reg)}, {v(vT3)}, vcc")


def hstore(stores, tag=None, allow=True):
    if not allow:
        for t in stores:
            A.vmem(t + " sc1", tag)
        return
    near, done = A.newlabel("hn"), A.newlabel("hd")
    A(f"s_cmp_lg_u32 {s(sLOC)}, 0\ns_cbranch_scc1 {near}")
    for t in stores:
        A(t + " sc1")
    A(f"s_branch {done}")
    A.label(near)
    for t in stores:
        if tag is None:
            A(t)
        else:
            A.vmem(t, tag)
    A.label(done)


def note_die(data):
    A(f"""v_cmp_eq_u32 vcc, {s(sXC)}, {v(data)}
          s_and_b32 {s(sT0)}, vcc_lo, {s(sT2)}
          s_cmp_eq_u32 {s(sT0)}, {s(sT2)}
          s_cselect_b32 {s(sT0)}, {0 if "remote" in OPT else 1}, 0
          v_mov_b32 {v(vT0)}, {L_MODE}
          v_mov_b32 {v(vT1)}, {s(sT0)}
          ds_write_b32 {v(vT0)}, {v(vT1)}""")


def read_mode():
    A(f"""v_mov_b32 {v(vT0)}, {L_MODE}
          ds_read_b32 {v(vT1)}, {v(vT0)}
          s_waitcnt lgkmcnt(0)
          v_readfirstlane_b32 {s(sLOC)}, {v(vT1)}""")
    A.lg = []


def warm(dst, voff, soff, mask):
    if "nowarm" in OPT:
        return
    if isinstance(mask, str):
        A(f"s_bfm_b64 exec, {len(mask[2:]) * 4}, 0")
    else:
        A(f"s_mov_b64 exec, {mask}")
    A.vmem(f"buffer_load_dword {a(dst)}, {v(voff)}, {s(SW,4)}, {s(soff)} offen sc1", "warm")
    A("s_mov_b64 exec, -1")


def signal(cnt, soff_expr, tags=None, payload=None, near=False):
    skip = A.newlabel("sg")
    if tags is None:
        A.drain_vm()
    else:
        A.wait_vm(tags)
    A(f"""s_mov_b64 exec, 1
          v_mov_b32 {v(vT0)}, {cnt}
          v_mov_b32 {v(vT1)}, 1
          ds_add_rtn_u32 {v(vT1)}, {v(vT0)}, {v(vT1)}""")
    if payload:
        A(f"ds_read_b32 {v(vT2)}, {v(vT0)} offset:{payload - cnt}")
    A(soff_expr)
    A(f"""s_waitcnt lgkmcnt(0)
          v_readfirstlane_b32 {s(sT1)}, {v(vT1)}
          s_cmp_lg_u32 {s(sT1)}, 3
          s_cbranch_scc1 {skip}
          v_mov_b32 {v(vT0)}, {s(sN)}
          v_mov_b32 {v(vT1)}, {s(sN+1)}
          v_mov_b32 {v(vT3)}, 0""")
    if not payload:
        A(f"v_mov_b32 {v(vT2)}, {s(sXC)}")
    st = f"buffer_store_dwordx4 {v(vT0,4)}, {v(vT3)}, {s(SW,4)}, {s(sT0)} offen"
    if near:
        hstore([st])
    else:
        A(st + " sc1")
    A.label(skip)
    A("s_mov_b64 exec, -1\ns_nop 0")
    A.lg = []


def nonce_issue(tmp):
    A(f"v_mov_b32 {v(vT3)}, 0")
    A.vmem(f"buffer_load_dwordx2 {v(tmp,2)}, {v(vT3)}, {s(SD,4)}, 0 offen sc1", "nonce")


def nonce_take(tmp):
    lp, ok = A.newlabel("ns"), A.newlabel("nk")
    A.wait_vm("nonce")
    A(f"s_mov_b32 {s(sSP)}, 0\nv_mov_b32 {v(vT3)}, 0")
    A.label(lp)
    A(f"""v_readfirstlane_b32 {s(sN)}, {v(tmp)}
          v_readfirstlane_b32 {s(sN+1)}, {v(tmp+1)}
          s_add_u32 {s(sSP)}, {s(sSP)}, 1
          s_cmp_lg_u64 {s(sN,2)}, 0
          s_cbranch_scc1 {ok}
          s_cmp_ge_u32 {s(sSP)}, {GSPIN}
          s_cbranch_scc1 {ok}
          buffer_load_dwordx2 {v(tmp,2)}, {v(vT3)}, {s(SD,4)}, 0 offen sc1
          s_waitcnt vmcnt(0)
          s_branch {lp}""")
    A.label(ok)


def halves(x, t):
    A(f"v_mov_b32 {v(t)}, {v(x)}\ns_nop 1\nv_permlane32_swap_b32 {v(x)}, {v(t)}")


def wave_max(x, full):
    for sh in (1, 2, 4, 8):
        A(f"s_nop 1\nv_max_f32_dpp {v(x)}, {v(x)}, {v(x)} row_shr:{sh} row_mask:0xf bank_mask:0xf bound_ctrl:0")
    A(f"s_nop 1\nv_max_f32_dpp {v(x)}, {v(x)}, {v(x)} row_bcast:15 row_mask:0xa bank_mask:0xf")
    if full:
        A(f"s_nop 1\nv_max_f32_dpp {v(x)}, {v(x)}, {v(x)} row_bcast:31 row_mask:0xc bank_mask:0xf")
    A("s_nop 1")


def gelu_ops(y, t, dst, c1, c2, ri):
    o = []
    for e in (0, 1):
        o.append(f"v_mul_f32 {v(t+e)}, {v(y+e)}, {v(y+e)}")
    for e in (0, 1):
        o.append(f"v_fma_f32 {v(t+e)}, {v(t+e)}, {v(c2)}, {v(c1)}")
    for e in (0, 1):
        o.append(f"v_mul_f32 {v(t+e)}, {v(t+e)}, {v(y+e)}")
    for e in (0, 1):
        o.append(f"v_exp_f32 {v(t+e)}, {v(t+e)}")
    for e in (0, 1):
        o.append(f"v_fma_f32 {v(t+e)}, {v(t+e)}, {v(ri)}, {v(ri)}")
    for e in (0, 1):
        o.append(f"v_rcp_f32 {v(t+e)}, {v(t+e)}")
    for e in (0, 1):
        o.append(f"v_mul_f32 {v(t+e)}, {v(t+e)}, {v(y+e)}")
    o.append(f"v_cvt_pk_bf16_f32 {v(dst)}, {v(t)}, {v(t+1)}")
    return o


def ring_addr(slot):
    return (sPA, slot * 2048) if slot < 7 else (sPB, (slot - 7) * 2048)


def reduce_out(srcs, cnt, vbase, offs, fill=()):
    def wr(i):
        k, r = srcs[i // 4]
        reg = (v if k == "v" else a)(r + 4 * (i % 4), 4)
        b, o = offs[i]
        A.ds(f"ds_write_b128 {v(vbase[b])}, {reg} offset:{o}", "red")
        if i == 11:
            arrive(cnt)
    weave(A, [lambda i=i: wr(i) for i in range(12)], list(fill))


def reduce_in(acc, tmp, cnt, mkaddr, offs, between=None):
    tmp = tmp if isinstance(tmp, list) else [tmp, tmp + 16, tmp + 32]
    await_cnt(cnt)
    for sl in (1, 2, 3):
        regs = mkaddr(sl)
        for q in range(4):
            b, o = offs[(sl - 1) * 4 + q]
            A.ds(f"ds_read_b128 {v(tmp[sl-1] + 4*q, 4)}, {v(regs[b])} offset:{o}", ("rd", sl))
    if between:
        between()
    for sl in (1, 2, 3):
        A.wait_lg(("rd", sl))
        for i in range(16):
            A(f"v_add_f32 {v(acc+i)}, {v(acc+i)}, {v(tmp[sl-1] + i)}")


vC8, vC7, vXF, vWQ = 100, 101, 104, 109
SXR = [16, 20, 88, 92, 112, 116, 120]


def image(base, off, voff, desc, sreg_expr, rs, tag, halves_=(0, 1)):
    for h in halves_:
        dma(base, off + h * 1024, voff, desc, (sreg_expr(h * 8 * rs), s(sT0)), tag)


def gaps(mfmas, pieces):
    n, m, done = len(mfmas), len(pieces), 0
    for i, f in enumerate(mfmas):
        f()
        while done < -(-m * (i + 1) // n):
            pieces[done]()
            done += 1


def prologue():
    A(f"""s_cmp_ge_u32 s2, 256
          s_cbranch_scc1 L_end
          s_load_dwordx16 {s(40,16)}, s[0:1], 0
          s_load_dwordx8 {s(56,8)}, s[0:1], 64
          s_load_dwordx2 {s(64,2)}, s[0:1], 96
          s_memrealtime {s(sN,2)}
          {CLOCK + " " + s(98,2) if PROFILE else ""}
          s_getpc_b64 {s(sT2,2)}
          v_lshrrev_b32 {v(vT0)}, 6, v0
          s_lshr_b32 {s(sT0)}, s2, 3
          v_readfirstlane_b32 {s(sW8)}, {v(vT0)}
          v_and_b32 {v(vLANE)}, 63, v0
          v_lshlrev_b32 {v(vT2)}, 7, {v(vLANE)}
          s_and_b32 {s(sT2)}, {s(sT2)}, 0xffffff00""")
    A(f"""s_mul_i32 {s(sT4)}, {s(sT0)}, 26
          s_lshr_b32 {s(sT4)}, {s(sT4)}, 8
          s_mul_i32 {s(sT4)}, {s(sT4)}, 10
          s_sub_u32 {s(sT4)}, {s(sT0)}, {s(sT4)}
          s_lshl_b32 {s(sT4)}, {s(sT4)}, 3
          s_add_u32 {s(sT4)}, {s(sT4)}, {s(sW8)}
          s_lshl_b32 {s(sT4)}, {s(sT4)}, 9
          v_add_u32 {v(vT1)}, {s(sT4)}, {v(vT2)}
          v_min_u32 {v(vT1)}, L_code_end-{NAME}_kernel-4, {v(vT1)}
          s_mov_b64 exec, 15""")
    if "nopf" not in OPT:
        A.vmem(f"global_load_dword {a(124)}, {v(vT1)}, {s(sT2,2)}", "pf")
    A("s_mov_b64 exec, -1")
    nk = int(OPT.get("nk", 8))
    if nk == 8:
        A(f"""s_and_b32 {s(sT1)}, {s(sT0)}, 3
              s_and_b32 {s(sTB)}, s2, 7
              s_lshl_b32 {s(sTB)}, {s(sTB)}, 2
              s_add_u32 {s(sTB)}, {s(sTB)}, {s(sT1)}
              s_lshr_b32 {s(sCB)}, {s(sT0)}, 2""")
    else:
        per = 32 // nk
        perm = [int(c) for c in OPT.get("perm", "40516273")]
        A(f"""s_and_b32 {s(sT1)}, s2, 7
              s_lshl_b32 {s(sT1)}, {s(sT1)}, 2
              s_lshr_b32 {s(sT1)}, {sum(p << (4 * i) for i, p in enumerate(perm))}, {s(sT1)}
              s_and_b32 {s(sT1)}, {s(sT1)}, 7
              s_min_u32 {s(sT2)}, {s(sT1)}, {nk - 1}
              s_add_u32 {s(sT2)}, {s(sT2)}, 1
              s_mul_i32 {s(sT2)}, {s(sT2)}, {per}
              s_lshl_b32 {s(sT3)}, {s(sT1)}, 5
              s_add_u32 {s(sT3)}, {s(sT3)}, {s(sT0)}
              s_sub_u32 {s(sT3)}, {s(sT3)}, {s(sT2)}
              s_mul_i32 {s(sTB)}, {s(sT3)}, 9363
              s_lshr_b32 {s(sTB)}, {s(sTB)}, 16
              s_mul_i32 {s(sCB)}, {s(sTB)}, 7
              s_sub_u32 {s(sCB)}, {s(sT3)}, {s(sCB)}
              s_add_u32 {s(sCB)}, {s(sCB)}, 1
              s_mul_i32 {s(sT2)}, {s(sT1)}, {per}
              s_add_u32 {s(sT2)}, {s(sT2)}, {s(sT0)}
              s_cmp_lt_u32 {s(sT1)}, {nk}
              s_cselect_b32 {s(sT1)}, {per}, 0
              s_cmp_lt_u32 {s(sT0)}, {s(sT1)}
              s_cselect_b32 {s(sTB)}, {s(sT2)}, {s(sTB)}
              s_cselect_b32 {s(sCB)}, 0, {s(sCB)}
              s_and_b32 {s(sT1)}, {s(sTB)}, 3""")
    A(f"""v_lshlrev_b32 {v(vL16)}, 4, {v(vLANE)}
          v_lshrrev_b32 {v(vC8)}, 3, {v(vLANE)}
          v_lshrrev_b32 {v(vT0)}, 2, {v(vLANE)}
          v_and_b32 {v(vT0)}, 4, {v(vT0)}
          v_xor_b32 {v(vT0)}, {v(vT0)}, {v(vLANE)}
          v_and_b32 {v(vT0)}, 7, {v(vT0)}
          v_lshlrev_b32 {v(vC7)}, 4, {v(vT0)}""")
    A(f"""s_lshl_b32 {s(sT1)}, {s(sT1)}, 1
          s_add_u32 {s(sT1)}, {s(sT1)}, {s(sW8)}
          s_and_b32 {s(sT1)}, {s(sT1)}, 7
          s_lshl_b32 {s(sT4)}, {s(sT1)}, 10
          s_lshl_b32 {s(sT5)}, {s(sT1)}, 3
          v_add_u32 {v(vT1)}, {s(sT5)}, {v(vC8)}
          s_lshl_b32 {s(sT2)}, {s(sCB)}, 7
          s_sub_u32 {s(sT2)}, {s(sT2)}, 128
          v_mul_u32_u24 {v(vT3)}, 896, {v(vT1)}
          v_add3_u32 {v(103)}, {v(vT3)}, {v(vC7)}, {s(sT2)}
          s_and_b32 {s(sW)}, {s(sW8)}, 3
          s_mul_i32 {s(sT1)}, {s(sW)}, 7168
          v_add_u32 {v(vT3)}, {s(sT1)}, {v(vL16)}
          s_mul_i32 {s(sT1)}, {s(sW8)}, 7168
          s_cmp_eq_u32 {s(sCB)}, 0
          s_cselect_b64 vcc, -1, 0
          s_cselect_b32 {s(sT1)}, {s(sT1)}, {s(sT4)}
          s_mov_b32 {s(sT2)}, 1024
          s_cselect_b32 {s(sT3)}, {s(sT2)}, {64 * 896}
          s_cselect_b32 {s(sT5)}, {s(sT2)}, 8192
          v_cndmask_b32 {v(103)}, {v(103)}, {v(vT3)}, vcc
          s_add_u32 m0, {s(sT1)}, {LA}""")
    A(f"""s_lshl_b32 {s(sB1)}, {s(sTB)}, 3
          s_add_u32 {s(sB1)}, {s(sB1)}, {s(sCB)}
          s_lshl_b32 {s(sB1)}, {s(sB1)}, 3
          s_add_u32 {s(sB1)}, {s(sB1)}, {s(sW8)}
          s_mul_i32 {s(sB1)}, {s(sB1)}, 896
          s_mul_i32 {s(sB4)}, {s(sTB)}, 7
          s_add_u32 {s(sB4)}, {s(sB4)}, {s(sW8)}
          s_mul_i32 {s(sB4)}, {s(sB4)}, {2 * 896}
          s_mul_i32 {s(sT0)}, {s(sCB)}, 112
          s_add_u32 {s(sB4)}, {s(sB4)}, {s(sT0)}
          s_cmp_eq_u32 {s(sW8)}, 7
          s_cselect_b32 {s(sB4)}, {OOB}, {s(sB4)}
          v_lshrrev_b32 {v(102)}, 1, {v(vLANE)}
          v_mul_u32_u24 {v(102)}, 896, {v(102)}
          v_and_b32 {v(vT3)}, 1, {v(vLANE)}
          v_mul_u32_u24 {v(vT3)}, 120, {v(vT3)}
          v_add_u32 {v(102)}, {v(102)}, {v(vT3)}
          s_mov_b32 {s(SX+2)}, 1835008
          s_mov_b32 {s(SX+3)}, 0x20000
          s_mov_b32 {s(SQ+2)}, 401408
          s_mov_b32 {s(SQ+3)}, 0x20000
          s_mov_b32 {s(SA+3)}, 0x20000
          s_mov_b32 {s(SA+2)}, 25088
          s_cmp_eq_u32 {s(sCB)}, 0
          s_cselect_b32 {s(SA+2)}, {s(SA+2)}, 401408
          s_mov_b32 {s(sT0)}, 0
          s_cmp_lt_u32 {s(sW8)}, 4
          s_waitcnt lgkmcnt(0)
          s_cselect_b64 {s(SA,2)}, {s(P_WK,2)}, {s(P_WV,2)}
          s_cmp_eq_u32 {s(sCB)}, 0
          s_cselect_b64 {s(SA,2)}, {s(SA,2)}, {s(P_W1,2)}
          s_mov_b64 {s(SX,2)}, {s(P_X,2)}
          s_mov_b64 {s(SQ,2)}, {s(P_WQ,2)}""")
    early_stamp(1)
    if "nopre" not in OPT:
        A("s_mov_b64 exec, 0x7f")
        A.vmem(f"buffer_load_dword {a(126)}, {v(vT2)}, {s(SX,4)}, {s(sB1)} offen", "pre")
        A("s_mov_b64 exec, 15")
        A.vmem(f"buffer_load_dword {a(125)}, {v(102)}, {s(SQ,4)}, {s(sB4)} offen", "pre")
        A("s_mov_b64 exec, -1")
    for n in range(7):
        if n:
            A(f"s_add_u32 m0, m0, {s(sT5)}\ns_add_u32 {s(sT0)}, {s(sT0)}, {s(sT3)}")
        A.vmem(f"buffer_load_dwordx4 {v(103)}, {s(SA,4)}, {s(sT0)} offen lds", "WA")
    early_stamp(2)
    A(f"""s_lshl_b32 {s(sT0)}, {s(sTB)}, 6
          v_add_u32 {v(vT1)}, {s(sT0)}, {v(vT1)}
          v_mul_u32_u24 {v(vT2)}, 896, {v(vT1)}
          v_lshrrev_b32 {v(vT1)}, 1, {v(vT1)}
          v_xor_b32 {v(vT1)}, {v(vT1)}, {v(vLANE)}
          v_and_b32 {v(vT1)}, 7, {v(vT1)}
          v_lshl_add_u32 {v(vWQ)}, {v(vT1)}, 4, {v(vT2)}
          s_and_b32 {s(sTT)}, {s(sW8)}, 1
          s_lshr_b32 {s(sP)}, {s(sW)}, 1""")
    if PROFILE:
        A(f"s_mov_b32 {s(sTS)}, s98")
        stamps["n"] = 1
    srd(SW, P_WS, WS_SIZE)
    srd(SD, P_DBG, 256)
    A(f"""s_cmp_lg_u32 {s(sW8)}, 0
          s_cbranch_scc1 L_nz
          v_lshlrev_b32 {v(vT0)}, 2, {v(vLANE)}
          v_add_u32 {v(vT0)}, {LS}, {v(vT0)}
          v_mov_b32 {v(vT1)}, 0
          ds_write_b32 {v(vT0)}, {v(vT1)}
          s_waitcnt lgkmcnt(0)
          s_cmp_lg_u32 s2, 0
          s_cbranch_scc1 L_nz
          s_or_b32 {s(sN)}, {s(sN)}, 1
          v_mov_b32 {v(vT2)}, {s(sN)}
          v_mov_b32 {v(vT3)}, {s(sN+1)}
          s_mov_b64 exec, 1
          buffer_store_dwordx2 {v(vT2,2)}, {v(vT1)}, {s(SD,4)}, 0 offen sc1
          s_mov_b64 exec, -1""")
    A.label("L_nz")
    A(f"""s_lshl_b32 {s(sGT)}, {s(sTB)}, 1
          s_add_u32 {s(sGT)}, {s(sGT)}, {s(sTT)}
          s_mov_b32 {s(sHI)}, 0
          s_mov_b32 {s(sHI+1)}, -1
          s_getreg_b32 {s(sXC)}, hwreg(HW_REG_XCC_ID, 0, 4)
          s_mov_b32 {s(sLOC)}, 0""")
    A(f"""v_bfe_u32 {v(vT0)}, {v(vLANE)}, 2, 2
          v_lshlrev_b32 {v(vT0)}, 7, {v(vT0)}
          v_lshrrev_b32 {v(vT1)}, 5, {v(vLANE)}
          v_lshl_add_u32 {v(vTRN)}, {v(vT1)}, 10, {v(vT0)}
          v_lshl_add_u32 {v(vTRD)}, {v(vT1)}, 9, {v(vT0)}
          v_bfe_u32 {v(vT0)}, {v(vLANE)}, 4, 1
          v_and_b32 {v(vT2)}, 3, {v(vLANE)}
          v_lshlrev_b32 {v(vT2)}, 3, {v(vT2)}
          v_lshl_add_u32 {v(103)}, {v(vT0)}, 5, {v(vT2)}
          v_bfe_u32 {v(vT0)}, {v(vLANE)}, 3, 1
          v_lshlrev_b32 {v(102)}, 6, {v(vT0)}""")
    A(f"""v_and_b32 {v(vT3)}, 31, {v(vLANE)}
          s_lshl_b32 {s(sT0)}, {s(sTT)}, 5
          v_add_u32 {v(vT0)}, {s(sT0)}, {v(vT3)}
          v_bfe_u32 {v(vT2)}, {v(vT0)}, 1, 3
          v_lshlrev_b32 {v(vT0)}, 7, {v(vT0)}
          v_xor_b32 {v(vT2)}, {v(vT2)}, {v(vT1)}
          v_lshl_add_u32 {v(vXF)}, {v(vT2)}, 4, {v(vT0)}
          v_xor_b32 {v(vXF+1)}, 32, {v(vXF)}
          v_xor_b32 {v(vXF+2)}, 64, {v(vXF)}
          v_xor_b32 {v(vXF+3)}, 96, {v(vXF)}
          s_lshr_b32 {s(sT1)}, {s(sW8)}, 1
          s_lshl_b32 {s(sT0)}, {s(sT1)}, 5
          v_xor_b32 {v(108)}, {s(sT0)}, {v(vXF)}
          s_lshl_b32 {s(sT0)}, {s(sTT)}, 10
          s_add_u32 {s(sT0)}, {s(sT0)}, {L_STAT}
          v_lshl_add_u32 {v(110)}, {v(vT3)}, 3, {s(sT0)}
          s_lshl_b32 {s(sT0)}, {s(sT1)}, 8
          v_add_u32 {v(111)}, {s(sT0)}, {v(110)}
          v_mov_b32 {v(30)}, 0
          v_mov_b32 {v(31)}, 0
          s_mov_b32 {s(sT5)}, {ONES}""")
    for i in range(4):
        A(f"v_mov_b32 {v(96+i)}, {ONES}")
    A(f"""s_lshl_b32 {s(sT0)}, s2, 3
          s_add_u32 {s(sT0)}, {s(sT0)}, {s(sW8)}
          s_cmp_ge_u32 {s(sT0)}, {392 if OPT.get("tw", "23") == "23" else 4096}
          s_cselect_b64 {s(SA,2)}, {s(P_W3,2)}, {s(P_W2,2)}
          s_mov_b32 {s(SA+2)}, 401408
          s_cselect_b32 {s(SA+2)}, 1605632, {s(SA+2)}
          s_cselect_b32 {s(sT1)}, 392, 0
          s_sub_u32 {s(sT0)}, {s(sT0)}, {s(sT1)}
          s_lshl_b32 {s(sRG)}, {s(sT0)}, {10 if OPT.get("tw", "23") == "23" else 8}""")
    A(f"""s_lshl_b32 {s(sT0)}, {s(sP)}, 6
          v_xor_b32 {v(vT0)}, {v(103)}, {v(102)}
          v_xor_b32 {v(vT0)}, {s(sT0)}, {v(vT0)}
          v_add_u32 {v(vT0)}, {v(vT0)}, {v(vTRN)}
          v_lshrrev_b32 {v(vT1)}, 7, {v(vTRN)}
          v_mul_u32_u24 {v(vT1)}, 56, {v(vT1)}
          s_mul_i32 {s(sT0)}, {s(sP)}, 28672
          v_add3_u32 {v(vT1)}, {v(vT1)}, {v(103)}, {s(sT0)}
          s_cmp_eq_u32 {s(sCB)}, 0
          s_cselect_b64 vcc, -1, 0
          v_cndmask_b32 {v(vT0)}, {v(vT0)}, {v(vT1)}, vcc
          v_add_u32 {v(29)}, {LA}, {v(vT0)}""")
    early_stamp(3)
    barrier()
    for kb in range(7):
        dma(sT4, LX + kb * 8192, vWQ, SX, (None, "0"), "X", imm=kb * 128)
    touch("x")
    early_stamp(4)
    A.wait_vm("WA")
    barrier()
    early_stamp(5)
    A(f"s_cmp_ge_u32 {s(sW8)}, 4\ns_cbranch_scc1 L_att")
    return list(A.vm)


def touch(where):
    if OPT.get("tat", "p1") != where:
        return
    A(f"v_lshlrev_b32 {v(vT0)}, 7, {v(vLANE)}\ns_mov_b64 exec, {255 if OPT.get('tw', '23') == '23' else 3}")
    A.vmem(f"buffer_load_dword {a(127)}, {v(vT0)}, {s(SA,4)}, {s(sRG)} offen", "t")
    A("s_mov_b64 exec, -1")


def stat_part(between):
    for j in range(7):
        A.ds(f"ds_read_b128 {v(SXR[j],4)}, {v(108)} offset:{j*8192}", ("sx", j))
    between()
    for j in range(7):
        A.wait_lg(("sx", j))
        for i in range(4):
            r = SXR[j] + i
            A(f"v_dot2c_f32_bf16 {v(30)}, {s(sT5)}, {v(r)}\nv_dot2c_f32_bf16 {v(31)}, {v(r)}, {v(r)}")
    A("s_nop 2")
    halves(30, vT2)
    halves(31, vT3)
    A(f"v_add_f32 {v(30)}, {v(30)}, {v(vT2)}\nv_add_f32 {v(31)}, {v(31)}, {v(vT3)}")
    A.ds(f"ds_write_b64 {v(111)}, {v(30,2)}", "statw")
    A.drain_lg()


def barrier():
    A("s_barrier")


def stat_read():
    for q in range(4):
        A.ds(f"ds_read_b64 {v(112+2*q,2)}, {v(110)} offset:{q*256}", "stat")


def stat_fin(vM, vVar):
    A.wait_lg("stat")
    for op in stat_fin_ops(vM, vVar):
        A(op)


def stat_fin_ops(vM, vVar):
    return (f"""v_add_f32 {v(112)}, {v(112)}, {v(114)}
          v_add_f32 {v(113)}, {v(113)}, {v(115)}
          v_add_f32 {v(116)}, {v(116)}, {v(118)}
          v_add_f32 {v(117)}, {v(117)}, {v(119)}
          v_add_f32 {v(112)}, {v(112)}, {v(116)}
          v_add_f32 {v(113)}, {v(113)}, {v(117)}
          v_mul_f32 {v(vM)}, {f32(1/448)}, {v(112)}
          v_mul_f32 {v(112)}, {v(vM)}, {v(vM)}
          v_mul_f32 {v(113)}, {f32(1/448)}, {v(113)}
          v_sub_f32 {v(113)}, {v(113)}, {v(112)}
          v_max_f32 {v(vVar)}, 0, {v(113)}""").split("\n")


def own_slot(base):
    return (f"s_lshl_b32 {s(sT0)}, {s(sTB)}, 3\ns_add_u32 {s(sT0)}, {s(sT0)}, {s(sCB)}\n"
            f"s_lshl_b32 {s(sT0)}, {s(sT0)}, 7\ns_add_u32 {s(sT0)}, {s(sT0)}, {base}")


late = []


def mlp(vm_entry):
    A.vm = list(vm_entry)
    vXD, vX1P, vW, vW3, vM, vR, vWA = 8, 16, 24, 26, 27, 28, 29
    vRA, vRB = [2, 3], [25, 31]
    acc, cs, ring, ones = 32, 48, 64, 96
    xnear, hnear = "x" in OPT.get("near", "xo"), "h" in OPT.get("near", "xo")
    A("s_setprio " + OPT.get("prio", "2"))
    vXA = 124
    setup = []
    for r, p, n in ((S2, P_W2, 401408), (SQ, P_W3, 1605632), (S4, P_W4, 1605632), (SO, P_WO, 401408), (SOUT, P_OUT, 1835008)):
        setup += [f"s_mov_b64 {s(r,2)}, {s(p,2)}", f"s_mov_b32 {s(r+2)}, {n}", f"s_mov_b32 {s(r+3)}, 0x20000"]
    setup += f"""s_max_u32 {s(sT1)}, {s(sCB)}, 1
          s_sub_u32 {s(sT1)}, {s(sT1)}, 1
          s_lshl_b32 {s(sT4)}, {s(sT1)}, 1
          s_add_u32 {s(sT4)}, {s(sT4)}, {s(sP)}
          s_mul_i32 {s(sPA)}, {s(sW)}, 14336
          s_mul_i32 {s(sPB)}, {s(sW)}, 11264
          s_add_u32 {s(sPB)}, {s(sPB)}, {LQ}
          s_mul_i32 {s(sB1)}, {s(sW)}, {112*896}
          s_mul_i32 {s(sB4)}, {s(sW)}, {448*896}
          s_and_b32 {s(sR)}, {s(sTB)}, 3
          s_lshl_b32 {s(sR)}, {s(sR)}, 1
          s_add_u32 {s(sR)}, {s(sR)}, {s(sCB)}
          s_cmp_ge_u32 {s(sR)}, 7
          s_cselect_b32 {s(sT0)}, 7, 0
          s_sub_u32 {s(sR)}, {s(sR)}, {s(sT0)}
          v_mul_u32_u24 {v(vT0)}, 896, {v(vC8)}
          s_lshl_b32 {s(sT0)}, {s(sT1)}, 7
          v_add3_u32 {v(vW)}, {v(vT0)}, {v(vC7)}, {s(sT0)}
          v_mul_u32_u24 {v(vT0)}, 3584, {v(vC8)}
          s_lshl_b32 {s(sT0)}, {s(sT1)}, 9
          s_lshl_b32 {s(sT2)}, {s(sW)}, 7
          s_add_u32 {s(sT0)}, {s(sT0)}, {s(sT2)}
          v_add3_u32 {v(vW3)}, {v(vT0)}, {v(vC7)}, {s(sT0)}
          s_lshl_b32 {s(sT0)}, {s(sP)}, 6
          v_xor_b32 {v(103)}, {v(103)}, {v(102)}
          v_xor_b32 {v(102)}, {s(sT0)}, {v(103)}
          s_lshl_b32 {s(sT3)}, {s(sT1)}, 13
          v_lshrrev_b32 {v(vT1)}, 5, {v(vLANE)}
          v_lshlrev_b32 {v(vT2)}, 4, {v(vT1)}
          v_xor_b32 {v(vXA)}, {v(vXF)}, {v(vT2)}
          v_xor_b32 {v(vXA)}, {s(sT0)}, {v(vXA)}
          v_lshl_add_u32 {v(vXA)}, {v(vT1)}, 3, {v(vXA)}
          v_add_u32 {v(vXA)}, {s(sT3)}, {v(vXA)}
          v_xor_b32 {v(vXA+1)}, 16, {v(vXA)}
          v_xor_b32 {v(vXA+2)}, 32, {v(vXA)}
          v_xor_b32 {v(vXA+3)}, 48, {v(vXA)}""".split("\n")

    def colsums(kstride, second):
        def step(ks):
            if ks < 28:
                tr(("a", 4 * ks), vWA, ks * kstride, second, ("w", ks))
            if ks >= 4:
                A.wait_lg(("w", ks - 4))
                mfma(v(cs, 16), a(4 * (ks - 4), 4), v(ones, 4), 0 if ks == 4 else None)
        weave(A, [lambda ks=ks: step(ks) for ks in range(32)], [lambda t=t: A(t) for t in setup])

    A(f"s_cmp_eq_u32 {s(sCB)}, 0\ns_cbranch_scc1 L_cskv")
    colsums(2048, 512)
    A.label("L_csdone")
    late.append(lambda: (A.label("L_cskv"), colsums(896, 224), A("s_branch L_csdone")))
    early_stamp(6)
    A.wait_vm("X")
    barrier()
    early_dump()
    stamp()
    NX = 6

    def xr(ks):
        A.ds(f"ds_read_b128 {v(ring + 4 * (ks % NX), 4)}, {v(vXF + (ks & 3))} offset:{(ks >> 2) * 8192}", ("x", ks))

    def first():
        for ks in range(NX - 1):
            xr(ks)
        for g in range(4):
            A.ds(f"ds_read_b64 {v(vXD+2*g,2)}, {v(vXA+g)}", "xd")
    stat_part(first)
    barrier()
    vC1g, vC2g, vRI, vR2 = 120, 121, 122, 123
    ne2 = int(OPT.get("ne2", 0))

    def w2dma(j, hs=(0, 1)):
        base, off = (sT3, LA + 24576 + j * 2048) if j < ne2 else (sPA, j * 2048)
        image(base, off, vW, S2, lambda e: f"s_add_u32 {s(sT0)}, {s(sB1)}, {j * 16 * 896 + e}", 896, "W2", hs)
    A(f"s_lshl_b32 {s(sT3)}, {s(sW)}, 13")
    fin = stat_fin_ops(vM, vR) + f"""v_add_f32 {v(vT0)}, {f32(EPS)}, {v(vR)}
          v_rsq_f32 {v(vT1)}, {v(vT0)}
          v_mov_b32 {v(vT3)}, {f32(EPS)}
          v_mul_f32 {v(vT2)}, {v(vT1)}, {v(vT1)}
          v_fma_f32 {v(vT2)}, {v(vT2)}, {v(vR)}, {v(vT3)}
          v_rsq_f32 {v(vT2)}, {v(vT2)}
          v_mov_b32 {v(vR)}, {v(vT1)}
          v_mul_f32 {v(vR2)}, {v(vT1)}, {v(vT2)}
          v_rcp_f32 {v(vRI)}, {v(vR2)}
          v_mul_f32 {v(vC1g)}, {f32(GC1)}, {v(vR2)}
          v_mul_f32 {v(vC2g)}, {v(vR2)}, {v(vR2)}
          v_mul_f32 {v(vC2g)}, {v(vC2g)}, {v(vR2)}
          v_mul_f32 {v(vC2g)}, {f32(GC2)}, {v(vC2g)}""".split("\n")
    fin += [f"v_mul_f32 {v(cs+i)}, {v(cs+i)}, {v(vM)}" for i in range(16)]
    for ks in range(28):
        if ks + NX - 1 < 28:
            xr(ks + NX - 1)
        if ks == 0:
            stat_read()
            nonce_issue(30)
        A.wait_lg(("x", ks))
        mfma(v(acc, 16), a(4 * ks, 4), v(ring + 4 * (ks % NX), 4), 0 if ks == 0 else None)
        if ks == 1:
            touch("p1")
        if 3 <= ks < 3 + 2 * ne2:
            skip = A.newlabel("w2")
            A(f"s_cmp_eq_u32 {s(sCB)}, 0\ns_cbranch_scc1 {skip}")
            w2dma((ks - 3) >> 1, ((ks - 3) & 1,))
            A.label(skip)
        if ks == 5:
            A.wait_lg("stat")
        if ks >= 5:
            for _ in range(3):
                if fin:
                    A(fin.pop(0))
    assert not fin
    arrive(C_PA)
    vm_kv = [t for t in A.vm if t != "W2"]
    A(f"s_cmp_eq_u32 {s(sCB)}, 0\ns_cbranch_scc1 L_kv\ns_nop 4")
    for i in range(16):
        A(f"v_sub_f32 {v(acc+i)}, {v(acc+i)}, {v(cs+i)}")
    stamp()
    pk = 64
    vHS = 74
    for i in range(8):
        for op in gelu_ops(acc + 2 * i, 72, pk + i, vC1g, vC2g, vRI):
            A(op)
        if i == 2:
            A(f"""v_and_b32 {v(vT0)}, 31, {v(vLANE)}
                  s_lshl_b32 {s(sT0)}, {s(sGT)}, 5
                  v_add_u32 {v(vT0)}, {s(sT0)}, {v(vT0)}
                  v_lshrrev_b32 {v(vT1)}, 5, {v(vLANE)}
                  v_lshlrev_b32 {v(vT1)}, 15, {v(vT1)}
                  v_lshl_add_u32 {v(vHS)}, {v(vT0)}, 4, {v(vT1)}
                  s_lshl_b32 {s(sT0)}, {s(sT4)}, 17
                  s_add_u32 {s(sT0)}, {s(sT0)}, {HB}
                  s_add_u32 {s(sT1)}, {s(sT0)}, 0x10000""")
        if i in (3, 7):
            A.vmem(f"buffer_store_dwordx4 {v(pk+(i&4),4)}, {v(vHS)}, {s(SW,4)}, {s(sT0 if i == 3 else sT1)} offen sc1", "hst")
    await_cnt(C_PA, 8)
    for j in range(ne2, 7):
        w2dma(j)
    nonce_take(30)
    signal(N_H, own_slot(FH), "hst")
    stamp()
    A(f"""s_add_u32 {s(sT0)}, {s(sT3)}, {LA + 24576}
          v_add3_u32 {v(32)}, {v(vTRD)}, {v(102)}, {s(sT0)}
          v_xor_b32 {v(33)}, 64, {v(32)}
          v_add_u32 {v(vT0)}, {s(sPA)}, {v(vTRD)}
          v_add_u32 {v(vT1)}, {s(sPB)}, {v(vTRD)}
          v_add_u32 {v(vRA[0])}, {v(vT0)}, {v(102)}
          v_xor_b32 {v(vRA[1])}, 64, {v(vRA[0])}
          v_add_u32 {v(vRB[0])}, {v(vT1)}, {v(102)}
          v_xor_b32 {v(vRB[1])}, 64, {v(vRB[0])}""")
    A.wait_vm("W2")
    for j in range(7):
        for b in range(2):
            tr(("a", 8 * j + 4 * b), 32 + b if j < ne2 else vRA[b], j * 2048, 1024, "w2")
    vH = 29
    A(f"""s_add_u32 {s(sT0)}, {s(sP)}, 1
          s_sub_u32 {s(sT1)}, 0, {s(sT0)}
          s_cmp_eq_u32 {s(sTT)}, 0
          s_cselect_b32 {s(sT0)}, {s(sT1)}, {s(sT0)}
          s_lshl_b32 {s(sT1)}, {s(sGT)}, 5
          s_add_u32 {s(sT1)}, {s(sT1)}, {s(sT0)}
          s_xor_b32 {s(sT2)}, {s(sGT)}, 1
          s_lshl_b32 {s(sT2)}, {s(sT2)}, 5
          s_add_u32 {s(sT2)}, {s(sT2)}, {s(sT0)}
          v_and_b32 {v(vT0)}, 31, {v(vLANE)}
          v_lshrrev_b32 {v(vT1)}, 5, {v(vLANE)}
          v_lshlrev_b32 {v(vT1)}, 15, {v(vT1)}
          v_mov_b32 {v(vT3)}, {OOB}""")
    for sl, sr in ((0, sT1), (1, sT2)):
        A(f"""v_add_u32 {v(vT2)}, {s(sr)}, {v(vT0)}
              v_cmp_gt_u32 vcc, 2048, {v(vT2)}
              v_lshl_add_u32 {v(vT2)}, {v(vT2)}, 4, {v(vT1)}
              s_nop 0
              v_cndmask_b32 {v(vH+sl)}, {v(vT3)}, {v(vT2)}, vcc""")

    def rot7(reg, u, scale, base):
        if u == 0:
            A(f"s_mul_i32 {s(reg)}, {s(sR)}, {scale}")
        else:
            A(f"""s_add_u32 {s(reg)}, {s(reg)}, {scale}
                  s_cmp_ge_u32 {s(reg)}, {7 * scale}
                  s_cselect_b32 {s(sT0)}, {7 * scale}, 0
                  s_sub_u32 {s(reg)}, {s(reg)}, {s(sT0)}""")

    def sdma(n, hs=(0, 1)):
        base, off = ring_addr(n % NRING)
        if n < 28:
            if n % 4 == 0 and 0 in hs:
                rot7(sRG, n // 4, 64 * 3584, None)
            image(base, off, vW3, SQ, lambda e: f"s_add_u32 {s(sT0)}, {s(sRG)}, {(n % 4) * 16 * 3584 + e}", 3584, ("S", n), hs)
        elif n < 56:
            p = n - 28
            if p % 2 == 0 and 0 in hs:
                rot7(sRG, (p % 14) // 2, 64 * 896, None)
                A(f"s_add_u32 {s(sT3)}, {s(sRG)}, {s(sB4)}")
            image(base, off, vW, S4, lambda e: f"s_add_u32 {s(sT0)}, {s(sT3)}, {(2 * (p // 14) + p % 2) * 16 * 896 + e}", 896, ("S", n), hs)
        else:
            k = n - 56
            image(base, off, vW, SO, lambda e: f"s_add_u32 {s(sT0)}, {s(sB1)}, {((k >> 1) * 28 + (k & 1) * 16) * 896 + e}", 896, ("S", n), hs)

    def sreg(n, b):
        return 8 * (n % 16) + 4 * b

    def sread(n, bs=(0, 1)):
        base, off = ring_addr(n % NRING)
        if n == 28 and 0 in bs:
            flip()
        A.wait_vm(("S", n))
        for b in bs:
            tr(("a", sreg(n, b)), (vRA if base == sPA else vRB)[b], off, 1024, ("s", n))

    def refill(n, hs=(0, 1)):
        if n < 64:
            A.wait_lg(("s", n - NRING))
            sdma(n, hs)

    def sread_p(n):
        return [lambda: sread(n, (0,)), lambda: sread(n, (1,))]

    def refill_p(n):
        return [lambda: refill(n, (0,)), lambda: refill(n, (1,))] if n < 64 else []

    def flip():
        A(f"s_lshl_b32 {s(sT0)}, {s(sP)}, 6")
        for r in vRA + vRB:
            A(f"v_xor_b32 {v(r)}, {s(sT0)}, {v(r)}")

    flip()
    early = int(OPT.get("early", 3))
    mid = int(OPT.get("mid", 6))
    A.drain_lg()
    arrive(C_W2)
    for n in range(early):
        sdma(n)
    cut("h")

    def setup_h():
        A(f"""v_lshrrev_b32 {v(vT0)}, 3, {v(vLANE)}
              s_sub_u32 {s(sT0)}, {s(sTB)}, 1
              v_add_u32 {v(vT0)}, {s(sT0)}, {v(vT0)}
              v_cmp_le_u32 vcc, 32, {v(vT0)}
              s_lshl_b32 {s(sT0)}, {s(sT0)}, 10
              s_add_u32 {s(sT0)}, {s(sT0)}, {FH}
              v_lshlrev_b32 {v(vT1)}, 7, {v(vLANE)}
              v_add_u32 {v(vT1)}, {s(sT0)}, {v(vT1)}
              s_mov_b32 {s(sINV)}, 0xff010101
              s_mov_b32 {s(sINV+1)}, -1
              s_or_b64 {s(sINV,2)}, {s(sINV,2)}, vcc""")
        lanes_to(vT1)

    acc0, vRW = 104, 120
    A(f"v_mul_f32 {v(vM)}, {v(vM)}, {v(vR)}")
    for i in range(8):
        A(f"""v_lshlrev_b32 {v(88)}, 16, {v(vXD+i)}
              v_and_b32 {v(89)}, 0xffff0000, {v(vXD+i)}
              v_fma_f32 {v(acc0+2*i)}, {v(88)}, {v(vR)}, -{v(vM)}
              v_fma_f32 {v(acc0+2*i+1)}, {v(89)}, {v(vR)}, -{v(vM)}""")
    for sl in range(4):
        A(f"""s_xor_b32 {s(sT0)}, {s(sW)}, {sl}
              s_mul_i32 {s(sT0)}, {s(sT0)}, 14336
              s_add_u32 {s(sT0)}, {s(sT0)}, {LA}
              v_add_u32 {v(vRW+sl)}, {s(sT0)}, {v(vL16)}""")
    await_cnt(C_W2)
    gate(G_H, setup_h, 32, payload=lambda: (A(f"s_mov_b32 {s(sT2)}, 0xfe00"), note_die(34)))
    read_mode()
    if "hold" in OPT:
        await_cnt(G_K, 1)
    stamp()
    hf = 32
    A(f"s_mul_i32 {s(sT5)}, {s(sW)}, {7 << 16}\ns_add_u32 {s(sT5)}, {s(sT5)}, {HB}")
    for j in range(7):
        if j:
            A(f"s_add_u32 {s(sT5)}, {s(sT5)}, 0x10000")
        for sl in range(2):
            A.vmem(f"buffer_load_dwordx4 {v(hf + 8*j + 4*sl, 4)}, {v(vH+sl)}, {s(SW,4)}, {s(sT5)} offen sc1", ("h", j))
    await_cnt(C_QD)
    accs = [v(acc0, 16), a(64, 16), a(80, 16), a(96, 16)]
    for j in range(7):
        A.wait_vm(("h", j))
        for sl in (1, 2, 3, 0):
            mfma(accs[sl], a(8 * j + 4 * (sl >> 1), 4), v(hf + 8 * j + 4 * (sl & 1), 4), 0 if j == 0 and sl else None)
    sdma(early)
    A("s_nop 3")
    offs1 = [(0, i * 1024) for i in range(12)]
    reduce_out([("a", 64), ("a", 80), ("a", 96)], C_R1, [vRW], offs1, [lambda n=n: sdma(n) for n in range(early + 1, early + mid)])

    reduce_in(acc0, 32, C_R1, lambda sl: [vRW + sl], offs1)
    for i in range(8):
        A(f"v_cvt_pk_bf16_f32 {v(vX1P+i)}, {v(acc0+2*i)}, {v(acc0+2*i+1)}")
    A(f"""s_mul_i32 {s(sT0)}, {s(sGT)}, 14
          s_add_u32 {s(sT0)}, {s(sT0)}, {s(sT4)}
          s_lshl_b32 {s(sT1)}, {s(sT0)}, 11
          s_add_u32 {s(sT1)}, {s(sT1)}, {X1}
          s_lshl_b32 {s(sT0)}, {s(sT0)}, 8
          s_add_u32 {s(sT2)}, {s(sT0)}, {ST}""")
    hstore([f"buffer_store_dwordx4 {v(vX1P,4)}, {v(vL16)}, {s(SW,4)}, {s(sT1)} offen",
            f"buffer_store_dwordx4 {v(vX1P+4,4)}, {v(vL16)}, {s(SW,4)}, {s(sT1)} offen offset:1024"], "xst", xnear)
    A(f"""v_add_f32 {v(32)}, {v(acc0)}, {v(acc0+1)}
          v_mul_f32 {v(33)}, {v(acc0)}, {v(acc0)}
          v_fma_f32 {v(33)}, {v(acc0+1)}, {v(acc0+1)}, {v(33)}""")
    for i in range(2, 16):
        A(f"v_add_f32 {v(32)}, {v(32)}, {v(acc0+i)}\nv_fma_f32 {v(33)}, {v(acc0+i)}, {v(acc0+i)}, {v(33)}")
    halves(32, 34)
    halves(33, 35)
    A(f"""v_add_f32 {v(32)}, {v(32)}, {v(34)}
          v_add_f32 {v(33)}, {v(33)}, {v(35)}
          v_lshlrev_b32 {v(34)}, 3, {v(vLANE)}
          s_not_b64 exec, {s(sHI,2)}""")
    hstore([f"buffer_store_dwordx2 {v(32,2)}, {v(34)}, {s(SW,4)}, {s(sT2)} offen"], "xst", xnear)
    A("s_mov_b64 exec, -1")
    stamp()
    cut("p2")
    for n in range(early + mid, NRING):
        sdma(n)
    A(f"""s_mul_i32 {s(sK)}, {s(sTB)}, {2 * 112}
          s_lshl_b32 {s(sT0)}, {s(sCB)}, 2
          s_add_u32 {s(sT0)}, {s(sT0)}, {s(sW)}
          s_sub_u32 {s(sT0)}, {s(sT0)}, 4
          s_lshl_b32 {s(sT0)}, {s(sT0)}, 2
          s_add_u32 {s(sK)}, {s(sK)}, {s(sT0)}
          s_lshl_b32 {s(sK)}, {s(sK)}, 10
          s_add_u32 {s(sK)}, {s(sK)}, {HH}""")
    npre = int(OPT.get("npre", 9))
    xsig = int(OPT.get("xsig", 4))
    for n in range(npre + 1):
        if n < npre:
            sread(n)
        if n == xsig:
            signal(N_X, own_slot(FX), "xst", near=xnear)
        if n >= 1:
            refill(n - 1 + NRING)
    stamp()
    cut("w3")

    def setup_x():
        A(f"""s_lshl_b32 {s(sT0)}, {s(sTB)}, 10
              s_add_u32 {s(sT0)}, {s(sT0)}, {FX}
              s_lshl_b32 {s(sT1)}, {s(sCB)}, 9
              s_add_u32 {s(sT1)}, {s(sT1)}, {FC - 512 - 1024}
              v_lshlrev_b32 {v(vT0)}, 7, {v(vLANE)}
              v_add_u32 {v(vT1)}, {s(sT0)}, {v(vT0)}
              v_add_u32 {v(vT0)}, {s(sT1)}, {v(vT0)}
              s_mov_b64 vcc, 0xff
              v_cndmask_b32 {v(vT1)}, {v(vT0)}, {v(vT1)}, vcc
              s_mov_b32 {s(sINV)}, 0xfffff001
              s_mov_b32 {s(sINV+1)}, -1""")
        lanes_to(vT1)
    gate(G_X, setup_x, 32)
    stamp()
    A(f"""s_mul_i32 {s(sT1)}, {s(sTB)}, {56 * 1024}
          s_add_u32 {s(sT1)}, {s(sT1)}, {X1}
          s_lshl_b32 {s(sT3)}, {s(sW)}, 10
          s_lshl_b32 {s(sT2)}, {s(sR)}, 12
          s_add_u32 {s(sT2)}, {s(sT2)}, {s(sT3)}
          s_add_u32 {s(sT3)}, {s(sT3)}, {LA}""")
    for i in range(7):
        if i:
            A(f"""s_add_u32 {s(sT2)}, {s(sT2)}, 4096
                  s_sub_u32 {s(sT5)}, {s(sT2)}, 28672
                  s_cmp_ge_u32 {s(sT2)}, 28672
                  s_cselect_b32 {s(sT2)}, {s(sT5)}, {s(sT2)}""")
        A(f"s_add_u32 {s(sT5)}, {s(sT1)}, {s(sT2)}")
        for tt in range(2):
            dma(sT3, tt * 28672 + i * 4096, vL16, SW, (f"s_add_u32 {s(sT0)}, {s(sT5)}, {tt * 28672}", s(sT0)), ("x1", min(i // 2, 2)), sc=" sc1")
    vB, stt, cst, bring = 27, 32, 28, 40
    A(f"""v_and_b32 {v(vT0)}, 31, {v(vLANE)}
          v_lshrrev_b32 {v(vT1)}, 5, {v(vLANE)}
          v_mul_u32_u24 {v(vT1)}, {14 * 256}, {v(vT1)}
          v_lshl_add_u32 {v(vT2)}, {v(vT0)}, 3, {v(vT1)}
          s_mul_i32 {s(sT1)}, {s(sTB)}, {28 * 256}
          s_lshl_b32 {s(sT2)}, {s(sW)}, 8
          s_add_u32 {s(sT1)}, {s(sT1)}, {s(sT2)}
          s_add_u32 {s(sT1)}, {s(sT1)}, {ST}
          s_cmp_lt_u32 {s(sW)}, 2
          s_cselect_b32 {s(sT2)}, {s(sT1)}, {OOB}
          v_add_u32 {v(vB)}, {LA}, {v(vL16)}""")
    for i in range(4):
        A.vmem(f"buffer_load_dwordx2 {v(stt+2*i,2)}, {v(vT2)}, {s(SW,4)}, {s(sT1 if i < 3 else sT2)} offen offset:{i*1024} sc1", "st")
    A(f"""s_lshl_b32 {s(sT1)}, {s(sCB)}, 2
          s_add_u32 {s(sT1)}, {s(sT1)}, {s(sW)}
          s_lshl_b32 {s(sT1)}, {s(sT1)}, 9
          s_add_u32 {s(sT1)}, {s(sT1)}, {CS - 2048}
          v_lshlrev_b32 {v(vT3)}, 3, {v(vLANE)}""")
    A.vmem(f"buffer_load_dwordx2 {v(cst,2)}, {v(vT3)}, {s(SW,4)}, {s(sT1)} offen sc1", "cs")
    A.wait_vm(("x1", 0))
    arrive(C_XA)
    await_cnt(C_XA)
    acc4 = [64, 80, 96, 112]

    def bread(ks):
        for tt in range(2):
            A.ds(f"ds_read_b128 {v(bring + 8 * (ks % 3) + 4 * tt, 4)}, {v(vB)} offset:{(tt * 28 + ks) * 1024}", ("b", ks))

    lag = int(OPT.get("lag", 7))
    plan, rstep = {}, {}
    nxt = npre
    for ks in range(28):
        while nxt < 44 and len(plan.get(ks, [])) < 2:
            ready = nxt - 16 < ks and (nxt - NRING < npre or rstep[nxt - NRING] + 1 + lag <= ks)
            if not (ready or (nxt < 28 and nxt - 2 <= ks)):
                break
            plan.setdefault(ks, []).append(nxt)
            rstep[nxt] = ks
            nxt += 1
    assert nxt >= 28 and all(n - 16 < ks and (n >= 28 or n >= ks + 1) for ks in plan for n in plan[ks]), plan
    pend = []
    if "p4" in OPT:
        stamp()
    bread(0)
    bread(1)
    for ks in range(28):
        if ks == 2:
            A.wait_vm(("x1", 1))
            arrive(C_XA)
        if ks == 5:
            await_cnt(C_XA, 8)
        if ks == 8:
            A.wait_vm(["cs", "st", ("x1", 2)])
            A(f"""v_add_f32 {v(stt)}, {v(stt)}, {v(stt+2)}
                  v_add_f32 {v(stt+1)}, {v(stt+1)}, {v(stt+3)}
                  v_add_f32 {v(stt+4)}, {v(stt+4)}, {v(stt+6)}
                  v_add_f32 {v(stt+5)}, {v(stt+5)}, {v(stt+7)}
                  s_lshl_b32 {s(sT0)}, {s(sW)}, 9
                  s_add_u32 {s(sT0)}, {s(sT0)}, {L_STAT}
                  v_add_f32 {v(stt)}, {v(stt)}, {v(stt+4)}
                  v_add_f32 {v(stt+1)}, {v(stt+1)}, {v(stt+5)}
                  v_lshl_add_u32 {v(vT2)}, {v(vLANE)}, 3, {s(sT0)}""")
            A.ds(f"ds_write_b64 {v(vT2)}, {v(stt,2)}", "sw")
            arrive(C_XB)
        if ks == 13:
            await_cnt(C_XB)
            A(f"v_lshlrev_b32 {v(vT2)}, 3, {v(vLANE)}\nv_add_u32 {v(vT2)}, {L_STAT}, {v(vT2)}")
            for q in range(4):
                A.ds(f"ds_read_b64 {v(stt+2*q,2)}, {v(vT2)} offset:{q*512}", "sr")
        A.wait_lg([("b", ks), ("s", ks)])
        acts = [lambda: bread(ks + 2)] if ks + 2 < 28 else []
        rd = [f for n in plan.get(ks, []) for f in sread_p(n)]
        rf = [f for n in pend for f in refill_p(n + NRING)]
        while rd or rf:
            acts += rf[:1] + rd[:1]
            rf, rd = rf[1:], rd[1:]
        pend = plan.get(ks, [])
        gaps([lambda t=t: mfma(v(acc4[t], 16), a(sreg(ks, t >> 1), 4), v(bring + 8 * (ks % 3) + 4 * (t & 1), 4), 0 if ks == 0 else None)
              for t in range(4)], acts)
        if "p4" in OPT and ks in (3, 6, 12, 15, 21):
            stamp()
        if ks == 16:
            A.wait_lg("sr")
            A(f"""v_add_f32 {v(stt)}, {v(stt)}, {v(stt+2)}
                  v_add_f32 {v(stt+1)}, {v(stt+1)}, {v(stt+3)}
                  v_add_f32 {v(stt+4)}, {v(stt+4)}, {v(stt+6)}
                  v_add_f32 {v(stt+5)}, {v(stt+5)}, {v(stt+7)}
                  v_add_f32 {v(stt)}, {v(stt)}, {v(stt+4)}
                  v_add_f32 {v(stt+1)}, {v(stt+1)}, {v(stt+5)}
                  v_add_f32 {v(cst)}, {v(cst)}, {v(cst+1)}""")
        if ks == 17:
            A(f"""v_mul_f32 {v(stt)}, {f32(-1/448)}, {v(stt)}
                  v_mul_f32 {v(stt+1)}, {f32(1/448)}, {v(stt+1)}
                  v_mul_f32 {v(stt+2)}, {v(stt)}, {v(stt)}
                  v_sub_f32 {v(stt+1)}, {v(stt+1)}, {v(stt+2)}
                  v_max_f32 {v(stt+1)}, 0, {v(stt+1)}
                  v_add_f32 {v(stt+1)}, {f32(EPS)}, {v(stt+1)}""")
        if ks == 18:
            halves(stt, stt + 2)
            halves(stt + 1, stt + 3)
            halves(cst, cst + 1)
    arrive(C_P4)
    vAE, vBE, gt, gpk = 40, 48, 56, 40
    for nt in range(2):
        c = cst + nt
        A(f"""v_cvt_pk_bf16_f32 {v(vT0)}, {v(c)}, {v(c)}
              v_and_b32 {v(vT1)}, 0xffff0000, {v(vT0)}
              v_sub_f32 {v(vT1)}, {v(c)}, {v(vT1)}
              v_cvt_pk_bf16_f32 {v(vAE+4*nt)}, {v(c)}, {v(vT1)}
              v_and_b32 {v(vAE+4*nt+1)}, 0xffff, {v(vT0)}
              v_mov_b32 {v(vAE+4*nt+2)}, 0
              v_mov_b32 {v(vAE+4*nt+3)}, 0""")
    for tt in range(2):
        m, b = stt + 2 * tt, vBE + 4 * tt
        A(f"""v_cvt_pk_bf16_f32 {v(vT0)}, {v(m)}, {v(m)}
              v_and_b32 {v(vT1)}, 0xffff0000, {v(vT0)}
              v_sub_f32 {v(vT1)}, {v(m)}, {v(vT1)}
              v_cvt_pk_bf16_f32 {v(vT1)}, {v(vT1)}, 0
              v_cndmask_b32 {v(b)}, {v(vT0)}, 0, {s(sHI,2)}
              v_cndmask_b32 {v(b+1)}, {v(vT1)}, 0, {s(sHI,2)}
              v_mov_b32 {v(b+2)}, 0
              v_mov_b32 {v(b+3)}, 0""")
    A("s_nop 0")
    for t in range(4):
        mfma(v(acc4[t], 16), v(vAE + 4 * (t >> 1), 4), v(vBE + 4 * (t & 1), 4))
    kk = [60, 36]
    for tt in range(2):
        e, k = stt + 2 * tt + 1, kk[tt]
        A(f"""v_rsq_f32 {v(vT0)}, {v(e)}
              s_nop 0
              v_mul_f32 {v(k+2)}, {v(e)}, {v(vT0)}
              v_mul_f32 {v(k)}, {f32(GC1)}, {v(vT0)}
              v_mul_f32 {v(k+1)}, {v(vT0)}, {v(vT0)}
              v_mul_f32 {v(k+1)}, {v(k+1)}, {v(vT0)}
              v_mul_f32 {v(k+1)}, {f32(GC2)}, {v(k+1)}""")
    stamp()
    ops = []
    for t in range(4):
        tt, b = t & 1, t >> 1
        for i in range(8):
            def pair(i=i, t=t, tt=tt):
                for op in gelu_ops(acc4[t] + 2 * i, gt, gpk + 8 * (t & 1) + i, kk[tt], kk[tt] + 1, kk[tt] + 2):
                    A(op)
            ops.append(pair)
            if i in (3, 7):
                def st(c=i >> 2, t=t, tt=tt, b=b):
                    A(f"s_add_u32 {s(sT0)}, {s(sK)}, {(tt * 112 + b * 2) * 1024}")
                    hstore([f"buffer_store_dwordx4 {v(gpk+8*(t&1)+4*c,4)}, {v(vL16)}, {s(SW,4)}, {s(sT0)} offen offset:{c*1024}"], ("Hst", b), hnear)
                ops.append(st)
        if t == 2:
            ops.append(lambda: signal(N_G, own_slot(FG), ("Hst", 0), near=hnear))
    fill = [f for n in pend for f in refill_p(n + NRING)]
    for n in range(nxt, 44):
        fill.append(lambda n=n: sread(n))
        if n > nxt:
            fill += refill_p(n - 1 + NRING)
    weave(A, ops, fill)
    if nxt < 44:
        refill(43 + NRING)
    vHH = 26
    A(f"""s_mul_i32 {s(sT0)}, {s(sGT)}, 4
          s_add_u32 {s(sT0)}, {s(sT0)}, {s(sW)}
          s_mul_i32 {s(sT0)}, {s(sT0)}, {28 * 1024}
          v_add_u32 {v(vHH)}, {s(sT0)}, {v(vL16)}
          s_xor_b32 {s(sT0)}, {s(sGT)}, 1
          s_mul_i32 {s(sT0)}, {s(sT0)}, 4
          s_add_u32 {s(sT0)}, {s(sT0)}, {s(sW)}
          s_mul_i32 {s(sT0)}, {s(sT0)}, {28 * 1024}
          v_add_u32 {v(vHH+1)}, {s(sT0)}, {v(vL16)}""")
    acc6 = [64, 80, 96, 112]
    for i in range(8):
        A(f"v_lshlrev_b32 {v(64+2*i)}, 16, {v(vX1P+i)}\nv_and_b32 {v(65+2*i)}, 0xffff0000, {v(vX1P+i)}")
    stamp()
    cut("w4")

    def setup_tb(base, inv):
        def f():
            A(f"""s_lshl_b32 {s(sT0)}, {s(sTB)}, 10
                  s_add_u32 {s(sT0)}, {s(sT0)}, {base}
                  v_lshlrev_b32 {v(vT1)}, 7, {v(vLANE)}
                  v_add_u32 {v(vT1)}, {s(sT0)}, {v(vT1)}
                  s_mov_b32 {s(sINV)}, {inv}
                  s_mov_b32 {s(sINV+1)}, -1""")
            lanes_to(vT1)
        return f
    peek_issue(setup_tb(FG, 0xffffff01), 34, 36)
    vO, vOUT = 28, 30
    A(f"""s_lshl_b32 {s(sT0)}, {s(sGT)}, 2
          s_add_u32 {s(sT0)}, {s(sT0)}, {s(sW)}
          s_lshl_b32 {s(sT0)}, {s(sT0)}, 13
          v_add_u32 {v(vO)}, {s(sT0)}, {v(vL16)}
          v_xor_b32 {v(vO+1)}, 0x8000, {v(vO)}
          v_and_b32 {v(32)}, 31, {v(vLANE)}
          s_lshl_b32 {s(sT0)}, {s(sGT)}, 5
          v_add_u32 {v(32)}, {s(sT0)}, {v(32)}
          v_mul_u32_u24 {v(32)}, 896, {v(32)}
          v_lshrrev_b32 {v(33)}, 5, {v(vLANE)}
          v_lshl_add_u32 {v(32)}, {v(33)}, 4, {v(32)}
          s_lshl_b32 {s(sT0)}, {s(sT4)}, 6
          v_add_u32 {v(vOUT)}, {s(sT0)}, {v(32)}""")
    signal(N_G2, own_slot(FG2), ("Hst", 1), near=hnear)
    peek_check(34, 36)
    stamp()
    hslots = [16, 20, 32, 36, 40, 44, 48, 52, 56, 60]
    NH = int(OPT.get("nh", 10))
    hsc = "" if "hplain" in OPT else " sc1"

    def bload(n):
        p, sl = n >> 1, n & 1
        if n < 56:
            if p % 2 == 0 and sl == 0:
                rot7(sRH, (p % 14) // 2, 4096, None)
                A(f"s_add_u32 {s(sV)}, {s(sRH)}, {HH}")
            addr, imm = vHH + sl, (2 * (p // 14) + p % 2) * 1024
        else:
            if p % 4 == 0 and sl == 0:
                A(f"s_mov_b32 {s(sV)}, {OB + 1024 * (p - 28)}")
            addr, imm = vO + sl, (p & 3) * 1024
        A.vmem(f"buffer_load_dwordx4 {v(hslots[n % NH], 4)}, {v(addr)}, {s(SW,4)}, {s(sV)} offen offset:{imm}{hsc}", ("H", n))

    def slotoffs(first):
        return [(0, i * 1024) if i < 14 else (1, (i - 14) * 1024) for i in range(first, first + 12)]

    vRW2 = [24, 25]
    for n in range(NH):
        bload(n)
    if OPT.get("tail", "ring") == "ring":
        vG, vA2 = 64, [24, 25, 26, 27, 2, 3, 31, 29 if NH == 10 else 63]

        def partner(sl):
            A(f"""s_xor_b32 {s(sT0)}, {s(sW)}, {sl}
                  s_mul_i32 {s(sT1)}, {s(sT0)}, 14336
                  s_mul_i32 {s(sT0)}, {s(sT0)}, 11264
                  s_add_u32 {s(sT0)}, {s(sT0)}, {LQ}
                  v_add_u32 {v(vA2[2*sl])}, {s(sT1)}, {v(vL16)}
                  v_add_u32 {v(vA2[2*sl+1])}, {s(sT0)}, {v(vL16)}""")
        side = {28: [], 29: [], 30: [], 31: [], 32: [], 33: [], 34: [], 35: []}
        for i in range(12):
            side[28 + (i + 2) // 5 + (1 if i < 0 else 0)].append(
                lambda i=i: A.ds(f"ds_write_b128 {v(24)}, {v(80 + 4 * i, 4)} offset:{i * 1024}", "red"))
        side[30].append(lambda: arrive(C_R2))
        side[32].append(lambda: await_cnt(C_R2))
        for sl in (1, 2, 3):
            side[32].append(lambda sl=sl: [A.ds(f"ds_read_b128 {v(64 + 16 * sl + 4 * q, 4)}, {v(vA2[2*sl])} offset:{((sl - 1) * 4 + q) * 1024}", ("rd", sl)) for q in range(4)])
        valu = []
        for sl in (1, 2, 3):
            valu.append(lambda sl=sl: A.wait_lg(("rd", sl)))
            valu += [lambda sl=sl, i=i: A(f"v_add_f32 {v(vG+i)}, {v(vG+i)}, {v(64 + 16 * sl + i)}") for i in range(16)]
        for i in range(8):
            y = vG + 2 * i
            valu += [lambda t=t: A(t) for t in f"""v_mul_f32 {v(80)}, {f32(-LOG2E)}, {v(y)}
                  v_mul_f32 {v(81)}, {f32(-LOG2E)}, {v(y+1)}
                  v_exp_f32 {v(80)}, {v(80)}
                  v_exp_f32 {v(81)}, {v(81)}
                  v_add_f32 {v(80)}, 1.0, {v(80)}
                  v_add_f32 {v(81)}, 1.0, {v(81)}
                  v_rcp_f32 {v(80)}, {v(80)}
                  v_rcp_f32 {v(81)}, {v(81)}
                  v_mul_f32 {v(y)}, {v(y)}, {v(80)}
                  v_mul_f32 {v(y+1)}, {v(y+1)}, {v(81)}""".split("\n")]
        nin = int(OPT.get("nin", 90))
        for n, f in enumerate(valu[:nin]):
            side[33 + (3 * n) // nin].append(f)
        for j in range(36):
            A.wait_vm(("H", 2 * j + 1))
            A.wait_lg(("s", 28 + j))
            if 2 * j + NH in (28, 56):
                peek_check()

            def mm(sl):
                d = v(acc6[sl], 16) if j < 28 else a(16 * sl, 16)
                mfma(d, a(sreg(28 + j, sl >> 1), 4), v(hslots[(2 * j + (sl & 1)) % NH], 4), 0 if (j == 0 and sl) or j == 28 else None)
            rd = sread_p(43 + j) if 1 <= j <= 20 else [None, None]
            rf = (refill_p(43 + j - 1 + NRING) if j >= 2 else []) or [None, None]
            ld = [(lambda n=n: bload(n)) if n < 72 else None for n in (2 * j + NH, 2 * j + NH + 1)]
            ex = side.get(j, [])
            lo = 2 if j == 28 else 0
            cut_ = [0] * (lo + 1) + [-(-len(ex) * (g + 1) // (4 - lo)) for g in range(4 - lo)]
            for g, (sl, todo) in enumerate(((0, [rf[0]]), (2, [ld[0], rd[0]]), (1, [rf[1]]), (3, [ld[1], rd[1]]))):
                mm(sl)
                if j == 28 and g == 1:
                    A("s_nop 6")
                for f in todo + ex[cut_[g]:cut_[g + 1]]:
                    if f:
                        f()
            if 2 * j + NH == 22:
                peek_issue(setup_tb(FG2, 0xffffff01))
            if 2 * j + NH == 50:
                peek_issue(setup_tb(FO, 0xffffff00))
            if j == 26:
                A.drain_lg()
                A(f"v_add_u32 {v(24)}, {s(sPA)}, {v(vL16)}\nv_add_u32 {v(25)}, {s(sPB)}, {v(vL16)}")
                partner(1)
                partner(2)
            if j == 27:
                stamp()
            if j == 31:
                partner(3)
        stamp()
        left = valu[nin:]
        for f in left[:12]:
            f()
        reduce_out([("a", 16), ("a", 32), ("a", 48)], C_R3, [24, 25], slotoffs(12), left[12:])
        for i in range(16):
            A(f"v_accvgpr_read_b32 {v(32+i)}, {a(i)}")
        stamp()
        reduce_in(32, 80, C_R3, lambda sl: vA2[2 * sl:2 * sl + 2], slotoffs(12))
        vS = 32
    else:
        vA2 = [24, 25, 26, 27, 2, 3, 31, 63]
        assert NH <= 8

        def partner(sl):
            A(f"""s_xor_b32 {s(sT0)}, {s(sW)}, {sl}
                  s_mul_i32 {s(sT1)}, {s(sT0)}, 14336
                  s_mul_i32 {s(sT0)}, {s(sT0)}, 11264
                  s_add_u32 {s(sT0)}, {s(sT0)}, {LQ}
                  v_add_u32 {v(vA2[2*sl])}, {s(sT1)}, {v(vL16)}
                  v_add_u32 {v(vA2[2*sl+1])}, {s(sT0)}, {v(vL16)}""")
        for j in range(28):
            A.wait_vm(("H", 2 * j + 1))
            A.wait_lg(("s", 28 + j))
            if 2 * j + NH == 28:
                peek_check()
            rd = sread_p(43 + j) if 1 <= j <= 20 else [None, None]
            rf = (refill_p(43 + j - 1 + NRING) if j >= 2 else []) or [None, None]
            ld = [(lambda n=n: bload(n)) if n < 56 else None for n in (2 * j + NH, 2 * j + NH + 1)]
            for sl, todo in ((0, [rf[0]]), (2, [ld[0], rd[0]]), (1, [rf[1]]), (3, [ld[1], rd[1]])):
                mfma(v(acc6[sl], 16), a(sreg(28 + j, sl >> 1), 4), v(hslots[(2 * j + (sl & 1)) % NH], 4), 0 if j == 0 and sl else None)
                for f in todo:
                    if f:
                        f()
            if 2 * j + NH == 22:
                peek_issue(setup_tb(FG2, 0xffffff01))
            if j == 25:
                A.drain_lg()
                peek_issue(setup_tb(FO, 0xffffff00), 60, 62)
                A(f"s_mov_b32 {s(sRH)}, 0\ns_mov_b32 {s(sV)}, {OB}\ns_mov_b32 {s(sRG)}, {OB + 4096}")
            if j == 26:
                A(f"v_add_u32 {v(24)}, {s(sPA)}, {v(vL16)}\nv_add_u32 {v(25)}, {s(sPB)}, {v(vL16)}")
                for sl in (1, 2, 3):
                    partner(sl)
        stamp()

        def oload(kq):
            for sl in range(2):
                A.vmem(f"buffer_load_dwordx4 {a(8 * kq + 4 * sl, 4)}, {v(vO+sl)}, {s(SW,4)}, {s(sV if kq < 4 else sRG)} offen offset:{(kq & 3) * 1024} sc1", ("o", kq))

        def try_o(last):
            done, again = A.newlabel("od"), A.newlabel("oa")
            A(f"s_cmp_lg_u32 {s(sRH)}, 0\ns_cbranch_scc1 {done}")
            A.vm = ["peek"]
            if last:
                peek_check(60, 62)
            else:
                A(f"""s_waitcnt vmcnt(0)
                      v_cmp_eq_u64 vcc, {s(sN,2)}, {v(60,2)}
                      s_or_b64 vcc, vcc, {s(sINV,2)}
                      s_cmp_eq_u64 vcc, -1
                      s_cbranch_scc0 {again}
                      s_mov_b32 {s(sRH)}, 1""")
            A.vm = []
            for kq in range(4):
                oload(kq)
            if not last:
                A(f"s_branch {done}")
                A.label(again)
                A(f"buffer_load_dwordx2 {v(60,2)}, {v(62)}, {s(SW,4)}, 0 offen sc1")
            A.label(done)

        try_o(False)
        A("s_nop 5")
        reduce_out([("v", 80), ("v", 96), ("v", 112)], C_R2, vA2[:2], slotoffs(0))
        try_o(False)
        vG = 32
        reduce_in(64, 80, C_R2, lambda sl: vA2[2 * sl:2 * sl + 2], slotoffs(0))
        for i in range(8):
            if i in (0, 4):
                try_o(False)
            y = 64 + 2 * i
            A(f"""v_mul_f32 {v(80)}, {f32(-LOG2E)}, {v(y)}
                  v_mul_f32 {v(81)}, {f32(-LOG2E)}, {v(y+1)}
                  v_exp_f32 {v(80)}, {v(80)}
                  v_exp_f32 {v(81)}, {v(81)}
                  v_add_f32 {v(80)}, 1.0, {v(80)}
                  v_add_f32 {v(81)}, 1.0, {v(81)}
                  v_rcp_f32 {v(80)}, {v(80)}
                  v_rcp_f32 {v(81)}, {v(81)}
                  v_mul_f32 {v(vG+2*i)}, {v(y)}, {v(80)}
                  v_mul_f32 {v(vG+2*i+1)}, {v(y+1)}, {v(81)}""")
        try_o(True)
        stamp()
        for kq in range(8):
            A.wait_vm(("o", kq))
            for n, sl in enumerate((1, 2, 3, 0)):
                mfma(v(acc6[sl], 16), a(sreg(56 + kq, sl >> 1), 4), a(8 * kq + 4 * (sl & 1), 4), 0 if kq == 0 else None)
                if n == 0 and kq < 4:
                    oload(kq + 4)
        stamp()
        A("s_nop 7\ns_nop 1")
        reduce_out([("v", 80), ("v", 96), ("v", 112)], C_R3, vA2[:2], slotoffs(12))
        reduce_in(64, 80, C_R3, lambda sl: vA2[2 * sl:2 * sl + 2], slotoffs(12))
        vS = 64
    for i in range(8):
        y = vS + 2 * i
        A(f"""v_lshlrev_b32 {v(80)}, 16, {v(vXD+i)}
              v_and_b32 {v(81)}, 0xffff0000, {v(vXD+i)}
              v_fma_f32 {v(80)}, {v(y)}, {v(vG+2*i)}, {v(80)}
              v_fma_f32 {v(81)}, {v(y+1)}, {v(vG+2*i+1)}, {v(81)}
              v_cvt_pk_bf16_f32 {v(84+i)}, {v(80)}, {v(81)}""")
    A("s_nop 1")
    for p in range(2):
        A(f"v_permlane32_swap_b32 {v(84+4*p)}, {v(86+4*p)}\nv_permlane32_swap_b32 {v(85+4*p)}, {v(87+4*p)}")
    for p in range(2):
        A.vmem(f"buffer_store_dwordx4 {v(84+4*p,4)}, {v(vOUT)}, {s(SOUT,4)}, 0 offen offset:{32*p} {OPT.get('osc', '').replace('+', ' ')}", "out")
    A("s_memrealtime s[98:99]\ns_waitcnt lgkmcnt(0)")
    A.label("L_pad")
    A(f"""s_memrealtime s[94:95]
          s_waitcnt lgkmcnt(0)
          s_sub_u32 s94, s94, s98
          s_cmp_lt_u32 s94, {int(float(OPT["hold2"]) * 100)}
          s_cbranch_scc1 L_pad""")
    A("s_endpgm")

    for blk in late:
        A.lg = []
        blk()
    A.label("L_kv")
    A.vm = list(vm_kv)
    A.lg = []
    A(f"""v_mul_u32_u24 {v(vT0)}, 3584, {v(vC8)}
          s_min_u32 {s(sT2)}, {s(sTB)}, 27
          s_lshl_b32 {s(sT0)}, {s(sT2)}, 7
          s_mul_i32 {s(sT1)}, {s(sW)}, {112 * 3584}
          s_add_u32 {s(sT0)}, {s(sT0)}, {s(sT1)}
          v_add3_u32 {v(vW3)}, {v(vT0)}, {v(vC7)}, {s(sT0)}""")
    for i in range(16):
        A(f"v_sub_f32 {v(acc+i)}, {v(acc+i)}, {v(cs+i)}\nv_mul_f32 {v(acc+i)}, {v(acc+i)}, {v(vR)}")
    A(f"s_mov_b64 exec, {s(sHI,2)}")
    for i in range(12, 16):
        A(f"v_mov_b32 {v(acc+i)}, 0")
    A("s_mov_b64 exec, -1")
    for i in range(8):
        A(f"v_cvt_pk_bf16_f32 {v(pk+i)}, {v(acc+2*i)}, {v(acc+2*i+1)}")
    A(f"""s_lshl_b32 {s(sT4)}, {s(sGT)}, 12
          s_cmp_eq_u32 {s(sP)}, 1
          s_cbranch_scc1 L_v
          s_mov_b64 exec, {s(sHI,2)}
          v_mov_b32 {v(pk+6)}, {ONES}
          v_mov_b32 {v(pk+7)}, 0x3f80
          s_mov_b64 exec, -1
          buffer_store_dwordx4 {v(pk,4)}, {v(vL16)}, {s(SW,4)}, {s(sT4)} offen sc1
          buffer_store_dwordx4 {v(pk+4,4)}, {v(vL16)}, {s(SW,4)}, {s(sT4)} offen offset:1024 sc1
          v_mul_f32 {v(72)}, {v(acc)}, {v(acc)}""")
    for i in range(1, 16):
        A(f"v_fma_f32 {v(72)}, {v(acc+i)}, {v(acc+i)}, {v(72)}")
    halves(72, 73)
    A(f"""v_add_f32 {v(72)}, {v(72)}, {v(73)}
          v_mov_b32 {v(73)}, {L_KM}
          ds_max_u32 {v(73)}, {v(72)}
          s_branch L_kvdone""")
    A.label("L_v")
    A(f"""s_mov_b64 exec, {s(sHI,2)}
          v_mov_b32 {v(pk+6)}, 0x3f80
          s_mov_b64 exec, -1
          s_lshl_b32 {s(sT0)}, {s(sTT)}, 12
          s_add_u32 {s(sT0)}, {s(sT0)}, {L_VT}
          v_and_b32 {v(72)}, 31, {v(vLANE)}
          v_bfe_u32 {v(74)}, {v(72)}, 1, 1
          v_lshlrev_b32 {v(74)}, 6, {v(74)}
          v_lshrrev_b32 {v(73)}, 5, {v(vLANE)}
          v_lshl_add_u32 {v(73)}, {v(73)}, 3, {v(74)}
          v_lshl_add_u32 {v(72)}, {v(72)}, 7, {v(73)}
          v_add_u32 {v(72)}, {s(sT0)}, {v(72)}
          v_add3_u32 {v(73)}, {v(vTRD)}, {v(103)}, {s(sT0)}""")
    for g in range(4):
        A.ds(f"ds_write_b64 {v(72)}, {v(pk+2*g,2)} offset:{16*g}", "vt")
    for c in range(2):
        tr(("v", 76 + 4 * c), 73, c * 2048, 1024, "vr")
    A.drain_lg()
    A(f"buffer_store_dwordx4 {v(76,4)}, {v(vL16)}, {s(SW,4)}, {s(sT4)} offen offset:2048 sc1")
    A(f"buffer_store_dwordx4 {v(80,4)}, {v(vL16)}, {s(SW,4)}, {s(sT4)} offen offset:3072 sc1")
    A.label("L_kvdone")
    A.vm += ["kv", "kv"]
    nonce_take(30)
    signal(N_K, f"s_lshl_b32 {s(sT0)}, {s(sTB)}, 7\ns_add_u32 {s(sT0)}, {s(sT0)}, {FK}", "kv", payload=L_KM)
    stamps["n"] = 2
    stamp()
    await_cnt(C_PA, 8)
    for j in range(7):
        image(sPA, j * 2048, vW3, SQ, lambda e, j=j: f"s_mov_b32 {s(sT0)}, {j * 16 * 3584 + e}", 3584, "W3")
    A(f"v_add3_u32 {v(72)}, {v(vTRD)}, {v(103)}, {s(sPA)}\nv_xor_b32 {v(73)}, 64, {v(72)}")
    A.wait_vm("W3")
    for i in range(14):
        tr(("a", 4 * i), 72 + (i & 1), (i >> 1) * 2048, 1024, ("c", i))
    for i in range(14):
        A.wait_lg(("c", i))
        mfma(v(32 + 16 * (i & 1), 16), v(ones, 4), a(4 * i, 4), 0 if i < 2 else None)
    A(f"""s_lshl_b32 {s(sT0)}, {s(sW)}, 8
          s_add_u32 {s(sT0)}, {s(sT0)}, {LA + 32768}
          v_lshlrev_b32 {v(73)}, 2, {v(vLANE)}
          v_add_u32 {v(74)}, {s(sT0)}, {v(73)}
          s_nop 7
          v_cndmask_b32 {v(72)}, {v(32)}, {v(48)}, {s(sHI,2)}
          ds_write_b32 {v(74)}, {v(72)}""")
    arrive(C_R1)
    A(f"s_cmp_gt_u32 {s(sTB)}, 27\ns_cbranch_scc1 L_kvend\ns_cmp_lg_u32 {s(sW)}, 0\ns_cbranch_scc1 L_kvend")
    await_cnt(C_R1)
    A(f"""ds_read_b32 {v(75)}, {v(74)} offset:256
          ds_read_b32 {v(76)}, {v(74)} offset:512
          ds_read_b32 {v(77)}, {v(74)} offset:768
          s_lshl_b32 {s(sT1)}, {s(sTB)}, 9
          s_add_u32 {s(sT1)}, {s(sT1)}, {CS}
          v_lshlrev_b32 {v(74)}, 3, {v(vLANE)}
          s_waitcnt lgkmcnt(0)
          v_add_f32 {v(72)}, {v(72)}, {v(75)}
          v_add_f32 {v(73)}, {v(76)}, {v(77)}
          buffer_store_dwordx2 {v(72,2)}, {v(74)}, {s(SW,4)}, {s(sT1)} offen sc1
          s_lshl_b32 {s(sT0)}, {s(sTB)}, 7
          s_add_u32 {s(sT0)}, {s(sT0)}, {FC}
          v_mov_b32 {v(vT0)}, {s(sN)}
          v_mov_b32 {v(vT1)}, {s(sN+1)}
          v_mov_b32 {v(vT3)}, 0
          s_waitcnt vmcnt(0)
          s_mov_b64 exec, 1
          buffer_store_dwordx2 {v(vT0,2)}, {v(vT3)}, {s(SW,4)}, {s(sT0)} offen sc1
          s_mov_b64 exec, -1""")
    A.label("L_kvend")

    gate(G_H, setup_tb(FH, 0xffffff01), 32, payload=lambda: (A(f"s_mov_b32 {s(sT2)}, 0xfe"), note_die(34)))
    arrive(C_P4)
    read_mode()
    A(f"""s_lshl_b32 {s(sT0)}, {s(sTB)}, 2
          s_add_u32 {s(sT0)}, {s(sT0)}, {s(sW)}
          s_mul_i32 {s(sT1)}, {s(sT0)}, 12544
          s_mul_i32 {s(sT2)}, {s(sT0)}, 3136
          v_lshlrev_b32 {v(74)}, 7, {v(vLANE)}""")
    if "notouch" not in OPT:
        A.vmem(f"buffer_load_dword {v(84)}, {v(74)}, {s(S4,4)}, {s(sT1)} offen", "t")
        A(f"s_add_u32 {s(sT1)}, {s(sT1)}, 8192\ns_bfm_b64 exec, 34, 0")
        A.vmem(f"buffer_load_dword {v(85)}, {v(74)}, {s(S4,4)}, {s(sT1)} offen", "t")
        A("s_bfm_b64 exec, 25, 0")
        A.vmem(f"buffer_load_dword {v(86)}, {v(74)}, {s(SO,4)}, {s(sT2)} offen", "t")
        A("s_mov_b64 exec, -1")
    A(f"""s_setprio 0
          s_cmp_eq_u32 {s(sLOC)}, 0
          s_cbranch_scc1 L_kvquit
          v_lshlrev_b32 {v(36)}, 7, {v(vLANE)}
          v_and_b32 {v(37)}, 7, {v(vLANE)}
          v_lshrrev_b32 {v(38)}, 3, {v(vLANE)}
          v_lshlrev_b32 {v(38)}, 15, {v(38)}
          v_lshl_add_u32 {v(37)}, {v(37)}, 7, {v(38)}
          s_lshl_b32 {s(sT0)}, {s(sTB)}, 10
          s_add_u32 {s(sT0)}, {s(sT0)}, {FX}
          s_lshl_b32 {s(sT3)}, {s(sW)}, 13""")
    A.vm = []
    warm(0, 37, sT0, "0xffffffff")
    jobs = ([(X1, 56 * 1024, 2), (ST, 7168, 1)] if xnear else []) + ([(HH, 224 * 1024, 7)] if hnear else []) + [(OB, 64 * 1024, 2)]
    n = 1
    for base, size, cnt in jobs:
        A(f"""s_mul_i32 {s(sT1)}, {s(sTB)}, {size}
              s_add_u32 {s(sT1)}, {s(sT1)}, {base}
              s_add_u32 {s(sT2)}, {s(sT1)}, {size}
              s_add_u32 {s(sT1)}, {s(sT1)}, {s(sT3)}""")
        for i in range(cnt):
            A(f"""s_cmp_lt_u32 {s(sT1)}, {s(sT2)}
                  s_cselect_b32 {s(sT0)}, {s(sT1)}, {OOB}
                  s_add_u32 {s(sT1)}, {s(sT1)}, 32768""")
            warm(n, 36, sT0, "0xffffffffffffff" if size == 7168 else -1)
            A(f"s_waitcnt vmcnt({OPT.get('wdepth', 0)})")
            n += 1
    A.label("L_kvquit")
    stamp()
    dump_stamps()
    A("s_endpgm")


def att(vm_entry):
    A.label("L_att")
    A.vm = list(vm_entry)
    A.lg = []
    stamps["n"] = 1
    acc, cs, ring, ones = 32, 48, 64, 96
    vM, vR = 8, 9
    A(f"""s_mul_i32 {s(sT0)}, {s(sCB)}, 112
          s_lshl_b32 {s(sT1)}, {s(sW)}, 3
          v_add_u32 {v(vT0)}, {s(sT1)}, {v(vC8)}
          v_mul_u32_u24 {v(vT0)}, 896, {v(vT0)}
          v_add3_u32 {v(vWQ)}, {v(vT0)}, {v(vC7)}, {s(sT0)}
          s_lshl_b32 {s(sPA)}, {s(sW)}, 10
          s_mul_i32 {s(sT0)}, {s(sP)}, 56
          v_add_u32 {v(103)}, {s(sT0)}, {v(103)}
          v_xor_b32 {v(103)}, {v(103)}, {v(102)}
          v_add_u32 {v(vT0)}, {v(vTRN)}, {v(103)}
          v_add_u32 {v(10)}, {LQ}, {v(vT0)}
          v_add_u32 {v(11)}, {LA}, {v(vT0)}""")
    nq0 = int(OPT.get("nq0", 11))
    for n in range(nq0):
        dma(sPA, LQ + n * 4096, vWQ, SQ, (f"s_mov_b32 {s(sT0)}, {n * 32 * 896}", s(sT0)), "WQ")
    early_stamp(6)
    A.wait_vm("X")
    barrier()
    early_dump()
    stamp()

    def first():
        for n in range(nq0, 14):
            dma(sPA, LQ + n * 4096 if n < 11 else LA + (n - 11) * 4096, vWQ, SQ, (f"s_mov_b32 {s(sT0)}, {n * 32 * 896}", s(sT0)), "WQ")
        nonce_issue(12)
        touch("p1")
    stat_part(lambda: None)
    barrier()
    first()
    stat_read()
    for ks in range(28):
        A.ds(f"ds_read_b128 {a(4*ks,4)}, {v(vXF + (ks & 3))} offset:{(ks >> 2) * 8192}", ("x", ks))
    stat_fin(vM, vR)
    A(f"v_add_f32 {v(vR)}, {f32(EPS)}, {v(vR)}\nv_rsq_f32 {v(vR)}, {v(vR)}")
    A.drain_lg()
    arrive(C_PA)
    A(f"v_mul_f32 {v(vR)}, {f32(QSCALE)}, {v(vR)}")
    A.wait_vm(["WQ", "nonce"])
    arrive(C_WQ)
    nonce_take(12)
    A(f"""s_lshl_b32 {s(sT0)}, {s(sGT)}, 4
          s_lshl_b32 {s(sT1)}, {s(sCB)}, 1
          s_add_u32 {s(sT0)}, {s(sT0)}, {s(sT1)}
          s_add_u32 {s(sT0)}, {s(sT0)}, {s(sP)}
          s_lshl_b32 {s(sT0)}, {s(sT0)}, 11
          s_add_u32 {s(sB4)}, {s(sT0)}, {OB}
""")
    await_cnt(C_WQ)
    stamp()

    def wq(ks):
        tr(("v", ring + 4 * (ks % 8)), 10 if ks < 22 else 11, (ks % 22) * 2048, 512, ("w", ks))
    vG, vF = 12, 104
    aO, aQ, aK, vV = 0, 48, 80, 72
    O0, S, P = 16, [32, 48], 64

    def setup_k():
        A(f"""v_lshlrev_b32 {v(vT1)}, 7, {v(vLANE)}
              v_add_u32 {v(vT1)}, {FK}, {v(vT1)}
              s_mov_b64 {s(sINV,2)}, {s(sHI,2)}""")
        lanes_to(vT1)

    misc = f"""s_lshl_b32 {s(sT0)}, {s(sW)}, 11
          s_add_u32 {s(sT0)}, {s(sT0)}, {L_QG}
          v_add_u32 {v(vG)}, {s(sT0)}, {v(vL16)}
          s_lshl_b32 {s(sT0)}, {s(sW)}, 8
          s_add_u32 {s(sT0)}, {s(sT0)}, {L_QN}
          v_lshlrev_b32 {v(14)}, 2, {v(vLANE)}
          v_add_u32 {v(15)}, {s(sT0)}, {v(14)}
          v_add_u32 {v(14)}, {L_QN}, {v(14)}
          s_add_u32 {s(sT0)}, {s(sCB)}, {s(sTB)}
          s_and_b32 {s(sT0)}, {s(sT0)}, 3
          s_lshl_b32 {s(sK)}, {s(sT0)}, 14
          s_add_u32 {s(sV)}, {s(sK)}, 0x4000
          s_and_b32 {s(sV)}, {s(sV)}, 0xffff
          s_lshl_b32 {s(sT0)}, {s(sW)}, 16
          v_add_u32 {v(vF)}, {s(sT0)}, {v(vL16)}
          v_add_u32 {v(vF+1)}, 4096, {v(vF)}
          v_add_u32 {v(vF+2)}, 8192, {v(vF)}
          v_add_u32 {v(vF+3)}, 12288, {v(vF)}""".split("\n")
    for sl in range(4):
        misc += [f"s_xor_b32 {s(sT0)}, {s(sW)}, {sl}", f"s_mul_i32 {s(sT0)}, {s(sT0)}, 12288",
                 f"s_add_u32 {s(sT0)}, {s(sT0)}, {LA}", f"v_add_u32 {v(124+sl)}, {s(sT0)}, {v(vL16)}"]
    misc += [f"v_mov_b32 {v(O0+i)}, 0" for i in range(16)]
    misc += [f"v_xor_b32 {v(108+sl)}, {sl << 11}, {v(vG)}" for sl in range(1, 4)]

    def qstep(ks):
        if ks + 6 < 28:
            wq(ks + 6)
        A.wait_lg(("w", ks))
        mfma(v(acc, 16), v(ring + 4 * (ks % 8), 4), a(4 * ks, 4), 0 if ks == 0 else None)
        mfma(v(cs, 16), v(ring + 4 * (ks % 8), 4), v(ones, 4), 0 if ks == 0 else None)
        if 14 <= ks < 26:
            for i in range(4):
                A(f"v_accvgpr_write_b32 {a(aO + 4 * (ks - 14) + i)}, 0")
    for ks in range(6):
        wq(ks)
    weave(A, [lambda ks=ks: qstep(ks) for ks in range(28)], [lambda t=t: A(t) for t in misc])
    hi = "prl" not in OPT

    def kload(slot, base):
        for c in range(2):
            A.vmem(f"buffer_load_dwordx4 {a(aK + 8*slot + 4*c, 4)}, {v(vF+slot)}, {s(SW,4)}, {s(base)} offen offset:{c*1024} sc1", "K")

    def vload(slot, base):
        for c in range(2):
            A.vmem(f"buffer_load_dwordx4 {v(vV + 8*slot + 4*c, 4)}, {v(vF+slot)}, {s(SW,4)}, {s(base)} offen offset:{2048 + c*1024} sc1", "V")

    def first_loads():
        A("s_setprio 3")
        for slot in range(3):
            kload(slot, sK)
            vload(slot, sK)
            if slot == 0:
                A("s_setprio " + OPT.get("aprio", "0"))
        kload(3, sK)
        A.vm = []

    stamp()
    A("s_nop 7")
    q = acc
    for i in range(16):
        A(f"v_fma_f32 {v(q+i)}, -{v(cs+i)}, {v(vM)}, {v(q+i)}\nv_mul_f32 {v(q+i)}, {v(q+i)}, {v(vR)}")
    A(f"s_mov_b64 exec, {s(sHI,2)}")
    for i in range(12, 16):
        A(f"v_mov_b32 {v(q+i)}, 0")
    A("s_mov_b64 exec, -1")
    for i in range(8):
        A(f"v_cvt_pk_bf16_f32 {v(48+i)}, {v(q+2*i)}, {v(q+2*i+1)}")
    A.ds(f"ds_write_b128 {v(vG)}, {v(48,4)}", "qg")
    A.ds(f"ds_write_b128 {v(vG)}, {v(52,4)} offset:1024", "qg")
    A(f"v_mul_f32 {v(56)}, {v(q)}, {v(q)}")
    for i in range(1, 16):
        A(f"v_fma_f32 {v(56)}, {v(q+i)}, {v(q+i)}, {v(56)}")
    halves(56, 57)
    A(f"v_add_f32 {v(56)}, {v(56)}, {v(57)}")
    A.ds(f"ds_write_b32 {v(15)}, {v(56)}", "qg")
    arrive(C_Q)
    for i in range(4):
        A(f"v_mov_b32 {v(P+4+i)}, 0\nv_mov_b32 {v(vV+28+i)}, 0")
    await_cnt(C_Q)
    for sl in range(4):
        for c in range(2):
            A.ds(f"ds_read_b128 {a(aQ + 8*sl + 4*c, 4)}, {v(108+sl if sl else vG)} offset:{c*1024}", "q")
    for sl in range(4):
        A.ds(f"ds_read_b32 {v(120+sl)}, {v(14)} offset:{sl*256}", "q")
    A.drain_lg()
    arrive(C_QD)
    A("s_setprio 3")
    gate(G_K, setup_k, 112, payload=lambda: A(f"v_mov_b32 {v(113)}, {L_KP}\nds_max_u32 {v(113)}, {v(114)}"))
    stamp()
    A(f"v_mov_b32 {v(113)}, {L_KP}\nds_read_b32 {v(112)}, {v(113)}")
    first_loads()
    A(f"""s_waitcnt lgkmcnt(0)
          v_max3_f32 {v(120)}, {v(120)}, {v(121)}, {v(122)}
          v_max_f32 {v(120)}, {v(120)}, {v(123)}
          v_mul_f32 {v(108)}, {v(112)}, {v(120)}
          v_cmp_nge_f32 vcc, {f32(-1.0 if FORCE_SLOW else BOUND2)}, {v(108)}
          s_cmp_lg_u64 vcc, 0
          s_cbranch_scc1 L_slow""")
    A.label("L_fast")
    A("s_waitcnt vmcnt(10)")

    def Oreg(sl):
        return v(O0, 16) if sl == 0 else a(aO + 16 * (sl - 1), 16)

    mfma(v(S[0], 16), a(aK, 4), a(aQ, 4), 0)
    mfma(v(S[0], 16), a(aK + 4, 4), a(aQ + 4, 4))
    A(f"s_mov_b32 {s(sT4)}, 4\ns_nop 7\ns_nop 1")
    A.label("L_aloop")

    def period(sg, qt):
        cur, nxt = S[qt & 1], S[(qt + 1) & 1]
        ks = sg if qt < 3 else (sg + 1) & 3
        vs = sg if qt > 0 else (sg - 1) & 3
        nq, pq = (qt + 1) & 3, (qt - 1) & 3
        e = lambda i: A(f"v_exp_f32 {v(cur+i)}, {v(cur+i)}")
        c = lambda i: A(f"v_cvt_pk_bf16_f32 {v(P+i)}, {v(cur+2*i)}, {v(cur+2*i+1)}")
        if qt == 3:
            A("s_waitcnt vmcnt(6)")
        mfma(v(nxt, 16), a(aK + 8 * ks, 4), a(aQ + 8 * nq, 4), 0)
        if qt == 3:
            A("s_setprio 3")
            vload((sg - 1) & 3, sK if sg == 0 else sV)
            kload(sg, sV)
            A("s_setprio " + OPT.get("aprio", "0"))
        e(0); e(1); e(2); e(3)
        mfma(Oreg(pq), v(vV + 8 * vs + 4, 4), v(P + 4, 4))
        c(0); c(1); e(4); e(5); e(6); e(7)
        mfma(v(nxt, 16), a(aK + 8 * ks + 4, 4), a(aQ + 8 * nq + 4, 4))
        c(2); c(3); e(8); e(9); e(10); e(11)
        mfma(Oreg(qt), v(vV + 8 * sg, 4), v(P, 4))
        c(4); c(5); e(12); e(13); e(14); e(15); c(6); c(7)

    for sg in range(4):
        for qt in range(4):
            period(sg, qt)
            A.vm = []
    A(f"""s_mov_b32 {s(sK)}, {s(sV)}
          s_add_u32 {s(sV)}, {s(sV)}, 0x4000
          s_and_b32 {s(sV)}, {s(sV)}, 0xffff
          s_cmp_eq_u32 {s(sT4)}, 2
          s_cselect_b32 {s(sV)}, {OOB}, {s(sV)}
          s_sub_u32 {s(sT4)}, {s(sT4)}, 1
          s_cmp_lg_u32 {s(sT4)}, 0
          s_cbranch_scc1 L_aloop""")
    mfma(Oreg(3), v(vV + 28, 4), v(P + 4, 4))
    stamp()
    A("s_setprio 3")
    A(f"""v_mov_b32 {v(vT0)}, {C_P4}
          ds_read_b32 {v(vT1)}, {v(vT0)}
          ds_read_b32 {v(vT2)}, {v(vT0)} offset:{L_MODE - C_P4}
          s_waitcnt lgkmcnt(0)
          v_readfirstlane_b32 {s(sT0)}, {v(vT1)}
          v_readfirstlane_b32 {s(sLOC)}, {v(vT2)}
          s_cmp_ge_u32 {s(sT0)}, 4
          s_cbranch_scc1 L_free""")
    await_cnt(C_P4)
    read_mode()
    A.label("L_free")
    A("s_nop 2")
    offs = [(0, i * 1024) for i in range(12)]
    if "mrg" in OPT:
        stamp()
    reduce_out([("a", aO), ("a", aO + 16), ("a", aO + 32)], C_MRG, [124], offs)
    if "mrg" in OPT:
        stamp()
        await_cnt(C_MRG)
        stamp()

    reduce_in(O0, [32, 48, 104], C_MRG, lambda sl: [124 + sl], offs)
    if "mrg" in OPT:
        stamp()
    A(f"v_mov_b32 {v(32)}, {v(O0+12)}")
    halves(32, 33)
    A(f"v_rcp_f32 {v(33)}, {v(33)}\ns_nop 0")
    for i in range(16):
        A(f"v_mul_f32 {v(O0+i)}, {v(O0+i)}, {v(33)}")
    for i in range(8):
        A(f"v_cvt_pk_bf16_f32 {v(40+i)}, {v(O0+2*i)}, {v(O0+2*i+1)}")
    A(f"s_mov_b64 exec, {s(sHI,2)}\nv_mov_b32 {v(46)}, 0\nv_mov_b32 {v(47)}, 0\ns_mov_b64 exec, -1")
    hstore([f"buffer_store_dwordx4 {v(40,4)}, {v(vL16)}, {s(SW,4)}, {s(sB4)} offen",
            f"buffer_store_dwordx4 {v(44,4)}, {v(vL16)}, {s(SW,4)}, {s(sB4)} offen offset:1024"])
    if "mrg" in OPT:
        stamp()
        A.drain_vm()
        stamp()
    signal(N_O, own_slot(FO), near=True)
    stamp()
    dump_stamps()
    A("s_endpgm")

    A.label("L_slow")
    mx, kf = 108, 112
    for sl in range(4):
        A(f"v_mov_b32 {v(mx+sl)}, 0xff800000")
    A(f"s_mov_b32 {s(sT4)}, 0")
    A.label("L_sloop")
    A(f"""buffer_load_dwordx4 {v(kf,4)}, {v(vF)}, {s(SW,4)}, {s(sT4)} offen sc1
          buffer_load_dwordx4 {v(kf+4,4)}, {v(vF)}, {s(SW,4)}, {s(sT4)} offen offset:1024 sc1
          s_add_u32 {s(sT4)}, {s(sT4)}, 4096
          s_waitcnt vmcnt(0)""")
    for sl in range(4):
        mfma(v(S[0], 16), v(kf, 4), a(aQ + 8 * sl, 4), 0)
        mfma(v(S[0], 16), v(kf + 4, 4), a(aQ + 8 * sl + 4, 4))
        A("s_nop 11")
        for i in range(8):
            A(f"v_max3_f32 {v(mx+sl)}, {v(mx+sl)}, {v(S[0]+2*i)}, {v(S[0]+2*i+1)}")
    A(f"s_cmp_lt_u32 {s(sT4)}, 0x10000\ns_cbranch_scc1 L_sloop")
    A(f"v_and_b32 {v(kf)}, 31, {v(vLANE)}\nv_lshlrev_b32 {v(kf)}, 2, {v(kf)}\nv_add_u32 {v(kf)}, {L_MX}, {v(kf)}")
    for sl in range(4):
        halves(mx + sl, kf + 1)
        A(f"""v_max_f32 {v(mx+sl)}, {v(mx+sl)}, {v(kf+1)}
              s_xor_b32 {s(sT0)}, {s(sW)}, {sl}
              s_lshl_b32 {s(sT0)}, {s(sT0)}, 7
              v_add_u32 {v(kf+4+sl)}, {s(sT0)}, {v(kf)}""")
    A(f"ds_write_b32 {v(kf+4)}, {v(mx)}")
    arrive(C_MAX)
    await_cnt(C_MAX)
    for sl in range(1, 4):
        A(f"ds_max_f32 {v(kf+4+sl)}, {v(mx+sl)}")
    arrive(C_MAX)
    await_cnt(C_MAX, 8)
    t = 120
    for sl in range(4):
        A(f"""ds_read_b32 {v(t)}, {v(kf+4+sl)}
              s_waitcnt lgkmcnt(0)
              v_sub_f32 {v(t)}, 0, {v(t)}
              v_cvt_pk_bf16_f32 {v(t+1)}, {v(t)}, {v(t)}
              v_and_b32 {v(t+1)}, 0xffff0000, {v(t+1)}
              v_sub_f32 {v(t+2)}, {v(t)}, {v(t+1)}
              v_cvt_pk_bf16_f32 {v(t+3)}, {v(t)}, {v(t+2)}
              v_and_b32 {v(t+1)}, 0xffff0000, {v(t+3)}
              v_sub_f32 {v(t+2)}, {v(t+2)}, {v(t+1)}
              v_cvt_pk_bf16_f32 {v(t+2)}, {v(t+2)}, 0
              s_mov_b64 exec, {s(sHI,2)}
              v_accvgpr_write_b32 {a(aQ + 8*sl + 6)}, {v(t+3)}
              v_accvgpr_write_b32 {a(aQ + 8*sl + 7)}, {v(t+2)}
              s_mov_b64 exec, -1""")
    A("s_nop 1\ns_branch L_fast")


def header():
    ref = open(f"cdna_kernels/{NAME}.s.ref").read().split("\n")
    out = [l for l in ref if l.startswith(";") and "@launch" not in l and "Override" not in l and "grid=ceil" not in l]
    out.append(f"; @launch grid=(256,1,1) block=(512,1,1) lds={LDS_SIZE}")
    out += ['.amdgcn_target "amdgcn-amd-amdhsa--gfx950"', ".text", f".globl {NAME}_kernel", ".p2align 8",
            f".type {NAME}_kernel,@function", f"{NAME}_kernel:"]
    return "\n".join(out) + "\n"


def footer():
    return f"""L_end:
    s_endpgm
L_code_end:
.section .rodata,"a"
.p2align 6
.amdhsa_kernel {NAME}_kernel
  .amdhsa_next_free_vgpr 256
  .amdhsa_next_free_sgpr 102
  .amdhsa_accum_offset 128
  .amdhsa_group_segment_fixed_size 0
  .amdhsa_kernarg_size 104
  .amdhsa_user_sgpr_count 2
  .amdhsa_user_sgpr_kernarg_segment_ptr 1
  .amdhsa_system_sgpr_workgroup_id_x 1
.end_amdhsa_kernel
"""


if __name__ == "__main__":
    vm0 = prologue()
    mlp(vm0)
    att(vm0)
    out = [x for x in sys.argv[1:] if not x.startswith("--")]
    open(out[0] if out else "k.s", "w").write(header() + A.text() + footer())
```

```python
import math
import sys
from asmlib import Asm, a, f32, s, v, weave

NAME = "recurrent_scan__grouped_kv_mqa__mixer_s_mlp__prompt"
PROFILE = "--prof" in sys.argv or "--cyc" in sys.argv
CLOCK = "s_memtime" if "--cyc" in sys.argv else "s_memrealtime"
FORCE_SLOW = "--slow" in sys.argv
OPT = {x[2:].split("=")[0]: (x.split("=") + [""])[1] for x in sys.argv if x.startswith("--")}


class Stop(Exception):
    pass


def cut(name):
    if OPT.get("mlpstop") == name:
        arrive(C_P4)
        A.drain_vm()
        dump_stamps()
        A("s_endpgm")


KV, CS, FK, FC, FH, FX, FG, FO, FG2 = 0x0, 0x40000, 0x48000, 0x49000, 0x50000, 0x58000, 0x60000, 0x68000, 0x70000
TS = 0x80000
HB, ST, X1, HH, OB = 0x100000, 0x2C0000, 0x300000, 0x500000, 0xC00000
WS_SIZE = 0xE00000
OOB = 0x7FFF0000
LX, LA, LQ, LS = 0, 57344, 114688, 159744
LDS_SIZE = 163840
(C_PA, C_W2, C_WQ, C_Q, C_QD, C_MAX, C_MRG, C_R1, C_XA, C_XB, C_P4, C_R2, C_R3, N_H, N_X, N_G, N_G2, N_O, N_K, N_C,
 G_H, G_X, G_G, G_G2, G_O, G_K, L_KM, L_KP, L_MODE) = [LS + 4 * i for i in range(29)]
L_QN, L_STAT = LS + 1024, LS + 2048
L_MX = LS + 256
L_QG, L_VT = LA + 16384, LA + 24576
NRING = 12
assert L_QG % 8192 == 0
LOG2E = 1.4426950408889634
QSCALE = 28 ** -0.5 * LOG2E
GC1 = -2 * LOG2E * math.sqrt(2 / math.pi)
GC2 = GC1 * 0.044715
EPS = 1e-5
BOUND2 = 3500.0
ONES = 0x3F803F80
GSPIN, LSPIN = 20000, 400000
SX, SA, SQ, SW, S4, SO, SOUT, SD, S2 = 4, 8, 12, 16, 20, 24, 28, 32, 36
P_X, P_WQ, P_WK, P_WV, P_WO, P_W1, P_W2, P_W3, P_W4, P_OUT, P_DBG, P_WS = 40, 42, 44, 46, 48, 52, 54, 56, 58, 60, 62, 64
sN = 66
sW8, sW, sTB, sCB, sTT, sP, sGT = 68, 69, 70, 71, 72, 73, 74
sHI = 76
sINV = 78
sT0, sT1, sT2, sT3, sT4, sT5 = 80, 81, 82, 83, 84, 85
sPA, sPB, sB1, sB4, sSP = 86, 87, 88, 89, 90
sK, sV, sR, sRG, sRH = 91, 92, 93, 96, 97
sLN = 100
sXC, sLOC = 75, 3
sTS = 40
vLANE, vL16, vTRN, vTRD, vT0, vT1, vT2, vT3 = 0, 1, 2, 3, 4, 5, 6, 7
MF = "v_mfma_f32_32x32x16_bf16"

A = Asm()
stamps = {"n": 0}


def stamp():
    if PROFILE:
        i = stamps["n"]
        stamps["n"] += 1
        A(f"s_waitcnt lgkmcnt(0)\n{CLOCK} {s(94,2)}\ns_waitcnt lgkmcnt(0)\ns_mov_b32 {s(sTS+i)}, s94")
        if "both" in OPT:
            A(f"s_memrealtime {s(94,2)}\ns_and_b32 {s(sTS+i)}, {s(sTS+i)}, 0xfffff\ns_waitcnt lgkmcnt(0)\n"
              f"s_lshl_b32 s94, s94, 20\ns_or_b32 {s(sTS+i)}, {s(sTS+i)}, s94")
        A.lg = []


def early_stamp(i):
    if "startup" in OPT:
        A(f"s_memtime {s(94,2)}\ns_waitcnt lgkmcnt(0)\ns_mov_b32 {s([98, 99, 100, 101, 3, 75, 97][i])}, s94")


def early_dump():
    if "startup" in OPT:
        for i, r in enumerate([98, 99, 100, 101, 3, 75, 97]):
            A(f"s_mov_b32 {s(sTS+i)}, {s(r)}")
        stamps["n"] = 7
        stamp()
        dump_stamps()
        A("s_endpgm")


def dump_stamps():
    if PROFILE:
        n = stamps["n"]
        A(f"s_lshl_b32 {s(sT0)}, s2, 3\ns_add_u32 {s(sT0)}, {s(sT0)}, {s(sW8)}\ns_lshl_b32 {s(sT0)}, {s(sT0)}, 7\n"
          f"s_add_u32 {s(sT0)}, {s(sT0)}, {TS}\nv_mov_b32 {v(vT1)}, 0")
        for i in range(n):
            A(f"v_mov_b32 {v(vT0)}, {s(sTS+i)}\nbuffer_store_dword {v(vT0)}, {v(vT1)}, {s(SW,4)}, {s(sT0)} offen offset:{4*i}")
        A.drain_vm()
    stamps["n"] = 0


def srd(r, ptr, size):
    A(f"s_mov_b32 {s(r)}, {s(ptr)}\ns_mov_b32 {s(r+1)}, {s(ptr+1)}\ns_mov_b32 {s(r+2)}, {size}\ns_mov_b32 {s(r+3)}, 0x20000")


def mfma(d, x, y, c=None):
    A(f"{MF} {d}, {x}, {y}, {d if c is None else c}")


def dma(m0_base, m0_off, voff, desc, soff, tag, imm=0, sc=""):
    if m0_base is None:
        A(f"s_mov_b32 m0, {m0_off - imm}")
    else:
        A(f"s_add_u32 m0, {s(m0_base)}, {m0_off - imm}")
    pre, so = soff
    if pre:
        A(pre)
    else:
        A("s_nop 0")
    A.vmem(f"buffer_load_dwordx4 {v(voff)}, {s(desc,4)}, {so} offen" + (f" offset:{imm}" if imm else "") + f"{sc} lds", tag)


def tr(dst, addr, off, second, tag):
    k, i = dst
    r = v if k == "v" else a
    A.ds(f"ds_read_b64_tr_b16 {r(i,2)}, {v(addr)} offset:{off}", tag)
    A.ds(f"ds_read_b64_tr_b16 {r(i+2,2)}, {v(addr)} offset:{off+second}", tag)


def arrive(cnt):
    A(f"s_mov_b64 exec, 1\nv_mov_b32 {v(vT0)}, {cnt}\nv_mov_b32 {v(vT1)}, 1")
    A.ds(f"ds_add_u32 {v(vT0)}, {v(vT1)}", "cnt")
    A("s_mov_b64 exec, -1")


def await_cnt(cnt, target=4):
    lp, ok = A.newlabel("ls"), A.newlabel("lk")
    A(f"v_mov_b32 {v(vT0)}, {cnt}\ns_mov_b32 {s(sSP)}, 0")
    A.label(lp)
    A(f"""ds_read_b32 {v(vT1)}, {v(vT0)}
          s_add_u32 {s(sSP)}, {s(sSP)}, 1
          s_waitcnt lgkmcnt(0)
          v_readfirstlane_b32 {s(sLN)}, {v(vT1)}
          s_cmp_ge_u32 {s(sLN)}, {target}
          s_cbranch_scc1 {ok}
          {"s_sleep " + OPT["lsleep"] if "lsleep" in OPT else ""}
          s_cmp_lt_u32 {s(sSP)}, {LSPIN}
          s_cbranch_scc1 {lp}""")
    A.label(ok)
    A.lg = []


def gate(go, setup, tmp, payload=None, release=True):
    lp, ok, rest = A.newlabel("gs"), A.newlabel("gk"), A.newlabel("gw")
    every = "allpoll" in OPT and not payload
    if not every:
        A(f"s_cmp_lg_u32 {s(sW)}, 0\ns_cbranch_scc1 {rest}")
    setup()
    A(f"s_mov_b32 {s(sSP)}, 0")
    A.label(lp)
    n = 4 if payload else 2
    A(f"""buffer_load_dwordx{n} {v(tmp,n)}, {v(vT2)}, {s(SW,4)}, 0 offen sc1
          s_add_u32 {s(sSP)}, {s(sSP)}, 1
          s_waitcnt vmcnt(0)
          v_cmp_eq_u64 vcc, {s(sN,2)}, {v(tmp,2)}
          s_or_b64 vcc, vcc, {s(sINV,2)}
          s_cmp_eq_u64 vcc, -1
          s_cbranch_scc1 {ok}
          {"" if release else "s_sleep 8"}
          s_cmp_lt_u32 {s(sSP)}, {GSPIN}
          s_cbranch_scc1 {lp}""")
    A.label(ok)
    if every:
        return
    if payload:
        payload()
    if not release:
        A.label(rest)
        return
    keep = list(A.lg)
    arrive(go)
    A.lg = keep
    A.label(rest)
    await_cnt(go, 1)


def peek_issue(setup, data=vT0, addr=vT2, n=2):
    setup()
    if addr != vT2:
        A(f"v_mov_b32 {v(addr)}, {v(vT2)}")
    A.vmem(f"buffer_load_dwordx{n} {v(data,n)}, {v(addr)}, {s(SW,4)}, 0 offen sc1", "peek")


def peek_check(data=vT0, addr=vT2, n=2):
    lp, ok = A.newlabel("ps"), A.newlabel("pk")
    A.wait_vm("peek")
    A(f"s_mov_b32 {s(sSP)}, {GSPIN}")
    A.label(lp)
    A(f"""v_cmp_eq_u64 vcc, {s(sN,2)}, {v(data,2)}
          s_or_b64 vcc, vcc, {s(sINV,2)}
          s_cmp_eq_u64 vcc, -1
          s_cbranch_scc1 {ok}
          s_sub_u32 {s(sSP)}, {s(sSP)}, 1
          s_cbranch_scc1 {ok}
          buffer_load_dwordx{n} {v(data,n)}, {v(addr)}, {s(SW,4)}, 0 offen sc1
          s_waitcnt vmcnt(0)
          s_branch {lp}""")
    A.label(ok)


def lanes_to(addr_reg):
    A(f"s_mov_b64 vcc, {s(sINV,2)}\nv_mov_b32 {v(vT3)}, {OOB}\nv_cndmask_b32 {v(vT2)}, {v(addr_reg)}, {v(vT3)}, vcc")


def hstore(stores, tag=None, allow=True):
    if not allow:
        for t in stores:
            A.vmem(t + " sc1", tag)
        return
    near, done = A.newlabel("hn"), A.newlabel("hd")
    A(f"s_cmp_lg_u32 {s(sLOC)}, 0\ns_cbranch_scc1 {near}")
    for t in stores:
        A(t + " sc1")
    A(f"s_branch {done}")
    A.label(near)
    for t in stores:
        if tag is None:
            A(t)
        else:
            A.vmem(t, tag)
    A.label(done)


def note_die(data):
    A(f"""v_cmp_eq_u32 vcc, {s(sXC)}, {v(data)}
          s_and_b32 {s(sT0)}, vcc_lo, {s(sT2)}
          s_cmp_eq_u32 {s(sT0)}, {s(sT2)}
          s_cselect_b32 {s(sT0)}, {0 if "remote" in OPT else 1}, 0
          v_mov_b32 {v(vT0)}, {L_MODE}
          v_mov_b32 {v(vT1)}, {s(sT0)}
          ds_write_b32 {v(vT0)}, {v(vT1)}""")


def read_mode():
    A(f"""v_mov_b32 {v(vT0)}, {L_MODE}
          ds_read_b32 {v(vT1)}, {v(vT0)}
          s_waitcnt lgkmcnt(0)
          v_readfirstlane_b32 {s(sLOC)}, {v(vT1)}""")
    A.lg = []


def warm(dst, voff, soff, mask):
    if "nowarm" in OPT:
        return
    if isinstance(mask, str):
        A(f"s_bfm_b64 exec, {len(mask[2:]) * 4}, 0")
    else:
        A(f"s_mov_b64 exec, {mask}")
    A.vmem(f"buffer_load_dword {a(dst)}, {v(voff)}, {s(SW,4)}, {s(soff)} offen sc1", "warm")
    A("s_mov_b64 exec, -1")


def signal(cnt, soff_expr, tags=None, payload=None, near=False):
    skip = A.newlabel("sg")
    if tags is None:
        A.drain_vm()
    else:
        A.wait_vm(tags)
    A(f"""s_mov_b64 exec, 1
          v_mov_b32 {v(vT0)}, {cnt}
          v_mov_b32 {v(vT1)}, 1
          ds_add_rtn_u32 {v(vT1)}, {v(vT0)}, {v(vT1)}""")
    if payload:
        A(f"ds_read_b32 {v(vT2)}, {v(vT0)} offset:{payload - cnt}")
    A(soff_expr)
    A(f"""s_waitcnt lgkmcnt(0)
          v_readfirstlane_b32 {s(sT1)}, {v(vT1)}
          s_cmp_lg_u32 {s(sT1)}, 3
          s_cbranch_scc1 {skip}
          v_mov_b32 {v(vT0)}, {s(sN)}
          v_mov_b32 {v(vT1)}, {s(sN+1)}
          v_mov_b32 {v(vT3)}, 0""")
    if not payload:
        A(f"v_mov_b32 {v(vT2)}, {s(sXC)}")
    st = f"buffer_store_dwordx4 {v(vT0,4)}, {v(vT3)}, {s(SW,4)}, {s(sT0)} offen"
    if near:
        hstore([st])
    else:
        A(st + " sc1")
    A.label(skip)
    A("s_mov_b64 exec, -1\ns_nop 0")
    A.lg = []


def nonce_issue(tmp):
    A(f"v_mov_b32 {v(vT3)}, 0")
    A.vmem(f"buffer_load_dwordx2 {v(tmp,2)}, {v(vT3)}, {s(SD,4)}, 0 offen sc1", "nonce")


def nonce_take(tmp):
    lp, ok = A.newlabel("ns"), A.newlabel("nk")
    A.wait_vm("nonce")
    A(f"s_mov_b32 {s(sSP)}, 0\nv_mov_b32 {v(vT3)}, 0")
    A.label(lp)
    A(f"""v_readfirstlane_b32 {s(sN)}, {v(tmp)}
          v_readfirstlane_b32 {s(sN+1)}, {v(tmp+1)}
          s_add_u32 {s(sSP)}, {s(sSP)}, 1
          s_cmp_lg_u64 {s(sN,2)}, 0
          s_cbranch_scc1 {ok}
          s_cmp_ge_u32 {s(sSP)}, {GSPIN}
          s_cbranch_scc1 {ok}
          buffer_load_dwordx2 {v(tmp,2)}, {v(vT3)}, {s(SD,4)}, 0 offen sc1
          s_waitcnt vmcnt(0)
          s_branch {lp}""")
    A.label(ok)


def halves(x, t):
    A(f"v_mov_b32 {v(t)}, {v(x)}\ns_nop 1\nv_permlane32_swap_b32 {v(x)}, {v(t)}")


def wave_max(x, full):
    for sh in (1, 2, 4, 8):
        A(f"s_nop 1\nv_max_f32_dpp {v(x)}, {v(x)}, {v(x)} row_shr:{sh} row_mask:0xf bank_mask:0xf bound_ctrl:0")
    A(f"s_nop 1\nv_max_f32_dpp {v(x)}, {v(x)}, {v(x)} row_bcast:15 row_mask:0xa bank_mask:0xf")
    if full:
        A(f"s_nop 1\nv_max_f32_dpp {v(x)}, {v(x)}, {v(x)} row_bcast:31 row_mask:0xc bank_mask:0xf")
    A("s_nop 1")


def gelu_ops(y, t, dst, c1, c2, ri):
    o = []
    for e in (0, 1):
        o.append(f"v_mul_f32 {v(t+e)}, {v(y+e)}, {v(y+e)}")
    for e in (0, 1):
        o.append(f"v_fma_f32 {v(t+e)}, {v(t+e)}, {v(c2)}, {v(c1)}")
    for e in (0, 1):
        o.append(f"v_mul_f32 {v(t+e)}, {v(t+e)}, {v(y+e)}")
    for e in (0, 1):
        o.append(f"v_exp_f32 {v(t+e)}, {v(t+e)}")
    for e in (0, 1):
        o.append(f"v_fma_f32 {v(t+e)}, {v(t+e)}, {v(ri)}, {v(ri)}")
    for e in (0, 1):
        o.append(f"v_rcp_f32 {v(t+e)}, {v(t+e)}")
    for e in (0, 1):
        o.append(f"v_mul_f32 {v(t+e)}, {v(t+e)}, {v(y+e)}")
    o.append(f"v_cvt_pk_bf16_f32 {v(dst)}, {v(t)}, {v(t+1)}")
    return o


def ring_addr(slot):
    return (sPA, slot * 2048) if slot < 7 else (sPB, (slot - 7) * 2048)


def reduce_out(srcs, cnt, vbase, offs, fill=()):
    def wr(i):
        k, r = srcs[i // 4]
        reg = (v if k == "v" else a)(r + 4 * (i % 4), 4)
        b, o = offs[i]
        A.ds(f"ds_write_b128 {v(vbase[b])}, {reg} offset:{o}", "red")
        if i == 11:
            arrive(cnt)
    weave(A, [lambda i=i: wr(i) for i in range(12)], list(fill))


def reduce_in(acc, tmp, cnt, mkaddr, offs, between=None):
    tmp = tmp if isinstance(tmp, list) else [tmp, tmp + 16, tmp + 32]
    await_cnt(cnt)
    for sl in (1, 2, 3):
        regs = mkaddr(sl)
        for q in range(4):
            b, o = offs[(sl - 1) * 4 + q]
            A.ds(f"ds_read_b128 {v(tmp[sl-1] + 4*q, 4)}, {v(regs[b])} offset:{o}", ("rd", sl))
    if between:
        between()
    for sl in (1, 2, 3):
        A.wait_lg(("rd", sl))
        for i in range(16):
            A(f"v_add_f32 {v(acc+i)}, {v(acc+i)}, {v(tmp[sl-1] + i)}")


vC8, vC7, vXF, vWQ = 100, 101, 104, 109
SXR = [16, 20, 88, 92, 112, 116, 120]


def image(base, off, voff, desc, sreg_expr, rs, tag, halves_=(0, 1)):
    for h in halves_:
        dma(base, off + h * 1024, voff, desc, (sreg_expr(h * 8 * rs), s(sT0)), tag)


def gaps(mfmas, pieces):
    n, m, done = len(mfmas), len(pieces), 0
    for i, f in enumerate(mfmas):
        f()
        while done < -(-m * (i + 1) // n):
            pieces[done]()
            done += 1


def prologue():
    A(f"""s_cmp_ge_u32 s2, 256
          s_cbranch_scc1 L_end
          s_load_dwordx16 {s(40,16)}, s[0:1], 0
          s_load_dwordx8 {s(56,8)}, s[0:1], 64
          s_load_dwordx2 {s(64,2)}, s[0:1], 96
          s_memrealtime {s(sN,2)}
          {CLOCK + " " + s(98,2) if PROFILE else ""}
          s_getpc_b64 {s(sT2,2)}
          v_lshrrev_b32 {v(vT0)}, 6, v0
          s_lshr_b32 {s(sT0)}, s2, 3
          v_readfirstlane_b32 {s(sW8)}, {v(vT0)}
          v_and_b32 {v(vLANE)}, 63, v0
          v_lshlrev_b32 {v(vT2)}, 7, {v(vLANE)}
          s_and_b32 {s(sT2)}, {s(sT2)}, 0xffffff00""")
    A(f"""s_mul_i32 {s(sT4)}, {s(sT0)}, 26
          s_lshr_b32 {s(sT4)}, {s(sT4)}, 8
          s_mul_i32 {s(sT4)}, {s(sT4)}, 10
          s_sub_u32 {s(sT4)}, {s(sT0)}, {s(sT4)}
          s_lshl_b32 {s(sT4)}, {s(sT4)}, 3
          s_add_u32 {s(sT4)}, {s(sT4)}, {s(sW8)}
          s_lshl_b32 {s(sT4)}, {s(sT4)}, 9
          v_add_u32 {v(vT1)}, {s(sT4)}, {v(vT2)}
          v_min_u32 {v(vT1)}, L_code_end-{NAME}_kernel-4, {v(vT1)}
          s_mov_b64 exec, 15""")
    if "nopf" not in OPT:
        A.vmem(f"global_load_dword {a(124)}, {v(vT1)}, {s(sT2,2)}", "pf")
    A("s_mov_b64 exec, -1")
    nk = int(OPT.get("nk", 8))
    if nk == 8:
        A(f"""s_and_b32 {s(sT1)}, {s(sT0)}, 3
              s_and_b32 {s(sTB)}, s2, 7
              s_lshl_b32 {s(sTB)}, {s(sTB)}, 2
              s_add_u32 {s(sTB)}, {s(sTB)}, {s(sT1)}
              s_lshr_b32 {s(sCB)}, {s(sT0)}, 2""")
    else:
        per = 32 // nk
        perm = [int(c) for c in OPT.get("perm", "40516273")]
        A(f"""s_and_b32 {s(sT1)}, s2, 7
              s_lshl_b32 {s(sT1)}, {s(sT1)}, 2
              s_lshr_b32 {s(sT1)}, {sum(p << (4 * i) for i, p in enumerate(perm))}, {s(sT1)}
              s_and_b32 {s(sT1)}, {s(sT1)}, 7
              s_min_u32 {s(sT2)}, {s(sT1)}, {nk - 1}
              s_add_u32 {s(sT2)}, {s(sT2)}, 1
              s_mul_i32 {s(sT2)}, {s(sT2)}, {per}
              s_lshl_b32 {s(sT3)}, {s(sT1)}, 5
              s_add_u32 {s(sT3)}, {s(sT3)}, {s(sT0)}
              s_sub_u32 {s(sT3)}, {s(sT3)}, {s(sT2)}
              s_mul_i32 {s(sTB)}, {s(sT3)}, 9363
              s_lshr_b32 {s(sTB)}, {s(sTB)}, 16
              s_mul_i32 {s(sCB)}, {s(sTB)}, 7
              s_sub_u32 {s(sCB)}, {s(sT3)}, {s(sCB)}
              s_add_u32 {s(sCB)}, {s(sCB)}, 1
              s_mul_i32 {s(sT2)}, {s(sT1)}, {per}
              s_add_u32 {s(sT2)}, {s(sT2)}, {s(sT0)}
              s_cmp_lt_u32 {s(sT1)}, {nk}
              s_cselect_b32 {s(sT1)}, {per}, 0
              s_cmp_lt_u32 {s(sT0)}, {s(sT1)}
              s_cselect_b32 {s(sTB)}, {s(sT2)}, {s(sTB)}
              s_cselect_b32 {s(sCB)}, 0, {s(sCB)}
              s_and_b32 {s(sT1)}, {s(sTB)}, 3""")
    A(f"""v_lshlrev_b32 {v(vL16)}, 4, {v(vLANE)}
          v_lshrrev_b32 {v(vC8)}, 3, {v(vLANE)}
          v_lshrrev_b32 {v(vT0)}, 2, {v(vLANE)}
          v_and_b32 {v(vT0)}, 4, {v(vT0)}
          v_xor_b32 {v(vT0)}, {v(vT0)}, {v(vLANE)}
          v_and_b32 {v(vT0)}, 7, {v(vT0)}
          v_lshlrev_b32 {v(vC7)}, 4, {v(vT0)}""")
    A(f"""s_lshl_b32 {s(sT1)}, {s(sT1)}, 1
          s_add_u32 {s(sT1)}, {s(sT1)}, {s(sW8)}
          s_and_b32 {s(sT1)}, {s(sT1)}, 7
          s_lshl_b32 {s(sT4)}, {s(sT1)}, 10
          s_lshl_b32 {s(sT5)}, {s(sT1)}, 3
          v_add_u32 {v(vT1)}, {s(sT5)}, {v(vC8)}
          s_lshl_b32 {s(sT2)}, {s(sCB)}, 7
          s_sub_u32 {s(sT2)}, {s(sT2)}, 128
          v_mul_u32_u24 {v(vT3)}, 896, {v(vT1)}
          v_add3_u32 {v(103)}, {v(vT3)}, {v(vC7)}, {s(sT2)}
          s_and_b32 {s(sW)}, {s(sW8)}, 3
          s_mul_i32 {s(sT1)}, {s(sW)}, 7168
          v_add_u32 {v(vT3)}, {s(sT1)}, {v(vL16)}
          s_mul_i32 {s(sT1)}, {s(sW8)}, 7168
          s_cmp_eq_u32 {s(sCB)}, 0
          s_cselect_b64 vcc, -1, 0
          s_cselect_b32 {s(sT1)}, {s(sT1)}, {s(sT4)}
          s_mov_b32 {s(sT2)}, 1024
          s_cselect_b32 {s(sT3)}, {s(sT2)}, {64 * 896}
          s_cselect_b32 {s(sT5)}, {s(sT2)}, 8192
          v_cndmask_b32 {v(103)}, {v(103)}, {v(vT3)}, vcc
          s_add_u32 m0, {s(sT1)}, {LA}""")
    A(f"""s_lshl_b32 {s(sB1)}, {s(sTB)}, 3
          s_add_u32 {s(sB1)}, {s(sB1)}, {s(sCB)}
          s_lshl_b32 {s(sB1)}, {s(sB1)}, 3
          s_add_u32 {s(sB1)}, {s(sB1)}, {s(sW8)}
          s_mul_i32 {s(sB1)}, {s(sB1)}, 896
          s_mul_i32 {s(sB4)}, {s(sTB)}, 7
          s_add_u32 {s(sB4)}, {s(sB4)}, {s(sW8)}
          s_mul_i32 {s(sB4)}, {s(sB4)}, {2 * 896}
          s_mul_i32 {s(sT0)}, {s(sCB)}, 112
          s_add_u32 {s(sB4)}, {s(sB4)}, {s(sT0)}
          s_cmp_eq_u32 {s(sW8)}, 7
          s_cselect_b32 {s(sB4)}, {OOB}, {s(sB4)}
          v_lshrrev_b32 {v(102)}, 1, {v(vLANE)}
          v_mul_u32_u24 {v(102)}, 896, {v(102)}
          v_and_b32 {v(vT3)}, 1, {v(vLANE)}
          v_mul_u32_u24 {v(vT3)}, 120, {v(vT3)}
          v_add_u32 {v(102)}, {v(102)}, {v(vT3)}
          s_mov_b32 {s(SX+2)}, 1835008
          s_mov_b32 {s(SX+3)}, 0x20000
          s_mov_b32 {s(SQ+2)}, 401408
          s_mov_b32 {s(SQ+3)}, 0x20000
          s_mov_b32 {s(SA+3)}, 0x20000
          s_mov_b32 {s(SA+2)}, 25088
          s_cmp_eq_u32 {s(sCB)}, 0
          s_cselect_b32 {s(SA+2)}, {s(SA+2)}, 401408
          s_mov_b32 {s(sT0)}, 0
          s_cmp_lt_u32 {s(sW8)}, 4
          s_waitcnt lgkmcnt(0)
          s_cselect_b64 {s(SA,2)}, {s(P_WK,2)}, {s(P_WV,2)}
          s_cmp_eq_u32 {s(sCB)}, 0
          s_cselect_b64 {s(SA,2)}, {s(SA,2)}, {s(P_W1,2)}
          s_mov_b64 {s(SX,2)}, {s(P_X,2)}
          s_mov_b64 {s(SQ,2)}, {s(P_WQ,2)}""")
    early_stamp(1)
    if "nopre" not in OPT:
        A("s_mov_b64 exec, 0x7f")
        A.vmem(f"buffer_load_dword {a(126)}, {v(vT2)}, {s(SX,4)}, {s(sB1)} offen", "pre")
        A("s_mov_b64 exec, 15")
        A.vmem(f"buffer_load_dword {a(125)}, {v(102)}, {s(SQ,4)}, {s(sB4)} offen", "pre")
        A("s_mov_b64 exec, -1")
    for n in range(7):
        if n:
            A(f"s_add_u32 m0, m0, {s(sT5)}\ns_add_u32 {s(sT0)}, {s(sT0)}, {s(sT3)}")
        A.vmem(f"buffer_load_dwordx4 {v(103)}, {s(SA,4)}, {s(sT0)} offen lds", "WA")
    early_stamp(2)
    A(f"""s_lshl_b32 {s(sT0)}, {s(sTB)}, 6
          v_add_u32 {v(vT1)}, {s(sT0)}, {v(vT1)}
          v_mul_u32_u24 {v(vT2)}, 896, {v(vT1)}
          v_lshrrev_b32 {v(vT1)}, 1, {v(vT1)}
          v_xor_b32 {v(vT1)}, {v(vT1)}, {v(vLANE)}
          v_and_b32 {v(vT1)}, 7, {v(vT1)}
          v_lshl_add_u32 {v(vWQ)}, {v(vT1)}, 4, {v(vT2)}
          s_and_b32 {s(sTT)}, {s(sW8)}, 1
          s_lshr_b32 {s(sP)}, {s(sW)}, 1""")
    if PROFILE:
        A(f"s_mov_b32 {s(sTS)}, s98")
        stamps["n"] = 1
    srd(SW, P_WS, WS_SIZE)
    srd(SD, P_DBG, 256)
    A(f"""s_cmp_lg_u32 {s(sW8)}, 0
          s_cbranch_scc1 L_nz
          v_lshlrev_b32 {v(vT0)}, 2, {v(vLANE)}
          v_add_u32 {v(vT0)}, {LS}, {v(vT0)}
          v_mov_b32 {v(vT1)}, 0
          ds_write_b32 {v(vT0)}, {v(vT1)}
          s_waitcnt lgkmcnt(0)
          s_cmp_lg_u32 s2, 0
          s_cbranch_scc1 L_nz
          s_or_b32 {s(sN)}, {s(sN)}, 1
          v_mov_b32 {v(vT2)}, {s(sN)}
          v_mov_b32 {v(vT3)}, {s(sN+1)}
          s_mov_b64 exec, 1
          buffer_store_dwordx2 {v(vT2,2)}, {v(vT1)}, {s(SD,4)}, 0 offen sc1
          s_mov_b64 exec, -1""")
    A.label("L_nz")
    A(f"""s_lshl_b32 {s(sGT)}, {s(sTB)}, 1
          s_add_u32 {s(sGT)}, {s(sGT)}, {s(sTT)}
          s_mov_b32 {s(sHI)}, 0
          s_mov_b32 {s(sHI+1)}, -1
          s_getreg_b32 {s(sXC)}, hwreg(HW_REG_XCC_ID, 0, 4)
          s_mov_b32 {s(sLOC)}, 0""")
    A(f"""v_bfe_u32 {v(vT0)}, {v(vLANE)}, 2, 2
          v_lshlrev_b32 {v(vT0)}, 7, {v(vT0)}
          v_lshrrev_b32 {v(vT1)}, 5, {v(vLANE)}
          v_lshl_add_u32 {v(vTRN)}, {v(vT1)}, 10, {v(vT0)}
          v_lshl_add_u32 {v(vTRD)}, {v(vT1)}, 9, {v(vT0)}
          v_bfe_u32 {v(vT0)}, {v(vLANE)}, 4, 1
          v_and_b32 {v(vT2)}, 3, {v(vLANE)}
          v_lshlrev_b32 {v(vT2)}, 3, {v(vT2)}
          v_lshl_add_u32 {v(103)}, {v(vT0)}, 5, {v(vT2)}
          v_bfe_u32 {v(vT0)}, {v(vLANE)}, 3, 1
          v_lshlrev_b32 {v(102)}, 6, {v(vT0)}""")
    A(f"""v_and_b32 {v(vT3)}, 31, {v(vLANE)}
          s_lshl_b32 {s(sT0)}, {s(sTT)}, 5
          v_add_u32 {v(vT0)}, {s(sT0)}, {v(vT3)}
          v_bfe_u32 {v(vT2)}, {v(vT0)}, 1, 3
          v_lshlrev_b32 {v(vT0)}, 7, {v(vT0)}
          v_xor_b32 {v(vT2)}, {v(vT2)}, {v(vT1)}
          v_lshl_add_u32 {v(vXF)}, {v(vT2)}, 4, {v(vT0)}
          v_xor_b32 {v(vXF+1)}, 32, {v(vXF)}
          v_xor_b32 {v(vXF+2)}, 64, {v(vXF)}
          v_xor_b32 {v(vXF+3)}, 96, {v(vXF)}
          s_lshr_b32 {s(sT1)}, {s(sW8)}, 1
          s_lshl_b32 {s(sT0)}, {s(sT1)}, 5
          v_xor_b32 {v(108)}, {s(sT0)}, {v(vXF)}
          s_lshl_b32 {s(sT0)}, {s(sTT)}, 10
          s_add_u32 {s(sT0)}, {s(sT0)}, {L_STAT}
          v_lshl_add_u32 {v(110)}, {v(vT3)}, 3, {s(sT0)}
          s_lshl_b32 {s(sT0)}, {s(sT1)}, 8
          v_add_u32 {v(111)}, {s(sT0)}, {v(110)}
          v_mov_b32 {v(30)}, 0
          v_mov_b32 {v(31)}, 0
          s_mov_b32 {s(sT5)}, {ONES}""")
    for i in range(4):
        A(f"v_mov_b32 {v(96+i)}, {ONES}")
    A(f"""s_lshl_b32 {s(sT0)}, s2, 3
          s_add_u32 {s(sT0)}, {s(sT0)}, {s(sW8)}
          s_cmp_ge_u32 {s(sT0)}, {392 if OPT.get("tw", "23") == "23" else 4096}
          s_cselect_b64 {s(SA,2)}, {s(P_W3,2)}, {s(P_W2,2)}
          s_mov_b32 {s(SA+2)}, 401408
          s_cselect_b32 {s(SA+2)}, 1605632, {s(SA+2)}
          s_cselect_b32 {s(sT1)}, 392, 0
          s_sub_u32 {s(sT0)}, {s(sT0)}, {s(sT1)}
          s_lshl_b32 {s(sRG)}, {s(sT0)}, {10 if OPT.get("tw", "23") == "23" else 8}""")
    A(f"""s_lshl_b32 {s(sT0)}, {s(sP)}, 6
          v_xor_b32 {v(vT0)}, {v(103)}, {v(102)}
          v_xor_b32 {v(vT0)}, {s(sT0)}, {v(vT0)}
          v_add_u32 {v(vT0)}, {v(vT0)}, {v(vTRN)}
          v_lshrrev_b32 {v(vT1)}, 7, {v(vTRN)}
          v_mul_u32_u24 {v(vT1)}, 56, {v(vT1)}
          s_mul_i32 {s(sT0)}, {s(sP)}, 28672
          v_add3_u32 {v(vT1)}, {v(vT1)}, {v(103)}, {s(sT0)}
          s_cmp_eq_u32 {s(sCB)}, 0
          s_cselect_b64 vcc, -1, 0
          v_cndmask_b32 {v(vT0)}, {v(vT0)}, {v(vT1)}, vcc
          v_add_u32 {v(29)}, {LA}, {v(vT0)}""")
    early_stamp(3)
    barrier()
    for kb in range(7):
        dma(sT4, LX + kb * 8192, vWQ, SX, (None, "0"), "X", imm=kb * 128)
    touch("x")
    early_stamp(4)
    A.wait_vm("WA")
    barrier()
    early_stamp(5)
    A(f"s_cmp_ge_u32 {s(sW8)}, 4\ns_cbranch_scc1 L_att")
    return list(A.vm)


def touch(where):
    if OPT.get("tat", "p1") != where:
        return
    A(f"v_lshlrev_b32 {v(vT0)}, 7, {v(vLANE)}\ns_mov_b64 exec, {255 if OPT.get('tw', '23') == '23' else 3}")
    A.vmem(f"buffer_load_dword {a(127)}, {v(vT0)}, {s(SA,4)}, {s(sRG)} offen", "t")
    A("s_mov_b64 exec, -1")


def stat_part(between):
    for j in range(7):
        A.ds(f"ds_read_b128 {v(SXR[j],4)}, {v(108)} offset:{j*8192}", ("sx", j))
    between()
    for j in range(7):
        A.wait_lg(("sx", j))
        for i in range(4):
            r = SXR[j] + i
            A(f"v_dot2c_f32_bf16 {v(30)}, {s(sT5)}, {v(r)}\nv_dot2c_f32_bf16 {v(31)}, {v(r)}, {v(r)}")
    A("s_nop 2")
    halves(30, vT2)
    halves(31, vT3)
    A(f"v_add_f32 {v(30)}, {v(30)}, {v(vT2)}\nv_add_f32 {v(31)}, {v(31)}, {v(vT3)}")
    A.ds(f"ds_write_b64 {v(111)}, {v(30,2)}", "statw")
    A.drain_lg()


def barrier():
    A("s_barrier")


def stat_read():
    for q in range(4):
        A.ds(f"ds_read_b64 {v(112+2*q,2)}, {v(110)} offset:{q*256}", "stat")


def stat_fin(vM, vVar):
    A.wait_lg("stat")
    for op in stat_fin_ops(vM, vVar):
        A(op)


def stat_fin_ops(vM, vVar):
    return (f"""v_add_f32 {v(112)}, {v(112)}, {v(114)}
          v_add_f32 {v(113)}, {v(113)}, {v(115)}
          v_add_f32 {v(116)}, {v(116)}, {v(118)}
          v_add_f32 {v(117)}, {v(117)}, {v(119)}
          v_add_f32 {v(112)}, {v(112)}, {v(116)}
          v_add_f32 {v(113)}, {v(113)}, {v(117)}
          v_mul_f32 {v(vM)}, {f32(1/448)}, {v(112)}
          v_mul_f32 {v(112)}, {v(vM)}, {v(vM)}
          v_mul_f32 {v(113)}, {f32(1/448)}, {v(113)}
          v_sub_f32 {v(113)}, {v(113)}, {v(112)}
          v_max_f32 {v(vVar)}, 0, {v(113)}""").split("\n")


def own_slot(base):
    return (f"s_lshl_b32 {s(sT0)}, {s(sTB)}, 3\ns_add_u32 {s(sT0)}, {s(sT0)}, {s(sCB)}\n"
            f"s_lshl_b32 {s(sT0)}, {s(sT0)}, 7\ns_add_u32 {s(sT0)}, {s(sT0)}, {base}")


late = []


def mlp(vm_entry):
    A.vm = list(vm_entry)
    vXD, vX1P, vW, vW3, vM, vR, vWA = 8, 16, 24, 26, 27, 28, 29
    vRA, vRB = [2, 3], [25, 31]
    acc, cs, ring, ones = 32, 48, 64, 96
    xnear, hnear = "x" in OPT.get("near", "xo"), "h" in OPT.get("near", "xo")
    A("s_setprio " + OPT.get("prio", "2"))
    vXA = 124
    setup = []
    for r, p, n in ((S2, P_W2, 401408), (SQ, P_W3, 1605632), (S4, P_W4, 1605632), (SO, P_WO, 401408), (SOUT, P_OUT, 1835008)):
        setup += [f"s_mov_b64 {s(r,2)}, {s(p,2)}", f"s_mov_b32 {s(r+2)}, {n}", f"s_mov_b32 {s(r+3)}, 0x20000"]
    setup += f"""s_max_u32 {s(sT1)}, {s(sCB)}, 1
          s_sub_u32 {s(sT1)}, {s(sT1)}, 1
          s_lshl_b32 {s(sT4)}, {s(sT1)}, 1
          s_add_u32 {s(sT4)}, {s(sT4)}, {s(sP)}
          s_mul_i32 {s(sPA)}, {s(sW)}, 14336
          s_mul_i32 {s(sPB)}, {s(sW)}, 11264
          s_add_u32 {s(sPB)}, {s(sPB)}, {LQ}
          s_mul_i32 {s(sB1)}, {s(sW)}, {112*896}
          s_mul_i32 {s(sB4)}, {s(sW)}, {448*896}
          s_and_b32 {s(sR)}, {s(sTB)}, 3
          s_lshl_b32 {s(sR)}, {s(sR)}, 1
          s_add_u32 {s(sR)}, {s(sR)}, {s(sCB)}
          s_cmp_ge_u32 {s(sR)}, 7
          s_cselect_b32 {s(sT0)}, 7, 0
          s_sub_u32 {s(sR)}, {s(sR)}, {s(sT0)}
          v_mul_u32_u24 {v(vT0)}, 896, {v(vC8)}
          s_lshl_b32 {s(sT0)}, {s(sT1)}, 7
          v_add3_u32 {v(vW)}, {v(vT0)}, {v(vC7)}, {s(sT0)}
          v_mul_u32_u24 {v(vT0)}, 3584, {v(vC8)}
          s_lshl_b32 {s(sT0)}, {s(sT1)}, 9
          s_lshl_b32 {s(sT2)}, {s(sW)}, 7
          s_add_u32 {s(sT0)}, {s(sT0)}, {s(sT2)}
          v_add3_u32 {v(vW3)}, {v(vT0)}, {v(vC7)}, {s(sT0)}
          s_lshl_b32 {s(sT0)}, {s(sP)}, 6
          v_xor_b32 {v(103)}, {v(103)}, {v(102)}
          v_xor_b32 {v(102)}, {s(sT0)}, {v(103)}
          s_lshl_b32 {s(sT3)}, {s(sT1)}, 13
          v_lshrrev_b32 {v(vT1)}, 5, {v(vLANE)}
          v_lshlrev_b32 {v(vT2)}, 4, {v(vT1)}
          v_xor_b32 {v(vXA)}, {v(vXF)}, {v(vT2)}
          v_xor_b32 {v(vXA)}, {s(sT0)}, {v(vXA)}
          v_lshl_add_u32 {v(vXA)}, {v(vT1)}, 3, {v(vXA)}
          v_add_u32 {v(vXA)}, {s(sT3)}, {v(vXA)}
          v_xor_b32 {v(vXA+1)}, 16, {v(vXA)}
          v_xor_b32 {v(vXA+2)}, 32, {v(vXA)}
          v_xor_b32 {v(vXA+3)}, 48, {v(vXA)}""".split("\n")

    def colsums(kstride, second):
        def step(ks):
            if ks < 28:
                tr(("a", 4 * ks), vWA, ks * kstride, second, ("w", ks))
            if ks >= 4:
                A.wait_lg(("w", ks - 4))
                mfma(v(cs, 16), a(4 * (ks - 4), 4), v(ones, 4), 0 if ks == 4 else None)
        weave(A, [lambda ks=ks: step(ks) for ks in range(32)], [lambda t=t: A(t) for t in setup])

    A(f"s_cmp_eq_u32 {s(sCB)}, 0\ns_cbranch_scc1 L_cskv")
    colsums(2048, 512)
    A.label("L_csdone")
    late.append(lambda: (A.label("L_cskv"), colsums(896, 224), A("s_branch L_csdone")))
    early_stamp(6)
    A.wait_vm("X")
    barrier()
    early_dump()
    stamp()
    NX = 6

    def xr(ks):
        A.ds(f"ds_read_b128 {v(ring + 4 * (ks % NX), 4)}, {v(vXF + (ks & 3))} offset:{(ks >> 2) * 8192}", ("x", ks))

    def first():
        for ks in range(NX - 1):
            xr(ks)
        for g in range(4):
            A.ds(f"ds_read_b64 {v(vXD+2*g,2)}, {v(vXA+g)}", "xd")
    stat_part(first)
    barrier()
    vC1g, vC2g, vRI, vR2 = 120, 121, 122, 123
    ne2 = int(OPT.get("ne2", 0))

    def w2dma(j, hs=(0, 1)):
        base, off = (sT3, LA + 24576 + j * 2048) if j < ne2 else (sPA, j * 2048)
        image(base, off, vW, S2, lambda e: f"s_add_u32 {s(sT0)}, {s(sB1)}, {j * 16 * 896 + e}", 896, "W2", hs)
    A(f"s_lshl_b32 {s(sT3)}, {s(sW)}, 13")
    fin = stat_fin_ops(vM, vR) + f"""v_add_f32 {v(vT0)}, {f32(EPS)}, {v(vR)}
          v_rsq_f32 {v(vT1)}, {v(vT0)}
          v_mov_b32 {v(vT3)}, {f32(EPS)}
          v_mul_f32 {v(vT2)}, {v(vT1)}, {v(vT1)}
          v_fma_f32 {v(vT2)}, {v(vT2)}, {v(vR)}, {v(vT3)}
          v_rsq_f32 {v(vT2)}, {v(vT2)}
          v_mov_b32 {v(vR)}, {v(vT1)}
          v_mul_f32 {v(vR2)}, {v(vT1)}, {v(vT2)}
          v_rcp_f32 {v(vRI)}, {v(vR2)}
          v_mul_f32 {v(vC1g)}, {f32(GC1)}, {v(vR2)}
          v_mul_f32 {v(vC2g)}, {v(vR2)}, {v(vR2)}
          v_mul_f32 {v(vC2g)}, {v(vC2g)}, {v(vR2)}
          v_mul_f32 {v(vC2g)}, {f32(GC2)}, {v(vC2g)}""".split("\n")
    fin += [f"v_mul_f32 {v(cs+i)}, {v(cs+i)}, {v(vM)}" for i in range(16)]
    for ks in range(28):
        if ks + NX - 1 < 28:
            xr(ks + NX - 1)
        if ks == 0:
            stat_read()
            nonce_issue(30)
        A.wait_lg(("x", ks))
        mfma(v(acc, 16), a(4 * ks, 4), v(ring + 4 * (ks % NX), 4), 0 if ks == 0 else None)
        if ks == 1:
            touch("p1")
        if 3 <= ks < 3 + 2 * ne2:
            skip = A.newlabel("w2")
            A(f"s_cmp_eq_u32 {s(sCB)}, 0\ns_cbranch_scc1 {skip}")
            w2dma((ks - 3) >> 1, ((ks - 3) & 1,))
            A.label(skip)
        if ks == 5:
            A.wait_lg("stat")
        if ks >= 5:
            for _ in range(3):
                if fin:
                    A(fin.pop(0))
    assert not fin
    arrive(C_PA)
    vm_kv = [t for t in A.vm if t != "W2"]
    A(f"s_cmp_eq_u32 {s(sCB)}, 0\ns_cbranch_scc1 L_kv\ns_nop 4")
    for i in range(16):
        A(f"v_sub_f32 {v(acc+i)}, {v(acc+i)}, {v(cs+i)}")
    stamp()
    pk = 64
    vHS = 74
    for i in range(8):
        for op in gelu_ops(acc + 2 * i, 72, pk + i, vC1g, vC2g, vRI):
            A(op)
        if i == 2:
            A(f"""v_and_b32 {v(vT0)}, 31, {v(vLANE)}
                  s_lshl_b32 {s(sT0)}, {s(sGT)}, 5
                  v_add_u32 {v(vT0)}, {s(sT0)}, {v(vT0)}
                  v_lshrrev_b32 {v(vT1)}, 5, {v(vLANE)}
                  v_lshlrev_b32 {v(vT1)}, 15, {v(vT1)}
                  v_lshl_add_u32 {v(vHS)}, {v(vT0)}, 4, {v(vT1)}
                  s_lshl_b32 {s(sT0)}, {s(sT4)}, 17
                  s_add_u32 {s(sT0)}, {s(sT0)}, {HB}
                  s_add_u32 {s(sT1)}, {s(sT0)}, 0x10000""")
        if i in (3, 7):
            A.vmem(f"buffer_store_dwordx4 {v(pk+(i&4),4)}, {v(vHS)}, {s(SW,4)}, {s(sT0 if i == 3 else sT1)} offen sc1", "hst")
    await_cnt(C_PA, 8)
    for j in range(ne2, 7):
        w2dma(j)
    nonce_take(30)
    signal(N_H, own_slot(FH), "hst")
    stamp()
    A(f"""s_add_u32 {s(sT0)}, {s(sT3)}, {LA + 24576}
          v_add3_u32 {v(32)}, {v(vTRD)}, {v(102)}, {s(sT0)}
          v_xor_b32 {v(33)}, 64, {v(32)}
          v_add_u32 {v(vT0)}, {s(sPA)}, {v(vTRD)}
          v_add_u32 {v(vT1)}, {s(sPB)}, {v(vTRD)}
          v_add_u32 {v(vRA[0])}, {v(vT0)}, {v(102)}
          v_xor_b32 {v(vRA[1])}, 64, {v(vRA[0])}
          v_add_u32 {v(vRB[0])}, {v(vT1)}, {v(102)}
          v_xor_b32 {v(vRB[1])}, 64, {v(vRB[0])}""")
    A.wait_vm("W2")
    for j in range(7):
        for b in range(2):
            tr(("a", 8 * j + 4 * b), 32 + b if j < ne2 else vRA[b], j * 2048, 1024, "w2")
    vH = 29
    A(f"""s_add_u32 {s(sT0)}, {s(sP)}, 1
          s_sub_u32 {s(sT1)}, 0, {s(sT0)}
          s_cmp_eq_u32 {s(sTT)}, 0
          s_cselect_b32 {s(sT0)}, {s(sT1)}, {s(sT0)}
          s_lshl_b32 {s(sT1)}, {s(sGT)}, 5
          s_add_u32 {s(sT1)}, {s(sT1)}, {s(sT0)}
          s_xor_b32 {s(sT2)}, {s(sGT)}, 1
          s_lshl_b32 {s(sT2)}, {s(sT2)}, 5
          s_add_u32 {s(sT2)}, {s(sT2)}, {s(sT0)}
          v_and_b32 {v(vT0)}, 31, {v(vLANE)}
          v_lshrrev_b32 {v(vT1)}, 5, {v(vLANE)}
          v_lshlrev_b32 {v(vT1)}, 15, {v(vT1)}
          v_mov_b32 {v(vT3)}, {OOB}""")
    for sl, sr in ((0, sT1), (1, sT2)):
        A(f"""v_add_u32 {v(vT2)}, {s(sr)}, {v(vT0)}
              v_cmp_gt_u32 vcc, 2048, {v(vT2)}
              v_lshl_add_u32 {v(vT2)}, {v(vT2)}, 4, {v(vT1)}
              s_nop 0
              v_cndmask_b32 {v(vH+sl)}, {v(vT3)}, {v(vT2)}, vcc""")

    def rot7(reg, u, scale, base):
        if u == 0:
            A(f"s_mul_i32 {s(reg)}, {s(sR)}, {scale}")
        else:
            A(f"""s_add_u32 {s(reg)}, {s(reg)}, {scale}
                  s_cmp_ge_u32 {s(reg)}, {7 * scale}
                  s_cselect_b32 {s(sT0)}, {7 * scale}, 0
                  s_sub_u32 {s(reg)}, {s(reg)}, {s(sT0)}""")

    def sdma(n, hs=(0, 1)):
        base, off = ring_addr(n % NRING)
        if n < 28:
            if n % 4 == 0 and 0 in hs:
                rot7(sRG, n // 4, 64 * 3584, None)
            image(base, off, vW3, SQ, lambda e: f"s_add_u32 {s(sT0)}, {s(sRG)}, {(n % 4) * 16 * 3584 + e}", 3584, ("S", n), hs)
        elif n < 56:
            p = n - 28
            if p % 2 == 0 and 0 in hs:
                rot7(sRG, (p % 14) // 2, 64 * 896, None)
                A(f"s_add_u32 {s(sT3)}, {s(sRG)}, {s(sB4)}")
            image(base, off, vW, S4, lambda e: f"s_add_u32 {s(sT0)}, {s(sT3)}, {(2 * (p // 14) + p % 2) * 16 * 896 + e}", 896, ("S", n), hs)
        else:
            k = n - 56
            image(base, off, vW, SO, lambda e: f"s_add_u32 {s(sT0)}, {s(sB1)}, {((k >> 1) * 28 + (k & 1) * 16) * 896 + e}", 896, ("S", n), hs)

    def sreg(n, b):
        return 8 * (n % 16) + 4 * b

    def sread(n, bs=(0, 1)):
        base, off = ring_addr(n % NRING)
        if n == 28 and 0 in bs:
            flip()
        A.wait_vm(("S", n))
        for b in bs:
            tr(("a", sreg(n, b)), (vRA if base == sPA else vRB)[b], off, 1024, ("s", n))

    def refill(n, hs=(0, 1)):
        if n < 64:
            A.wait_lg(("s", n - NRING))
            sdma(n, hs)

    def sread_p(n):
        return [lambda: sread(n, (0,)), lambda: sread(n, (1,))]

    def refill_p(n):
        return [lambda: refill(n, (0,)), lambda: refill(n, (1,))] if n < 64 else []

    def flip():
        A(f"s_lshl_b32 {s(sT0)}, {s(sP)}, 6")
        for r in vRA + vRB:
            A(f"v_xor_b32 {v(r)}, {s(sT0)}, {v(r)}")

    flip()
    early = int(OPT.get("early", 3))
    mid = int(OPT.get("mid", 6))
    A.drain_lg()
    arrive(C_W2)
    for n in range(early):
        sdma(n)
    cut("h")

    def setup_h():
        A(f"""v_lshrrev_b32 {v(vT0)}, 3, {v(vLANE)}
              s_sub_u32 {s(sT0)}, {s(sTB)}, 1
              v_add_u32 {v(vT0)}, {s(sT0)}, {v(vT0)}
              v_cmp_le_u32 vcc, 32, {v(vT0)}
              s_lshl_b32 {s(sT0)}, {s(sT0)}, 10
              s_add_u32 {s(sT0)}, {s(sT0)}, {FH}
              v_lshlrev_b32 {v(vT1)}, 7, {v(vLANE)}
              v_add_u32 {v(vT1)}, {s(sT0)}, {v(vT1)}
              s_mov_b32 {s(sINV)}, 0xff010101
              s_mov_b32 {s(sINV+1)}, -1
              s_or_b64 {s(sINV,2)}, {s(sINV,2)}, vcc""")
        lanes_to(vT1)

    acc0, vRW = 104, 120
    A(f"v_mul_f32 {v(vM)}, {v(vM)}, {v(vR)}")
    for i in range(8):
        A(f"""v_lshlrev_b32 {v(88)}, 16, {v(vXD+i)}
              v_and_b32 {v(89)}, 0xffff0000, {v(vXD+i)}
              v_fma_f32 {v(acc0+2*i)}, {v(88)}, {v(vR)}, -{v(vM)}
              v_fma_f32 {v(acc0+2*i+1)}, {v(89)}, {v(vR)}, -{v(vM)}""")
    for sl in range(4):
        A(f"""s_xor_b32 {s(sT0)}, {s(sW)}, {sl}
              s_mul_i32 {s(sT0)}, {s(sT0)}, 14336
              s_add_u32 {s(sT0)}, {s(sT0)}, {LA}
              v_add_u32 {v(vRW+sl)}, {s(sT0)}, {v(vL16)}""")
    await_cnt(C_W2)
    gate(G_H, setup_h, 32, payload=lambda: (A(f"s_mov_b32 {s(sT2)}, 0xfe00"), note_die(34)))
    read_mode()
    if "hold" in OPT:
        await_cnt(G_K, 1)
    stamp()
    hf = 32
    A(f"s_mul_i32 {s(sT5)}, {s(sW)}, {7 << 16}\ns_add_u32 {s(sT5)}, {s(sT5)}, {HB}")
    for j in range(7):
        if j:
            A(f"s_add_u32 {s(sT5)}, {s(sT5)}, 0x10000")
        for sl in range(2):
            A.vmem(f"buffer_load_dwordx4 {v(hf + 8*j + 4*sl, 4)}, {v(vH+sl)}, {s(SW,4)}, {s(sT5)} offen sc1", ("h", j))
    await_cnt(C_QD)
    accs = [v(acc0, 16), a(64, 16), a(80, 16), a(96, 16)]
    for j in range(7):
        A.wait_vm(("h", j))
        for sl in (1, 2, 3, 0):
            mfma(accs[sl], a(8 * j + 4 * (sl >> 1), 4), v(hf + 8 * j + 4 * (sl & 1), 4), 0 if j == 0 and sl else None)
    sdma(early)
    A("s_nop 3")
    offs1 = [(0, i * 1024) for i in range(12)]
    reduce_out([("a", 64), ("a", 80), ("a", 96)], C_R1, [vRW], offs1, [lambda n=n: sdma(n) for n in range(early + 1, early + mid)])

    reduce_in(acc0, 32, C_R1, lambda sl: [vRW + sl], offs1)
    for i in range(8):
        A(f"v_cvt_pk_bf16_f32 {v(vX1P+i)}, {v(acc0+2*i)}, {v(acc0+2*i+1)}")
    A(f"""s_mul_i32 {s(sT0)}, {s(sGT)}, 14
          s_add_u32 {s(sT0)}, {s(sT0)}, {s(sT4)}
          s_lshl_b32 {s(sT1)}, {s(sT0)}, 11
          s_add_u32 {s(sT1)}, {s(sT1)}, {X1}
          s_lshl_b32 {s(sT0)}, {s(sT0)}, 8
          s_add_u32 {s(sT2)}, {s(sT0)}, {ST}""")
    hstore([f"buffer_store_dwordx4 {v(vX1P,4)}, {v(vL16)}, {s(SW,4)}, {s(sT1)} offen",
            f"buffer_store_dwordx4 {v(vX1P+4,4)}, {v(vL16)}, {s(SW,4)}, {s(sT1)} offen offset:1024"], "xst", xnear)
    A(f"""v_add_f32 {v(32)}, {v(acc0)}, {v(acc0+1)}
          v_mul_f32 {v(33)}, {v(acc0)}, {v(acc0)}
          v_fma_f32 {v(33)}, {v(acc0+1)}, {v(acc0+1)}, {v(33)}""")
    for i in range(2, 16):
        A(f"v_add_f32 {v(32)}, {v(32)}, {v(acc0+i)}\nv_fma_f32 {v(33)}, {v(acc0+i)}, {v(acc0+i)}, {v(33)}")
    halves(32, 34)
    halves(33, 35)
    A(f"""v_add_f32 {v(32)}, {v(32)}, {v(34)}
          v_add_f32 {v(33)}, {v(33)}, {v(35)}
          v_lshlrev_b32 {v(34)}, 3, {v(vLANE)}
          s_not_b64 exec, {s(sHI,2)}""")
    hstore([f"buffer_store_dwordx2 {v(32,2)}, {v(34)}, {s(SW,4)}, {s(sT2)} offen"], "xst", xnear)
    A("s_mov_b64 exec, -1")
    stamp()
    cut("p2")
    for n in range(early + mid, NRING):
        sdma(n)
    A(f"""s_mul_i32 {s(sK)}, {s(sTB)}, {2 * 112}
          s_lshl_b32 {s(sT0)}, {s(sCB)}, 2
          s_add_u32 {s(sT0)}, {s(sT0)}, {s(sW)}
          s_sub_u32 {s(sT0)}, {s(sT0)}, 4
          s_lshl_b32 {s(sT0)}, {s(sT0)}, 2
          s_add_u32 {s(sK)}, {s(sK)}, {s(sT0)}
          s_lshl_b32 {s(sK)}, {s(sK)}, 10
          s_add_u32 {s(sK)}, {s(sK)}, {HH}""")
    npre = int(OPT.get("npre", 9))
    xsig = int(OPT.get("xsig", 4))
    for n in range(npre + 1):
        if n < npre:
            sread(n)
        if n == xsig:
            signal(N_X, own_slot(FX), "xst", near=xnear)
        if n >= 1:
            refill(n - 1 + NRING)
    stamp()
    cut("w3")

    def setup_x():
        A(f"""s_lshl_b32 {s(sT0)}, {s(sTB)}, 10
              s_add_u32 {s(sT0)}, {s(sT0)}, {FX}
              s_lshl_b32 {s(sT1)}, {s(sCB)}, 9
              s_add_u32 {s(sT1)}, {s(sT1)}, {FC - 512 - 1024}
              v_lshlrev_b32 {v(vT0)}, 7, {v(vLANE)}
              v_add_u32 {v(vT1)}, {s(sT0)}, {v(vT0)}
              v_add_u32 {v(vT0)}, {s(sT1)}, {v(vT0)}
              s_mov_b64 vcc, 0xff
              v_cndmask_b32 {v(vT1)}, {v(vT0)}, {v(vT1)}, vcc
              s_mov_b32 {s(sINV)}, 0xfffff001
              s_mov_b32 {s(sINV+1)}, -1""")
        lanes_to(vT1)
    gate(G_X, setup_x, 32)
    stamp()
    A(f"""s_mul_i32 {s(sT1)}, {s(sTB)}, {56 * 1024}
          s_add_u32 {s(sT1)}, {s(sT1)}, {X1}
          s_lshl_b32 {s(sT3)}, {s(sW)}, 10
          s_lshl_b32 {s(sT2)}, {s(sR)}, 12
          s_add_u32 {s(sT2)}, {s(sT2)}, {s(sT3)}
          s_add_u32 {s(sT3)}, {s(sT3)}, {LA}""")
    for i in range(7):
        if i:
            A(f"""s_add_u32 {s(sT2)}, {s(sT2)}, 4096
                  s_sub_u32 {s(sT5)}, {s(sT2)}, 28672
                  s_cmp_ge_u32 {s(sT2)}, 28672
                  s_cselect_b32 {s(sT2)}, {s(sT5)}, {s(sT2)}""")
        A(f"s_add_u32 {s(sT5)}, {s(sT1)}, {s(sT2)}")
        for tt in range(2):
            dma(sT3, tt * 28672 + i * 4096, vL16, SW, (f"s_add_u32 {s(sT0)}, {s(sT5)}, {tt * 28672}", s(sT0)), ("x1", min(i // 2, 2)), sc=" sc1")
    vB, stt, cst, bring = 27, 32, 28, 40
    A(f"""v_and_b32 {v(vT0)}, 31, {v(vLANE)}
          v_lshrrev_b32 {v(vT1)}, 5, {v(vLANE)}
          v_mul_u32_u24 {v(vT1)}, {14 * 256}, {v(vT1)}
          v_lshl_add_u32 {v(vT2)}, {v(vT0)}, 3, {v(vT1)}
          s_mul_i32 {s(sT1)}, {s(sTB)}, {28 * 256}
          s_lshl_b32 {s(sT2)}, {s(sW)}, 8
          s_add_u32 {s(sT1)}, {s(sT1)}, {s(sT2)}
          s_add_u32 {s(sT1)}, {s(sT1)}, {ST}
          s_cmp_lt_u32 {s(sW)}, 2
          s_cselect_b32 {s(sT2)}, {s(sT1)}, {OOB}
          v_add_u32 {v(vB)}, {LA}, {v(vL16)}""")
    for i in range(4):
        A.vmem(f"buffer_load_dwordx2 {v(stt+2*i,2)}, {v(vT2)}, {s(SW,4)}, {s(sT1 if i < 3 else sT2)} offen offset:{i*1024} sc1", "st")
    A(f"""s_lshl_b32 {s(sT1)}, {s(sCB)}, 2
          s_add_u32 {s(sT1)}, {s(sT1)}, {s(sW)}
          s_lshl_b32 {s(sT1)}, {s(sT1)}, 9
          s_add_u32 {s(sT1)}, {s(sT1)}, {CS - 2048}
          v_lshlrev_b32 {v(vT3)}, 3, {v(vLANE)}""")
    A.vmem(f"buffer_load_dwordx2 {v(cst,2)}, {v(vT3)}, {s(SW,4)}, {s(sT1)} offen sc1", "cs")
    A.wait_vm(("x1", 0))
    arrive(C_XA)
    await_cnt(C_XA)
    acc4 = [64, 80, 96, 112]

    def bread(ks):
        for tt in range(2):
            A.ds(f"ds_read_b128 {v(bring + 8 * (ks % 3) + 4 * tt, 4)}, {v(vB)} offset:{(tt * 28 + ks) * 1024}", ("b", ks))

    lag = int(OPT.get("lag", 7))
    plan, rstep = {}, {}
    nxt = npre
    for ks in range(28):
        while nxt < 44 and len(plan.get(ks, [])) < 2:
            ready = nxt - 16 < ks and (nxt - NRING < npre or rstep[nxt - NRING] + 1 + lag <= ks)
            if not (ready or (nxt < 28 and nxt - 2 <= ks)):
                break
            plan.setdefault(ks, []).append(nxt)
            rstep[nxt] = ks
            nxt += 1
    assert nxt >= 28 and all(n - 16 < ks and (n >= 28 or n >= ks + 1) for ks in plan for n in plan[ks]), plan
    pend = []
    if "p4" in OPT:
        stamp()
    bread(0)
    bread(1)
    for ks in range(28):
        if ks == 2:
            A.wait_vm(("x1", 1))
            arrive(C_XA)
        if ks == 5:
            await_cnt(C_XA, 8)
        if ks == 8:
            A.wait_vm(["cs", "st", ("x1", 2)])
            A(f"""v_add_f32 {v(stt)}, {v(stt)}, {v(stt+2)}
                  v_add_f32 {v(stt+1)}, {v(stt+1)}, {v(stt+3)}
                  v_add_f32 {v(stt+4)}, {v(stt+4)}, {v(stt+6)}
                  v_add_f32 {v(stt+5)}, {v(stt+5)}, {v(stt+7)}
                  s_lshl_b32 {s(sT0)}, {s(sW)}, 9
                  s_add_u32 {s(sT0)}, {s(sT0)}, {L_STAT}
                  v_add_f32 {v(stt)}, {v(stt)}, {v(stt+4)}
                  v_add_f32 {v(stt+1)}, {v(stt+1)}, {v(stt+5)}
                  v_lshl_add_u32 {v(vT2)}, {v(vLANE)}, 3, {s(sT0)}""")
            A.ds(f"ds_write_b64 {v(vT2)}, {v(stt,2)}", "sw")
            arrive(C_XB)
        if ks == 13:
            await_cnt(C_XB)
            A(f"v_lshlrev_b32 {v(vT2)}, 3, {v(vLANE)}\nv_add_u32 {v(vT2)}, {L_STAT}, {v(vT2)}")
            for q in range(4):
                A.ds(f"ds_read_b64 {v(stt+2*q,2)}, {v(vT2)} offset:{q*512}", "sr")
        A.wait_lg([("b", ks), ("s", ks)])
        acts = [lambda: bread(ks + 2)] if ks + 2 < 28 else []
        rd = [f for n in plan.get(ks, []) for f in sread_p(n)]
        rf = [f for n in pend for f in refill_p(n + NRING)]
        while rd or rf:
            acts += rf[:1] + rd[:1]
            rf, rd = rf[1:], rd[1:]
        pend = plan.get(ks, [])
        gaps([lambda t=t: mfma(v(acc4[t], 16), a(sreg(ks, t >> 1), 4), v(bring + 8 * (ks % 3) + 4 * (t & 1), 4), 0 if ks == 0 else None)
              for t in range(4)], acts)
        if "p4" in OPT and ks in (3, 6, 12, 15, 21):
            stamp()
        if ks == 16:
            A.wait_lg("sr")
            A(f"""v_add_f32 {v(stt)}, {v(stt)}, {v(stt+2)}
                  v_add_f32 {v(stt+1)}, {v(stt+1)}, {v(stt+3)}
                  v_add_f32 {v(stt+4)}, {v(stt+4)}, {v(stt+6)}
                  v_add_f32 {v(stt+5)}, {v(stt+5)}, {v(stt+7)}
                  v_add_f32 {v(stt)}, {v(stt)}, {v(stt+4)}
                  v_add_f32 {v(stt+1)}, {v(stt+1)}, {v(stt+5)}
                  v_add_f32 {v(cst)}, {v(cst)}, {v(cst+1)}""")
        if ks == 17:
            A(f"""v_mul_f32 {v(stt)}, {f32(-1/448)}, {v(stt)}
                  v_mul_f32 {v(stt+1)}, {f32(1/448)}, {v(stt+1)}
                  v_mul_f32 {v(stt+2)}, {v(stt)}, {v(stt)}
                  v_sub_f32 {v(stt+1)}, {v(stt+1)}, {v(stt+2)}
                  v_max_f32 {v(stt+1)}, 0, {v(stt+1)}
                  v_add_f32 {v(stt+1)}, {f32(EPS)}, {v(stt+1)}""")
        if ks == 18:
            halves(stt, stt + 2)
            halves(stt + 1, stt + 3)
            halves(cst, cst + 1)
    arrive(C_P4)
    vAE, vBE, gt, gpk = 40, 48, 56, 40
    for nt in range(2):
        c = cst + nt
        A(f"""v_cvt_pk_bf16_f32 {v(vT0)}, {v(c)}, {v(c)}
              v_and_b32 {v(vT1)}, 0xffff0000, {v(vT0)}
              v_sub_f32 {v(vT1)}, {v(c)}, {v(vT1)}
              v_cvt_pk_bf16_f32 {v(vAE+4*nt)}, {v(c)}, {v(vT1)}
              v_and_b32 {v(vAE+4*nt+1)}, 0xffff, {v(vT0)}
              v_mov_b32 {v(vAE+4*nt+2)}, 0
              v_mov_b32 {v(vAE+4*nt+3)}, 0""")
    for tt in range(2):
        m, b = stt + 2 * tt, vBE + 4 * tt
        A(f"""v_cvt_pk_bf16_f32 {v(vT0)}, {v(m)}, {v(m)}
              v_and_b32 {v(vT1)}, 0xffff0000, {v(vT0)}
              v_sub_f32 {v(vT1)}, {v(m)}, {v(vT1)}
              v_cvt_pk_bf16_f32 {v(vT1)}, {v(vT1)}, 0
              v_cndmask_b32 {v(b)}, {v(vT0)}, 0, {s(sHI,2)}
              v_cndmask_b32 {v(b+1)}, {v(vT1)}, 0, {s(sHI,2)}
              v_mov_b32 {v(b+2)}, 0
              v_mov_b32 {v(b+3)}, 0""")
    A("s_nop 0")
    for t in range(4):
        mfma(v(acc4[t], 16), v(vAE + 4 * (t >> 1), 4), v(vBE + 4 * (t & 1), 4))
    kk = [60, 36]
    for tt in range(2):
        e, k = stt + 2 * tt + 1, kk[tt]
        A(f"""v_rsq_f32 {v(vT0)}, {v(e)}
              s_nop 0
              v_mul_f32 {v(k+2)}, {v(e)}, {v(vT0)}
              v_mul_f32 {v(k)}, {f32(GC1)}, {v(vT0)}
              v_mul_f32 {v(k+1)}, {v(vT0)}, {v(vT0)}
              v_mul_f32 {v(k+1)}, {v(k+1)}, {v(vT0)}
              v_mul_f32 {v(k+1)}, {f32(GC2)}, {v(k+1)}""")
    stamp()
    ops = []
    for t in range(4):
        tt, b = t & 1, t >> 1
        for i in range(8):
            def pair(i=i, t=t, tt=tt):
                for op in gelu_ops(acc4[t] + 2 * i, gt, gpk + 8 * (t & 1) + i, kk[tt], kk[tt] + 1, kk[tt] + 2):
                    A(op)
            ops.append(pair)
            if i in (3, 7):
                def st(c=i >> 2, t=t, tt=tt, b=b):
                    A(f"s_add_u32 {s(sT0)}, {s(sK)}, {(tt * 112 + b * 2) * 1024}")
                    hstore([f"buffer_store_dwordx4 {v(gpk+8*(t&1)+4*c,4)}, {v(vL16)}, {s(SW,4)}, {s(sT0)} offen offset:{c*1024}"], ("Hst", b), hnear)
                ops.append(st)
        if t == 2:
            ops.append(lambda: signal(N_G, own_slot(FG), ("Hst", 0), near=hnear))
    fill = [f for n in pend for f in refill_p(n + NRING)]
    for n in range(nxt, 44):
        fill.append(lambda n=n: sread(n))
        if n > nxt:
            fill += refill_p(n - 1 + NRING)
    weave(A, ops, fill)
    if nxt < 44:
        refill(43 + NRING)
    vHH = 26
    A(f"""s_mul_i32 {s(sT0)}, {s(sGT)}, 4
          s_add_u32 {s(sT0)}, {s(sT0)}, {s(sW)}
          s_mul_i32 {s(sT0)}, {s(sT0)}, {28 * 1024}
          v_add_u32 {v(vHH)}, {s(sT0)}, {v(vL16)}
          s_xor_b32 {s(sT0)}, {s(sGT)}, 1
          s_mul_i32 {s(sT0)}, {s(sT0)}, 4
          s_add_u32 {s(sT0)}, {s(sT0)}, {s(sW)}
          s_mul_i32 {s(sT0)}, {s(sT0)}, {28 * 1024}
          v_add_u32 {v(vHH+1)}, {s(sT0)}, {v(vL16)}""")
    acc6 = [64, 80, 96, 112]
    for i in range(8):
        A(f"v_lshlrev_b32 {v(64+2*i)}, 16, {v(vX1P+i)}\nv_and_b32 {v(65+2*i)}, 0xffff0000, {v(vX1P+i)}")
    stamp()
    cut("w4")

    def setup_tb(base, inv):
        def f():
            A(f"""s_lshl_b32 {s(sT0)}, {s(sTB)}, 10
                  s_add_u32 {s(sT0)}, {s(sT0)}, {base}
                  v_lshlrev_b32 {v(vT1)}, 7, {v(vLANE)}
                  v_add_u32 {v(vT1)}, {s(sT0)}, {v(vT1)}
                  s_mov_b32 {s(sINV)}, {inv}
                  s_mov_b32 {s(sINV+1)}, -1""")
            lanes_to(vT1)
        return f
    peek_issue(setup_tb(FG, 0xffffff01), 34, 36)
    vO, vOUT = 28, 30
    A(f"""s_lshl_b32 {s(sT0)}, {s(sGT)}, 2
          s_add_u32 {s(sT0)}, {s(sT0)}, {s(sW)}
          s_lshl_b32 {s(sT0)}, {s(sT0)}, 13
          v_add_u32 {v(vO)}, {s(sT0)}, {v(vL16)}
          v_xor_b32 {v(vO+1)}, 0x8000, {v(vO)}
          v_and_b32 {v(32)}, 31, {v(vLANE)}
          s_lshl_b32 {s(sT0)}, {s(sGT)}, 5
          v_add_u32 {v(32)}, {s(sT0)}, {v(32)}
          v_mul_u32_u24 {v(32)}, 896, {v(32)}
          v_lshrrev_b32 {v(33)}, 5, {v(vLANE)}
          v_lshl_add_u32 {v(32)}, {v(33)}, 4, {v(32)}
          s_lshl_b32 {s(sT0)}, {s(sT4)}, 6
          v_add_u32 {v(vOUT)}, {s(sT0)}, {v(32)}""")
    signal(N_G2, own_slot(FG2), ("Hst", 1), near=hnear)
    peek_check(34, 36)
    stamp()
    hslots = [32, 36, 40, 44, 48, 52, 56, 60, 16, 20]
    NH = int(OPT.get("nh", 10))
    hsc = "" if "hplain" in OPT else " sc1"

    def bload(n):
        p, sl = n >> 1, n & 1
        if n < 56:
            if p % 2 == 0 and sl == 0:
                rot7(sRH, (p % 14) // 2, 4096, None)
                A(f"s_add_u32 {s(sV)}, {s(sRH)}, {HH}")
            addr, imm = vHH + sl, (2 * (p // 14) + p % 2) * 1024
        else:
            if p % 4 == 0 and sl == 0:
                A(f"s_mov_b32 {s(sV)}, {OB + 1024 * (p - 28)}")
            addr, imm = vO + sl, (p & 3) * 1024
        A.vmem(f"buffer_load_dwordx4 {v(hslots[n % NH], 4)}, {v(addr)}, {s(SW,4)}, {s(sV)} offen offset:{imm}{hsc}", ("H", n))

    def slotoffs(first):
        return [(0, i * 1024) if i < 14 else (1, (i - 14) * 1024) for i in range(first, first + 12)]

    vRW2 = [24, 25]
    for n in range(NH):
        if n == 8 and xnear and "noclean" not in OPT:
            A(f"""s_mul_i32 {s(sT0)}, {s(sGT)}, 14
                  s_add_u32 {s(sT0)}, {s(sT0)}, {s(sT4)}
                  s_lshl_b32 {s(sT0)}, {s(sT0)}, 11
                  s_add_u32 {s(sT0)}, {s(sT0)}, {X1}
                  s_cmp_lg_u32 {s(sLOC)}, 0
                  s_cselect_b32 {s(sT0)}, {s(sT0)}, {OOB}""")
            A.vmem(f"buffer_store_dwordx4 {v(vX1P,4)}, {v(vL16)}, {s(SW,4)}, {s(sT0)} offen sc1", "cl")
            A.vmem(f"buffer_store_dwordx4 {v(vX1P+4,4)}, {v(vL16)}, {s(SW,4)}, {s(sT0)} offen offset:1024 sc1", "cl")
        bload(n)
    if OPT.get("tail", "ring") == "ring":
        vG, vA2 = 64, [24, 25, 26, 27, 2, 3, 31, 29 if NH == 10 else 63]

        def partner(sl):
            A(f"""s_xor_b32 {s(sT0)}, {s(sW)}, {sl}
                  s_mul_i32 {s(sT1)}, {s(sT0)}, 14336
                  s_mul_i32 {s(sT0)}, {s(sT0)}, 11264
                  s_add_u32 {s(sT0)}, {s(sT0)}, {LQ}
                  v_add_u32 {v(vA2[2*sl])}, {s(sT1)}, {v(vL16)}
                  v_add_u32 {v(vA2[2*sl+1])}, {s(sT0)}, {v(vL16)}""")
        side = {28: [], 29: [], 30: [], 31: [], 32: [], 33: [], 34: [], 35: []}
        for i in range(12):
            side[28 + (i + 2) // 5 + (1 if i < 0 else 0)].append(
                lambda i=i: A.ds(f"ds_write_b128 {v(24)}, {v(80 + 4 * i, 4)} offset:{i * 1024}", "red"))
        side[30].append(lambda: arrive(C_R2))
        side[32].append(lambda: await_cnt(C_R2))
        for sl in (1, 2, 3):
            side[32].append(lambda sl=sl: [A.ds(f"ds_read_b128 {v(64 + 16 * sl + 4 * q, 4)}, {v(vA2[2*sl])} offset:{((sl - 1) * 4 + q) * 1024}", ("rd", sl)) for q in range(4)])
        valu = []
        for sl in (1, 2, 3):
            valu.append(lambda sl=sl: A.wait_lg(("rd", sl)))
            valu += [lambda sl=sl, i=i: A(f"v_add_f32 {v(vG+i)}, {v(vG+i)}, {v(64 + 16 * sl + i)}") for i in range(16)]
        for i in range(8):
            y = vG + 2 * i
            valu += [lambda t=t: A(t) for t in f"""v_mul_f32 {v(80)}, {f32(-LOG2E)}, {v(y)}
                  v_mul_f32 {v(81)}, {f32(-LOG2E)}, {v(y+1)}
                  v_exp_f32 {v(80)}, {v(80)}
                  v_exp_f32 {v(81)}, {v(81)}
                  v_add_f32 {v(80)}, 1.0, {v(80)}
                  v_add_f32 {v(81)}, 1.0, {v(81)}
                  v_rcp_f32 {v(80)}, {v(80)}
                  v_rcp_f32 {v(81)}, {v(81)}
                  v_mul_f32 {v(y)}, {v(y)}, {v(80)}
                  v_mul_f32 {v(y+1)}, {v(y+1)}, {v(81)}""".split("\n")]
        nin = int(OPT.get("nin", 90))
        for n, f in enumerate(valu[:nin]):
            side[33 + (3 * n) // nin].append(f)
        for j in range(36):
            A.wait_vm(("H", 2 * j + 1))
            A.wait_lg(("s", 28 + j))
            if 2 * j + NH in (28, 56):
                peek_check()

            def mm(sl):
                d = v(acc6[sl], 16) if j < 28 else a(16 * sl, 16)
                mfma(d, a(sreg(28 + j, sl >> 1), 4), v(hslots[(2 * j + (sl & 1)) % NH], 4), 0 if (j == 0 and sl) or j == 28 else None)
            rd = sread_p(43 + j) if 1 <= j <= 20 else [None, None]
            rf = (refill_p(43 + j - 1 + NRING) if j >= 2 else []) or [None, None]
            ld = [(lambda n=n: bload(n)) if n < 72 else None for n in (2 * j + NH, 2 * j + NH + 1)]
            ex = side.get(j, [])
            lo = 2 if j == 28 else 0
            cut_ = [0] * (lo + 1) + [-(-len(ex) * (g + 1) // (4 - lo)) for g in range(4 - lo)]
            for g, (sl, todo) in enumerate(((0, [rf[0]]), (2, [ld[0], rd[0]]), (1, [rf[1]]), (3, [ld[1], rd[1]]))):
                mm(sl)
                if j == 28 and g == 1:
                    A("s_nop 6")
                for f in todo + ex[cut_[g]:cut_[g + 1]]:
                    if f:
                        f()
            if 2 * j + NH == 22:
                peek_issue(setup_tb(FG2, 0xffffff01))
            if 2 * j + NH == 50:
                peek_issue(setup_tb(FO, 0xffffff00))
            if j == 26:
                A.drain_lg()
                A(f"v_add_u32 {v(24)}, {s(sPA)}, {v(vL16)}\nv_add_u32 {v(25)}, {s(sPB)}, {v(vL16)}")
                partner(1)
                partner(2)
            if j == 27:
                stamp()
            if j == 31:
                partner(3)
        stamp()
        left = valu[nin:]
        for f in left[:12]:
            f()
        reduce_out([("a", 16), ("a", 32), ("a", 48)], C_R3, [24, 25], slotoffs(12), left[12:])
        for i in range(16):
            A(f"v_accvgpr_read_b32 {v(32+i)}, {a(i)}")
        stamp()
        reduce_in(32, 80, C_R3, lambda sl: vA2[2 * sl:2 * sl + 2], slotoffs(12))
        vS = 32
    else:
        vA2 = [24, 25, 26, 27, 2, 3, 31, 63]
        assert NH <= 8

        def partner(sl):
            A(f"""s_xor_b32 {s(sT0)}, {s(sW)}, {sl}
                  s_mul_i32 {s(sT1)}, {s(sT0)}, 14336
                  s_mul_i32 {s(sT0)}, {s(sT0)}, 11264
                  s_add_u32 {s(sT0)}, {s(sT0)}, {LQ}
                  v_add_u32 {v(vA2[2*sl])}, {s(sT1)}, {v(vL16)}
                  v_add_u32 {v(vA2[2*sl+1])}, {s(sT0)}, {v(vL16)}""")
        for j in range(28):
            A.wait_vm(("H", 2 * j + 1))
            A.wait_lg(("s", 28 + j))
            if 2 * j + NH == 28:
                peek_check()
            rd = sread_p(43 + j) if 1 <= j <= 20 else [None, None]
            rf = (refill_p(43 + j - 1 + NRING) if j >= 2 else []) or [None, None]
            ld = [(lambda n=n: bload(n)) if n < 56 else None for n in (2 * j + NH, 2 * j + NH + 1)]
            for sl, todo in ((0, [rf[0]]), (2, [ld[0], rd[0]]), (1, [rf[1]]), (3, [ld[1], rd[1]])):
                mfma(v(acc6[sl], 16), a(sreg(28 + j, sl >> 1), 4), v(hslots[(2 * j + (sl & 1)) % NH], 4), 0 if j == 0 and sl else None)
                for f in todo:
                    if f:
                        f()
            if 2 * j + NH == 22:
                peek_issue(setup_tb(FG2, 0xffffff01))
            if j == 25:
                A.drain_lg()
                peek_issue(setup_tb(FO, 0xffffff00), 60, 62)
                A(f"s_mov_b32 {s(sRH)}, 0\ns_mov_b32 {s(sV)}, {OB}\ns_mov_b32 {s(sRG)}, {OB + 4096}")
            if j == 26:
                A(f"v_add_u32 {v(24)}, {s(sPA)}, {v(vL16)}\nv_add_u32 {v(25)}, {s(sPB)}, {v(vL16)}")
                for sl in (1, 2, 3):
                    partner(sl)
        stamp()

        def oload(kq):
            for sl in range(2):
                A.vmem(f"buffer_load_dwordx4 {a(8 * kq + 4 * sl, 4)}, {v(vO+sl)}, {s(SW,4)}, {s(sV if kq < 4 else sRG)} offen offset:{(kq & 3) * 1024} sc1", ("o", kq))

        def try_o(last):
            done, again = A.newlabel("od"), A.newlabel("oa")
            A(f"s_cmp_lg_u32 {s(sRH)}, 0\ns_cbranch_scc1 {done}")
            A.vm = ["peek"]
            if last:
                peek_check(60, 62)
            else:
                A(f"""s_waitcnt vmcnt(0)
                      v_cmp_eq_u64 vcc, {s(sN,2)}, {v(60,2)}
                      s_or_b64 vcc, vcc, {s(sINV,2)}
                      s_cmp_eq_u64 vcc, -1
                      s_cbranch_scc0 {again}
                      s_mov_b32 {s(sRH)}, 1""")
            A.vm = []
            for kq in range(4):
                oload(kq)
            if not last:
                A(f"s_branch {done}")
                A.label(again)
                A(f"buffer_load_dwordx2 {v(60,2)}, {v(62)}, {s(SW,4)}, 0 offen sc1")
            A.label(done)

        try_o(False)
        A("s_nop 5")
        reduce_out([("v", 80), ("v", 96), ("v", 112)], C_R2, vA2[:2], slotoffs(0))
        try_o(False)
        vG = 32
        reduce_in(64, 80, C_R2, lambda sl: vA2[2 * sl:2 * sl + 2], slotoffs(0))
        for i in range(8):
            if i in (0, 4):
                try_o(False)
            y = 64 + 2 * i
            A(f"""v_mul_f32 {v(80)}, {f32(-LOG2E)}, {v(y)}
                  v_mul_f32 {v(81)}, {f32(-LOG2E)}, {v(y+1)}
                  v_exp_f32 {v(80)}, {v(80)}
                  v_exp_f32 {v(81)}, {v(81)}
                  v_add_f32 {v(80)}, 1.0, {v(80)}
                  v_add_f32 {v(81)}, 1.0, {v(81)}
                  v_rcp_f32 {v(80)}, {v(80)}
                  v_rcp_f32 {v(81)}, {v(81)}
                  v_mul_f32 {v(vG+2*i)}, {v(y)}, {v(80)}
                  v_mul_f32 {v(vG+2*i+1)}, {v(y+1)}, {v(81)}""")
        try_o(True)
        stamp()
        for kq in range(8):
            A.wait_vm(("o", kq))
            for n, sl in enumerate((1, 2, 3, 0)):
                mfma(v(acc6[sl], 16), a(sreg(56 + kq, sl >> 1), 4), a(8 * kq + 4 * (sl & 1), 4), 0 if kq == 0 else None)
                if n == 0 and kq < 4:
                    oload(kq + 4)
        stamp()
        A("s_nop 7\ns_nop 1")
        reduce_out([("v", 80), ("v", 96), ("v", 112)], C_R3, vA2[:2], slotoffs(12))
        reduce_in(64, 80, C_R3, lambda sl: vA2[2 * sl:2 * sl + 2], slotoffs(12))
        vS = 64
    for i in range(8):
        y = vS + 2 * i
        A(f"""v_lshlrev_b32 {v(80)}, 16, {v(vXD+i)}
              v_and_b32 {v(81)}, 0xffff0000, {v(vXD+i)}
              v_fma_f32 {v(80)}, {v(y)}, {v(vG+2*i)}, {v(80)}
              v_fma_f32 {v(81)}, {v(y+1)}, {v(vG+2*i+1)}, {v(81)}
              v_cvt_pk_bf16_f32 {v(84+i)}, {v(80)}, {v(81)}""")
    A("s_nop 1")
    for p in range(2):
        A(f"v_permlane32_swap_b32 {v(84+4*p)}, {v(86+4*p)}\nv_permlane32_swap_b32 {v(85+4*p)}, {v(87+4*p)}")
    for p in range(2):
        A.vmem(f"buffer_store_dwordx4 {v(84+4*p,4)}, {v(vOUT)}, {s(SOUT,4)}, 0 offen offset:{32*p} {OPT.get('osc', '').replace('+', ' ')}", "out")
    stamp()
    dump_stamps()
    A("s_endpgm")

    for blk in late:
        A.lg = []
        blk()
    A.label("L_kv")
    A.vm = list(vm_kv)
    A.lg = []
    A(f"""v_mul_u32_u24 {v(vT0)}, 3584, {v(vC8)}
          s_min_u32 {s(sT2)}, {s(sTB)}, 27
          s_lshl_b32 {s(sT0)}, {s(sT2)}, 7
          s_mul_i32 {s(sT1)}, {s(sW)}, {112 * 3584}
          s_add_u32 {s(sT0)}, {s(sT0)}, {s(sT1)}
          v_add3_u32 {v(vW3)}, {v(vT0)}, {v(vC7)}, {s(sT0)}""")
    for i in range(16):
        A(f"v_sub_f32 {v(acc+i)}, {v(acc+i)}, {v(cs+i)}\nv_mul_f32 {v(acc+i)}, {v(acc+i)}, {v(vR)}")
    A(f"s_mov_b64 exec, {s(sHI,2)}")
    for i in range(12, 16):
        A(f"v_mov_b32 {v(acc+i)}, 0")
    A("s_mov_b64 exec, -1")
    for i in range(8):
        A(f"v_cvt_pk_bf16_f32 {v(pk+i)}, {v(acc+2*i)}, {v(acc+2*i+1)}")
    A(f"""s_lshl_b32 {s(sT4)}, {s(sGT)}, 12
          s_cmp_eq_u32 {s(sP)}, 1
          s_cbranch_scc1 L_v
          s_mov_b64 exec, {s(sHI,2)}
          v_mov_b32 {v(pk+6)}, {ONES}
          v_mov_b32 {v(pk+7)}, 0x3f80
          s_mov_b64 exec, -1
          buffer_store_dwordx4 {v(pk,4)}, {v(vL16)}, {s(SW,4)}, {s(sT4)} offen sc1
          buffer_store_dwordx4 {v(pk+4,4)}, {v(vL16)}, {s(SW,4)}, {s(sT4)} offen offset:1024 sc1
          v_mul_f32 {v(72)}, {v(acc)}, {v(acc)}""")
    for i in range(1, 16):
        A(f"v_fma_f32 {v(72)}, {v(acc+i)}, {v(acc+i)}, {v(72)}")
    halves(72, 73)
    A(f"""v_add_f32 {v(72)}, {v(72)}, {v(73)}
          v_mov_b32 {v(73)}, {L_KM}
          ds_max_u32 {v(73)}, {v(72)}
          s_branch L_kvdone""")
    A.label("L_v")
    A(f"""s_mov_b64 exec, {s(sHI,2)}
          v_mov_b32 {v(pk+6)}, 0x3f80
          s_mov_b64 exec, -1
          s_lshl_b32 {s(sT0)}, {s(sTT)}, 12
          s_add_u32 {s(sT0)}, {s(sT0)}, {L_VT}
          v_and_b32 {v(72)}, 31, {v(vLANE)}
          v_bfe_u32 {v(74)}, {v(72)}, 1, 1
          v_lshlrev_b32 {v(74)}, 6, {v(74)}
          v_lshrrev_b32 {v(73)}, 5, {v(vLANE)}
          v_lshl_add_u32 {v(73)}, {v(73)}, 3, {v(74)}
          v_lshl_add_u32 {v(72)}, {v(72)}, 7, {v(73)}
          v_add_u32 {v(72)}, {s(sT0)}, {v(72)}
          v_add3_u32 {v(73)}, {v(vTRD)}, {v(103)}, {s(sT0)}""")
    for g in range(4):
        A.ds(f"ds_write_b64 {v(72)}, {v(pk+2*g,2)} offset:{16*g}", "vt")
    for c in range(2):
        tr(("v", 76 + 4 * c), 73, c * 2048, 1024, "vr")
    A.drain_lg()
    A(f"buffer_store_dwordx4 {v(76,4)}, {v(vL16)}, {s(SW,4)}, {s(sT4)} offen offset:2048 sc1")
    A(f"buffer_store_dwordx4 {v(80,4)}, {v(vL16)}, {s(SW,4)}, {s(sT4)} offen offset:3072 sc1")
    A.label("L_kvdone")
    A.vm += ["kv", "kv"]
    nonce_take(30)
    signal(N_K, f"s_lshl_b32 {s(sT0)}, {s(sTB)}, 7\ns_add_u32 {s(sT0)}, {s(sT0)}, {FK}", "kv", payload=L_KM)
    stamps["n"] = 2
    stamp()
    await_cnt(C_PA, 8)
    for j in range(7):
        image(sPA, j * 2048, vW3, SQ, lambda e, j=j: f"s_mov_b32 {s(sT0)}, {j * 16 * 3584 + e}", 3584, "W3")
    A(f"v_add3_u32 {v(72)}, {v(vTRD)}, {v(103)}, {s(sPA)}\nv_xor_b32 {v(73)}, 64, {v(72)}")
    A.wait_vm("W3")
    for i in range(14):
        tr(("a", 4 * i), 72 + (i & 1), (i >> 1) * 2048, 1024, ("c", i))
    for i in range(14):
        A.wait_lg(("c", i))
        mfma(v(32 + 16 * (i & 1), 16), v(ones, 4), a(4 * i, 4), 0 if i < 2 else None)
    A(f"""s_lshl_b32 {s(sT0)}, {s(sW)}, 8
          s_add_u32 {s(sT0)}, {s(sT0)}, {LA + 32768}
          v_lshlrev_b32 {v(73)}, 2, {v(vLANE)}
          v_add_u32 {v(74)}, {s(sT0)}, {v(73)}
          s_nop 7
          v_cndmask_b32 {v(72)}, {v(32)}, {v(48)}, {s(sHI,2)}
          ds_write_b32 {v(74)}, {v(72)}""")
    arrive(C_R1)
    A(f"s_cmp_gt_u32 {s(sTB)}, 27\ns_cbranch_scc1 L_kvend\ns_cmp_lg_u32 {s(sW)}, 0\ns_cbranch_scc1 L_kvend")
    await_cnt(C_R1)
    A(f"""ds_read_b32 {v(75)}, {v(74)} offset:256
          ds_read_b32 {v(76)}, {v(74)} offset:512
          ds_read_b32 {v(77)}, {v(74)} offset:768
          s_lshl_b32 {s(sT1)}, {s(sTB)}, 9
          s_add_u32 {s(sT1)}, {s(sT1)}, {CS}
          v_lshlrev_b32 {v(74)}, 3, {v(vLANE)}
          s_waitcnt lgkmcnt(0)
          v_add_f32 {v(72)}, {v(72)}, {v(75)}
          v_add_f32 {v(73)}, {v(76)}, {v(77)}
          buffer_store_dwordx2 {v(72,2)}, {v(74)}, {s(SW,4)}, {s(sT1)} offen sc1
          s_lshl_b32 {s(sT0)}, {s(sTB)}, 7
          s_add_u32 {s(sT0)}, {s(sT0)}, {FC}
          v_mov_b32 {v(vT0)}, {s(sN)}
          v_mov_b32 {v(vT1)}, {s(sN+1)}
          v_mov_b32 {v(vT3)}, 0
          s_waitcnt vmcnt(0)
          s_mov_b64 exec, 1
          buffer_store_dwordx2 {v(vT0,2)}, {v(vT3)}, {s(SW,4)}, {s(sT0)} offen sc1
          s_mov_b64 exec, -1""")
    A.label("L_kvend")

    gate(G_H, setup_tb(FH, 0xffffff01), 32, payload=lambda: (A(f"s_mov_b32 {s(sT2)}, 0xfe"), note_die(34)))
    arrive(C_P4)
    read_mode()
    A(f"""s_lshl_b32 {s(sT0)}, {s(sTB)}, 2
          s_add_u32 {s(sT0)}, {s(sT0)}, {s(sW)}
          s_mul_i32 {s(sT1)}, {s(sT0)}, 12544
          s_mul_i32 {s(sT2)}, {s(sT0)}, 3136
          v_lshlrev_b32 {v(74)}, 7, {v(vLANE)}""")
    if "notouch" not in OPT:
        A.vmem(f"buffer_load_dword {v(84)}, {v(74)}, {s(S4,4)}, {s(sT1)} offen", "t")
        A(f"s_add_u32 {s(sT1)}, {s(sT1)}, 8192\ns_bfm_b64 exec, 34, 0")
        A.vmem(f"buffer_load_dword {v(85)}, {v(74)}, {s(S4,4)}, {s(sT1)} offen", "t")
        A("s_bfm_b64 exec, 25, 0")
        A.vmem(f"buffer_load_dword {v(86)}, {v(74)}, {s(SO,4)}, {s(sT2)} offen", "t")
        A("s_mov_b64 exec, -1")
    A(f"""s_setprio 0
          s_cmp_eq_u32 {s(sLOC)}, 0
          s_cbranch_scc1 L_kvquit
          v_lshlrev_b32 {v(36)}, 7, {v(vLANE)}
          v_and_b32 {v(37)}, 7, {v(vLANE)}
          v_lshrrev_b32 {v(38)}, 3, {v(vLANE)}
          v_lshlrev_b32 {v(38)}, 15, {v(38)}
          v_lshl_add_u32 {v(37)}, {v(37)}, 7, {v(38)}
          s_lshl_b32 {s(sT0)}, {s(sTB)}, 10
          s_add_u32 {s(sT0)}, {s(sT0)}, {FX}
          s_lshl_b32 {s(sT3)}, {s(sW)}, 13""")
    A.vm = []
    warm(0, 37, sT0, "0xffffffff")
    jobs = ([(X1, 56 * 1024, 2), (ST, 7168, 1)] if xnear else []) + ([(HH, 224 * 1024, 7)] if hnear else []) + [(OB, 64 * 1024, 2)]
    n = 1
    for base, size, cnt in jobs:
        A(f"""s_mul_i32 {s(sT1)}, {s(sTB)}, {size}
              s_add_u32 {s(sT1)}, {s(sT1)}, {base}
              s_add_u32 {s(sT2)}, {s(sT1)}, {size}
              s_add_u32 {s(sT1)}, {s(sT1)}, {s(sT3)}""")
        for i in range(cnt):
            A(f"""s_cmp_lt_u32 {s(sT1)}, {s(sT2)}
                  s_cselect_b32 {s(sT0)}, {s(sT1)}, {OOB}
                  s_add_u32 {s(sT1)}, {s(sT1)}, 32768""")
            warm(n, 36, sT0, "0xffffffffffffff" if size == 7168 else -1)
            A(f"s_waitcnt vmcnt({OPT.get('wdepth', 0)})")
            n += 1
    A.label("L_kvquit")
    stamp()
    dump_stamps()
    A("s_endpgm")


def att(vm_entry):
    A.label("L_att")
    A.vm = list(vm_entry)
    A.lg = []
    stamps["n"] = 1
    acc, cs, ring, ones = 32, 48, 64, 96
    vM, vR = 8, 9
    A(f"""s_mul_i32 {s(sT0)}, {s(sCB)}, 112
          s_lshl_b32 {s(sT1)}, {s(sW)}, 3
          v_add_u32 {v(vT0)}, {s(sT1)}, {v(vC8)}
          v_mul_u32_u24 {v(vT0)}, 896, {v(vT0)}
          v_add3_u32 {v(vWQ)}, {v(vT0)}, {v(vC7)}, {s(sT0)}
          s_lshl_b32 {s(sPA)}, {s(sW)}, 10
          s_mul_i32 {s(sT0)}, {s(sP)}, 56
          v_add_u32 {v(103)}, {s(sT0)}, {v(103)}
          v_xor_b32 {v(103)}, {v(103)}, {v(102)}
          v_add_u32 {v(vT0)}, {v(vTRN)}, {v(103)}
          v_add_u32 {v(10)}, {LQ}, {v(vT0)}
          v_add_u32 {v(11)}, {LA}, {v(vT0)}""")
    nq0 = int(OPT.get("nq0", 11))
    for n in range(nq0):
        dma(sPA, LQ + n * 4096, vWQ, SQ, (f"s_mov_b32 {s(sT0)}, {n * 32 * 896}", s(sT0)), "WQ")
    early_stamp(6)
    A.wait_vm("X")
    barrier()
    early_dump()
    stamp()

    def first():
        for n in range(nq0, 14):
            dma(sPA, LQ + n * 4096 if n < 11 else LA + (n - 11) * 4096, vWQ, SQ, (f"s_mov_b32 {s(sT0)}, {n * 32 * 896}", s(sT0)), "WQ")
        nonce_issue(12)
        touch("p1")
    stat_part(lambda: None)
    barrier()
    first()
    stat_read()
    for ks in range(28):
        A.ds(f"ds_read_b128 {a(4*ks,4)}, {v(vXF + (ks & 3))} offset:{(ks >> 2) * 8192}", ("x", ks))
    stat_fin(vM, vR)
    A(f"v_add_f32 {v(vR)}, {f32(EPS)}, {v(vR)}\nv_rsq_f32 {v(vR)}, {v(vR)}")
    A.drain_lg()
    arrive(C_PA)
    A(f"v_mul_f32 {v(vR)}, {f32(QSCALE)}, {v(vR)}")
    A.wait_vm(["WQ", "nonce"])
    arrive(C_WQ)
    nonce_take(12)
    A(f"""s_lshl_b32 {s(sT0)}, {s(sGT)}, 4
          s_lshl_b32 {s(sT1)}, {s(sCB)}, 1
          s_add_u32 {s(sT0)}, {s(sT0)}, {s(sT1)}
          s_add_u32 {s(sT0)}, {s(sT0)}, {s(sP)}
          s_lshl_b32 {s(sT0)}, {s(sT0)}, 11
          s_add_u32 {s(sB4)}, {s(sT0)}, {OB}
""")
    await_cnt(C_WQ)
    stamp()

    def wq(ks):
        tr(("v", ring + 4 * (ks % 8)), 10 if ks < 22 else 11, (ks % 22) * 2048, 512, ("w", ks))
    vG, vF = 12, 104
    aO, aQ, aK, vV = 0, 48, 80, 72
    O0, S, P = 16, [32, 48], 64

    def setup_k():
        A(f"""v_lshlrev_b32 {v(vT1)}, 7, {v(vLANE)}
              v_add_u32 {v(vT1)}, {FK}, {v(vT1)}
              s_mov_b64 {s(sINV,2)}, {s(sHI,2)}""")
        lanes_to(vT1)

    misc = f"""s_lshl_b32 {s(sT0)}, {s(sW)}, 11
          s_add_u32 {s(sT0)}, {s(sT0)}, {L_QG}
          v_add_u32 {v(vG)}, {s(sT0)}, {v(vL16)}
          s_lshl_b32 {s(sT0)}, {s(sW)}, 8
          s_add_u32 {s(sT0)}, {s(sT0)}, {L_QN}
          v_lshlrev_b32 {v(14)}, 2, {v(vLANE)}
          v_add_u32 {v(15)}, {s(sT0)}, {v(14)}
          v_add_u32 {v(14)}, {L_QN}, {v(14)}
          s_add_u32 {s(sT0)}, {s(sCB)}, {s(sTB)}
          s_and_b32 {s(sT0)}, {s(sT0)}, 3
          s_lshl_b32 {s(sK)}, {s(sT0)}, 14
          s_add_u32 {s(sV)}, {s(sK)}, 0x4000
          s_and_b32 {s(sV)}, {s(sV)}, 0xffff
          s_lshl_b32 {s(sT0)}, {s(sW)}, 16
          v_add_u32 {v(vF)}, {s(sT0)}, {v(vL16)}
          v_add_u32 {v(vF+1)}, 4096, {v(vF)}
          v_add_u32 {v(vF+2)}, 8192, {v(vF)}
          v_add_u32 {v(vF+3)}, 12288, {v(vF)}""".split("\n")
    for sl in range(4):
        misc += [f"s_xor_b32 {s(sT0)}, {s(sW)}, {sl}", f"s_mul_i32 {s(sT0)}, {s(sT0)}, 12288",
                 f"s_add_u32 {s(sT0)}, {s(sT0)}, {LA}", f"v_add_u32 {v(124+sl)}, {s(sT0)}, {v(vL16)}"]
    misc += [f"v_mov_b32 {v(O0+i)}, 0" for i in range(16)]
    misc += [f"v_xor_b32 {v(108+sl)}, {sl << 11}, {v(vG)}" for sl in range(1, 4)]

    def qstep(ks):
        if ks + 6 < 28:
            wq(ks + 6)
        A.wait_lg(("w", ks))
        mfma(v(acc, 16), v(ring + 4 * (ks % 8), 4), a(4 * ks, 4), 0 if ks == 0 else None)
        mfma(v(cs, 16), v(ring + 4 * (ks % 8), 4), v(ones, 4), 0 if ks == 0 else None)
        if 14 <= ks < 26:
            for i in range(4):
                A(f"v_accvgpr_write_b32 {a(aO + 4 * (ks - 14) + i)}, 0")
    for ks in range(6):
        wq(ks)
    weave(A, [lambda ks=ks: qstep(ks) for ks in range(28)], [lambda t=t: A(t) for t in misc])
    hi = "prl" not in OPT

    def kload(slot, base):
        for c in range(2):
            A.vmem(f"buffer_load_dwordx4 {a(aK + 8*slot + 4*c, 4)}, {v(vF+slot)}, {s(SW,4)}, {s(base)} offen offset:{c*1024} sc1", "K")

    def vload(slot, base):
        for c in range(2):
            A.vmem(f"buffer_load_dwordx4 {v(vV + 8*slot + 4*c, 4)}, {v(vF+slot)}, {s(SW,4)}, {s(base)} offen offset:{2048 + c*1024} sc1", "V")

    def first_loads():
        A("s_setprio 3")
        for slot in range(3):
            kload(slot, sK)
            vload(slot, sK)
            if slot == 0:
                A("s_setprio " + OPT.get("aprio", "0"))
        kload(3, sK)
        A.vm = []

    stamp()
    A("s_nop 9")
    q = acc
    for i in range(16):
        A(f"v_fma_f32 {v(q+i)}, -{v(cs+i)}, {v(vM)}, {v(q+i)}\nv_mul_f32 {v(q+i)}, {v(q+i)}, {v(vR)}")
    A(f"s_mov_b64 exec, {s(sHI,2)}")
    for i in range(12, 16):
        A(f"v_mov_b32 {v(q+i)}, 0")
    A("s_mov_b64 exec, -1")
    for i in range(8):
        A(f"v_cvt_pk_bf16_f32 {v(48+i)}, {v(q+2*i)}, {v(q+2*i+1)}")
    A.ds(f"ds_write_b128 {v(vG)}, {v(48,4)}", "qg")
    A.ds(f"ds_write_b128 {v(vG)}, {v(52,4)} offset:1024", "qg")
    A(f"v_mul_f32 {v(56)}, {v(q)}, {v(q)}")
    for i in range(1, 16):
        A(f"v_fma_f32 {v(56)}, {v(q+i)}, {v(q+i)}, {v(56)}")
    halves(56, 57)
    A(f"v_add_f32 {v(56)}, {v(56)}, {v(57)}")
    A.ds(f"ds_write_b32 {v(15)}, {v(56)}", "qg")
    arrive(C_Q)
    for i in range(4):
        A(f"v_mov_b32 {v(P+4+i)}, 0\nv_mov_b32 {v(vV+28+i)}, 0")
    await_cnt(C_Q)
    for sl in range(4):
        for c in range(2):
            A.ds(f"ds_read_b128 {a(aQ + 8*sl + 4*c, 4)}, {v(108+sl if sl else vG)} offset:{c*1024}", "q")
    for sl in range(4):
        A.ds(f"ds_read_b32 {v(120+sl)}, {v(14)} offset:{sl*256}", "q")
    A.drain_lg()
    arrive(C_QD)
    A("s_setprio 3")
    gate(G_K, setup_k, 112, payload=lambda: A(f"v_mov_b32 {v(113)}, {L_KP}\nds_max_u32 {v(113)}, {v(114)}"))
    stamp()
    A(f"v_mov_b32 {v(113)}, {L_KP}\nds_read_b32 {v(112)}, {v(113)}")
    first_loads()
    A(f"""s_waitcnt lgkmcnt(0)
          v_max3_f32 {v(120)}, {v(120)}, {v(121)}, {v(122)}
          v_max_f32 {v(120)}, {v(120)}, {v(123)}
          v_mul_f32 {v(108)}, {v(112)}, {v(120)}
          v_cmp_nge_f32 vcc, {f32(-1.0 if FORCE_SLOW else BOUND2)}, {v(108)}
          s_cmp_lg_u64 vcc, 0
          s_cbranch_scc1 L_slow""")
    A.label("L_fast")
    A("s_waitcnt vmcnt(10)")

    def Oreg(sl):
        return v(O0, 16) if sl == 0 else a(aO + 16 * (sl - 1), 16)

    mfma(v(S[0], 16), a(aK, 4), a(aQ, 4), 0)
    mfma(v(S[0], 16), a(aK + 4, 4), a(aQ + 4, 4))
    A(f"s_mov_b32 {s(sT4)}, 4\ns_nop 7\ns_nop 1")
    A.label("L_aloop")

    def period(sg, qt):
        cur, nxt = S[qt & 1], S[(qt + 1) & 1]
        ks = sg if qt < 3 else (sg + 1) & 3
        vs = sg if qt > 0 else (sg - 1) & 3
        nq, pq = (qt + 1) & 3, (qt - 1) & 3
        e = lambda i: A(f"v_exp_f32 {v(cur+i)}, {v(cur+i)}")
        c = lambda i: A(f"v_cvt_pk_bf16_f32 {v(P+i)}, {v(cur+2*i)}, {v(cur+2*i+1)}")
        if qt == 3:
            A("s_waitcnt vmcnt(6)")
        mfma(v(nxt, 16), a(aK + 8 * ks, 4), a(aQ + 8 * nq, 4), 0)
        if qt == 3:
            A("s_setprio 3")
            vload((sg - 1) & 3, sK if sg == 0 else sV)
            kload(sg, sV)
            A("s_setprio " + OPT.get("aprio", "0"))
        e(0); e(1); e(2); e(3)
        mfma(Oreg(pq), v(vV + 8 * vs + 4, 4), v(P + 4, 4))
        c(0); c(1); e(4); e(5); e(6); e(7)
        mfma(v(nxt, 16), a(aK + 8 * ks + 4, 4), a(aQ + 8 * nq + 4, 4))
        c(2); c(3); e(8); e(9); e(10); e(11)
        mfma(Oreg(qt), v(vV + 8 * sg, 4), v(P, 4))
        c(4); c(5); e(12); e(13); e(14); e(15); c(6); c(7)

    for sg in range(4):
        for qt in range(4):
            period(sg, qt)
            A.vm = []
    A(f"""s_mov_b32 {s(sK)}, {s(sV)}
          s_add_u32 {s(sV)}, {s(sV)}, 0x4000
          s_and_b32 {s(sV)}, {s(sV)}, 0xffff
          s_cmp_eq_u32 {s(sT4)}, 2
          s_cselect_b32 {s(sV)}, {OOB}, {s(sV)}
          s_sub_u32 {s(sT4)}, {s(sT4)}, 1
          s_cmp_lg_u32 {s(sT4)}, 0
          s_cbranch_scc1 L_aloop""")
    mfma(Oreg(3), v(vV + 28, 4), v(P + 4, 4))
    stamp()
    A("s_setprio 3")
    A(f"""v_mov_b32 {v(vT0)}, {C_P4}
          ds_read_b32 {v(vT1)}, {v(vT0)}
          ds_read_b32 {v(vT2)}, {v(vT0)} offset:{L_MODE - C_P4}
          s_waitcnt lgkmcnt(0)
          v_readfirstlane_b32 {s(sT0)}, {v(vT1)}
          v_readfirstlane_b32 {s(sLOC)}, {v(vT2)}
          s_cmp_ge_u32 {s(sT0)}, 4
          s_cbranch_scc1 L_free""")
    await_cnt(C_P4)
    read_mode()
    A.label("L_free")
    A("s_nop 2")
    offs = [(0, i * 1024) for i in range(12)]
    if "mrg" in OPT:
        stamp()
    reduce_out([("a", aO), ("a", aO + 16), ("a", aO + 32)], C_MRG, [124], offs)
    if "mrg" in OPT:
        stamp()
        await_cnt(C_MRG)
        stamp()

    reduce_in(O0, [32, 48, 104], C_MRG, lambda sl: [124 + sl], offs)
    if "mrg" in OPT:
        stamp()
    A(f"v_mov_b32 {v(32)}, {v(O0+12)}")
    halves(32, 33)
    A(f"v_rcp_f32 {v(33)}, {v(33)}\ns_nop 0")
    for i in range(16):
        A(f"v_mul_f32 {v(O0+i)}, {v(O0+i)}, {v(33)}")
    for i in range(8):
        A(f"v_cvt_pk_bf16_f32 {v(40+i)}, {v(O0+2*i)}, {v(O0+2*i+1)}")
    A(f"s_mov_b64 exec, {s(sHI,2)}\nv_mov_b32 {v(46)}, 0\nv_mov_b32 {v(47)}, 0\ns_mov_b64 exec, -1")
    hstore([f"buffer_store_dwordx4 {v(40,4)}, {v(vL16)}, {s(SW,4)}, {s(sB4)} offen",
            f"buffer_store_dwordx4 {v(44,4)}, {v(vL16)}, {s(SW,4)}, {s(sB4)} offen offset:1024"])
    if "mrg" in OPT:
        stamp()
        A.drain_vm()
        stamp()
    signal(N_O, own_slot(FO), near=True)
    stamp()
    dump_stamps()
    A("s_endpgm")

    A.label("L_slow")
    mx, kf = 108, 112
    for sl in range(4):
        A(f"v_mov_b32 {v(mx+sl)}, 0xff800000")
    A(f"s_mov_b32 {s(sT4)}, 0")
    A.label("L_sloop")
    A(f"""buffer_load_dwordx4 {v(kf,4)}, {v(vF)}, {s(SW,4)}, {s(sT4)} offen sc1
          buffer_load_dwordx4 {v(kf+4,4)}, {v(vF)}, {s(SW,4)}, {s(sT4)} offen offset:1024 sc1
          s_add_u32 {s(sT4)}, {s(sT4)}, 4096
          s_waitcnt vmcnt(0)""")
    for sl in range(4):
        mfma(v(S[0], 16), v(kf, 4), a(aQ + 8 * sl, 4), 0)
        mfma(v(S[0], 16), v(kf + 4, 4), a(aQ + 8 * sl + 4, 4))
        A("s_nop 11")
        for i in range(8):
            A(f"v_max3_f32 {v(mx+sl)}, {v(mx+sl)}, {v(S[0]+2*i)}, {v(S[0]+2*i+1)}")
    A(f"s_cmp_lt_u32 {s(sT4)}, 0x10000\ns_cbranch_scc1 L_sloop")
    A(f"v_and_b32 {v(kf)}, 31, {v(vLANE)}\nv_lshlrev_b32 {v(kf)}, 2, {v(kf)}\nv_add_u32 {v(kf)}, {L_MX}, {v(kf)}")
    for sl in range(4):
        halves(mx + sl, kf + 1)
        A(f"""v_max_f32 {v(mx+sl)}, {v(mx+sl)}, {v(kf+1)}
              s_xor_b32 {s(sT0)}, {s(sW)}, {sl}
              s_lshl_b32 {s(sT0)}, {s(sT0)}, 7
              v_add_u32 {v(kf+4+sl)}, {s(sT0)}, {v(kf)}""")
    A(f"ds_write_b32 {v(kf+4)}, {v(mx)}")
    arrive(C_MAX)
    await_cnt(C_MAX)
    for sl in range(1, 4):
        A(f"ds_max_f32 {v(kf+4+sl)}, {v(mx+sl)}")
    arrive(C_MAX)
    await_cnt(C_MAX, 8)
    t = 120
    for sl in range(4):
        A(f"""ds_read_b32 {v(t)}, {v(kf+4+sl)}
              s_waitcnt lgkmcnt(0)
              v_sub_f32 {v(t)}, 0, {v(t)}
              v_cvt_pk_bf16_f32 {v(t+1)}, {v(t)}, {v(t)}
              v_and_b32 {v(t+1)}, 0xffff0000, {v(t+1)}
              v_sub_f32 {v(t+2)}, {v(t)}, {v(t+1)}
              v_cvt_pk_bf16_f32 {v(t+3)}, {v(t)}, {v(t+2)}
              v_and_b32 {v(t+1)}, 0xffff0000, {v(t+3)}
              v_sub_f32 {v(t+2)}, {v(t+2)}, {v(t+1)}
              v_cvt_pk_bf16_f32 {v(t+2)}, {v(t+2)}, 0
              s_mov_b64 exec, {s(sHI,2)}
              v_accvgpr_write_b32 {a(aQ + 8*sl + 6)}, {v(t+3)}
              v_accvgpr_write_b32 {a(aQ + 8*sl + 7)}, {v(t+2)}
              s_mov_b64 exec, -1""")
    A("s_nop 1\ns_branch L_fast")


def header():
    ref = open(f"cdna_kernels/{NAME}.s.ref").read().split("\n")
    out = [l for l in ref if l.startswith(";") and "@launch" not in l and "Override" not in l and "grid=ceil" not in l]
    out.append(f"; @launch grid=(256,1,1) block=(512,1,1) lds={LDS_SIZE}")
    out += ['.amdgcn_target "amdgcn-amd-amdhsa--gfx950"', ".text", f".globl {NAME}_kernel", ".p2align 8",
            f".type {NAME}_kernel,@function", f"{NAME}_kernel:"]
    return "\n".join(out) + "\n"


def footer():
    return f"""L_end:
    s_endpgm
L_code_end:
.section .rodata,"a"
.p2align 6
.amdhsa_kernel {NAME}_kernel
  .amdhsa_next_free_vgpr 256
  .amdhsa_next_free_sgpr 102
  .amdhsa_accum_offset 128
  .amdhsa_group_segment_fixed_size 0
  .amdhsa_kernarg_size 104
  .amdhsa_user_sgpr_count 2
  .amdhsa_user_sgpr_kernarg_segment_ptr 1
  .amdhsa_system_sgpr_workgroup_id_x 1
.end_amdhsa_kernel
"""


if __name__ == "__main__":
    vm0 = prologue()
    mlp(vm0)
    att(vm0)
    out = [x for x in sys.argv[1:] if not x.startswith("--")]
    open(out[0] if out else "k.s", "w").write(header() + A.text() + footer())
```

```python
import math
import sys
from asmlib import Asm, a, f32, s, v, weave

NAME = "recurrent_scan__grouped_kv_mqa__mixer_s_mlp__prompt"
PROFILE = "--prof" in sys.argv or "--cyc" in sys.argv
CLOCK = "s_memtime" if "--cyc" in sys.argv else "s_memrealtime"
FORCE_SLOW = "--slow" in sys.argv
OPT = {x[2:].split("=")[0]: (x.split("=") + [""])[1] for x in sys.argv if x.startswith("--")}


class Stop(Exception):
    pass


def cut(name):
    if OPT.get("mlpstop") == name:
        arrive(C_P4)
        A.drain_vm()
        dump_stamps()
        A("s_endpgm")


KV, CS, FK, FC, FH, FX, FG, FO, FG2 = 0x0, 0x40000, 0x48000, 0x49000, 0x50000, 0x58000, 0x60000, 0x68000, 0x70000
TS = 0x80000
HB, ST, X1, HH, OB = 0x100000, 0x2C0000, 0x300000, 0x500000, 0xC00000
WS_SIZE = 0xE00000
OOB = 0x7FFF0000
LX, LA, LQ, LS = 0, 57344, 114688, 159744
LDS_SIZE = 163840
(C_PA, C_W2, C_WQ, C_Q, C_QD, C_MAX, C_MRG, C_R1, C_XA, C_XB, C_P4, C_R2, C_R3, N_H, N_X, N_G, N_G2, N_O, N_K, N_C,
 G_H, G_X, G_G, G_G2, G_O, G_K, L_KM, L_KP, L_MODE) = [LS + 4 * i for i in range(29)]
L_QN, L_STAT = LS + 1024, LS + 2048
L_MX = LS + 256
L_QG, L_VT = LA + 16384, LA + 24576
NRING = 12
assert L_QG % 8192 == 0
LOG2E = 1.4426950408889634
QSCALE = 28 ** -0.5 * LOG2E
GC1 = -2 * LOG2E * math.sqrt(2 / math.pi)
GC2 = GC1 * 0.044715
EPS = 1e-5
BOUND2 = 3500.0
ONES = 0x3F803F80
GSPIN, LSPIN = 20000, 400000
SX, SA, SQ, SW, S4, SO, SOUT, SD, S2 = 4, 8, 12, 16, 20, 24, 28, 32, 36
P_X, P_WQ, P_WK, P_WV, P_WO, P_W1, P_W2, P_W3, P_W4, P_OUT, P_DBG, P_WS = 40, 42, 44, 46, 48, 52, 54, 56, 58, 60, 62, 64
sN = 66
sW8, sW, sTB, sCB, sTT, sP, sGT = 68, 69, 70, 71, 72, 73, 74
sHI = 76
sINV = 78
sT0, sT1, sT2, sT3, sT4, sT5 = 80, 81, 82, 83, 84, 85
sPA, sPB, sB1, sB4, sSP = 86, 87, 88, 89, 90
sK, sV, sR, sRG, sRH = 91, 92, 93, 96, 97
sLN = 100
sXC, sLOC = 75, 3
sTS = 40
vLANE, vL16, vTRN, vTRD, vT0, vT1, vT2, vT3 = 0, 1, 2, 3, 4, 5, 6, 7
MF = "v_mfma_f32_32x32x16_bf16"

A = Asm()
stamps = {"n": 0}


def stamp():
    if PROFILE:
        i = stamps["n"]
        stamps["n"] += 1
        A(f"s_waitcnt lgkmcnt(0)\n{CLOCK} {s(94,2)}\ns_waitcnt lgkmcnt(0)\ns_mov_b32 {s(sTS+i)}, s94")
        if "both" in OPT:
            A(f"s_memrealtime {s(94,2)}\ns_and_b32 {s(sTS+i)}, {s(sTS+i)}, 0xfffff\ns_waitcnt lgkmcnt(0)\n"
              f"s_lshl_b32 s94, s94, 20\ns_or_b32 {s(sTS+i)}, {s(sTS+i)}, s94")
        A.lg = []


def early_stamp(i):
    if "startup" in OPT:
        A(f"s_memtime {s(94,2)}\ns_waitcnt lgkmcnt(0)\ns_mov_b32 {s([98, 99, 100, 101, 3, 75, 97][i])}, s94")


def early_dump():
    if "startup" in OPT:
        for i, r in enumerate([98, 99, 100, 101, 3, 75, 97]):
            A(f"s_mov_b32 {s(sTS+i)}, {s(r)}")
        stamps["n"] = 7
        stamp()
        dump_stamps()
        A("s_endpgm")


def dump_stamps():
    if PROFILE:
        n = stamps["n"]
        A(f"s_lshl_b32 {s(sT0)}, s2, 3\ns_add_u32 {s(sT0)}, {s(sT0)}, {s(sW8)}\ns_lshl_b32 {s(sT0)}, {s(sT0)}, 7\n"
          f"s_add_u32 {s(sT0)}, {s(sT0)}, {TS}\nv_mov_b32 {v(vT1)}, 0")
        for i in range(n):
            A(f"v_mov_b32 {v(vT0)}, {s(sTS+i)}\nbuffer_store_dword {v(vT0)}, {v(vT1)}, {s(SW,4)}, {s(sT0)} offen offset:{4*i}")
        A.drain_vm()
    stamps["n"] = 0


def srd(r, ptr, size):
    A(f"s_mov_b32 {s(r)}, {s(ptr)}\ns_mov_b32 {s(r+1)}, {s(ptr+1)}\ns_mov_b32 {s(r+2)}, {size}\ns_mov_b32 {s(r+3)}, 0x20000")


def mfma(d, x, y, c=None):
    A(f"{MF} {d}, {x}, {y}, {d if c is None else c}")


def dma(m0_base, m0_off, voff, desc, soff, tag, imm=0, sc=""):
    if m0_base is None:
        A(f"s_mov_b32 m0, {m0_off - imm}")
    else:
        A(f"s_add_u32 m0, {s(m0_base)}, {m0_off - imm}")
    pre, so = soff
    if pre:
        A(pre)
    else:
        A("s_nop 0")
    A.vmem(f"buffer_load_dwordx4 {v(voff)}, {s(desc,4)}, {so} offen" + (f" offset:{imm}" if imm else "") + f"{sc} lds", tag)


def tr(dst, addr, off, second, tag):
    k, i = dst
    r = v if k == "v" else a
    A.ds(f"ds_read_b64_tr_b16 {r(i,2)}, {v(addr)} offset:{off}", tag)
    A.ds(f"ds_read_b64_tr_b16 {r(i+2,2)}, {v(addr)} offset:{off+second}", tag)


def arrive(cnt):
    A(f"s_mov_b64 exec, 1\nv_mov_b32 {v(vT0)}, {cnt}\nv_mov_b32 {v(vT1)}, 1")
    A.ds(f"ds_add_u32 {v(vT0)}, {v(vT1)}", "cnt")
    A("s_mov_b64 exec, -1")


def await_cnt(cnt, target=4):
    lp, ok = A.newlabel("ls"), A.newlabel("lk")
    A(f"v_mov_b32 {v(vT0)}, {cnt}\ns_mov_b32 {s(sSP)}, 0")
    A.label(lp)
    A(f"""ds_read_b32 {v(vT1)}, {v(vT0)}
          s_add_u32 {s(sSP)}, {s(sSP)}, 1
          s_waitcnt lgkmcnt(0)
          v_readfirstlane_b32 {s(sLN)}, {v(vT1)}
          s_cmp_ge_u32 {s(sLN)}, {target}
          s_cbranch_scc1 {ok}
          {"s_sleep " + OPT["lsleep"] if "lsleep" in OPT else ""}
          s_cmp_lt_u32 {s(sSP)}, {LSPIN}
          s_cbranch_scc1 {lp}""")
    A.label(ok)
    A.lg = []


def gate(go, setup, tmp, payload=None, release=True):
    lp, ok, rest = A.newlabel("gs"), A.newlabel("gk"), A.newlabel("gw")
    every = "allpoll" in OPT and not payload
    if not every:
        A(f"s_cmp_lg_u32 {s(sW)}, 0\ns_cbranch_scc1 {rest}")
    setup()
    A(f"s_mov_b32 {s(sSP)}, 0")
    A.label(lp)
    n = 4 if payload else 2
    A(f"""buffer_load_dwordx{n} {v(tmp,n)}, {v(vT2)}, {s(SW,4)}, 0 offen sc1
          s_add_u32 {s(sSP)}, {s(sSP)}, 1
          s_waitcnt vmcnt(0)
          v_cmp_eq_u64 vcc, {s(sN,2)}, {v(tmp,2)}
          s_or_b64 vcc, vcc, {s(sINV,2)}
          s_cmp_eq_u64 vcc, -1
          s_cbranch_scc1 {ok}
          {"" if release else "s_sleep 8"}
          s_cmp_lt_u32 {s(sSP)}, {GSPIN}
          s_cbranch_scc1 {lp}""")
    A.label(ok)
    if every:
        return
    if payload:
        payload()
    if not release:
        A.label(rest)
        return
    keep = list(A.lg)
    arrive(go)
    A.lg = keep
    A.label(rest)
    await_cnt(go, 1)


def peek_issue(setup, data=vT0, addr=vT2, n=2):
    setup()
    if addr != vT2:
        A(f"v_mov_b32 {v(addr)}, {v(vT2)}")
    A.vmem(f"buffer_load_dwordx{n} {v(data,n)}, {v(addr)}, {s(SW,4)}, 0 offen sc1", "peek")


def peek_check(data=vT0, addr=vT2, n=2):
    lp, ok = A.newlabel("ps"), A.newlabel("pk")
    A.wait_vm("peek")
    A(f"s_mov_b32 {s(sSP)}, {GSPIN}")
    A.label(lp)
    A(f"""v_cmp_eq_u64 vcc, {s(sN,2)}, {v(data,2)}
          s_or_b64 vcc, vcc, {s(sINV,2)}
          s_cmp_eq_u64 vcc, -1
          s_cbranch_scc1 {ok}
          s_sub_u32 {s(sSP)}, {s(sSP)}, 1
          s_cbranch_scc1 {ok}
          buffer_load_dwordx{n} {v(data,n)}, {v(addr)}, {s(SW,4)}, 0 offen sc1
          s_waitcnt vmcnt(0)
          s_branch {lp}""")
    A.label(ok)


def lanes_to(addr_reg):
    A(f"s_mov_b64 vcc, {s(sINV,2)}\nv_mov_b32 {v(vT3)}, {OOB}\nv_cndmask_b32 {v(vT2)}, {v(addr_reg)}, {v(vT3)}, vcc")


def hstore(stores, tag=None, allow=True):
    if not allow:
        for t in stores:
            A.vmem(t + " sc1", tag)
        return
    near, done = A.newlabel("hn"), A.newlabel("hd")
    A(f"s_cmp_lg_u32 {s(sLOC)}, 0\ns_cbranch_scc1 {near}")
    for t in stores:
        A(t + " sc1")
    A(f"s_branch {done}")
    A.label(near)
    for t in stores:
        if tag is None:
            A(t)
        else:
            A.vmem(t, tag)
    A.label(done)


def note_die(data):
    A(f"""v_cmp_eq_u32 vcc, {s(sXC)}, {v(data)}
          s_and_b32 {s(sT0)}, vcc_lo, {s(sT2)}
          s_cmp_eq_u32 {s(sT0)}, {s(sT2)}
          s_cselect_b32 {s(sT0)}, {0 if "remote" in OPT else 1}, 0
          v_mov_b32 {v(vT0)}, {L_MODE}
          v_mov_b32 {v(vT1)}, {s(sT0)}
          ds_write_b32 {v(vT0)}, {v(vT1)}""")


def read_mode():
    A(f"""v_mov_b32 {v(vT0)}, {L_MODE}
          ds_read_b32 {v(vT1)}, {v(vT0)}
          s_waitcnt lgkmcnt(0)
          v_readfirstlane_b32 {s(sLOC)}, {v(vT1)}""")
    A.lg = []


def warm(dst, voff, soff, mask):
    if "nowarm" in OPT:
        return
    if isinstance(mask, str):
        A(f"s_bfm_b64 exec, {len(mask[2:]) * 4}, 0")
    else:
        A(f"s_mov_b64 exec, {mask}")
    A.vmem(f"buffer_load_dword {a(dst)}, {v(voff)}, {s(SW,4)}, {s(soff)} offen sc1", "warm")
    A("s_mov_b64 exec, -1")


def signal(cnt, soff_expr, tags=None, payload=None, near=False):
    skip = A.newlabel("sg")
    if tags is None:
        A.drain_vm()
    else:
        A.wait_vm(tags)
    A(f"""s_mov_b64 exec, 1
          v_mov_b32 {v(vT0)}, {cnt}
          v_mov_b32 {v(vT1)}, 1
          ds_add_rtn_u32 {v(vT1)}, {v(vT0)}, {v(vT1)}""")
    if payload:
        A(f"ds_read_b32 {v(vT2)}, {v(vT0)} offset:{payload - cnt}")
    A(soff_expr)
    A(f"""s_waitcnt lgkmcnt(0)
          v_readfirstlane_b32 {s(sT1)}, {v(vT1)}
          s_cmp_lg_u32 {s(sT1)}, 3
          s_cbranch_scc1 {skip}
          v_mov_b32 {v(vT0)}, {s(sN)}
          v_mov_b32 {v(vT1)}, {s(sN+1)}
          v_mov_b32 {v(vT3)}, 0""")
    if not payload:
        A(f"v_mov_b32 {v(vT2)}, {s(sXC)}")
    st = f"buffer_store_dwordx4 {v(vT0,4)}, {v(vT3)}, {s(SW,4)}, {s(sT0)} offen"
    if near:
        hstore([st])
    else:
        A(st + " sc1")
    A.label(skip)
    A("s_mov_b64 exec, -1\ns_nop 0")
    A.lg = []


def nonce_issue(tmp):
    A(f"v_mov_b32 {v(vT3)}, 0")
    A.vmem(f"buffer_load_dwordx2 {v(tmp,2)}, {v(vT3)}, {s(SD,4)}, 0 offen sc1", "nonce")


def nonce_take(tmp):
    lp, ok = A.newlabel("ns"), A.newlabel("nk")
    A.wait_vm("nonce")
    A(f"s_mov_b32 {s(sSP)}, 0\nv_mov_b32 {v(vT3)}, 0")
    A.label(lp)
    A(f"""v_readfirstlane_b32 {s(sN)}, {v(tmp)}
          v_readfirstlane_b32 {s(sN+1)}, {v(tmp+1)}
          s_add_u32 {s(sSP)}, {s(sSP)}, 1
          s_cmp_lg_u64 {s(sN,2)}, 0
          s_cbranch_scc1 {ok}
          s_cmp_ge_u32 {s(sSP)}, {GSPIN}
          s_cbranch_scc1 {ok}
          buffer_load_dwordx2 {v(tmp,2)}, {v(vT3)}, {s(SD,4)}, 0 offen sc1
          s_waitcnt vmcnt(0)
          s_branch {lp}""")
    A.label(ok)


def halves(x, t):
    A(f"v_mov_b32 {v(t)}, {v(x)}\ns_nop 1\nv_permlane32_swap_b32 {v(x)}, {v(t)}")


def wave_max(x, full):
    for sh in (1, 2, 4, 8):
        A(f"s_nop 1\nv_max_f32_dpp {v(x)}, {v(x)}, {v(x)} row_shr:{sh} row_mask:0xf bank_mask:0xf bound_ctrl:0")
    A(f"s_nop 1\nv_max_f32_dpp {v(x)}, {v(x)}, {v(x)} row_bcast:15 row_mask:0xa bank_mask:0xf")
    if full:
        A(f"s_nop 1\nv_max_f32_dpp {v(x)}, {v(x)}, {v(x)} row_bcast:31 row_mask:0xc bank_mask:0xf")
    A("s_nop 1")


def gelu_ops(y, t, dst, c1, c2, ri):
    o = []
    for e in (0, 1):
        o.append(f"v_mul_f32 {v(t+e)}, {v(y+e)}, {v(y+e)}")
    for e in (0, 1):
        o.append(f"v_fma_f32 {v(t+e)}, {v(t+e)}, {v(c2)}, {v(c1)}")
    for e in (0, 1):
        o.append(f"v_mul_f32 {v(t+e)}, {v(t+e)}, {v(y+e)}")
    for e in (0, 1):
        o.append(f"v_exp_f32 {v(t+e)}, {v(t+e)}")
    for e in (0, 1):
        o.append(f"v_fma_f32 {v(t+e)}, {v(t+e)}, {v(ri)}, {v(ri)}")
    for e in (0, 1):
        o.append(f"v_rcp_f32 {v(t+e)}, {v(t+e)}")
    for e in (0, 1):
        o.append(f"v_mul_f32 {v(t+e)}, {v(t+e)}, {v(y+e)}")
    o.append(f"v_cvt_pk_bf16_f32 {v(dst)}, {v(t)}, {v(t+1)}")
    return o


def ring_addr(slot):
    return (sPA, slot * 2048) if slot < 7 else (sPB, (slot - 7) * 2048)


def reduce_out(srcs, cnt, vbase, offs, fill=()):
    def wr(i):
        k, r = srcs[i // 4]
        reg = (v if k == "v" else a)(r + 4 * (i % 4), 4)
        b, o = offs[i]
        A.ds(f"ds_write_b128 {v(vbase[b])}, {reg} offset:{o}", "red")
        if i == 11:
            arrive(cnt)
    weave(A, [lambda i=i: wr(i) for i in range(12)], list(fill))


def reduce_in(acc, tmp, cnt, mkaddr, offs, between=None):
    tmp = tmp if isinstance(tmp, list) else [tmp, tmp + 16, tmp + 32]
    await_cnt(cnt)
    for sl in (1, 2, 3):
        regs = mkaddr(sl)
        for q in range(4):
            b, o = offs[(sl - 1) * 4 + q]
            A.ds(f"ds_read_b128 {v(tmp[sl-1] + 4*q, 4)}, {v(regs[b])} offset:{o}", ("rd", sl))
    if between:
        between()
    for sl in (1, 2, 3):
        A.wait_lg(("rd", sl))
        for i in range(16):
            A(f"v_add_f32 {v(acc+i)}, {v(acc+i)}, {v(tmp[sl-1] + i)}")


vC8, vC7, vXF, vWQ = 100, 101, 104, 109
SXR = [16, 20, 88, 92, 112, 116, 120]


def image(base, off, voff, desc, sreg_expr, rs, tag, halves_=(0, 1)):
    for h in halves_:
        dma(base, off + h * 1024, voff, desc, (sreg_expr(h * 8 * rs), s(sT0)), tag)


def gaps(mfmas, pieces):
    n, m, done = len(mfmas), len(pieces), 0
    for i, f in enumerate(mfmas):
        f()
        while done < -(-m * (i + 1) // n):
            pieces[done]()
            done += 1


def prologue():
    A(f"""s_cmp_ge_u32 s2, 256
          s_cbranch_scc1 L_end
          s_load_dwordx16 {s(40,16)}, s[0:1], 0
          s_load_dwordx8 {s(56,8)}, s[0:1], 64
          s_load_dwordx2 {s(64,2)}, s[0:1], 96
          s_memrealtime {s(sN,2)}
          {CLOCK + " " + s(98,2) if PROFILE else ""}
          s_getpc_b64 {s(sT2,2)}
          v_lshrrev_b32 {v(vT0)}, 6, v0
          s_lshr_b32 {s(sT0)}, s2, 3
          v_readfirstlane_b32 {s(sW8)}, {v(vT0)}
          v_and_b32 {v(vLANE)}, 63, v0
          v_lshlrev_b32 {v(vT2)}, 7, {v(vLANE)}
          s_and_b32 {s(sT2)}, {s(sT2)}, 0xffffff00""")
    A(f"""s_mul_i32 {s(sT4)}, {s(sT0)}, 26
          s_lshr_b32 {s(sT4)}, {s(sT4)}, 8
          s_mul_i32 {s(sT4)}, {s(sT4)}, 10
          s_sub_u32 {s(sT4)}, {s(sT0)}, {s(sT4)}
          s_lshl_b32 {s(sT4)}, {s(sT4)}, 3
          s_add_u32 {s(sT4)}, {s(sT4)}, {s(sW8)}
          s_lshl_b32 {s(sT4)}, {s(sT4)}, 9
          v_add_u32 {v(vT1)}, {s(sT4)}, {v(vT2)}
          v_min_u32 {v(vT1)}, L_code_end-{NAME}_kernel-4, {v(vT1)}
          s_mov_b64 exec, 15""")
    if "nopf" not in OPT:
        A.vmem(f"global_load_dword {a(124)}, {v(vT1)}, {s(sT2,2)}", "pf")
    A("s_mov_b64 exec, -1")
    nk = int(OPT.get("nk", 8))
    if nk == 8:
        A(f"""s_and_b32 {s(sT1)}, {s(sT0)}, 3
              s_and_b32 {s(sTB)}, s2, 7
              s_lshl_b32 {s(sTB)}, {s(sTB)}, 2
              s_add_u32 {s(sTB)}, {s(sTB)}, {s(sT1)}
              s_lshr_b32 {s(sCB)}, {s(sT0)}, 2""")
    else:
        per = 32 // nk
        perm = [int(c) for c in OPT.get("perm", "40516273")]
        A(f"""s_and_b32 {s(sT1)}, s2, 7
              s_lshl_b32 {s(sT1)}, {s(sT1)}, 2
              s_lshr_b32 {s(sT1)}, {sum(p << (4 * i) for i, p in enumerate(perm))}, {s(sT1)}
              s_and_b32 {s(sT1)}, {s(sT1)}, 7
              s_min_u32 {s(sT2)}, {s(sT1)}, {nk - 1}
              s_add_u32 {s(sT2)}, {s(sT2)}, 1
              s_mul_i32 {s(sT2)}, {s(sT2)}, {per}
              s_lshl_b32 {s(sT3)}, {s(sT1)}, 5
              s_add_u32 {s(sT3)}, {s(sT3)}, {s(sT0)}
              s_sub_u32 {s(sT3)}, {s(sT3)}, {s(sT2)}
              s_mul_i32 {s(sTB)}, {s(sT3)}, 9363
              s_lshr_b32 {s(sTB)}, {s(sTB)}, 16
              s_mul_i32 {s(sCB)}, {s(sTB)}, 7
              s_sub_u32 {s(sCB)}, {s(sT3)}, {s(sCB)}
              s_add_u32 {s(sCB)}, {s(sCB)}, 1
              s_mul_i32 {s(sT2)}, {s(sT1)}, {per}
              s_add_u32 {s(sT2)}, {s(sT2)}, {s(sT0)}
              s_cmp_lt_u32 {s(sT1)}, {nk}
              s_cselect_b32 {s(sT1)}, {per}, 0
              s_cmp_lt_u32 {s(sT0)}, {s(sT1)}
              s_cselect_b32 {s(sTB)}, {s(sT2)}, {s(sTB)}
              s_cselect_b32 {s(sCB)}, 0, {s(sCB)}
              s_and_b32 {s(sT1)}, {s(sTB)}, 3""")
    A(f"""v_lshlrev_b32 {v(vL16)}, 4, {v(vLANE)}
          v_lshrrev_b32 {v(vC8)}, 3, {v(vLANE)}
          v_lshrrev_b32 {v(vT0)}, 2, {v(vLANE)}
          v_and_b32 {v(vT0)}, 4, {v(vT0)}
          v_xor_b32 {v(vT0)}, {v(vT0)}, {v(vLANE)}
          v_and_b32 {v(vT0)}, 7, {v(vT0)}
          v_lshlrev_b32 {v(vC7)}, 4, {v(vT0)}""")
    A(f"""s_lshl_b32 {s(sT1)}, {s(sT1)}, 1
          s_add_u32 {s(sT1)}, {s(sT1)}, {s(sW8)}
          s_and_b32 {s(sT1)}, {s(sT1)}, 7
          s_lshl_b32 {s(sT4)}, {s(sT1)}, 10
          s_lshl_b32 {s(sT5)}, {s(sT1)}, 3
          v_add_u32 {v(vT1)}, {s(sT5)}, {v(vC8)}
          s_lshl_b32 {s(sT2)}, {s(sCB)}, 7
          s_sub_u32 {s(sT2)}, {s(sT2)}, 128
          v_mul_u32_u24 {v(vT3)}, 896, {v(vT1)}
          v_add3_u32 {v(103)}, {v(vT3)}, {v(vC7)}, {s(sT2)}
          s_and_b32 {s(sW)}, {s(sW8)}, 3
          s_mul_i32 {s(sT1)}, {s(sW)}, 7168
          v_add_u32 {v(vT3)}, {s(sT1)}, {v(vL16)}
          s_mul_i32 {s(sT1)}, {s(sW8)}, 7168
          s_cmp_eq_u32 {s(sCB)}, 0
          s_cselect_b64 vcc, -1, 0
          s_cselect_b32 {s(sT1)}, {s(sT1)}, {s(sT4)}
          s_mov_b32 {s(sT2)}, 1024
          s_cselect_b32 {s(sT3)}, {s(sT2)}, {64 * 896}
          s_cselect_b32 {s(sT5)}, {s(sT2)}, 8192
          v_cndmask_b32 {v(103)}, {v(103)}, {v(vT3)}, vcc
          s_add_u32 m0, {s(sT1)}, {LA}""")
    A(f"""s_lshl_b32 {s(sB1)}, {s(sTB)}, 3
          s_add_u32 {s(sB1)}, {s(sB1)}, {s(sCB)}
          s_lshl_b32 {s(sB1)}, {s(sB1)}, 3
          s_add_u32 {s(sB1)}, {s(sB1)}, {s(sW8)}
          s_mul_i32 {s(sB1)}, {s(sB1)}, 896
          s_mul_i32 {s(sB4)}, {s(sTB)}, 7
          s_add_u32 {s(sB4)}, {s(sB4)}, {s(sW8)}
          s_mul_i32 {s(sB4)}, {s(sB4)}, {2 * 896}
          s_mul_i32 {s(sT0)}, {s(sCB)}, 112
          s_add_u32 {s(sB4)}, {s(sB4)}, {s(sT0)}
          s_cmp_eq_u32 {s(sW8)}, 7
          s_cselect_b32 {s(sB4)}, {OOB}, {s(sB4)}
          v_lshrrev_b32 {v(102)}, 1, {v(vLANE)}
          v_mul_u32_u24 {v(102)}, 896, {v(102)}
          v_and_b32 {v(vT3)}, 1, {v(vLANE)}
          v_mul_u32_u24 {v(vT3)}, 120, {v(vT3)}
          v_add_u32 {v(102)}, {v(102)}, {v(vT3)}
          s_mov_b32 {s(SX+2)}, 1835008
          s_mov_b32 {s(SX+3)}, 0x20000
          s_mov_b32 {s(SQ+2)}, 401408
          s_mov_b32 {s(SQ+3)}, 0x20000
          s_mov_b32 {s(SA+3)}, 0x20000
          s_mov_b32 {s(SA+2)}, 25088
          s_cmp_eq_u32 {s(sCB)}, 0
          s_cselect_b32 {s(SA+2)}, {s(SA+2)}, 401408
          s_mov_b32 {s(sT0)}, 0
          s_cmp_lt_u32 {s(sW8)}, 4
          s_waitcnt lgkmcnt(0)
          s_cselect_b64 {s(SA,2)}, {s(P_WK,2)}, {s(P_WV,2)}
          s_cmp_eq_u32 {s(sCB)}, 0
          s_cselect_b64 {s(SA,2)}, {s(SA,2)}, {s(P_W1,2)}
          s_mov_b64 {s(SX,2)}, {s(P_X,2)}
          s_mov_b64 {s(SQ,2)}, {s(P_WQ,2)}""")
    early_stamp(1)
    if "nopre" not in OPT:
        A("s_mov_b64 exec, 0x7f")
        A.vmem(f"buffer_load_dword {a(126)}, {v(vT2)}, {s(SX,4)}, {s(sB1)} offen", "pre")
        A("s_mov_b64 exec, 15")
        A.vmem(f"buffer_load_dword {a(125)}, {v(102)}, {s(SQ,4)}, {s(sB4)} offen", "pre")
        A("s_mov_b64 exec, -1")
    for n in range(7):
        if n:
            A(f"s_add_u32 m0, m0, {s(sT5)}\ns_add_u32 {s(sT0)}, {s(sT0)}, {s(sT3)}")
        A.vmem(f"buffer_load_dwordx4 {v(103)}, {s(SA,4)}, {s(sT0)} offen lds", "WA")
    early_stamp(2)
    A(f"""s_lshl_b32 {s(sT0)}, {s(sTB)}, 6
          v_add_u32 {v(vT1)}, {s(sT0)}, {v(vT1)}
          v_mul_u32_u24 {v(vT2)}, 896, {v(vT1)}
          v_lshrrev_b32 {v(vT1)}, 1, {v(vT1)}
          v_xor_b32 {v(vT1)}, {v(vT1)}, {v(vLANE)}
          v_and_b32 {v(vT1)}, 7, {v(vT1)}
          v_lshl_add_u32 {v(vWQ)}, {v(vT1)}, 4, {v(vT2)}
          s_and_b32 {s(sTT)}, {s(sW8)}, 1
          s_lshr_b32 {s(sP)}, {s(sW)}, 1""")
    if PROFILE:
        A(f"s_mov_b32 {s(sTS)}, s98")
        stamps["n"] = 1
    srd(SW, P_WS, WS_SIZE)
    srd(SD, P_DBG, 256)
    A(f"""s_cmp_lg_u32 {s(sW8)}, 0
          s_cbranch_scc1 L_nz
          v_lshlrev_b32 {v(vT0)}, 2, {v(vLANE)}
          v_add_u32 {v(vT0)}, {LS}, {v(vT0)}
          v_mov_b32 {v(vT1)}, 0
          ds_write_b32 {v(vT0)}, {v(vT1)}
          s_waitcnt lgkmcnt(0)
          s_cmp_lg_u32 s2, 0
          s_cbranch_scc1 L_nz
          s_or_b32 {s(sN)}, {s(sN)}, 1
          v_mov_b32 {v(vT2)}, {s(sN)}
          v_mov_b32 {v(vT3)}, {s(sN+1)}
          s_mov_b64 exec, 1
          buffer_store_dwordx2 {v(vT2,2)}, {v(vT1)}, {s(SD,4)}, 0 offen sc1
          s_mov_b64 exec, -1""")
    A.label("L_nz")
    A(f"""s_lshl_b32 {s(sGT)}, {s(sTB)}, 1
          s_add_u32 {s(sGT)}, {s(sGT)}, {s(sTT)}
          s_mov_b32 {s(sHI)}, 0
          s_mov_b32 {s(sHI+1)}, -1
          s_getreg_b32 {s(sXC)}, hwreg(HW_REG_XCC_ID, 0, 4)
          s_mov_b32 {s(sLOC)}, 0""")
    A(f"""v_bfe_u32 {v(vT0)}, {v(vLANE)}, 2, 2
          v_lshlrev_b32 {v(vT0)}, 7, {v(vT0)}
          v_lshrrev_b32 {v(vT1)}, 5, {v(vLANE)}
          v_lshl_add_u32 {v(vTRN)}, {v(vT1)}, 10, {v(vT0)}
          v_lshl_add_u32 {v(vTRD)}, {v(vT1)}, 9, {v(vT0)}
          v_bfe_u32 {v(vT0)}, {v(vLANE)}, 4, 1
          v_and_b32 {v(vT2)}, 3, {v(vLANE)}
          v_lshlrev_b32 {v(vT2)}, 3, {v(vT2)}
          v_lshl_add_u32 {v(103)}, {v(vT0)}, 5, {v(vT2)}
          v_bfe_u32 {v(vT0)}, {v(vLANE)}, 3, 1
          v_lshlrev_b32 {v(102)}, 6, {v(vT0)}""")
    A(f"""v_and_b32 {v(vT3)}, 31, {v(vLANE)}
          s_lshl_b32 {s(sT0)}, {s(sTT)}, 5
          v_add_u32 {v(vT0)}, {s(sT0)}, {v(vT3)}
          v_bfe_u32 {v(vT2)}, {v(vT0)}, 1, 3
          v_lshlrev_b32 {v(vT0)}, 7, {v(vT0)}
          v_xor_b32 {v(vT2)}, {v(vT2)}, {v(vT1)}
          v_lshl_add_u32 {v(vXF)}, {v(vT2)}, 4, {v(vT0)}
          v_xor_b32 {v(vXF+1)}, 32, {v(vXF)}
          v_xor_b32 {v(vXF+2)}, 64, {v(vXF)}
          v_xor_b32 {v(vXF+3)}, 96, {v(vXF)}
          s_lshr_b32 {s(sT1)}, {s(sW8)}, 1
          s_lshl_b32 {s(sT0)}, {s(sT1)}, 5
          v_xor_b32 {v(108)}, {s(sT0)}, {v(vXF)}
          s_lshl_b32 {s(sT0)}, {s(sTT)}, 10
          s_add_u32 {s(sT0)}, {s(sT0)}, {L_STAT}
          v_lshl_add_u32 {v(110)}, {v(vT3)}, 3, {s(sT0)}
          s_lshl_b32 {s(sT0)}, {s(sT1)}, 8
          v_add_u32 {v(111)}, {s(sT0)}, {v(110)}
          v_mov_b32 {v(30)}, 0
          v_mov_b32 {v(31)}, 0
          s_mov_b32 {s(sT5)}, {ONES}""")
    for i in range(4):
        A(f"v_mov_b32 {v(96+i)}, {ONES}")
    A(f"""s_lshl_b32 {s(sT0)}, s2, 3
          s_add_u32 {s(sT0)}, {s(sT0)}, {s(sW8)}
          s_cmp_ge_u32 {s(sT0)}, {392 if OPT.get("tw", "23") == "23" else 4096}
          s_cselect_b64 {s(SA,2)}, {s(P_W3,2)}, {s(P_W2,2)}
          s_mov_b32 {s(SA+2)}, 401408
          s_cselect_b32 {s(SA+2)}, 1605632, {s(SA+2)}
          s_cselect_b32 {s(sT1)}, 392, 0
          s_sub_u32 {s(sT0)}, {s(sT0)}, {s(sT1)}
          s_lshl_b32 {s(sRG)}, {s(sT0)}, {10 if OPT.get("tw", "23") == "23" else 8}""")
    A(f"""s_lshl_b32 {s(sT0)}, {s(sP)}, 6
          v_xor_b32 {v(vT0)}, {v(103)}, {v(102)}
          v_xor_b32 {v(vT0)}, {s(sT0)}, {v(vT0)}
          v_add_u32 {v(vT0)}, {v(vT0)}, {v(vTRN)}
          v_lshrrev_b32 {v(vT1)}, 7, {v(vTRN)}
          v_mul_u32_u24 {v(vT1)}, 56, {v(vT1)}
          s_mul_i32 {s(sT0)}, {s(sP)}, 28672
          v_add3_u32 {v(vT1)}, {v(vT1)}, {v(103)}, {s(sT0)}
          s_cmp_eq_u32 {s(sCB)}, 0
          s_cselect_b64 vcc, -1, 0
          v_cndmask_b32 {v(vT0)}, {v(vT0)}, {v(vT1)}, vcc
          v_add_u32 {v(29)}, {LA}, {v(vT0)}""")
    early_stamp(3)
    barrier()
    for kb in range(7):
        dma(sT4, LX + kb * 8192, vWQ, SX, (None, "0"), "X", imm=kb * 128)
    touch("x")
    early_stamp(4)
    A.wait_vm("WA")
    barrier()
    early_stamp(5)
    A(f"s_cmp_ge_u32 {s(sW8)}, 4\ns_cbranch_scc1 L_att")
    return list(A.vm)


def touch(where):
    if OPT.get("tat", "p1") != where:
        return
    A(f"v_lshlrev_b32 {v(vT0)}, 7, {v(vLANE)}\ns_mov_b64 exec, {255 if OPT.get('tw', '23') == '23' else 3}")
    A.vmem(f"buffer_load_dword {a(127)}, {v(vT0)}, {s(SA,4)}, {s(sRG)} offen", "t")
    A("s_mov_b64 exec, -1")


def stat_part(between):
    for j in range(7):
        A.ds(f"ds_read_b128 {v(SXR[j],4)}, {v(108)} offset:{j*8192}", ("sx", j))
    between()
    for j in range(7):
        A.wait_lg(("sx", j))
        for i in range(4):
            r = SXR[j] + i
            A(f"v_dot2c_f32_bf16 {v(30)}, {s(sT5)}, {v(r)}\nv_dot2c_f32_bf16 {v(31)}, {v(r)}, {v(r)}")
    A("s_nop 2")
    halves(30, vT2)
    halves(31, vT3)
    A(f"v_add_f32 {v(30)}, {v(30)}, {v(vT2)}\nv_add_f32 {v(31)}, {v(31)}, {v(vT3)}")
    A.ds(f"ds_write_b64 {v(111)}, {v(30,2)}", "statw")
    A.drain_lg()


def barrier():
    A("s_barrier")


def stat_read():
    for q in range(4):
        A.ds(f"ds_read_b64 {v(112+2*q,2)}, {v(110)} offset:{q*256}", "stat")


def stat_fin(vM, vVar):
    A.wait_lg("stat")
    for op in stat_fin_ops(vM, vVar):
        A(op)


def stat_fin_ops(vM, vVar):
    return (f"""v_add_f32 {v(112)}, {v(112)}, {v(114)}
          v_add_f32 {v(113)}, {v(113)}, {v(115)}
          v_add_f32 {v(116)}, {v(116)}, {v(118)}
          v_add_f32 {v(117)}, {v(117)}, {v(119)}
          v_add_f32 {v(112)}, {v(112)}, {v(116)}
          v_add_f32 {v(113)}, {v(113)}, {v(117)}
          v_mul_f32 {v(vM)}, {f32(1/448)}, {v(112)}
          v_mul_f32 {v(112)}, {v(vM)}, {v(vM)}
          v_mul_f32 {v(113)}, {f32(1/448)}, {v(113)}
          v_sub_f32 {v(113)}, {v(113)}, {v(112)}
          v_max_f32 {v(vVar)}, 0, {v(113)}""").split("\n")


def own_slot(base):
    return (f"s_lshl_b32 {s(sT0)}, {s(sTB)}, 3\ns_add_u32 {s(sT0)}, {s(sT0)}, {s(sCB)}\n"
            f"s_lshl_b32 {s(sT0)}, {s(sT0)}, 7\ns_add_u32 {s(sT0)}, {s(sT0)}, {base}")


late = []


def mlp(vm_entry):
    A.vm = list(vm_entry)
    vXD, vX1P, vW, vW3, vM, vR, vWA = 8, 16, 24, 26, 27, 28, 29
    vRA, vRB = [2, 3], [25, 31]
    acc, cs, ring, ones = 32, 48, 64, 96
    xnear, hnear = "x" in OPT.get("near", "xo"), "h" in OPT.get("near", "xo")
    A("s_setprio " + OPT.get("prio", "2"))
    vXA = 124
    setup = []
    for r, p, n in ((S2, P_W2, 401408), (SQ, P_W3, 1605632), (S4, P_W4, 1605632), (SO, P_WO, 401408), (SOUT, P_OUT, 1835008)):
        setup += [f"s_mov_b64 {s(r,2)}, {s(p,2)}", f"s_mov_b32 {s(r+2)}, {n}", f"s_mov_b32 {s(r+3)}, 0x20000"]
    setup += f"""s_max_u32 {s(sT1)}, {s(sCB)}, 1
          s_sub_u32 {s(sT1)}, {s(sT1)}, 1
          s_lshl_b32 {s(sT4)}, {s(sT1)}, 1
          s_add_u32 {s(sT4)}, {s(sT4)}, {s(sP)}
          s_mul_i32 {s(sPA)}, {s(sW)}, 14336
          s_mul_i32 {s(sPB)}, {s(sW)}, 11264
          s_add_u32 {s(sPB)}, {s(sPB)}, {LQ}
          s_mul_i32 {s(sB1)}, {s(sW)}, {112*896}
          s_mul_i32 {s(sB4)}, {s(sW)}, {448*896}
          s_and_b32 {s(sR)}, {s(sTB)}, 3
          s_lshl_b32 {s(sR)}, {s(sR)}, 1
          s_add_u32 {s(sR)}, {s(sR)}, {s(sCB)}
          s_cmp_ge_u32 {s(sR)}, 7
          s_cselect_b32 {s(sT0)}, 7, 0
          s_sub_u32 {s(sR)}, {s(sR)}, {s(sT0)}
          v_mul_u32_u24 {v(vT0)}, 896, {v(vC8)}
          s_lshl_b32 {s(sT0)}, {s(sT1)}, 7
          v_add3_u32 {v(vW)}, {v(vT0)}, {v(vC7)}, {s(sT0)}
          v_mul_u32_u24 {v(vT0)}, 3584, {v(vC8)}
          s_lshl_b32 {s(sT0)}, {s(sT1)}, 9
          s_lshl_b32 {s(sT2)}, {s(sW)}, 7
          s_add_u32 {s(sT0)}, {s(sT0)}, {s(sT2)}
          v_add3_u32 {v(vW3)}, {v(vT0)}, {v(vC7)}, {s(sT0)}
          s_lshl_b32 {s(sT0)}, {s(sP)}, 6
          v_xor_b32 {v(103)}, {v(103)}, {v(102)}
          v_xor_b32 {v(102)}, {s(sT0)}, {v(103)}
          s_lshl_b32 {s(sT3)}, {s(sT1)}, 13
          v_lshrrev_b32 {v(vT1)}, 5, {v(vLANE)}
          v_lshlrev_b32 {v(vT2)}, 4, {v(vT1)}
          v_xor_b32 {v(vXA)}, {v(vXF)}, {v(vT2)}
          v_xor_b32 {v(vXA)}, {s(sT0)}, {v(vXA)}
          v_lshl_add_u32 {v(vXA)}, {v(vT1)}, 3, {v(vXA)}
          v_add_u32 {v(vXA)}, {s(sT3)}, {v(vXA)}
          v_xor_b32 {v(vXA+1)}, 16, {v(vXA)}
          v_xor_b32 {v(vXA+2)}, 32, {v(vXA)}
          v_xor_b32 {v(vXA+3)}, 48, {v(vXA)}""".split("\n")

    def colsums(kstride, second):
        def step(ks):
            if ks < 28:
                tr(("a", 4 * ks), vWA, ks * kstride, second, ("w", ks))
            if ks >= 4:
                A.wait_lg(("w", ks - 4))
                mfma(v(cs, 16), a(4 * (ks - 4), 4), v(ones, 4), 0 if ks == 4 else None)
        weave(A, [lambda ks=ks: step(ks) for ks in range(32)], [lambda t=t: A(t) for t in setup])

    A(f"s_cmp_eq_u32 {s(sCB)}, 0\ns_cbranch_scc1 L_cskv")
    colsums(2048, 512)
    A.label("L_csdone")
    late.append(lambda: (A.label("L_cskv"), colsums(896, 224), A("s_branch L_csdone")))
    early_stamp(6)
    A.wait_vm("X")
    barrier()
    early_dump()
    stamp()
    NX = 6

    def xr(ks):
        A.ds(f"ds_read_b128 {v(ring + 4 * (ks % NX), 4)}, {v(vXF + (ks & 3))} offset:{(ks >> 2) * 8192}", ("x", ks))

    def first():
        for ks in range(NX - 1):
            xr(ks)
        for g in range(4):
            A.ds(f"ds_read_b64 {v(vXD+2*g,2)}, {v(vXA+g)}", "xd")
    stat_part(first)
    barrier()
    vC1g, vC2g, vRI, vR2 = 120, 121, 122, 123
    ne2 = int(OPT.get("ne2", 0))

    def w2dma(j, hs=(0, 1)):
        base, off = (sT3, LA + 24576 + j * 2048) if j < ne2 else (sPA, j * 2048)
        image(base, off, vW, S2, lambda e: f"s_add_u32 {s(sT0)}, {s(sB1)}, {j * 16 * 896 + e}", 896, "W2", hs)
    A(f"s_lshl_b32 {s(sT3)}, {s(sW)}, 13")
    fin = stat_fin_ops(vM, vR) + f"""v_add_f32 {v(vT0)}, {f32(EPS)}, {v(vR)}
          v_rsq_f32 {v(vT1)}, {v(vT0)}
          v_mov_b32 {v(vT3)}, {f32(EPS)}
          v_mul_f32 {v(vT2)}, {v(vT1)}, {v(vT1)}
          v_fma_f32 {v(vT2)}, {v(vT2)}, {v(vR)}, {v(vT3)}
          v_rsq_f32 {v(vT2)}, {v(vT2)}
          v_mov_b32 {v(vR)}, {v(vT1)}
          v_mul_f32 {v(vR2)}, {v(vT1)}, {v(vT2)}
          v_rcp_f32 {v(vRI)}, {v(vR2)}
          v_mul_f32 {v(vC1g)}, {f32(GC1)}, {v(vR2)}
          v_mul_f32 {v(vC2g)}, {v(vR2)}, {v(vR2)}
          v_mul_f32 {v(vC2g)}, {v(vC2g)}, {v(vR2)}
          v_mul_f32 {v(vC2g)}, {f32(GC2)}, {v(vC2g)}""".split("\n")
    fin += [f"v_mul_f32 {v(cs+i)}, {v(cs+i)}, {v(vM)}" for i in range(16)]
    for ks in range(28):
        if ks + NX - 1 < 28:
            xr(ks + NX - 1)
        if ks == 0:
            stat_read()
            nonce_issue(30)
        A.wait_lg(("x", ks))
        mfma(v(acc, 16), a(4 * ks, 4), v(ring + 4 * (ks % NX), 4), 0 if ks == 0 else None)
        if ks == 1:
            touch("p1")
        if 3 <= ks < 3 + 2 * ne2:
            skip = A.newlabel("w2")
            A(f"s_cmp_eq_u32 {s(sCB)}, 0\ns_cbranch_scc1 {skip}")
            w2dma((ks - 3) >> 1, ((ks - 3) & 1,))
            A.label(skip)
        if ks == 5:
            A.wait_lg("stat")
        if ks >= 5:
            for _ in range(3):
                if fin:
                    A(fin.pop(0))
    assert not fin
    arrive(C_PA)
    vm_kv = [t for t in A.vm if t != "W2"]
    A(f"s_cmp_eq_u32 {s(sCB)}, 0\ns_cbranch_scc1 L_kv\ns_nop 4")
    for i in range(16):
        A(f"v_sub_f32 {v(acc+i)}, {v(acc+i)}, {v(cs+i)}")
    stamp()
    pk = 64
    vHS = 74
    for i in range(8):
        for op in gelu_ops(acc + 2 * i, 72, pk + i, vC1g, vC2g, vRI):
            A(op)
        if i == 2:
            A(f"""v_and_b32 {v(vT0)}, 31, {v(vLANE)}
                  s_lshl_b32 {s(sT0)}, {s(sGT)}, 5
                  v_add_u32 {v(vT0)}, {s(sT0)}, {v(vT0)}
                  v_lshrrev_b32 {v(vT1)}, 5, {v(vLANE)}
                  v_lshlrev_b32 {v(vT1)}, 15, {v(vT1)}
                  v_lshl_add_u32 {v(vHS)}, {v(vT0)}, 4, {v(vT1)}
                  s_lshl_b32 {s(sT0)}, {s(sT4)}, 17
                  s_add_u32 {s(sT0)}, {s(sT0)}, {HB}
                  s_add_u32 {s(sT1)}, {s(sT0)}, 0x10000""")
        if i in (3, 7):
            A.vmem(f"buffer_store_dwordx4 {v(pk+(i&4),4)}, {v(vHS)}, {s(SW,4)}, {s(sT0 if i == 3 else sT1)} offen sc1", "hst")
    await_cnt(C_PA, 8)
    for j in range(ne2, 7):
        w2dma(j)
    nonce_take(30)
    signal(N_H, own_slot(FH), "hst")
    stamp()
    A(f"""s_add_u32 {s(sT0)}, {s(sT3)}, {LA + 24576}
          v_add3_u32 {v(32)}, {v(vTRD)}, {v(102)}, {s(sT0)}
          v_xor_b32 {v(33)}, 64, {v(32)}
          v_add_u32 {v(vT0)}, {s(sPA)}, {v(vTRD)}
          v_add_u32 {v(vT1)}, {s(sPB)}, {v(vTRD)}
          v_add_u32 {v(vRA[0])}, {v(vT0)}, {v(102)}
          v_xor_b32 {v(vRA[1])}, 64, {v(vRA[0])}
          v_add_u32 {v(vRB[0])}, {v(vT1)}, {v(102)}
          v_xor_b32 {v(vRB[1])}, 64, {v(vRB[0])}""")
    A.wait_vm("W2")
    for j in range(7):
        for b in range(2):
            tr(("a", 8 * j + 4 * b), 32 + b if j < ne2 else vRA[b], j * 2048, 1024, "w2")
    vH = 29
    A(f"""s_add_u32 {s(sT0)}, {s(sP)}, 1
          s_sub_u32 {s(sT1)}, 0, {s(sT0)}
          s_cmp_eq_u32 {s(sTT)}, 0
          s_cselect_b32 {s(sT0)}, {s(sT1)}, {s(sT0)}
          s_lshl_b32 {s(sT1)}, {s(sGT)}, 5
          s_add_u32 {s(sT1)}, {s(sT1)}, {s(sT0)}
          s_xor_b32 {s(sT2)}, {s(sGT)}, 1
          s_lshl_b32 {s(sT2)}, {s(sT2)}, 5
          s_add_u32 {s(sT2)}, {s(sT2)}, {s(sT0)}
          v_and_b32 {v(vT0)}, 31, {v(vLANE)}
          v_lshrrev_b32 {v(vT1)}, 5, {v(vLANE)}
          v_lshlrev_b32 {v(vT1)}, 15, {v(vT1)}
          v_mov_b32 {v(vT3)}, {OOB}""")
    for sl, sr in ((0, sT1), (1, sT2)):
        A(f"""v_add_u32 {v(vT2)}, {s(sr)}, {v(vT0)}
              v_cmp_gt_u32 vcc, 2048, {v(vT2)}
              v_lshl_add_u32 {v(vT2)}, {v(vT2)}, 4, {v(vT1)}
              s_nop 0
              v_cndmask_b32 {v(vH+sl)}, {v(vT3)}, {v(vT2)}, vcc""")

    def rot7(reg, u, scale, base):
        if u == 0:
            A(f"s_mul_i32 {s(reg)}, {s(sR)}, {scale}")
        else:
            A(f"""s_add_u32 {s(reg)}, {s(reg)}, {scale}
                  s_cmp_ge_u32 {s(reg)}, {7 * scale}
                  s_cselect_b32 {s(sT0)}, {7 * scale}, 0
                  s_sub_u32 {s(reg)}, {s(reg)}, {s(sT0)}""")

    def sdma(n, hs=(0, 1)):
        base, off = ring_addr(n % NRING)
        if n < 28:
            if n % 4 == 0 and 0 in hs:
                rot7(sRG, n // 4, 64 * 3584, None)
            image(base, off, vW3, SQ, lambda e: f"s_add_u32 {s(sT0)}, {s(sRG)}, {(n % 4) * 16 * 3584 + e}", 3584, ("S", n), hs)
        elif n < 56:
            p = n - 28
            if p % 2 == 0 and 0 in hs:
                rot7(sRG, (p % 14) // 2, 64 * 896, None)
                A(f"s_add_u32 {s(sT3)}, {s(sRG)}, {s(sB4)}")
            image(base, off, vW, S4, lambda e: f"s_add_u32 {s(sT0)}, {s(sT3)}, {(2 * (p // 14) + p % 2) * 16 * 896 + e}", 896, ("S", n), hs)
        else:
            k = n - 56
            image(base, off, vW, SO, lambda e: f"s_add_u32 {s(sT0)}, {s(sB1)}, {((k >> 1) * 28 + (k & 1) * 16) * 896 + e}", 896, ("S", n), hs)

    def sreg(n, b):
        return 8 * (n % 16) + 4 * b

    def sread(n, bs=(0, 1)):
        base, off = ring_addr(n % NRING)
        if n == 28 and 0 in bs:
            flip()
        A.wait_vm(("S", n))
        for b in bs:
            tr(("a", sreg(n, b)), (vRA if base == sPA else vRB)[b], off, 1024, ("s", n))

    def refill(n, hs=(0, 1)):
        if n < 64:
            A.wait_lg(("s", n - NRING))
            sdma(n, hs)

    def sread_p(n):
        return [lambda: sread(n, (0,)), lambda: sread(n, (1,))]

    def refill_p(n):
        return [lambda: refill(n, (0,)), lambda: refill(n, (1,))] if n < 64 else []

    def flip():
        A(f"s_lshl_b32 {s(sT0)}, {s(sP)}, 6")
        for r in vRA + vRB:
            A(f"v_xor_b32 {v(r)}, {s(sT0)}, {v(r)}")

    flip()
    early = int(OPT.get("early", 3))
    mid = int(OPT.get("mid", 6))
    A.drain_lg()
    arrive(C_W2)
    for n in range(early):
        sdma(n)
    cut("h")

    def setup_h():
        A(f"""v_lshrrev_b32 {v(vT0)}, 3, {v(vLANE)}
              s_sub_u32 {s(sT0)}, {s(sTB)}, 1
              v_add_u32 {v(vT0)}, {s(sT0)}, {v(vT0)}
              v_cmp_le_u32 vcc, 32, {v(vT0)}
              s_lshl_b32 {s(sT0)}, {s(sT0)}, 10
              s_add_u32 {s(sT0)}, {s(sT0)}, {FH}
              v_lshlrev_b32 {v(vT1)}, 7, {v(vLANE)}
              v_add_u32 {v(vT1)}, {s(sT0)}, {v(vT1)}
              s_mov_b32 {s(sINV)}, 0xff010101
              s_mov_b32 {s(sINV+1)}, -1
              s_or_b64 {s(sINV,2)}, {s(sINV,2)}, vcc""")
        lanes_to(vT1)

    acc0, vRW = 104, 120
    A(f"v_mul_f32 {v(vM)}, {v(vM)}, {v(vR)}")
    for i in range(8):
        A(f"""v_lshlrev_b32 {v(88)}, 16, {v(vXD+i)}
              v_and_b32 {v(89)}, 0xffff0000, {v(vXD+i)}
              v_fma_f32 {v(acc0+2*i)}, {v(88)}, {v(vR)}, -{v(vM)}
              v_fma_f32 {v(acc0+2*i+1)}, {v(89)}, {v(vR)}, -{v(vM)}""")
    for sl in range(4):
        A(f"""s_xor_b32 {s(sT0)}, {s(sW)}, {sl}
              s_mul_i32 {s(sT0)}, {s(sT0)}, 14336
              s_add_u32 {s(sT0)}, {s(sT0)}, {LA}
              v_add_u32 {v(vRW+sl)}, {s(sT0)}, {v(vL16)}""")
    await_cnt(C_W2)
    gate(G_H, setup_h, 32, payload=lambda: (A(f"s_mov_b32 {s(sT2)}, 0xfe00"), note_die(34)))
    read_mode()
    if "hold" in OPT:
        await_cnt(G_K, 1)
    stamp()
    hf = 32
    A(f"s_mul_i32 {s(sT5)}, {s(sW)}, {7 << 16}\ns_add_u32 {s(sT5)}, {s(sT5)}, {HB}")
    for j in range(7):
        if j:
            A(f"s_add_u32 {s(sT5)}, {s(sT5)}, 0x10000")
        for sl in range(2):
            A.vmem(f"buffer_load_dwordx4 {v(hf + 8*j + 4*sl, 4)}, {v(vH+sl)}, {s(SW,4)}, {s(sT5)} offen sc1", ("h", j))
    await_cnt(C_QD)
    accs = [v(acc0, 16), a(64, 16), a(80, 16), a(96, 16)]
    for j in range(7):
        A.wait_vm(("h", j))
        for sl in (1, 2, 3, 0):
            mfma(accs[sl], a(8 * j + 4 * (sl >> 1), 4), v(hf + 8 * j + 4 * (sl & 1), 4), 0 if j == 0 and sl else None)
    sdma(early)
    A("s_nop 3")
    offs1 = [(0, i * 1024) for i in range(12)]
    reduce_out([("a", 64), ("a", 80), ("a", 96)], C_R1, [vRW], offs1, [lambda n=n: sdma(n) for n in range(early + 1, early + mid)])

    reduce_in(acc0, 32, C_R1, lambda sl: [vRW + sl], offs1)
    for i in range(8):
        A(f"v_cvt_pk_bf16_f32 {v(vX1P+i)}, {v(acc0+2*i)}, {v(acc0+2*i+1)}")
    A(f"""s_mul_i32 {s(sT0)}, {s(sGT)}, 14
          s_add_u32 {s(sT0)}, {s(sT0)}, {s(sT4)}
          s_lshl_b32 {s(sT1)}, {s(sT0)}, 11
          s_add_u32 {s(sT1)}, {s(sT1)}, {X1}
          s_lshl_b32 {s(sT0)}, {s(sT0)}, 8
          s_add_u32 {s(sT2)}, {s(sT0)}, {ST}""")
    hstore([f"buffer_store_dwordx4 {v(vX1P,4)}, {v(vL16)}, {s(SW,4)}, {s(sT1)} offen",
            f"buffer_store_dwordx4 {v(vX1P+4,4)}, {v(vL16)}, {s(SW,4)}, {s(sT1)} offen offset:1024"], "xst", xnear)
    A(f"""v_add_f32 {v(32)}, {v(acc0)}, {v(acc0+1)}
          v_mul_f32 {v(33)}, {v(acc0)}, {v(acc0)}
          v_fma_f32 {v(33)}, {v(acc0+1)}, {v(acc0+1)}, {v(33)}""")
    for i in range(2, 16):
        A(f"v_add_f32 {v(32)}, {v(32)}, {v(acc0+i)}\nv_fma_f32 {v(33)}, {v(acc0+i)}, {v(acc0+i)}, {v(33)}")
    halves(32, 34)
    halves(33, 35)
    A(f"""v_add_f32 {v(32)}, {v(32)}, {v(34)}
          v_add_f32 {v(33)}, {v(33)}, {v(35)}
          v_lshlrev_b32 {v(34)}, 3, {v(vLANE)}
          s_not_b64 exec, {s(sHI,2)}""")
    hstore([f"buffer_store_dwordx2 {v(32,2)}, {v(34)}, {s(SW,4)}, {s(sT2)} offen"], "xst", xnear)
    A("s_mov_b64 exec, -1")
    stamp()
    cut("p2")
    for n in range(early + mid, NRING):
        sdma(n)
    A(f"""s_mul_i32 {s(sK)}, {s(sTB)}, {2 * 112}
          s_lshl_b32 {s(sT0)}, {s(sCB)}, 2
          s_add_u32 {s(sT0)}, {s(sT0)}, {s(sW)}
          s_sub_u32 {s(sT0)}, {s(sT0)}, 4
          s_lshl_b32 {s(sT0)}, {s(sT0)}, 2
          s_add_u32 {s(sK)}, {s(sK)}, {s(sT0)}
          s_lshl_b32 {s(sK)}, {s(sK)}, 10
          s_add_u32 {s(sK)}, {s(sK)}, {HH}""")
    npre = int(OPT.get("npre", 9))
    xsig = int(OPT.get("xsig", 4))
    for n in range(npre + 1):
        if n < npre:
            sread(n)
        if n == xsig:
            signal(N_X, own_slot(FX), "xst", near=xnear)
        if n >= 1:
            refill(n - 1 + NRING)
    stamp()
    cut("w3")

    def setup_x():
        A(f"""s_lshl_b32 {s(sT0)}, {s(sTB)}, 10
              s_add_u32 {s(sT0)}, {s(sT0)}, {FX}
              s_lshl_b32 {s(sT1)}, {s(sCB)}, 9
              s_add_u32 {s(sT1)}, {s(sT1)}, {FC - 512 - 1024}
              v_lshlrev_b32 {v(vT0)}, 7, {v(vLANE)}
              v_add_u32 {v(vT1)}, {s(sT0)}, {v(vT0)}
              v_add_u32 {v(vT0)}, {s(sT1)}, {v(vT0)}
              s_mov_b64 vcc, 0xff
              v_cndmask_b32 {v(vT1)}, {v(vT0)}, {v(vT1)}, vcc
              s_mov_b32 {s(sINV)}, 0xfffff001
              s_mov_b32 {s(sINV+1)}, -1""")
        lanes_to(vT1)
    gate(G_X, setup_x, 32)
    stamp()
    A(f"""s_mul_i32 {s(sT1)}, {s(sTB)}, {56 * 1024}
          s_add_u32 {s(sT1)}, {s(sT1)}, {X1}
          s_lshl_b32 {s(sT3)}, {s(sW)}, 10
          s_lshl_b32 {s(sT2)}, {s(sR)}, 12
          s_add_u32 {s(sT2)}, {s(sT2)}, {s(sT3)}
          s_add_u32 {s(sT3)}, {s(sT3)}, {LA}""")
    for i in range(7):
        if i:
            A(f"""s_add_u32 {s(sT2)}, {s(sT2)}, 4096
                  s_sub_u32 {s(sT5)}, {s(sT2)}, 28672
                  s_cmp_ge_u32 {s(sT2)}, 28672
                  s_cselect_b32 {s(sT2)}, {s(sT5)}, {s(sT2)}""")
        A(f"s_add_u32 {s(sT5)}, {s(sT1)}, {s(sT2)}")
        for tt in range(2):
            dma(sT3, tt * 28672 + i * 4096, vL16, SW, (f"s_add_u32 {s(sT0)}, {s(sT5)}, {tt * 28672}", s(sT0)), ("x1", min(i // 2, 2)), sc=" sc1")
    vB, stt, cst, bring = 27, 32, 28, 40
    A(f"""v_and_b32 {v(vT0)}, 31, {v(vLANE)}
          v_lshrrev_b32 {v(vT1)}, 5, {v(vLANE)}
          v_mul_u32_u24 {v(vT1)}, {14 * 256}, {v(vT1)}
          v_lshl_add_u32 {v(vT2)}, {v(vT0)}, 3, {v(vT1)}
          s_mul_i32 {s(sT1)}, {s(sTB)}, {28 * 256}
          s_lshl_b32 {s(sT2)}, {s(sW)}, 8
          s_add_u32 {s(sT1)}, {s(sT1)}, {s(sT2)}
          s_add_u32 {s(sT1)}, {s(sT1)}, {ST}
          s_cmp_lt_u32 {s(sW)}, 2
          s_cselect_b32 {s(sT2)}, {s(sT1)}, {OOB}
          v_add_u32 {v(vB)}, {LA}, {v(vL16)}""")
    for i in range(4):
        A.vmem(f"buffer_load_dwordx2 {v(stt+2*i,2)}, {v(vT2)}, {s(SW,4)}, {s(sT1 if i < 3 else sT2)} offen offset:{i*1024} sc1", "st")
    A(f"""s_lshl_b32 {s(sT1)}, {s(sCB)}, 2
          s_add_u32 {s(sT1)}, {s(sT1)}, {s(sW)}
          s_lshl_b32 {s(sT1)}, {s(sT1)}, 9
          s_add_u32 {s(sT1)}, {s(sT1)}, {CS - 2048}
          v_lshlrev_b32 {v(vT3)}, 3, {v(vLANE)}""")
    A.vmem(f"buffer_load_dwordx2 {v(cst,2)}, {v(vT3)}, {s(SW,4)}, {s(sT1)} offen sc1", "cs")
    A.wait_vm(("x1", 0))
    arrive(C_XA)
    await_cnt(C_XA)
    acc4 = [64, 80, 96, 112]

    def bread(ks):
        for tt in range(2):
            A.ds(f"ds_read_b128 {v(bring + 8 * (ks % 3) + 4 * tt, 4)}, {v(vB)} offset:{(tt * 28 + ks) * 1024}", ("b", ks))

    lag = int(OPT.get("lag", 7))
    plan, rstep = {}, {}
    nxt = npre
    for ks in range(28):
        while nxt < 44 and len(plan.get(ks, [])) < 2:
            ready = nxt - 16 < ks and (nxt - NRING < npre or rstep[nxt - NRING] + 1 + lag <= ks)
            if not (ready or (nxt < 28 and nxt - 2 <= ks)):
                break
            plan.setdefault(ks, []).append(nxt)
            rstep[nxt] = ks
            nxt += 1
    assert nxt >= 28 and all(n - 16 < ks and (n >= 28 or n >= ks + 1) for ks in plan for n in plan[ks]), plan
    pend = []
    if "p4" in OPT:
        stamp()
    bread(0)
    bread(1)
    for ks in range(28):
        if ks == 2:
            A.wait_vm(("x1", 1))
            arrive(C_XA)
        if ks == 5:
            await_cnt(C_XA, 8)
        if ks == 8:
            A.wait_vm(["cs", "st", ("x1", 2)])
            A(f"""v_add_f32 {v(stt)}, {v(stt)}, {v(stt+2)}
                  v_add_f32 {v(stt+1)}, {v(stt+1)}, {v(stt+3)}
                  v_add_f32 {v(stt+4)}, {v(stt+4)}, {v(stt+6)}
                  v_add_f32 {v(stt+5)}, {v(stt+5)}, {v(stt+7)}
                  s_lshl_b32 {s(sT0)}, {s(sW)}, 9
                  s_add_u32 {s(sT0)}, {s(sT0)}, {L_STAT}
                  v_add_f32 {v(stt)}, {v(stt)}, {v(stt+4)}
                  v_add_f32 {v(stt+1)}, {v(stt+1)}, {v(stt+5)}
                  v_lshl_add_u32 {v(vT2)}, {v(vLANE)}, 3, {s(sT0)}""")
            A.ds(f"ds_write_b64 {v(vT2)}, {v(stt,2)}", "sw")
            arrive(C_XB)
        if ks == 13:
            await_cnt(C_XB)
            A(f"v_lshlrev_b32 {v(vT2)}, 3, {v(vLANE)}\nv_add_u32 {v(vT2)}, {L_STAT}, {v(vT2)}")
            for q in range(4):
                A.ds(f"ds_read_b64 {v(stt+2*q,2)}, {v(vT2)} offset:{q*512}", "sr")
        A.wait_lg([("b", ks), ("s", ks)])
        acts = [lambda: bread(ks + 2)] if ks + 2 < 28 else []
        rd = [f for n in plan.get(ks, []) for f in sread_p(n)]
        rf = [f for n in pend for f in refill_p(n + NRING)]
        while rd or rf:
            acts += rf[:1] + rd[:1]
            rf, rd = rf[1:], rd[1:]
        pend = plan.get(ks, [])
        gaps([lambda t=t: mfma(v(acc4[t], 16), a(sreg(ks, t >> 1), 4), v(bring + 8 * (ks % 3) + 4 * (t & 1), 4), 0 if ks == 0 else None)
              for t in range(4)], acts)
        if "p4" in OPT and ks in (3, 6, 12, 15, 21):
            stamp()
        if ks == 16:
            A.wait_lg("sr")
            A(f"""v_add_f32 {v(stt)}, {v(stt)}, {v(stt+2)}
                  v_add_f32 {v(stt+1)}, {v(stt+1)}, {v(stt+3)}
                  v_add_f32 {v(stt+4)}, {v(stt+4)}, {v(stt+6)}
                  v_add_f32 {v(stt+5)}, {v(stt+5)}, {v(stt+7)}
                  v_add_f32 {v(stt)}, {v(stt)}, {v(stt+4)}
                  v_add_f32 {v(stt+1)}, {v(stt+1)}, {v(stt+5)}
                  v_add_f32 {v(cst)}, {v(cst)}, {v(cst+1)}""")
        if ks == 17:
            A(f"""v_mul_f32 {v(stt)}, {f32(-1/448)}, {v(stt)}
                  v_mul_f32 {v(stt+1)}, {f32(1/448)}, {v(stt+1)}
                  v_mul_f32 {v(stt+2)}, {v(stt)}, {v(stt)}
                  v_sub_f32 {v(stt+1)}, {v(stt+1)}, {v(stt+2)}
                  v_max_f32 {v(stt+1)}, 0, {v(stt+1)}
                  v_add_f32 {v(stt+1)}, {f32(EPS)}, {v(stt+1)}""")
        if ks == 18:
            halves(stt, stt + 2)
            halves(stt + 1, stt + 3)
            halves(cst, cst + 1)
    arrive(C_P4)
    vAE, vBE, gt, gpk = 40, 48, 56, 40
    for nt in range(2):
        c = cst + nt
        A(f"""v_cvt_pk_bf16_f32 {v(vT0)}, {v(c)}, {v(c)}
              v_and_b32 {v(vT1)}, 0xffff0000, {v(vT0)}
              v_sub_f32 {v(vT1)}, {v(c)}, {v(vT1)}
              v_cvt_pk_bf16_f32 {v(vAE+4*nt)}, {v(c)}, {v(vT1)}
              v_and_b32 {v(vAE+4*nt+1)}, 0xffff, {v(vT0)}
              v_mov_b32 {v(vAE+4*nt+2)}, 0
              v_mov_b32 {v(vAE+4*nt+3)}, 0""")
    for tt in range(2):
        m, b = stt + 2 * tt, vBE + 4 * tt
        A(f"""v_cvt_pk_bf16_f32 {v(vT0)}, {v(m)}, {v(m)}
              v_and_b32 {v(vT1)}, 0xffff0000, {v(vT0)}
              v_sub_f32 {v(vT1)}, {v(m)}, {v(vT1)}
              v_cvt_pk_bf16_f32 {v(vT1)}, {v(vT1)}, 0
              v_cndmask_b32 {v(b)}, {v(vT0)}, 0, {s(sHI,2)}
              v_cndmask_b32 {v(b+1)}, {v(vT1)}, 0, {s(sHI,2)}
              v_mov_b32 {v(b+2)}, 0
              v_mov_b32 {v(b+3)}, 0""")
    A("s_nop 0")
    for t in range(4):
        mfma(v(acc4[t], 16), v(vAE + 4 * (t >> 1), 4), v(vBE + 4 * (t & 1), 4))
    kk = [60, 36]
    for tt in range(2):
        e, k = stt + 2 * tt + 1, kk[tt]
        A(f"""v_rsq_f32 {v(vT0)}, {v(e)}
              s_nop 0
              v_mul_f32 {v(k+2)}, {v(e)}, {v(vT0)}
              v_mul_f32 {v(k)}, {f32(GC1)}, {v(vT0)}
              v_mul_f32 {v(k+1)}, {v(vT0)}, {v(vT0)}
              v_mul_f32 {v(k+1)}, {v(k+1)}, {v(vT0)}
              v_mul_f32 {v(k+1)}, {f32(GC2)}, {v(k+1)}""")
    stamp()
    ops = []
    for t in range(4):
        tt, b = t & 1, t >> 1
        for i in range(8):
            def pair(i=i, t=t, tt=tt):
                for op in gelu_ops(acc4[t] + 2 * i, gt, gpk + 8 * (t & 1) + i, kk[tt], kk[tt] + 1, kk[tt] + 2):
                    A(op)
            ops.append(pair)
            if i in (3, 7):
                def st(c=i >> 2, t=t, tt=tt, b=b):
                    A(f"s_add_u32 {s(sT0)}, {s(sK)}, {(tt * 112 + b * 2) * 1024}")
                    hstore([f"buffer_store_dwordx4 {v(gpk+8*(t&1)+4*c,4)}, {v(vL16)}, {s(SW,4)}, {s(sT0)} offen offset:{c*1024}"], ("Hst", b), hnear)
                ops.append(st)
        if t == 2:
            ops.append(lambda: signal(N_G, own_slot(FG), ("Hst", 0), near=hnear))
    fill = [f for n in pend for f in refill_p(n + NRING)]
    for n in range(nxt, 44):
        fill.append(lambda n=n: sread(n))
        if n > nxt:
            fill += refill_p(n - 1 + NRING)
    weave(A, ops, fill)
    if nxt < 44:
        refill(43 + NRING)
    vHH = 26
    A(f"""s_mul_i32 {s(sT0)}, {s(sGT)}, 4
          s_add_u32 {s(sT0)}, {s(sT0)}, {s(sW)}
          s_mul_i32 {s(sT0)}, {s(sT0)}, {28 * 1024}
          v_add_u32 {v(vHH)}, {s(sT0)}, {v(vL16)}
          s_xor_b32 {s(sT0)}, {s(sGT)}, 1
          s_mul_i32 {s(sT0)}, {s(sT0)}, 4
          s_add_u32 {s(sT0)}, {s(sT0)}, {s(sW)}
          s_mul_i32 {s(sT0)}, {s(sT0)}, {28 * 1024}
          v_add_u32 {v(vHH+1)}, {s(sT0)}, {v(vL16)}""")
    acc6 = [64, 80, 96, 112]
    for i in range(8):
        A(f"v_lshlrev_b32 {v(64+2*i)}, 16, {v(vX1P+i)}\nv_and_b32 {v(65+2*i)}, 0xffff0000, {v(vX1P+i)}")
    stamp()
    cut("w4")

    def setup_tb(base, inv):
        def f():
            A(f"""s_lshl_b32 {s(sT0)}, {s(sTB)}, 10
                  s_add_u32 {s(sT0)}, {s(sT0)}, {base}
                  v_lshlrev_b32 {v(vT1)}, 7, {v(vLANE)}
                  v_add_u32 {v(vT1)}, {s(sT0)}, {v(vT1)}
                  s_mov_b32 {s(sINV)}, {inv}
                  s_mov_b32 {s(sINV+1)}, -1""")
            lanes_to(vT1)
        return f
    peek_issue(setup_tb(FG, 0xffffff01), 34, 36)
    vO, vOUT = 28, 30
    A(f"""s_lshl_b32 {s(sT0)}, {s(sGT)}, 2
          s_add_u32 {s(sT0)}, {s(sT0)}, {s(sW)}
          s_lshl_b32 {s(sT0)}, {s(sT0)}, 13
          v_add_u32 {v(vO)}, {s(sT0)}, {v(vL16)}
          v_xor_b32 {v(vO+1)}, 0x8000, {v(vO)}
          v_and_b32 {v(32)}, 31, {v(vLANE)}
          s_lshl_b32 {s(sT0)}, {s(sGT)}, 5
          v_add_u32 {v(32)}, {s(sT0)}, {v(32)}
          v_mul_u32_u24 {v(32)}, 896, {v(32)}
          v_lshrrev_b32 {v(33)}, 5, {v(vLANE)}
          v_lshl_add_u32 {v(32)}, {v(33)}, 4, {v(32)}
          s_lshl_b32 {s(sT0)}, {s(sT4)}, 6
          v_add_u32 {v(vOUT)}, {s(sT0)}, {v(32)}""")
    signal(N_G2, own_slot(FG2), ("Hst", 1), near=hnear)
    peek_check(34, 36)
    stamp()
    hslots = [32, 36, 40, 44, 48, 52, 56, 60, 16, 20]
    NH = int(OPT.get("nh", 10))
    hsc = "" if "hplain" in OPT else " sc1"

    def bload(n):
        p, sl = n >> 1, n & 1
        if n < 56:
            if p % 2 == 0 and sl == 0:
                rot7(sRH, (p % 14) // 2, 4096, None)
                A(f"s_add_u32 {s(sV)}, {s(sRH)}, {HH}")
            addr, imm = vHH + sl, (2 * (p // 14) + p % 2) * 1024
        else:
            if p % 4 == 0 and sl == 0:
                A(f"s_mov_b32 {s(sV)}, {OB + 1024 * (p - 28)}")
            addr, imm = vO + sl, (p & 3) * 1024
        A.vmem(f"buffer_load_dwordx4 {v(hslots[n % NH], 4)}, {v(addr)}, {s(SW,4)}, {s(sV)} offen offset:{imm}{hsc}", ("H", n))

    def slotoffs(first):
        return [(0, i * 1024) if i < 14 else (1, (i - 14) * 1024) for i in range(first, first + 12)]

    vRW2 = [24, 25]
    for n in range(NH):
        bload(n)
    if OPT.get("tail", "ring") == "ring":
        vG, vA2 = 64, [24, 25, 26, 27, 2, 3, 31, 29 if NH == 10 else 63]

        def partner(sl):
            A(f"""s_xor_b32 {s(sT0)}, {s(sW)}, {sl}
                  s_mul_i32 {s(sT1)}, {s(sT0)}, 14336
                  s_mul_i32 {s(sT0)}, {s(sT0)}, 11264
                  s_add_u32 {s(sT0)}, {s(sT0)}, {LQ}
                  v_add_u32 {v(vA2[2*sl])}, {s(sT1)}, {v(vL16)}
                  v_add_u32 {v(vA2[2*sl+1])}, {s(sT0)}, {v(vL16)}""")
        side = {28: [], 29: [], 30: [], 31: [], 32: [], 33: [], 34: [], 35: []}
        for i in range(12):
            side[28 + (i + 2) // 5 + (1 if i < 0 else 0)].append(
                lambda i=i: A.ds(f"ds_write_b128 {v(24)}, {v(80 + 4 * i, 4)} offset:{i * 1024}", "red"))
        side[30].append(lambda: arrive(C_R2))
        side[32].append(lambda: await_cnt(C_R2))
        for sl in (1, 2, 3):
            side[32].append(lambda sl=sl: [A.ds(f"ds_read_b128 {v(64 + 16 * sl + 4 * q, 4)}, {v(vA2[2*sl])} offset:{((sl - 1) * 4 + q) * 1024}", ("rd", sl)) for q in range(4)])
        valu = []
        for sl in (1, 2, 3):
            valu.append(lambda sl=sl: A.wait_lg(("rd", sl)))
            valu += [lambda sl=sl, i=i: A(f"v_add_f32 {v(vG+i)}, {v(vG+i)}, {v(64 + 16 * sl + i)}") for i in range(16)]
        for i in range(8):
            y = vG + 2 * i
            valu += [lambda t=t: A(t) for t in f"""v_mul_f32 {v(80)}, {f32(-LOG2E)}, {v(y)}
                  v_mul_f32 {v(81)}, {f32(-LOG2E)}, {v(y+1)}
                  v_exp_f32 {v(80)}, {v(80)}
                  v_exp_f32 {v(81)}, {v(81)}
                  v_add_f32 {v(80)}, 1.0, {v(80)}
                  v_add_f32 {v(81)}, 1.0, {v(81)}
                  v_rcp_f32 {v(80)}, {v(80)}
                  v_rcp_f32 {v(81)}, {v(81)}
                  v_mul_f32 {v(y)}, {v(y)}, {v(80)}
                  v_mul_f32 {v(y+1)}, {v(y+1)}, {v(81)}""".split("\n")]
        nin = int(OPT.get("nin", 90))
        for n, f in enumerate(valu[:nin]):
            side[33 + (3 * n) // nin].append(f)
        for j in range(36):
            A.wait_vm(("H", 2 * j + 1))
            A.wait_lg(("s", 28 + j))
            if 2 * j + NH in (28, 56):
                peek_check()

            def mm(sl):
                d = v(acc6[sl], 16) if j < 28 else a(16 * sl, 16)
                mfma(d, a(sreg(28 + j, sl >> 1), 4), v(hslots[(2 * j + (sl & 1)) % NH], 4), 0 if (j == 0 and sl) or j == 28 else None)
            rd = sread_p(43 + j) if 1 <= j <= 20 else [None, None]
            rf = (refill_p(43 + j - 1 + NRING) if j >= 2 else []) or [None, None]
            ld = [(lambda n=n: bload(n)) if n < 72 else None for n in (2 * j + NH, 2 * j + NH + 1)]
            ex = side.get(j, [])
            lo = 2 if j == 28 else 0
            cut_ = [0] * (lo + 1) + [-(-len(ex) * (g + 1) // (4 - lo)) for g in range(4 - lo)]
            for g, (sl, todo) in enumerate(((0, [rf[0]]), (2, [ld[0], rd[0]]), (1, [rf[1]]), (3, [ld[1], rd[1]]))):
                mm(sl)
                if j == 28 and g == 1:
                    A("s_nop 6")
                for f in todo + ex[cut_[g]:cut_[g + 1]]:
                    if f:
                        f()
            if 2 * j + NH == 22:
                peek_issue(setup_tb(FG2, 0xffffff01))
            if 2 * j + NH == 50:
                peek_issue(setup_tb(FO, 0xffffff00))
            if j == 26:
                A.drain_lg()
                A(f"v_add_u32 {v(24)}, {s(sPA)}, {v(vL16)}\nv_add_u32 {v(25)}, {s(sPB)}, {v(vL16)}")
                partner(1)
                partner(2)
            if j == 27:
                stamp()
            if j == 31:
                partner(3)
        stamp()
        left = valu[nin:]
        for f in left[:12]:
            f()
        reduce_out([("a", 16), ("a", 32), ("a", 48)], C_R3, [24, 25], slotoffs(12), left[12:])
        for i in range(16):
            A(f"v_accvgpr_read_b32 {v(32+i)}, {a(i)}")
        stamp()
        reduce_in(32, 80, C_R3, lambda sl: vA2[2 * sl:2 * sl + 2], slotoffs(12))
        vS = 32
    else:
        vA2 = [24, 25, 26, 27, 2, 3, 31, 63]
        assert NH <= 8

        def partner(sl):
            A(f"""s_xor_b32 {s(sT0)}, {s(sW)}, {sl}
                  s_mul_i32 {s(sT1)}, {s(sT0)}, 14336
                  s_mul_i32 {s(sT0)}, {s(sT0)}, 11264
                  s_add_u32 {s(sT0)}, {s(sT0)}, {LQ}
                  v_add_u32 {v(vA2[2*sl])}, {s(sT1)}, {v(vL16)}
                  v_add_u32 {v(vA2[2*sl+1])}, {s(sT0)}, {v(vL16)}""")
        for j in range(28):
            A.wait_vm(("H", 2 * j + 1))
            A.wait_lg(("s", 28 + j))
            if 2 * j + NH == 28:
                peek_check()
            rd = sread_p(43 + j) if 1 <= j <= 20 else [None, None]
            rf = (refill_p(43 + j - 1 + NRING) if j >= 2 else []) or [None, None]
            ld = [(lambda n=n: bload(n)) if n < 56 else None for n in (2 * j + NH, 2 * j + NH + 1)]
            for sl, todo in ((0, [rf[0]]), (2, [ld[0], rd[0]]), (1, [rf[1]]), (3, [ld[1], rd[1]])):
                mfma(v(acc6[sl], 16), a(sreg(28 + j, sl >> 1), 4), v(hslots[(2 * j + (sl & 1)) % NH], 4), 0 if j == 0 and sl else None)
                for f in todo:
                    if f:
                        f()
            if 2 * j + NH == 22:
                peek_issue(setup_tb(FG2, 0xffffff01))
            if j == 25:
                A.drain_lg()
                peek_issue(setup_tb(FO, 0xffffff00), 60, 62)
                A(f"s_mov_b32 {s(sRH)}, 0\ns_mov_b32 {s(sV)}, {OB}\ns_mov_b32 {s(sRG)}, {OB + 4096}")
            if j == 26:
                A(f"v_add_u32 {v(24)}, {s(sPA)}, {v(vL16)}\nv_add_u32 {v(25)}, {s(sPB)}, {v(vL16)}")
                for sl in (1, 2, 3):
                    partner(sl)
        stamp()

        def oload(kq):
            for sl in range(2):
                A.vmem(f"buffer_load_dwordx4 {a(8 * kq + 4 * sl, 4)}, {v(vO+sl)}, {s(SW,4)}, {s(sV if kq < 4 else sRG)} offen offset:{(kq & 3) * 1024} sc1", ("o", kq))

        def try_o(last):
            done, again = A.newlabel("od"), A.newlabel("oa")
            A(f"s_cmp_lg_u32 {s(sRH)}, 0\ns_cbranch_scc1 {done}")
            A.vm = ["peek"]
            if last:
                peek_check(60, 62)
            else:
                A(f"""s_waitcnt vmcnt(0)
                      v_cmp_eq_u64 vcc, {s(sN,2)}, {v(60,2)}
                      s_or_b64 vcc, vcc, {s(sINV,2)}
                      s_cmp_eq_u64 vcc, -1
                      s_cbranch_scc0 {again}
                      s_mov_b32 {s(sRH)}, 1""")
            A.vm = []
            for kq in range(4):
                oload(kq)
            if not last:
                A(f"s_branch {done}")
                A.label(again)
                A(f"buffer_load_dwordx2 {v(60,2)}, {v(62)}, {s(SW,4)}, 0 offen sc1")
            A.label(done)

        try_o(False)
        A("s_nop 5")
        reduce_out([("v", 80), ("v", 96), ("v", 112)], C_R2, vA2[:2], slotoffs(0))
        try_o(False)
        vG = 32
        reduce_in(64, 80, C_R2, lambda sl: vA2[2 * sl:2 * sl + 2], slotoffs(0))
        for i in range(8):
            if i in (0, 4):
                try_o(False)
            y = 64 + 2 * i
            A(f"""v_mul_f32 {v(80)}, {f32(-LOG2E)}, {v(y)}
                  v_mul_f32 {v(81)}, {f32(-LOG2E)}, {v(y+1)}
                  v_exp_f32 {v(80)}, {v(80)}
                  v_exp_f32 {v(81)}, {v(81)}
                  v_add_f32 {v(80)}, 1.0, {v(80)}
                  v_add_f32 {v(81)}, 1.0, {v(81)}
                  v_rcp_f32 {v(80)}, {v(80)}
                  v_rcp_f32 {v(81)}, {v(81)}
                  v_mul_f32 {v(vG+2*i)}, {v(y)}, {v(80)}
                  v_mul_f32 {v(vG+2*i+1)}, {v(y+1)}, {v(81)}""")
        try_o(True)
        stamp()
        for kq in range(8):
            A.wait_vm(("o", kq))
            for n, sl in enumerate((1, 2, 3, 0)):
                mfma(v(acc6[sl], 16), a(sreg(56 + kq, sl >> 1), 4), a(8 * kq + 4 * (sl & 1), 4), 0 if kq == 0 else None)
                if n == 0 and kq < 4:
                    oload(kq + 4)
        stamp()
        A("s_nop 7\ns_nop 1")
        reduce_out([("v", 80), ("v", 96), ("v", 112)], C_R3, vA2[:2], slotoffs(12))
        reduce_in(64, 80, C_R3, lambda sl: vA2[2 * sl:2 * sl + 2], slotoffs(12))
        vS = 64
    for i in range(8):
        y = vS + 2 * i
        A(f"""v_lshlrev_b32 {v(80)}, 16, {v(vXD+i)}
              v_and_b32 {v(81)}, 0xffff0000, {v(vXD+i)}
              v_fma_f32 {v(80)}, {v(y)}, {v(vG+2*i)}, {v(80)}
              v_fma_f32 {v(81)}, {v(y+1)}, {v(vG+2*i+1)}, {v(81)}
              v_cvt_pk_bf16_f32 {v(84+i)}, {v(80)}, {v(81)}""")
    A("s_nop 1")
    for p in range(2):
        A(f"v_permlane32_swap_b32 {v(84+4*p)}, {v(86+4*p)}\nv_permlane32_swap_b32 {v(85+4*p)}, {v(87+4*p)}")
    for p in range(2):
        A.vmem(f"buffer_store_dwordx4 {v(84+4*p,4)}, {v(vOUT)}, {s(SOUT,4)}, 0 offen offset:{32*p} {OPT.get('osc', '').replace('+', ' ')}", "out")
    stamp()
    dump_stamps()
    A("s_endpgm")

    for blk in late:
        A.lg = []
        blk()
    A.label("L_kv")
    A.vm = list(vm_kv)
    A.lg = []
    A(f"""v_mul_u32_u24 {v(vT0)}, 3584, {v(vC8)}
          s_min_u32 {s(sT2)}, {s(sTB)}, 27
          s_lshl_b32 {s(sT0)}, {s(sT2)}, 7
          s_mul_i32 {s(sT1)}, {s(sW)}, {112 * 3584}
          s_add_u32 {s(sT0)}, {s(sT0)}, {s(sT1)}
          v_add3_u32 {v(vW3)}, {v(vT0)}, {v(vC7)}, {s(sT0)}""")
    for i in range(16):
        A(f"v_sub_f32 {v(acc+i)}, {v(acc+i)}, {v(cs+i)}\nv_mul_f32 {v(acc+i)}, {v(acc+i)}, {v(vR)}")
    A(f"s_mov_b64 exec, {s(sHI,2)}")
    for i in range(12, 16):
        A(f"v_mov_b32 {v(acc+i)}, 0")
    A("s_mov_b64 exec, -1")
    for i in range(8):
        A(f"v_cvt_pk_bf16_f32 {v(pk+i)}, {v(acc+2*i)}, {v(acc+2*i+1)}")
    A(f"""s_lshl_b32 {s(sT4)}, {s(sGT)}, 12
          s_cmp_eq_u32 {s(sP)}, 1
          s_cbranch_scc1 L_v
          s_mov_b64 exec, {s(sHI,2)}
          v_mov_b32 {v(pk+6)}, {ONES}
          v_mov_b32 {v(pk+7)}, 0x3f80
          s_mov_b64 exec, -1
          buffer_store_dwordx4 {v(pk,4)}, {v(vL16)}, {s(SW,4)}, {s(sT4)} offen sc1
          buffer_store_dwordx4 {v(pk+4,4)}, {v(vL16)}, {s(SW,4)}, {s(sT4)} offen offset:1024 sc1
          v_mul_f32 {v(72)}, {v(acc)}, {v(acc)}""")
    for i in range(1, 16):
        A(f"v_fma_f32 {v(72)}, {v(acc+i)}, {v(acc+i)}, {v(72)}")
    halves(72, 73)
    A(f"""v_add_f32 {v(72)}, {v(72)}, {v(73)}
          v_mov_b32 {v(73)}, {L_KM}
          ds_max_u32 {v(73)}, {v(72)}
          s_branch L_kvdone""")
    A.label("L_v")
    A(f"""s_mov_b64 exec, {s(sHI,2)}
          v_mov_b32 {v(pk+6)}, 0x3f80
          s_mov_b64 exec, -1
          s_lshl_b32 {s(sT0)}, {s(sTT)}, 12
          s_add_u32 {s(sT0)}, {s(sT0)}, {L_VT}
          v_and_b32 {v(72)}, 31, {v(vLANE)}
          v_bfe_u32 {v(74)}, {v(72)}, 1, 1
          v_lshlrev_b32 {v(74)}, 6, {v(74)}
          v_lshrrev_b32 {v(73)}, 5, {v(vLANE)}
          v_lshl_add_u32 {v(73)}, {v(73)}, 3, {v(74)}
          v_lshl_add_u32 {v(72)}, {v(72)}, 7, {v(73)}
          v_add_u32 {v(72)}, {s(sT0)}, {v(72)}
          v_add3_u32 {v(73)}, {v(vTRD)}, {v(103)}, {s(sT0)}""")
    for g in range(4):
        A.ds(f"ds_write_b64 {v(72)}, {v(pk+2*g,2)} offset:{16*g}", "vt")
    for c in range(2):
        tr(("v", 76 + 4 * c), 73, c * 2048, 1024, "vr")
    A.drain_lg()
    A(f"buffer_store_dwordx4 {v(76,4)}, {v(vL16)}, {s(SW,4)}, {s(sT4)} offen offset:2048 sc1")
    A(f"buffer_store_dwordx4 {v(80,4)}, {v(vL16)}, {s(SW,4)}, {s(sT4)} offen offset:3072 sc1")
    A.label("L_kvdone")
    A.vm += ["kv", "kv"]
    nonce_take(30)
    signal(N_K, f"s_lshl_b32 {s(sT0)}, {s(sTB)}, 7\ns_add_u32 {s(sT0)}, {s(sT0)}, {FK}", "kv", payload=L_KM)
    stamps["n"] = 2
    stamp()
    await_cnt(C_PA, 8)
    for j in range(7):
        image(sPA, j * 2048, vW3, SQ, lambda e, j=j: f"s_mov_b32 {s(sT0)}, {j * 16 * 3584 + e}", 3584, "W3")
    A(f"v_add3_u32 {v(72)}, {v(vTRD)}, {v(103)}, {s(sPA)}\nv_xor_b32 {v(73)}, 64, {v(72)}")
    A.wait_vm("W3")
    for i in range(14):
        tr(("a", 4 * i), 72 + (i & 1), (i >> 1) * 2048, 1024, ("c", i))
    for i in range(14):
        A.wait_lg(("c", i))
        mfma(v(32 + 16 * (i & 1), 16), v(ones, 4), a(4 * i, 4), 0 if i < 2 else None)
    A(f"""s_lshl_b32 {s(sT0)}, {s(sW)}, 8
          s_add_u32 {s(sT0)}, {s(sT0)}, {LA + 32768}
          v_lshlrev_b32 {v(73)}, 2, {v(vLANE)}
          v_add_u32 {v(74)}, {s(sT0)}, {v(73)}
          s_nop 7
          v_cndmask_b32 {v(72)}, {v(32)}, {v(48)}, {s(sHI,2)}
          ds_write_b32 {v(74)}, {v(72)}""")
    arrive(C_R1)
    A(f"s_cmp_gt_u32 {s(sTB)}, 27\ns_cbranch_scc1 L_kvend\ns_cmp_lg_u32 {s(sW)}, 0\ns_cbranch_scc1 L_kvend")
    await_cnt(C_R1)
    A(f"""ds_read_b32 {v(75)}, {v(74)} offset:256
          ds_read_b32 {v(76)}, {v(74)} offset:512
          ds_read_b32 {v(77)}, {v(74)} offset:768
          s_lshl_b32 {s(sT1)}, {s(sTB)}, 9
          s_add_u32 {s(sT1)}, {s(sT1)}, {CS}
          v_lshlrev_b32 {v(74)}, 3, {v(vLANE)}
          s_waitcnt lgkmcnt(0)
          v_add_f32 {v(72)}, {v(72)}, {v(75)}
          v_add_f32 {v(73)}, {v(76)}, {v(77)}
          buffer_store_dwordx2 {v(72,2)}, {v(74)}, {s(SW,4)}, {s(sT1)} offen sc1
          s_lshl_b32 {s(sT0)}, {s(sTB)}, 7
          s_add_u32 {s(sT0)}, {s(sT0)}, {FC}
          v_mov_b32 {v(vT0)}, {s(sN)}
          v_mov_b32 {v(vT1)}, {s(sN+1)}
          v_mov_b32 {v(vT3)}, 0
          s_waitcnt vmcnt(0)
          s_mov_b64 exec, 1
          buffer_store_dwordx2 {v(vT0,2)}, {v(vT3)}, {s(SW,4)}, {s(sT0)} offen sc1
          s_mov_b64 exec, -1""")
    A.label("L_kvend")

    gate(G_H, setup_tb(FH, 0xffffff01), 32, payload=lambda: (A(f"s_mov_b32 {s(sT2)}, 0xfe"), note_die(34)))
    arrive(C_P4)
    read_mode()
    A(f"""s_lshl_b32 {s(sT0)}, {s(sTB)}, 2
          s_add_u32 {s(sT0)}, {s(sT0)}, {s(sW)}
          s_mul_i32 {s(sT1)}, {s(sT0)}, 12544
          s_mul_i32 {s(sT2)}, {s(sT0)}, 3136
          v_lshlrev_b32 {v(74)}, 7, {v(vLANE)}""")
    if "notouch" not in OPT:
        A.vmem(f"buffer_load_dword {v(84)}, {v(74)}, {s(S4,4)}, {s(sT1)} offen", "t")
        A(f"s_add_u32 {s(sT1)}, {s(sT1)}, 8192\ns_bfm_b64 exec, 34, 0")
        A.vmem(f"buffer_load_dword {v(85)}, {v(74)}, {s(S4,4)}, {s(sT1)} offen", "t")
        A("s_bfm_b64 exec, 25, 0")
        A.vmem(f"buffer_load_dword {v(86)}, {v(74)}, {s(SO,4)}, {s(sT2)} offen", "t")
        A("s_mov_b64 exec, -1")
    A(f"""s_setprio 0
          s_cmp_eq_u32 {s(sLOC)}, 0
          s_cbranch_scc1 L_kvquit
          v_lshlrev_b32 {v(36)}, 7, {v(vLANE)}
          v_and_b32 {v(37)}, 7, {v(vLANE)}
          v_lshrrev_b32 {v(38)}, 3, {v(vLANE)}
          v_lshlrev_b32 {v(38)}, 15, {v(38)}
          v_lshl_add_u32 {v(37)}, {v(37)}, 7, {v(38)}
          s_lshl_b32 {s(sT0)}, {s(sTB)}, 10
          s_add_u32 {s(sT0)}, {s(sT0)}, {FX}
          s_lshl_b32 {s(sT3)}, {s(sW)}, 13""")
    A.vm = []
    warm(0, 37, sT0, "0xffffffff")
    jobs = ([(X1, 56 * 1024, 2), (ST, 7168, 1)] if xnear else []) + ([(HH, 224 * 1024, 7)] if hnear else []) + [(OB, 64 * 1024, 2)]
    n = 1
    for base, size, cnt in jobs:
        A(f"""s_mul_i32 {s(sT1)}, {s(sTB)}, {size}
              s_add_u32 {s(sT1)}, {s(sT1)}, {base}
              s_add_u32 {s(sT2)}, {s(sT1)}, {size}
              s_add_u32 {s(sT1)}, {s(sT1)}, {s(sT3)}""")
        for i in range(cnt):
            A(f"""s_cmp_lt_u32 {s(sT1)}, {s(sT2)}
                  s_cselect_b32 {s(sT0)}, {s(sT1)}, {OOB}
                  s_add_u32 {s(sT1)}, {s(sT1)}, 32768""")
            warm(n, 36, sT0, "0xffffffffffffff" if size == 7168 else -1)
            A(f"s_waitcnt vmcnt({OPT.get('wdepth', 0)})")
            n += 1
    A.label("L_kvquit")
    stamp()
    dump_stamps()
    A("s_endpgm")


def att(vm_entry):
    A.label("L_att")
    A.vm = list(vm_entry)
    A.lg = []
    stamps["n"] = 1
    acc, cs, ring, ones = 32, 48, 64, 96
    vM, vR = 8, 9
    A(f"""s_mul_i32 {s(sT0)}, {s(sCB)}, 112
          s_lshl_b32 {s(sT1)}, {s(sW)}, 3
          v_add_u32 {v(vT0)}, {s(sT1)}, {v(vC8)}
          v_mul_u32_u24 {v(vT0)}, 896, {v(vT0)}
          v_add3_u32 {v(vWQ)}, {v(vT0)}, {v(vC7)}, {s(sT0)}
          s_lshl_b32 {s(sPA)}, {s(sW)}, 10
          s_mul_i32 {s(sT0)}, {s(sP)}, 56
          v_add_u32 {v(103)}, {s(sT0)}, {v(103)}
          v_xor_b32 {v(103)}, {v(103)}, {v(102)}
          v_add_u32 {v(vT0)}, {v(vTRN)}, {v(103)}
          v_add_u32 {v(10)}, {LQ}, {v(vT0)}
          v_add_u32 {v(11)}, {LA}, {v(vT0)}""")
    nq0 = int(OPT.get("nq0", 11))
    for n in range(nq0):
        dma(sPA, LQ + n * 4096, vWQ, SQ, (f"s_mov_b32 {s(sT0)}, {n * 32 * 896}", s(sT0)), "WQ")
    early_stamp(6)
    A.wait_vm("X")
    barrier()
    early_dump()
    stamp()

    def first():
        for n in range(nq0, 14):
            dma(sPA, LQ + n * 4096 if n < 11 else LA + (n - 11) * 4096, vWQ, SQ, (f"s_mov_b32 {s(sT0)}, {n * 32 * 896}", s(sT0)), "WQ")
        nonce_issue(12)
        touch("p1")
    stat_part(lambda: None)
    barrier()
    first()
    stat_read()
    for ks in range(28):
        A.ds(f"ds_read_b128 {a(4*ks,4)}, {v(vXF + (ks & 3))} offset:{(ks >> 2) * 8192}", ("x", ks))
    stat_fin(vM, vR)
    A(f"v_add_f32 {v(vR)}, {f32(EPS)}, {v(vR)}\nv_rsq_f32 {v(vR)}, {v(vR)}")
    A.drain_lg()
    arrive(C_PA)
    A(f"v_mul_f32 {v(vR)}, {f32(QSCALE)}, {v(vR)}")
    A.wait_vm(["WQ", "nonce"])
    arrive(C_WQ)
    nonce_take(12)
    A(f"""s_lshl_b32 {s(sT0)}, {s(sGT)}, 4
          s_lshl_b32 {s(sT1)}, {s(sCB)}, 1
          s_add_u32 {s(sT0)}, {s(sT0)}, {s(sT1)}
          s_add_u32 {s(sT0)}, {s(sT0)}, {s(sP)}
          s_lshl_b32 {s(sT0)}, {s(sT0)}, 11
          s_add_u32 {s(sB4)}, {s(sT0)}, {OB}
""")
    await_cnt(C_WQ)
    stamp()

    def wq(ks):
        tr(("v", ring + 4 * (ks % 8)), 10 if ks < 22 else 11, (ks % 22) * 2048, 512, ("w", ks))
    vG, vF = 12, 104
    aO, aQ, aK, vV = 0, 48, 80, 72
    O0, S, P = 16, [32, 48], 64

    def setup_k():
        A(f"""v_lshlrev_b32 {v(vT1)}, 7, {v(vLANE)}
              v_add_u32 {v(vT1)}, {FK}, {v(vT1)}
              s_mov_b64 {s(sINV,2)}, {s(sHI,2)}""")
        lanes_to(vT1)

    misc = f"""s_lshl_b32 {s(sT0)}, {s(sW)}, 11
          s_add_u32 {s(sT0)}, {s(sT0)}, {L_QG}
          v_add_u32 {v(vG)}, {s(sT0)}, {v(vL16)}
          s_lshl_b32 {s(sT0)}, {s(sW)}, 8
          s_add_u32 {s(sT0)}, {s(sT0)}, {L_QN}
          v_lshlrev_b32 {v(14)}, 2, {v(vLANE)}
          v_add_u32 {v(15)}, {s(sT0)}, {v(14)}
          v_add_u32 {v(14)}, {L_QN}, {v(14)}
          s_add_u32 {s(sT0)}, {s(sCB)}, {s(sTB)}
          s_and_b32 {s(sT0)}, {s(sT0)}, 3
          s_lshl_b32 {s(sK)}, {s(sT0)}, 14
          s_add_u32 {s(sV)}, {s(sK)}, 0x4000
          s_and_b32 {s(sV)}, {s(sV)}, 0xffff
          s_lshl_b32 {s(sT0)}, {s(sW)}, 16
          v_add_u32 {v(vF)}, {s(sT0)}, {v(vL16)}
          v_add_u32 {v(vF+1)}, 4096, {v(vF)}
          v_add_u32 {v(vF+2)}, 8192, {v(vF)}
          v_add_u32 {v(vF+3)}, 12288, {v(vF)}""".split("\n")
    for sl in range(4):
        misc += [f"s_xor_b32 {s(sT0)}, {s(sW)}, {sl}", f"s_mul_i32 {s(sT0)}, {s(sT0)}, 12288",
                 f"s_add_u32 {s(sT0)}, {s(sT0)}, {LA}", f"v_add_u32 {v(124+sl)}, {s(sT0)}, {v(vL16)}"]
    misc += [f"v_mov_b32 {v(O0+i)}, 0" for i in range(16)]
    misc += [f"v_xor_b32 {v(108+sl)}, {sl << 11}, {v(vG)}" for sl in range(1, 4)]

    def qstep(ks):
        if ks + 6 < 28:
            wq(ks + 6)
        A.wait_lg(("w", ks))
        mfma(v(acc, 16), v(ring + 4 * (ks % 8), 4), a(4 * ks, 4), 0 if ks == 0 else None)
        mfma(v(cs, 16), v(ring + 4 * (ks % 8), 4), v(ones, 4), 0 if ks == 0 else None)
        if 14 <= ks < 26:
            for i in range(4):
                A(f"v_accvgpr_write_b32 {a(aO + 4 * (ks - 14) + i)}, 0")
    for ks in range(6):
        wq(ks)
    weave(A, [lambda ks=ks: qstep(ks) for ks in range(28)], [lambda t=t: A(t) for t in misc])
    hi = "prl" not in OPT

    def kload(slot, base):
        for c in range(2):
            A.vmem(f"buffer_load_dwordx4 {a(aK + 8*slot + 4*c, 4)}, {v(vF+slot)}, {s(SW,4)}, {s(base)} offen offset:{c*1024} sc1", "K")

    def vload(slot, base):
        for c in range(2):
            A.vmem(f"buffer_load_dwordx4 {v(vV + 8*slot + 4*c, 4)}, {v(vF+slot)}, {s(SW,4)}, {s(base)} offen offset:{2048 + c*1024} sc1", "V")

    def first_loads():
        A("s_setprio 3")
        for slot in range(3):
            kload(slot, sK)
            vload(slot, sK)
            if slot == 0:
                A("s_setprio " + OPT.get("aprio", "0"))
        kload(3, sK)
        A.vm = []

    stamp()
    A("s_nop 9")
    q = acc
    for i in range(16):
        A(f"v_fma_f32 {v(q+i)}, -{v(cs+i)}, {v(vM)}, {v(q+i)}\nv_mul_f32 {v(q+i)}, {v(q+i)}, {v(vR)}")
    A(f"s_mov_b64 exec, {s(sHI,2)}")
    for i in range(12, 16):
        A(f"v_mov_b32 {v(q+i)}, 0")
    A("s_mov_b64 exec, -1")
    for i in range(8):
        A(f"v_cvt_pk_bf16_f32 {v(48+i)}, {v(q+2*i)}, {v(q+2*i+1)}")
    A.ds(f"ds_write_b128 {v(vG)}, {v(48,4)}", "qg")
    A.ds(f"ds_write_b128 {v(vG)}, {v(52,4)} offset:1024", "qg")
    A(f"v_mul_f32 {v(56)}, {v(q)}, {v(q)}")
    for i in range(1, 16):
        A(f"v_fma_f32 {v(56)}, {v(q+i)}, {v(q+i)}, {v(56)}")
    halves(56, 57)
    A(f"v_add_f32 {v(56)}, {v(56)}, {v(57)}")
    A.ds(f"ds_write_b32 {v(15)}, {v(56)}", "qg")
    arrive(C_Q)
    for i in range(4):
        A(f"v_mov_b32 {v(P+4+i)}, 0\nv_mov_b32 {v(vV+28+i)}, 0")
    await_cnt(C_Q)
    for sl in range(4):
        for c in range(2):
            A.ds(f"ds_read_b128 {a(aQ + 8*sl + 4*c, 4)}, {v(108+sl if sl else vG)} offset:{c*1024}", "q")
    for sl in range(4):
        A.ds(f"ds_read_b32 {v(120+sl)}, {v(14)} offset:{sl*256}", "q")
    A.drain_lg()
    arrive(C_QD)
    A("s_setprio 3")
    gate(G_K, setup_k, 112, payload=lambda: A(f"v_mov_b32 {v(113)}, {L_KP}\nds_max_u32 {v(113)}, {v(114)}"))
    stamp()
    A(f"v_mov_b32 {v(113)}, {L_KP}\nds_read_b32 {v(112)}, {v(113)}")
    first_loads()
    A(f"""s_waitcnt lgkmcnt(0)
          v_max3_f32 {v(120)}, {v(120)}, {v(121)}, {v(122)}
          v_max_f32 {v(120)}, {v(120)}, {v(123)}
          v_mul_f32 {v(108)}, {v(112)}, {v(120)}
          v_cmp_nge_f32 vcc, {f32(-1.0 if FORCE_SLOW else BOUND2)}, {v(108)}
          s_cmp_lg_u64 vcc, 0
          s_cbranch_scc1 L_slow""")
    A.label("L_fast")
    A("s_waitcnt vmcnt(10)")

    def Oreg(sl):
        return v(O0, 16) if sl == 0 else a(aO + 16 * (sl - 1), 16)

    mfma(v(S[0], 16), a(aK, 4), a(aQ, 4), 0)
    mfma(v(S[0], 16), a(aK + 4, 4), a(aQ + 4, 4))
    A(f"s_mov_b32 {s(sT4)}, 4\ns_nop 7\ns_nop 1")
    A.label("L_aloop")

    def period(sg, qt):
        cur, nxt = S[qt & 1], S[(qt + 1) & 1]
        ks = sg if qt < 3 else (sg + 1) & 3
        vs = sg if qt > 0 else (sg - 1) & 3
        nq, pq = (qt + 1) & 3, (qt - 1) & 3
        e = lambda i: A(f"v_exp_f32 {v(cur+i)}, {v(cur+i)}")
        c = lambda i: A(f"v_cvt_pk_bf16_f32 {v(P+i)}, {v(cur+2*i)}, {v(cur+2*i+1)}")
        if qt == 3:
            A("s_waitcnt vmcnt(6)")
        mfma(v(nxt, 16), a(aK + 8 * ks, 4), a(aQ + 8 * nq, 4), 0)
        if qt == 3:
            A("s_setprio 3")
            vload((sg - 1) & 3, sK if sg == 0 else sV)
            kload(sg, sV)
            A("s_setprio " + OPT.get("aprio", "0"))
        e(0); e(1); e(2); e(3)
        mfma(Oreg(pq), v(vV + 8 * vs + 4, 4), v(P + 4, 4))
        c(0); c(1); e(4); e(5); e(6); e(7)
        mfma(v(nxt, 16), a(aK + 8 * ks + 4, 4), a(aQ + 8 * nq + 4, 4))
        c(2); c(3); e(8); e(9); e(10); e(11)
        mfma(Oreg(qt), v(vV + 8 * sg, 4), v(P, 4))
        c(4); c(5); e(12); e(13); e(14); e(15); c(6); c(7)

    for sg in range(4):
        for qt in range(4):
            period(sg, qt)
            A.vm = []
    A(f"""s_mov_b32 {s(sK)}, {s(sV)}
          s_add_u32 {s(sV)}, {s(sV)}, 0x4000
          s_and_b32 {s(sV)}, {s(sV)}, 0xffff
          s_cmp_eq_u32 {s(sT4)}, 2
          s_cselect_b32 {s(sV)}, {OOB}, {s(sV)}
          s_sub_u32 {s(sT4)}, {s(sT4)}, 1
          s_cmp_lg_u32 {s(sT4)}, 0
          s_cbranch_scc1 L_aloop""")
    mfma(Oreg(3), v(vV + 28, 4), v(P + 4, 4))
    stamp()
    A("s_setprio 3")
    A(f"""v_mov_b32 {v(vT0)}, {C_P4}
          ds_read_b32 {v(vT1)}, {v(vT0)}
          ds_read_b32 {v(vT2)}, {v(vT0)} offset:{L_MODE - C_P4}
          s_waitcnt lgkmcnt(0)
          v_readfirstlane_b32 {s(sT0)}, {v(vT1)}
          v_readfirstlane_b32 {s(sLOC)}, {v(vT2)}
          s_cmp_ge_u32 {s(sT0)}, 4
          s_cbranch_scc1 L_free""")
    await_cnt(C_P4)
    read_mode()
    A.label("L_free")
    A("s_nop 2")
    offs = [(0, i * 1024) for i in range(12)]
    if "mrg" in OPT:
        stamp()
    reduce_out([("a", aO), ("a", aO + 16), ("a", aO + 32)], C_MRG, [124], offs)
    if "mrg" in OPT:
        stamp()
        await_cnt(C_MRG)
        stamp()

    reduce_in(O0, [32, 48, 104], C_MRG, lambda sl: [124 + sl], offs)
    if "mrg" in OPT:
        stamp()
    A(f"v_mov_b32 {v(32)}, {v(O0+12)}")
    halves(32, 33)
    A(f"v_rcp_f32 {v(33)}, {v(33)}\ns_nop 0")
    for i in range(16):
        A(f"v_mul_f32 {v(O0+i)}, {v(O0+i)}, {v(33)}")
    for i in range(8):
        A(f"v_cvt_pk_bf16_f32 {v(40+i)}, {v(O0+2*i)}, {v(O0+2*i+1)}")
    A(f"s_mov_b64 exec, {s(sHI,2)}\nv_mov_b32 {v(46)}, 0\nv_mov_b32 {v(47)}, 0\ns_mov_b64 exec, -1")
    hstore([f"buffer_store_dwordx4 {v(40,4)}, {v(vL16)}, {s(SW,4)}, {s(sB4)} offen",
            f"buffer_store_dwordx4 {v(44,4)}, {v(vL16)}, {s(SW,4)}, {s(sB4)} offen offset:1024"])
    if "mrg" in OPT:
        stamp()
        A.drain_vm()
        stamp()
    signal(N_O, own_slot(FO), near=True)
    stamp()
    dump_stamps()
    A("s_endpgm")

    A.label("L_slow")
    mx, kf = 108, 112
    for sl in range(4):
        A(f"v_mov_b32 {v(mx+sl)}, 0xff800000")
    A(f"s_mov_b32 {s(sT4)}, 0")
    A.label("L_sloop")
    A(f"""buffer_load_dwordx4 {v(kf,4)}, {v(vF)}, {s(SW,4)}, {s(sT4)} offen sc1
          buffer_load_dwordx4 {v(kf+4,4)}, {v(vF)}, {s(SW,4)}, {s(sT4)} offen offset:1024 sc1
          s_add_u32 {s(sT4)}, {s(sT4)}, 4096
          s_waitcnt vmcnt(0)""")
    for sl in range(4):
        mfma(v(S[0], 16), v(kf, 4), a(aQ + 8 * sl, 4), 0)
        mfma(v(S[0], 16), v(kf + 4, 4), a(aQ + 8 * sl + 4, 4))
        A("s_nop 11")
        for i in range(8):
            A(f"v_max3_f32 {v(mx+sl)}, {v(mx+sl)}, {v(S[0]+2*i)}, {v(S[0]+2*i+1)}")
    A(f"s_cmp_lt_u32 {s(sT4)}, 0x10000\ns_cbranch_scc1 L_sloop")
    A(f"v_and_b32 {v(kf)}, 31, {v(vLANE)}\nv_lshlrev_b32 {v(kf)}, 2, {v(kf)}\nv_add_u32 {v(kf)}, {L_MX}, {v(kf)}")
    for sl in range(4):
        halves(mx + sl, kf + 1)
        A(f"""v_max_f32 {v(mx+sl)}, {v(mx+sl)}, {v(kf+1)}
              s_xor_b32 {s(sT0)}, {s(sW)}, {sl}
              s_lshl_b32 {s(sT0)}, {s(sT0)}, 7
              v_add_u32 {v(kf+4+sl)}, {s(sT0)}, {v(kf)}""")
    A(f"ds_write_b32 {v(kf+4)}, {v(mx)}")
    arrive(C_MAX)
    await_cnt(C_MAX)
    for sl in range(1, 4):
        A(f"ds_max_f32 {v(kf+4+sl)}, {v(mx+sl)}")
    arrive(C_MAX)
    await_cnt(C_MAX, 8)
    t = 120
    for sl in range(4):
        A(f"""ds_read_b32 {v(t)}, {v(kf+4+sl)}
              s_waitcnt lgkmcnt(0)
              v_sub_f32 {v(t)}, 0, {v(t)}
              v_cvt_pk_bf16_f32 {v(t+1)}, {v(t)}, {v(t)}
              v_and_b32 {v(t+1)}, 0xffff0000, {v(t+1)}
              v_sub_f32 {v(t+2)}, {v(t)}, {v(t+1)}
              v_cvt_pk_bf16_f32 {v(t+3)}, {v(t)}, {v(t+2)}
              v_and_b32 {v(t+1)}, 0xffff0000, {v(t+3)}
              v_sub_f32 {v(t+2)}, {v(t+2)}, {v(t+1)}
              v_cvt_pk_bf16_f32 {v(t+2)}, {v(t+2)}, 0
              s_mov_b64 exec, {s(sHI,2)}
              v_accvgpr_write_b32 {a(aQ + 8*sl + 6)}, {v(t+3)}
              v_accvgpr_write_b32 {a(aQ + 8*sl + 7)}, {v(t+2)}
              s_mov_b64 exec, -1""")
    A("s_nop 1\ns_branch L_fast")


def header():
    ref = open(f"cdna_kernels/{NAME}.s.ref").read().split("\n")
    out = [l for l in ref if l.startswith(";") and "@launch" not in l and "Override" not in l and "grid=ceil" not in l]
    out.append(f"; @launch grid=(256,1,1) block=(512,1,1) lds={LDS_SIZE}")
    out += ['.amdgcn_target "amdgcn-amd-amdhsa--gfx950"', ".text", f".globl {NAME}_kernel", ".p2align 8",
            f".type {NAME}_kernel,@function", f"{NAME}_kernel:"]
    return "\n".join(out) + "\n"


def footer():
    return f"""L_end:
    s_endpgm
L_code_end:
.section .rodata,"a"
.p2align 6
.amdhsa_kernel {NAME}_kernel
  .amdhsa_next_free_vgpr 256
  .amdhsa_next_free_sgpr 102
  .amdhsa_accum_offset 128
  .amdhsa_group_segment_fixed_size 0
  .amdhsa_kernarg_size 104
  .amdhsa_user_sgpr_count 2
  .amdhsa_user_sgpr_kernarg_segment_ptr 1
  .amdhsa_system_sgpr_workgroup_id_x 1
.end_amdhsa_kernel
"""


if __name__ == "__main__":
    vm0 = prologue()
    mlp(vm0)
    att(vm0)
    out = [x for x in sys.argv[1:] if not x.startswith("--")]
    open(out[0] if out else "k.s", "w").write(header() + A.text() + footer())
```

```python
import math
import sys
from asmlib import Asm, a, f32, s, v, weave

NAME = "recurrent_scan__grouped_kv_mqa__mixer_s_mlp__prompt"
PROFILE = "--prof" in sys.argv or "--cyc" in sys.argv
CLOCK = "s_memtime" if "--cyc" in sys.argv else "s_memrealtime"
FORCE_SLOW = "--slow" in sys.argv
OPT = {x[2:].split("=")[0]: (x.split("=") + [""])[1] for x in sys.argv if x.startswith("--")}


class Stop(Exception):
    pass


def cut(name):
    if OPT.get("mlpstop") == name:
        arrive(C_P4)
        A.drain_vm()
        dump_stamps()
        A("s_endpgm")


KV, CS, FK, FC, FH, FX, FG, FO, FG2 = 0x0, 0x40000, 0x48000, 0x49000, 0x50000, 0x58000, 0x60000, 0x68000, 0x70000
TS = 0x80000
HB, ST, X1, HH, OB = 0x100000, 0x2C0000, 0x300000, 0x500000, 0xC00000
WS_SIZE = 0xE00000
OOB = 0x7FFF0000
LX, LA, LQ, LS = 0, 57344, 114688, 159744
LDS_SIZE = 163840
(C_PA, C_W2, C_WQ, C_Q, C_QD, C_MAX, C_MRG, C_R1, C_XA, C_XB, C_P4, C_R2, C_R3, N_H, N_X, N_G, N_G2, N_O, N_K, N_C,
 G_H, G_X, G_G, G_G2, G_O, G_K, L_KM, L_KP, L_MODE) = [LS + 4 * i for i in range(29)]
L_QN, L_STAT = LS + 1024, LS + 2048
L_MX = LS + 256
L_QG, L_VT = LA + 16384, LA + 24576
NRING = 12
assert L_QG % 8192 == 0
LOG2E = 1.4426950408889634
QSCALE = 28 ** -0.5 * LOG2E
GC1 = -2 * LOG2E * math.sqrt(2 / math.pi)
GC2 = GC1 * 0.044715
EPS = 1e-5
BOUND2 = 3500.0
ONES = 0x3F803F80
GSPIN, LSPIN = 20000, 400000
SX, SA, SQ, SW, S4, SO, SOUT, SD, S2 = 4, 8, 12, 16, 20, 24, 28, 32, 36
P_X, P_WQ, P_WK, P_WV, P_WO, P_W1, P_W2, P_W3, P_W4, P_OUT, P_DBG, P_WS = 40, 42, 44, 46, 48, 52, 54, 56, 58, 60, 62, 64
sN = 66
sW8, sW, sTB, sCB, sTT, sP, sGT = 68, 69, 70, 71, 72, 73, 74
sHI = 76
sINV = 78
sT0, sT1, sT2, sT3, sT4, sT5 = 80, 81, 82, 83, 84, 85
sPA, sPB, sB1, sB4, sSP = 86, 87, 88, 89, 90
sK, sV, sR, sRG, sRH = 91, 92, 93, 96, 97
sLN = 100
sXC, sLOC = 75, 3
sTS = 40
vLANE, vL16, vTRN, vTRD, vT0, vT1, vT2, vT3 = 0, 1, 2, 3, 4, 5, 6, 7
MF = "v_mfma_f32_32x32x16_bf16"

A = Asm()
stamps = {"n": 0}


def stamp():
    if "anchor" in OPT:
        stamps["a"] = stamps.get("a", 0) + 1
        if stamps["a"] == int(OPT["anchor"]):
            A("s_waitcnt lgkmcnt(0)\ns_memrealtime s[98:99]\ns_waitcnt lgkmcnt(0)")
            A.lg = []
    if PROFILE:
        i = stamps["n"]
        stamps["n"] += 1
        A(f"s_waitcnt lgkmcnt(0)\n{CLOCK} {s(94,2)}\ns_waitcnt lgkmcnt(0)\ns_mov_b32 {s(sTS+i)}, s94")
        if "both" in OPT:
            A(f"s_memrealtime {s(94,2)}\ns_and_b32 {s(sTS+i)}, {s(sTS+i)}, 0xfffff\ns_waitcnt lgkmcnt(0)\n"
              f"s_lshl_b32 s94, s94, 20\ns_or_b32 {s(sTS+i)}, {s(sTS+i)}, s94")
        A.lg = []


def early_stamp(i):
    if "startup" in OPT:
        A(f"s_memtime {s(94,2)}\ns_waitcnt lgkmcnt(0)\ns_mov_b32 {s([98, 99, 100, 101, 3, 75, 97][i])}, s94")


def early_dump():
    if "startup" in OPT:
        for i, r in enumerate([98, 99, 100, 101, 3, 75, 97]):
            A(f"s_mov_b32 {s(sTS+i)}, {s(r)}")
        stamps["n"] = 7
        stamp()
        dump_stamps()
        A("s_endpgm")


def dump_stamps():
    if PROFILE:
        n = stamps["n"]
        A(f"s_lshl_b32 {s(sT0)}, s2, 3\ns_add_u32 {s(sT0)}, {s(sT0)}, {s(sW8)}\ns_lshl_b32 {s(sT0)}, {s(sT0)}, 7\n"
          f"s_add_u32 {s(sT0)}, {s(sT0)}, {TS}\nv_mov_b32 {v(vT1)}, 0")
        for i in range(n):
            A(f"v_mov_b32 {v(vT0)}, {s(sTS+i)}\nbuffer_store_dword {v(vT0)}, {v(vT1)}, {s(SW,4)}, {s(sT0)} offen offset:{4*i}")
        A.drain_vm()
    stamps["n"] = 0


def srd(r, ptr, size):
    A(f"s_mov_b32 {s(r)}, {s(ptr)}\ns_mov_b32 {s(r+1)}, {s(ptr+1)}\ns_mov_b32 {s(r+2)}, {size}\ns_mov_b32 {s(r+3)}, 0x20000")


def mfma(d, x, y, c=None):
    A(f"{MF} {d}, {x}, {y}, {d if c is None else c}")


def dma(m0_base, m0_off, voff, desc, soff, tag, imm=0, sc=""):
    if m0_base is None:
        A(f"s_mov_b32 m0, {m0_off - imm}")
    else:
        A(f"s_add_u32 m0, {s(m0_base)}, {m0_off - imm}")
    pre, so = soff
    if pre:
        A(pre)
    else:
        A("s_nop 0")
    A.vmem(f"buffer_load_dwordx4 {v(voff)}, {s(desc,4)}, {so} offen" + (f" offset:{imm}" if imm else "") + f"{sc} lds", tag)


def tr(dst, addr, off, second, tag):
    k, i = dst
    r = v if k == "v" else a
    A.ds(f"ds_read_b64_tr_b16 {r(i,2)}, {v(addr)} offset:{off}", tag)
    A.ds(f"ds_read_b64_tr_b16 {r(i+2,2)}, {v(addr)} offset:{off+second}", tag)


def arrive(cnt):
    A(f"s_mov_b64 exec, 1\nv_mov_b32 {v(vT0)}, {cnt}\nv_mov_b32 {v(vT1)}, 1")
    A.ds(f"ds_add_u32 {v(vT0)}, {v(vT1)}", "cnt")
    A("s_mov_b64 exec, -1")


def await_cnt(cnt, target=4):
    lp, ok = A.newlabel("ls"), A.newlabel("lk")
    A(f"v_mov_b32 {v(vT0)}, {cnt}\ns_mov_b32 {s(sSP)}, 0")
    A.label(lp)
    A(f"""ds_read_b32 {v(vT1)}, {v(vT0)}
          s_add_u32 {s(sSP)}, {s(sSP)}, 1
          s_waitcnt lgkmcnt(0)
          v_readfirstlane_b32 {s(sLN)}, {v(vT1)}
          s_cmp_ge_u32 {s(sLN)}, {target}
          s_cbranch_scc1 {ok}
          {"s_sleep " + OPT["lsleep"] if "lsleep" in OPT else ""}
          s_cmp_lt_u32 {s(sSP)}, {LSPIN}
          s_cbranch_scc1 {lp}""")
    A.label(ok)
    A.lg = []


def gate(go, setup, tmp, payload=None, release=True):
    lp, ok, rest = A.newlabel("gs"), A.newlabel("gk"), A.newlabel("gw")
    every = "allpoll" in OPT and not payload
    if not every:
        A(f"s_cmp_lg_u32 {s(sW)}, 0\ns_cbranch_scc1 {rest}")
    setup()
    A(f"s_mov_b32 {s(sSP)}, 0")
    A.label(lp)
    n = 4 if payload else 2
    A(f"""buffer_load_dwordx{n} {v(tmp,n)}, {v(vT2)}, {s(SW,4)}, 0 offen sc1
          s_add_u32 {s(sSP)}, {s(sSP)}, 1
          s_waitcnt vmcnt(0)
          v_cmp_eq_u64 vcc, {s(sN,2)}, {v(tmp,2)}
          s_or_b64 vcc, vcc, {s(sINV,2)}
          s_cmp_eq_u64 vcc, -1
          s_cbranch_scc1 {ok}
          {"" if release else "s_sleep 8"}
          s_cmp_lt_u32 {s(sSP)}, {GSPIN}
          s_cbranch_scc1 {lp}""")
    A.label(ok)
    if every:
        return
    if payload:
        payload()
    if not release:
        A.label(rest)
        return
    keep = list(A.lg)
    arrive(go)
    A.lg = keep
    A.label(rest)
    await_cnt(go, 1)


def peek_issue(setup, data=vT0, addr=vT2, n=2):
    setup()
    if addr != vT2:
        A(f"v_mov_b32 {v(addr)}, {v(vT2)}")
    A.vmem(f"buffer_load_dwordx{n} {v(data,n)}, {v(addr)}, {s(SW,4)}, 0 offen sc1", "peek")


def peek_check(data=vT0, addr=vT2, n=2):
    lp, ok = A.newlabel("ps"), A.newlabel("pk")
    A.wait_vm("peek")
    A(f"s_mov_b32 {s(sSP)}, {GSPIN}")
    A.label(lp)
    A(f"""v_cmp_eq_u64 vcc, {s(sN,2)}, {v(data,2)}
          s_or_b64 vcc, vcc, {s(sINV,2)}
          s_cmp_eq_u64 vcc, -1
          s_cbranch_scc1 {ok}
          s_sub_u32 {s(sSP)}, {s(sSP)}, 1
          s_cbranch_scc1 {ok}
          buffer_load_dwordx{n} {v(data,n)}, {v(addr)}, {s(SW,4)}, 0 offen sc1
          s_waitcnt vmcnt(0)
          s_branch {lp}""")
    A.label(ok)


def prelook(setup, dst):
    if "nolook" in OPT:
        return
    skip = A.newlabel("pl")
    A(f"s_cmp_lg_u32 {s(sW)}, 0\ns_cbranch_scc1 {skip}")
    setup()
    A(f"buffer_load_dword {a(dst)}, {v(vT2)}, {s(SW,4)}, 0 offen sc1")
    A.label(skip)


def lanes_to(addr_reg):
    A(f"s_mov_b64 vcc, {s(sINV,2)}\nv_mov_b32 {v(vT3)}, {OOB}\nv_cndmask_b32 {v(vT2)}, {v(addr_reg)}, {v(vT3)}, vcc")


def hstore(stores, tag=None, allow=True):
    if not allow:
        for t in stores:
            A.vmem(t + " sc1", tag)
        return
    near, done = A.newlabel("hn"), A.newlabel("hd")
    A(f"s_cmp_lg_u32 {s(sLOC)}, 0\ns_cbranch_scc1 {near}")
    for t in stores:
        A(t + " sc1")
    A(f"s_branch {done}")
    A.label(near)
    for t in stores:
        if tag is None:
            A(t)
        else:
            A.vmem(t, tag)
    A.label(done)


def note_die(data):
    A(f"""v_cmp_eq_u32 vcc, {s(sXC)}, {v(data)}
          s_and_b32 {s(sT0)}, vcc_lo, {s(sT2)}
          s_cmp_eq_u32 {s(sT0)}, {s(sT2)}
          s_cselect_b32 {s(sT0)}, {0 if "remote" in OPT else 1}, 0
          v_mov_b32 {v(vT0)}, {L_MODE}
          v_mov_b32 {v(vT1)}, {s(sT0)}
          ds_write_b32 {v(vT0)}, {v(vT1)}""")


def read_mode():
    A(f"""v_mov_b32 {v(vT0)}, {L_MODE}
          ds_read_b32 {v(vT1)}, {v(vT0)}
          s_waitcnt lgkmcnt(0)
          v_readfirstlane_b32 {s(sLOC)}, {v(vT1)}""")
    A.lg = []


def warm(dst, voff, soff, mask):
    if "nowarm" in OPT:
        return
    if isinstance(mask, str):
        A(f"s_bfm_b64 exec, {len(mask[2:]) * 4}, 0")
    else:
        A(f"s_mov_b64 exec, {mask}")
    A.vmem(f"buffer_load_dword {a(dst)}, {v(voff)}, {s(SW,4)}, {s(soff)} offen sc1", "warm")
    A("s_mov_b64 exec, -1")


def signal(cnt, soff_expr, tags=None, payload=None, near=False):
    skip = A.newlabel("sg")
    if tags is None:
        A.drain_vm()
    else:
        A.wait_vm(tags)
    A(f"""s_mov_b64 exec, 1
          v_mov_b32 {v(vT0)}, {cnt}
          v_mov_b32 {v(vT1)}, 1
          ds_add_rtn_u32 {v(vT1)}, {v(vT0)}, {v(vT1)}""")
    if payload:
        A(f"ds_read_b32 {v(vT2)}, {v(vT0)} offset:{payload - cnt}")
    A(soff_expr)
    A(f"""s_waitcnt lgkmcnt(0)
          v_readfirstlane_b32 {s(sT1)}, {v(vT1)}
          s_cmp_lg_u32 {s(sT1)}, 3
          s_cbranch_scc1 {skip}""")
    if payload:
        A(f"v_readfirstlane_b32 {s(sT1)}, {v(vT2)}")
    A(f"""s_mov_b64 exec, {255 if "noline" not in OPT else 1}
          v_mov_b32 {v(vT0)}, {s(sN)}
          v_mov_b32 {v(vT1)}, {s(sN+1)}
          v_mov_b32 {v(vT2)}, {s(sT1 if payload else sXC)}""")
    st = f"buffer_store_dwordx4 {v(vT0,4)}, {v(vL16)}, {s(SW,4)}, {s(sT0)} offen"
    if near:
        hstore([st])
    else:
        A(st + " sc1")
    A.label(skip)
    A("s_mov_b64 exec, -1\ns_nop 0")
    A.lg = []


def nonce_issue(tmp):
    A(f"v_mov_b32 {v(vT3)}, 0")
    A.vmem(f"buffer_load_dwordx2 {v(tmp,2)}, {v(vT3)}, {s(SD,4)}, 0 offen sc1", "nonce")


def nonce_take(tmp):
    lp, ok = A.newlabel("ns"), A.newlabel("nk")
    A.wait_vm("nonce")
    A(f"s_mov_b32 {s(sSP)}, 0\nv_mov_b32 {v(vT3)}, 0")
    A.label(lp)
    A(f"""v_readfirstlane_b32 {s(sN)}, {v(tmp)}
          v_readfirstlane_b32 {s(sN+1)}, {v(tmp+1)}
          s_add_u32 {s(sSP)}, {s(sSP)}, 1
          s_cmp_lg_u64 {s(sN,2)}, 0
          s_cbranch_scc1 {ok}
          s_cmp_ge_u32 {s(sSP)}, {GSPIN}
          s_cbranch_scc1 {ok}
          buffer_load_dwordx2 {v(tmp,2)}, {v(vT3)}, {s(SD,4)}, 0 offen sc1
          s_waitcnt vmcnt(0)
          s_branch {lp}""")
    A.label(ok)


def halves(x, t):
    A(f"v_mov_b32 {v(t)}, {v(x)}\ns_nop 1\nv_permlane32_swap_b32 {v(x)}, {v(t)}")


def wave_max(x, full):
    for sh in (1, 2, 4, 8):
        A(f"s_nop 1\nv_max_f32_dpp {v(x)}, {v(x)}, {v(x)} row_shr:{sh} row_mask:0xf bank_mask:0xf bound_ctrl:0")
    A(f"s_nop 1\nv_max_f32_dpp {v(x)}, {v(x)}, {v(x)} row_bcast:15 row_mask:0xa bank_mask:0xf")
    if full:
        A(f"s_nop 1\nv_max_f32_dpp {v(x)}, {v(x)}, {v(x)} row_bcast:31 row_mask:0xc bank_mask:0xf")
    A("s_nop 1")


def gelu_ops(y, t, dst, c1, c2, ri):
    o = []
    for e in (0, 1):
        o.append(f"v_mul_f32 {v(t+e)}, {v(y+e)}, {v(y+e)}")
    for e in (0, 1):
        o.append(f"v_fma_f32 {v(t+e)}, {v(t+e)}, {v(c2)}, {v(c1)}")
    for e in (0, 1):
        o.append(f"v_mul_f32 {v(t+e)}, {v(t+e)}, {v(y+e)}")
    for e in (0, 1):
        o.append(f"v_exp_f32 {v(t+e)}, {v(t+e)}")
    for e in (0, 1):
        o.append(f"v_fma_f32 {v(t+e)}, {v(t+e)}, {v(ri)}, {v(ri)}")
    for e in (0, 1):
        o.append(f"v_rcp_f32 {v(t+e)}, {v(t+e)}")
    for e in (0, 1):
        o.append(f"v_mul_f32 {v(t+e)}, {v(t+e)}, {v(y+e)}")
    o.append(f"v_cvt_pk_bf16_f32 {v(dst)}, {v(t)}, {v(t+1)}")
    return o


def ring_addr(slot):
    return (sPA, slot * 2048) if slot < 7 else (sPB, (slot - 7) * 2048)


def reduce_out(srcs, cnt, vbase, offs, fill=()):
    def wr(i):
        k, r = srcs[i // 4]
        reg = (v if k == "v" else a)(r + 4 * (i % 4), 4)
        b, o = offs[i]
        A.ds(f"ds_write_b128 {v(vbase[b])}, {reg} offset:{o}", "red")
        if i == 11:
            arrive(cnt)
    weave(A, [lambda i=i: wr(i) for i in range(12)], list(fill))


def reduce_in(acc, tmp, cnt, mkaddr, offs, between=None):
    tmp = tmp if isinstance(tmp, list) else [tmp, tmp + 16, tmp + 32]
    await_cnt(cnt)
    for sl in (1, 2, 3):
        regs = mkaddr(sl)
        for q in range(4):
            b, o = offs[(sl - 1) * 4 + q]
            A.ds(f"ds_read_b128 {v(tmp[sl-1] + 4*q, 4)}, {v(regs[b])} offset:{o}", ("rd", sl))
    if between:
        between()
    for sl in (1, 2, 3):
        A.wait_lg(("rd", sl))
        for i in range(16):
            A(f"v_add_f32 {v(acc+i)}, {v(acc+i)}, {v(tmp[sl-1] + i)}")


vC8, vC7, vXF, vWQ = 100, 101, 104, 109
SXR = [16, 20, 88, 92, 112, 116, 120]


def image(base, off, voff, desc, sreg_expr, rs, tag, halves_=(0, 1)):
    for h in halves_:
        dma(base, off + h * 1024, voff, desc, (sreg_expr(h * 8 * rs), s(sT0)), tag)


def gaps(mfmas, pieces):
    n, m, done = len(mfmas), len(pieces), 0
    for i, f in enumerate(mfmas):
        f()
        while done < -(-m * (i + 1) // n):
            pieces[done]()
            done += 1


def prologue():
    A(f"""s_cmp_ge_u32 s2, 256
          s_cbranch_scc1 L_end
          s_load_dwordx16 {s(40,16)}, s[0:1], 0
          s_load_dwordx8 {s(56,8)}, s[0:1], 64
          s_load_dwordx2 {s(64,2)}, s[0:1], 96
          s_memrealtime {s(sN,2)}
          s_memrealtime s[98:99]
          s_getpc_b64 {s(sT2,2)}
          v_lshrrev_b32 {v(vT0)}, 6, v0
          s_lshr_b32 {s(sT0)}, s2, 3
          v_readfirstlane_b32 {s(sW8)}, {v(vT0)}
          v_and_b32 {v(vLANE)}, 63, v0
          v_lshlrev_b32 {v(vT2)}, 7, {v(vLANE)}
          s_and_b32 {s(sT2)}, {s(sT2)}, 0xffffff00""")
    A(f"""s_mul_i32 {s(sT4)}, {s(sT0)}, 26
          s_lshr_b32 {s(sT4)}, {s(sT4)}, 8
          s_mul_i32 {s(sT4)}, {s(sT4)}, 10
          s_sub_u32 {s(sT4)}, {s(sT0)}, {s(sT4)}
          s_lshl_b32 {s(sT4)}, {s(sT4)}, 3
          s_add_u32 {s(sT4)}, {s(sT4)}, {s(sW8)}
          s_lshl_b32 {s(sT4)}, {s(sT4)}, 9
          v_add_u32 {v(vT1)}, {s(sT4)}, {v(vT2)}
          v_min_u32 {v(vT1)}, L_code_end-{NAME}_kernel-4, {v(vT1)}
          s_mov_b64 exec, 15""")
    if "nopf" not in OPT:
        A.vmem(f"global_load_dword {a(124)}, {v(vT1)}, {s(sT2,2)}", "pf")
    A("s_mov_b64 exec, -1")
    nk = int(OPT.get("nk", 8))
    if nk == 8:
        A(f"""s_and_b32 {s(sT1)}, {s(sT0)}, 3
              s_and_b32 {s(sTB)}, s2, 7
              s_lshl_b32 {s(sTB)}, {s(sTB)}, 2
              s_add_u32 {s(sTB)}, {s(sTB)}, {s(sT1)}
              s_lshr_b32 {s(sCB)}, {s(sT0)}, 2""")
    else:
        per = 32 // nk
        perm = [int(c) for c in OPT.get("perm", "40516273")]
        A(f"""s_and_b32 {s(sT1)}, s2, 7
              s_lshl_b32 {s(sT1)}, {s(sT1)}, 2
              s_lshr_b32 {s(sT1)}, {sum(p << (4 * i) for i, p in enumerate(perm))}, {s(sT1)}
              s_and_b32 {s(sT1)}, {s(sT1)}, 7
              s_min_u32 {s(sT2)}, {s(sT1)}, {nk - 1}
              s_add_u32 {s(sT2)}, {s(sT2)}, 1
              s_mul_i32 {s(sT2)}, {s(sT2)}, {per}
              s_lshl_b32 {s(sT3)}, {s(sT1)}, 5
              s_add_u32 {s(sT3)}, {s(sT3)}, {s(sT0)}
              s_sub_u32 {s(sT3)}, {s(sT3)}, {s(sT2)}
              s_mul_i32 {s(sTB)}, {s(sT3)}, 9363
              s_lshr_b32 {s(sTB)}, {s(sTB)}, 16
              s_mul_i32 {s(sCB)}, {s(sTB)}, 7
              s_sub_u32 {s(sCB)}, {s(sT3)}, {s(sCB)}
              s_add_u32 {s(sCB)}, {s(sCB)}, 1
              s_mul_i32 {s(sT2)}, {s(sT1)}, {per}
              s_add_u32 {s(sT2)}, {s(sT2)}, {s(sT0)}
              s_cmp_lt_u32 {s(sT1)}, {nk}
              s_cselect_b32 {s(sT1)}, {per}, 0
              s_cmp_lt_u32 {s(sT0)}, {s(sT1)}
              s_cselect_b32 {s(sTB)}, {s(sT2)}, {s(sTB)}
              s_cselect_b32 {s(sCB)}, 0, {s(sCB)}
              s_and_b32 {s(sT1)}, {s(sTB)}, 3""")
    A(f"""v_lshlrev_b32 {v(vL16)}, 4, {v(vLANE)}
          v_lshrrev_b32 {v(vC8)}, 3, {v(vLANE)}
          v_lshrrev_b32 {v(vT0)}, 2, {v(vLANE)}
          v_and_b32 {v(vT0)}, 4, {v(vT0)}
          v_xor_b32 {v(vT0)}, {v(vT0)}, {v(vLANE)}
          v_and_b32 {v(vT0)}, 7, {v(vT0)}
          v_lshlrev_b32 {v(vC7)}, 4, {v(vT0)}""")
    A(f"""s_lshl_b32 {s(sT1)}, {s(sT1)}, 1
          s_add_u32 {s(sT1)}, {s(sT1)}, {s(sW8)}
          s_and_b32 {s(sT1)}, {s(sT1)}, 7
          s_lshl_b32 {s(sT4)}, {s(sT1)}, 10
          s_lshl_b32 {s(sT5)}, {s(sT1)}, 3
          v_add_u32 {v(vT1)}, {s(sT5)}, {v(vC8)}
          s_lshl_b32 {s(sT2)}, {s(sCB)}, 7
          s_sub_u32 {s(sT2)}, {s(sT2)}, 128
          v_mul_u32_u24 {v(vT3)}, 896, {v(vT1)}
          v_add3_u32 {v(103)}, {v(vT3)}, {v(vC7)}, {s(sT2)}
          s_and_b32 {s(sW)}, {s(sW8)}, 3
          s_mul_i32 {s(sT1)}, {s(sW)}, 7168
          v_add_u32 {v(vT3)}, {s(sT1)}, {v(vL16)}
          s_mul_i32 {s(sT1)}, {s(sW8)}, 7168
          s_cmp_eq_u32 {s(sCB)}, 0
          s_cselect_b64 vcc, -1, 0
          s_cselect_b32 {s(sT1)}, {s(sT1)}, {s(sT4)}
          s_mov_b32 {s(sT2)}, 1024
          s_cselect_b32 {s(sT3)}, {s(sT2)}, {64 * 896}
          s_cselect_b32 {s(sT5)}, {s(sT2)}, 8192
          v_cndmask_b32 {v(103)}, {v(103)}, {v(vT3)}, vcc
          s_add_u32 m0, {s(sT1)}, {LA}""")
    A(f"""s_lshl_b32 {s(sB1)}, {s(sTB)}, 3
          s_add_u32 {s(sB1)}, {s(sB1)}, {s(sCB)}
          s_lshl_b32 {s(sB1)}, {s(sB1)}, 3
          s_add_u32 {s(sB1)}, {s(sB1)}, {s(sW8)}
          s_mul_i32 {s(sB1)}, {s(sB1)}, 896
          s_mul_i32 {s(sB4)}, {s(sTB)}, 7
          s_add_u32 {s(sB4)}, {s(sB4)}, {s(sW8)}
          s_mul_i32 {s(sB4)}, {s(sB4)}, {2 * 896}
          s_mul_i32 {s(sT0)}, {s(sCB)}, 112
          s_add_u32 {s(sB4)}, {s(sB4)}, {s(sT0)}
          s_cmp_eq_u32 {s(sW8)}, 7
          s_cselect_b32 {s(sB4)}, {OOB}, {s(sB4)}
          v_lshrrev_b32 {v(102)}, 1, {v(vLANE)}
          v_mul_u32_u24 {v(102)}, 896, {v(102)}
          v_and_b32 {v(vT3)}, 1, {v(vLANE)}
          v_mul_u32_u24 {v(vT3)}, 120, {v(vT3)}
          v_add_u32 {v(102)}, {v(102)}, {v(vT3)}
          s_mov_b32 {s(SX+2)}, 1835008
          s_mov_b32 {s(SX+3)}, 0x20000
          s_mov_b32 {s(SQ+2)}, 401408
          s_mov_b32 {s(SQ+3)}, 0x20000
          s_mov_b32 {s(SA+3)}, 0x20000
          s_mov_b32 {s(SA+2)}, 25088
          s_cmp_eq_u32 {s(sCB)}, 0
          s_cselect_b32 {s(SA+2)}, {s(SA+2)}, 401408
          s_mov_b32 {s(sT0)}, 0
          s_cmp_lt_u32 {s(sW8)}, 4
          s_waitcnt lgkmcnt(0)
          s_cselect_b64 {s(SA,2)}, {s(P_WK,2)}, {s(P_WV,2)}
          s_cmp_eq_u32 {s(sCB)}, 0
          s_cselect_b64 {s(SA,2)}, {s(SA,2)}, {s(P_W1,2)}
          s_mov_b64 {s(SX,2)}, {s(P_X,2)}
          s_mov_b64 {s(SQ,2)}, {s(P_WQ,2)}""")
    early_stamp(1)
    if "nopre" not in OPT:
        A("s_mov_b64 exec, 0x7f")
        A.vmem(f"buffer_load_dword {a(126)}, {v(vT2)}, {s(SX,4)}, {s(sB1)} offen", "pre")
        A("s_mov_b64 exec, 15")
        A.vmem(f"buffer_load_dword {a(125)}, {v(102)}, {s(SQ,4)}, {s(sB4)} offen", "pre")
        A("s_mov_b64 exec, -1")
    for n in range(7):
        if n:
            A(f"s_add_u32 m0, m0, {s(sT5)}\ns_add_u32 {s(sT0)}, {s(sT0)}, {s(sT3)}")
        A.vmem(f"buffer_load_dwordx4 {v(103)}, {s(SA,4)}, {s(sT0)} offen lds", "WA")
    early_stamp(2)
    A(f"""s_lshl_b32 {s(sT0)}, {s(sTB)}, 6
          v_add_u32 {v(vT1)}, {s(sT0)}, {v(vT1)}
          v_mul_u32_u24 {v(vT2)}, 896, {v(vT1)}
          v_lshrrev_b32 {v(vT1)}, 1, {v(vT1)}
          v_xor_b32 {v(vT1)}, {v(vT1)}, {v(vLANE)}
          v_and_b32 {v(vT1)}, 7, {v(vT1)}
          v_lshl_add_u32 {v(vWQ)}, {v(vT1)}, 4, {v(vT2)}
          s_and_b32 {s(sTT)}, {s(sW8)}, 1
          s_lshr_b32 {s(sP)}, {s(sW)}, 1""")
    if PROFILE:
        A(f"s_mov_b32 {s(sTS)}, s98")
        stamps["n"] = 1
    srd(SW, P_WS, WS_SIZE)
    srd(SD, P_DBG, 256)
    A(f"""s_cmp_lg_u32 {s(sW8)}, 0
          s_cbranch_scc1 L_nz
          v_lshlrev_b32 {v(vT0)}, 2, {v(vLANE)}
          v_add_u32 {v(vT0)}, {LS}, {v(vT0)}
          v_mov_b32 {v(vT1)}, 0
          ds_write_b32 {v(vT0)}, {v(vT1)}
          s_waitcnt lgkmcnt(0)
          s_cmp_lg_u32 s2, 0
          s_cbranch_scc1 L_nz
          s_or_b32 {s(sN)}, {s(sN)}, 1
          v_mov_b32 {v(vT2)}, {s(sN)}
          v_mov_b32 {v(vT3)}, {s(sN+1)}
          s_mov_b64 exec, 1
          buffer_store_dwordx2 {v(vT2,2)}, {v(vT1)}, {s(SD,4)}, 0 offen sc1
          s_mov_b64 exec, -1""")
    A.label("L_nz")
    A(f"""s_lshl_b32 {s(sGT)}, {s(sTB)}, 1
          s_add_u32 {s(sGT)}, {s(sGT)}, {s(sTT)}
          s_mov_b32 {s(sHI)}, 0
          s_mov_b32 {s(sHI+1)}, -1
          s_getreg_b32 {s(sXC)}, hwreg(HW_REG_XCC_ID, 0, 4)
          s_mov_b32 {s(sLOC)}, 0""")
    A(f"""v_bfe_u32 {v(vT0)}, {v(vLANE)}, 2, 2
          v_lshlrev_b32 {v(vT0)}, 7, {v(vT0)}
          v_lshrrev_b32 {v(vT1)}, 5, {v(vLANE)}
          v_lshl_add_u32 {v(vTRN)}, {v(vT1)}, 10, {v(vT0)}
          v_lshl_add_u32 {v(vTRD)}, {v(vT1)}, 9, {v(vT0)}
          v_bfe_u32 {v(vT0)}, {v(vLANE)}, 4, 1
          v_and_b32 {v(vT2)}, 3, {v(vLANE)}
          v_lshlrev_b32 {v(vT2)}, 3, {v(vT2)}
          v_lshl_add_u32 {v(103)}, {v(vT0)}, 5, {v(vT2)}
          v_bfe_u32 {v(vT0)}, {v(vLANE)}, 3, 1
          v_lshlrev_b32 {v(102)}, 6, {v(vT0)}""")
    A(f"""v_and_b32 {v(vT3)}, 31, {v(vLANE)}
          s_lshl_b32 {s(sT0)}, {s(sTT)}, 5
          v_add_u32 {v(vT0)}, {s(sT0)}, {v(vT3)}
          v_bfe_u32 {v(vT2)}, {v(vT0)}, 1, 3
          v_lshlrev_b32 {v(vT0)}, 7, {v(vT0)}
          v_xor_b32 {v(vT2)}, {v(vT2)}, {v(vT1)}
          v_lshl_add_u32 {v(vXF)}, {v(vT2)}, 4, {v(vT0)}
          v_xor_b32 {v(vXF+1)}, 32, {v(vXF)}
          v_xor_b32 {v(vXF+2)}, 64, {v(vXF)}
          v_xor_b32 {v(vXF+3)}, 96, {v(vXF)}
          s_lshr_b32 {s(sT1)}, {s(sW8)}, 1
          s_lshl_b32 {s(sT0)}, {s(sT1)}, 5
          v_xor_b32 {v(108)}, {s(sT0)}, {v(vXF)}
          s_lshl_b32 {s(sT0)}, {s(sTT)}, 10
          s_add_u32 {s(sT0)}, {s(sT0)}, {L_STAT}
          v_lshl_add_u32 {v(110)}, {v(vT3)}, 3, {s(sT0)}
          s_lshl_b32 {s(sT0)}, {s(sT1)}, 8
          v_add_u32 {v(111)}, {s(sT0)}, {v(110)}
          v_mov_b32 {v(30)}, 0
          v_mov_b32 {v(31)}, 0
          s_mov_b32 {s(sT5)}, {ONES}""")
    for i in range(4):
        A(f"v_mov_b32 {v(96+i)}, {ONES}")
    A(f"""s_lshl_b32 {s(sT0)}, s2, 3
          s_add_u32 {s(sT0)}, {s(sT0)}, {s(sW8)}
          s_cmp_ge_u32 {s(sT0)}, {392 if OPT.get("tw", "23") == "23" else 4096}
          s_cselect_b64 {s(SA,2)}, {s(P_W3,2)}, {s(P_W2,2)}
          s_mov_b32 {s(SA+2)}, 401408
          s_cselect_b32 {s(SA+2)}, 1605632, {s(SA+2)}
          s_cselect_b32 {s(sT1)}, 392, 0
          s_sub_u32 {s(sT0)}, {s(sT0)}, {s(sT1)}
          s_lshl_b32 {s(sRG)}, {s(sT0)}, {10 if OPT.get("tw", "23") == "23" else 8}""")
    A(f"""s_lshl_b32 {s(sT0)}, {s(sP)}, 6
          v_xor_b32 {v(vT0)}, {v(103)}, {v(102)}
          v_xor_b32 {v(vT0)}, {s(sT0)}, {v(vT0)}
          v_add_u32 {v(vT0)}, {v(vT0)}, {v(vTRN)}
          v_lshrrev_b32 {v(vT1)}, 7, {v(vTRN)}
          v_mul_u32_u24 {v(vT1)}, 56, {v(vT1)}
          s_mul_i32 {s(sT0)}, {s(sP)}, 28672
          v_add3_u32 {v(vT1)}, {v(vT1)}, {v(103)}, {s(sT0)}
          s_cmp_eq_u32 {s(sCB)}, 0
          s_cselect_b64 vcc, -1, 0
          v_cndmask_b32 {v(vT0)}, {v(vT0)}, {v(vT1)}, vcc
          v_add_u32 {v(29)}, {LA}, {v(vT0)}""")
    early_stamp(3)
    barrier()
    for kb in range(7):
        dma(sT4, LX + kb * 8192, vWQ, SX, (None, "0"), "X", imm=kb * 128)
    touch("x")
    early_stamp(4)
    A.wait_vm("WA")
    barrier()
    early_stamp(5)
    A(f"s_cmp_ge_u32 {s(sW8)}, 4\ns_cbranch_scc1 L_att")
    return list(A.vm)


def touch(where):
    if OPT.get("tat", "p1") != where:
        return
    A(f"v_lshlrev_b32 {v(vT0)}, 7, {v(vLANE)}\ns_mov_b64 exec, {255 if OPT.get('tw', '23') == '23' else 3}")
    A.vmem(f"buffer_load_dword {a(127)}, {v(vT0)}, {s(SA,4)}, {s(sRG)} offen", "t")
    A("s_mov_b64 exec, -1")


def stat_part(between):
    for j in range(7):
        A.ds(f"ds_read_b128 {v(SXR[j],4)}, {v(108)} offset:{j*8192}", ("sx", j))
    between()
    for j in range(7):
        A.wait_lg(("sx", j))
        for i in range(4):
            r = SXR[j] + i
            A(f"v_dot2c_f32_bf16 {v(30)}, {s(sT5)}, {v(r)}\nv_dot2c_f32_bf16 {v(31)}, {v(r)}, {v(r)}")
    A("s_nop 2")
    halves(30, vT2)
    halves(31, vT3)
    A(f"v_add_f32 {v(30)}, {v(30)}, {v(vT2)}\nv_add_f32 {v(31)}, {v(31)}, {v(vT3)}")
    A.ds(f"ds_write_b64 {v(111)}, {v(30,2)}", "statw")
    A.drain_lg()


def barrier():
    A("s_barrier")


def stat_read():
    for q in range(4):
        A.ds(f"ds_read_b64 {v(112+2*q,2)}, {v(110)} offset:{q*256}", "stat")


def stat_fin(vM, vVar):
    A.wait_lg("stat")
    for op in stat_fin_ops(vM, vVar):
        A(op)


def stat_fin_ops(vM, vVar):
    return (f"""v_add_f32 {v(112)}, {v(112)}, {v(114)}
          v_add_f32 {v(113)}, {v(113)}, {v(115)}
          v_add_f32 {v(116)}, {v(116)}, {v(118)}
          v_add_f32 {v(117)}, {v(117)}, {v(119)}
          v_add_f32 {v(112)}, {v(112)}, {v(116)}
          v_add_f32 {v(113)}, {v(113)}, {v(117)}
          v_mul_f32 {v(vM)}, {f32(1/448)}, {v(112)}
          v_mul_f32 {v(112)}, {v(vM)}, {v(vM)}
          v_mul_f32 {v(113)}, {f32(1/448)}, {v(113)}
          v_sub_f32 {v(113)}, {v(113)}, {v(112)}
          v_max_f32 {v(vVar)}, 0, {v(113)}""").split("\n")


def own_slot(base):
    return (f"s_lshl_b32 {s(sT0)}, {s(sTB)}, 3\ns_add_u32 {s(sT0)}, {s(sT0)}, {s(sCB)}\n"
            f"s_lshl_b32 {s(sT0)}, {s(sT0)}, 7\ns_add_u32 {s(sT0)}, {s(sT0)}, {base}")


late = []


def mlp(vm_entry):
    A.vm = list(vm_entry)
    vXD, vX1P, vW, vW3, vM, vR, vWA = 8, 16, 24, 26, 27, 28, 29
    vRA, vRB = [2, 3], [25, 31]
    acc, cs, ring, ones = 32, 48, 64, 96
    xnear, hnear = "x" in OPT.get("near", "xo"), "h" in OPT.get("near", "xo")
    A("s_setprio " + OPT.get("prio", "2"))
    def setup_h():
        A(f"""v_lshrrev_b32 {v(vT0)}, 3, {v(vLANE)}
              s_sub_u32 {s(sT0)}, {s(sTB)}, 1
              v_add_u32 {v(vT0)}, {s(sT0)}, {v(vT0)}
              v_cmp_le_u32 vcc, 32, {v(vT0)}
              s_lshl_b32 {s(sT0)}, {s(sT0)}, 10
              s_add_u32 {s(sT0)}, {s(sT0)}, {FH}
              v_lshlrev_b32 {v(vT1)}, 7, {v(vLANE)}
              v_add_u32 {v(vT1)}, {s(sT0)}, {v(vT1)}
              s_mov_b32 {s(sINV)}, 0xff010101
              s_mov_b32 {s(sINV+1)}, -1
              s_or_b64 {s(sINV,2)}, {s(sINV,2)}, vcc""")
        lanes_to(vT1)

    def setup_x():
        A(f"""s_lshl_b32 {s(sT0)}, {s(sTB)}, 10
              s_add_u32 {s(sT0)}, {s(sT0)}, {FX}
              s_lshl_b32 {s(sT1)}, {s(sCB)}, 9
              s_add_u32 {s(sT1)}, {s(sT1)}, {FC - 512 - 1024}
              v_lshlrev_b32 {v(vT0)}, 7, {v(vLANE)}
              v_add_u32 {v(vT1)}, {s(sT0)}, {v(vT0)}
              v_add_u32 {v(vT0)}, {s(sT1)}, {v(vT0)}
              s_mov_b64 vcc, 0xff
              v_cndmask_b32 {v(vT1)}, {v(vT0)}, {v(vT1)}, vcc
              s_mov_b32 {s(sINV)}, 0xfffff001
              s_mov_b32 {s(sINV+1)}, -1""")
        lanes_to(vT1)

    vXA = 124
    setup = []
    for r, p, n in ((S2, P_W2, 401408), (SQ, P_W3, 1605632), (S4, P_W4, 1605632), (SO, P_WO, 401408), (SOUT, P_OUT, 1835008)):
        setup += [f"s_mov_b64 {s(r,2)}, {s(p,2)}", f"s_mov_b32 {s(r+2)}, {n}", f"s_mov_b32 {s(r+3)}, 0x20000"]
    setup += f"""s_max_u32 {s(sT1)}, {s(sCB)}, 1
          s_sub_u32 {s(sT1)}, {s(sT1)}, 1
          s_lshl_b32 {s(sT4)}, {s(sT1)}, 1
          s_add_u32 {s(sT4)}, {s(sT4)}, {s(sP)}
          s_mul_i32 {s(sPA)}, {s(sW)}, 14336
          s_mul_i32 {s(sPB)}, {s(sW)}, 11264
          s_add_u32 {s(sPB)}, {s(sPB)}, {LQ}
          s_mul_i32 {s(sB1)}, {s(sW)}, {112*896}
          s_mul_i32 {s(sB4)}, {s(sW)}, {448*896}
          s_and_b32 {s(sR)}, {s(sTB)}, 3
          s_lshl_b32 {s(sR)}, {s(sR)}, 1
          s_add_u32 {s(sR)}, {s(sR)}, {s(sCB)}
          s_cmp_ge_u32 {s(sR)}, 7
          s_cselect_b32 {s(sT0)}, 7, 0
          s_sub_u32 {s(sR)}, {s(sR)}, {s(sT0)}
          v_mul_u32_u24 {v(vT0)}, 896, {v(vC8)}
          s_lshl_b32 {s(sT0)}, {s(sT1)}, 7
          v_add3_u32 {v(vW)}, {v(vT0)}, {v(vC7)}, {s(sT0)}
          v_mul_u32_u24 {v(vT0)}, 3584, {v(vC8)}
          s_lshl_b32 {s(sT0)}, {s(sT1)}, 9
          s_lshl_b32 {s(sT2)}, {s(sW)}, 7
          s_add_u32 {s(sT0)}, {s(sT0)}, {s(sT2)}
          v_add3_u32 {v(vW3)}, {v(vT0)}, {v(vC7)}, {s(sT0)}
          s_lshl_b32 {s(sT0)}, {s(sP)}, 6
          v_xor_b32 {v(103)}, {v(103)}, {v(102)}
          v_xor_b32 {v(102)}, {s(sT0)}, {v(103)}
          s_lshl_b32 {s(sT3)}, {s(sT1)}, 13
          v_lshrrev_b32 {v(vT1)}, 5, {v(vLANE)}
          v_lshlrev_b32 {v(vT2)}, 4, {v(vT1)}
          v_xor_b32 {v(vXA)}, {v(vXF)}, {v(vT2)}
          v_xor_b32 {v(vXA)}, {s(sT0)}, {v(vXA)}
          v_lshl_add_u32 {v(vXA)}, {v(vT1)}, 3, {v(vXA)}
          v_add_u32 {v(vXA)}, {s(sT3)}, {v(vXA)}
          v_xor_b32 {v(vXA+1)}, 16, {v(vXA)}
          v_xor_b32 {v(vXA+2)}, 32, {v(vXA)}
          v_xor_b32 {v(vXA+3)}, 48, {v(vXA)}""".split("\n")

    def colsums(kstride, second):
        def step(ks):
            if ks < 28:
                tr(("a", 4 * ks), vWA, ks * kstride, second, ("w", ks))
            if ks >= 4:
                A.wait_lg(("w", ks - 4))
                mfma(v(cs, 16), a(4 * (ks - 4), 4), v(ones, 4), 0 if ks == 4 else None)
        weave(A, [lambda ks=ks: step(ks) for ks in range(32)], [lambda t=t: A(t) for t in setup])

    A(f"s_cmp_eq_u32 {s(sCB)}, 0\ns_cbranch_scc1 L_cskv")
    colsums(2048, 512)
    A.label("L_csdone")
    late.append(lambda: (A.label("L_cskv"), colsums(896, 224), A("s_branch L_csdone")))
    early_stamp(6)
    A.wait_vm("X")
    barrier()
    early_dump()
    stamp()
    NX = 6

    def xr(ks):
        A.ds(f"ds_read_b128 {v(ring + 4 * (ks % NX), 4)}, {v(vXF + (ks & 3))} offset:{(ks >> 2) * 8192}", ("x", ks))

    def first():
        for ks in range(NX - 1):
            xr(ks)
        for g in range(4):
            A.ds(f"ds_read_b64 {v(vXD+2*g,2)}, {v(vXA+g)}", "xd")
    stat_part(first)
    barrier()
    vC1g, vC2g, vRI, vR2 = 120, 121, 122, 123
    ne2 = int(OPT.get("ne2", 0))

    def w2dma(j, hs=(0, 1)):
        base, off = (sT3, LA + 24576 + j * 2048) if j < ne2 else (sPA, j * 2048)
        image(base, off, vW, S2, lambda e: f"s_add_u32 {s(sT0)}, {s(sB1)}, {j * 16 * 896 + e}", 896, "W2", hs)
    A(f"s_lshl_b32 {s(sT3)}, {s(sW)}, 13")
    fin = stat_fin_ops(vM, vR) + f"""v_add_f32 {v(vT0)}, {f32(EPS)}, {v(vR)}
          v_rsq_f32 {v(vT1)}, {v(vT0)}
          v_mov_b32 {v(vT3)}, {f32(EPS)}
          v_mul_f32 {v(vT2)}, {v(vT1)}, {v(vT1)}
          v_fma_f32 {v(vT2)}, {v(vT2)}, {v(vR)}, {v(vT3)}
          v_rsq_f32 {v(vT2)}, {v(vT2)}
          v_mov_b32 {v(vR)}, {v(vT1)}
          v_mul_f32 {v(vR2)}, {v(vT1)}, {v(vT2)}
          v_rcp_f32 {v(vRI)}, {v(vR2)}
          v_mul_f32 {v(vC1g)}, {f32(GC1)}, {v(vR2)}
          v_mul_f32 {v(vC2g)}, {v(vR2)}, {v(vR2)}
          v_mul_f32 {v(vC2g)}, {v(vC2g)}, {v(vR2)}
          v_mul_f32 {v(vC2g)}, {f32(GC2)}, {v(vC2g)}""".split("\n")
    fin += [f"v_mul_f32 {v(cs+i)}, {v(cs+i)}, {v(vM)}" for i in range(16)]
    for ks in range(28):
        if ks + NX - 1 < 28:
            xr(ks + NX - 1)
        if ks == 0:
            stat_read()
            nonce_issue(30)
        A.wait_lg(("x", ks))
        mfma(v(acc, 16), a(4 * ks, 4), v(ring + 4 * (ks % NX), 4), 0 if ks == 0 else None)
        if ks == 1:
            touch("p1")
        if ks == 2:
            prelook(setup_h, 120)
        if ks == 3:
            prelook(setup_x, 121)
        if 3 <= ks < 3 + 2 * ne2:
            skip = A.newlabel("w2")
            A(f"s_cmp_eq_u32 {s(sCB)}, 0\ns_cbranch_scc1 {skip}")
            w2dma((ks - 3) >> 1, ((ks - 3) & 1,))
            A.label(skip)
        if ks == 5:
            A.wait_lg("stat")
        if ks >= 5:
            for _ in range(3):
                if fin:
                    A(fin.pop(0))
    assert not fin
    arrive(C_PA)
    vm_kv = [t for t in A.vm if t != "W2"]
    A(f"s_cmp_eq_u32 {s(sCB)}, 0\ns_cbranch_scc1 L_kv\ns_nop 4")
    for i in range(16):
        A(f"v_sub_f32 {v(acc+i)}, {v(acc+i)}, {v(cs+i)}")
    stamp()
    pk = 64
    vHS = 74
    for i in range(8):
        for op in gelu_ops(acc + 2 * i, 72, pk + i, vC1g, vC2g, vRI):
            A(op)
        if i == 2:
            A(f"""v_and_b32 {v(vT0)}, 31, {v(vLANE)}
                  s_lshl_b32 {s(sT0)}, {s(sGT)}, 5
                  v_add_u32 {v(vT0)}, {s(sT0)}, {v(vT0)}
                  v_lshrrev_b32 {v(vT1)}, 5, {v(vLANE)}
                  v_lshlrev_b32 {v(vT1)}, 15, {v(vT1)}
                  v_lshl_add_u32 {v(vHS)}, {v(vT0)}, 4, {v(vT1)}
                  s_lshl_b32 {s(sT0)}, {s(sT4)}, 17
                  s_add_u32 {s(sT0)}, {s(sT0)}, {HB}
                  s_add_u32 {s(sT1)}, {s(sT0)}, 0x10000""")
        if i in (3, 7):
            A.vmem(f"buffer_store_dwordx4 {v(pk+(i&4),4)}, {v(vHS)}, {s(SW,4)}, {s(sT0 if i == 3 else sT1)} offen sc1", "hst")
    await_cnt(C_PA, 8)
    for j in range(ne2, 7):
        w2dma(j)
    nonce_take(30)
    signal(N_H, own_slot(FH), "hst")
    stamp()
    A(f"""s_add_u32 {s(sT0)}, {s(sT3)}, {LA + 24576}
          v_add3_u32 {v(32)}, {v(vTRD)}, {v(102)}, {s(sT0)}
          v_xor_b32 {v(33)}, 64, {v(32)}
          v_add_u32 {v(vT0)}, {s(sPA)}, {v(vTRD)}
          v_add_u32 {v(vT1)}, {s(sPB)}, {v(vTRD)}
          v_add_u32 {v(vRA[0])}, {v(vT0)}, {v(102)}
          v_xor_b32 {v(vRA[1])}, 64, {v(vRA[0])}
          v_add_u32 {v(vRB[0])}, {v(vT1)}, {v(102)}
          v_xor_b32 {v(vRB[1])}, 64, {v(vRB[0])}""")
    A.wait_vm("W2")
    for j in range(7):
        for b in range(2):
            tr(("a", 8 * j + 4 * b), 32 + b if j < ne2 else vRA[b], j * 2048, 1024, "w2")
    vH = 29
    A(f"""s_add_u32 {s(sT0)}, {s(sP)}, 1
          s_sub_u32 {s(sT1)}, 0, {s(sT0)}
          s_cmp_eq_u32 {s(sTT)}, 0
          s_cselect_b32 {s(sT0)}, {s(sT1)}, {s(sT0)}
          s_lshl_b32 {s(sT1)}, {s(sGT)}, 5
          s_add_u32 {s(sT1)}, {s(sT1)}, {s(sT0)}
          s_xor_b32 {s(sT2)}, {s(sGT)}, 1
          s_lshl_b32 {s(sT2)}, {s(sT2)}, 5
          s_add_u32 {s(sT2)}, {s(sT2)}, {s(sT0)}
          v_and_b32 {v(vT0)}, 31, {v(vLANE)}
          v_lshrrev_b32 {v(vT1)}, 5, {v(vLANE)}
          v_lshlrev_b32 {v(vT1)}, 15, {v(vT1)}
          v_mov_b32 {v(vT3)}, {OOB}""")
    for sl, sr in ((0, sT1), (1, sT2)):
        A(f"""v_add_u32 {v(vT2)}, {s(sr)}, {v(vT0)}
              v_cmp_gt_u32 vcc, 2048, {v(vT2)}
              v_lshl_add_u32 {v(vT2)}, {v(vT2)}, 4, {v(vT1)}
              s_nop 0
              v_cndmask_b32 {v(vH+sl)}, {v(vT3)}, {v(vT2)}, vcc""")

    def rot7(reg, u, scale, base):
        if u == 0:
            A(f"s_mul_i32 {s(reg)}, {s(sR)}, {scale}")
        else:
            A(f"""s_add_u32 {s(reg)}, {s(reg)}, {scale}
                  s_cmp_ge_u32 {s(reg)}, {7 * scale}
                  s_cselect_b32 {s(sT0)}, {7 * scale}, 0
                  s_sub_u32 {s(reg)}, {s(reg)}, {s(sT0)}""")

    def sdma(n, hs=(0, 1)):
        base, off = ring_addr(n % NRING)
        if n < 28:
            if n % 4 == 0 and 0 in hs:
                rot7(sRG, n // 4, 64 * 3584, None)
            image(base, off, vW3, SQ, lambda e: f"s_add_u32 {s(sT0)}, {s(sRG)}, {(n % 4) * 16 * 3584 + e}", 3584, ("S", n), hs)
        elif n < 56:
            p = n - 28
            if p % 2 == 0 and 0 in hs:
                rot7(sRG, (p % 14) // 2, 64 * 896, None)
                A(f"s_add_u32 {s(sT3)}, {s(sRG)}, {s(sB4)}")
            image(base, off, vW, S4, lambda e: f"s_add_u32 {s(sT0)}, {s(sT3)}, {(2 * (p // 14) + p % 2) * 16 * 896 + e}", 896, ("S", n), hs)
        else:
            k = n - 56
            image(base, off, vW, SO, lambda e: f"s_add_u32 {s(sT0)}, {s(sB1)}, {((k >> 1) * 28 + (k & 1) * 16) * 896 + e}", 896, ("S", n), hs)

    def sreg(n, b):
        return 8 * (n % 16) + 4 * b

    def sread(n, bs=(0, 1)):
        base, off = ring_addr(n % NRING)
        if n == 28 and 0 in bs:
            flip()
        A.wait_vm(("S", n))
        for b in bs:
            tr(("a", sreg(n, b)), (vRA if base == sPA else vRB)[b], off, 1024, ("s", n))

    def refill(n, hs=(0, 1)):
        if n < 64:
            A.wait_lg(("s", n - NRING))
            sdma(n, hs)

    def sread_p(n):
        return [lambda: sread(n, (0,)), lambda: sread(n, (1,))]

    def refill_p(n):
        return [lambda: refill(n, (0,)), lambda: refill(n, (1,))] if n < 64 else []

    def flip():
        A(f"s_lshl_b32 {s(sT0)}, {s(sP)}, 6")
        for r in vRA + vRB:
            A(f"v_xor_b32 {v(r)}, {s(sT0)}, {v(r)}")

    flip()
    early = int(OPT.get("early", 3))
    mid = int(OPT.get("mid", 6))
    A.drain_lg()
    arrive(C_W2)
    for n in range(early):
        sdma(n)
    cut("h")

    acc0, vRW = 104, 120
    A(f"v_mul_f32 {v(vM)}, {v(vM)}, {v(vR)}")
    for i in range(8):
        A(f"""v_lshlrev_b32 {v(88)}, 16, {v(vXD+i)}
              v_and_b32 {v(89)}, 0xffff0000, {v(vXD+i)}
              v_fma_f32 {v(acc0+2*i)}, {v(88)}, {v(vR)}, -{v(vM)}
              v_fma_f32 {v(acc0+2*i+1)}, {v(89)}, {v(vR)}, -{v(vM)}""")
    for sl in range(4):
        A(f"""s_xor_b32 {s(sT0)}, {s(sW)}, {sl}
              s_mul_i32 {s(sT0)}, {s(sT0)}, 14336
              s_add_u32 {s(sT0)}, {s(sT0)}, {LA}
              v_add_u32 {v(vRW+sl)}, {s(sT0)}, {v(vL16)}""")
    await_cnt(C_W2)
    gate(G_H, setup_h, 32, payload=lambda: (A(f"s_mov_b32 {s(sT2)}, 0xfe00"), note_die(34)))
    read_mode()
    if "hold" in OPT:
        await_cnt(G_K, 1)
    stamp()
    hf = 32
    A(f"s_mul_i32 {s(sT5)}, {s(sW)}, {7 << 16}\ns_add_u32 {s(sT5)}, {s(sT5)}, {HB}")
    for j in range(7):
        if j:
            A(f"s_add_u32 {s(sT5)}, {s(sT5)}, 0x10000")
        for sl in range(2):
            A.vmem(f"buffer_load_dwordx4 {v(hf + 8*j + 4*sl, 4)}, {v(vH+sl)}, {s(SW,4)}, {s(sT5)} offen sc1", ("h", j))
    await_cnt(C_QD)
    accs = [v(acc0, 16), a(64, 16), a(80, 16), a(96, 16)]
    for j in range(7):
        A.wait_vm(("h", j))
        for sl in (1, 2, 3, 0):
            mfma(accs[sl], a(8 * j + 4 * (sl >> 1), 4), v(hf + 8 * j + 4 * (sl & 1), 4), 0 if j == 0 and sl else None)
    sdma(early)
    A("s_nop 3")
    offs1 = [(0, i * 1024) for i in range(12)]
    reduce_out([("a", 64), ("a", 80), ("a", 96)], C_R1, [vRW], offs1, [lambda n=n: sdma(n) for n in range(early + 1, early + mid)])

    reduce_in(acc0, 32, C_R1, lambda sl: [vRW + sl], offs1)
    for i in range(8):
        A(f"v_cvt_pk_bf16_f32 {v(vX1P+i)}, {v(acc0+2*i)}, {v(acc0+2*i+1)}")
    A(f"""s_mul_i32 {s(sT0)}, {s(sGT)}, 14
          s_add_u32 {s(sT0)}, {s(sT0)}, {s(sT4)}
          s_lshl_b32 {s(sT1)}, {s(sT0)}, 11
          s_add_u32 {s(sT1)}, {s(sT1)}, {X1}
          s_lshl_b32 {s(sT0)}, {s(sT0)}, 8
          s_add_u32 {s(sT2)}, {s(sT0)}, {ST}""")
    hstore([f"buffer_store_dwordx4 {v(vX1P,4)}, {v(vL16)}, {s(SW,4)}, {s(sT1)} offen",
            f"buffer_store_dwordx4 {v(vX1P+4,4)}, {v(vL16)}, {s(SW,4)}, {s(sT1)} offen offset:1024"], "xst", xnear)
    A(f"""v_add_f32 {v(32)}, {v(acc0)}, {v(acc0+1)}
          v_mul_f32 {v(33)}, {v(acc0)}, {v(acc0)}
          v_fma_f32 {v(33)}, {v(acc0+1)}, {v(acc0+1)}, {v(33)}""")
    for i in range(2, 16):
        A(f"v_add_f32 {v(32)}, {v(32)}, {v(acc0+i)}\nv_fma_f32 {v(33)}, {v(acc0+i)}, {v(acc0+i)}, {v(33)}")
    halves(32, 34)
    halves(33, 35)
    A(f"""v_add_f32 {v(32)}, {v(32)}, {v(34)}
          v_add_f32 {v(33)}, {v(33)}, {v(35)}
          v_lshlrev_b32 {v(34)}, 3, {v(vLANE)}
          s_not_b64 exec, {s(sHI,2)}""")
    hstore([f"buffer_store_dwordx2 {v(32,2)}, {v(34)}, {s(SW,4)}, {s(sT2)} offen"], "xst", xnear)
    A("s_mov_b64 exec, -1")
    stamp()
    cut("p2")
    for n in range(early + mid, NRING):
        sdma(n)
    A(f"""s_mul_i32 {s(sK)}, {s(sTB)}, {2 * 112}
          s_lshl_b32 {s(sT0)}, {s(sCB)}, 2
          s_add_u32 {s(sT0)}, {s(sT0)}, {s(sW)}
          s_sub_u32 {s(sT0)}, {s(sT0)}, 4
          s_lshl_b32 {s(sT0)}, {s(sT0)}, 2
          s_add_u32 {s(sK)}, {s(sK)}, {s(sT0)}
          s_lshl_b32 {s(sK)}, {s(sK)}, 10
          s_add_u32 {s(sK)}, {s(sK)}, {HH}""")
    npre = int(OPT.get("npre", 9))
    xsig = int(OPT.get("xsig", 4))
    for n in range(npre + 1):
        if n < npre:
            sread(n)
        if n == xsig:
            signal(N_X, own_slot(FX), "xst", near=xnear)
        if n >= 1:
            refill(n - 1 + NRING)
    stamp()
    cut("w3")

    gate(G_X, setup_x, 32)
    stamp()
    A(f"""s_mul_i32 {s(sT1)}, {s(sTB)}, {56 * 1024}
          s_add_u32 {s(sT1)}, {s(sT1)}, {X1}
          s_lshl_b32 {s(sT3)}, {s(sW)}, 10
          s_lshl_b32 {s(sT2)}, {s(sR)}, 12
          s_add_u32 {s(sT2)}, {s(sT2)}, {s(sT3)}
          s_add_u32 {s(sT3)}, {s(sT3)}, {LA}""")
    for i in range(7):
        if i:
            A(f"""s_add_u32 {s(sT2)}, {s(sT2)}, 4096
                  s_sub_u32 {s(sT5)}, {s(sT2)}, 28672
                  s_cmp_ge_u32 {s(sT2)}, 28672
                  s_cselect_b32 {s(sT2)}, {s(sT5)}, {s(sT2)}""")
        A(f"s_add_u32 {s(sT5)}, {s(sT1)}, {s(sT2)}")
        for tt in range(2):
            dma(sT3, tt * 28672 + i * 4096, vL16, SW, (f"s_add_u32 {s(sT0)}, {s(sT5)}, {tt * 28672}", s(sT0)), ("x1", min(i // 2, 2)), sc=" sc1")
    vB, stt, cst, bring = 27, 32, 28, 40
    A(f"""v_and_b32 {v(vT0)}, 31, {v(vLANE)}
          v_lshrrev_b32 {v(vT1)}, 5, {v(vLANE)}
          v_mul_u32_u24 {v(vT1)}, {14 * 256}, {v(vT1)}
          v_lshl_add_u32 {v(vT2)}, {v(vT0)}, 3, {v(vT1)}
          s_mul_i32 {s(sT1)}, {s(sTB)}, {28 * 256}
          s_lshl_b32 {s(sT2)}, {s(sW)}, 8
          s_add_u32 {s(sT1)}, {s(sT1)}, {s(sT2)}
          s_add_u32 {s(sT1)}, {s(sT1)}, {ST}
          s_cmp_lt_u32 {s(sW)}, 2
          s_cselect_b32 {s(sT2)}, {s(sT1)}, {OOB}
          v_add_u32 {v(vB)}, {LA}, {v(vL16)}""")
    for i in range(4):
        A.vmem(f"buffer_load_dwordx2 {v(stt+2*i,2)}, {v(vT2)}, {s(SW,4)}, {s(sT1 if i < 3 else sT2)} offen offset:{i*1024} sc1", "st")
    A(f"""s_lshl_b32 {s(sT1)}, {s(sCB)}, 2
          s_add_u32 {s(sT1)}, {s(sT1)}, {s(sW)}
          s_lshl_b32 {s(sT1)}, {s(sT1)}, 9
          s_add_u32 {s(sT1)}, {s(sT1)}, {CS - 2048}
          v_lshlrev_b32 {v(vT3)}, 3, {v(vLANE)}""")
    A.vmem(f"buffer_load_dwordx2 {v(cst,2)}, {v(vT3)}, {s(SW,4)}, {s(sT1)} offen sc1", "cs")
    A.wait_vm(("x1", 0))
    arrive(C_XA)
    await_cnt(C_XA)
    acc4 = [64, 80, 96, 112]

    def bread(ks):
        for tt in range(2):
            A.ds(f"ds_read_b128 {v(bring + 8 * (ks % 3) + 4 * tt, 4)}, {v(vB)} offset:{(tt * 28 + ks) * 1024}", ("b", ks))

    lag = int(OPT.get("lag", 7))
    plan, rstep = {}, {}
    nxt = npre
    for ks in range(28):
        while nxt < 44 and len(plan.get(ks, [])) < 2:
            ready = nxt - 16 < ks and (nxt - NRING < npre or rstep[nxt - NRING] + 1 + lag <= ks)
            if not (ready or (nxt < 28 and nxt - 2 <= ks)):
                break
            plan.setdefault(ks, []).append(nxt)
            rstep[nxt] = ks
            nxt += 1
    assert nxt >= 28 and all(n - 16 < ks and (n >= 28 or n >= ks + 1) for ks in plan for n in plan[ks]), plan
    pend = []
    if "p4" in OPT:
        stamp()
    bread(0)
    bread(1)
    for ks in range(28):
        if ks == 2:
            A.wait_vm(("x1", 1))
            arrive(C_XA)
        if ks == 5:
            await_cnt(C_XA, 8)
        if ks == 8:
            A.wait_vm(["cs", "st", ("x1", 2)])
            A(f"""v_add_f32 {v(stt)}, {v(stt)}, {v(stt+2)}
                  v_add_f32 {v(stt+1)}, {v(stt+1)}, {v(stt+3)}
                  v_add_f32 {v(stt+4)}, {v(stt+4)}, {v(stt+6)}
                  v_add_f32 {v(stt+5)}, {v(stt+5)}, {v(stt+7)}
                  s_lshl_b32 {s(sT0)}, {s(sW)}, 9
                  s_add_u32 {s(sT0)}, {s(sT0)}, {L_STAT}
                  v_add_f32 {v(stt)}, {v(stt)}, {v(stt+4)}
                  v_add_f32 {v(stt+1)}, {v(stt+1)}, {v(stt+5)}
                  v_lshl_add_u32 {v(vT2)}, {v(vLANE)}, 3, {s(sT0)}""")
            A.ds(f"ds_write_b64 {v(vT2)}, {v(stt,2)}", "sw")
            arrive(C_XB)
        if ks == 13:
            await_cnt(C_XB)
            A(f"v_lshlrev_b32 {v(vT2)}, 3, {v(vLANE)}\nv_add_u32 {v(vT2)}, {L_STAT}, {v(vT2)}")
            for q in range(4):
                A.ds(f"ds_read_b64 {v(stt+2*q,2)}, {v(vT2)} offset:{q*512}", "sr")
        A.wait_lg([("b", ks), ("s", ks)])
        acts = [lambda: bread(ks + 2)] if ks + 2 < 28 else []
        rd = [f for n in plan.get(ks, []) for f in sread_p(n)]
        rf = [f for n in pend for f in refill_p(n + NRING)]
        while rd or rf:
            acts += rf[:1] + rd[:1]
            rf, rd = rf[1:], rd[1:]
        pend = plan.get(ks, [])
        gaps([lambda t=t: mfma(v(acc4[t], 16), a(sreg(ks, t >> 1), 4), v(bring + 8 * (ks % 3) + 4 * (t & 1), 4), 0 if ks == 0 else None)
              for t in range(4)], acts)
        if "p4" in OPT and ks in (3, 6, 12, 15, 21):
            stamp()
        if ks == 16:
            A.wait_lg("sr")
            A(f"""v_add_f32 {v(stt)}, {v(stt)}, {v(stt+2)}
                  v_add_f32 {v(stt+1)}, {v(stt+1)}, {v(stt+3)}
                  v_add_f32 {v(stt+4)}, {v(stt+4)}, {v(stt+6)}
                  v_add_f32 {v(stt+5)}, {v(stt+5)}, {v(stt+7)}
                  v_add_f32 {v(stt)}, {v(stt)}, {v(stt+4)}
                  v_add_f32 {v(stt+1)}, {v(stt+1)}, {v(stt+5)}
                  v_add_f32 {v(cst)}, {v(cst)}, {v(cst+1)}""")
        if ks == 17:
            A(f"""v_mul_f32 {v(stt)}, {f32(-1/448)}, {v(stt)}
                  v_mul_f32 {v(stt+1)}, {f32(1/448)}, {v(stt+1)}
                  v_mul_f32 {v(stt+2)}, {v(stt)}, {v(stt)}
                  v_sub_f32 {v(stt+1)}, {v(stt+1)}, {v(stt+2)}
                  v_max_f32 {v(stt+1)}, 0, {v(stt+1)}
                  v_add_f32 {v(stt+1)}, {f32(EPS)}, {v(stt+1)}""")
        if ks == 18:
            halves(stt, stt + 2)
            halves(stt + 1, stt + 3)
            halves(cst, cst + 1)
    arrive(C_P4)
    vAE, vBE, gt, gpk = 40, 48, 56, 40
    for nt in range(2):
        c = cst + nt
        A(f"""v_cvt_pk_bf16_f32 {v(vT0)}, {v(c)}, {v(c)}
              v_and_b32 {v(vT1)}, 0xffff0000, {v(vT0)}
              v_sub_f32 {v(vT1)}, {v(c)}, {v(vT1)}
              v_cvt_pk_bf16_f32 {v(vAE+4*nt)}, {v(c)}, {v(vT1)}
              v_and_b32 {v(vAE+4*nt+1)}, 0xffff, {v(vT0)}
              v_mov_b32 {v(vAE+4*nt+2)}, 0
              v_mov_b32 {v(vAE+4*nt+3)}, 0""")
    for tt in range(2):
        m, b = stt + 2 * tt, vBE + 4 * tt
        A(f"""v_cvt_pk_bf16_f32 {v(vT0)}, {v(m)}, {v(m)}
              v_and_b32 {v(vT1)}, 0xffff0000, {v(vT0)}
              v_sub_f32 {v(vT1)}, {v(m)}, {v(vT1)}
              v_cvt_pk_bf16_f32 {v(vT1)}, {v(vT1)}, 0
              v_cndmask_b32 {v(b)}, {v(vT0)}, 0, {s(sHI,2)}
              v_cndmask_b32 {v(b+1)}, {v(vT1)}, 0, {s(sHI,2)}
              v_mov_b32 {v(b+2)}, 0
              v_mov_b32 {v(b+3)}, 0""")
    A("s_nop 0")
    for t in range(4):
        mfma(v(acc4[t], 16), v(vAE + 4 * (t >> 1), 4), v(vBE + 4 * (t & 1), 4))
    kk = [60, 36]
    for tt in range(2):
        e, k = stt + 2 * tt + 1, kk[tt]
        A(f"""v_rsq_f32 {v(vT0)}, {v(e)}
              s_nop 0
              v_mul_f32 {v(k+2)}, {v(e)}, {v(vT0)}
              v_mul_f32 {v(k)}, {f32(GC1)}, {v(vT0)}
              v_mul_f32 {v(k+1)}, {v(vT0)}, {v(vT0)}
              v_mul_f32 {v(k+1)}, {v(k+1)}, {v(vT0)}
              v_mul_f32 {v(k+1)}, {f32(GC2)}, {v(k+1)}""")
    stamp()
    ops = []
    for t in range(4):
        tt, b = t & 1, t >> 1
        for i in range(8):
            def pair(i=i, t=t, tt=tt):
                for op in gelu_ops(acc4[t] + 2 * i, gt, gpk + 8 * (t & 1) + i, kk[tt], kk[tt] + 1, kk[tt] + 2):
                    A(op)
            ops.append(pair)
            if i in (3, 7):
                def st(c=i >> 2, t=t, tt=tt, b=b):
                    A(f"s_add_u32 {s(sT0)}, {s(sK)}, {(tt * 112 + b * 2) * 1024}")
                    hstore([f"buffer_store_dwordx4 {v(gpk+8*(t&1)+4*c,4)}, {v(vL16)}, {s(SW,4)}, {s(sT0)} offen offset:{c*1024}"], ("Hst", b), hnear)
                ops.append(st)
        if t == 2:
            ops.append(lambda: signal(N_G, own_slot(FG), ("Hst", 0), near=hnear))
    fill = [f for n in pend for f in refill_p(n + NRING)]
    for n in range(nxt, 44):
        fill.append(lambda n=n: sread(n))
        if n > nxt:
            fill += refill_p(n - 1 + NRING)
    weave(A, ops, fill)
    if nxt < 44:
        refill(43 + NRING)
    vHH = 26
    A(f"""s_mul_i32 {s(sT0)}, {s(sGT)}, 4
          s_add_u32 {s(sT0)}, {s(sT0)}, {s(sW)}
          s_mul_i32 {s(sT0)}, {s(sT0)}, {28 * 1024}
          v_add_u32 {v(vHH)}, {s(sT0)}, {v(vL16)}
          s_xor_b32 {s(sT0)}, {s(sGT)}, 1
          s_mul_i32 {s(sT0)}, {s(sT0)}, 4
          s_add_u32 {s(sT0)}, {s(sT0)}, {s(sW)}
          s_mul_i32 {s(sT0)}, {s(sT0)}, {28 * 1024}
          v_add_u32 {v(vHH+1)}, {s(sT0)}, {v(vL16)}""")
    acc6 = [64, 80, 96, 112]
    for i in range(8):
        A(f"v_lshlrev_b32 {v(64+2*i)}, 16, {v(vX1P+i)}\nv_and_b32 {v(65+2*i)}, 0xffff0000, {v(vX1P+i)}")
    stamp()
    cut("w4")

    def setup_tb(base, inv):
        def f():
            A(f"""s_lshl_b32 {s(sT0)}, {s(sTB)}, 10
                  s_add_u32 {s(sT0)}, {s(sT0)}, {base}
                  v_lshlrev_b32 {v(vT1)}, 7, {v(vLANE)}
                  v_add_u32 {v(vT1)}, {s(sT0)}, {v(vT1)}
                  s_mov_b32 {s(sINV)}, {inv}
                  s_mov_b32 {s(sINV+1)}, -1""")
            lanes_to(vT1)
        return f
    peek_issue(setup_tb(FG, 0xffffff01), 34, 36)
    vO, vOUT = 28, 30
    A(f"""s_lshl_b32 {s(sT0)}, {s(sGT)}, 2
          s_add_u32 {s(sT0)}, {s(sT0)}, {s(sW)}
          s_lshl_b32 {s(sT0)}, {s(sT0)}, 13
          v_add_u32 {v(vO)}, {s(sT0)}, {v(vL16)}
          v_xor_b32 {v(vO+1)}, 0x8000, {v(vO)}
          v_and_b32 {v(32)}, 31, {v(vLANE)}
          s_lshl_b32 {s(sT0)}, {s(sGT)}, 5
          v_add_u32 {v(32)}, {s(sT0)}, {v(32)}
          v_mul_u32_u24 {v(32)}, 896, {v(32)}
          v_lshrrev_b32 {v(33)}, 5, {v(vLANE)}
          v_lshl_add_u32 {v(32)}, {v(33)}, 4, {v(32)}
          s_lshl_b32 {s(sT0)}, {s(sT4)}, 6
          v_add_u32 {v(vOUT)}, {s(sT0)}, {v(32)}""")
    signal(N_G2, own_slot(FG2), ("Hst", 1), near=hnear)
    peek_check(34, 36)
    stamp()
    hslots = [32, 36, 40, 44, 48, 52, 56, 60, 16, 20]
    NH = int(OPT.get("nh", 10))
    hsc = "" if "hplain" in OPT else " sc1"

    def bload(n):
        p, sl = n >> 1, n & 1
        if n < 56:
            if p % 2 == 0 and sl == 0:
                rot7(sRH, (p % 14) // 2, 4096, None)
                A(f"s_add_u32 {s(sV)}, {s(sRH)}, {HH}")
            addr, imm = vHH + sl, (2 * (p // 14) + p % 2) * 1024
        else:
            if p % 4 == 0 and sl == 0:
                A(f"s_mov_b32 {s(sV)}, {OB + 1024 * (p - 28)}")
            addr, imm = vO + sl, (p & 3) * 1024
        A.vmem(f"buffer_load_dwordx4 {v(hslots[n % NH], 4)}, {v(addr)}, {s(SW,4)}, {s(sV)} offen offset:{imm}{hsc}", ("H", n))

    def slotoffs(first):
        return [(0, i * 1024) if i < 14 else (1, (i - 14) * 1024) for i in range(first, first + 12)]

    vRW2 = [24, 25]
    for n in range(NH):
        bload(n)
    if OPT.get("tail", "ring") == "ring":
        vG, vA2 = 64, [24, 25, 26, 27, 2, 3, 31, 29 if NH == 10 else 63]

        def partner(sl):
            A(f"""s_xor_b32 {s(sT0)}, {s(sW)}, {sl}
                  s_mul_i32 {s(sT1)}, {s(sT0)}, 14336
                  s_mul_i32 {s(sT0)}, {s(sT0)}, 11264
                  s_add_u32 {s(sT0)}, {s(sT0)}, {LQ}
                  v_add_u32 {v(vA2[2*sl])}, {s(sT1)}, {v(vL16)}
                  v_add_u32 {v(vA2[2*sl+1])}, {s(sT0)}, {v(vL16)}""")
        side = {28: [], 29: [], 30: [], 31: [], 32: [], 33: [], 34: [], 35: []}
        for i in range(12):
            side[28 + (i + 2) // 5 + (1 if i < 0 else 0)].append(
                lambda i=i: A.ds(f"ds_write_b128 {v(24)}, {v(80 + 4 * i, 4)} offset:{i * 1024}", "red"))
        side[30].append(lambda: arrive(C_R2))
        side[32].append(lambda: await_cnt(C_R2))
        for sl in (1, 2, 3):
            side[32].append(lambda sl=sl: [A.ds(f"ds_read_b128 {v(64 + 16 * sl + 4 * q, 4)}, {v(vA2[2*sl])} offset:{((sl - 1) * 4 + q) * 1024}", ("rd", sl)) for q in range(4)])
        valu = []
        for sl in (1, 2, 3):
            valu.append(lambda sl=sl: A.wait_lg(("rd", sl)))
            valu += [lambda sl=sl, i=i: A(f"v_add_f32 {v(vG+i)}, {v(vG+i)}, {v(64 + 16 * sl + i)}") for i in range(16)]
        for i in range(8):
            y = vG + 2 * i
            valu += [lambda t=t: A(t) for t in f"""v_mul_f32 {v(80)}, {f32(-LOG2E)}, {v(y)}
                  v_mul_f32 {v(81)}, {f32(-LOG2E)}, {v(y+1)}
                  v_exp_f32 {v(80)}, {v(80)}
                  v_exp_f32 {v(81)}, {v(81)}
                  v_add_f32 {v(80)}, 1.0, {v(80)}
                  v_add_f32 {v(81)}, 1.0, {v(81)}
                  v_rcp_f32 {v(80)}, {v(80)}
                  v_rcp_f32 {v(81)}, {v(81)}
                  v_mul_f32 {v(y)}, {v(y)}, {v(80)}
                  v_mul_f32 {v(y+1)}, {v(y+1)}, {v(81)}""".split("\n")]
        nin = int(OPT.get("nin", 90))
        for n, f in enumerate(valu[:nin]):
            side[33 + (3 * n) // nin].append(f)
        for j in range(36):
            A.wait_vm(("H", 2 * j + 1))
            A.wait_lg(("s", 28 + j))
            if 2 * j + NH in (28, 56):
                peek_check()

            def mm(sl):
                d = v(acc6[sl], 16) if j < 28 else a(16 * sl, 16)
                mfma(d, a(sreg(28 + j, sl >> 1), 4), v(hslots[(2 * j + (sl & 1)) % NH], 4), 0 if (j == 0 and sl) or j == 28 else None)
            rd = sread_p(43 + j) if 1 <= j <= 20 else [None, None]
            rf = (refill_p(43 + j - 1 + NRING) if j >= 2 else []) or [None, None]
            ld = [(lambda n=n: bload(n)) if n < 72 else None for n in (2 * j + NH, 2 * j + NH + 1)]
            ex = side.get(j, [])
            lo = 2 if j == 28 else 0
            cut_ = [0] * (lo + 1) + [-(-len(ex) * (g + 1) // (4 - lo)) for g in range(4 - lo)]
            for g, (sl, todo) in enumerate(((0, [rf[0]]), (2, [ld[0], rd[0]]), (1, [rf[1]]), (3, [ld[1], rd[1]]))):
                mm(sl)
                if j == 28 and g == 1:
                    A("s_nop 6")
                for f in todo + ex[cut_[g]:cut_[g + 1]]:
                    if f:
                        f()
            if 2 * j + NH == 22:
                peek_issue(setup_tb(FG2, 0xffffff01))
            if 2 * j + NH == 50:
                peek_issue(setup_tb(FO, 0xffffff00))
            if j == 26:
                A.drain_lg()
                A(f"v_add_u32 {v(24)}, {s(sPA)}, {v(vL16)}\nv_add_u32 {v(25)}, {s(sPB)}, {v(vL16)}")
                partner(1)
                partner(2)
            if j == 27:
                stamp()
            if j == 31:
                partner(3)
        stamp()
        left = valu[nin:]
        for f in left[:12]:
            f()
        reduce_out([("a", 16), ("a", 32), ("a", 48)], C_R3, [24, 25], slotoffs(12), left[12:])
        for i in range(16):
            A(f"v_accvgpr_read_b32 {v(32+i)}, {a(i)}")
        stamp()
        reduce_in(32, 80, C_R3, lambda sl: vA2[2 * sl:2 * sl + 2], slotoffs(12))
        vS = 32
    else:
        vA2 = [24, 25, 26, 27, 2, 3, 31, 63]
        assert NH <= 8

        def partner(sl):
            A(f"""s_xor_b32 {s(sT0)}, {s(sW)}, {sl}
                  s_mul_i32 {s(sT1)}, {s(sT0)}, 14336
                  s_mul_i32 {s(sT0)}, {s(sT0)}, 11264
                  s_add_u32 {s(sT0)}, {s(sT0)}, {LQ}
                  v_add_u32 {v(vA2[2*sl])}, {s(sT1)}, {v(vL16)}
                  v_add_u32 {v(vA2[2*sl+1])}, {s(sT0)}, {v(vL16)}""")
        for j in range(28):
            A.wait_vm(("H", 2 * j + 1))
            A.wait_lg(("s", 28 + j))
            if 2 * j + NH == 28:
                peek_check()
            rd = sread_p(43 + j) if 1 <= j <= 20 else [None, None]
            rf = (refill_p(43 + j - 1 + NRING) if j >= 2 else []) or [None, None]
            ld = [(lambda n=n: bload(n)) if n < 56 else None for n in (2 * j + NH, 2 * j + NH + 1)]
            for sl, todo in ((0, [rf[0]]), (2, [ld[0], rd[0]]), (1, [rf[1]]), (3, [ld[1], rd[1]])):
                mfma(v(acc6[sl], 16), a(sreg(28 + j, sl >> 1), 4), v(hslots[(2 * j + (sl & 1)) % NH], 4), 0 if j == 0 and sl else None)
                for f in todo:
                    if f:
                        f()
            if 2 * j + NH == 22:
                peek_issue(setup_tb(FG2, 0xffffff01))
            if j == 25:
                A.drain_lg()
                peek_issue(setup_tb(FO, 0xffffff00), 60, 62)
                A(f"s_mov_b32 {s(sRH)}, 0\ns_mov_b32 {s(sV)}, {OB}\ns_mov_b32 {s(sRG)}, {OB + 4096}")
            if j == 26:
                A(f"v_add_u32 {v(24)}, {s(sPA)}, {v(vL16)}\nv_add_u32 {v(25)}, {s(sPB)}, {v(vL16)}")
                for sl in (1, 2, 3):
                    partner(sl)
        stamp()

        def oload(kq):
            for sl in range(2):
                A.vmem(f"buffer_load_dwordx4 {a(8 * kq + 4 * sl, 4)}, {v(vO+sl)}, {s(SW,4)}, {s(sV if kq < 4 else sRG)} offen offset:{(kq & 3) * 1024} sc1", ("o", kq))

        def try_o(last):
            done, again = A.newlabel("od"), A.newlabel("oa")
            A(f"s_cmp_lg_u32 {s(sRH)}, 0\ns_cbranch_scc1 {done}")
            A.vm = ["peek"]
            if last:
                peek_check(60, 62)
            else:
                A(f"""s_waitcnt vmcnt(0)
                      v_cmp_eq_u64 vcc, {s(sN,2)}, {v(60,2)}
                      s_or_b64 vcc, vcc, {s(sINV,2)}
                      s_cmp_eq_u64 vcc, -1
                      s_cbranch_scc0 {again}
                      s_mov_b32 {s(sRH)}, 1""")
            A.vm = []
            for kq in range(4):
                oload(kq)
            if not last:
                A(f"s_branch {done}")
                A.label(again)
                A(f"buffer_load_dwordx2 {v(60,2)}, {v(62)}, {s(SW,4)}, 0 offen sc1")
            A.label(done)

        try_o(False)
        A("s_nop 5")
        reduce_out([("v", 80), ("v", 96), ("v", 112)], C_R2, vA2[:2], slotoffs(0))
        try_o(False)
        vG = 32
        reduce_in(64, 80, C_R2, lambda sl: vA2[2 * sl:2 * sl + 2], slotoffs(0))
        for i in range(8):
            if i in (0, 4):
                try_o(False)
            y = 64 + 2 * i
            A(f"""v_mul_f32 {v(80)}, {f32(-LOG2E)}, {v(y)}
                  v_mul_f32 {v(81)}, {f32(-LOG2E)}, {v(y+1)}
                  v_exp_f32 {v(80)}, {v(80)}
                  v_exp_f32 {v(81)}, {v(81)}
                  v_add_f32 {v(80)}, 1.0, {v(80)}
                  v_add_f32 {v(81)}, 1.0, {v(81)}
                  v_rcp_f32 {v(80)}, {v(80)}
                  v_rcp_f32 {v(81)}, {v(81)}
                  v_mul_f32 {v(vG+2*i)}, {v(y)}, {v(80)}
                  v_mul_f32 {v(vG+2*i+1)}, {v(y+1)}, {v(81)}""")
        try_o(True)
        stamp()
        for kq in range(8):
            A.wait_vm(("o", kq))
            for n, sl in enumerate((1, 2, 3, 0)):
                mfma(v(acc6[sl], 16), a(sreg(56 + kq, sl >> 1), 4), a(8 * kq + 4 * (sl & 1), 4), 0 if kq == 0 else None)
                if n == 0 and kq < 4:
                    oload(kq + 4)
        stamp()
        A("s_nop 7\ns_nop 1")
        reduce_out([("v", 80), ("v", 96), ("v", 112)], C_R3, vA2[:2], slotoffs(12))
        reduce_in(64, 80, C_R3, lambda sl: vA2[2 * sl:2 * sl + 2], slotoffs(12))
        vS = 64
    for i in range(8):
        y = vS + 2 * i
        A(f"""v_lshlrev_b32 {v(80)}, 16, {v(vXD+i)}
              v_and_b32 {v(81)}, 0xffff0000, {v(vXD+i)}
              v_fma_f32 {v(80)}, {v(y)}, {v(vG+2*i)}, {v(80)}
              v_fma_f32 {v(81)}, {v(y+1)}, {v(vG+2*i+1)}, {v(81)}
              v_cvt_pk_bf16_f32 {v(84+i)}, {v(80)}, {v(81)}""")
    A("s_nop 1")
    for p in range(2):
        A(f"v_permlane32_swap_b32 {v(84+4*p)}, {v(86+4*p)}\nv_permlane32_swap_b32 {v(85+4*p)}, {v(87+4*p)}")
    for p in range(2):
        A.vmem(f"buffer_store_dwordx4 {v(84+4*p,4)}, {v(vOUT)}, {s(SOUT,4)}, 0 offen offset:{32*p} {OPT.get('osc', '').replace('+', ' ')}", "out")
    stamp()
    A.label(A.newlabel("pad") + "x")
    A(f"""s_memrealtime s[94:95]
          s_waitcnt lgkmcnt(0)
          s_sub_u32 s94, s94, s98
          s_cmp_lt_u32 s94, 3000
          s_cbranch_scc1 {A.lines[-1][:-1]}""")
    A("s_endpgm")

    for blk in late:
        A.lg = []
        blk()
    A.label("L_kv")
    A.vm = list(vm_kv)
    A.lg = []
    A(f"""v_mul_u32_u24 {v(vT0)}, 3584, {v(vC8)}
          s_min_u32 {s(sT2)}, {s(sTB)}, 27
          s_lshl_b32 {s(sT0)}, {s(sT2)}, 7
          s_mul_i32 {s(sT1)}, {s(sW)}, {112 * 3584}
          s_add_u32 {s(sT0)}, {s(sT0)}, {s(sT1)}
          v_add3_u32 {v(vW3)}, {v(vT0)}, {v(vC7)}, {s(sT0)}""")
    for i in range(16):
        A(f"v_sub_f32 {v(acc+i)}, {v(acc+i)}, {v(cs+i)}\nv_mul_f32 {v(acc+i)}, {v(acc+i)}, {v(vR)}")
    A(f"s_mov_b64 exec, {s(sHI,2)}")
    for i in range(12, 16):
        A(f"v_mov_b32 {v(acc+i)}, 0")
    A("s_mov_b64 exec, -1")
    for i in range(8):
        A(f"v_cvt_pk_bf16_f32 {v(pk+i)}, {v(acc+2*i)}, {v(acc+2*i+1)}")
    A(f"""s_lshl_b32 {s(sT4)}, {s(sGT)}, 12
          s_cmp_eq_u32 {s(sP)}, 1
          s_cbranch_scc1 L_v
          s_mov_b64 exec, {s(sHI,2)}
          v_mov_b32 {v(pk+6)}, {ONES}
          v_mov_b32 {v(pk+7)}, 0x3f80
          s_mov_b64 exec, -1
          buffer_store_dwordx4 {v(pk,4)}, {v(vL16)}, {s(SW,4)}, {s(sT4)} offen sc1
          buffer_store_dwordx4 {v(pk+4,4)}, {v(vL16)}, {s(SW,4)}, {s(sT4)} offen offset:1024 sc1
          v_mul_f32 {v(72)}, {v(acc)}, {v(acc)}""")
    for i in range(1, 16):
        A(f"v_fma_f32 {v(72)}, {v(acc+i)}, {v(acc+i)}, {v(72)}")
    halves(72, 73)
    A(f"""v_add_f32 {v(72)}, {v(72)}, {v(73)}
          v_mov_b32 {v(73)}, {L_KM}
          ds_max_u32 {v(73)}, {v(72)}
          s_branch L_kvdone""")
    A.label("L_v")
    A(f"""s_mov_b64 exec, {s(sHI,2)}
          v_mov_b32 {v(pk+6)}, 0x3f80
          s_mov_b64 exec, -1
          s_lshl_b32 {s(sT0)}, {s(sTT)}, 12
          s_add_u32 {s(sT0)}, {s(sT0)}, {L_VT}
          v_and_b32 {v(72)}, 31, {v(vLANE)}
          v_bfe_u32 {v(74)}, {v(72)}, 1, 1
          v_lshlrev_b32 {v(74)}, 6, {v(74)}
          v_lshrrev_b32 {v(73)}, 5, {v(vLANE)}
          v_lshl_add_u32 {v(73)}, {v(73)}, 3, {v(74)}
          v_lshl_add_u32 {v(72)}, {v(72)}, 7, {v(73)}
          v_add_u32 {v(72)}, {s(sT0)}, {v(72)}
          v_add3_u32 {v(73)}, {v(vTRD)}, {v(103)}, {s(sT0)}""")
    for g in range(4):
        A.ds(f"ds_write_b64 {v(72)}, {v(pk+2*g,2)} offset:{16*g}", "vt")
    for c in range(2):
        tr(("v", 76 + 4 * c), 73, c * 2048, 1024, "vr")
    A.drain_lg()
    A(f"buffer_store_dwordx4 {v(76,4)}, {v(vL16)}, {s(SW,4)}, {s(sT4)} offen offset:2048 sc1")
    A(f"buffer_store_dwordx4 {v(80,4)}, {v(vL16)}, {s(SW,4)}, {s(sT4)} offen offset:3072 sc1")
    A.label("L_kvdone")
    A.vm += ["kv", "kv"]
    nonce_take(30)
    signal(N_K, f"s_lshl_b32 {s(sT0)}, {s(sTB)}, 7\ns_add_u32 {s(sT0)}, {s(sT0)}, {FK}", "kv", payload=L_KM)
    stamps["n"] = 2
    stamp()
    await_cnt(C_PA, 8)
    for j in range(7):
        image(sPA, j * 2048, vW3, SQ, lambda e, j=j: f"s_mov_b32 {s(sT0)}, {j * 16 * 3584 + e}", 3584, "W3")
    A(f"v_add3_u32 {v(72)}, {v(vTRD)}, {v(103)}, {s(sPA)}\nv_xor_b32 {v(73)}, 64, {v(72)}")
    A.wait_vm("W3")
    for i in range(14):
        tr(("a", 4 * i), 72 + (i & 1), (i >> 1) * 2048, 1024, ("c", i))
    for i in range(14):
        A.wait_lg(("c", i))
        mfma(v(32 + 16 * (i & 1), 16), v(ones, 4), a(4 * i, 4), 0 if i < 2 else None)
    A(f"""s_lshl_b32 {s(sT0)}, {s(sW)}, 8
          s_add_u32 {s(sT0)}, {s(sT0)}, {LA + 32768}
          v_lshlrev_b32 {v(73)}, 2, {v(vLANE)}
          v_add_u32 {v(74)}, {s(sT0)}, {v(73)}
          s_nop 7
          v_cndmask_b32 {v(72)}, {v(32)}, {v(48)}, {s(sHI,2)}
          ds_write_b32 {v(74)}, {v(72)}""")
    arrive(C_R1)
    A(f"s_cmp_gt_u32 {s(sTB)}, 27\ns_cbranch_scc1 L_kvend\ns_cmp_lg_u32 {s(sW)}, 0\ns_cbranch_scc1 L_kvend")
    await_cnt(C_R1)
    A(f"""ds_read_b32 {v(75)}, {v(74)} offset:256
          ds_read_b32 {v(76)}, {v(74)} offset:512
          ds_read_b32 {v(77)}, {v(74)} offset:768
          s_lshl_b32 {s(sT1)}, {s(sTB)}, 9
          s_add_u32 {s(sT1)}, {s(sT1)}, {CS}
          v_lshlrev_b32 {v(74)}, 3, {v(vLANE)}
          s_waitcnt lgkmcnt(0)
          v_add_f32 {v(72)}, {v(72)}, {v(75)}
          v_add_f32 {v(73)}, {v(76)}, {v(77)}
          buffer_store_dwordx2 {v(72,2)}, {v(74)}, {s(SW,4)}, {s(sT1)} offen sc1
          s_lshl_b32 {s(sT0)}, {s(sTB)}, 7
          s_add_u32 {s(sT0)}, {s(sT0)}, {FC}
          v_mov_b32 {v(vT0)}, {s(sN)}
          v_mov_b32 {v(vT1)}, {s(sN+1)}
          s_waitcnt vmcnt(0)
          s_mov_b64 exec, 0xff
          buffer_store_dwordx4 {v(vT0,4)}, {v(vL16)}, {s(SW,4)}, {s(sT0)} offen sc1
          s_mov_b64 exec, -1""")
    A.label("L_kvend")

    gate(G_H, setup_tb(FH, 0xffffff01), 32, payload=lambda: (A(f"s_mov_b32 {s(sT2)}, 0xfe"), note_die(34)))
    arrive(C_P4)
    read_mode()
    A(f"""s_lshl_b32 {s(sT0)}, {s(sTB)}, 2
          s_add_u32 {s(sT0)}, {s(sT0)}, {s(sW)}
          s_mul_i32 {s(sT1)}, {s(sT0)}, 12544
          s_mul_i32 {s(sT2)}, {s(sT0)}, 3136
          v_lshlrev_b32 {v(74)}, 7, {v(vLANE)}""")
    if "notouch" not in OPT:
        A.vmem(f"buffer_load_dword {v(84)}, {v(74)}, {s(S4,4)}, {s(sT1)} offen", "t")
        A(f"s_add_u32 {s(sT1)}, {s(sT1)}, 8192\ns_bfm_b64 exec, 34, 0")
        A.vmem(f"buffer_load_dword {v(85)}, {v(74)}, {s(S4,4)}, {s(sT1)} offen", "t")
        A("s_bfm_b64 exec, 25, 0")
        A.vmem(f"buffer_load_dword {v(86)}, {v(74)}, {s(SO,4)}, {s(sT2)} offen", "t")
        A("s_mov_b64 exec, -1")
    A(f"""s_setprio 0
          s_cmp_eq_u32 {s(sLOC)}, 0
          s_cbranch_scc1 L_kvquit
          v_lshlrev_b32 {v(36)}, 7, {v(vLANE)}
          v_and_b32 {v(37)}, 7, {v(vLANE)}
          v_lshrrev_b32 {v(38)}, 3, {v(vLANE)}
          v_lshlrev_b32 {v(38)}, 15, {v(38)}
          v_lshl_add_u32 {v(37)}, {v(37)}, 7, {v(38)}
          s_lshl_b32 {s(sT0)}, {s(sTB)}, 10
          s_add_u32 {s(sT0)}, {s(sT0)}, {FX}
          s_lshl_b32 {s(sT3)}, {s(sW)}, 13""")
    A.vm = []
    warm(0, 37, sT0, "0xffffffff")
    jobs = ([(X1, 56 * 1024, 2), (ST, 7168, 1)] if xnear else []) + ([(HH, 224 * 1024, 7)] if hnear else []) + [(OB, 64 * 1024, 2)]
    n = 1
    for base, size, cnt in jobs:
        A(f"""s_mul_i32 {s(sT1)}, {s(sTB)}, {size}
              s_add_u32 {s(sT1)}, {s(sT1)}, {base}
              s_add_u32 {s(sT2)}, {s(sT1)}, {size}
              s_add_u32 {s(sT1)}, {s(sT1)}, {s(sT3)}""")
        for i in range(cnt):
            A(f"""s_cmp_lt_u32 {s(sT1)}, {s(sT2)}
                  s_cselect_b32 {s(sT0)}, {s(sT1)}, {OOB}
                  s_add_u32 {s(sT1)}, {s(sT1)}, 32768""")
            warm(n, 36, sT0, "0xffffffffffffff" if size == 7168 else -1)
            A(f"s_waitcnt vmcnt({OPT.get('wdepth', 0)})")
            n += 1
    A.label("L_kvquit")
    stamp()
    dump_stamps()
    A("s_endpgm")


def att(vm_entry):
    A.label("L_att")
    A.vm = list(vm_entry)
    A.lg = []
    stamps["n"] = 1
    acc, cs, ring, ones = 32, 48, 64, 96
    vM, vR = 8, 9
    A(f"""s_mul_i32 {s(sT0)}, {s(sCB)}, 112
          s_lshl_b32 {s(sT1)}, {s(sW)}, 3
          v_add_u32 {v(vT0)}, {s(sT1)}, {v(vC8)}
          v_mul_u32_u24 {v(vT0)}, 896, {v(vT0)}
          v_add3_u32 {v(vWQ)}, {v(vT0)}, {v(vC7)}, {s(sT0)}
          s_lshl_b32 {s(sPA)}, {s(sW)}, 10
          s_mul_i32 {s(sT0)}, {s(sP)}, 56
          v_add_u32 {v(103)}, {s(sT0)}, {v(103)}
          v_xor_b32 {v(103)}, {v(103)}, {v(102)}
          v_add_u32 {v(vT0)}, {v(vTRN)}, {v(103)}
          v_add_u32 {v(10)}, {LQ}, {v(vT0)}
          v_add_u32 {v(11)}, {LA}, {v(vT0)}""")
    nq0 = int(OPT.get("nq0", 11))
    for n in range(nq0):
        dma(sPA, LQ + n * 4096, vWQ, SQ, (f"s_mov_b32 {s(sT0)}, {n * 32 * 896}", s(sT0)), "WQ")
    early_stamp(6)
    A.wait_vm("X")
    barrier()
    early_dump()
    stamp()

    def setup_k():
        A(f"""v_lshlrev_b32 {v(vT1)}, 7, {v(vLANE)}
              v_add_u32 {v(vT1)}, {FK}, {v(vT1)}
              s_mov_b64 {s(sINV,2)}, {s(sHI,2)}""")
        lanes_to(vT1)

    def first():
        for n in range(nq0, 14):
            dma(sPA, LQ + n * 4096 if n < 11 else LA + (n - 11) * 4096, vWQ, SQ, (f"s_mov_b32 {s(sT0)}, {n * 32 * 896}", s(sT0)), "WQ")
        nonce_issue(12)
        touch("p1")
        prelook(setup_k, 120)
    stat_part(lambda: None)
    barrier()
    first()
    stat_read()
    for ks in range(28):
        A.ds(f"ds_read_b128 {a(4*ks,4)}, {v(vXF + (ks & 3))} offset:{(ks >> 2) * 8192}", ("x", ks))
    stat_fin(vM, vR)
    A(f"v_add_f32 {v(vR)}, {f32(EPS)}, {v(vR)}\nv_rsq_f32 {v(vR)}, {v(vR)}")
    A.drain_lg()
    arrive(C_PA)
    A(f"v_mul_f32 {v(vR)}, {f32(QSCALE)}, {v(vR)}")
    A.wait_vm(["WQ", "nonce"])
    arrive(C_WQ)
    nonce_take(12)
    A(f"""s_lshl_b32 {s(sT0)}, {s(sGT)}, 4
          s_lshl_b32 {s(sT1)}, {s(sCB)}, 1
          s_add_u32 {s(sT0)}, {s(sT0)}, {s(sT1)}
          s_add_u32 {s(sT0)}, {s(sT0)}, {s(sP)}
          s_lshl_b32 {s(sT0)}, {s(sT0)}, 11
          s_add_u32 {s(sB4)}, {s(sT0)}, {OB}
""")
    await_cnt(C_WQ)
    stamp()

    def wq(ks):
        tr(("v", ring + 4 * (ks % 8)), 10 if ks < 22 else 11, (ks % 22) * 2048, 512, ("w", ks))
    vG, vF = 12, 104
    aO, aQ, aK, vV = 0, 48, 80, 72
    O0, S, P = 16, [32, 48], 64

    misc = f"""s_lshl_b32 {s(sT0)}, {s(sW)}, 11
          s_add_u32 {s(sT0)}, {s(sT0)}, {L_QG}
          v_add_u32 {v(vG)}, {s(sT0)}, {v(vL16)}
          s_lshl_b32 {s(sT0)}, {s(sW)}, 8
          s_add_u32 {s(sT0)}, {s(sT0)}, {L_QN}
          v_lshlrev_b32 {v(14)}, 2, {v(vLANE)}
          v_add_u32 {v(15)}, {s(sT0)}, {v(14)}
          v_add_u32 {v(14)}, {L_QN}, {v(14)}
          s_add_u32 {s(sT0)}, {s(sCB)}, {s(sTB)}
          s_and_b32 {s(sT0)}, {s(sT0)}, 3
          s_lshl_b32 {s(sK)}, {s(sT0)}, 14
          s_add_u32 {s(sV)}, {s(sK)}, 0x4000
          s_and_b32 {s(sV)}, {s(sV)}, 0xffff
          s_lshl_b32 {s(sT0)}, {s(sW)}, 16
          v_add_u32 {v(vF)}, {s(sT0)}, {v(vL16)}
          v_add_u32 {v(vF+1)}, 4096, {v(vF)}
          v_add_u32 {v(vF+2)}, 8192, {v(vF)}
          v_add_u32 {v(vF+3)}, 12288, {v(vF)}""".split("\n")
    for sl in range(4):
        misc += [f"s_xor_b32 {s(sT0)}, {s(sW)}, {sl}", f"s_mul_i32 {s(sT0)}, {s(sT0)}, 12288",
                 f"s_add_u32 {s(sT0)}, {s(sT0)}, {LA}", f"v_add_u32 {v(124+sl)}, {s(sT0)}, {v(vL16)}"]
    misc += [f"v_mov_b32 {v(O0+i)}, 0" for i in range(16)]
    misc += [f"v_xor_b32 {v(108+sl)}, {sl << 11}, {v(vG)}" for sl in range(1, 4)]

    def qstep(ks):
        if ks + 6 < 28:
            wq(ks + 6)
        A.wait_lg(("w", ks))
        mfma(v(acc, 16), v(ring + 4 * (ks % 8), 4), a(4 * ks, 4), 0 if ks == 0 else None)
        mfma(v(cs, 16), v(ring + 4 * (ks % 8), 4), v(ones, 4), 0 if ks == 0 else None)
        if 14 <= ks < 26:
            for i in range(4):
                A(f"v_accvgpr_write_b32 {a(aO + 4 * (ks - 14) + i)}, 0")
    for ks in range(6):
        wq(ks)
    weave(A, [lambda ks=ks: qstep(ks) for ks in range(28)], [lambda t=t: A(t) for t in misc])
    hi = "prl" not in OPT

    def kload(slot, base):
        for c in range(2):
            A.vmem(f"buffer_load_dwordx4 {a(aK + 8*slot + 4*c, 4)}, {v(vF+slot)}, {s(SW,4)}, {s(base)} offen offset:{c*1024} sc1", "K")

    def vload(slot, base):
        for c in range(2):
            A.vmem(f"buffer_load_dwordx4 {v(vV + 8*slot + 4*c, 4)}, {v(vF+slot)}, {s(SW,4)}, {s(base)} offen offset:{2048 + c*1024} sc1", "V")

    def first_loads():
        A("s_setprio 3")
        for slot in range(3):
            kload(slot, sK)
            vload(slot, sK)
            if slot == 0:
                A("s_setprio " + OPT.get("aprio", "0"))
        kload(3, sK)
        A.vm = []

    stamp()
    A("s_nop 9")
    q = acc
    for i in range(16):
        A(f"v_fma_f32 {v(q+i)}, -{v(cs+i)}, {v(vM)}, {v(q+i)}\nv_mul_f32 {v(q+i)}, {v(q+i)}, {v(vR)}")
    A(f"s_mov_b64 exec, {s(sHI,2)}")
    for i in range(12, 16):
        A(f"v_mov_b32 {v(q+i)}, 0")
    A("s_mov_b64 exec, -1")
    for i in range(8):
        A(f"v_cvt_pk_bf16_f32 {v(48+i)}, {v(q+2*i)}, {v(q+2*i+1)}")
    A.ds(f"ds_write_b128 {v(vG)}, {v(48,4)}", "qg")
    A.ds(f"ds_write_b128 {v(vG)}, {v(52,4)} offset:1024", "qg")
    A(f"v_mul_f32 {v(56)}, {v(q)}, {v(q)}")
    for i in range(1, 16):
        A(f"v_fma_f32 {v(56)}, {v(q+i)}, {v(q+i)}, {v(56)}")
    halves(56, 57)
    A(f"v_add_f32 {v(56)}, {v(56)}, {v(57)}")
    A.ds(f"ds_write_b32 {v(15)}, {v(56)}", "qg")
    arrive(C_Q)
    for i in range(4):
        A(f"v_mov_b32 {v(P+4+i)}, 0\nv_mov_b32 {v(vV+28+i)}, 0")
    await_cnt(C_Q)
    for sl in range(4):
        for c in range(2):
            A.ds(f"ds_read_b128 {a(aQ + 8*sl + 4*c, 4)}, {v(108+sl if sl else vG)} offset:{c*1024}", "q")
    for sl in range(4):
        A.ds(f"ds_read_b32 {v(120+sl)}, {v(14)} offset:{sl*256}", "q")
    A.drain_lg()
    arrive(C_QD)
    A("s_setprio 3")
    gate(G_K, setup_k, 112, payload=lambda: A(f"v_mov_b32 {v(113)}, {L_KP}\nds_max_u32 {v(113)}, {v(114)}"))
    stamp()
    A(f"v_mov_b32 {v(113)}, {L_KP}\nds_read_b32 {v(112)}, {v(113)}")
    first_loads()
    A(f"""s_waitcnt lgkmcnt(0)
          v_max3_f32 {v(120)}, {v(120)}, {v(121)}, {v(122)}
          v_max_f32 {v(120)}, {v(120)}, {v(123)}
          v_mul_f32 {v(108)}, {v(112)}, {v(120)}
          v_cmp_nge_f32 vcc, {f32(-1.0 if FORCE_SLOW else BOUND2)}, {v(108)}
          s_cmp_lg_u64 vcc, 0
          s_cbranch_scc1 L_slow""")
    A.label("L_fast")
    A("s_waitcnt vmcnt(10)")

    def Oreg(sl):
        return v(O0, 16) if sl == 0 else a(aO + 16 * (sl - 1), 16)

    mfma(v(S[0], 16), a(aK, 4), a(aQ, 4), 0)
    mfma(v(S[0], 16), a(aK + 4, 4), a(aQ + 4, 4))
    A(f"s_mov_b32 {s(sT4)}, 4\ns_nop 7\ns_nop 1")
    A.label("L_aloop")

    def period(sg, qt):
        cur, nxt = S[qt & 1], S[(qt + 1) & 1]
        ks = sg if qt < 3 else (sg + 1) & 3
        vs = sg if qt > 0 else (sg - 1) & 3
        nq, pq = (qt + 1) & 3, (qt - 1) & 3
        e = lambda i: A(f"v_exp_f32 {v(cur+i)}, {v(cur+i)}")
        c = lambda i: A(f"v_cvt_pk_bf16_f32 {v(P+i)}, {v(cur+2*i)}, {v(cur+2*i+1)}")
        if qt == 3:
            A("s_waitcnt vmcnt(6)")
        mfma(v(nxt, 16), a(aK + 8 * ks, 4), a(aQ + 8 * nq, 4), 0)
        if qt == 3:
            A("s_setprio 3")
            vload((sg - 1) & 3, sK if sg == 0 else sV)
            kload(sg, sV)
            A("s_setprio " + OPT.get("aprio", "0"))
        e(0); e(1); e(2); e(3)
        mfma(Oreg(pq), v(vV + 8 * vs + 4, 4), v(P + 4, 4))
        c(0); c(1); e(4); e(5); e(6); e(7)
        mfma(v(nxt, 16), a(aK + 8 * ks + 4, 4), a(aQ + 8 * nq + 4, 4))
        c(2); c(3); e(8); e(9); e(10); e(11)
        mfma(Oreg(qt), v(vV + 8 * sg, 4), v(P, 4))
        c(4); c(5); e(12); e(13); e(14); e(15); c(6); c(7)

    for sg in range(4):
        for qt in range(4):
            period(sg, qt)
            A.vm = []
    A(f"""s_mov_b32 {s(sK)}, {s(sV)}
          s_add_u32 {s(sV)}, {s(sV)}, 0x4000
          s_and_b32 {s(sV)}, {s(sV)}, 0xffff
          s_cmp_eq_u32 {s(sT4)}, 2
          s_cselect_b32 {s(sV)}, {OOB}, {s(sV)}
          s_sub_u32 {s(sT4)}, {s(sT4)}, 1
          s_cmp_lg_u32 {s(sT4)}, 0
          s_cbranch_scc1 L_aloop""")
    mfma(Oreg(3), v(vV + 28, 4), v(P + 4, 4))
    stamp()
    A("s_setprio 3")
    A(f"""v_mov_b32 {v(vT0)}, {C_P4}
          ds_read_b32 {v(vT1)}, {v(vT0)}
          ds_read_b32 {v(vT2)}, {v(vT0)} offset:{L_MODE - C_P4}
          s_waitcnt lgkmcnt(0)
          v_readfirstlane_b32 {s(sT0)}, {v(vT1)}
          v_readfirstlane_b32 {s(sLOC)}, {v(vT2)}
          s_cmp_ge_u32 {s(sT0)}, 4
          s_cbranch_scc1 L_free""")
    await_cnt(C_P4)
    read_mode()
    A.label("L_free")
    A("s_nop 2")
    offs = [(0, i * 1024) for i in range(12)]
    if "mrg" in OPT:
        stamp()
    reduce_out([("a", aO), ("a", aO + 16), ("a", aO + 32)], C_MRG, [124], offs)
    if "mrg" in OPT:
        stamp()
        await_cnt(C_MRG)
        stamp()

    reduce_in(O0, [32, 48, 104], C_MRG, lambda sl: [124 + sl], offs)
    if "mrg" in OPT:
        stamp()
    A(f"v_mov_b32 {v(32)}, {v(O0+12)}")
    halves(32, 33)
    A(f"v_rcp_f32 {v(33)}, {v(33)}\ns_nop 0")
    for i in range(16):
        A(f"v_mul_f32 {v(O0+i)}, {v(O0+i)}, {v(33)}")
    for i in range(8):
        A(f"v_cvt_pk_bf16_f32 {v(40+i)}, {v(O0+2*i)}, {v(O0+2*i+1)}")
    A(f"s_mov_b64 exec, {s(sHI,2)}\nv_mov_b32 {v(46)}, 0\nv_mov_b32 {v(47)}, 0\ns_mov_b64 exec, -1")
    hstore([f"buffer_store_dwordx4 {v(40,4)}, {v(vL16)}, {s(SW,4)}, {s(sB4)} offen",
            f"buffer_store_dwordx4 {v(44,4)}, {v(vL16)}, {s(SW,4)}, {s(sB4)} offen offset:1024"])
    if "mrg" in OPT:
        stamp()
        A.drain_vm()
        stamp()
    signal(N_O, own_slot(FO), near=True)
    stamp()
    A.label(A.newlabel("pad") + "x")
    A(f"""s_memrealtime s[94:95]
          s_waitcnt lgkmcnt(0)
          s_sub_u32 s94, s94, s98
          s_cmp_lt_u32 s94, 3000
          s_cbranch_scc1 {A.lines[-1][:-1]}""")

    A("s_endpgm")

    A.label("L_slow")
    mx, kf = 108, 112
    for sl in range(4):
        A(f"v_mov_b32 {v(mx+sl)}, 0xff800000")
    A(f"s_mov_b32 {s(sT4)}, 0")
    A.label("L_sloop")
    A(f"""buffer_load_dwordx4 {v(kf,4)}, {v(vF)}, {s(SW,4)}, {s(sT4)} offen sc1
          buffer_load_dwordx4 {v(kf+4,4)}, {v(vF)}, {s(SW,4)}, {s(sT4)} offen offset:1024 sc1
          s_add_u32 {s(sT4)}, {s(sT4)}, 4096
          s_waitcnt vmcnt(0)""")
    for sl in range(4):
        mfma(v(S[0], 16), v(kf, 4), a(aQ + 8 * sl, 4), 0)
        mfma(v(S[0], 16), v(kf + 4, 4), a(aQ + 8 * sl + 4, 4))
        A("s_nop 11")
        for i in range(8):
            A(f"v_max3_f32 {v(mx+sl)}, {v(mx+sl)}, {v(S[0]+2*i)}, {v(S[0]+2*i+1)}")
    A(f"s_cmp_lt_u32 {s(sT4)}, 0x10000\ns_cbranch_scc1 L_sloop")
    A(f"v_and_b32 {v(kf)}, 31, {v(vLANE)}\nv_lshlrev_b32 {v(kf)}, 2, {v(kf)}\nv_add_u32 {v(kf)}, {L_MX}, {v(kf)}")
    for sl in range(4):
        halves(mx + sl, kf + 1)
        A(f"""v_max_f32 {v(mx+sl)}, {v(mx+sl)}, {v(kf+1)}
              s_xor_b32 {s(sT0)}, {s(sW)}, {sl}
              s_lshl_b32 {s(sT0)}, {s(sT0)}, 7
              v_add_u32 {v(kf+4+sl)}, {s(sT0)}, {v(kf)}""")
    A(f"ds_write_b32 {v(kf+4)}, {v(mx)}")
    arrive(C_MAX)
    await_cnt(C_MAX)
    for sl in range(1, 4):
        A(f"ds_max_f32 {v(kf+4+sl)}, {v(mx+sl)}")
    arrive(C_MAX)
    await_cnt(C_MAX, 8)
    t = 120
    for sl in range(4):
        A(f"""ds_read_b32 {v(t)}, {v(kf+4+sl)}
              s_waitcnt lgkmcnt(0)
              v_sub_f32 {v(t)}, 0, {v(t)}
              v_cvt_pk_bf16_f32 {v(t+1)}, {v(t)}, {v(t)}
              v_and_b32 {v(t+1)}, 0xffff0000, {v(t+1)}
              v_sub_f32 {v(t+2)}, {v(t)}, {v(t+1)}
              v_cvt_pk_bf16_f32 {v(t+3)}, {v(t)}, {v(t+2)}
              v_and_b32 {v(t+1)}, 0xffff0000, {v(t+3)}
              v_sub_f32 {v(t+2)}, {v(t+2)}, {v(t+1)}
              v_cvt_pk_bf16_f32 {v(t+2)}, {v(t+2)}, 0
              s_mov_b64 exec, {s(sHI,2)}
              v_accvgpr_write_b32 {a(aQ + 8*sl + 6)}, {v(t+3)}
              v_accvgpr_write_b32 {a(aQ + 8*sl + 7)}, {v(t+2)}
              s_mov_b64 exec, -1""")
    A("s_nop 1\ns_branch L_fast")


def header():
    ref = open(f"cdna_kernels/{NAME}.s.ref").read().split("\n")
    out = [l for l in ref if l.startswith(";") and "@launch" not in l and "Override" not in l and "grid=ceil" not in l]
    out.append(f"; @launch grid=(256,1,1) block=(512,1,1) lds={LDS_SIZE}")
    out += ['.amdgcn_target "amdgcn-amd-amdhsa--gfx950"', ".text", f".globl {NAME}_kernel", ".p2align 8",
            f".type {NAME}_kernel,@function", f"{NAME}_kernel:"]
    return "\n".join(out) + "\n"


def footer():
    return f"""L_end:
    s_endpgm
L_code_end:
.section .rodata,"a"
.p2align 6
.amdhsa_kernel {NAME}_kernel
  .amdhsa_next_free_vgpr 256
  .amdhsa_next_free_sgpr 102
  .amdhsa_accum_offset 128
  .amdhsa_group_segment_fixed_size 0
  .amdhsa_kernarg_size 104
  .amdhsa_user_sgpr_count 2
  .amdhsa_user_sgpr_kernarg_segment_ptr 1
  .amdhsa_system_sgpr_workgroup_id_x 1
.end_amdhsa_kernel
"""


if __name__ == "__main__":
    vm0 = prologue()
    mlp(vm0)
    att(vm0)
    out = [x for x in sys.argv[1:] if not x.startswith("--")]
    open(out[0] if out else "k.s", "w").write(header() + A.text() + footer())
```
